```python
import torch

def _softmax(x, axis=-1):
    return torch.softmax(x, dim=axis)
def _gelu(x):
    return torch.nn.functional.gelu(x, approximate="tanh")
def _silu(x):
    return torch.nn.functional.silu(x)
def _sigmoid(x):
    return torch.sigmoid(x)
def _layernorm(x, axis=-1, eps=1e-5):
    m = x.mean(dim=axis, keepdim=True)
    v = x.var(dim=axis, keepdim=True, unbiased=False)
    return (x - m) / torch.sqrt(v + eps)
def _scatter_add(tgt, idx, src, axis=0):
    return tgt.clone().index_add_(axis, idx, src)
def _segment_sum(src, seg, n):
    out = torch.zeros((n,) + src.shape[1:], dtype=src.dtype)
    return out.index_add_(0, seg, src)
def _pad(x, pw):
    flat = tuple(v for pair in reversed(pw) for v in pair)
    return torch.nn.functional.pad(x, flat)

kernel_name = 'parallel_sum__compressed_kv_cla__dense_activation_gelu__prompt'

def setup_inputs():

    _w = (lambda a: (lambda t: t.to(torch.bfloat16) if t.is_floating_point() else t)(torch.as_tensor(a)))
    def _A_setup():
        B, H, Sq, Sk, D, M = 1, 32, 2048, 2048, 128, 640
        Dc = 4 * D
        return {
            "x": _w((lambda *s: torch.randn(*s, dtype=torch.bfloat16) * 0.05)(B, Sq, M)),
            "c_kv": _w((lambda *s: torch.randn(*s, dtype=torch.bfloat16) * 0.4)(B, Sk, Dc)),
            "w_q": _w((lambda *s: torch.randn(*s, dtype=torch.bfloat16) * 3.2)(M, H, D) * (M ** -0.5)),
            "w_uk": _w((lambda *s: torch.randn(*s, dtype=torch.bfloat16) * 3.2)(Dc, H, D) * (Dc ** -0.5)),
            "w_uv": _w((lambda *s: torch.randn(*s, dtype=torch.bfloat16) * 0.4)(Dc, H, D) * (Dc ** -0.5)),
            "w_o": _w((lambda *s: torch.randn(*s, dtype=torch.bfloat16) * 0.4)(H, D, M) * ((H * D) ** -0.5)),
        }
    _A_in = _A_setup()

    def _B_setup():
        B, S, D, F = 1, 2048, 640, 1728
        return {
            "x": _w((lambda *s: torch.randn(*s, dtype=torch.bfloat16) * 0.05)(B, S, D)),
            "w1": _w((lambda *s: torch.randn(*s, dtype=torch.bfloat16) * 0.4)(D, F) * (D ** -0.5)),
            "b1": _w((lambda *s: torch.randn(*s, dtype=torch.bfloat16) * 12.8)(F) * 0.01),
            "w2": _w((lambda *s: torch.randn(*s, dtype=torch.bfloat16) * 0.2)(F, D) * (F ** -0.5)),
            "b2": _w((lambda *s: torch.randn(*s, dtype=torch.bfloat16) * 1.6)(D) * 0.01),
        }
    _B_in = _B_setup()

    return {
        "A_x": _A_in["x"],
        "A_c_kv": _A_in["c_kv"],
        "A_w_q": _A_in["w_q"],
        "A_w_uk": _A_in["w_uk"],
        "A_w_uv": _A_in["w_uv"],
        "A_w_o": _A_in["w_o"],
        "B_x": _B_in["x"],
        "B_w1": _B_in["w1"],
        "B_b1": _B_in["b1"],
        "B_w2": _B_in["w2"],
        "B_b2": _B_in["b2"],
    }

def reference(A_x, A_c_kv, A_w_q, A_w_uk, A_w_uv, A_w_o, B_x, B_w1, B_b1, B_w2, B_b2):
    def _A_ref(x, c_kv, w_q, w_uk, w_uv, w_o):
        B, Sq, M = x.shape[0], x.shape[1], x.shape[2]
        Sk = c_kv.shape[1]
        H, D = w_q.shape[1], w_q.shape[2]
        q = torch.einsum("bqm,mhd->bhqd", x, w_q)
        k = torch.einsum("bkc,chd->bhkd", c_kv, w_uk)
        v = torch.einsum("bkc,chd->bhkd", c_kv, w_uv)
        scores = torch.einsum("bhqd,bhkd->bhqk", q, k) * (D ** -0.5)
        off = Sk - Sq
        qi = torch.arange(Sq)[:, None]
        kj = torch.arange(Sk)[None, :]
        cmask = kj <= (qi + off)
        scores = torch.where(cmask[None, None], scores, -1e9)
        p = _softmax(scores, axis=-1)
        ctx = torch.einsum("bhqk,bhkd->bhqd", p, v)
        return torch.einsum("bhqd,hdm->bqm", ctx, w_o)

    def _B_ref(x, w1, b1, w2, b2):
        h = torch.einsum("bsd,df->bsf", x, w1) + b1
        h = _gelu(h)
        return torch.einsum("bsf,fd->bsd", h, w2) + b2

    x = A_x
    xn = _layernorm(x, axis=-1)
    return x + _A_ref(xn, A_c_kv, A_w_q, A_w_uk, A_w_uv, A_w_o) + _B_ref(xn, B_w1, B_b1, B_w2, B_b2)
```

```python
import re

def R(p, a, n=1):
    return f"{p}{a}" if n == 1 else f"{p}[{a}:{a+n-1}]"
def v(a, n=1): return R("v", a, n)
def ac(a, n=1): return R("a", a, n)
def s(a, n=1): return R("s", a, n)

_REG = re.compile(r"^-?\|?([vas])(?:(\d+)|\[(\d+):(\d+)\])\|?$")
def regs_of(tok):
    tok = tok.strip()
    if tok in ("vcc", "exec", "m0", "scc"): return {(tok, 0)}
    if tok in ("vcc_lo", "vcc_hi"): return {("vcc", 0)}
    m = _REG.match(tok)
    if not m: return set()
    p = m.group(1)
    if m.group(2) is not None: return {(p, int(m.group(2)))}
    return {(p, i) for i in range(int(m.group(3)), int(m.group(4)) + 1)}

TRANS = ("v_exp_f32", "v_log_f32", "v_rcp_f32", "v_rsq_f32", "v_sqrt_f32")

class I:
    __slots__ = ("t", "mn", "ops", "mods", "kind", "rd", "wr", "a", "b", "c", "lds")
    def __init__(self, t):
        self.t = t
        t = t.split(";")[0].strip()
        self.lds = False
        if t.endswith(":") or t.startswith(".") or not t:
            self.kind = "label"; self.mn = t; self.rd = set(); self.wr = set(); self.ops = []; self.mods = ""; return
        sp = t.split(None, 1)
        self.mn = mn = sp[0]
        rest = sp[1] if len(sp) > 1 else ""
        parts = [x.strip() for x in rest.split(",")] if rest else []
        mods = ""
        if parts:
            last = parts[-1].split(None, 1)
            if len(last) > 1 and not mn.startswith("s_waitcnt"):
                parts[-1] = last[0]; mods = last[1]
        fixed = []
        for p in parts:
            if fixed and fixed[-1].count("[") > fixed[-1].count("]"): fixed[-1] += "," + p
            else: fixed.append(p)
        parts = []
        for p in fixed:
            q = p.split(None, 1)
            parts.append(q[0])
            if len(q) > 1: mods += " " + q[1]
        self.ops = parts; self.mods = mods
        rd, wr = set(), set()
        rg = [regs_of(p) for p in parts]
        if mn.startswith("v_mfma"):
            self.kind = "mfma"; wr = rg[0]; self.a, self.b, self.c = rg[1], rg[2], rg[3]; rd = rg[1] | rg[2] | rg[3]
        elif mn.startswith("ds_read"):
            self.kind = "dsr"; wr = rg[0]; rd = rg[1]
        elif mn.startswith("ds_write"):
            self.kind = "dsw"; rd = set().union(*rg)
        elif mn.startswith("ds_"):
            self.kind = "dsr"; wr = rg[0]; rd = set().union(*rg[1:])
        elif mn.startswith("buffer_load"):
            self.kind = "vml"
            if "lds" in mods.split():
                self.lds = True; rd = set().union(*rg) | {("m0", 0)}
            else:
                wr = rg[0]; rd = set().union(*rg[1:])
        elif mn.startswith("global_load"):
            self.kind = "vml"; wr = rg[0]; rd = set().union(*rg[1:])
        elif mn.startswith("buffer_store") or mn.startswith("global_store"):
            self.kind = "vms"; rd = set().union(*rg)
            self.a = rg[0] if mn.startswith("buffer") else rg[1]
        elif mn.startswith("buffer_atomic") or mn.startswith("global_atomic"):
            self.kind = "vms"; rd = set().union(*rg); self.a = set()
            if "sc0" in mods.split(): self.kind = "vml"; wr = rg[0]
        elif mn in ("buffer_inv", "buffer_wbl2"):
            self.kind = "vms"; self.a = set()
        elif mn.startswith("s_load") or mn in ("s_memtime", "s_memrealtime"):
            self.kind = "smem"; wr = rg[0]; rd = set().union(*rg[1:]) if len(rg) > 1 else set()
        elif mn == "s_waitcnt": self.kind = "wait"; self.mods = rest
        elif mn == "s_nop": self.kind = "nop"
        elif mn == "s_barrier": self.kind = "bar"
        elif mn.startswith("s_cbranch") or mn == "s_branch" or mn.startswith("s_setpc") or mn.startswith("s_swappc") or mn == "s_endpgm" or mn.startswith("s_call"):
            self.kind = "br"
            if "vcc" in mn: rd = {("vcc", 0)}
            if mn.startswith("s_swappc") or mn.startswith("s_call"): wr = rg[0]
        elif mn.startswith("s_cmp"): self.kind = "salu"; rd = set().union(*rg)
        elif mn.startswith("s_"):
            self.kind = "salu"
            if rg: wr = rg[0]; rd = set().union(*rg[1:]) if len(rg) > 1 else set()
        elif mn.startswith("v_"):
            self.kind = "valu"
            if mn.startswith("v_cmp"):
                wr = rg[0]; rd = set().union(*rg[1:])
            elif mn.startswith("v_permlane") and "swap" in mn:
                wr = rg[0] | rg[1]; rd = rg[0] | rg[1]
            else:
                wr = rg[0]; rd = set().union(*rg[1:]) if len(rg) > 1 else set()
                if mn.startswith(("v_fmac", "v_dot2c")): rd |= rg[0]
                if "_dpp" in mn: rd |= rg[0]
                if mn.startswith(("v_add_co", "v_addc_co", "v_sub_co")): wr |= rg[1]
                if mn.startswith("v_cndmask") and len(parts) == 3: rd |= {("vcc", 0)}
        else:
            raise ValueError("unknown instr " + t)
        self.rd, self.wr = rd, wr

def passes(mn): return 8 if "32x32" in mn else 4

def check_trace(trace, name="", entry_ok=True):
    errs = []
    pos = 0
    lastw = {}
    mfma_c = {}
    st_data = {}
    lg = []
    vm = []
    exec_w = -100
    def err(i, msg):
        errs.append(f"[{name}] {msg}: {i.t.strip()}")
    skip = None
    for i in trace:
        k = i.kind
        if skip is not None:
            if k == "label" and i.mn == skip: skip = None
            continue
        if i.mn == "s_cbranch_vccz" and i.ops[0].endswith("_ok"): skip = i.ops[0] + ":"
        if k == "label": continue
        if k == "wait":
            m = re.search(r"vmcnt\((\d+)\)", i.mods)
            if m:
                n = int(m.group(1)); vm = vm[len(vm) - n:] if n < len(vm) else vm
                if n == 0: vm = []
            m = re.search(r"lgkmcnt\((\d+)\)", i.mods)
            if m:
                n = int(m.group(1))
                if any(x[1].kind == "smem" for x in lg) and n != 0:
                    err(i, "counted lgkm wait with smem outstanding")
                lg = lg[len(lg) - n:] if n < len(lg) else lg
                if n == 0: lg = []
            pos += 1; continue
        if k == "nop":
            pos += int(i.ops[0], 0) + 1; continue
        touched = i.rd | i.wr
        for q, nm in ((lg, "lgkm"), (vm, "vm")):
            for regs, src in q:
                if regs & touched and not (k in ("dsr", "vml") and not (regs & i.rd) and src.kind == k):
                    err(i, f"touches pending {nm} load dest of '{src.t.strip()}'")
        def dist(p): return pos - p - 1
        for r in i.rd:
            if r in lastw:
                p, w = lastw[r]; d = dist(p); need = 0
                if w.kind == "mfma":
                    P = passes(w.mn)
                    if k == "mfma":
                        if r in i.a or r in i.b: need = P + 4
                        elif i.c == w.wr and passes(i.mn) == P: need = 0
                        else: need = P + 2
                    elif k in ("valu", "dsw", "dsr", "vml", "vms"): need = P + 4
                elif w.kind == "valu":
                    if r[0] in "va" and len(r[0]) == 1:
                        if k == "mfma": need = 2
                        elif k == "valu":
                            if i.mn.startswith("v_permlane") or "_dpp" in i.mn: need = 2
                            elif i.mn.startswith(("v_readfirstlane", "v_readlane")): need = 1
                            if w.mn.startswith(TRANS) and not i.mn.startswith(TRANS): need = max(need, 1)
                    else:
                        if k in ("vml", "vms"): need = 5
                        elif k == "valu":
                            need = 4 if i.mn.startswith(("v_readlane", "v_writelane", "v_div_fmas")) else 2
                        elif k in ("salu", "br"): need = 0
                elif w.kind == "salu" and r == ("m0", 0) and i.lds: need = 1
                if d < need: err(i, f"RAW needs {need} got {d} after '{w.t.strip()}'")
        for r in i.wr:
            if r in lastw:
                p, w = lastw[r]; d = dist(p)
                if w.kind == "mfma" and k in ("valu", "dsr", "vml"):
                    need = passes(w.mn) + 4
                    if d < need: err(i, f"WAW needs {need} got {d} after '{w.t.strip()}'")
                if w.kind == "mfma" and k == "mfma" and not (i.c == w.wr and i.wr == w.wr):
                    need = passes(w.mn) + 2 if r in i.c else 0
                    if d < need: err(i, f"WAW mfma needs {need} got {d} after '{w.t.strip()}'")
            if k == "valu" and r in mfma_c:
                p, w = mfma_c[r]; need = passes(w.mn) - 1
                if dist(p) < need: err(i, f"WAR srcC needs {need} got {dist(p)} after '{w.t.strip()}'")
            if r in st_data:
                need = 2 if k == "valu" else 1
                if dist(st_data[r]) < need: err(i, f"WAR store data needs {need}")
        if k == "valu" and ("exec", 0) in i.wr: exec_w = pos
        if k == "mfma" and pos - exec_w - 1 < 4: err(i, "exec write -> mfma needs 4")
        for r in i.wr: lastw[r] = (pos, i)
        if k == "mfma":
            for r in i.c: mfma_c[r] = (pos, i)
        if k == "vms" and ("x4" in i.mn or "x3" in i.mn):
            for r in i.a: st_data[r] = pos
        if k in ("dsr", "dsw"): lg.append((i.wr, i))
        if k == "smem": lg.append((i.wr, i))
        if k in ("vml", "vms"): vm.append((i.wr, i))
        if len(lg) > 15 and not any(x[1].kind == "smem" for x in lg): err(i, "more than 15 lgkm ops outstanding")
        if len(vm) > 63: err(i, "more than 63 vm ops outstanding")
        pos += 1
    return errs

class E:
    def __init__(self):
        self.l = []
        self.lg = []
        self.vm = []
    def __call__(self, txt, tag=None):
        for x in txt.strip("\n").split("\n"):
            x = x.strip()
            if not x or x.startswith(";"): continue
            i = I(x)
            self.l.append(i)
            if i.kind in ("dsr", "dsw", "smem"): self.lg.append((i.wr, tag))
            elif i.kind in ("vml", "vms"): self.vm.append((i.wr, tag))
            elif i.kind == "wait":
                m = re.search(r"vmcnt\((\d+)\)", i.mods)
                if m:
                    n = int(m.group(1)); self.vm = self.vm[len(self.vm) - n:] if 0 < n < len(self.vm) else ([] if n == 0 else self.vm)
                m = re.search(r"lgkmcnt\((\d+)\)", i.mods)
                if m:
                    n = int(m.group(1)); self.lg = self.lg[len(self.lg) - n:] if 0 < n < len(self.lg) else ([] if n == 0 else self.lg)
    def _n(self, q, regs, tags):
        idx = -1
        for k, (r, t) in enumerate(q):
            if (r & regs) or (t is not None and t in tags): idx = k
        return None if idx < 0 else len(q) - 1 - idx
    def wait_text(self, regs=frozenset(), lgtags=(), vmtags=(), lg0=False):
        a = self._n(self.lg, regs, lgtags); b = self._n(self.vm, regs, vmtags)
        if lg0 and self.lg: a = 0
        p = []
        if b is not None: p.append(f"vmcnt({b})")
        if a is not None: p.append(f"lgkmcnt({a})")
        return ("s_waitcnt " + " ".join(p)) if p else None
    def need(self, regs=frozenset(), lgtags=(), vmtags=(), lg0=False):
        if isinstance(regs, str): regs = set().union(*[regs_of(x) for x in regs.split(",")])
        t = self.wait_text(regs, lgtags, vmtags, lg0)
        if t: self(t)
    def gaps(self, mf, fill, nxt=None):
        order = {"wait": 0, "bar": 0, "salu": 1, "br": 1, "nop": 1, "vml": 2, "vms": 2, "dsr": 3, "dsw": 3, "valu": 4, "label": 5}
        n = len(mf)
        for g in range(n):
            cur = I(mf[g])
            self.need(cur.rd | cur.wr)
            self(mf[g])
            nx = mf[g + 1] if g + 1 < n else nxt
            if nx:
                q = I(nx); self.need(q.rd | q.wr)
            items = []
            for f in fill[g]:
                if callable(f): items.append((9 if getattr(f, 'last', False) else 0, f, None))
                else:
                    t, tag = f if isinstance(f, tuple) else (f, None)
                    items.append((order[I(t).kind], t, tag))
            items.sort(key=lambda x: x[0])
            for _, t, tag in items:
                if callable(t): t(self)
                else:
                    q = I(t)
                    if q.kind in ("valu", "vms", "dsw"): self.need(q.rd | q.wr)
                    self(t, tag)
    def text(self):
        return "\n".join(i.t for i in self.l) + "\n"
```

```python
import sys, math, struct
from core import *

NAME = "parallel_sum__compressed_kv_cla__dense_activation_gelu__prompt"
def f32(x): return "0x%08x" % struct.unpack("<I", struct.pack("<f", x))[0]
CS = math.log2(math.e) / math.sqrt(128.0)

XS = 0x0000000; KF = 0x0400000; VF = 0x1400000; HF = 0x2400000; CF = 0x2C00000; WP = 0x3C00000; FL = 0x4400000; WS_END = 0x4500000
FKV = FL; FHC = FL + 0x4000; FW = FL + 0x8000
FS = 4
sW, sH, sIDX, sX = 3, 4, 5, 6
pX, pC, pWQ, pWUK, pWUV, pWO, pW1, pB1, pW2, pB2, pOUT, pDBG, pWS = 8, 10, 12, 14, 16, 18, 22, 24, 26, 28, 30, 32, 34
R0, R1, R2, R3, RWS = 36, 40, 44, 48, 52
sT = 56
sU = 64
sM0a, sM0b, sSa, sSb, sSc, sST = 65, 66, 67, 68, 69, 70
sQ = 72
MF = "v_mfma_f32_16x16x32_bf16"

def srd(e, r, p, nbytes, add=None):
    if add is None:
        e(f"s_mov_b32 s{r}, s{p}\ns_and_b32 s{r+1}, s{p+1}, 0xffff")
    else:
        e(f"s_add_u32 s{r}, s{p}, {add}\ns_addc_u32 s{r+1}, s{p+1}, 0\ns_and_b32 s{r+1}, s{r+1}, 0xffff")
    e(f"s_mov_b32 s{r+2}, {nbytes}\ns_mov_b32 s{r+3}, 0x20000")

vL16, vXR, vWQR, vW1R, vXD, vWQD, vW1D, vSC = 0, 1, 2, 10, 14, 18, 20, 21
vTR, vPK = 24, 28
vCD, vWD, vCR, vWR = 96, 100, 104, 106
vWWIN, vCB = 176, (224, 192)
HACC, QACC = 32, 96
XNB = (224, 240)

def prologue(e):
    e(f"""
    s_cmp_ge_u32 s2, 256
    s_cbranch_scc1 L_exit
    s_load_dwordx16 s[8:23], s[0:1], 0
    s_load_dwordx8 s[24:31], s[0:1], 64
    s_load_dwordx4 s[32:35], s[0:1], 96
    v_lshrrev_b32 v33, 6, v0
    v_and_b32 v32, 63, v0
    v_readfirstlane_b32 s{sW}, v33
    v_lshlrev_b32 v{vL16}, 4, v32
    s_and_b32 s{sX}, s2, 7
    s_lshr_b32 s{sT}, s2, 3
    s_and_b32 s{sT}, s{sT}, 3
    s_lshl_b32 s{sH}, s{sX}, 2
    s_add_u32 s{sH}, s{sH}, s{sT}
    s_lshr_b32 s{sIDX}, s2, 5
    """)
    e(f"""
    s_mul_i32 s{sU}, s{sX}, 3
    s_add_u32 s{sU}, s{sU}, s{sT}
    s_sub_u32 s{sT+1}, s{sX}, s{sIDX}
    s_and_b32 s{sT+1}, s{sT+1}, 7
    s_add_u32 s{sT+1}, s{sT+1}, 24
    s_cmp_eq_u32 s{sT}, 3
    s_cselect_b32 s{sU}, s{sT+1}, s{sU}
    s_waitcnt lgkmcnt(0)
    """)
    srd(e, RWS, pWS, WS_END)
    srd(e, R0, pX, 2048 * 1280)
    srd(e, R1, pC, 2048 * 1024)
    e(f"s_cmp_ge_u32 s{sW}, 2\ns_cselect_b32 s{R2}, s{pWUV}, s{pWUK}\ns_cselect_b32 s{R2+1}, s{pWUV+1}, s{pWUK+1}")
    e(f"s_and_b32 s{R2+1}, s{R2+1}, 0xffff\ns_mov_b32 s{R2+2}, {512*8192}\ns_mov_b32 s{R2+3}, 0x20000")
    e(f"""
    v_lshrrev_b32 v34, 5, v32
    v_and_b32 v35, 31, v32
    v_mul_u32_u24 v36, 1280, v34
    v_lshl_add_u32 v36, v35, 3, v36
    s_lshl_b32 s{sT}, s2, 2
    s_add_u32 s{sT}, s{sT}, s{sW}
    s_mul_i32 s{sT}, s{sT}, 2560
    """)
    for k in range(5):
        e(f"buffer_load_dwordx2 v[{40+2*k}:{41+2*k}], v36, s[{R0}:{R0+3}], s{sT} offen offset:{256*k}", tag="x")
    e(f"""
    v_lshrrev_b32 v37, 3, v32
    v_and_b32 v38, 7, v32
    v_lshrrev_b32 v39, 4, v32
    v_xor_b32 v50, v38, v39
    v_lshlrev_b32 v50, 4, v50
    v_lshl_add_u32 v{vCD}, v37, 10, v50
    v_xor_b32 v51, 64, v{vCD}
    v_add_u32 v{vCD+1}, 7168, v51
    v_add_u32 v{vCD+2}, {2*7168}, v{vCD}
    v_add_u32 v{vCD+3}, {3*7168}, v51
    v_and_b32 v52, 15, v32
    v_lshlrev_b32 v53, 1, v39
    v_xor_b32 v53, v52, v53
    v_lshlrev_b32 v53, 4, v53
    v_lshl_add_u32 v{vWD}, v39, 13, v53
    v_add_u32 v{vWD+1}, {31744}, v{vWD}
    v_xor_b32 v51, 128, v{vWD}
    v_add_u32 v{vWD+2}, {2*31744}, v51
    v_add_u32 v{vWD+3}, {3*31744}, v51
    """)
    e(f"""
    s_lshl_b32 s{sSa}, s{sIDX}, 18
    s_lshl_b32 s{sT+1}, s{sW}, 16
    s_add_u32 s{sSa}, s{sSa}, s{sT+1}
    s_lshl_b32 s{sM0a}, s{sW}, 13
    s_and_b32 s{sT+1}, s{sW}, 1
    s_lshl_b32 s{sSb}, s{sT+1}, 17
    s_lshl_b32 s{sT+2}, s{sH}, 8
    s_add_u32 s{sSb}, s{sSb}, s{sT+2}
    s_lshl_b32 s{sM0b}, s{sW}, 12
    s_add_u32 s{sM0b}, s{sM0b}, 0x10000
    """)

def p1_cdma(j, q):
    setup = []
    if q % 4 == 0:
        setup = [f"s_add_u32 m0, s{sM0a}, {(j & 1) * 32768 + (q >> 2) * 4096}", f"s_add_u32 s{sT}, s{sSa}, {j * 128 + (q >> 2) * 32768}"]
    return setup, f"buffer_load_dwordx4 v{vCD + (q & 3)}, s[{R1}:{R1+3}], s{sT} offen offset:{(q & 3) * 1024} lds"
def p1_wslot(sidx): return ((sidx + 2) & 3) * 16384
def p1_wdma(sidx, u):
    setup = []
    if u == 0:
        setup = [f"s_add_u32 m0, s{sM0b}, {p1_wslot(sidx)}", f"s_add_u32 s{sT+1}, s{sSb}, {sidx * 32 * 8192}"]
    return setup, f"buffer_load_dwordx4 v{vWD + u}, s[{R2}:{R2+3}], s{sT+1} offen offset:{u * 1024} lds"

def emit_dma(e, pair, tag):
    su, d = pair
    for x in su: e(x)
    if su: e("s_nop 0")
    e(d, tag=tag)

def reduce32(e, r, t):
    for mod in ("quad_perm:[1,0,3,2]", "quad_perm:[2,3,0,1]", "row_half_mirror", "row_mirror"):
        e("s_nop 1")
        e(f"v_add_f32_dpp v{r}, v{r}, v{r} {mod} row_mask:0xf bank_mask:0xf")
    e(f"v_mov_b32 v{t}, v{r}\ns_nop 1\nv_permlane16_swap_b32 v{r}, v{t}\nv_add_f32 v{r}, v{r}, v{t}")

def p0_ln(e):
    for q in range(8): emit_dma(e, p1_cdma(0, q), "c0")
    for u in range(4): emit_dma(e, p1_wdma(0, u), "w0")
    for u in range(4): emit_dma(e, p1_wdma(1, u), "w1")
    for q in range(8): emit_dma(e, p1_cdma(1, q), "c1")
    for u in range(4): emit_dma(e, p1_wdma(2, u), "w2")
    e(f"""
    v_lshrrev_b32 v54, 1, v52
    v_xor_b32 v54, v54, v39
    v_lshlrev_b32 v54, 4, v54
    v_lshl_add_u32 v54, v52, 7, v54
    s_and_b32 s{sT+2}, s{sW}, 1
    s_lshl_b32 s{sT+2}, s{sT+2}, 14
    v_add_u32 v{vCR}, s{sT+2}, v54
    v_xor_b32 v{vCR+1}, 64, v{vCR}
    v_lshrrev_b32 v55, 2, v52
    v_and_b32 v56, 1, v39
    v_lshl_add_u32 v56, v56, 2, v55
    v_lshlrev_b32 v56, 5, v56
    v_and_b32 v57, 3, v32
    v_lshlrev_b32 v57, 3, v57
    v_lshl_add_u32 v57, v55, 8, v57
    v_lshl_add_u32 v58, v39, 11, v57
    s_lshr_b32 s{sT+2}, s{sW}, 1
    s_lshl_b32 s{sT+2}, s{sT+2}, 13
    s_add_u32 s{sT+2}, s{sT+2}, 0x10000
    v_add_u32 v58, s{sT+2}, v58
    v_mul_u32_u24 v59, 3072, v39
    v_add_u32 v59, v59, v57
    v_add_u32 v59, {96*1024}, v59
    """)
    for i in range(8):
        e(f"v_xor_b32 v60, {32*i}, v56\nv_add_u32 v{vWR+i}, v60, v58\nv_add_u32 v{vWQR+i}, v60, v59")
    e(f"""
    v_lshrrev_b32 v60, 1, v55
    v_and_b32 v61, 1, v39
    v_lshl_add_u32 v60, v61, 1, v60
    v_lshlrev_b32 v60, 5, v60
    v_and_b32 v61, 3, v32
    v_lshlrev_b32 v61, 3, v61
    v_lshl_add_u32 v61, v55, 7, v61
    v_mul_u32_u24 v62, 3072, v39
    v_add3_u32 v61, v61, v62, 0
    v_add_u32 v61, {96*1024 + 2048}, v61
    """)
    for i in range(4):
        e(f"v_xor_b32 v62, {32*i}, v60\nv_add_u32 v{vW1R+i}, v62, v61")
    e.need(vmtags=("x",))
    for k in range(10):
        e(f"v_lshlrev_b32 v{64+2*k}, 16, v{40+k}\nv_and_b32 v{65+2*k}, 0xffff0000, v{40+k}")
    e("v_add_f32 v84, v64, v65\nv_add_f32 v85, v66, v67")
    for k in range(4, 20, 2):
        e(f"v_add_f32 v84, v84, v{64+k}\nv_add_f32 v85, v85, v{65+k}")
    e("v_add_f32 v84, v84, v85")
    reduce32(e, 84, 85)
    e(f"v_mul_f32 v84, {f32(1/640)}, v84")
    for k in range(20): e(f"v_sub_f32 v{64+k}, v{64+k}, v84")
    e("v_mul_f32 v86, v64, v64\nv_mul_f32 v87, v65, v65")
    for k in range(2, 20, 2):
        e(f"v_fmac_f32 v86, v{64+k}, v{64+k}\nv_fmac_f32 v87, v{65+k}, v{65+k}")
    e("v_add_f32 v86, v86, v87")
    reduce32(e, 86, 87)
    e(f"""
    v_mov_b32 v87, {f32(1e-5)}
    v_fmac_f32 v87, {f32(1/640)}, v86
    v_rsq_f32 v87, v87
    s_nop 0
    v_mul_f32 v87, {f32(CS)}, v87
    """)
    for k in range(20): e(f"v_mul_f32 v{64+k}, v{64+k}, v87")
    for k in range(10): e(f"v_cvt_pk_bf16_f32 v{40+k}, v{64+2*k}, v{65+2*k}")
    e(f"""
    v_lshrrev_b32 v88, 1, v35
    v_lshlrev_b32 v88, 7, v88
    v_and_b32 v89, 1, v35
    v_lshl_add_u32 v88, v89, 3, v88
    v_lshl_add_u32 v88, v34, 4, v88
    s_lshl_b32 s{sT+2}, s{sW}, 5
    s_add_u32 s{sT+2}, s{sT+2}, 0x20000
    v_add_u32 v88, s{sT+2}, v88
    """)
    for k in range(5): e(f"ds_write_b64 v88, v[{40+2*k}:{41+2*k}] offset:{k*2048}")
    e(f"""
    v_lshlrev_b32 v89, 8, v37
    v_lshl_add_u32 v89, v38, 4, v89
    s_lshr_b32 s{sT+2}, s2, 1
    s_mul_i32 s{sT+2}, s{sT+2}, 20480
    s_and_b32 s{sT+3}, s2, 1
    s_lshl_b32 s{sT+3}, s{sT+3}, 7
    s_add_u32 s{sT+2}, s{sT+2}, s{sT+3}
    s_lshl_b32 s{sT+3}, s{sW}, 11
    s_add_u32 s{sT+2}, s{sT+2}, s{sT+3}
    s_add_u32 s{sT+3}, s{sT+2}, 8192
    s_add_u32 s{sT+4}, s{sT+2}, 16384
    s_cmp_ge_u32 s{sW}, 2
    s_cselect_b32 s{sT+4}, {WS_END}, s{sT+4}
    s_lshl_b32 s{sT+5}, s{sW}, 10
    s_add_u32 s{sT+5}, s{sT+5}, 0x20000
    v_add_u32 v90, s{sT+5}, v{vL16}
    s_waitcnt lgkmcnt(0)
    s_barrier
    ds_read_b128 v[64:67], v90
    ds_read_b128 v[68:71], v90 offset:4096
    ds_read_b128 v[72:75], v90 offset:8192
    """)
    e(f"""
    s_lshl_b32 s{sQ}, s{sH}, 3
    s_add_u32 s{sQ}, s{sQ}, s{sIDX}
    s_mul_i32 s{sQ}, s{sQ}, {FS}
    s_add_u32 s{sQ}, s{sQ}, {FKV}
    s_lshl_b32 s{sQ+1}, s{sIDX}, 5
    s_add_u32 s{sQ+1}, s{sQ+1}, s{sH}
    s_mul_i32 s{sQ+1}, s{sQ+1}, {FS}
    s_add_u32 s{sQ+1}, s{sQ+1}, {FHC}
    s_sub_u32 s{sQ+2}, s{sU}, 27
    s_mul_i32 s{sT+5}, s{sX}, 5
    s_add_u32 s{sQ+3}, s{sQ+2}, s{sT+5}
    s_mul_i32 s{sQ+2}, s{sQ+3}, {FS}
    s_add_u32 s{sQ+2}, s{sQ+2}, {FW}
    s_cmp_lt_u32 s{sU}, 27
    s_cselect_b32 s{sQ+2}, {WS_END}, s{sQ+2}
    v_mov_b32 v91, 0
    v_mov_b32 v92, 0x10000000
    v_lshl_add_u32 v93, v33, 6, v32
    v_cmp_eq_u32 vcc, 0, v93
    s_nop 1
    v_cndmask_b32 v{vSC}, v92, v91, vcc
    """)
    e(f"buffer_store_dword v91, v{vSC}, s[{RWS}:{RWS+3}], s{sQ} offen sc1", tag="xs")
    e(f"buffer_store_dword v91, v{vSC}, s[{RWS}:{RWS+3}], s{sQ+1} offen sc1", tag="xs")
    e(f"buffer_store_dword v91, v{vSC}, s[{RWS}:{RWS+3}], s{sQ+2} offen sc1", tag="xs")
    for k in range(3):
        e.need(f"v[{64+4*k}:{67+4*k}]")
        e(f"buffer_store_dwordx4 v[{64+4*k}:{67+4*k}], v89, s[{RWS}:{RWS+3}], s{sT+2+k} offen sc1", tag="xs")

def p1_acc(T, i, j):
    if T == "K": return 8 * (8 * (i >> 1) + 4 * (j & 1) + (j >> 1)) + 4 * (i & 1)
    return 32 * i + 4 * j
def p1_units():
    U = []
    for n in range(32):
        off = (n & 3) * 8192 + (n >> 2) * 1024
        ins = []
        for k in range(4):
            tr = vTR + 2 * (k & 1); src = 8 * n + 2 * k
            ins += [f"v_accvgpr_read_b32 v{tr}, a{src}", f"v_accvgpr_read_b32 v{tr+1}, a{src+1}", f"v_cvt_pk_bf16_f32 v{vPK+k}, v{tr}, v{tr+1}"]
        ins.insert(6, f"s_add_u32 s{sT+7}, s{sST}, {off & ~4095}")
        ins.append((f"buffer_store_dwordx4 v[{vPK}:{vPK+3}], v{vL16}, s[{RWS}:{RWS+3}], s{sT+7} offen offset:{off & 4095} sc1", "kv"))
        U.append(ins)
    return U

class Bg:
    def __init__(self): self.q = []
    def push(self, ins): self.q += list(ins)
    def place(self, fill, g0, g1, maxv=1, step=1):
        for g in range(g0, g1, step):
            n = 0
            while self.q and n < maxv:
                x = self.q[0]; t = x[0] if isinstance(x, tuple) else x
                k = I(t).kind if not callable(t) else "call"
                if k in ("vms", "vml") and (n > 0 or any((not callable(y)) and I(y[0] if isinstance(y, tuple) else y).kind in ("vml", "vms") for y in fill[g])): break
                fill[g].append(("BG", self.q.pop(0)))
                if k == "salu": continue
                n += 1
                if k in ("vms", "vml"): break
    def flush(self, e):
        for x in self.q:
            t, tag = x if isinstance(x, tuple) else (x, None)
            q = I(t); e.need(q.rd | q.wr); e(t, tag)
        self.q = []

def run_gaps(e, mf, fill, nxt=None):
    f2 = []
    for g in range(len(mf)):
        a = [x for x in fill[g] if not (isinstance(x, tuple) and x[0] == "BG")]
        b = [x[1] for x in fill[g] if isinstance(x, tuple) and x[0] == "BG"]
        if b:
            def mk(b):
                def f(e):
                    for x in b:
                        t, tag = x if isinstance(x, tuple) else (x, None)
                        q = I(t); e.need(q.rd | q.wr); e(t, tag)
                f.last = True
                return f
            a.append(mk(b))
        f2.append(a)
    e.gaps(mf, f2, nxt)

def put_dma(fill, g, pair, tag):
    su, d = pair
    for k, x in enumerate(su): fill[g - 1 - k].append(x)
    fill[g].append((d, tag))

def qh_wslot(sidx): return ((sidx + 3) % 5) * 12288
def qh_dmas(sidx, hasH):
    L = []
    for j in range(4):
        su = [f"s_add_u32 m0, s{sM0a}, {(sidx & 3) * 16384}", f"s_mov_b32 s{sT}, {XS + sidx * 1024}"] if j == 0 else []
        L.append((su, f"buffer_load_dwordx4 v{vXD + j}, s[{RWS}:{RWS+3}], s{sT} offen offset:{j * 1024} lds"))
    for u in range(2):
        su = [f"s_add_u32 m0, s{sM0b}, {qh_wslot(sidx)}", f"s_mov_b32 s{sT+1}, {sidx * 32 * 8192}"] if u == 0 else []
        L.append((su, f"buffer_load_dwordx4 v{vWQD + u}, s[{R0}:{R0+3}], s{sT+1} offen offset:{u * 1024} lds"))
    if hasH:
        L.append(([f"s_mov_b32 s{sT+2}, {sidx * 32 * 3456}"], f"buffer_load_dwordx4 v{vW1D}, s[{R1}:{R1+3}], s{sT+2} offen offset:2048 lds"))
    return L
def qh_xread(sidx, j):
    b = XNB[sidx & 1] + 4 * j
    return f"ds_read_b128 v[{b}:{b+3}], v{vXR} offset:{(sidx & 3) * 16384 + j * 1024}"
def qh_wread(sidx, i, n):
    r = (n & 7) * 4
    if i < 8: a, second = vWQR + i, 1024
    else: a, second = vW1R + i - 8, 512
    o = qh_wslot(sidx)
    return [f"ds_read_b64_tr_b16 a[{r}:{r+1}], v{a} offset:{o}", f"ds_read_b64_tr_b16 a[{r+2}:{r+3}], v{a} offset:{o + second}"]

def spin(e, lab, pollA, cond, limit=200000):
    e(f"s_mov_b32 s{sT+6}, {limit}\n{lab}:")
    pollA(e)
    e(f"s_cbranch_vccz {lab}_ok\ns_sub_u32 s{sT+6}, s{sT+6}, 1\ns_cmp_eq_u32 s{sT+6}, 0\ns_cbranch_scc1 {lab}_ok\ns_sleep 2\ns_branch {lab}\n{lab}_ok:")

def qh_setup(e):
    L = []
    L += [f"s_lshl_b32 s{sQ+4}, s{sIDX}, 3", f"s_add_u32 s{sQ+4}, s{sQ+4}, s{sW}", f"s_mul_i32 s{sQ+4}, s{sQ+4}, 20480",
          f"s_sub_u32 s{sQ+5}, 15, s{sIDX}", f"s_lshl_b32 s{sQ+5}, s{sQ+5}, 3", f"s_add_u32 s{sQ+5}, s{sQ+5}, s{sW}", f"s_mul_i32 s{sQ+5}, s{sQ+5}, 20480"]
    L += [f"v_add_u32 v{vXD}, s{sQ+4}, v{vL16}", f"v_add_u32 v{vXD+1}, {4*20480 - 1024}, v{vXD}",
          f"v_add_u32 v{vXD+2}, s{sQ+5}, v{vL16}", f"v_add_u32 v{vXD+3}, {4*20480 - 3072}, v{vXD+2}", f"v_subrev_u32 v{vXD+2}, 2048, v{vXD+2}"]
    return L

def header():
    return f"""; @launch grid=(256,1,1) block=(256,1,1) lds=163840
.amdgcn_target "amdgcn-amd-amdhsa--gfx950"
.text
.globl {NAME}_kernel
.p2align 8
.type {NAME}_kernel,@function
{NAME}_kernel:
"""
def footer():
    return f"""
.section .rodata,"a"
.p2align 6
.amdhsa_kernel {NAME}_kernel
  .amdhsa_next_free_vgpr 512
  .amdhsa_next_free_sgpr 102
  .amdhsa_accum_offset 256
  .amdhsa_group_segment_fixed_size 0
  .amdhsa_kernarg_size 112
  .amdhsa_user_sgpr_count 2
  .amdhsa_user_sgpr_kernarg_segment_ptr 1
  .amdhsa_system_sgpr_workgroup_id_x 1
.end_amdhsa_kernel
"""

def grp(L):
    def f(e):
        for x in L: e(x)
    return f
def bar(vmtags=(), lg0=True):
    def f(e):
        e.need(vmtags=vmtags, lg0=lg0); e("s_barrier")
    return f

def p1_pre(e):
    srd(e, R3, pDBG, 256)
    e(f"""
    s_lshl_b32 s{sST}, s{sH}, 19
    s_lshl_b32 s{sT+2}, s{sIDX}, 16
    s_add_u32 s{sST}, s{sST}, s{sT+2}
    s_and_b32 s{sT+2}, s{sW}, 1
    s_lshl_b32 s{sT+2}, s{sT+2}, 15
    s_add_u32 s{sST}, s{sST}, s{sT+2}
    s_cmp_ge_u32 s{sW}, 2
    s_cselect_b32 s{sT+2}, {VF-KF}, 0
    s_add_u32 s{sST}, s{sST}, s{sT+2}
    s_add_u32 s{sST}, s{sST}, {KF}
    s_lshl_b32 s{sT+2}, s{sW}, 12
    v_add_u32 v{vXR}, s{sT+2}, v{vL16}
    """)
    e(f"""
    s_and_b32 s{sT+2}, s{sW}, 1
    s_lshl_b32 s{sT+3}, s{sT+2}, 7
    v_xor_b32 v94, s{sT+3}, v{vWD}
    s_lshl_b32 s{sT+3}, s{sW}, 16
    s_lshl_b32 s{sT+4}, s{sH}, 8
    s_add_u32 s{sT+3}, s{sT+3}, s{sT+4}
    v_add_u32 v{vWQD}, s{sT+3}, v94
    v_add_u32 v{vWQD+1}, 31744, v{vWQD}
    """)
    e(f"""
    v_and_b32 v94, 1, v39
    v_lshlrev_b32 v94, 1, v94
    s_lshl_b32 s{sT+3}, s{sT+2}, 2
    v_or_b32 v94, s{sT+3}, v94
    v_xor_b32 v94, v94, v38
    v_lshlrev_b32 v94, 4, v94
    v_mul_u32_u24 v95, 3456, v37
    v_add_u32 v94, v94, v95
    s_mul_i32 s{sT+3}, s{sW}, {8*3456}
    s_lshl_b32 s{sT+4}, s{sU}, 7
    s_add_u32 s{sT+3}, s{sT+3}, s{sT+4}
    v_add_u32 v{vW1D}, s{sT+3}, v94
    """)
    srd(e, R0, pB1, 1728 * 2)
    e(f"v_lshlrev_b32 v94, 3, v39\ns_lshl_b32 s{sT+4}, s{sU}, 7")
    for ft in range(4):
        e(f"buffer_load_dwordx2 v[{114+2*ft}:{115+2*ft}], v94, s[{R0}:{R0+3}], s{sT+4} offen offset:{32*ft}", tag="b1")
    for x in qh_setup(e): e(x)
    e.need(vmtags=("c0", "w0"), lg0=True)
    e("s_barrier")
    for j in range(8): e(p1_cread(0, j))
    for n in range(2):
        for x in p1_wread(n): e(x)

def hacc(ft, j): return HACC + (j * 2 + (ft >> 1)) * 8 + (ft & 1) * 4
def qacc(i, j): return QACC + (j * 4 + (i >> 1)) * 8 + (i & 1) * 4
def bias_init():
    L = []
    for ft in range(4):
        d = hacc(ft, 3)
        for k in range(2):
            L += [f"v_lshlrev_b32 v{d+2*k}, 16, v{114+2*ft+k}", f"v_and_b32 v{d+2*k+1}, 0xffff0000, v{114+2*ft+k}",
                  f"v_mul_f32 v{d+2*k}, {f32(CS)}, v{d+2*k}", f"v_mul_f32 v{d+2*k+1}, {f32(CS)}, v{d+2*k+1}"]
    return L

def p1_cread(sidx, j):
    b = vCB[sidx & 1] + 4 * j
    return f"ds_read_b128 v[{b}:{b+3}], v{vCR + (sidx & 1)} offset:{((sidx >> 1) & 1) * 32768 + j * 2048}"
def p1_wread(n):
    sidx, i = divmod(n, 8); r = vWWIN + 4 * (n & 3); o = p1_wslot(sidx)
    return [f"ds_read_b64_tr_b16 v[{r}:{r+1}], v{vWR+i} offset:{o}", f"ds_read_b64_tr_b16 v[{r+2}:{r+3}], v{vWR+i} offset:{o+1024}"]

def async_check(lab, reg, want, reload, op="v_cmp_gt_u32"):
    def f(e):
        e.need(f"v{reg}")
        e(f"{op} vcc, {want}, v{reg}\ns_cbranch_vccz {lab}_ok")
        sv, sl = list(e.vm), list(e.lg)
        def poll(e):
            e(reload); e("s_waitcnt vmcnt(0)"); e(f"{op} vcc, {want}, v{reg}")
        spin(e, lab, poll, None)
        e.vm, e.lg = sv, sl
    return f

def p1_main(e, T, bg):
    fills = [[[] for _ in range(64)] for _ in range(16)]
    def pos(ep):
        p = [(ep - 1, g) for g in (50, 54, 58, 62)] + [(ep, g) for g in range(2, 47, 4)]
        return [x for x in p if 0 <= x[0] < 16]
    for ep in range(0, 16):
        L = []
        if ep & 1 and (ep + 3) // 2 < 8: L += [(p1_cdma((ep + 3) // 2, q), f"c{(ep+3)//2}") for q in range(8)]
        if ep + 3 < 16: L += [(p1_wdma(ep + 3, u), f"w{ep+3}") for u in range(4)]
        if ep == 13: L += [(d, "q0") for d in qh_dmas(0, True)]
        if ep == 14: L += [(d, "q1") for d in qh_dmas(1, True)]
        if ep == 15: L += [(d, "q2") for d in qh_dmas(2, True)] + [(d, "q3") for d in qh_dmas(3, True)]
        P = pos(ep); assert len(L) <= len(P)
        for (d, tag), (ks, g) in zip(L, P): put_dma(fills[ks], g, d, tag)
    for sidx in range(16):
        f = fills[sidx]
        for i in range(8):
            n = 8 * sidx + i + 2
            if n < 128:
                a, b = p1_wread(n); f[8 * i].append(a); f[8 * i + 1].append(b)
        if sidx < 15:
            for j in range(8): f[3 + 4 * j].append(p1_cread(sidx + 1, j))
            tags = [f"w{sidx+1}", f"c{(sidx+2)>>1}"]
            if sidx == 12:
                f[47].append(async_check(f"L_sa{T}", 122, "0x100", f"buffer_load_dword v122, v123, s[{R3}:{R3+3}], 0 offen sc1"))
            f[47].append(bar(tags))
        else:
            f[47].append(bar(["q0", "q1"]))
            for j in range(4): f[49 + 2 * j].append(qh_xread(0, j))
            for n in range(3):
                a, b = qh_wread(0, n, n); f[56 + 2 * n].append(a); f[57 + 2 * n].append(b)
    for k, x in enumerate(bias_init()): fills[4][33 + k if k < 14 else 34 + k].append(x) if k < 28 else fills[5][33 + k - 28].append(x)
    fills[2][49].append("v_mov_b32 v122, 1"); fills[2][51].append("v_mov_b32 v123, 0")
    fills[2][52].append((f"buffer_atomic_add v122, v{vSC}, s[{R3}:{R3+3}], 0 offen sc1", "arr"))
    fills[11][36].append((f"buffer_load_dword v122, v123, s[{R3}:{R3+3}], 0 offen sc1", "pa"))
    qs = [f"s_mov_b32 s{R0}, s{pWQ}", f"s_and_b32 s{R0+1}, s{pWQ+1}, 0xffff", f"s_mov_b32 s{R0+2}, {640*8192}", f"s_mov_b32 s{R0+3}, 0x20000",
          f"s_sub_u32 s{R1}, s{pW1}, 2048", f"s_subb_u32 s{R1+1}, s{pW1+1}, 0", f"s_and_b32 s{R1+1}, s{R1+1}, 0xffff",
          f"s_cmp_lt_u32 s{sU}, 27", f"s_cselect_b32 s{R1+2}, {640*3456 + 2048}, 0", f"s_mov_b32 s{R1+3}, 0x20000",
          f"s_lshl_b32 s{sM0a}, s{sW}, 12", f"s_mul_i32 s{sM0b}, s{sW}, 3072", f"s_add_u32 s{sM0b}, s{sM0b}, {96*1024}"]
    fills[12][4].append(grp(qs[:4])); fills[12][10].append(grp(qs[4:10])); fills[12][14].append(grp(qs[10:]))
    bg.push([x for u in p1_units() for x in u])
    bg.place(fills[15], 19, 46, maxv=2)
    bg.place(fills[15], 48, 64, maxv=2)
    for sidx in range(16):
        mf = []
        for i in range(8):
            for j in range(8):
                d = p1_acc(T, i, j); w = vWWIN + 4 * ((8 * sidx + i) & 3); c = vCB[sidx & 1] + 4 * j
                A, B = (w, c) if T == "K" else (c, w)
                mf.append(f"{MF} a[{d}:{d+3}], v[{A}:{A+3}], v[{B}:{B+3}], " + ("0" if sidx == 0 else f"a[{d}:{d+3}]"))
        fills[sidx + 0] = (mf, fills[sidx])
    for sidx in range(16):
        mf, f = fills[sidx]
        run_gaps(e, mf, f, fills[sidx + 1][0][0] if sidx < 15 else None)

vKVD = 22
sKo, sVo, sMK, sMV = 76, 77, 78, 79
def kv_dma(kind, static_pair=None):
    so, mb, rs = (sKo, sMK, R2) if kind == "K" else (sVo, sMV, R3)
    L = []
    for k in range(4):
        su = []
        if k == 0:
            su = [f"s_add_u32 m0, s{sT+3}, s{mb}", f"s_and_b32 s{sT+3}, s{so}, 0xc000"]
        L.append((su, f"buffer_load_dwordx4 v{vKVD}, s[{rs}:{rs+3}], s{so} offen offset:{k*1024} lds"))
    return L, f"s_add_u32 s{so}, s{so}, 16384"

sPS = 80
def pre_addr():
    L = [f"v_lshrrev_b32 v44, 4, v{vL16}"]
    for k in range(10):
        L += [f"v_add_u32 v45, {64*k}, v44", f"v_mul_u32_u24 v46, 3277, v45", f"v_lshrrev_b32 v46, 16, v46", f"v_mul_u32_u24 v46, 960, v46",
              f"v_lshl_add_u32 v{32+k}, v45, 4, v46"]
    return L
def pre_srd(m):
    return [f"s_add_u32 s{sPS+5}, s{sQ+3}, {40*m}", f"s_sub_u32 s{sPS+6}, s{sPS+5}, 54", f"s_cmp_lt_u32 s{sPS+5}, 54",
            f"s_cselect_b32 s{sPS}, s{pW2}, s{pWO}", f"s_cselect_b32 s{sPS+1}, s{pW2+1}, s{pWO+1}",
            f"s_mov_b32 s{sPS+2}, {4096*1280}", f"s_cselect_b32 s{sPS+2}, {1728*1280}, s{sPS+2}", f"s_cselect_b32 s{sPS+4}, s{sPS+5}, s{sPS+6}",
            f"s_and_b32 s{sPS+1}, s{sPS+1}, 0xffff", f"s_mov_b32 s{sPS+3}, 0x20000",
            f"s_mul_i32 s{sPS+4}, s{sPS+4}, 40960", f"s_mul_i32 s{sPS+6}, s{sW}, 320", f"s_add_u32 s{sPS+4}, s{sPS+4}, s{sPS+6}"]
def prepack(e):
    e(f"""
    s_mul_i32 s{sT}, s{sW}, 20480
    s_add_u32 s{sT}, s{sT}, {80*1024}
    v_add_u32 v44, s{sT}, v{vL16}
    v_lshrrev_b32 v45, 6, v{vL16}
    v_mul_u32_u24 v45, 320, v45
    v_lshrrev_b32 v46, 1, v{vL16}
    v_and_b32 v46, 24, v46
    v_add3_u32 v45, v45, v46, s{sT}
    s_mul_i32 s{sT+1}, s{sQ+3}, 40960
    s_mul_i32 s{sT+2}, s{sW}, 10240
    s_add_u32 s{sT+1}, s{sT+1}, s{sT+2}
    s_add_u32 s{sT+1}, s{sT+1}, {WP}
    s_cmp_lt_u32 s{sQ+3}, 22
    s_cselect_b32 s{sT+2}, s{sT+1}, {WS_END}
    s_waitcnt lgkmcnt(0)
    s_barrier
    """)
    for m in range(5):
        lb = (m & 1) * 10240
        e.need(vmtags=(f"pp{m}",))
        if len(e.vm) > 50: e("s_waitcnt vmcnt(50)")
        for k in range(10):
            e(f"ds_write_b128 v44, a[{32 + 40*m + 4*k}:{35 + 40*m + 4*k}] offset:{lb + 1024*k}")
        e("s_waitcnt lgkmcnt(0)")
        for half in range(2):
            for nt in range(5 * half, 5 * half + 5):
                r = 48 + 4 * nt
                e(f"ds_read_b64_tr_b16 v[{r}:{r+1}], v45 offset:{lb + 32*nt}\nds_read_b64_tr_b16 v[{r+2}:{r+3}], v45 offset:{lb + 32*nt + 5120}")
            for nt in range(5 * half, 5 * half + 5):
                r = 48 + 4 * nt
                if nt % 4 == 0: e(f"s_add_u32 s{sT+3}, s{sT+1 if m < 4 else sT+2}, {m * 40 * 40960 + nt * 1024}")
                e.need(f"v[{r}:{r+3}]")
                e(f"buffer_store_dwordx4 v[{r}:{r+3}], v{vL16}, s[{RWS}:{RWS+3}], s{sT+3} offen offset:{(nt % 4) * 1024} sc1", tag="h")

def qh_main(e, hasH, bg):
    NI = 12 if hasH else 8; NG = 4 * NI; LA = 3
    tagv = "H" if hasH else "N"
    fills = [[[] for _ in range(NG)] for _ in range(20)]
    bp = NG - 4 * LA - 1
    def pos(ep):
        p = [(ep - 1, g) for g in range(bp + 3, NG, 4)] + [(ep, g) for g in range(6 if ep == 0 else 2, bp - 1, 4)]
        return [x for x in p if 0 <= x[0] < 20]
    pend = []
    for ep in range(0, 16):
        pend += [(d, f"q{ep+4}") for d in qh_dmas(ep + 4, hasH)]
        for ks, g in pos(ep):
            if pend:
                d, tag = pend.pop(0); put_dma(fills[ks], g, d, tag)
    assert not pend
    if not hasH:
        pp = [(ks, g) for ks in range(11, 20) for g in range(0, NG, 4) if not (ks >= 16 and ks <= 18 and g < 32 and (ks == 16 or g < 20))]
        pp = [(ks, g) for ks in range(11, 16) for g in range(4, NG, 4)] + [(17, g) for g in (20, 23, 26, 29)] + [(18, g) for g in (20, 23, 26, 29)] + [(19, g) for g in range(2, 32, 3)]
        k = 0
        for x in pre_addr(): fills[9 + k // 28][2 + k % 28].append(x); k += 1
        for m in range(5):
            for k in range(10):
                ks, g = pp.pop(0)
                if k == 0: fills[ks][g - 1].append(grp(pre_srd(m)))
                fills[ks][g].append((f"buffer_load_dwordx4 a[{32 + 40*m + 4*k}:{35 + 40*m + 4*k}], v{32+k}, s[{sPS}:{sPS+3}], s{sPS+4} offen", f"pp{m}"))
    def kvput(ks, g0, kind, tag):
        L, inc = kv_dma(kind)
        for k, d in enumerate(L): put_dma(fills[ks], g0 + 3 * k, d, tag)
        fills[ks][g0 + 10].append(inc)
    kvput(16, 4, "V", "v0"); kvput(16, 18, "K", "k0"); kvput(17, 6, "K", "k1"); kvput(18, 6, "K", "k2")
    for sidx in range(20):
        f = fills[sidx]
        for i in range(NI):
            s2, i2 = divmod(NI * sidx + i + LA, NI)
            if s2 < 20:
                a, b = qh_wread(s2, i2, NI * sidx + i + LA); f[4 * i].append(a); f[4 * i + 1].append(b)
        if sidx < 19:
            for j in range(4): f[3 + 4 * j].append(qh_xread(sidx + 1, j))
            tags = [f"q{sidx+1}", f"q{sidx+2}x"]
            if sidx + 2 <= 3: tags.append(f"q{sidx+2}")
            if sidx == 12: tags.append("kv")
            if sidx == 15:
                f[bp].append(async_check(f"L_sk{tagv}", 23, 1, f"buffer_load_dword v23, v{vTR}, s[{RWS}:{RWS+3}], s{sT+4} offen sc1"))
            f[bp].append(bar(tags))
    for ks in range(20):
        for g in range(NG):
            for k, x in enumerate(fills[ks][g]):
                if isinstance(x, tuple) and isinstance(x[1], str) and x[1].startswith("q") and f"s[{RWS}:" in x[0]:
                    fills[ks][g][k] = (x[0], x[1] + "x")
    fills[13][2].append("v_mov_b32 v23, 1")
    fills[13][5].append((f"buffer_store_dword v23, v{vSC}, s[{RWS}:{RWS+3}], s{sQ} offen sc1", "fl"))
    qs = [f"s_lshl_b32 s{sT+4}, s{sH}, 19", f"s_add_u32 s{sT+5}, s{sT+4}, {KF}", f"s_add_u32 s{R2}, s{pWS}, s{sT+5}", f"s_addc_u32 s{R2+1}, s{pWS+1}, 0",
          f"s_and_b32 s{R2+1}, s{R2+1}, 0xffff", f"s_sub_u32 s{R2+2}, 16, s{sIDX}", f"s_lshl_b32 s{R2+2}, s{R2+2}, 15", f"s_mov_b32 s{R2+3}, 0x20000",
          f"s_add_u32 s{sT+5}, s{sT+4}, {VF}", f"s_add_u32 s{R3}, s{pWS}, s{sT+5}", f"s_addc_u32 s{R3+1}, s{pWS+1}, 0",
          f"s_and_b32 s{R3+1}, s{R3+1}, 0xffff", f"s_mov_b32 s{R3+2}, s{R2+2}", f"s_mov_b32 s{R3+3}, 0x20000",
          f"s_mov_b32 s{sKo}, 0", f"s_mov_b32 s{sVo}, 0", f"s_lshl_b32 s{sMK}, s{sW}, 12", f"s_add_u32 s{sMV}, s{sMK}, 0x10000",
          f"s_mul_i32 s{sT+4}, s{sH}, {8*FS}", f"s_add_u32 s{sT+4}, s{sT+4}, {FKV}"]
    fills[13][8].append(grp(qs[:8])); fills[13][12].append(grp(qs[8:14])); fills[13][16].append(grp(qs[14:]))
    fills[13][20].append(f"v_add_u32 v{vKVD}, s{sMK}, v{vL16}")
    fills[14][2].append(f"v_lshrrev_b32 v{vTR}, 4, v{vL16}"); fills[14][4].append(f"v_and_b32 v{vTR}, 7, v{vTR}")
    fills[14][6].append(f"v_mul_u32_u24 v{vTR}, {FS}, v{vTR}")
    fills[14][12].append((f"buffer_load_dword v23, v{vTR}, s[{RWS}:{RWS+3}], s{sT+4} offen sc1", "pk"))
    for sidx in range(0, 11):
        bg.place(fills[sidx], 0, NG, maxv=2 if sidx == 0 else 1)
    assert not bg.q, len(bg.q)
    mfs = []
    for sidx in range(20):
        mf = []
        for i in range(NI):
            w = ((NI * sidx + i) & 7) * 4
            for j in range(4):
                d = qacc(i, j) if i < 8 else hacc(i - 8, j)
                x = XNB[sidx & 1] + 4 * j
                if sidx: c = f"v[{d}:{d+3}]"
                elif i < 8: c = "0"
                else: c = v(hacc(i - 8, 3), 4)
                mf.append(f"{MF} v[{d}:{d+3}], a[{w}:{w+3}], v[{x}:{x+3}], {c}")
        mfs.append(mf)
    for sidx in range(20):
        run_gaps(e, mfs[sidx], fills[sidx], mfs[sidx + 1][0] if sidx < 19 else None)

def check_drain_order(e):
    written = set()
    for i in e.l:
        if i.kind == "dsr": written |= {r for r in i.wr if r[0] == "a"}
        if i.mn == "v_accvgpr_read_b32" and (i.rd & written): raise AssertionError("drain order " + i.t)

def q_pack(e):
    for n in range(16):
        for k in range(4):
            e(f"v_cvt_pk_bf16_f32 v{QACC + 4*n + k}, v{QACC + 8*n + 2*k}, v{QACC + 8*n + 2*k + 1}")

def gelu_store(e):
    a = -2.0 * math.sqrt(2.0 / math.pi) * math.log2(math.e)
    k1 = a / CS; k2 = a * 0.044715 / CS ** 3
    e(f"s_mov_b32 s{sT}, {f32(k2)}\ns_mov_b32 s{sT+1}, {f32(k2)}\ns_mov_b32 s{sT+2}, {f32(CS)}\ns_mov_b32 s{sT+3}, {f32(CS)}")
    e(f"v_mov_b32 v160, {f32(k1)}\nv_mov_b32 v161, {f32(k1)}\nv_mov_b32 v162, {f32(CS)}\nv_mov_b32 v163, {f32(CS)}")
    e(f"""
    s_mul_i32 s{sT+4}, s{sIDX}, {2*54*4096}
    s_lshl_b32 s{sT+5}, s{sU}, 13
    s_lshl_b32 s{sT+6}, s{sW}, 10
    s_add_u32 s{sT+5}, s{sT+5}, s{sT+6}
    s_add_u32 s{sT+5}, s{sT+5}, {HF}
    s_add_u32 s{sT+4}, s{sT+4}, s{sT+5}
    s_sub_u32 s{sT+6}, 15, s{sIDX}
    s_mul_i32 s{sT+6}, s{sT+6}, {2*54*4096}
    s_add_u32 s{sT+5}, s{sT+5}, s{sT+6}
    """)
    for n in range(8):
        b = HACC + 8 * n; t = 164 + 8 * (n & 1); pk = 180 + 4 * (n & 1)
        for k in range(4): e(f"v_pk_mul_f32 v[{t+2*k}:{t+2*k+1}], v[{b+2*k}:{b+2*k+1}], v[{b+2*k}:{b+2*k+1}]")
        for k in range(4): e(f"v_pk_fma_f32 v[{t+2*k}:{t+2*k+1}], v[{t+2*k}:{t+2*k+1}], s[{sT}:{sT+1}], v[160:161]")
        for k in range(4): e(f"v_pk_mul_f32 v[{t+2*k}:{t+2*k+1}], v[{t+2*k}:{t+2*k+1}], v[{b+2*k}:{b+2*k+1}]")
        for k in range(8): e(f"v_exp_f32 v{t+k}, v{t+k}")
        for k in range(4): e(f"v_pk_fma_f32 v[{t+2*k}:{t+2*k+1}], v[{t+2*k}:{t+2*k+1}], s[{sT+2}:{sT+3}], v[162:163]")
        for k in range(8): e(f"v_rcp_f32 v{t+k}, v{t+k}")
        for k in range(4): e(f"v_pk_mul_f32 v[{t+2*k}:{t+2*k+1}], v[{t+2*k}:{t+2*k+1}], v[{b+2*k}:{b+2*k+1}]")
        for k in range(4): e(f"v_cvt_pk_bf16_f32 v{pk+k}, v{t+2*k}, v{t+2*k+1}")
        j, up = n >> 1, n & 1
        e(f"s_add_u32 s{sT+7}, s{sT+4+(j>>1)}, {(j & 1) * 54 * 4096 + up * 4096}")
        e(f"buffer_store_dwordx4 v[{pk}:{pk+3}], v{vL16}, s[{RWS}:{RWS+3}], s{sT+7} offen sc1", tag="h")

def Qr(j, t): return 96 + (4 * j + t) * 4
def Sr(b, j, kt=0): return 160 + 32 * b + 8 * j + 4 * kt
def Pr(b, j): return 224 + 16 * b + 4 * j
def NEGM(j): return 32 + 4 * j
def MASK(par, kt): return 48 + 8 * par + 4 * kt
def CT(kt): return 64 + 4 * kt
TT = 72
def LT(b, j): return 76 + 4 * b + j
def LL(j): return 84 + j
vCHK = 88
def Or(j, dt): return 32 * j + 4 * dt
FK, FV = 128, 160
vKR, vVR = 2, 3
sTHR, sCNT, sRET, sCA, sCB = 90, 91, 92, 94, 95
NEG_INF = "0xff800000"

def attn_setup(e):
    e(f"""
    v_lshrrev_b32 v89, 4, v{vL16}
    v_and_b32 v90, 15, v89
    v_lshrrev_b32 v89, 4, v89
    v_lshlrev_b32 v89, 2, v89
    v_sub_u32 v89, v89, v90
    v_mov_b32 v90, {NEG_INF}
    v_mov_b32 v91, 0
    s_lshl_b32 s{sT}, s{sW}, 4
    s_mov_b32 s{sTHR}, {f32(2.0**40)}
    v_mov_b32 v{vKR}, v{vL16}
    v_add_u32 v{vVR}, 0x18000, v{vL16}
    """)
    for par in range(2):
        for kt in range(2):
            for r in range(4):
                k = (par * 2 + kt) * 4 + r
                e(f"s_sub_i32 s{sT+1}, s{sT}, {32*par + 16*kt + r}\nv_cmp_ge_i32 s[{sCA}:{sCA+1}], s{sT+1}, v89\ns_nop 1\nv_cndmask_b32 v{MASK(par, kt)+r}, v90, v91, s[{sCA}:{sCA+1}]")
    e(f"""
    s_lshl_b32 s{sT}, s{sH}, 14
    s_lshl_b32 s{sT+1}, s{sW}, 10
    s_add_u32 s{sT}, s{sT}, s{sT+1}
    s_add_u32 s{sT}, s{sT}, {CF}
    s_lshl_b32 s{sCA}, s{sIDX}, 20
    s_add_u32 s{sCA}, s{sCA}, s{sT}
    s_sub_u32 s{sCB}, 15, s{sIDX}
    s_lshl_b32 s{sCB}, s{sCB}, 20
    s_add_u32 s{sCB}, s{sCB}, s{sT}
    """)

def kread(n, f): return f"ds_read_b128 a[{FK+4*f}:{FK+4*f+3}], v{vKR} offset:{(n & 3) * 8192 + f * 1024}"
def vread(n, f): return f"ds_read_b128 a[{FV+4*f}:{FV+4*f+3}], v{vVR} offset:{(n & 3) * 8192 + f * 1024}"

def xreduce(e, op, regs, tmps):
    for sw in ("v_permlane16_swap_b32", "v_permlane32_swap_b32"):
        for r, t in zip(regs, tmps): e(f"v_mov_b32 v{t}, v{r}")
        e("s_nop 1")
        for r, t in zip(regs, tmps): e(f"{sw} v{r}, v{t}")
        e("s_nop 0")
        for r, t in zip(regs, tmps): e(f"{op} v{r}, v{r}, v{t}")

def max8(e, d, sreg):
    e(f"v_max3_f32 v{d}, v{sreg}, v{sreg+1}, v{sreg+2}\nv_max3_f32 v{d}, v{d}, v{sreg+3}, v{sreg+4}\nv_max3_f32 v{d}, v{d}, v{sreg+5}, v{sreg+6}\nv_max_f32 v{d}, v{d}, v{sreg+7}")

def sm_ops(b, J):
    L = []; k = 0
    for j in J:
        for x in range(8):
            t = TT + (k & 3); tp = TT + ((k - 1) & 3)
            fol = []
            if x == 1: fol.append(f"v_add_f32 v{LT(b, j)}, v{tp}, v{t}")
            elif x > 1: fol.append(f"v_add_f32 v{LT(b, j)}, v{LT(b, j)}, v{t}")
            if x & 1: fol.append(f"v_cvt_pk_bf16_f32 v{Pr(b, j) + (x >> 1)}, v{tp}, v{t}")
            L.append((f"v_exp_f32 v{t}, v{Sr(b, j) + x}", fol)); k += 1
    return L

FBS = {}
STUBS = []
class Blk:
    def __init__(self, name, A, B, first=False): self.name, self.A, self.B, self.first = name, A, B, first
    def act(self, n):
        out = []
        for st, lo, hi in ((self.B, 2, 3), (self.A, 0, 1)):
            if n < 0 and self.first: continue
            if st == "F":
                a_lo = a_hi = True
            else:
                d = n - {"D": 0, "T": -4, "X": -100}[st]
                a_lo, a_hi = d < 2, d < 4
            if a_hi: out.append(hi)
            if a_lo: out.append(lo)
        return out
    def masked(self, n):
        out = []
        for st, lo, hi in ((self.B, 2, 3), (self.A, 0, 1)):
            if st == "D": out.append((lo if n < 2 else hi, n & 1))
        return out

def attn_block(e, bk):
    nm = bk.name
    dma = bk.B == "F"
    canon = [(regs_of(f"a[{FK+4*f}:{FK+4*f+3}]"), None) for f in range(8)]
    e.lg = list(canon)
    nper = 2 if bk.B == "T" else 4
    for lp in range(nper):
        p = lp - 2
        nq, ns, nv = p + 2, p + 1, p
        JQ = bk.act(nq) if bk.B != "T" else []
        JS = bk.act(ns); JV = bk.act(nv); JN = bk.act(ns + 1) if not (bk.B == "T" and lp == 1) else []
        if bk.B == "T" and lp == 1: JS = []
        bq, bs, bv = nq & 1, ns & 1, nv & 1
        pre = []
        msk = dict(bk.masked(nq)) if JQ else {}
        assert len(msk) <= 1
        first_qk = bk.first and lp == 0
        for j, par in msk.items():
            if not first_qk:
                for kt in range(2):
                    for r in range(4): pre.append(f"v_add_f32 v{CT(kt)+r}, v{NEGM(j)+r}, v{MASK(par, kt)+r}")
        mf = []; kstart = []; vstart = []
        for f in range(8 if JQ else 0):
            t, kt = f >> 1, f & 1
            kstart.append(len(mf))
            for j in JQ:
                d = Sr(bq, j, kt)
                if t: c = v(d, 4)
                elif first_qk: c = v(MASK(msk[j], kt), 4) if j in msk else "0"
                else: c = v(CT(kt), 4) if j in msk else v(NEGM(j), 4)
                mf.append(f"{MF} v[{d}:{d+3}], a[{FK+4*f}:{FK+4*f+3}], v[{Qr(j, t)}:{Qr(j, t)+3}], {c}")
        for f in range(8 if JV else 0):
            vstart.append(len(mf))
            for j in JV:
                o = Or(j, f)
                c = "0" if (bk.first and nv == 0) else ac(o, 4)
                mf.append(f"{MF} a[{o}:{o+3}], a[{FV+4*f}:{FV+4*f+3}], v[{Pr(bv, j)}:{Pr(bv, j)+3}], {c}")
        NG = len(mf)
        fill = [[] for _ in range(NG)]
        def odd(g): return min(g + 1, NG - 1)
        if JV:
            if lp == 2: pre.insert(0, f"v_xor_b32 v{vVR}, 0x8000, v{vVR}")
            if JQ:
                for f in range(8): fill[odd(kstart[f]) if len(JQ) > 1 else kstart[f]].append(vread(nv, f))
            else:
                for f in range(8): pre.append(vread(nv, f))
        needK = bk.B == "F" or (bk.B == "D" and lp < 3)
        if needK:
            if JV:
                if lp == 3: fill[vstart[0] - 1].append(f"v_xor_b32 v{vKR}, 0x8000, v{vKR}")
                for f in range(8): fill[odd(vstart[f]) if len(JV) > 1 else vstart[f]].append(kread(p + 3, f))
            else:
                for f in range(8): fill[kstart[f] + len(JQ) - 1].append(kread(p + 3, f))
        def needf(base, f0):
            def g(e): e.need(f"a[{base+4*f0}:{base+4*f0+15}]")
            return g
        if JQ and JV:
            fill[kstart[4] - 1].append(needf(FK, 4)); fill[vstart[0] - 1].append(needf(FV, 0)); fill[vstart[4] - 1].append(needf(FV, 4))
            if needK and lp < 3: fill[NG - 1].append(needf(FK, 0))
        if lp & 1 and bk.B != "T":
            gb = (vstart[0] - 1) if JV else -1
            n = 12 if dma else (8 if lp == 1 else 0)
            b_ins = grp([f"s_waitcnt vmcnt({n})", "s_barrier"])
            if gb >= 0: fill[gb].append(b_ins)
            else: pre.insert(0, b_ins)
            if bk.first and lp == 3:
                fill[gb + 2].append("v_mov_b32 v89, 1")
                fill[gb + 4].append(f"buffer_store_dword v89, v{vSC}, s[{RWS}:{RWS+3}], s{sQ+1} offen sc1")
                fill[gb + 8].append(f"buffer_store_dword v89, v{vSC}, s[{RWS}:{RWS+3}], s{sQ+2} offen sc1")
        if dma:
            L, inc = kv_dma("V" if lp & 1 else "K")
            if lp & 1: g0, span = (vstart[0] if JV else 0), (8 * len(JV) if JV else NG)
            else: g0, span = 0, 8 * len(JQ)
            st = span // 4
            for x in reversed(L[0][0]): fill[g0].append(x)
            for k, d in enumerate(L): fill[g0 + 1 + st * k].append(d[1])
            fill[g0 + 2 + st * 3].append(inc)
        if JS:
            ops = sm_ops(bs, JS)[2:]
            W = NG - 4 if JN else NG - 1
            W = max(W, 1)
            lastg = 0; tile_done = []
            for k, (ex, fol) in enumerate(ops):
                g = (k * W) // len(ops)
                if W >= 2 * len(ops): g &= ~1
                fill[g].append(ex)
                for x in fol: fill[min(g + 1, NG - 1)].append(x) if g + 1 <= NG - 1 else None
                lastg = g + 1
                if (k + 2) % 8 == 7: tile_done.append(lastg)
            lts = [LT(bs, j) for j in JS]
            ck = []
            if len(lts) == 4: fill[min(NG - 1, tile_done[2] + 2)].append(f"v_max3_f32 v{vCHK}, v{lts[0]}, v{lts[1]}, v{lts[2]}"); ck.append(f"v_max_f32 v{vCHK}, v{vCHK}, v{lts[3]}")
            elif len(lts) == 3: ck.append(f"v_max3_f32 v{vCHK}, v{lts[0]}, v{lts[1]}, v{lts[2]}")
            elif len(lts) == 2: ck.append(f"v_max_f32 v{vCHK}, v{lts[0]}, v{lts[1]}")
            ck.append(f"v_cmp_lt_f32 vcc, s{sTHR}, v{vCHK if len(lts) > 1 else lts[0]}")
            gck = max(lastg, NG - 3) if JN else lastg
            assert gck <= NG - 2
            fb = f"FB{bs}_{''.join(map(str, JS))}"
            FBS[fb] = (bs, JS)
            site = f"L_{nm}_{lp}"
            STUBS.append((site, fb))
            for x in ck: fill[gck].append(x)
            fill[NG - 1].append(grp([f"s_cbranch_vccnz {site}_fb", f"{site}_ret:"]))
        post = None
        if JV:
            for k, j in enumerate(JV):
                g = 1 if k == 0 else min(NG - 5, 16 * k - 3)
                fill[g].append(f"v_mov_b32 v{LL(j)}, v{LT(bv, j)}" if (bk.first and nv == 0) else f"v_add_f32 v{LL(j)}, v{LL(j)}, v{LT(bv, j)}")
        head = sm_ops((ns + 1) & 1, JN)[:2] if JN else []
        if head and not first_qk:
            assert post is None
            fill[NG - 4].append(head[0][0]); fill[NG - 2].append(head[1][0])
            for x in head[1][1]: fill[NG - 1].append(x)
        if lp == 0 and JQ: e.need(f"a[{FK}:{FK+15}]")
        for x in pre:
            if callable(x): x(e)
            else: e(x)
        if pre: e("s_nop 1")
        e.gaps(mf, fill)
        if post:
            for x in post: e(x)
            br(e); e("s_nop 1")
        if first_qk:
            e("s_nop 7")
            for j in range(4): max8(e, NEGM(j), Sr(0, j))
            xreduce(e, "v_max_f32", [NEGM(j) for j in range(4)], [NEGM(j) + 1 for j in range(4)])
            for j in range(4):
                e(f"v_sub_f32 v{NEGM(j)}, 0, v{NEGM(j)}")
                for r in range(1, 4): e(f"v_mov_b32 v{NEGM(j)+r}, v{NEGM(j)}")
            for j in (3, 2, 1, 0):
                for x in range(8): e(f"v_add_f32 v{Sr(0, j)+x}, v{Sr(0, j)+x}, v{NEGM(j)}")
            e(head[0][0]); e(head[1][0]); e("s_nop 0")
            for x in head[1][1]: e(x)
    if bk.B == "F":
        assert [r for r, _ in e.lg] == [r for r, _ in canon][8 - len(e.lg):], nm

def attn_epilogue(e, tiles, sbase):
    e("s_nop 7")
    ls = [LL(j) for j in tiles]
    xreduce(e, "v_add_f32", ls, [89, 90])
    for j in tiles: e(f"v_rcp_f32 v{LL(j)}, v{LL(j)}")
    for hi, j in enumerate(tiles):
        for t in range(4):
            pk = 64 + 4 * (t & 1)
            for k in range(4):
                src = Or(j, 2 * t) + 2 * k; tr = 90 + 2 * (k & 1)
                e(f"v_accvgpr_read_b32 v{tr}, a{src}\nv_accvgpr_read_b32 v{tr+1}, a{src+1}")
                e(f"v_mul_f32 v{tr}, v{tr}, v{LL(j)}\nv_mul_f32 v{tr+1}, v{tr+1}, v{LL(j)}")
                e(f"v_cvt_pk_bf16_f32 v{pk+k}, v{tr}, v{tr+1}")
            e(f"s_add_u32 s{sT}, s{sbase}, {hi * 128 * 4096 + t * 4096}")
            e(f"buffer_store_dwordx4 v[{pk}:{pk+3}], v{vL16}, s[{RWS}:{RWS+3}], s{sT} offen sc1")

def fallback(e, name, b, J):
    e(f"{name}:\ns_nop 15")
    for j in J:
        d = 89
        max8(e, d, Sr(b, j))
        xreduce(e, "v_max_f32", [d], [90])
        e(f"v_max_f32 v{d}, 0, v{d}\nv_sub_f32 v90, 0, v{d}\nv_exp_f32 v90, v90")
        for r in range(4): e(f"v_sub_f32 v{NEGM(j)+r}, v{NEGM(j)+r}, v{d}")
        for x in range(8): e(f"v_sub_f32 v{Sr(b, j)+x}, v{Sr(b, j)+x}, v{d}\nv_sub_f32 v{Sr(b ^ 1, j)+x}, v{Sr(b ^ 1, j)+x}, v{d}")
        e(f"v_mul_f32 v{LL(j)}, v{LL(j)}, v90")
        for x in range(0, 32, 2):
            o = Or(j, 0) + x
            e(f"v_accvgpr_read_b32 v91, a{o}\nv_accvgpr_read_b32 v92, a{o+1}\nv_mul_f32 v91, v91, v90\nv_mul_f32 v92, v92, v90\nv_accvgpr_write_b32 a{o}, v91\nv_accvgpr_write_b32 a{o+1}, v92")
    for ex, fol in sm_ops(b, J):
        e(ex); e("s_nop 0")
        for x in fol: e(x)
    for ex, fol in sm_ops(b ^ 1, [3])[:2]: e(ex)
    e(f"s_nop 1\ns_setpc_b64 s[{sRET}:{sRET+1}]")

def attn_pre(e):
    e.need(vmtags=("k0",), lg0=True)
    e("s_barrier")
    for f in range(8): e(kread(0, f))
    L, inc = kv_dma("V")
    for su, d in L:
        for x in reversed(su): e(x)
        if su: e("s_nop 0")
        e(d)
    e(inc)

def attention(e):
    B = {k: Blk(k, k[-2], k[-1], k.startswith("f")) for k in ("fFF", "fDF", "FF", "DF", "TF", "TD", "XF", "XD", "XT")}
    segs = {}
    def seg(name, fn):
        n0 = len(e.l); fn(); segs[name] = e.l[n0:]
    e(f"s_cmp_eq_u32 s{sIDX}, 0\ns_cbranch_scc1 L_fDF")
    seg("fFF", lambda: attn_block(e, B["fFF"]))
    e(f"s_sub_u32 s{sCNT}, s{sIDX}, 1\ns_cmp_eq_u32 s{sCNT}, 0\ns_cbranch_scc1 L_DF\n.p2align 3\nL_FF:")
    seg("FF", lambda: attn_block(e, B["FF"]))
    e(f"s_sub_u32 s{sCNT}, s{sCNT}, 1\ns_cmp_lg_u32 s{sCNT}, 0\ns_cbranch_scc1 L_FF\nL_DF:")
    seg("DF", lambda: attn_block(e, B["DF"]))
    e(f"s_cmp_eq_u32 s{sIDX}, 7\ns_cbranch_scc1 L_TD\nL_TF:")
    seg("TF", lambda: (attn_block(e, B["TF"]), attn_epilogue(e, (0, 1), sCA)))
    e(f"s_lshl_b32 s{sCNT}, s{sIDX}, 1\ns_sub_u32 s{sCNT}, 13, s{sCNT}\n.p2align 3\nL_XF:")
    seg("XF", lambda: attn_block(e, B["XF"]))
    e(f"s_sub_u32 s{sCNT}, s{sCNT}, 1\ns_cmp_lg_u32 s{sCNT}, 0\ns_cbranch_scc1 L_XF")
    seg("XD", lambda: attn_block(e, B["XD"]))
    e("L_XT:")
    seg("XT", lambda: (attn_block(e, B["XT"]), attn_epilogue(e, (2, 3), sCB)))
    def out_of_line():
        e("L_fDF:")
        seg("fDF", lambda: attn_block(e, B["fDF"]))
        e("s_branch L_TF\nL_TD:")
        seg("TD", lambda: (attn_block(e, B["TD"]), attn_epilogue(e, (0, 1), sCA)))
        e("s_branch L_XT")
        for site, fb in STUBS:
            e(f"{site}_fb:\ns_call_b64 s[{sRET}:{sRET+1}], {fb}\ns_branch {site}_ret")
        for name, (b, J) in FBS.items():
            seg(name, lambda: fallback(e, name, b, J))
    return segs, out_of_line

PD = 5
def p5(e):
    ACC = 32
    e("s_waitcnt vmcnt(0)\ns_barrier\nv_mov_b32 v89, 2")
    e(f"buffer_store_dword v89, v{vSC}, s[{RWS}:{RWS+3}], s{sQ+1} offen sc1")
    sMT, sNT, sA, sB, sXO, sFP = 64, 65, 66, 67, 68, 69
    e(f"""
    s_lshr_b32 s{sMT}, s{sX}, 1
    s_lshl_b32 s{sMT}, s{sMT}, 3
    s_lshr_b32 s{sT}, s2, 3
    s_and_b32 s{sT}, s{sT}, 7
    s_add_u32 s{sMT}, s{sMT}, s{sT}
    s_and_b32 s{sNT}, s{sX}, 1
    s_lshl_b32 s{sNT}, s{sNT}, 2
    s_lshr_b32 s{sT}, s2, 6
    s_add_u32 s{sNT}, s{sNT}, s{sT}
    s_lshr_b32 s{sT}, s{sMT}, 1
    s_sub_u32 s{sT+1}, 15, s{sT}
    s_min_u32 s{sT}, s{sT}, s{sT+1}
    s_mul_i32 s{sFP}, s{sT}, {32*FS}
    s_add_u32 s{sFP}, s{sFP}, {FHC}
    v_lshrrev_b32 v4, 4, v{vL16}
    v_and_b32 v5, 31, v4
    v_mul_u32_u24 v5, {FS}, v5
    v_min_u32 v6, 39, v4
    v_mul_u32_u24 v6, {FS}, v6
    s_mov_b32 s{sT+2}, {FW}
    v_add_u32 v9, 4096, v{vL16}
    v_and_b32 v10, 15, v4
    v_mul_u32_u24 v10, 1280, v10
    v_lshrrev_b32 v11, 4, v4
    v_lshlrev_b32 v11, 3, v11
    v_add_u32 v10, v10, v11
    s_mul_i32 s{sT+3}, s{sMT}, {54*4096}
    s_add_u32 s{sT+3}, s{sT+3}, {HF}
    s_lshl_b32 s{sT+4}, s{sMT}, 19
    s_add_u32 s{sT+4}, s{sT+4}, {CF}
    """)
    srd(e, R0, pWS, 54 * 4096, f"s{sT+3}")
    srd(e, R1, pWS, 128 * 4096, f"s{sT+4}")
    srd(e, R2, pX, 2048 * 1280)
    srd(e, R3, pB2, 1280)
    e(f"""
    s_lshl_b32 s{sB}, s{sW}, 12
    s_mul_i32 s{sA}, s{sW}, 40960
    s_mul_i32 s{sT+3}, s{sNT}, 5120
    s_add_u32 s{sA}, s{sA}, s{sT+3}
    s_add_u32 s{sA}, s{sA}, {WP}
    s_lshl_b32 s{sXO}, s{sMT}, 2
    s_add_u32 s{sXO}, s{sXO}, s{sW}
    s_mul_i32 s{sXO}, s{sXO}, {16*1280}
    s_mul_i32 s{sNT}, s{sNT}, 160
    s_add_u32 s{sXO}, s{sXO}, s{sNT}
    """)
    def poll(e):
        e(f"buffer_load_dword v7, v5, s[{RWS}:{RWS+3}], s{sFP} offen sc1\nbuffer_load_dword v8, v6, s[{RWS}:{RWS+3}], s{sT+2} offen sc1\ns_waitcnt vmcnt(0)")
        e("v_min_u32 v7, v7, v8\nv_cmp_gt_u32 vcc, 1, v7")
    spin(e, "L_p5h", poll, None)
    NS = 46
    def loads(m):
        b = (m % PD) * 36
        if m < 14: rs, ko, ka = R0, m * 16384, m * 4 * 40960
        else: rs, ko, ka = R1, (m - 14) * 16384, (54 + (m - 14) * 4) * 40960
        L = [[f"s_add_u32 s{sT}, s{sB}, {ko}", f"s_add_u32 s{sT+1}, s{sA}, {ka}"]]
        for k in range(9):
            r = b + 4 * k
            if k & 1: L.append(f"buffer_load_dwordx4 a[{r}:{r+3}], v{vL16}, s[{rs}:{rs+3}], s{sT} offen offset:{(k >> 1) * 1024}")
            elif k < 8: L.append(f"buffer_load_dwordx4 a[{r}:{r+3}], v{vL16}, s[{RWS}:{RWS+3}], s{sT+1} offen offset:{(k >> 1) * 1024}")
            else: L.append(f"buffer_load_dwordx4 a[{r}:{r+3}], v9, s[{RWS}:{RWS+3}], s{sT+1} offen")
        return L
    for m in range(PD - 1):
        L = loads(m)
        for x in L[0] + L[1:]: e(x)
    for m in range(NS):
        b = (m % PD) * 36
        mf = []
        for n in range(5):
            for r in range(4):
                d = ACC + (n * 4 + r) * 4; A = b + 8 * n; Bq = b + 8 * r + 4
                mf.append(f"{MF} v[{d}:{d+3}], a[{A}:{A+3}], a[{Bq}:{Bq+3}], " + ("0" if m == 0 else v(d, 4)))
        fill = [[] for _ in range(20)]
        mn = m + PD - 1
        if mn == 14 - 2: fill[19].append(f"buffer_load_dword v7, v5, s[{RWS}:{RWS+3}], s{sFP} offen sc1")
        if mn == 14: fill[0].append(async_check("L_p5c", 7, 2, f"buffer_load_dword v7, v5, s[{RWS}:{RWS+3}], s{sFP} offen sc1"))
        if mn < NS:
            L = loads(mn)
            for x in L[0]: fill[0].append(x)
            for k in range(9): fill[1 + 2 * k].append(L[1 + k])
        if mn == NS:
            for n in range(5):
                fill[1 + 2 * n].append(f"buffer_load_dwordx2 v[{112+2*n}:{113+2*n}], v10, s[{R2}:{R2+3}], s{sXO} offen offset:{32*n}")
                fill[11 + n].append(f"buffer_load_dwordx2 v[{122+2*n}:{123+2*n}], v11, s[{R3}:{R3+3}], s{sNT} offen offset:{32*n}")
        e.need(f"a[{b}:{b+35}]")
        e.gaps(mf, fill)
    srd(e, R0, pOUT, 2048 * 1280)
    e(f"s_mul_i32 s{sT}, s{sW}, 20480\nv_add_u32 v12, s{sT}, v{vL16}\ns_lshl_b32 s{sT}, s{sW}, 10\nv_add_u32 v13, s{sT}, v{vL16}\ns_nop 3")
    for t in range(20):
        if t == 14: e("s_waitcnt lgkmcnt(8)")
        e(f"ds_write_b128 v12, v[{ACC+4*t}:{ACC+4*t+3}] offset:{t*1024}")
    e("s_waitcnt lgkmcnt(0)\ns_barrier")
    e("v_add_u32 v14, 40960, v13")
    def rd(n):
        for w in range(4):
            r = 132 + (n * 4 + w) * 4
            e(f"ds_read_b128 v[{r}:{r+3}], v{13 + (w >> 1)} offset:{(w & 1) * 20480 + n * 4096}")
    rd(0); rd(1); rd(2)
    for n in range(5):
        r = 132 + n * 16
        e.need(f"v[{r}:{r+15}]")
        if n + 3 < 5: rd(n + 3)
        e.need(f"v[{112+2*n}:{113+2*n}],v[{122+2*n}:{123+2*n}]")
        for k in range(2):
            e(f"v_pk_add_f32 v[{r+2*k}:{r+2*k+1}], v[{r+2*k}:{r+2*k+1}], v[{r+4+2*k}:{r+5+2*k}]")
            e(f"v_pk_add_f32 v[{r+8+2*k}:{r+9+2*k}], v[{r+8+2*k}:{r+9+2*k}], v[{r+12+2*k}:{r+13+2*k}]")
            e(f"v_lshlrev_b32 v16, 16, v{112+2*n+k}\nv_and_b32 v17, 0xffff0000, v{112+2*n+k}")
            e(f"v_lshlrev_b32 v18, 16, v{122+2*n+k}\nv_and_b32 v19, 0xffff0000, v{122+2*n+k}")
            e(f"v_pk_add_f32 v[{r+2*k}:{r+2*k+1}], v[{r+2*k}:{r+2*k+1}], v[{r+8+2*k}:{r+9+2*k}]")
            e(f"v_pk_add_f32 v[16:17], v[16:17], v[18:19]")
            e(f"v_pk_add_f32 v[16:17], v[16:17], v[{r+2*k}:{r+2*k+1}]")
            e(f"v_cvt_pk_bf16_f32 v{216+2*n+k}, v16, v17")
        e(f"buffer_store_dwordx2 v[{216+2*n}:{217+2*n}], v10, s[{R0}:{R0+3}], s{sXO} offen offset:{32*n}")

def clone_state(e): return (list(e.vm), list(e.lg))
def same_state(a, b): return [t for _, t in a[0]] == [t for _, t in b[0]] and [r for r, _ in a[1]] == [r for r, _ in b[1]]

def build(stop=None):
    FBS.clear(); STUBS.clear()
    e = E(); seg = {}
    def mark(name, n0): seg[name] = e.l[n0:]
    n0 = 0
    prologue(e); p0_ln(e); p1_pre(e)
    mark("pro", n0)
    e(f"s_cmp_ge_u32 s{sW}, 2\ns_cbranch_scc1 L_p1V")
    st0 = clone_state(e)
    n0 = len(e.l); bgK = Bg(); p1_main(e, "K", bgK); mark("p1K", n0); stK = clone_state(e)
    e("s_branch L_qh\nL_p1V:")
    e.vm, e.lg = list(st0[0]), list(st0[1])
    n0 = len(e.l); bg = Bg(); p1_main(e, "V", bg); mark("p1V", n0); stV = clone_state(e)
    assert same_state(stK, stV) and bg.q == bgK.q
    e(f"L_qh:\ns_cmp_ge_u32 s{sU}, 27\ns_cbranch_scc1 L_qhN")
    n0 = len(e.l); b1 = Bg(); b1.q = list(bg.q); qh_main(e, True, b1)
    e("s_nop 7"); q_pack(e); gelu_store(e); attn_setup(e); attn_pre(e); mark("qhH", n0)
    e("L_attn:")
    segsA, ool = attention(e)
    n0 = len(e.l); e.vm = []; e.lg = []
    p5(e); mark("p5", n0)
    e("L_exit:\ns_endpgm")
    e("L_qhN:")
    e.vm, e.lg = list(stV[0]), list(stV[1])
    n0 = len(e.l); b2 = Bg(); b2.q = list(bg.q); qh_main(e, False, b2)
    e("s_nop 7"); q_pack(e); prepack(e); attn_setup(e); attn_pre(e); mark("qhN", n0)
    e("s_branch L_attn")
    ool()
    seg.update(segsA)
    errs = []
    for T in ("p1K", "p1V"):
        for Hh in ("qhH", "qhN"):
            class X: pass
            x = X(); x.l = seg[T] + seg[Hh]; check_drain_order(x)
    def path(i):
        if i == 0: a = ["fDF"]
        else: a = ["fFF"] + ["FF"] * min(i - 1, 2) + ["DF"]
        a += ["TD"] if i == 7 else ["TF"] + ["XF"] * min(13 - 2 * i, 2) + ["XD"]
        return a + ["XT"]
    for T, Hh, i in (("p1K", "qhH", 0), ("p1V", "qhN", 1), ("p1K", "qhN", 3), ("p1V", "qhH", 6), ("p1K", "qhH", 7)):
        tr = []
        for nme in ["pro", T, Hh] + path(i) + ["p5"]: tr += seg[nme]
        errs += check_trace(tr, f"{T},{Hh},{i}")
    for nme in FBS: errs += check_trace(seg[nme], nme)
    seen = set()
    for x in errs:
        k = x.split("]", 1)[1]
        if k not in seen: seen.add(k); print("HAZARD", x)
    print("instructions:", sum(1 for i in e.l if i.kind != "label"), {k: len(vv) for k, vv in seg.items()})
    return header() + e.text() + footer(), len(seen)

if __name__ == "__main__":
    txt, ne = build()
    out = sys.argv[1] if len(sys.argv) > 1 else "k.s"
    open(out, "w").write(txt)
    print("bytes", len(txt), "hazards", ne)
```

```python
import sys, math, struct
from core import *

NAME = "parallel_sum__compressed_kv_cla__dense_activation_gelu__prompt"
def f32(x): return "0x%08x" % struct.unpack("<I", struct.pack("<f", x))[0]
CS = math.log2(math.e) / math.sqrt(128.0)

OPT = dict(kvst="sc1")
for a in sys.argv[1:]:
    if "=" in a:
        k, vv = a.split("=", 1); OPT[k] = int(vv) if vv.lstrip("-").isdigit() else vv.replace("+", " ")
XS = 0x0000000; KF = 0x0400000; VF = 0x1400000; HF = 0x2400000; CF = 0x2C00000; WP = 0x3C00000; FL = 0x4400000; WS_END = 0x4600000
FKV = FL; FHC = FL + 0x8000; FW = FL + 0x10000
FS = OPT.get('fs', 128)
sW, sH, sIDX, sX = 3, 4, 5, 6
pX, pC, pWQ, pWUK, pWUV, pWO, pW1, pB1, pW2, pB2, pOUT, pDBG, pWS = 8, 10, 12, 14, 16, 18, 22, 24, 26, 28, 30, 32, 34
R0, R1, R2, R3, RWS = 36, 40, 44, 48, 52
sT = 56
sU = 64
sM0a, sM0b, sSa, sSb, sSc, sST = 65, 66, 67, 68, 69, 70
sQ = 72
MF = "v_mfma_f32_16x16x32_bf16"

def srd(e, r, p, nbytes, add=None):
    if add is None:
        e(f"s_mov_b32 s{r}, s{p}\ns_and_b32 s{r+1}, s{p+1}, 0xffff")
    else:
        e(f"s_add_u32 s{r}, s{p}, {add}\ns_addc_u32 s{r+1}, s{p+1}, 0\ns_and_b32 s{r+1}, s{r+1}, 0xffff")
    e(f"s_mov_b32 s{r+2}, {nbytes}\ns_mov_b32 s{r+3}, 0x20000")

vL16, vXR, vWQR, vW1R, vXD, vWQD, vW1D, vSC = 0, 1, 2, 10, 14, 18, 20, 21
vTR, vPK = 24, 28
vCD, vWD, vCR, vWR = 96, 100, 104, 106
vWWIN, vCB = 176, (224, 192)
HACC, QACC = 32, 96
XNB = (224, 240)

def prologue(e):
    e(f"""
    s_cmp_ge_u32 s2, 256
    s_cbranch_scc1 L_exit
    s_load_dwordx16 s[8:23], s[0:1], 0
    s_load_dwordx8 s[24:31], s[0:1], 64
    s_load_dwordx4 s[32:35], s[0:1], 96
    v_lshrrev_b32 v33, 6, v0
    v_and_b32 v32, 63, v0
    v_readfirstlane_b32 s{sW}, v33
    v_lshlrev_b32 v{vL16}, 4, v32
    s_and_b32 s{sX}, s2, 7
    s_lshr_b32 s{sT}, s2, 3
    s_and_b32 s{sT}, s{sT}, 3
    s_lshl_b32 s{sH}, s{sX}, 2
    s_add_u32 s{sH}, s{sH}, s{sT}
    s_lshr_b32 s{sIDX}, s2, 5
    """)
    e(f"""
    s_mul_i32 s{sU}, s{sX}, 3
    s_add_u32 s{sU}, s{sU}, s{sT}
    s_sub_u32 s{sT+1}, s{sX}, s{sIDX}
    s_and_b32 s{sT+1}, s{sT+1}, 7
    s_add_u32 s{sT+1}, s{sT+1}, 24
    s_cmp_eq_u32 s{sT}, 3
    s_cselect_b32 s{sU}, s{sT+1}, s{sU}
    s_waitcnt lgkmcnt(0)
    """)
    if OPT.get("wsbase"): e(f"s_add_u32 s{pWS}, s{pWS}, {OPT['wsbase']}\ns_addc_u32 s{pWS+1}, s{pWS+1}, 0")
    srd(e, RWS, pWS, WS_END)
    srd(e, R0, pX, 2048 * 1280)
    srd(e, R1, pC, 2048 * 1024)
    e(f"s_cmp_ge_u32 s{sW}, 2\ns_cselect_b32 s{R2}, s{pWUV}, s{pWUK}\ns_cselect_b32 s{R2+1}, s{pWUV+1}, s{pWUK+1}")
    e(f"s_and_b32 s{R2+1}, s{R2+1}, 0xffff\ns_mov_b32 s{R2+2}, {512*8192}\ns_mov_b32 s{R2+3}, 0x20000")
    e(f"""
    v_lshrrev_b32 v34, 5, v32
    v_and_b32 v35, 31, v32
    v_mul_u32_u24 v36, 1280, v34
    v_lshl_add_u32 v36, v35, 3, v36
    s_lshl_b32 s{sT}, s2, 2
    s_add_u32 s{sT}, s{sT}, s{sW}
    s_mul_i32 s{sT}, s{sT}, 2560
    """)
    for k in range(5):
        e(f"buffer_load_dwordx2 v[{40+2*k}:{41+2*k}], v36, s[{R0}:{R0+3}], s{sT} offen offset:{256*k}", tag="x")
    e(f"""
    v_lshrrev_b32 v37, 3, v32
    v_and_b32 v38, 7, v32
    v_lshrrev_b32 v39, 4, v32
    v_xor_b32 v50, v38, v39
    v_lshlrev_b32 v50, 4, v50
    v_lshl_add_u32 v{vCD}, v37, 10, v50
    v_xor_b32 v51, 64, v{vCD}
    v_add_u32 v{vCD+1}, 7168, v51
    v_add_u32 v{vCD+2}, {2*7168}, v{vCD}
    v_add_u32 v{vCD+3}, {3*7168}, v51
    v_and_b32 v52, 15, v32
    v_lshlrev_b32 v53, 1, v39
    v_xor_b32 v53, v52, v53
    v_lshlrev_b32 v53, 4, v53
    v_lshl_add_u32 v{vWD}, v39, 13, v53
    v_add_u32 v{vWD+1}, {31744}, v{vWD}
    v_xor_b32 v51, 128, v{vWD}
    v_add_u32 v{vWD+2}, {2*31744}, v51
    v_add_u32 v{vWD+3}, {3*31744}, v51
    """)
    e(f"""
    s_lshl_b32 s{sSa}, s{sIDX}, 18
    s_lshl_b32 s{sT+1}, s{sW}, 16
    s_add_u32 s{sSa}, s{sSa}, s{sT+1}
    s_lshl_b32 s{sM0a}, s{sW}, 13
    s_and_b32 s{sT+1}, s{sW}, 1
    s_lshl_b32 s{sSb}, s{sT+1}, 17
    s_lshl_b32 s{sT+2}, s{sH}, 8
    s_add_u32 s{sSb}, s{sSb}, s{sT+2}
    s_lshl_b32 s{sM0b}, s{sW}, 12
    s_add_u32 s{sM0b}, s{sM0b}, 0x10000
    """)

def p1_cdma(j, q):
    setup = []
    if q % 4 == 0:
        setup = [f"s_add_u32 m0, s{sM0a}, {(j & 1) * 32768 + (q >> 2) * 4096}", f"s_add_u32 s{sT}, s{sSa}, {j * 128 + (q >> 2) * 32768}"]
    return setup, f"buffer_load_dwordx4 v{vCD + (q & 3)}, s[{R1}:{R1+3}], s{sT} offen offset:{(q & 3) * 1024} lds"
def p1_wslot(sidx): return ((sidx + 2) & 3) * 16384
def p1_wdma(sidx, u):
    setup = []
    if u == 0:
        setup = [f"s_add_u32 m0, s{sM0b}, {p1_wslot(sidx)}", f"s_add_u32 s{sT+1}, s{sSb}, {sidx * 32 * 8192}"]
    return setup, f"buffer_load_dwordx4 v{vWD + u}, s[{R2}:{R2+3}], s{sT+1} offen offset:{u * 1024} lds"

def emit_dma(e, pair, tag):
    su, d = pair
    for x in su: e(x)
    if su: e("s_nop 0")
    e(d, tag=tag)

def reduce32(e, r, t):
    for mod in ("quad_perm:[1,0,3,2]", "quad_perm:[2,3,0,1]", "row_half_mirror", "row_mirror"):
        e("s_nop 1")
        e(f"v_add_f32_dpp v{r}, v{r}, v{r} {mod} row_mask:0xf bank_mask:0xf")
    e(f"v_mov_b32 v{t}, v{r}\ns_nop 1\nv_permlane16_swap_b32 v{r}, v{t}\nv_add_f32 v{r}, v{r}, v{t}")

def p0_ln(e):
    for q in range(8): emit_dma(e, p1_cdma(0, q), "c0")
    for u in range(4): emit_dma(e, p1_wdma(0, u), "w0")
    for u in range(4): emit_dma(e, p1_wdma(1, u), "w1")
    for q in range(8): emit_dma(e, p1_cdma(1, q), "c1")
    for u in range(4): emit_dma(e, p1_wdma(2, u), "w2")
    e(f"""
    v_lshrrev_b32 v54, 1, v52
    v_xor_b32 v54, v54, v39
    v_lshlrev_b32 v54, 4, v54
    v_lshl_add_u32 v54, v52, 7, v54
    s_and_b32 s{sT+2}, s{sW}, 1
    s_lshl_b32 s{sT+2}, s{sT+2}, 14
    v_add_u32 v{vCR}, s{sT+2}, v54
    v_xor_b32 v{vCR+1}, 64, v{vCR}
    v_lshrrev_b32 v55, 2, v52
    v_and_b32 v56, 1, v39
    v_lshl_add_u32 v56, v56, 2, v55
    v_lshlrev_b32 v56, 5, v56
    v_and_b32 v57, 3, v32
    v_lshlrev_b32 v57, 3, v57
    v_lshl_add_u32 v57, v55, 8, v57
    v_lshl_add_u32 v58, v39, 11, v57
    s_lshr_b32 s{sT+2}, s{sW}, 1
    s_lshl_b32 s{sT+2}, s{sT+2}, 13
    s_add_u32 s{sT+2}, s{sT+2}, 0x10000
    v_add_u32 v58, s{sT+2}, v58
    v_mul_u32_u24 v59, 3072, v39
    v_add_u32 v59, v59, v57
    v_add_u32 v59, {96*1024}, v59
    """)
    for i in range(8):
        e(f"v_xor_b32 v60, {32*i}, v56\nv_add_u32 v{vWR+i}, v60, v58\nv_add_u32 v{vWQR+i}, v60, v59")
    e(f"""
    v_lshrrev_b32 v60, 1, v55
    v_and_b32 v61, 1, v39
    v_lshl_add_u32 v60, v61, 1, v60
    v_lshlrev_b32 v60, 5, v60
    v_and_b32 v61, 3, v32
    v_lshlrev_b32 v61, 3, v61
    v_lshl_add_u32 v61, v55, 7, v61
    v_mul_u32_u24 v62, 3072, v39
    v_add3_u32 v61, v61, v62, 0
    v_add_u32 v61, {96*1024 + 2048}, v61
    """)
    for i in range(4):
        e(f"v_xor_b32 v62, {32*i}, v60\nv_add_u32 v{vW1R+i}, v62, v61")
    e.need(vmtags=("x",))
    for k in range(10):
        e(f"v_lshlrev_b32 v{64+2*k}, 16, v{40+k}\nv_and_b32 v{65+2*k}, 0xffff0000, v{40+k}")
    e("v_add_f32 v84, v64, v65\nv_add_f32 v85, v66, v67")
    for k in range(4, 20, 2):
        e(f"v_add_f32 v84, v84, v{64+k}\nv_add_f32 v85, v85, v{65+k}")
    e("v_add_f32 v84, v84, v85")
    reduce32(e, 84, 85)
    e(f"v_mul_f32 v84, {f32(1/640)}, v84")
    for k in range(20): e(f"v_sub_f32 v{64+k}, v{64+k}, v84")
    e("v_mul_f32 v86, v64, v64\nv_mul_f32 v87, v65, v65")
    for k in range(2, 20, 2):
        e(f"v_fmac_f32 v86, v{64+k}, v{64+k}\nv_fmac_f32 v87, v{65+k}, v{65+k}")
    e("v_add_f32 v86, v86, v87")
    reduce32(e, 86, 87)
    e(f"""
    v_mov_b32 v87, {f32(1e-5)}
    v_fmac_f32 v87, {f32(1/640)}, v86
    v_rsq_f32 v87, v87
    s_nop 0
    v_mul_f32 v87, {f32(CS)}, v87
    """)
    for k in range(20): e(f"v_mul_f32 v{64+k}, v{64+k}, v87")
    for k in range(10): e(f"v_cvt_pk_bf16_f32 v{40+k}, v{64+2*k}, v{65+2*k}")
    e(f"""
    v_lshrrev_b32 v88, 1, v35
    v_lshlrev_b32 v88, 7, v88
    v_and_b32 v89, 1, v35
    v_lshl_add_u32 v88, v89, 3, v88
    v_lshl_add_u32 v88, v34, 4, v88
    s_lshl_b32 s{sT+2}, s{sW}, 5
    s_add_u32 s{sT+2}, s{sT+2}, 0x20000
    v_add_u32 v88, s{sT+2}, v88
    """)
    for k in range(5): e(f"ds_write_b64 v88, v[{40+2*k}:{41+2*k}] offset:{k*2048}")
    e(f"""
    v_lshlrev_b32 v89, 8, v37
    v_lshl_add_u32 v89, v38, 4, v89
    s_lshr_b32 s{sT+2}, s2, 1
    s_mul_i32 s{sT+2}, s{sT+2}, 20480
    s_and_b32 s{sT+3}, s2, 1
    s_lshl_b32 s{sT+3}, s{sT+3}, 7
    s_add_u32 s{sT+2}, s{sT+2}, s{sT+3}
    s_lshl_b32 s{sT+3}, s{sW}, 11
    s_add_u32 s{sT+2}, s{sT+2}, s{sT+3}
    s_add_u32 s{sT+3}, s{sT+2}, 8192
    s_add_u32 s{sT+4}, s{sT+2}, 16384
    s_cmp_ge_u32 s{sW}, 2
    s_cselect_b32 s{sT+4}, {WS_END}, s{sT+4}
    s_lshl_b32 s{sT+5}, s{sW}, 10
    s_add_u32 s{sT+5}, s{sT+5}, 0x20000
    v_add_u32 v90, s{sT+5}, v{vL16}
    s_waitcnt lgkmcnt(0)
    s_barrier
    ds_read_b128 v[64:67], v90
    ds_read_b128 v[68:71], v90 offset:4096
    ds_read_b128 v[72:75], v90 offset:8192
    """)
    e(f"""
    s_lshl_b32 s{sQ}, s{sH}, 3
    s_add_u32 s{sQ}, s{sQ}, s{sIDX}
    s_mul_i32 s{sQ}, s{sQ}, {FS}
    s_add_u32 s{sQ}, s{sQ}, {FKV}
    s_lshl_b32 s{sQ+1}, s{sIDX}, 5
    s_add_u32 s{sQ+1}, s{sQ+1}, s{sH}
    s_mul_i32 s{sQ+1}, s{sQ+1}, {FS}
    s_add_u32 s{sQ+1}, s{sQ+1}, {FHC}
    s_sub_u32 s{sQ+2}, s{sU}, 27
    s_mul_i32 s{sT+5}, s{sX}, 5
    s_add_u32 s{sQ+3}, s{sQ+2}, s{sT+5}
    s_mul_i32 s{sQ+2}, s{sQ+3}, {FS}
    s_add_u32 s{sQ+2}, s{sQ+2}, {FW}
    s_cmp_lt_u32 s{sU}, 27
    s_cselect_b32 s{sQ+2}, {WS_END}, s{sQ+2}
    v_mov_b32 v91, 0
    v_mov_b32 v92, 0x10000000
    v_lshl_add_u32 v93, v33, 6, v32
    v_cmp_eq_u32 vcc, 0, v93
    s_nop 1
    v_cndmask_b32 v{vSC}, v92, v91, vcc
    """)
    e(f"buffer_store_dword v91, v{vSC}, s[{RWS}:{RWS+3}], s{sQ} offen sc1", tag="xs")
    e(f"buffer_store_dword v91, v{vSC}, s[{RWS}:{RWS+3}], s{sQ+1} offen sc1", tag="xs")
    e(f"buffer_store_dword v91, v{vSC}, s[{RWS}:{RWS+3}], s{sQ+2} offen sc1", tag="xs")
    for k in range(3):
        e.need(f"v[{64+4*k}:{67+4*k}]")
        e(f"buffer_store_dwordx4 v[{64+4*k}:{67+4*k}], v89, s[{RWS}:{RWS+3}], s{sT+2+k} offen sc1", tag="xs")

def p1_acc(T, i, j):
    if T == "K": return 8 * (8 * (i >> 1) + 4 * (j & 1) + (j >> 1)) + 4 * (i & 1)
    return 32 * i + 4 * j
def p1_units():
    U = []
    for n in range(32):
        off = (n & 3) * 8192 + (n >> 2) * 1024
        ins = []
        for k in range(4):
            tr = vTR + 2 * (k & 1); src = 8 * n + 2 * k
            ins += [f"v_accvgpr_read_b32 v{tr}, a{src}", f"v_accvgpr_read_b32 v{tr+1}, a{src+1}", f"v_cvt_pk_bf16_f32 v{vPK+k}, v{tr}, v{tr+1}"]
        ins.insert(6, f"s_add_u32 s{sT+7}, s{sST}, {off & ~4095}")
        if OPT["kvst"] != "skip": ins.append((f"buffer_store_dwordx4 v[{vPK}:{vPK+3}], v{vL16}, s[{RWS}:{RWS+3}], s{sT+7} offen offset:{off & 4095} {OPT['kvst']}", "kv"))
        U.append(ins)
    return U

class Bg:
    def __init__(self): self.q = []
    def push(self, ins): self.q += list(ins)
    def place(self, fill, g0, g1, maxv=1, step=1):
        for g in range(g0, g1, step):
            n = 0
            while self.q and n < maxv:
                x = self.q[0]; t = x[0] if isinstance(x, tuple) else x
                k = I(t).kind if not callable(t) else "call"
                if k in ("vms", "vml") and (n > 0 or any((not callable(y)) and I(y[0] if isinstance(y, tuple) else y).kind in ("vml", "vms") for y in fill[g])): break
                fill[g].append(("BG", self.q.pop(0)))
                if k == "salu": continue
                n += 1
                if k in ("vms", "vml"): break
    def flush(self, e):
        for x in self.q:
            t, tag = x if isinstance(x, tuple) else (x, None)
            q = I(t); e.need(q.rd | q.wr); e(t, tag)
        self.q = []

def run_gaps(e, mf, fill, nxt=None):
    f2 = []
    for g in range(len(mf)):
        a = [x for x in fill[g] if not (isinstance(x, tuple) and x[0] == "BG")]
        b = [x[1] for x in fill[g] if isinstance(x, tuple) and x[0] == "BG"]
        if b:
            def mk(b):
                def f(e):
                    for x in b:
                        t, tag = x if isinstance(x, tuple) else (x, None)
                        q = I(t); e.need(q.rd | q.wr); e(t, tag)
                f.last = True
                return f
            a.append(mk(b))
        f2.append(a)
    e.gaps(mf, f2, nxt)

def put_dma(fill, g, pair, tag):
    su, d = pair
    for k, x in enumerate(su): fill[g - 1 - k].append(x)
    fill[g].append((d, tag))

def qh_wslot(sidx): return ((sidx + 3) % 5) * 12288
def qh_dmas(sidx, hasH):
    L = []
    for j in range(4):
        su = [f"s_add_u32 m0, s{sM0a}, {(sidx & 3) * 16384}", f"s_mov_b32 s{sT}, {XS + sidx * 1024}"] if j == 0 else []
        L.append((su, f"buffer_load_dwordx4 v{vXD + j}, s[{RWS}:{RWS+3}], s{sT} offen offset:{j * 1024} lds"))
    for u in range(2):
        su = [f"s_add_u32 m0, s{sM0b}, {qh_wslot(sidx)}", f"s_mov_b32 s{sT+1}, {sidx * 32 * 8192}"] if u == 0 else []
        L.append((su, f"buffer_load_dwordx4 v{vWQD + u}, s[{R0}:{R0+3}], s{sT+1} offen offset:{u * 1024} lds"))
    if hasH:
        L.append(([f"s_mov_b32 s{sT+2}, {sidx * 32 * 3456}"], f"buffer_load_dwordx4 v{vW1D}, s[{R1}:{R1+3}], s{sT+2} offen offset:2048 lds"))
    return L
def qh_xread(sidx, j):
    b = XNB[sidx & 1] + 4 * j
    return f"ds_read_b128 v[{b}:{b+3}], v{vXR} offset:{(sidx & 3) * 16384 + j * 1024}"
def qh_wread(sidx, i, n):
    r = (n & 7) * 4
    if i < 8: a, second = vWQR + i, 1024
    else: a, second = vW1R + i - 8, 512
    o = qh_wslot(sidx)
    return [f"ds_read_b64_tr_b16 a[{r}:{r+1}], v{a} offset:{o}", f"ds_read_b64_tr_b16 a[{r+2}:{r+3}], v{a} offset:{o + second}"]

def spin(e, lab, pollA, cond, limit=200000):
    e(f"s_mov_b32 s{sT+6}, {limit}\n{lab}:")
    pollA(e)
    e(f"s_cbranch_vccz {lab}_ok\ns_sub_u32 s{sT+6}, s{sT+6}, 1\ns_cmp_eq_u32 s{sT+6}, 0\ns_cbranch_scc1 {lab}_ok\ns_sleep 2\ns_branch {lab}\n{lab}_ok:")

def qh_setup(e):
    L = []
    L += [f"s_lshl_b32 s{sQ+4}, s{sIDX}, 3", f"s_add_u32 s{sQ+4}, s{sQ+4}, s{sW}", f"s_mul_i32 s{sQ+4}, s{sQ+4}, 20480",
          f"s_sub_u32 s{sQ+5}, 15, s{sIDX}", f"s_lshl_b32 s{sQ+5}, s{sQ+5}, 3", f"s_add_u32 s{sQ+5}, s{sQ+5}, s{sW}", f"s_mul_i32 s{sQ+5}, s{sQ+5}, 20480"]
    L += [f"v_add_u32 v{vXD}, s{sQ+4}, v{vL16}", f"v_add_u32 v{vXD+1}, {4*20480 - 1024}, v{vXD}",
          f"v_add_u32 v{vXD+2}, s{sQ+5}, v{vL16}", f"v_add_u32 v{vXD+3}, {4*20480 - 3072}, v{vXD+2}", f"v_subrev_u32 v{vXD+2}, 2048, v{vXD+2}"]
    return L

STAMP = False
TS = FL + 0x20000
def stamp(e, k):
    if not STAMP: return
    lg = list(e.lg)
    e(f"""s_memrealtime s[96:97]
    s_memtime s[98:99]
    s_waitcnt lgkmcnt(0)
    s_lshl_b32 s97, s2, 2
    s_add_u32 s97, s97, s{sW}
    s_lshl_b32 s97, s97, 8
    s_add_u32 s97, s97, {TS + 8 * k}
    s_mov_b64 s[100:101], exec
    s_mov_b64 exec, 1
    {"v_mov_b32 v122" if k == 3 else "v_accvgpr_write_b32 a254"}, s96
    {"v_mov_b32 v123" if k == 3 else "v_accvgpr_write_b32 a255"}, s98
    s_nop 1
    buffer_store_dwordx2 {"v[122:123]" if k == 3 else "a[254:255]"}, off, s[{RWS}:{RWS+3}], s97
    s_mov_b64 exec, s[100:101]
    s_nop 3""")

def header():
    return f"""; @launch grid=(256,1,1) block=(256,1,1) lds=163840
.amdgcn_target "amdgcn-amd-amdhsa--gfx950"
.text
.globl {NAME}_kernel
.p2align 8
.type {NAME}_kernel,@function
{NAME}_kernel:
"""
def footer():
    return f"""
.section .rodata,"a"
.p2align 6
.amdhsa_kernel {NAME}_kernel
  .amdhsa_next_free_vgpr 512
  .amdhsa_next_free_sgpr 102
  .amdhsa_accum_offset 256
  .amdhsa_group_segment_fixed_size 0
  .amdhsa_kernarg_size 112
  .amdhsa_user_sgpr_count 2
  .amdhsa_user_sgpr_kernarg_segment_ptr 1
  .amdhsa_system_sgpr_workgroup_id_x 1
.end_amdhsa_kernel
"""

def grp(L):
    def f(e):
        for x in L: e(x)
    return f
vTK = 22
def tick_pre(e):
    if OPT.get("ticks"): e("s_memtime s[96:97]")
def tick_post(e):
    if OPT.get("ticks"):
        e(f"s_waitcnt lgkmcnt(0)\ns_lshl_b64 exec, 1, s71\nv_mov_b32 v{vTK}, s96\ns_mov_b64 exec, -1\ns_add_u32 s71, s71, 1")
def tick_dump(e, k):
    if OPT.get("ticks"):
        e(f"""s_lshl_b32 s97, s2, 2
        s_add_u32 s97, s97, s{sW}
        s_lshl_b32 s97, s97, 10
        s_add_u32 s97, s97, {TS + 0x40000 + 256 * k}
        v_lshrrev_b32 v23, 2, v{vL16}
        s_nop 0
        buffer_store_dword v{vTK}, v23, s[{RWS}:{RWS+3}], s97 offen
        s_mov_b32 s71, 0
        s_nop 1""")
def bar(vmtags=(), lg0=True):
    def f(e):
        tick_pre(e)
        e.need(vmtags=vmtags, lg0=lg0); e("s_barrier")
        tick_post(e)
    return f

def p1_pre(e):
    srd(e, R3, pDBG, 256)
    e(f"""
    s_lshl_b32 s{sST}, s{sH}, 19
    s_lshl_b32 s{sT+2}, s{sIDX}, 16
    s_add_u32 s{sST}, s{sST}, s{sT+2}
    s_and_b32 s{sT+2}, s{sW}, 1
    s_lshl_b32 s{sT+2}, s{sT+2}, 15
    s_add_u32 s{sST}, s{sST}, s{sT+2}
    s_cmp_ge_u32 s{sW}, 2
    s_cselect_b32 s{sT+2}, {VF-KF}, 0
    s_add_u32 s{sST}, s{sST}, s{sT+2}
    s_add_u32 s{sST}, s{sST}, {KF}
    s_lshl_b32 s{sT+2}, s{sW}, 12
    v_add_u32 v{vXR}, s{sT+2}, v{vL16}
    """)
    e(f"""
    s_and_b32 s{sT+2}, s{sW}, 1
    s_lshl_b32 s{sT+3}, s{sT+2}, 7
    v_xor_b32 v94, s{sT+3}, v{vWD}
    s_lshl_b32 s{sT+3}, s{sW}, 16
    s_lshl_b32 s{sT+4}, s{sH}, 8
    s_add_u32 s{sT+3}, s{sT+3}, s{sT+4}
    v_add_u32 v{vWQD}, s{sT+3}, v94
    v_add_u32 v{vWQD+1}, 31744, v{vWQD}
    """)
    e(f"""
    v_and_b32 v94, 1, v39
    v_lshlrev_b32 v94, 1, v94
    s_lshl_b32 s{sT+3}, s{sT+2}, 2
    v_or_b32 v94, s{sT+3}, v94
    v_xor_b32 v94, v94, v38
    v_lshlrev_b32 v94, 4, v94
    v_mul_u32_u24 v95, 3456, v37
    v_add_u32 v94, v94, v95
    s_mul_i32 s{sT+3}, s{sW}, {8*3456}
    s_lshl_b32 s{sT+4}, s{sU}, 7
    s_add_u32 s{sT+3}, s{sT+3}, s{sT+4}
    v_add_u32 v{vW1D}, s{sT+3}, v94
    """)
    srd(e, R0, pB1, 1728 * 2)
    e(f"v_lshlrev_b32 v94, 3, v39\ns_lshl_b32 s{sT+4}, s{sU}, 7")
    for ft in range(4):
        e(f"buffer_load_dwordx2 v[{114+2*ft}:{115+2*ft}], v94, s[{R0}:{R0+3}], s{sT+4} offen offset:{32*ft}", tag="b1")
    for x in qh_setup(e): e(x)
    e.need(vmtags=("c0", "w0"), lg0=True)
    e("s_barrier")
    for j in range(8): e(p1_cread(0, j))
    for n in range(2):
        for x in p1_wread(n): e(x)

def hacc(ft, j): return HACC + (j * 2 + (ft >> 1)) * 8 + (ft & 1) * 4
def qacc(i, j): return QACC + (j * 4 + (i >> 1)) * 8 + (i & 1) * 4
def bias_init():
    L = []
    for ft in range(4):
        d = hacc(ft, 3)
        for k in range(2):
            L += [f"v_lshlrev_b32 v{d+2*k}, 16, v{114+2*ft+k}", f"v_and_b32 v{d+2*k+1}, 0xffff0000, v{114+2*ft+k}",
                  f"v_mul_f32 v{d+2*k}, {f32(CS)}, v{d+2*k}", f"v_mul_f32 v{d+2*k+1}, {f32(CS)}, v{d+2*k+1}"]
    return L

def p1_cread(sidx, j):
    b = vCB[sidx & 1] + 4 * j
    return f"ds_read_b128 v[{b}:{b+3}], v{vCR + (sidx & 1)} offset:{((sidx >> 1) & 1) * 32768 + j * 2048}"
def p1_wread(n):
    sidx, i = divmod(n, 8); r = vWWIN + 4 * (n & 3); o = p1_wslot(sidx)
    return [f"ds_read_b64_tr_b16 v[{r}:{r+1}], v{vWR+i} offset:{o}", f"ds_read_b64_tr_b16 v[{r+2}:{r+3}], v{vWR+i} offset:{o+1024}"]

def async_check(lab, reg, want, reload, op="v_cmp_gt_u32"):
    def f(e):
        e.need(f"v{reg}")
        e(f"{op} vcc, {want}, v{reg}\ns_cbranch_vccz {lab}_ok")
        sv, sl = list(e.vm), list(e.lg)
        def poll(e):
            e(reload); e("s_waitcnt vmcnt(0)"); e(f"{op} vcc, {want}, v{reg}")
        spin(e, lab, poll, None)
        e.vm, e.lg = sv, sl
    return f

def p1_main(e, T, bg):
    fills = [[[] for _ in range(64)] for _ in range(16)]
    def pos(ep):
        p = [(ep - 1, g) for g in (50, 54, 58, 62)] + [(ep, g) for g in range(2, 47, 4)]
        return [x for x in p if 0 <= x[0] < 16]
    for ep in range(0, 16):
        L = []
        if ep & 1 and (ep + 3) // 2 < 8: L += [(p1_cdma((ep + 3) // 2, q), f"c{(ep+3)//2}") for q in range(8)]
        if ep + 3 < 16: L += [(p1_wdma(ep + 3, u), f"w{ep+3}") for u in range(4)]
        if ep == 13: L += [(d, "q0") for d in qh_dmas(0, True)]
        if ep == 14: L += [(d, "q1") for d in qh_dmas(1, True)]
        if ep == 15: L += [(d, "q2") for d in qh_dmas(2, True)] + [(d, "q3") for d in qh_dmas(3, True)]
        P = pos(ep); assert len(L) <= len(P)
        if OPT.get("p1_nodma") and ep < 13: L = []
        for (d, tag), (ks, g) in zip(L, P): put_dma(fills[ks], g, d, tag)
    for sidx in range(16):
        f = fills[sidx]
        for i in range(8):
            n = 8 * sidx + i + 2
            if n < 128:
                a, b = p1_wread(n)
                if not OPT.get("p1_nord"): f[8 * i].append(a); f[8 * i + 1].append(b)
        if sidx < 15:
            for j in range(8):
                if not OPT.get("p1_nord"): f[3 + 4 * j].append(p1_cread(sidx + 1, j))
            tags = [f"w{sidx+1}", f"c{(sidx+2)>>1}"]
            if sidx == 12:
                f[47].append(async_check(f"L_sa{T}", 122, "0x100", f"buffer_load_dword v122, v123, s[{R3}:{R3+3}], 0 offen sc1"))
            if not OPT.get("p1_nobar"): f[47].append(bar(tags))
        else:
            f[47].append(bar(["q0", "q1"]))
            for j in range(4): f[49 + 2 * j].append(qh_xread(0, j))
            for n in range(3):
                a, b = qh_wread(0, n, n); f[56 + 2 * n].append(a); f[57 + 2 * n].append(b)
    for k, x in enumerate(bias_init()): fills[4][33 + k if k < 14 else 34 + k].append(x) if k < 28 else fills[5][33 + k - 28].append(x)
    fills[2][49].append("v_mov_b32 v122, 1"); fills[2][51].append("v_mov_b32 v123, 0")
    fills[2][52].append((f"buffer_atomic_add v122, v{vSC}, s[{R3}:{R3+3}], 0 offen sc1", "arr"))
    fills[11][36].append((f"buffer_load_dword v122, v123, s[{R3}:{R3+3}], 0 offen sc1", "pa"))
    qs = [f"s_mov_b32 s{R0}, s{pWQ}", f"s_and_b32 s{R0+1}, s{pWQ+1}, 0xffff", f"s_mov_b32 s{R0+2}, {640*8192}", f"s_mov_b32 s{R0+3}, 0x20000",
          f"s_sub_u32 s{R1}, s{pW1}, 2048", f"s_subb_u32 s{R1+1}, s{pW1+1}, 0", f"s_and_b32 s{R1+1}, s{R1+1}, 0xffff",
          f"s_cmp_lt_u32 s{sU}, 27", f"s_cselect_b32 s{R1+2}, {640*3456 + 2048}, 0", f"s_mov_b32 s{R1+3}, 0x20000",
          f"s_lshl_b32 s{sM0a}, s{sW}, 12", f"s_mul_i32 s{sM0b}, s{sW}, 3072", f"s_add_u32 s{sM0b}, s{sM0b}, {96*1024}"]
    fills[12][4].append(grp(qs[:4])); fills[12][10].append(grp(qs[4:10])); fills[12][14].append(grp(qs[10:]))
    bg.push([x for u in p1_units() for x in u])
    bg.place(fills[15], 19, 46, maxv=2)
    bg.place(fills[15], 48, 64, maxv=2)
    for sidx in range(16):
        mf = []
        for i in range(8):
            for j in range(8):
                d = p1_acc(T, i, j); w = vWWIN + 4 * ((8 * sidx + i) & 3); c = vCB[sidx & 1] + 4 * j
                A, B = (w, c) if T == "K" else (c, w)
                mf.append(f"{MF} a[{d}:{d+3}], v[{A}:{A+3}], v[{B}:{B+3}], " + ("0" if sidx == 0 else f"a[{d}:{d+3}]"))
        fills[sidx + 0] = (mf, fills[sidx])
    for sidx in range(16):
        mf, f = fills[sidx]
        run_gaps(e, mf, f, fills[sidx + 1][0][0] if sidx < 15 else None)

vKVD = vXR
sKo, sVo, sMK, sMV = 76, 77, 78, 79
def kv_dma(kind, static_pair=None):
    so, mb, rs = (sKo, sMK, R2) if kind == "K" else (sVo, sMV, R3)
    L = []
    for k in range(4):
        su = []
        if k == 0:
            su = [f"s_add_u32 m0, s{sT+3}, s{mb}", f"s_and_b32 s{sT+3}, s{so}, 0xc000"]
        L.append((su, f"buffer_load_dwordx4 v{vKVD}, s[{rs}:{rs+3}], s{so} offen offset:{k*1024} lds"))
    return L, f"s_add_u32 s{so}, s{so}, 16384"

sPS = 80
def pre_addr():
    L = [f"v_lshrrev_b32 v44, 4, v{vL16}"]
    for k in range(10):
        L += [f"v_add_u32 v45, {64*k}, v44", f"v_mul_u32_u24 v46, 3277, v45", f"v_lshrrev_b32 v46, 16, v46", f"v_mul_u32_u24 v46, 960, v46",
              f"v_lshl_add_u32 v{32+k}, v45, 4, v46"]
    return L
def pre_srd(m):
    return [f"s_add_u32 s{sPS+5}, s{sQ+3}, {40*m}", f"s_sub_u32 s{sPS+6}, s{sPS+5}, 54", f"s_cmp_lt_u32 s{sPS+5}, 54",
            f"s_cselect_b32 s{sPS}, s{pW2}, s{pWO}", f"s_cselect_b32 s{sPS+1}, s{pW2+1}, s{pWO+1}",
            f"s_mov_b32 s{sPS+2}, {4096*1280}", f"s_cselect_b32 s{sPS+2}, {1728*1280}, s{sPS+2}", f"s_cselect_b32 s{sPS+4}, s{sPS+5}, s{sPS+6}",
            f"s_and_b32 s{sPS+1}, s{sPS+1}, 0xffff", f"s_mov_b32 s{sPS+3}, 0x20000",
            f"s_mul_i32 s{sPS+4}, s{sPS+4}, 40960", f"s_mul_i32 s{sPS+6}, s{sW}, 320", f"s_add_u32 s{sPS+4}, s{sPS+4}, s{sPS+6}"]
def prepack(e):
    e(f"""
    s_mul_i32 s{sT}, s{sW}, 20480
    s_add_u32 s{sT}, s{sT}, {80*1024}
    v_add_u32 v44, s{sT}, v{vL16}
    v_lshrrev_b32 v45, 6, v{vL16}
    v_mul_u32_u24 v45, 320, v45
    v_lshrrev_b32 v46, 1, v{vL16}
    v_and_b32 v46, 24, v46
    v_add3_u32 v45, v45, v46, s{sT}
    s_mul_i32 s{sT+1}, s{sQ+3}, 40960
    s_mul_i32 s{sT+2}, s{sW}, 10240
    s_add_u32 s{sT+1}, s{sT+1}, s{sT+2}
    s_add_u32 s{sT+1}, s{sT+1}, {WP}
    s_cmp_lt_u32 s{sQ+3}, 22
    s_cselect_b32 s{sT+2}, s{sT+1}, {WS_END}
    s_waitcnt lgkmcnt(0)
    s_barrier
    """)
    for m in range(5):
        lb = (m & 1) * 10240
        e.need(vmtags=(f"pp{m}",))
        if len(e.vm) > 50: e("s_waitcnt vmcnt(50)")
        for k in range(10):
            e(f"ds_write_b128 v44, a[{32 + 40*m + 4*k}:{35 + 40*m + 4*k}] offset:{lb + 1024*k}")
        e("s_waitcnt lgkmcnt(0)")
        for half in range(2):
            for nt in range(5 * half, 5 * half + 5):
                r = 48 + 4 * nt
                e(f"ds_read_b64_tr_b16 v[{r}:{r+1}], v45 offset:{lb + 32*nt}\nds_read_b64_tr_b16 v[{r+2}:{r+3}], v45 offset:{lb + 32*nt + 5120}")
            for nt in range(5 * half, 5 * half + 5):
                r = 48 + 4 * nt
                if nt % 4 == 0: e(f"s_add_u32 s{sT+3}, s{sT+1 if m < 4 else sT+2}, {m * 40 * 40960 + nt * 1024}")
                e.need(f"v[{r}:{r+3}]")
                e(f"buffer_store_dwordx4 v[{r}:{r+3}], v{vL16}, s[{RWS}:{RWS+3}], s{sT+3} offen offset:{(nt % 4) * 1024} sc1", tag="h")

def qh_main(e, hasH, bg):
    NI = 12 if hasH else 8; NG = 4 * NI; LA = 3
    tagv = "H" if hasH else "N"
    fills = [[[] for _ in range(NG)] for _ in range(20)]
    bp = NG - 4 * LA - 1
    def pos(ep):
        p = [(ep - 1, g) for g in range(bp + 3, NG, 4)] + [(ep, g) for g in range(6 if ep == 0 else 2, bp - 1, 4)]
        return [x for x in p if 0 <= x[0] < 20]
    pend = []
    for ep in range(0, 16):
        pend += [(d, f"q{ep+4}") for d in qh_dmas(ep + 4, hasH)]
        for ks, g in pos(ep):
            if pend:
                d, tag = pend.pop(0); put_dma(fills[ks], g, d, tag)
    assert not pend
    if not hasH:
        pp = [(ks, g) for ks in range(11, 20) for g in range(0, NG, 4) if not (ks >= 16 and ks <= 18 and g < 32 and (ks == 16 or g < 20))]
        pp = [(ks, g) for ks in range(11, 16) for g in range(4, NG, 4)] + [(17, g) for g in (20, 23, 26, 29)] + [(18, g) for g in (20, 23, 26, 29)] + [(19, g) for g in range(2, 32, 3)]
        k = 0
        for x in pre_addr(): fills[9 + k // 28][2 + k % 28].append(x); k += 1
        for m in range(5):
            for k in range(10):
                ks, g = pp.pop(0)
                if k == 0: fills[ks][g - 1].append(grp(pre_srd(m)))
                fills[ks][g].append((f"buffer_load_dwordx4 a[{32 + 40*m + 4*k}:{35 + 40*m + 4*k}], v{32+k}, s[{sPS}:{sPS+3}], s{sPS+4} offen", f"pp{m}"))
    def kvput(ks, g0, kind, tag):
        L, inc = kv_dma(kind)
        for k, d in enumerate(L): put_dma(fills[ks], g0 + 3 * k, d, tag)
        fills[ks][g0 + 10].append(inc)
    kvput(16, 4, "V", "v0"); kvput(16, 18, "K", "k0"); kvput(17, 6, "K", "k1"); kvput(18, 6, "K", "k2")
    for sidx in range(20):
        f = fills[sidx]
        for i in range(NI):
            s2, i2 = divmod(NI * sidx + i + LA, NI)
            if s2 < 20:
                a, b = qh_wread(s2, i2, NI * sidx + i + LA); f[4 * i].append(a); f[4 * i + 1].append(b)
        if sidx < 19:
            for j in range(4): f[3 + 4 * j].append(qh_xread(sidx + 1, j))
            tags = [f"q{sidx+1}", f"q{sidx+2}x"]
            if sidx + 2 <= 3: tags.append(f"q{sidx+2}")
            if sidx == 12: tags.append("kv")
            if sidx == 15:
                f[bp].append(async_check(f"L_sk{tagv}", 23, 1, f"buffer_load_dword v23, v{vTR}, s[{RWS}:{RWS+3}], s{sT+4} offen sc1"))
            f[bp].append(bar(tags))
    for ks in range(20):
        for g in range(NG):
            for k, x in enumerate(fills[ks][g]):
                if isinstance(x, tuple) and isinstance(x[1], str) and x[1].startswith("q") and f"s[{RWS}:" in x[0]:
                    fills[ks][g][k] = (x[0], x[1] + "x")
    fills[13][2].append("v_mov_b32 v23, 1")
    fills[13][5].append((f"buffer_store_dword v23, v{vSC}, s[{RWS}:{RWS+3}], s{sQ} offen sc1", "fl"))
    qs = [f"s_lshl_b32 s{sT+4}, s{sH}, 19", f"s_add_u32 s{sT+5}, s{sT+4}, {KF}", f"s_add_u32 s{R2}, s{pWS}, s{sT+5}", f"s_addc_u32 s{R2+1}, s{pWS+1}, 0",
          f"s_and_b32 s{R2+1}, s{R2+1}, 0xffff", f"s_sub_u32 s{R2+2}, 16, s{sIDX}", f"s_lshl_b32 s{R2+2}, s{R2+2}, 15", f"s_mov_b32 s{R2+3}, 0x20000",
          f"s_add_u32 s{sT+5}, s{sT+4}, {VF}", f"s_add_u32 s{R3}, s{pWS}, s{sT+5}", f"s_addc_u32 s{R3+1}, s{pWS+1}, 0",
          f"s_and_b32 s{R3+1}, s{R3+1}, 0xffff", f"s_mov_b32 s{R3+2}, s{R2+2}", f"s_mov_b32 s{R3+3}, 0x20000",
          f"s_mov_b32 s{sKo}, 0", f"s_mov_b32 s{sVo}, 0", f"s_lshl_b32 s{sMK}, s{sW}, 12", f"s_add_u32 s{sMV}, s{sMK}, 0x10000",
          f"s_mul_i32 s{sT+4}, s{sH}, {8*FS}", f"s_add_u32 s{sT+4}, s{sT+4}, {FKV}"]
    fills[13][8].append(grp(qs[:8])); fills[13][12].append(grp(qs[8:14])); fills[13][16].append(grp(qs[14:]))
    fills[14][2].append(f"v_lshrrev_b32 v{vTR}, 4, v{vL16}"); fills[14][4].append(f"v_and_b32 v{vTR}, 7, v{vTR}")
    fills[14][6].append(f"v_mul_u32_u24 v{vTR}, {FS}, v{vTR}")
    fills[14][12].append((f"buffer_load_dword v23, v{vTR}, s[{RWS}:{RWS+3}], s{sT+4} offen sc1", "pk"))
    for sidx in range(0, 11):
        bg.place(fills[sidx], 0, NG, maxv=2 if sidx == 0 else 1)
    assert not bg.q, len(bg.q)
    mfs = []
    for sidx in range(20):
        mf = []
        for i in range(NI):
            w = ((NI * sidx + i) & 7) * 4
            for j in range(4):
                d = qacc(i, j) if i < 8 else hacc(i - 8, j)
                x = XNB[sidx & 1] + 4 * j
                if sidx: c = f"v[{d}:{d+3}]"
                elif i < 8: c = "0"
                else: c = v(hacc(i - 8, 3), 4)
                mf.append(f"{MF} v[{d}:{d+3}], a[{w}:{w+3}], v[{x}:{x+3}], {c}")
        mfs.append(mf)
    for sidx in range(20):
        run_gaps(e, mfs[sidx], fills[sidx], mfs[sidx + 1][0] if sidx < 19 else None)

def check_drain_order(e):
    written = set()
    for i in e.l:
        if i.kind == "dsr": written |= {r for r in i.wr if r[0] == "a"}
        if i.mn == "v_accvgpr_read_b32" and (i.rd & written): raise AssertionError("drain order " + i.t)

def q_pack(e):
    for n in range(16):
        for k in range(4):
            e(f"v_cvt_pk_bf16_f32 v{QACC + 4*n + k}, v{QACC + 8*n + 2*k}, v{QACC + 8*n + 2*k + 1}")

def gelu_store(e):
    a = -2.0 * math.sqrt(2.0 / math.pi) * math.log2(math.e)
    k1 = a / CS; k2 = a * 0.044715 / CS ** 3
    e(f"s_mov_b32 s{sT}, {f32(k2)}\ns_mov_b32 s{sT+1}, {f32(k2)}\ns_mov_b32 s{sT+2}, {f32(CS)}\ns_mov_b32 s{sT+3}, {f32(CS)}")
    e(f"v_mov_b32 v160, {f32(k1)}\nv_mov_b32 v161, {f32(k1)}\nv_mov_b32 v162, {f32(CS)}\nv_mov_b32 v163, {f32(CS)}")
    e(f"""
    s_mul_i32 s{sT+4}, s{sIDX}, {2*54*4096}
    s_lshl_b32 s{sT+5}, s{sU}, 13
    s_lshl_b32 s{sT+6}, s{sW}, 10
    s_add_u32 s{sT+5}, s{sT+5}, s{sT+6}
    s_add_u32 s{sT+5}, s{sT+5}, {HF}
    s_add_u32 s{sT+4}, s{sT+4}, s{sT+5}
    s_sub_u32 s{sT+6}, 15, s{sIDX}
    s_mul_i32 s{sT+6}, s{sT+6}, {2*54*4096}
    s_add_u32 s{sT+5}, s{sT+5}, s{sT+6}
    """)
    for n in range(8):
        b = HACC + 8 * n; t = 164 + 8 * (n & 1); pk = 180 + 4 * (n & 1)
        for k in range(4): e(f"v_pk_mul_f32 v[{t+2*k}:{t+2*k+1}], v[{b+2*k}:{b+2*k+1}], v[{b+2*k}:{b+2*k+1}]")
        for k in range(4): e(f"v_pk_fma_f32 v[{t+2*k}:{t+2*k+1}], v[{t+2*k}:{t+2*k+1}], s[{sT}:{sT+1}], v[160:161]")
        for k in range(4): e(f"v_pk_mul_f32 v[{t+2*k}:{t+2*k+1}], v[{t+2*k}:{t+2*k+1}], v[{b+2*k}:{b+2*k+1}]")
        for k in range(8): e(f"v_exp_f32 v{t+k}, v{t+k}")
        for k in range(4): e(f"v_pk_fma_f32 v[{t+2*k}:{t+2*k+1}], v[{t+2*k}:{t+2*k+1}], s[{sT+2}:{sT+3}], v[162:163]")
        for k in range(8): e(f"v_rcp_f32 v{t+k}, v{t+k}")
        for k in range(4): e(f"v_pk_mul_f32 v[{t+2*k}:{t+2*k+1}], v[{t+2*k}:{t+2*k+1}], v[{b+2*k}:{b+2*k+1}]")
        for k in range(4): e(f"v_cvt_pk_bf16_f32 v{pk+k}, v{t+2*k}, v{t+2*k+1}")
        j, up = n >> 1, n & 1
        e(f"s_add_u32 s{sT+7}, s{sT+4+(j>>1)}, {(j & 1) * 54 * 4096 + up * 4096}")
        e(f"buffer_store_dwordx4 v[{pk}:{pk+3}], v{vL16}, s[{RWS}:{RWS+3}], s{sT+7} offen sc1", tag="h")

def Qr(j, t): return 96 + (4 * j + t) * 4
def Sr(b, j, kt=0): return 160 + 32 * b + 8 * j + 4 * kt
def Pr(b, j): return 224 + 16 * b + 4 * j
def NEGM(j): return 32 + 4 * j
def MASK(par, kt): return 48 + 8 * par + 4 * kt
def CT(kt): return 64 + 4 * kt
TT = 72
def LT(b, j): return 76 + 4 * b + j
def LL(j): return 84 + j
vCHK = 88
def Or(j, dt): return 32 * j + 4 * dt
FK, FV = 128, 160
vKR, vVR = 2, 3
sTHR, sCNT, sRET, sCA, sCB = 90, 91, 92, 94, 95
NEG_INF = "0xff800000"

def attn_setup(e):
    e(f"""
    v_lshrrev_b32 v89, 4, v{vL16}
    v_and_b32 v90, 15, v89
    v_lshrrev_b32 v89, 4, v89
    v_lshlrev_b32 v89, 2, v89
    v_sub_u32 v89, v89, v90
    v_mov_b32 v90, {NEG_INF}
    v_mov_b32 v91, 0
    s_lshl_b32 s{sT}, s{sW}, 4
    s_mov_b32 s{sTHR}, {f32(2.0**40)}
    v_mov_b32 v{vKR}, v{vL16}
    v_add_u32 v{vVR}, 0x18000, v{vL16}
    """)
    for par in range(2):
        for kt in range(2):
            for r in range(4):
                k = (par * 2 + kt) * 4 + r
                e(f"s_sub_i32 s{sT+1}, s{sT}, {32*par + 16*kt + r}\nv_cmp_ge_i32 s[{sCA}:{sCA+1}], s{sT+1}, v89\ns_nop 1\nv_cndmask_b32 v{MASK(par, kt)+r}, v90, v91, s[{sCA}:{sCA+1}]")
    e(f"""
    s_lshl_b32 s{sT}, s{sH}, 14
    s_lshl_b32 s{sT+1}, s{sW}, 10
    s_add_u32 s{sT}, s{sT}, s{sT+1}
    s_add_u32 s{sT}, s{sT}, {CF}
    s_lshl_b32 s{sCA}, s{sIDX}, 20
    s_add_u32 s{sCA}, s{sCA}, s{sT}
    s_sub_u32 s{sCB}, 15, s{sIDX}
    s_lshl_b32 s{sCB}, s{sCB}, 20
    s_add_u32 s{sCB}, s{sCB}, s{sT}
    """)

def kread(n, f): return f"ds_read_b128 a[{FK+4*f}:{FK+4*f+3}], v{vKR} offset:{(n & 3) * 8192 + f * 1024}"
def vread(n, f): return f"ds_read_b128 a[{FV+4*f}:{FV+4*f+3}], v{vVR} offset:{(n & 3) * 8192 + f * 1024}"

def xreduce(e, op, regs, tmps):
    for sw in ("v_permlane16_swap_b32", "v_permlane32_swap_b32"):
        for r, t in zip(regs, tmps): e(f"v_mov_b32 v{t}, v{r}")
        e("s_nop 1")
        for r, t in zip(regs, tmps): e(f"{sw} v{r}, v{t}")
        e("s_nop 0")
        for r, t in zip(regs, tmps): e(f"{op} v{r}, v{r}, v{t}")

def max8(e, d, sreg):
    e(f"v_max3_f32 v{d}, v{sreg}, v{sreg+1}, v{sreg+2}\nv_max3_f32 v{d}, v{d}, v{sreg+3}, v{sreg+4}\nv_max3_f32 v{d}, v{d}, v{sreg+5}, v{sreg+6}\nv_max_f32 v{d}, v{d}, v{sreg+7}")

def sm_ops(b, J):
    L = []; k = 0
    for j in J:
        for x in range(8):
            t = TT + (k & 3); tp = TT + ((k - 1) & 3)
            fol = []
            if x == 1: fol.append(f"v_add_f32 v{LT(b, j)}, v{tp}, v{t}")
            elif x > 1: fol.append(f"v_add_f32 v{LT(b, j)}, v{LT(b, j)}, v{t}")
            if x & 1: fol.append(f"v_cvt_pk_bf16_f32 v{Pr(b, j) + (x >> 1)}, v{tp}, v{t}")
            L.append((f"v_exp_f32 v{t}, v{Sr(b, j) + x}", fol)); k += 1
    return L

FBS = {}
STUBS = []
class Blk:
    def __init__(self, name, A, B, first=False): self.name, self.A, self.B, self.first = name, A, B, first
    def act(self, n):
        out = []
        for st, lo, hi in ((self.B, 2, 3), (self.A, 0, 1)):
            if n < 0 and self.first: continue
            if st == "F":
                a_lo = a_hi = True
            else:
                d = n - {"D": 0, "T": -4, "X": -100}[st]
                a_lo, a_hi = d < 2, d < 4
            if a_hi: out.append(hi)
            if a_lo: out.append(lo)
        return out
    def masked(self, n):
        out = []
        for st, lo, hi in ((self.B, 2, 3), (self.A, 0, 1)):
            if st == "D": out.append((lo if n < 2 else hi, n & 1))
        return out

def attn_block(e, bk):
    nm = bk.name
    dma = bk.B == "F"
    canon = [(regs_of(f"a[{FK+4*f}:{FK+4*f+3}]"), None) for f in range(8)]
    e.lg = list(canon)
    nper = 2 if bk.B == "T" else 4
    for lp in range(nper):
        p = lp - 2
        nq, ns, nv = p + 2, p + 1, p
        JQ = bk.act(nq) if bk.B != "T" else []
        JS = bk.act(ns); JV = bk.act(nv); JN = bk.act(ns + 1) if not (bk.B == "T" and lp == 1) else []
        if bk.B == "T" and lp == 1: JS = []
        bq, bs, bv = nq & 1, ns & 1, nv & 1
        pre = []
        msk = dict(bk.masked(nq)) if JQ else {}
        assert len(msk) <= 1
        first_qk = bk.first and lp == 0
        for j, par in msk.items():
            if not first_qk:
                for kt in range(2):
                    for r in range(4): pre.append(f"v_add_f32 v{CT(kt)+r}, v{NEGM(j)+r}, v{MASK(par, kt)+r}")
        mf = []; kstart = []; vstart = []
        for f in range(8 if JQ else 0):
            t, kt = f >> 1, f & 1
            kstart.append(len(mf))
            for j in JQ:
                d = Sr(bq, j, kt)
                if t: c = v(d, 4)
                elif first_qk: c = v(MASK(msk[j], kt), 4) if j in msk else "0"
                else: c = v(CT(kt), 4) if j in msk else v(NEGM(j), 4)
                mf.append(f"{MF} v[{d}:{d+3}], a[{FK+4*f}:{FK+4*f+3}], v[{Qr(j, t)}:{Qr(j, t)+3}], {c}")
        for f in range(8 if JV else 0):
            vstart.append(len(mf))
            for j in JV:
                o = Or(j, f)
                c = "0" if (bk.first and nv == 0) else ac(o, 4)
                mf.append(f"{MF} a[{o}:{o+3}], a[{FV+4*f}:{FV+4*f+3}], v[{Pr(bv, j)}:{Pr(bv, j)+3}], {c}")
        NG = len(mf)
        fill = [[] for _ in range(NG)]
        def odd(g): return min(g + 1, NG - 1)
        if JV:
            if lp == 2: pre.insert(0, f"v_xor_b32 v{vVR}, 0x8000, v{vVR}")
            if JQ:
                for f in range(8): fill[odd(kstart[f]) if len(JQ) > 1 else kstart[f]].append(vread(nv, f))
            else:
                for f in range(8): pre.append(vread(nv, f))
        needK = bk.B == "F" or (bk.B == "D" and lp < 3)
        if needK:
            if JV:
                if lp == 3: fill[vstart[0] - 1].append(f"v_xor_b32 v{vKR}, 0x8000, v{vKR}")
                for f in range(8): fill[odd(vstart[f]) if len(JV) > 1 else vstart[f]].append(kread(p + 3, f))
            else:
                for f in range(8): fill[kstart[f] + len(JQ) - 1].append(kread(p + 3, f))
        def needf(base, f0):
            def g(e): e.need(f"a[{base+4*f0}:{base+4*f0+15}]")
            return g
        if JQ and JV:
            fill[kstart[4] - 1].append(needf(FK, 4)); fill[vstart[0] - 1].append(needf(FV, 0)); fill[vstart[4] - 1].append(needf(FV, 4))
            if needK and lp < 3: fill[NG - 1].append(needf(FK, 0))
        if lp & 1 and bk.B != "T":
            gb = (vstart[0] - 1) if JV else -1
            n = 12 if dma else (8 if lp == 1 else 0)
            def mkb(n):
                def f(e):
                    lg = list(e.lg)
                    if OPT.get("ticks"): e("s_waitcnt lgkmcnt(0)")
                    tick_pre(e); e(f"s_waitcnt vmcnt({n})\ns_barrier"); tick_post(e)
                    e.lg = lg
                return f
            b_ins = mkb(n)
            if gb >= 0: fill[gb].append(b_ins)
            else: pre.insert(0, b_ins)
            if bk.first and lp == 3:
                fill[gb + 2].append("v_mov_b32 v89, 1")
                fill[gb + 4].append(f"buffer_store_dword v89, v{vSC}, s[{RWS}:{RWS+3}], s{sQ+1} offen sc1")
                fill[gb + 8].append(f"buffer_store_dword v89, v{vSC}, s[{RWS}:{RWS+3}], s{sQ+2} offen sc1")
        if dma:
            L, inc = kv_dma("V" if lp & 1 else "K")
            if lp & 1: g0, span = (vstart[0] if JV else 0), (8 * len(JV) if JV else NG)
            else: g0, span = 0, 8 * len(JQ)
            st = span // 4
            for x in reversed(L[0][0]): fill[g0].append(x)
            for k, d in enumerate(L): fill[g0 + 1 + st * k].append(d[1])
            fill[g0 + 2 + st * 3].append(inc)
        if JS:
            ops = sm_ops(bs, JS)[2:]
            W = NG - 4 if JN else NG - 1
            W = max(W, 1)
            lastg = 0; tile_done = []
            for k, (ex, fol) in enumerate(ops):
                g = (k * W) // len(ops)
                if W >= 2 * len(ops): g &= ~1
                fill[g].append(ex)
                for x in fol: fill[min(g + 1, NG - 1)].append(x) if g + 1 <= NG - 1 else None
                lastg = g + 1
                if (k + 2) % 8 == 7: tile_done.append(lastg)
            lts = [LT(bs, j) for j in JS]
            ck = []
            if len(lts) == 4: fill[min(NG - 1, tile_done[2] + 2)].append(f"v_max3_f32 v{vCHK}, v{lts[0]}, v{lts[1]}, v{lts[2]}"); ck.append(f"v_max_f32 v{vCHK}, v{vCHK}, v{lts[3]}")
            elif len(lts) == 3: ck.append(f"v_max3_f32 v{vCHK}, v{lts[0]}, v{lts[1]}, v{lts[2]}")
            elif len(lts) == 2: ck.append(f"v_max_f32 v{vCHK}, v{lts[0]}, v{lts[1]}")
            ck.append(f"v_cmp_lt_f32 vcc, s{sTHR}, v{vCHK if len(lts) > 1 else lts[0]}")
            gck = max(lastg, NG - 3) if JN else lastg
            assert gck <= NG - 2
            fb = f"FB{bs}_{''.join(map(str, JS))}"
            FBS[fb] = (bs, JS)
            site = f"L_{nm}_{lp}"
            STUBS.append((site, fb))
            for x in ck: fill[gck].append(x)
            fill[NG - 1].append(grp([f"s_cbranch_vccnz {site}_fb", f"{site}_ret:"]))
        post = None
        if JV:
            for k, j in enumerate(JV):
                g = 1 if k == 0 else min(NG - 5, 16 * k - 3)
                fill[g].append(f"v_mov_b32 v{LL(j)}, v{LT(bv, j)}" if (bk.first and nv == 0) else f"v_add_f32 v{LL(j)}, v{LL(j)}, v{LT(bv, j)}")
        head = sm_ops((ns + 1) & 1, JN)[:2] if JN else []
        if head and not first_qk:
            assert post is None
            fill[NG - 4].append(head[0][0]); fill[NG - 2].append(head[1][0])
            for x in head[1][1]: fill[NG - 1].append(x)
        if lp == 0 and JQ: e.need(f"a[{FK}:{FK+15}]")
        for x in pre:
            if callable(x): x(e)
            else: e(x)
        if pre: e("s_nop 1")
        e.gaps(mf, fill)
        if post:
            for x in post: e(x)
            br(e); e("s_nop 1")
        if first_qk:
            e("s_nop 7")
            for j in range(4): max8(e, NEGM(j), Sr(0, j))
            xreduce(e, "v_max_f32", [NEGM(j) for j in range(4)], [NEGM(j) + 1 for j in range(4)])
            for j in range(4):
                e(f"v_sub_f32 v{NEGM(j)}, 0, v{NEGM(j)}")
                for r in range(1, 4): e(f"v_mov_b32 v{NEGM(j)+r}, v{NEGM(j)}")
            for j in (3, 2, 1, 0):
                for x in range(8): e(f"v_add_f32 v{Sr(0, j)+x}, v{Sr(0, j)+x}, v{NEGM(j)}")
            e(head[0][0]); e(head[1][0]); e("s_nop 0")
            for x in head[1][1]: e(x)
    if bk.B == "F":
        assert [r for r, _ in e.lg] == [r for r, _ in canon][8 - len(e.lg):], nm

def attn_epilogue(e, tiles, sbase):
    e("s_nop 7")
    ls = [LL(j) for j in tiles]
    xreduce(e, "v_add_f32", ls, [89, 90])
    for j in tiles: e(f"v_rcp_f32 v{LL(j)}, v{LL(j)}")
    for hi, j in enumerate(tiles):
        for t in range(4):
            pk = 64 + 4 * (t & 1)
            for k in range(4):
                src = Or(j, 2 * t) + 2 * k; tr = 90 + 2 * (k & 1)
                e(f"v_accvgpr_read_b32 v{tr}, a{src}\nv_accvgpr_read_b32 v{tr+1}, a{src+1}")
                e(f"v_mul_f32 v{tr}, v{tr}, v{LL(j)}\nv_mul_f32 v{tr+1}, v{tr+1}, v{LL(j)}")
                e(f"v_cvt_pk_bf16_f32 v{pk+k}, v{tr}, v{tr+1}")
            e(f"s_add_u32 s{sT}, s{sbase}, {hi * 128 * 4096 + t * 4096}")
            e(f"buffer_store_dwordx4 v[{pk}:{pk+3}], v{vL16}, s[{RWS}:{RWS+3}], s{sT} offen sc1")

def fallback(e, name, b, J):
    e(f"{name}:\ns_nop 15")
    for j in J:
        d = 89
        max8(e, d, Sr(b, j))
        xreduce(e, "v_max_f32", [d], [90])
        e(f"v_max_f32 v{d}, 0, v{d}\nv_sub_f32 v90, 0, v{d}\nv_exp_f32 v90, v90")
        for r in range(4): e(f"v_sub_f32 v{NEGM(j)+r}, v{NEGM(j)+r}, v{d}")
        for x in range(8): e(f"v_sub_f32 v{Sr(b, j)+x}, v{Sr(b, j)+x}, v{d}\nv_sub_f32 v{Sr(b ^ 1, j)+x}, v{Sr(b ^ 1, j)+x}, v{d}")
        e(f"v_mul_f32 v{LL(j)}, v{LL(j)}, v90")
        for x in range(0, 32, 2):
            o = Or(j, 0) + x
            e(f"v_accvgpr_read_b32 v91, a{o}\nv_accvgpr_read_b32 v92, a{o+1}\nv_mul_f32 v91, v91, v90\nv_mul_f32 v92, v92, v90\nv_accvgpr_write_b32 a{o}, v91\nv_accvgpr_write_b32 a{o+1}, v92")
    for ex, fol in sm_ops(b, J):
        e(ex); e("s_nop 0")
        for x in fol: e(x)
    for ex, fol in sm_ops(b ^ 1, [3])[:2]: e(ex)
    e(f"s_nop 1\ns_setpc_b64 s[{sRET}:{sRET+1}]")

def attn_pre(e):
    e.need(vmtags=("k0",), lg0=True)
    e("s_barrier")
    for f in range(8): e(kread(0, f))
    L, inc = kv_dma("V")
    for su, d in L:
        for x in reversed(su): e(x)
        if su: e("s_nop 0")
        e(d)
    e(inc)

def attention(e):
    B = {k: Blk(k, k[-2], k[-1], k.startswith("f")) for k in ("fFF", "fDF", "FF", "DF", "TF", "TD", "XF", "XD", "XT")}
    segs = {}
    def seg(name, fn):
        n0 = len(e.l); fn(); segs[name] = e.l[n0:]
    e(f"s_cmp_eq_u32 s{sIDX}, 0\ns_cbranch_scc1 L_fDF")
    seg("fFF", lambda: attn_block(e, B["fFF"]))
    e(f"s_sub_u32 s{sCNT}, s{sIDX}, 1\ns_cmp_eq_u32 s{sCNT}, 0\ns_cbranch_scc1 L_DF\n.p2align 3\nL_FF:")
    seg("FF", lambda: attn_block(e, B["FF"]))
    e(f"s_sub_u32 s{sCNT}, s{sCNT}, 1\ns_cmp_lg_u32 s{sCNT}, 0\ns_cbranch_scc1 L_FF\nL_DF:")
    seg("DF", lambda: attn_block(e, B["DF"]))
    e(f"s_cmp_eq_u32 s{sIDX}, 7\ns_cbranch_scc1 L_TD\nL_TF:")
    seg("TF", lambda: (attn_block(e, B["TF"]), attn_epilogue(e, (0, 1), sCA)))
    stamp(e, 7)
    e(f"s_lshl_b32 s{sCNT}, s{sIDX}, 1\ns_sub_u32 s{sCNT}, 13, s{sCNT}\n.p2align 3\nL_XF:")
    seg("XF", lambda: attn_block(e, B["XF"]))
    e(f"s_sub_u32 s{sCNT}, s{sCNT}, 1\ns_cmp_lg_u32 s{sCNT}, 0\ns_cbranch_scc1 L_XF")
    seg("XD", lambda: attn_block(e, B["XD"]))
    e("L_XT:")
    seg("XT", lambda: (attn_block(e, B["XT"]), attn_epilogue(e, (2, 3), sCB)))
    def out_of_line():
        e("L_fDF:")
        seg("fDF", lambda: attn_block(e, B["fDF"]))
        e("s_branch L_TF\nL_TD:")
        seg("TD", lambda: (attn_block(e, B["TD"]), attn_epilogue(e, (0, 1), sCA)))
        e("s_branch L_XT")
        for site, fb in STUBS:
            e(f"{site}_fb:\ns_call_b64 s[{sRET}:{sRET+1}], {fb}\ns_branch {site}_ret")
        for name, (b, J) in FBS.items():
            seg(name, lambda: fallback(e, name, b, J))
    return segs, out_of_line

PD = 5
def p5(e):
    ACC = 32
    tick_dump(e, 2)
    stamp(e, 8)
    e("s_waitcnt vmcnt(0)\ns_barrier\nv_mov_b32 v89, 2")
    stamp(e, 9)
    e(f"buffer_store_dword v89, v{vSC}, s[{RWS}:{RWS+3}], s{sQ+1} offen sc1")
    sMT, sNT, sA, sB, sXO, sFP = 64, 65, 66, 67, 68, 69
    e(f"""
    s_lshr_b32 s{sMT}, s{sX}, 1
    s_lshl_b32 s{sMT}, s{sMT}, 3
    s_lshr_b32 s{sT}, s2, 3
    s_and_b32 s{sT}, s{sT}, 7
    s_add_u32 s{sMT}, s{sMT}, s{sT}
    s_and_b32 s{sNT}, s{sX}, 1
    s_lshl_b32 s{sNT}, s{sNT}, 2
    s_lshr_b32 s{sT}, s2, 6
    s_add_u32 s{sNT}, s{sNT}, s{sT}
    s_lshr_b32 s{sT}, s{sMT}, 1
    s_sub_u32 s{sT+1}, 15, s{sT}
    s_min_u32 s{sT}, s{sT}, s{sT+1}
    s_mul_i32 s{sFP}, s{sT}, {32*FS}
    s_add_u32 s{sFP}, s{sFP}, {FHC}
    v_lshrrev_b32 v4, 4, v{vL16}
    v_and_b32 v5, 31, v4
    v_mul_u32_u24 v5, {FS}, v5
    v_min_u32 v6, 39, v4
    v_mul_u32_u24 v6, {FS}, v6
    s_mov_b32 s{sT+2}, {FW}
    v_add_u32 v9, 4096, v{vL16}
    v_and_b32 v10, 15, v4
    v_mul_u32_u24 v10, 1280, v10
    v_lshrrev_b32 v11, 4, v4
    v_lshlrev_b32 v11, 3, v11
    v_add_u32 v10, v10, v11
    s_mul_i32 s{sT+3}, s{sMT}, {54*4096}
    s_add_u32 s{sT+3}, s{sT+3}, {HF}
    s_lshl_b32 s{sT+4}, s{sMT}, 19
    s_add_u32 s{sT+4}, s{sT+4}, {CF}
    """)
    srd(e, R0, pWS, 54 * 4096, f"s{sT+3}")
    srd(e, R1, pWS, 128 * 4096, f"s{sT+4}")
    srd(e, R2, pX, 2048 * 1280)
    srd(e, R3, pB2, 1280)
    e(f"""
    s_lshl_b32 s{sB}, s{sW}, 12
    s_mul_i32 s{sA}, s{sW}, 40960
    s_mul_i32 s{sT+3}, s{sNT}, 5120
    s_add_u32 s{sA}, s{sA}, s{sT+3}
    s_add_u32 s{sA}, s{sA}, {WP}
    s_lshl_b32 s{sXO}, s{sMT}, 2
    s_add_u32 s{sXO}, s{sXO}, s{sW}
    s_mul_i32 s{sXO}, s{sXO}, {16*1280}
    s_mul_i32 s{sNT}, s{sNT}, 160
    s_add_u32 s{sXO}, s{sXO}, s{sNT}
    """)
    def poll(e):
        e(f"buffer_load_dword v7, v5, s[{RWS}:{RWS+3}], s{sFP} offen sc1\nbuffer_load_dword v8, v6, s[{RWS}:{RWS+3}], s{sT+2} offen sc1\ns_waitcnt vmcnt(0)")
        e("v_min_u32 v7, v7, v8\nv_cmp_gt_u32 vcc, 1, v7")
    spin(e, "L_p5h", poll, None)
    NS = 46
    stamp(e, 10)
    def loads(m):
        b = (m % PD) * 36
        if m < 14: rs, ko, ka = R0, m * 16384, m * 4 * 40960
        else: rs, ko, ka = R1, (m - 14) * 16384, (54 + (m - 14) * 4) * 40960
        L = [[f"s_add_u32 s{sT}, s{sB}, {ko}", f"s_add_u32 s{sT+1}, s{sA}, {ka}"]]
        for k in range(9):
            r = b + 4 * k
            if k & 1: L.append(f"buffer_load_dwordx4 a[{r}:{r+3}], v{vL16}, s[{rs}:{rs+3}], s{sT} offen offset:{(k >> 1) * 1024}")
            elif k < 8: L.append(f"buffer_load_dwordx4 a[{r}:{r+3}], v{vL16}, s[{RWS}:{RWS+3}], s{sT+1} offen offset:{(k >> 1) * 1024}")
            else: L.append(f"buffer_load_dwordx4 a[{r}:{r+3}], v9, s[{RWS}:{RWS+3}], s{sT+1} offen")
        return L
    for m in range(PD - 1):
        L = loads(m)
        for x in L[0] + L[1:]: e(x)
    for m in range(NS):
        b = (m % PD) * 36
        mf = []
        for n in range(5):
            for r in range(4):
                d = ACC + (n * 4 + r) * 4; A = b + 8 * n; Bq = b + 8 * r + 4
                mf.append(f"{MF} v[{d}:{d+3}], a[{A}:{A+3}], a[{Bq}:{Bq+3}], " + ("0" if m == 0 else v(d, 4)))
        fill = [[] for _ in range(20)]
        mn = m + PD - 1
        if mn == 14 - 2: fill[19].append(f"buffer_load_dword v7, v5, s[{RWS}:{RWS+3}], s{sFP} offen sc1")
        if mn == 14: fill[0].append(async_check("L_p5c", 7, 2, f"buffer_load_dword v7, v5, s[{RWS}:{RWS+3}], s{sFP} offen sc1"))
        if mn < NS:
            L = loads(mn)
            for x in L[0]: fill[0].append(x)
            for k in range(9): fill[1 + 2 * k].append(L[1 + k])
        if mn == NS:
            for n in range(5):
                fill[1 + 2 * n].append(f"buffer_load_dwordx2 v[{112+2*n}:{113+2*n}], v10, s[{R2}:{R2+3}], s{sXO} offen offset:{32*n}")
                fill[11 + n].append(f"buffer_load_dwordx2 v[{122+2*n}:{123+2*n}], v11, s[{R3}:{R3+3}], s{sNT} offen offset:{32*n}")
        if mn == 14: stamp(e, 11)
        if mn == 15: stamp(e, 12)
        tick_pre(e); tick_post(e)
        e.need(f"a[{b}:{b+35}]")
        e.gaps(mf, fill)
    tick_dump(e, 3)
    stamp(e, 13)
    srd(e, R0, pOUT, 2048 * 1280)
    e(f"s_mul_i32 s{sT}, s{sW}, 20480\nv_add_u32 v12, s{sT}, v{vL16}\ns_lshl_b32 s{sT}, s{sW}, 10\nv_add_u32 v13, s{sT}, v{vL16}\ns_nop 3")
    for t in range(20):
        if t == 14: e("s_waitcnt lgkmcnt(8)")
        e(f"ds_write_b128 v12, v[{ACC+4*t}:{ACC+4*t+3}] offset:{t*1024}")
    e("s_waitcnt lgkmcnt(0)\ns_barrier")
    e("v_add_u32 v14, 40960, v13")
    def rd(n):
        for w in range(4):
            r = 132 + (n * 4 + w) * 4
            e(f"ds_read_b128 v[{r}:{r+3}], v{13 + (w >> 1)} offset:{(w & 1) * 20480 + n * 4096}")
    rd(0); rd(1); rd(2)
    for n in range(5):
        r = 132 + n * 16
        e.need(f"v[{r}:{r+15}]")
        if n + 3 < 5: rd(n + 3)
        e.need(f"v[{112+2*n}:{113+2*n}],v[{122+2*n}:{123+2*n}]")
        for k in range(2):
            e(f"v_pk_add_f32 v[{r+2*k}:{r+2*k+1}], v[{r+2*k}:{r+2*k+1}], v[{r+4+2*k}:{r+5+2*k}]")
            e(f"v_pk_add_f32 v[{r+8+2*k}:{r+9+2*k}], v[{r+8+2*k}:{r+9+2*k}], v[{r+12+2*k}:{r+13+2*k}]")
            e(f"v_lshlrev_b32 v16, 16, v{112+2*n+k}\nv_and_b32 v17, 0xffff0000, v{112+2*n+k}")
            e(f"v_lshlrev_b32 v18, 16, v{122+2*n+k}\nv_and_b32 v19, 0xffff0000, v{122+2*n+k}")
            e(f"v_pk_add_f32 v[{r+2*k}:{r+2*k+1}], v[{r+2*k}:{r+2*k+1}], v[{r+8+2*k}:{r+9+2*k}]")
            e(f"v_pk_add_f32 v[16:17], v[16:17], v[18:19]")
            e(f"v_pk_add_f32 v[16:17], v[16:17], v[{r+2*k}:{r+2*k+1}]")
            e(f"v_cvt_pk_bf16_f32 v{216+2*n+k}, v16, v17")
        e(f"buffer_store_dwordx2 v[{216+2*n}:{217+2*n}], v10, s[{R0}:{R0+3}], s{sXO} offen offset:{32*n}")

def clone_state(e): return (list(e.vm), list(e.lg))
def same_state(a, b): return [t for _, t in a[0]] == [t for _, t in b[0]] and [r for r, _ in a[1]] == [r for r, _ in b[1]]

def build(stop=None):
    FBS.clear(); STUBS.clear()
    e = E(); seg = {}
    def mark(name, n0): seg[name] = e.l[n0:]
    n0 = 0
    prologue(e); e("s_mov_b32 s71, 0"); stamp(e, 0); p0_ln(e); stamp(e, 1); p1_pre(e); stamp(e, 2)
    mark("pro", n0)
    e(f"s_cmp_ge_u32 s{sW}, 2\ns_cbranch_scc1 L_p1V")
    st0 = clone_state(e)
    n0 = len(e.l); bgK = Bg(); p1_main(e, "K", bgK); mark("p1K", n0); stK = clone_state(e)
    e("s_branch L_qh\nL_p1V:")
    e.vm, e.lg = list(st0[0]), list(st0[1])
    n0 = len(e.l); bg = Bg(); p1_main(e, "V", bg); mark("p1V", n0); stV = clone_state(e)
    assert same_state(stK, stV) and bg.q == bgK.q
    e("L_qh:"); tick_dump(e, 0); stamp(e, 3); stV = clone_state(e)
    e(f"s_cmp_ge_u32 s{sU}, 27\ns_cbranch_scc1 L_qhN")
    n0 = len(e.l); b1 = Bg(); b1.q = list(bg.q); qh_main(e, True, b1)
    tick_dump(e, 1); stamp(e, 4); e("s_nop 7"); q_pack(e); gelu_store(e); attn_setup(e); stamp(e, 5); attn_pre(e); stamp(e, 6); mark("qhH", n0)
    e("L_attn:")
    segsA, ool = attention(e)
    n0 = len(e.l); e.vm = []; e.lg = []
    p5(e); stamp(e, 14); mark("p5", n0)
    e("L_exit:\ns_endpgm")
    e("L_qhN:")
    e.vm, e.lg = list(stV[0]), list(stV[1])
    n0 = len(e.l); b2 = Bg(); b2.q = list(bg.q); qh_main(e, False, b2)
    tick_dump(e, 1); stamp(e, 4); e("s_nop 7"); q_pack(e); prepack(e); attn_setup(e); stamp(e, 5); attn_pre(e); stamp(e, 6); mark("qhN", n0)
    e("s_branch L_attn")
    ool()
    seg.update(segsA)
    errs = []
    for T in ("p1K", "p1V"):
        for Hh in ("qhH", "qhN"):
            class X: pass
            x = X(); x.l = seg[T] + seg[Hh]; check_drain_order(x)
    def path(i):
        if i == 0: a = ["fDF"]
        else: a = ["fFF"] + ["FF"] * min(i - 1, 2) + ["DF"]
        a += ["TD"] if i == 7 else ["TF"] + ["XF"] * min(13 - 2 * i, 2) + ["XD"]
        return a + ["XT"]
    for T, Hh, i in (("p1K", "qhH", 0), ("p1V", "qhN", 1), ("p1K", "qhN", 3), ("p1V", "qhH", 6), ("p1K", "qhH", 7)):
        tr = []
        for nme in ["pro", T, Hh] + path(i) + ["p5"]: tr += seg[nme]
        errs += check_trace(tr, f"{T},{Hh},{i}")
    for nme in FBS: errs += check_trace(seg[nme], nme)
    seen = set()
    for x in errs:
        k = x.split("]", 1)[1]
        if k not in seen:
            seen.add(k)
            if not STAMP: print("HAZARD", x)
    print("instructions:", sum(1 for i in e.l if i.kind != "label"), {k: len(vv) for k, vv in seg.items()})
    return header() + e.text() + footer(), len(seen)

if __name__ == "__main__":
    STAMP = "stamp" in sys.argv
    txt, ne = build()
    out = sys.argv[1] if len(sys.argv) > 1 else "k.s"
    open(out, "w").write(txt)
    print("bytes", len(txt), "hazards", ne)
```

```python
import re

def R(p, a, n=1):
    return f"{p}{a}" if n == 1 else f"{p}[{a}:{a+n-1}]"
def v(a, n=1): return R("v", a, n)
def ac(a, n=1): return R("a", a, n)
def s(a, n=1): return R("s", a, n)

_REG = re.compile(r"^-?\|?([vas])(?:(\d+)|\[(\d+):(\d+)\])\|?$")
def regs_of(tok):
    tok = tok.strip()
    if tok in ("vcc", "exec", "m0", "scc"): return {(tok, 0)}
    if tok in ("vcc_lo", "vcc_hi"): return {("vcc", 0)}
    m = _REG.match(tok)
    if not m: return set()
    p = m.group(1)
    if m.group(2) is not None: return {(p, int(m.group(2)))}
    return {(p, i) for i in range(int(m.group(3)), int(m.group(4)) + 1)}

TRANS = ("v_exp_f32", "v_log_f32", "v_rcp_f32", "v_rsq_f32", "v_sqrt_f32")

class I:
    __slots__ = ("t", "mn", "ops", "mods", "kind", "rd", "wr", "a", "b", "c", "lds")
    def __init__(self, t):
        self.t = t
        t = t.split(";")[0].strip()
        self.lds = False
        if t.endswith(":") or t.startswith(".") or not t:
            self.kind = "label"; self.mn = t; self.rd = set(); self.wr = set(); self.ops = []; self.mods = ""; return
        sp = t.split(None, 1)
        self.mn = mn = sp[0]
        rest = sp[1] if len(sp) > 1 else ""
        parts = [x.strip() for x in rest.split(",")] if rest else []
        mods = ""
        if parts:
            last = parts[-1].split(None, 1)
            if len(last) > 1 and not mn.startswith("s_waitcnt"):
                parts[-1] = last[0]; mods = last[1]
        fixed = []
        for p in parts:
            if fixed and fixed[-1].count("[") > fixed[-1].count("]"): fixed[-1] += "," + p
            else: fixed.append(p)
        parts = []
        for p in fixed:
            q = p.split(None, 1)
            parts.append(q[0])
            if len(q) > 1: mods += " " + q[1]
        self.ops = parts; self.mods = mods
        rd, wr = set(), set()
        rg = [regs_of(p) for p in parts]
        if mn.startswith("v_mfma"):
            self.kind = "mfma"; wr = rg[0]; self.a, self.b, self.c = rg[1], rg[2], rg[3]; rd = rg[1] | rg[2] | rg[3]
        elif mn.startswith("ds_read"):
            self.kind = "dsr"; wr = rg[0]; rd = rg[1]
        elif mn.startswith("ds_write"):
            self.kind = "dsw"; rd = set().union(*rg)
        elif mn.startswith("ds_"):
            self.kind = "dsr"; wr = rg[0]; rd = set().union(*rg[1:])
        elif mn.startswith("buffer_load"):
            self.kind = "vml"
            if "lds" in mods.split():
                self.lds = True; rd = set().union(*rg) | {("m0", 0)}
            else:
                wr = rg[0]; rd = set().union(*rg[1:])
        elif mn.startswith("global_load"):
            self.kind = "vml"; wr = rg[0]; rd = set().union(*rg[1:])
        elif mn.startswith("buffer_store") or mn.startswith("global_store"):
            self.kind = "vms"; rd = set().union(*rg)
            self.a = rg[0] if mn.startswith("buffer") else rg[1]
        elif mn.startswith("buffer_atomic") or mn.startswith("global_atomic"):
            self.kind = "vms"; rd = set().union(*rg); self.a = set()
            if "sc0" in mods.split(): self.kind = "vml"; wr = rg[0]
        elif mn in ("buffer_inv", "buffer_wbl2"):
            self.kind = "vms"; self.a = set()
        elif mn.startswith("s_load") or mn in ("s_memtime", "s_memrealtime"):
            self.kind = "smem"; wr = rg[0]; rd = set().union(*rg[1:]) if len(rg) > 1 else set()
        elif mn == "s_waitcnt": self.kind = "wait"; self.mods = rest
        elif mn == "s_nop": self.kind = "nop"
        elif mn == "s_barrier": self.kind = "bar"
        elif mn.startswith("s_cbranch") or mn == "s_branch" or mn.startswith("s_setpc") or mn.startswith("s_swappc") or mn == "s_endpgm" or mn.startswith("s_call"):
            self.kind = "br"
            if "vcc" in mn: rd = {("vcc", 0)}
            if mn.startswith("s_swappc") or mn.startswith("s_call"): wr = rg[0]
        elif mn.startswith("s_cmp"): self.kind = "salu"; rd = set().union(*rg)
        elif mn.startswith("s_"):
            self.kind = "salu"
            if rg: wr = rg[0]; rd = set().union(*rg[1:]) if len(rg) > 1 else set()
        elif mn.startswith("v_"):
            self.kind = "valu"
            if mn.startswith("v_cmp"):
                wr = rg[0]; rd = set().union(*rg[1:])
            elif mn.startswith("v_permlane") and "swap" in mn:
                wr = rg[0] | rg[1]; rd = rg[0] | rg[1]
            else:
                wr = rg[0]; rd = set().union(*rg[1:]) if len(rg) > 1 else set()
                if mn.startswith(("v_fmac", "v_dot2c")): rd |= rg[0]
                if "_dpp" in mn: rd |= rg[0]
                if mn.startswith(("v_add_co", "v_addc_co", "v_sub_co")): wr |= rg[1]
                if mn.startswith("v_cndmask") and len(parts) == 3: rd |= {("vcc", 0)}
        else:
            raise ValueError("unknown instr " + t)
        self.rd, self.wr = rd, wr

def passes(mn): return 8 if "32x32" in mn else 4

def check_trace(trace, name="", entry_ok=True):
    errs = []
    pos = 0
    lastw = {}
    mfma_c = {}
    st_data = {}
    lg = []
    vm = []
    exec_w = -100
    def err(i, msg):
        errs.append(f"[{name}] {msg}: {i.t.strip()}")
    skip = None
    for i in trace:
        k = i.kind
        if skip is not None:
            if k == "label" and i.mn == skip: skip = None
            continue
        if i.mn == "s_cbranch_vccz" and i.ops[0].endswith("_ok"): skip = i.ops[0] + ":"
        if k == "label": continue
        if k == "wait":
            m = re.search(r"vmcnt\((\d+)\)", i.mods)
            if m:
                n = int(m.group(1)); vm = vm[len(vm) - n:] if n < len(vm) else vm
                if n == 0: vm = []
            m = re.search(r"lgkmcnt\((\d+)\)", i.mods)
            if m:
                n = int(m.group(1))
                if any(x[1].kind == "smem" for x in lg) and n != 0:
                    err(i, "counted lgkm wait with smem outstanding")
                lg = lg[len(lg) - n:] if n < len(lg) else lg
                if n == 0: lg = []
            pos += 1; continue
        if k == "nop":
            pos += int(i.ops[0], 0) + 1; continue
        touched = i.rd | i.wr
        for q, nm in ((lg, "lgkm"), (vm, "vm")):
            for regs, src in q:
                if regs & touched and not (k in ("dsr", "vml") and not (regs & i.rd) and src.kind == k):
                    err(i, f"touches pending {nm} load dest of '{src.t.strip()}'")
        def dist(p): return pos - p - 1
        for r in i.rd:
            if r in lastw:
                p, w = lastw[r]; d = dist(p); need = 0
                if w.kind == "mfma":
                    P = passes(w.mn)
                    if k == "mfma":
                        if r in i.a or r in i.b: need = P + 4
                        elif i.c == w.wr and passes(i.mn) == P: need = 0
                        else: need = P + 2
                    elif k in ("valu", "dsw", "dsr", "vml", "vms"): need = P + 4
                elif w.kind == "valu":
                    if r[0] in "va" and len(r[0]) == 1:
                        if k == "mfma": need = 2
                        elif k == "valu":
                            if i.mn.startswith("v_permlane") or "_dpp" in i.mn: need = 2
                            elif i.mn.startswith(("v_readfirstlane", "v_readlane")): need = 1
                            if w.mn.startswith(TRANS) and not i.mn.startswith(TRANS): need = max(need, 1)
                    else:
                        if k in ("vml", "vms"): need = 5
                        elif k == "valu":
                            need = 4 if i.mn.startswith(("v_readlane", "v_writelane", "v_div_fmas")) else 2
                        elif k in ("salu", "br"): need = 0
                elif w.kind == "salu" and r == ("m0", 0) and i.lds: need = 1
                if d < need: err(i, f"RAW needs {need} got {d} after '{w.t.strip()}'")
        for r in i.wr:
            if r in lastw:
                p, w = lastw[r]; d = dist(p)
                if w.kind == "mfma" and k in ("valu", "dsr", "vml"):
                    need = passes(w.mn) + 4
                    if d < need: err(i, f"WAW needs {need} got {d} after '{w.t.strip()}'")
                if w.kind == "mfma" and k == "mfma" and not (i.c == w.wr and i.wr == w.wr):
                    need = passes(w.mn) + 2 if r in i.c else 0
                    if d < need: err(i, f"WAW mfma needs {need} got {d} after '{w.t.strip()}'")
            if k == "valu" and r in mfma_c:
                p, w = mfma_c[r]; need = passes(w.mn) - 1
                if dist(p) < need: err(i, f"WAR srcC needs {need} got {dist(p)} after '{w.t.strip()}'")
            if r in st_data:
                need = 2 if k == "valu" else 1
                if dist(st_data[r]) < need: err(i, f"WAR store data needs {need}")
        if k == "valu" and ("exec", 0) in i.wr: exec_w = pos
        if k == "mfma" and pos - exec_w - 1 < 4: err(i, "exec write -> mfma needs 4")
        for r in i.wr: lastw[r] = (pos, i)
        if k == "mfma":
            for r in i.c: mfma_c[r] = (pos, i)
        if k == "vms" and ("x4" in i.mn or "x3" in i.mn):
            for r in i.a: st_data[r] = pos
        if k in ("dsr", "dsw"): lg.append((i.wr, i))
        if k == "smem": lg.append((i.wr, i))
        if k in ("vml", "vms"): vm.append((i.wr, i))
        if len(lg) > 15 and not any(x[1].kind == "smem" for x in lg): err(i, "more than 15 lgkm ops outstanding")
        if len(vm) > 63: err(i, "more than 63 vm ops outstanding")
        pos += 1
    return errs

class E:
    def __init__(self):
        self.l = []
        self.lg = []
        self.vm = []
    def __call__(self, txt, tag=None):
        for x in txt.strip("\n").split("\n"):
            x = x.strip()
            if not x or x.startswith(";"): continue
            i = I(x)
            if i.kind in ("vml", "vms") and len(self.vm) >= 62: self("s_waitcnt vmcnt(56)")
            if i.kind in ("dsr", "dsw") and len(self.lg) >= 15: self("s_waitcnt lgkmcnt(11)")
            self.l.append(i)
            if i.kind in ("dsr", "dsw", "smem"): self.lg.append((i.wr, tag))
            elif i.kind in ("vml", "vms"): self.vm.append((i.wr, tag))
            elif i.kind == "wait":
                m = re.search(r"vmcnt\((\d+)\)", i.mods)
                if m:
                    n = int(m.group(1)); self.vm = self.vm[len(self.vm) - n:] if 0 < n < len(self.vm) else ([] if n == 0 else self.vm)
                m = re.search(r"lgkmcnt\((\d+)\)", i.mods)
                if m:
                    n = int(m.group(1)); self.lg = self.lg[len(self.lg) - n:] if 0 < n < len(self.lg) else ([] if n == 0 else self.lg)
    def _n(self, q, regs, tags):
        idx = -1
        for k, (r, t) in enumerate(q):
            if (r & regs) or (t is not None and t in tags): idx = k
        return None if idx < 0 else len(q) - 1 - idx
    def wait_text(self, regs=frozenset(), lgtags=(), vmtags=(), lg0=False):
        a = self._n(self.lg, regs, lgtags); b = self._n(self.vm, regs, vmtags)
        if lg0 and self.lg: a = 0
        p = []
        if b is not None: p.append(f"vmcnt({b})")
        if a is not None: p.append(f"lgkmcnt({a})")
        return ("s_waitcnt " + " ".join(p)) if p else None
    def need(self, regs=frozenset(), lgtags=(), vmtags=(), lg0=False):
        if isinstance(regs, str): regs = set().union(*[regs_of(x) for x in regs.split(",")])
        t = self.wait_text(regs, lgtags, vmtags, lg0)
        if t: self(t)
    def gaps(self, mf, fill, nxt=None):
        order = {"wait": 0, "bar": 0, "salu": 1, "br": 1, "nop": 1, "vml": 2, "vms": 2, "dsr": 3, "dsw": 3, "valu": 4, "label": 5}
        n = len(mf)
        for g in range(n):
            cur = I(mf[g])
            self.need(cur.rd | cur.wr)
            self(mf[g])
            nx = mf[g + 1] if g + 1 < n else nxt
            if nx:
                q = I(nx); self.need(q.rd | q.wr)
            items = []
            for f in fill[g]:
                if callable(f): items.append((9 if getattr(f, 'last', False) else 0, f, None))
                else:
                    t, tag = f if isinstance(f, tuple) else (f, None)
                    items.append((order[I(t).kind], t, tag))
            items.sort(key=lambda x: x[0])
            for _, t, tag in items:
                if callable(t): t(self)
                else:
                    q = I(t)
                    if q.kind in ("valu", "vms", "dsw"): self.need(q.rd | q.wr)
                    self(t, tag)
    def text(self):
        return "\n".join(i.t for i in self.l) + "\n"

_R4 = r"([va])\[(\d+):(\d+)\]"
def compress(lines):
    macros = {}
    out = []
    def mac(name, args, body):
        macros[name] = f".macro {name} {args}\n{body}\n.endm"
    for t in lines:
        m = re.fullmatch(rf"v_mfma_f32_16x16x32_bf16 {_R4}, {_R4}, {_R4}, (?:{_R4}|0)", t)
        if m:
            d, a, b = m.group(1), m.group(4), m.group(7)
            rr = lambda p, x: f"{p}[\\{x}:\\{x}+3]"
            if m.group(10) is None:
                n = f"z{d}{a}{b}"; mac(n, "d,a,b", f"v_mfma_f32_16x16x32_bf16 {rr(d,'d')}, {rr(a,'a')}, {rr(b,'b')}, 0")
                out.append(f"{n} {m.group(2)},{m.group(5)},{m.group(8)}")
            elif m.group(11) == m.group(2):
                n = f"m{d}{a}{b}"; mac(n, "d,a,b", f"v_mfma_f32_16x16x32_bf16 {rr(d,'d')}, {rr(a,'a')}, {rr(b,'b')}, {rr(d,'d')}")
                out.append(f"{n} {m.group(2)},{m.group(5)},{m.group(8)}")
            else:
                n = f"c{d}{a}{b}"; mac(n, "d,a,b,c", f"v_mfma_f32_16x16x32_bf16 {rr(d,'d')}, {rr(a,'a')}, {rr(b,'b')}, {rr(d,'c')}")
                out.append(f"{n} {m.group(2)},{m.group(5)},{m.group(8)},{m.group(11)}")
            continue
        m = re.fullmatch(rf"ds_read_b128 {_R4}, v(\d+) offset:(\d+)", t)
        if m:
            n = f"r{m.group(1)}"; mac(n, "d,a,o", f"ds_read_b128 {m.group(1)}[\\d:\\d+3], v[\\a] offset:\\o")
            out.append(f"{n} {m.group(2)},{m.group(4)},{m.group(5)}"); continue
        m = re.fullmatch(rf"ds_read_b64_tr_b16 {_R4}, v(\d+) offset:(\d+)", t)
        if m:
            n = f"t{m.group(1)}"; mac(n, "d,a,o", f"ds_read_b64_tr_b16 {m.group(1)}[\\d:\\d+1], v[\\a] offset:\\o")
            out.append(f"{n} {m.group(2)},{m.group(4)},{m.group(5)}"); continue
        m = re.fullmatch(r"buffer_load_dwordx4 v(\d+), s\[(\d+):\d+\], s(\d+) offen offset:(\d+) lds", t)
        if m:
            mac("dma", "a,r,s,o", "buffer_load_dwordx4 v[\\a], s[\\r:\\r+3], s[\\s] offen offset:\\o lds")
            out.append("dma " + ",".join(m.groups())); continue
        m = re.fullmatch(r"v_cvt_pk_bf16_f32 v(\d+), v(\d+), v(\d+)", t)
        if m:
            mac("cv", "d,a,b", "v_cvt_pk_bf16_f32 v[\\d], v[\\a], v[\\b]"); out.append("cv " + ",".join(m.groups())); continue
        m = re.fullmatch(r"v_accvgpr_read_b32 v(\d+), a(\d+)", t)
        if m:
            mac("ar", "d,a", "v_accvgpr_read_b32 v[\\d], a[\\a]"); out.append("ar " + ",".join(m.groups())); continue
        m = re.fullmatch(r"v_accvgpr_write_b32 a(\d+), v(\d+)", t)
        if m:
            mac("aw", "d,a", "v_accvgpr_write_b32 a[\\d], v[\\a]"); out.append("aw " + ",".join(m.groups())); continue
        out.append(t)
    return "\n".join(macros.values()) + "\n", "\n".join(out) + "\n"
```

```python
import sys, math, struct
from core import *

NAME = "parallel_sum__compressed_kv_cla__dense_activation_gelu__prompt"
def f32(x): return "0x%08x" % struct.unpack("<I", struct.pack("<f", x))[0]
CS = math.log2(math.e) / math.sqrt(128.0)

OPT = dict(kvst="sc1", norole=1, rate=1, bstep=2, bkv=17, notouch1=1)
for a in sys.argv[1:]:
    if "=" in a:
        k, vv = a.split("=", 1); OPT[k] = int(vv) if vv.lstrip("-").isdigit() else vv.replace("+", " ")
XS = 0x0010000; KF = 0x0400000; VF = 0x1500000 + OPT.get('vsk', 0); HF = 0x2600000; CF = 0x2E00000; EX = 0x3F00000; FL = 0x5400000; WS_END = 0x5A00000
HS = 524288 + OPT.get('sk', 0)
FXS = FL + 0x8000; FKV = FL + 0x10000; FH = FL + 0x18000; FC = FL + 0x20000; FEX = FL + 0x28000
FS = 128
sTAG = 88
sW, sH, sIDX, sX = 3, 4, 5, 6
pX, pC, pWQ, pWUK, pWUV, pWO, pW1, pB1, pW2, pB2, pOUT, pDBG, pWS = 8, 10, 12, 14, 16, 18, 22, 24, 26, 28, 30, 32, 34
R0, R1, R2, R3, RWS = 36, 40, 44, 48, 52
sT = 56
sU = 64
sM0a, sM0b, sSa, sSb, sSc, sST = 65, 66, 67, 68, 69, 70
sQ = 72
MF = "v_mfma_f32_16x16x32_bf16"

def srd(e, r, p, nbytes, add=None):
    if add is None:
        e(f"s_mov_b32 s{r}, s{p}\ns_and_b32 s{r+1}, s{p+1}, 0xffff")
    else:
        e(f"s_add_u32 s{r}, s{p}, {add}\ns_addc_u32 s{r+1}, s{p+1}, 0\ns_and_b32 s{r+1}, s{r+1}, 0xffff")
    e(f"s_mov_b32 s{r+2}, {nbytes}\ns_mov_b32 s{r+3}, 0x20000")

vL16, vXR, vWQR, vW1R, vXD, vWQD, vW1D, vSC = 0, 1, 2, 10, 14, 18, 20, 21
vTR, vPK = 24, 28
vTAG = 23
sXS = 80
vCD, vWD, vCR, vWR = 96, 100, 104, 106
vWWIN, vCB = 176, (224, 192)
HACC, QACC = 32, 96
XNB = (224, 240)

def prologue(e):
    e(f"""
    s_cmp_ge_u32 s2, 256
    s_cbranch_scc1 L_exit
    s_load_dwordx16 s[8:23], s[0:1], 0
    s_load_dwordx8 s[24:31], s[0:1], 64
    s_load_dwordx4 s[32:35], s[0:1], 96
    v_lshrrev_b32 v33, 6, v0
    v_and_b32 v32, 63, v0
    v_readfirstlane_b32 s{sW}, v33
    v_lshlrev_b32 v{vL16}, 4, v32
    s_and_b32 s{sX}, s2, 7
    s_lshr_b32 s{sT}, s2, 3
    s_and_b32 s{sT}, s{sT}, 3
    s_lshl_b32 s{sH}, s{sX}, 2
    s_add_u32 s{sH}, s{sH}, s{sT}
    s_lshr_b32 s{sIDX}, s2, 5
    """)
    e(f"""
    s_mul_i32 s{sU}, s{sX}, 3
    s_add_u32 s{sU}, s{sU}, s{sT}
    s_sub_u32 s{sT+1}, s{sX}, s{sIDX}
    s_and_b32 s{sT+1}, s{sT+1}, 7
    s_add_u32 s{sT+1}, s{sT+1}, 24
    s_cmp_eq_u32 s{sT}, 3
    s_cselect_b32 s{sU}, s{sT+1}, s{sU}
    """)
    e(f"""
    v_lshrrev_b32 v37, 3, v32
    v_and_b32 v38, 7, v32
    v_lshrrev_b32 v39, 4, v32
    v_xor_b32 v50, v38, v39
    v_lshlrev_b32 v50, 4, v50
    v_lshl_add_u32 v{vCD}, v37, 10, v50
    v_xor_b32 v51, 64, v{vCD}
    v_add_u32 v{vCD+1}, 7168, v51
    v_add_u32 v{vCD+2}, {2*7168}, v{vCD}
    v_add_u32 v{vCD+3}, {3*7168}, v51
    v_and_b32 v52, 15, v32
    v_lshlrev_b32 v53, 1, v39
    v_xor_b32 v53, v52, v53
    v_lshlrev_b32 v53, 4, v53
    v_lshl_add_u32 v{vWD}, v39, 13, v53
    v_add_u32 v{vWD+1}, {31744}, v{vWD}
    v_xor_b32 v51, 128, v{vWD}
    v_add_u32 v{vWD+2}, {2*31744}, v51
    v_add_u32 v{vWD+3}, {3*31744}, v51
    """)
    e(f"""
    s_lshl_b32 s{sSa}, s{sIDX}, 18
    s_lshl_b32 s{sT+1}, s{sW}, 16
    s_add_u32 s{sSa}, s{sSa}, s{sT+1}
    s_lshl_b32 s{sM0a}, s{sW}, 13
    s_and_b32 s{sT+1}, s{sW}, 1
    s_lshl_b32 s{sSb}, s{sT+1}, 17
    s_lshl_b32 s{sT+2}, s{sH}, 8
    s_add_u32 s{sSb}, s{sSb}, s{sT+2}
    s_lshl_b32 s{sM0b}, s{sW}, 12
    s_add_u32 s{sM0b}, s{sM0b}, 0x10000
    s_waitcnt lgkmcnt(0)
    """)
    srd(e, R1, pC, 2048 * 1024)
    e(f"s_cmp_ge_u32 s{sW}, 2\ns_cselect_b32 s{R2}, s{pWUV}, s{pWUK}\ns_cselect_b32 s{R2+1}, s{pWUV+1}, s{pWUK+1}")
    e(f"s_and_b32 s{R2+1}, s{R2+1}, 0xffff\ns_mov_b32 s{R2+2}, {512*8192}\ns_mov_b32 s{R2+3}, 0x20000")
    for q in range(8): emit_dma(e, p1_cdma(0, q), "c0")
    for u in range(4): emit_dma(e, p1_wdma(0, u), "w0")
    for u in range(4): emit_dma(e, p1_wdma(1, u), "w1")
    for q in range(8): emit_dma(e, p1_cdma(1, q), "c1")
    for u in range(4): emit_dma(e, p1_wdma(2, u), "w2")
    for u in range(4): emit_dma(e, p1_wdma(3, u), "w3")
    e(f"s_add_u32 s{sT+2}, s{pWS}, {FL}\ns_addc_u32 s{sT+3}, s{pWS+1}, 0\ns_load_dword s{sTAG}, s[{sT+2}:{sT+3}], 0")
    srd(e, RWS, pWS, WS_END)
    srd(e, R0, pX, 2048 * 1280)
    srd(e, R3, pB1, 1728 * 2)
    e(f"""
    v_lshrrev_b32 v34, 5, v32
    v_and_b32 v35, 31, v32
    v_mul_u32_u24 v36, 1280, v34
    v_lshl_add_u32 v36, v35, 3, v36
    s_lshl_b32 s{sT}, s2, 2
    s_add_u32 s{sT}, s{sT}, s{sW}
    s_mul_i32 s{sT}, s{sT}, 2560
    v_lshlrev_b32 v94, 3, v39
    s_lshl_b32 s{sT+4}, s{sU}, 7
    """)
    for k in range(5):
        e(f"buffer_load_dwordx2 v[{40+2*k}:{41+2*k}], v36, s[{R0}:{R0+3}], s{sT} offen offset:{256*k}", tag="x")
    for ft in range(4):
        e(f"buffer_load_dwordx2 v[{114+2*ft}:{115+2*ft}], v94, s[{R3}:{R3+3}], s{sT+4} offen offset:{32*ft}", tag="b1")
    e(f"""
    s_and_b32 s{sT+2}, s{sH}, 3
    s_lshl_b32 s{sT+2}, s{sT+2}, 2
    s_add_u32 s{sT+2}, s{sT+2}, s{sW}
    s_lshl_b32 s{sT+2}, s{sT+2}, 14
    s_lshl_b32 s{sT+3}, s{sIDX}, 18
    s_add_u32 s{sT+2}, s{sT+2}, s{sT+3}
    v_lshlrev_b32 v140, 10, v52
    v_lshl_add_u32 v141, v39, 7, v140
    v_and_b32 v142, 1, v39
    v_lshl_add_u32 v142, v142, 7, v140
    s_mul_i32 s{sT+3}, s{sIDX}, 48
    s_and_b32 s{sT+4}, s{sW}, 1
    s_mul_i32 s{sT+4}, s{sT+4}, 24
    s_add_u32 s{sT+3}, s{sT+3}, s{sT+4}
    s_add_u32 s{sT+3}, s{sT+3}, 128
    s_lshl_b32 s{sT+3}, s{sT+3}, 13
    s_lshl_b32 s{sT+4}, s{sH}, 8
    s_add_u32 s{sT+3}, s{sT+3}, s{sT+4}
    v_and_b32 v144, 1, v32
    v_lshlrev_b32 v144, 7, v144
    v_min_u32 v143, 47, v32
    v_lshrrev_b32 v143, 1, v143
    v_lshl_add_u32 v143, v143, 13, v144
    """)
    if not OPT.get("notouch1"):
        e(f"buffer_load_dword v146, v141, s[{R1}:{R1+3}], s{sT+2} offen offset:256", tag="tc")
        e(f"buffer_load_dword v147, v143, s[{R2}:{R2+3}], s{sT+3} offen", tag="tc")
        e(f"buffer_load_dword v148, v142, s[{R1}:{R1+3}], s{sT+2} offen offset:768", tag="tc")
    e(f"""
    s_mul_i32 s{sT+2}, s{sIDX}, 80
    s_mul_i32 s{sT+3}, s{sW}, 20
    s_add_u32 s{sT+2}, s{sT+2}, s{sT+3}
    s_lshl_b32 s{sT+3}, s{sT+2}, 13
    s_add_u32 s{sT+3}, s{sT+3}, s{sT+4}
    s_mul_i32 s{sT+2}, s{sT+2}, 3456
    s_lshl_b32 s{sT+4}, s{sU}, 7
    s_add_u32 s{sT+2}, s{sT+2}, s{sT+4}
    v_min_u32 v140, 39, v32
    v_lshrrev_b32 v140, 1, v140
    v_lshl_add_u32 v140, v140, 13, v144
    v_min_u32 v145, 19, v32
    v_mul_u32_u24 v145, 3456, v145
    """)
    srd(e, 84, pWQ, 640 * 8192)
    e(f"buffer_load_dword v149, v140, s[84:87], s{sT+3} offen", tag="tc")
    srd(e, R3, pW1, 640 * 3456)
    e(f"buffer_load_dword v150, v145, s[{R3}:{R3+3}], s{sT+2} offen", tag="tc")

CSLOT = (0, 32768, 131072)
vCR2 = 124
def p1_cdma(j, q):
    setup = []
    if q % 4 == 0:
        setup = [f"s_add_u32 m0, s{sM0a}, {(j & 1) * 32768 + (q >> 2) * 4096}", f"s_add_u32 s{sT}, s{sSa}, {j * 128 + (q >> 2) * 32768}"]
    return setup, f"buffer_load_dwordx4 v{vCD + (q & 3)}, s[{R1}:{R1+3}], s{sT} offen offset:{(q & 3) * 1024} lds"
def p1_wslot(sidx): return ((sidx + 2) & 3) * 16384
def p1_wdma(sidx, u):
    setup = []
    if u == 0:
        setup = [f"s_add_u32 m0, s{sM0b}, {p1_wslot(sidx)}", f"s_add_u32 s{sT+1}, s{sSb}, {sidx * 32 * 8192}"]
    return setup, f"buffer_load_dwordx4 v{vWD + u}, s[{R2}:{R2+3}], s{sT+1} offen offset:{u * 1024} lds"

def emit_dma(e, pair, tag):
    su, d = pair
    for x in su: e(x)
    if su: e("s_nop 0")
    e(d, tag=tag)

def reduce32(r, t):
    L = []
    for mod in ("quad_perm:[1,0,3,2]", "quad_perm:[2,3,0,1]", "row_half_mirror", "row_mirror"):
        L += ["s_nop 0", f"v_add_f32_dpp v{r}, v{r}, v{r} {mod} row_mask:0xf bank_mask:0xf"]
    return L + [f"v_mov_b32 v{t}, v{r}", "s_nop 0", f"v_permlane16_swap_b32 v{r}, v{t}", f"v_add_f32 v{r}, v{r}, v{t}"]

def ln_ops():
    L = []; U = 50
    for k in range(10): L += [f"v_lshlrev_b32 v{U+2*k}, 16, v{40+k}", f"v_and_b32 v{U+1+2*k}, 0xffff0000, v{40+k}"]
    L += [f"v_add_f32 v70, v{U}, v{U+1}"] + [f"v_add_f32 v70, v70, v{U+k}" for k in range(2, 20)]
    L += reduce32(70, 71) + [f"v_mul_f32 v70, {f32(1/640)}, v70"]
    L += [f"v_sub_f32 v{U+k}, v{U+k}, v70" for k in range(20)]
    L += [f"v_mul_f32 v72, v{U}, v{U}"] + [f"v_fmac_f32 v72, v{U+k}, v{U+k}" for k in range(1, 20)]
    L += reduce32(72, 73)
    L += [f"v_mov_b32 v73, {f32(1e-5)}", f"v_fmac_f32 v73, {f32(1/640)}, v72", "v_rsq_f32 v73, v73", f"v_mul_f32 v73, {f32(CS)}, v73"]
    L += [f"v_mul_f32 v{U+k}, v{U+k}, v73" for k in range(20)]
    for k in range(5):
        L += [f"v_cvt_pk_bf16_f32 v{40+2*k}, v{U+4*k}, v{U+4*k+1}", f"v_cvt_pk_bf16_f32 v{41+2*k}, v{U+4*k+2}, v{U+4*k+3}", f"ds_write_b64 v76, v[{40+2*k}:{41+2*k}] offset:{k*2048}"]
    return L

def p0_ln(e):
    e(f"""
    v_lshrrev_b32 v54, 1, v52
    v_xor_b32 v54, v54, v39
    v_lshlrev_b32 v54, 4, v54
    v_lshl_add_u32 v54, v52, 7, v54
    s_and_b32 s{sT+2}, s{sW}, 1
    s_lshl_b32 s{sT+2}, s{sT+2}, 14
    v_add_u32 v{vCR}, s{sT+2}, v54
    v_xor_b32 v{vCR+1}, 64, v{vCR}
    v_lshrrev_b32 v55, 2, v52
    v_and_b32 v56, 1, v39
    v_lshl_add_u32 v56, v56, 2, v55
    v_lshlrev_b32 v56, 5, v56
    v_and_b32 v57, 3, v32
    v_lshlrev_b32 v57, 3, v57
    v_lshl_add_u32 v57, v55, 8, v57
    v_lshl_add_u32 v58, v39, 11, v57
    s_lshr_b32 s{sT+2}, s{sW}, 1
    s_lshl_b32 s{sT+2}, s{sT+2}, 13
    s_add_u32 s{sT+2}, s{sT+2}, 0x10000
    v_add_u32 v58, s{sT+2}, v58
    v_mul_u32_u24 v59, 3072, v39
    v_add_u32 v59, v59, v57
    v_add_u32 v59, {96*1024}, v59
    """)
    for i in range(8):
        e(f"v_xor_b32 v60, {32*i}, v56\nv_add_u32 v{vWR+i}, v60, v58\nv_add_u32 v{vWQR+i}, v60, v59")
    e(f"""
    v_lshrrev_b32 v60, 1, v55
    v_and_b32 v61, 1, v39
    v_lshl_add_u32 v60, v61, 1, v60
    v_lshlrev_b32 v60, 5, v60
    v_and_b32 v61, 3, v32
    v_lshlrev_b32 v61, 3, v61
    v_lshl_add_u32 v61, v55, 7, v61
    v_mul_u32_u24 v62, 3072, v39
    v_add3_u32 v61, v61, v62, 0
    v_add_u32 v61, {96*1024 + 2048}, v61
    """)
    for i in range(4):
        e(f"v_xor_b32 v62, {32*i}, v60\nv_add_u32 v{vW1R+i}, v62, v61")
    e(f"s_waitcnt lgkmcnt(0)\ns_mul_i32 s{sTAG}, s{sTAG}, 0x9E3779B1\ns_add_u32 s{sTAG}, s{sTAG}, 0x7F4A7C15")
    e(f"""
    v_lshrrev_b32 v88, 1, v35
    v_lshlrev_b32 v88, 7, v88
    v_and_b32 v89, 1, v35
    v_lshl_add_u32 v88, v89, 3, v88
    v_lshl_add_u32 v88, v34, 4, v88
    s_lshl_b32 s{sT+2}, s{sW}, 5
    s_add_u32 s{sT+2}, s{sT+2}, 0x20000
    v_add_u32 v76, s{sT+2}, v88
    """)
    e(f"""
    v_lshlrev_b32 v126, 8, v37
    v_lshl_add_u32 v126, v38, 4, v126
    s_lshr_b32 s{sXS}, s2, 1
    s_mul_i32 s{sXS}, s{sXS}, 20480
    s_and_b32 s{sT+3}, s2, 1
    s_lshl_b32 s{sT+3}, s{sT+3}, 7
    s_add_u32 s{sXS}, s{sXS}, s{sT+3}
    s_lshl_b32 s{sT+3}, s{sW}, 11
    s_add_u32 s{sXS}, s{sXS}, s{sT+3}
    s_add_u32 s{sXS}, s{sXS}, {XS}
    s_add_u32 s{sXS+1}, s{sXS}, 8192
    s_add_u32 s{sXS+2}, s{sXS}, 16384
    s_cmp_ge_u32 s{sW}, 2
    s_cselect_b32 s{sXS+2}, {WS_END}, s{sXS+2}
    s_lshl_b32 s{sT+5}, s{sW}, 10
    s_add_u32 s{sT+5}, s{sT+5}, 0x20000
    v_add_u32 v77, s{sT+5}, v{vL16}
    """)
    e(f"""
    s_lshl_b32 s{sQ}, s{sH}, 3
    s_add_u32 s{sQ}, s{sQ}, s{sIDX}
    s_mul_i32 s{sQ}, s{sQ}, {FS}
    s_add_u32 s{sQ}, s{sQ}, {FKV}
    s_lshl_b32 s{sQ+1}, s{sIDX}, 5
    s_add_u32 s{sQ+1}, s{sQ+1}, s{sH}
    s_mul_i32 s{sQ+1}, s{sQ+1}, {FS}
    s_add_u32 s{sQ+1}, s{sQ+1}, {FH}
    s_mul_i32 s{sQ+2}, s2, {FS}
    s_add_u32 s{sQ+2}, s{sQ+2}, {FXS}
    s_sub_u32 s{sQ+3}, s{sU}, 27
    s_mul_i32 s{sT+5}, s{sX}, 5
    s_add_u32 s{sQ+3}, s{sQ+3}, s{sT+5}
    v_mov_b32 v91, 0
    v_mov_b32 v92, 0x10000000
    v_lshl_add_u32 v93, v33, 6, v32
    v_cmp_eq_u32 vcc, 0, v93
    v_mov_b32 v{vTAG}, s{sTAG}
    v_and_b32 v127, 15, v32
    v_cndmask_b32 v{vSC}, v92, v91, vcc
    s_lshl_b32 s{sT+5}, s{sIDX}, 4
    s_sub_u32 s{sT+4}, 240, s{sT+5}
    v_and_b32 v93, 16, v32
    v_cmp_eq_u32 vcc, 0, v93
    v_mov_b32 v91, s{sT+5}
    v_mov_b32 v92, s{sT+4}
    v_cndmask_b32 v91, v92, v91, vcc
    v_add_u32 v127, v127, v91
    v_lshlrev_b32 v127, 7, v127
    """)

def p1_acc(T, i, j):
    if OPT.get("contig"):
        if T == "K": return 8 * (8 * (j >> 1) + 2 * (i >> 1) + (j & 1)) + 4 * (i & 1)
        return 8 * (8 * (j >> 1) + i) + 4 * (j & 1)
    if T == "K": return 8 * (8 * (i >> 1) + 4 * (j & 1) + (j >> 1)) + 4 * (i & 1)
    return 32 * i + 4 * j
def p1_units():
    U = []
    for n in range(32):
        off = n * 1024 if OPT.get("contig") else (n & 3) * 8192 + (n >> 2) * 1024
        ins = []
        for k in range(4):
            tr = vTR + 2 * (k & 1); src = 8 * n + 2 * k
            ins += [f"v_accvgpr_read_b32 v{tr}, a{src}", f"v_accvgpr_read_b32 v{tr+1}, a{src+1}", f"v_cvt_pk_bf16_f32 v{vPK+k}, v{tr}, v{tr+1}"]
        ins.insert(6, f"s_add_u32 s{sT+7}, s{sST}, {off & ~4095}")
        if OPT["kvst"] != "skip": ins.append((f"buffer_store_dwordx4 v[{vPK}:{vPK+3}], v{vL16}, s[{RWS}:{RWS+3}], s{sT+7} offen offset:{off & 4095} {OPT['kvst']}", "kv"))
        U.append(ins)
    return U

def _kind(y):
    if callable(y): return "call"
    if isinstance(y, tuple) and y[0] == "BG": y = y[1]
    return I(y[0] if isinstance(y, tuple) else y).kind
class Bg:
    def __init__(self): self.q = []
    def push(self, ins): self.q += list(ins)
    def place(self, fill, g0, g1, maxv=1, step=1):
        for g in range(g0, g1, step):
            n = 0
            while self.q and n < maxv:
                x = self.q[0]; t = x[0] if isinstance(x, tuple) else x
                k = I(t).kind if not callable(t) else "call"
                if k in ("vms", "vml") and (n > 0 or any(_kind(y) in ("vml", "vms") for y in fill[g])): break
                fill[g].append(("BG", self.q.pop(0)))
                if k in ("salu", "nop"): continue
                n += 1
                if k in ("vms", "vml"): break
    def flush(self, e):
        for x in self.q:
            t, tag = x if isinstance(x, tuple) else (x, None)
            q = I(t); e.need(q.rd | q.wr); e(t, tag)
        self.q = []

def run_gaps(e, mf, fill, nxt=None):
    f2 = []
    for g in range(len(mf)):
        a = [x for x in fill[g] if not (isinstance(x, tuple) and x[0] == "BG")]
        b = [x[1] for x in fill[g] if isinstance(x, tuple) and x[0] == "BG"]
        if b:
            def mk(b):
                def f(e):
                    for x in b:
                        t, tag = x if isinstance(x, tuple) else (x, None)
                        q = I(t); e.need(q.rd | q.wr); e(t, tag)
                f.last = True
                return f
            a.append(mk(b))
        f2.append(a)
    e.gaps(mf, f2, nxt)

def put_dma(fill, g, pair, tag):
    su, d = pair
    for x in reversed(su): fill[g - 1].append(x)
    fill[g].append((d, tag))

def qh_wslot(sidx): return ((sidx + 3) % 5) * 12288
def qh_dmas(sidx, hasH, d=0):
    L = []
    u32 = lambda x: x & 0xffffffff
    for j in range(4):
        su = [f"s_add_u32 m0, s{sM0a}, {u32((sidx & 3) * 16384 + d * 8192)}", f"s_mov_b32 s{sT}, {XS + sidx * 1024 + d * 40960}"] if j == 0 else []
        L.append((su, f"buffer_load_dwordx4 v{vXD + j}, s[{RWS}:{RWS+3}], s{sT} offen offset:{j * 1024} lds"))
    for u in range(2):
        su = [f"s_add_u32 m0, s{sM0b}, {u32(qh_wslot(sidx) + d * 6144)}", f"s_mov_b32 s{sT+1}, {sidx * 32 * 8192 + d * 131072}"] if u == 0 else []
        L.append((su, f"buffer_load_dwordx4 v{vWQD + u}, s[{R0}:{R0+3}], s{sT+1} offen offset:{u * 1024} lds"))
    if hasH:
        L.append(([f"s_mov_b32 s{sT+2}, {sidx * 32 * 3456 + d * 55296}"], f"buffer_load_dwordx4 v{vW1D}, s[{R1}:{R1+3}], s{sT+2} offen offset:2048 lds"))
    return L
def qh_xread(sidx, j):
    b = XNB[sidx & 1] + 4 * j
    return f"ds_read_b128 v[{b}:{b+3}], v{vXR} offset:{(sidx & 3) * 16384 + j * 1024}"
def qh_wread(sidx, i, n):
    r = (n & 3) * 4
    if i < 8: a, second = vWQR + i, 1024
    else: a, second = vW1R + i - 8, 512
    o = qh_wslot(sidx)
    return [f"ds_read_b64_tr_b16 a[{r}:{r+1}], v{a} offset:{o}", f"ds_read_b64_tr_b16 a[{r+2}:{r+3}], v{a} offset:{o + second}"]

def spin(e, lab, pollA, cond, limit=200000, sleep=2):
    e(f"s_mov_b32 s{sT+6}, {limit}\n{lab}:")
    pollA(e)
    e(f"s_cbranch_vccz {lab}_ok\ns_sub_u32 s{sT+6}, s{sT+6}, 1\ns_cmp_eq_u32 s{sT+6}, 0\ns_cbranch_scc1 {lab}_ok\ns_sleep {sleep}\ns_branch {lab}\n{lab}_ok:")

def qh_setup(e):
    L = []
    L += [f"s_lshl_b32 s{sQ+4}, s{sIDX}, 3", f"s_add_u32 s{sQ+4}, s{sQ+4}, s{sW}", f"s_mul_i32 s{sQ+4}, s{sQ+4}, 20480",
          f"s_sub_u32 s{sQ+5}, 15, s{sIDX}", f"s_lshl_b32 s{sQ+5}, s{sQ+5}, 3", f"s_add_u32 s{sQ+5}, s{sQ+5}, s{sW}", f"s_mul_i32 s{sQ+5}, s{sQ+5}, 20480"]
    L += [f"v_add_u32 v{vXD}, s{sQ+4}, v{vL16}", f"v_add_u32 v{vXD+1}, {4*20480 - 1024}, v{vXD}",
          f"v_add_u32 v{vXD+2}, s{sQ+5}, v{vL16}", f"v_add_u32 v{vXD+3}, {4*20480 - 3072}, v{vXD+2}", f"v_subrev_u32 v{vXD+2}, 2048, v{vXD+2}"]
    return L

STAMP = False
TS = FL + 0x40000
def stamp(e, k):
    if not STAMP: return
    if k: e("s_memrealtime s[96:97]\ns_memtime s[98:99]")
    e(f"""s_waitcnt lgkmcnt(0)
    s_lshl_b32 s97, s2, 2
    s_add_u32 s97, s97, s{sW}
    s_lshl_b32 s97, s97, 8
    s_add_u32 s97, s97, {TS + 8 * k}
    s_mov_b64 s[100:101], exec
    s_mov_b64 exec, 1
    {"v_mov_b32 v122" if k == 3 else "v_accvgpr_write_b32 a254"}, s96
    {"v_mov_b32 v123" if k == 3 else "v_accvgpr_write_b32 a255"}, s98
    s_nop 1
    buffer_store_dwordx2 {"v[122:123]" if k == 3 else "a[254:255]"}, off, s[{RWS}:{RWS+3}], s97
    s_mov_b64 exec, s[100:101]
    s_nop 3""")

def header():
    return f"""; @launch grid=(256,1,1) block=(256,1,1) lds=163840
.amdgcn_target "amdgcn-amd-amdhsa--gfx950"
.text
.globl {NAME}_kernel
.p2align 8
.type {NAME}_kernel,@function
{NAME}_kernel:
"""
def footer():
    return f"""
.section .rodata,"a"
.p2align 6
.amdhsa_kernel {NAME}_kernel
  .amdhsa_next_free_vgpr 512
  .amdhsa_next_free_sgpr 102
  .amdhsa_accum_offset 256
  .amdhsa_group_segment_fixed_size 0
  .amdhsa_kernarg_size 112
  .amdhsa_user_sgpr_count 2
  .amdhsa_user_sgpr_kernarg_segment_ptr 1
  .amdhsa_system_sgpr_workgroup_id_x 1
.end_amdhsa_kernel
"""

def grp(L):
    def f(e):
        for x in L: e(x)
    return f
vTK = 22
def tick_pre(e):
    if OPT.get("ticks"): e("s_memtime s[96:97]")
def tick_post(e):
    if OPT.get("ticks"):
        e(f"s_waitcnt lgkmcnt(0)\ns_lshl_b64 exec, 1, s71\nv_mov_b32 v{vTK}, s96\ns_mov_b64 exec, -1\ns_add_u32 s71, s71, 1")
def tick_dump(e, k):
    if OPT.get("ticks"):
        e(f"""s_lshl_b32 s97, s2, 2
        s_add_u32 s97, s97, s{sW}
        s_lshl_b32 s97, s97, 12
        s_add_u32 s97, s97, {FL + 0x100000 + 1024 * k}
        buffer_store_dword v{vTK}, v{vL16}, s[{RWS}:{RWS+3}], s97 offen
        s_mov_b32 s71, 0
        s_nop 1""")
def bar(vmtags=(), lg0=True):
    def f(e):
        tick_pre(e)
        e.need(vmtags=vmtags, lg0=lg0); e("s_barrier")
        tick_post(e)
    return f

def p1_pre(e):
    e(f"""
    s_mul_i32 s{sST}, s{sH}, {HS}
    s_lshl_b32 s{sT+2}, s{sIDX}, 16
    s_add_u32 s{sST}, s{sST}, s{sT+2}
    s_and_b32 s{sT+2}, s{sW}, 1
    s_lshl_b32 s{sT+2}, s{sT+2}, 15
    s_add_u32 s{sST}, s{sST}, s{sT+2}
    s_cmp_ge_u32 s{sW}, 2
    s_cselect_b32 s{sT+2}, {VF-KF}, 0
    s_add_u32 s{sST}, s{sST}, s{sT+2}
    s_add_u32 s{sST}, s{sST}, {KF}
    s_lshl_b32 s{sT+2}, s{sW}, 12
    v_add_u32 v{vXR}, s{sT+2}, v{vL16}
    """)
    e(f"""
    s_and_b32 s{sT+2}, s{sW}, 1
    s_lshl_b32 s{sT+3}, s{sT+2}, 7
    v_xor_b32 v94, s{sT+3}, v{vWD}
    s_lshl_b32 s{sT+3}, s{sW}, 16
    s_lshl_b32 s{sT+4}, s{sH}, 8
    s_add_u32 s{sT+3}, s{sT+3}, s{sT+4}
    v_add_u32 v{vWQD}, s{sT+3}, v94
    v_add_u32 v{vWQD+1}, 31744, v{vWQD}
    """)
    e(f"""
    v_and_b32 v94, 1, v39
    v_lshlrev_b32 v94, 1, v94
    s_lshl_b32 s{sT+3}, s{sT+2}, 2
    v_or_b32 v94, s{sT+3}, v94
    v_xor_b32 v94, v94, v38
    v_lshlrev_b32 v94, 4, v94
    v_mul_u32_u24 v95, 3456, v37
    v_add_u32 v94, v94, v95
    s_mul_i32 s{sT+3}, s{sW}, {8*3456}
    s_lshl_b32 s{sT+4}, s{sU}, 7
    s_add_u32 s{sT+3}, s{sT+3}, s{sT+4}
    v_add_u32 v{vW1D}, s{sT+3}, v94
    """)
    for x in qh_setup(e): e(x)
    e.need(vmtags=("c0", "w0"), lg0=True)
    e("s_barrier")
    for j in range(8): e(p1_cread(0, j))
    for n in range(2):
        for x in p1_wread(n): e(x)

def hacc(ft, j): return HACC + (j * 2 + (ft >> 1)) * 8 + (ft & 1) * 4
def qacc(i, j): return QACC + (j * 4 + (i >> 1)) * 8 + (i & 1) * 4
def bias_init():
    L = []
    for ft in range(4):
        d = hacc(ft, 3)
        for k in range(2):
            L += [f"v_lshlrev_b32 v{d+2*k}, 16, v{114+2*ft+k}", f"v_and_b32 v{d+2*k+1}, 0xffff0000, v{114+2*ft+k}",
                  f"v_mul_f32 v{d+2*k}, {f32(CS)}, v{d+2*k}", f"v_mul_f32 v{d+2*k+1}, {f32(CS)}, v{d+2*k+1}"]
    return L

def p1_cread(sidx, j):
    b = vCB[sidx & 1] + 4 * j
    return f"ds_read_b128 v[{b}:{b+3}], v{vCR + (sidx & 1)} offset:{((sidx >> 1) & 1) * 32768 + j * 2048}"
def p1_wread(n):
    sidx, i = divmod(n, 8); r = vWWIN + 4 * (n & 3); o = p1_wslot(sidx)
    return [f"ds_read_b64_tr_b16 v[{r}:{r+1}], v{vWR+i} offset:{o}", f"ds_read_b64_tr_b16 v[{r+2}:{r+3}], v{vWR+i} offset:{o+1024}"]

def async_check(lab, reg, reload):
    def f(e):
        e.need(f"v{reg}")
        e(f"v_cmp_ne_u32 vcc, s{sTAG}, v{reg}\ns_cbranch_vccz {lab}_ok")
        sv, sl = list(e.vm), list(e.lg)
        def poll(e):
            e(reload); e("s_waitcnt vmcnt(0)"); e(f"v_cmp_ne_u32 vcc, s{sTAG}, v{reg}")
        spin(e, lab, poll, None)
        e.vm, e.lg = sv, sl
    return f
def flag_store(sreg): return f"buffer_store_dword v{vTAG}, v{vSC}, s[{RWS}:{RWS+3}], s{sreg} offen sc1"

PARK = {0: 20, 1: 28, 2: 16, 3: 24}
def park_units():
    L = []
    for n in (2, 3, 0, 1):
        for k in range(4):
            tr = vTR + 2 * (k & 1); src = 8 * n + 2 * k
            L += [f"v_accvgpr_read_b32 v{tr}, a{src}", f"v_accvgpr_read_b32 v{tr+1}, a{src+1}", f"v_cvt_pk_bf16_f32 v{vPK+k}, v{tr}, v{tr+1}"]
        L += [f"v_accvgpr_write_b32 a{PARK[n]+k}, v{vPK+k}" for k in range(4)]
    return L
def parked_stores():
    L = []
    for n in range(4):
        L += [f"s_add_u32 s{sT+7}, s{sST}, {n * 8192}", (f"buffer_store_dwordx4 a[{PARK[n]}:{PARK[n]+3}], v{vL16}, s[{RWS}:{RWS+3}], s{sT+7} offen sc1", "kv")]
    return L

def p1_main(e, T, bg):
    fills = [[[] for _ in range(64)] for _ in range(16)]
    LNE = OPT.get("lne", 6)
    def pos(ep):
        p = [(ep - 1, g) for g in (50, 54, 58, 62)] + [(ep, g) for g in (range(2, 47, 4) if ep < 15 else range(2, 30, 3))]
        return [x for x in p if 0 <= x[0] < 16]
    for ep in range(0, 16):
        L = []
        if ep & 1 and (ep + 3) // 2 < 8: L += [(p1_cdma((ep + 3) // 2, q), f"c{(ep+3)//2}") for q in range(8)]
        if ep >= 1 and ep + 3 < 16: L += [(p1_wdma(ep + 3, u), f"w{ep+3}") for u in range(4)]
        if ep == LNE: L += [(([], f"buffer_store_dwordx4 v[{128+4*k}:{131+4*k}], v126, s[{RWS}:{RWS+3}], s{sXS+k} offen sc1"), "xs") for k in range(3)]
        if ep == LNE + 2: L += [(([], flag_store(sQ + 2)), "fl")]
        if ep == 11: L += [(([f"s_mov_b32 s{sT+5}, {FXS}"], f"buffer_load_dword v122, v127, s[{RWS}:{RWS+3}], s{sT+5} offen sc1"), "pa")]
        if ep == 13: L += [(d, "q0") for d in qh_dmas(0, True)]
        if ep == 14: L += [(d, "q1") for d in qh_dmas(1, True)]
        if ep == 15: L += [(d, "q2") for d in qh_dmas(2, True)] + [(d, "q3") for d in qh_dmas(3, True)]
        P = pos(ep); assert len(L) <= len(P)
        for (d, tag), (ks, g) in zip(L, P): put_dma(fills[ks], g, d, tag)
    for sidx in range(16):
        f = fills[sidx]
        for i in range(8):
            n = 8 * sidx + i + 2
            if n < 128:
                a, b = p1_wread(n); f[8 * i].append(a); f[8 * i + 1].append(b)
        if sidx < 15:
            for j in range(8): f[3 + 4 * j].append(p1_cread(sidx + 1, j))
            tags = [f"w{sidx+1}", f"c{(sidx+2)>>1}"]
            if sidx == LNE + 1: tags.append("xs")
            if sidx == 12:
                f[47].append(async_check(f"L_sa{T}", 122, f"buffer_load_dword v122, v127, s[{RWS}:{RWS+3}], s{sT+5} offen sc1"))
            f[47].append(bar(tags))
        else:
            f[47].append(bar(["q0", "q1"]))
            for j in range(4): f[49 + 2 * j].append(qh_xread(0, j))
            for n in range(3):
                a, b = qh_wread(0, n, n); f[56 + 2 * n].append(a); f[57 + 2 * n].append(b)
    for k, x in enumerate(bias_init()): fills[8 + (k >> 4)][32 + (k & 15) + ((k & 15) == 15)].append(x)
    lb = Bg(); lb.push(ln_ops())
    for ks in range(LNE - 4, LNE): lb.place(fills[ks], 0, 64 if ks < LNE - 1 else 44)
    assert not lb.q, len(lb.q)
    for k in range(3): fills[LNE - 1][51 + 4 * k].append(f"ds_read_b128 v[{128+4*k}:{131+4*k}], v77 offset:{4096*k}")
    qs = [f"s_mov_b32 s{R0}, s{pWQ}", f"s_and_b32 s{R0+1}, s{pWQ+1}, 0xffff", f"s_mov_b32 s{R0+2}, {640*8192}", f"s_mov_b32 s{R0+3}, 0x20000",
          f"s_sub_u32 s{R1}, s{pW1}, 2048", f"s_subb_u32 s{R1+1}, s{pW1+1}, 0", f"s_and_b32 s{R1+1}, s{R1+1}, 0xffff",
          f"s_cmp_lt_u32 s{sU}, 27", f"s_cselect_b32 s{R1+2}, {640*3456 + 2048}, 0", f"s_mov_b32 s{R1+3}, 0x20000",
          f"s_lshl_b32 s{sM0a}, s{sW}, 12", f"s_mul_i32 s{sM0b}, s{sW}, 3072", f"s_add_u32 s{sM0b}, s{sM0b}, {96*1024}"]
    fills[12][4].append(grp(qs[:4])); fills[12][10].append(grp(qs[4:10])); fills[12][14].append(grp(qs[10:]))
    if OPT.get("contig"):
        U = p1_units()
        bg.push(U[0] + U[1]); bg.place(fills[15], 24, 46, maxv=2); assert not bg.q
        bg.push(U[2] + U[3]); bg.place(fills[15], 48, 64, maxv=2)
        bg.push([x for u in U[4:] for x in u])
    elif T == "K" or OPT.get("norole"):
        bg.push([x for u in p1_units() for x in u])
        bg.place(fills[15], 24, 46, maxv=2); bg.place(fills[15], 48, 64, maxv=2)
    else:
        bg.push(park_units())
        bg.place(fills[15], 19, 46, maxv=2); bg.place(fills[15], 48, 55, maxv=2)
        assert not bg.q
        bg.push(parked_stores() + [x for u in p1_units()[4:] for x in u])
    mfs = []
    for sidx in range(16):
        mf = []
        for i in range(8):
            for j in range(8):
                d = p1_acc(T, i, j); w = vWWIN + 4 * ((8 * sidx + i) & 3); c = vCB[sidx & 1] + 4 * j
                A, B = (w, c) if T == "K" else (c, w)
                mf.append(f"{MF} a[{d}:{d+3}], v[{A}:{A+3}], v[{B}:{B+3}], " + ("0" if sidx == 0 else f"a[{d}:{d+3}]"))
        mfs.append(mf)
    for sidx in range(16):
        run_gaps(e, mfs[sidx], fills[sidx], mfs[sidx + 1][0] if sidx < 15 else None)

vKVD = vXR
sKo, sVo, sMK, sMV = 76, 77, 78, 79
def kv_dma(kind, static_pair=None):
    so, mb, rs = (sKo, sMK, R2) if kind == "K" else (sVo, sMV, R3)
    L = []
    for k in range(4):
        su = []
        if k == 0:
            su = [f"s_add_u32 m0, s{sT+3}, s{mb}", f"s_and_b32 s{sT+3}, s{so}, 0xc000"]
        L.append((su, f"buffer_load_dwordx4 v{vKVD}, s[{rs}:{rs+3}], s{so} offen offset:{k*1024} lds"))
    return L, f"s_add_u32 s{so}, s{so}, 16384"

def qh_main(e, T, hasH, bg):
    NI = 12 if hasH else 8; NG = 4 * NI; LA = 3
    NA = OPT.get("na", 7); BKV = OPT.get("bkv", 16); RATE = OPT.get("rate", 2) if hasH else 2
    fills = [[[] for _ in range(NG)] for _ in range(20)]
    bp = NG - 4 * LA - 1
    st = 3 if hasH else 2
    def pos(ep):
        p = [(ep - 1, g) for g in range(bp + 2, NG, st)] + [(ep, g) for g in range(5 if ep == 0 else 2, bp, st)]
        return [x for x in p if 0 <= x[0] < 20]
    pend = []; lastdma = None
    for ep in range(0, 16):
        if OPT.get("norole"):
            a = qh_dmas(ep + 4, hasH)
            pend += [(d, f"q{ep+4}x") for d in a[:4]] + [(d, f"q{ep+4}") for d in a[4:]]
        elif (ep < NA) == (T == "V"):
            a, b = qh_dmas(ep + 4, hasH), qh_dmas(ep + 4, hasH, 1 if T == "K" else -1)
            pend += [(d, f"q{ep+4}x") for d in a[:4] + b[:4]] + [(d, f"q{ep+4}") for d in a[4:] + b[4:]]
        for ks, g in pos(ep):
            if pend:
                d, tag = pend.pop(0); put_dma(fills[ks], g, d, tag); lastdma = (ks, g)
    assert not pend
    for sidx in range(20):
        f = fills[sidx]
        for i in range(NI):
            s2, i2 = divmod(NI * sidx + i + LA, NI)
            if s2 < 20:
                a, b = qh_wread(s2, i2, NI * sidx + i + LA); f[4 * i].append(a); f[4 * i + 1].append(b)
        if sidx < 19:
            for j in range(4): f[3 + 4 * j].append(qh_xread(sidx + 1, j))
            tags = [f"q{sidx+1}", f"q{sidx+2}x"]
            if sidx + 2 <= 3: tags.append(f"q{sidx+2}")
            if sidx == BKV: tags.append("kv")
            f[bp].append(bar(tags))
    fills[BKV][bp + 2].append((flag_store(sQ), "fl"))
    qs = [f"s_mul_i32 s{sT+4}, s{sH}, {HS}", f"s_add_u32 s{sT+5}, s{sT+4}, {KF}", f"s_add_u32 s{R2}, s{pWS}, s{sT+5}", f"s_addc_u32 s{R2+1}, s{pWS+1}, 0",
          f"s_and_b32 s{R2+1}, s{R2+1}, 0xffff", f"s_sub_u32 s{R2+2}, 16, s{sIDX}", f"s_lshl_b32 s{R2+2}, s{R2+2}, 15", f"s_mov_b32 s{R2+3}, 0x20000",
          f"s_add_u32 s{sT+5}, s{sT+4}, {VF}", f"s_add_u32 s{R3}, s{pWS}, s{sT+5}", f"s_addc_u32 s{R3+1}, s{pWS+1}, 0",
          f"s_and_b32 s{R3+1}, s{R3+1}, 0xffff", f"s_mov_b32 s{R3+2}, s{R2+2}", f"s_mov_b32 s{R3+3}, 0x20000",
          f"s_mov_b32 s{sKo}, 0", f"s_mov_b32 s{sVo}, 0", f"s_lshl_b32 s{sMK}, s{sW}, 12", f"s_add_u32 s{sMV}, s{sMK}, 0x10000",
          f"s_mul_i32 s{sPK}, s{sH}, {8*FS}", f"s_add_u32 s{sPK}, s{sPK}, {FKV}"]
    fills[18][6].append(grp(qs[:8])); fills[18][10].append(grp(qs[8:14])); fills[18][14].append(grp(qs[14:]))
    fills[19][2].append(f"v_lshlrev_b32 v{vTR}, 3, v{vL16}"); fills[19][6].append(f"v_and_b32 v{vTR}, {7*FS}, v{vTR}")
    if T == "K" or OPT.get("norole"): k0, g0 = 0, 0
    else: k0, g0 = lastdma[0], lastdma[1] + 1
    for sidx in range(k0, BKV):
        bg.place(fills[sidx], g0 if sidx == k0 else 0, NG, maxv=RATE, step=OPT.get("bstep", 1) if hasH else 1)
    assert not bg.q, len(bg.q)
    mfs = []
    for sidx in range(20):
        mf = []
        for i in range(NI):
            w = ((NI * sidx + i) & 3) * 4
            for j in range(4):
                d = qacc(i, j) if i < 8 else hacc(i - 8, j)
                x = XNB[sidx & 1] + 4 * j
                if sidx: c = f"v[{d}:{d+3}]"
                elif i < 8: c = "0"
                else: c = v(hacc(i - 8, 3), 4)
                mf.append(f"{MF} v[{d}:{d+3}], a[{w}:{w+3}], v[{x}:{x+3}], {c}")
        mfs.append(mf)
    for sidx in range(20):
        run_gaps(e, mfs[sidx], fills[sidx], mfs[sidx + 1][0] if sidx < 19 else None)
    e.vm = []
sPK = 83
PKL = f"buffer_load_dword v{vTR+1}, v{vTR}, s[{RWS}:{RWS+3}], s{sPK} offen sc1"
def kv_prologue(e, lab):
    async_check(lab, vTR + 1, PKL)(e)
    for kind, tag in (("V", "v0"), ("K", "k0"), ("K", "k1"), ("K", "k2"), ("V", "v1"), ("K", "k3")):
        L, inc = kv_dma(kind)
        for su, d in L:
            for x in reversed(su): e(x)
            if su: e("s_nop 0")
            e(d, tag=tag)
        e(inc)

def touch_prefetch(e):
    e(f"s_mov_b32 s{sT}, {WS_END}")
    for k in range(8): e(f"buffer_store_dword v{vTAG}, v{vL16}, s[{RWS}:{RWS+3}], s{sT} offen", tag="h")

def check_drain_order(e):
    written = set()
    for i in e.l:
        if i.kind == "dsr": written |= {r for r in i.wr if r[0] == "a"}
        if i.mn == "v_accvgpr_read_b32" and (i.rd & written): raise AssertionError("drain order " + i.t)
        if i.mn == "v_accvgpr_write_b32": written |= i.wr

def q_pack(e):
    for n in range(16):
        for k in range(4):
            e(f"v_cvt_pk_bf16_f32 v{QACC + 4*n + k}, v{QACC + 8*n + 2*k}, v{QACC + 8*n + 2*k + 1}")

def gelu(e, lab):
    a = -2.0 * math.sqrt(2.0 / math.pi) * math.log2(math.e)
    k1 = a / CS; k2 = a * 0.044715 / CS ** 3
    GP = OPT.get("gp", 4)
    e(f"s_mov_b32 s84, {f32(k2)}\ns_mov_b32 s85, {f32(k2)}\ns_mov_b32 s86, {f32(CS)}\ns_mov_b32 s87, {f32(CS)}")
    e(f"v_mov_b32 v160, {f32(k1)}\nv_mov_b32 v161, {f32(k1)}\nv_mov_b32 v162, {f32(CS)}\nv_mov_b32 v163, {f32(CS)}")
    for n in range(9):
        if n == max(0, GP - 2): e(PKL)
        if n == GP: kv_prologue(e, lab)
        if n == 8: break
        b = HACC + 8 * n; t = 164 + 8 * (n & 1)
        for k in range(4): e(f"v_pk_mul_f32 v[{t+2*k}:{t+2*k+1}], v[{b+2*k}:{b+2*k+1}], v[{b+2*k}:{b+2*k+1}]")
        for k in range(4): e(f"v_pk_fma_f32 v[{t+2*k}:{t+2*k+1}], v[{t+2*k}:{t+2*k+1}], s[84:85], v[160:161]")
        for k in range(4): e(f"v_pk_mul_f32 v[{t+2*k}:{t+2*k+1}], v[{t+2*k}:{t+2*k+1}], v[{b+2*k}:{b+2*k+1}]")
        for k in range(8): e(f"v_exp_f32 v{t+k}, v{t+k}")
        for k in range(4): e(f"v_pk_fma_f32 v[{t+2*k}:{t+2*k+1}], v[{t+2*k}:{t+2*k+1}], s[86:87], v[162:163]")
        for k in range(8): e(f"v_rcp_f32 v{t+k}, v{t+k}")
        for k in range(4): e(f"v_pk_mul_f32 v[{t+2*k}:{t+2*k+1}], v[{t+2*k}:{t+2*k+1}], v[{b+2*k}:{b+2*k+1}]")
        for k in range(4): e(f"v_cvt_pk_bf16_f32 v{HACC+4*n+k}, v{t+2*k}, v{t+2*k+1}")
    e(f"""
    s_mul_i32 s{sT+4}, s{sIDX}, {54*8192}
    s_lshl_b32 s{sT+5}, s{sU}, 14
    s_lshl_b32 s{sT+6}, s{sW}, 10
    s_add_u32 s{sT+5}, s{sT+5}, s{sT+6}
    s_add_u32 s{sT+5}, s{sT+5}, {HF}
    s_add_u32 s{sT+4}, s{sT+4}, s{sT+5}
    s_sub_u32 s{sT+6}, 15, s{sIDX}
    s_mul_i32 s{sT+6}, s{sT+6}, {54*8192}
    s_add_u32 s{sT+5}, s{sT+5}, s{sT+6}
    """)
    for n in range(8):
        j, up = n >> 1, n & 1
        e(f"s_add_u32 s{sT+7}, s{sT+4+(j>>1)}, {(j & 1) * 4096 + up * 8192}")
        e(f"buffer_store_dwordx4 v[{HACC+4*n}:{HACC+4*n+3}], v{vL16}, s[{RWS}:{RWS+3}], s{sT+7} offen sc1", tag="h")
    e("s_nop 1")

def Qr(j, t): return 96 + (4 * j + t) * 4
def Sr(b, j, kt=0): return 160 + 32 * b + 8 * j + 4 * kt
def Pr(b, j): return 224 + 16 * b + 4 * j
def NEGM(j): return 32 + 4 * j
def MASK(par, kt): return 48 + 8 * par + 4 * kt
def CT(kt): return 64 + 4 * kt
TT = 72
def LT(b, j): return 76 + 4 * b + j
def LL(j): return 84 + j
vCHK = 88
def Or(j, dt): return 32 * j + 4 * dt
FK, FV = 128, 160
vKR, vVR = 2, 3
sTHR, sCNT, sRET, sCA, sCB = 90, 91, 92, 94, 95
NEG_INF = "0xff800000"

def attn_setup(e):
    e(f"""
    v_lshrrev_b32 v89, 4, v{vL16}
    v_and_b32 v90, 15, v89
    v_lshrrev_b32 v89, 4, v89
    v_lshlrev_b32 v89, 2, v89
    v_sub_u32 v89, v89, v90
    v_mov_b32 v90, {NEG_INF}
    v_mov_b32 v91, 0
    s_lshl_b32 s{sT}, s{sW}, 4
    s_mov_b32 s{sTHR}, {f32(2.0**40)}
    v_mov_b32 v{vKR}, v{vL16}
    v_add_u32 v{vVR}, 0x18000, v{vL16}
    """)
    for par in range(2):
        for kt in range(2):
            for r in range(4):
                k = (par * 2 + kt) * 4 + r
                e(f"s_sub_i32 s{sT+1}, s{sT}, {32*par + 16*kt + r}\nv_cmp_ge_i32 s[{sCA}:{sCA+1}], s{sT+1}, v89\ns_nop 1\nv_cndmask_b32 v{MASK(par, kt)+r}, v90, v91, s[{sCA}:{sCA+1}]")
    srd(e, R0, pWO, 4096 * 1280); srd(e, R1, pW2, 1728 * 1280)
    e(f"""
    s_lshl_b32 s{sT}, s2, 2
    s_add_u32 s{sT}, s{sT}, s{sW}
    v_lshrrev_b32 v5, 4, v{vL16}
    s_mul_i32 s{sT+1}, s{sT}, 40
    v_min_u32 v4, 39, v5
    v_add_u32 v4, s{sT+1}, v4
    v_lshlrev_b32 v4, 7, v4
    s_mul_i32 s{sT+1}, s{sT}, 17
    v_min_u32 v5, 16, v5
    v_add_u32 v5, s{sT+1}, v5
    v_lshlrev_b32 v5, 7, v5
    """)
    e(f"""
    s_lshl_b32 s{sT}, s{sH}, 15
    s_lshl_b32 s{sT+1}, s{sW}, 10
    s_add_u32 s{sT}, s{sT}, s{sT+1}
    s_add_u32 s{sT}, s{sT}, {CF}
    s_lshl_b32 s{sCA}, s{sIDX}, 20
    s_add_u32 s{sCA}, s{sCA}, s{sT}
    s_sub_u32 s{sCB}, 15, s{sIDX}
    s_lshl_b32 s{sCB}, s{sCB}, 20
    s_add_u32 s{sCB}, s{sCB}, s{sT}
    """)

def kread(n, f): return f"ds_read_b128 a[{FK+4*f}:{FK+4*f+3}], v{vKR} offset:{(n & 3) * 8192 + f * 1024}"
def vread(n, f): return f"ds_read_b128 a[{FV+4*f}:{FV+4*f+3}], v{vVR} offset:{(n & 3) * 8192 + f * 1024}"

def xreduce(e, op, regs, tmps):
    for sw in ("v_permlane16_swap_b32", "v_permlane32_swap_b32"):
        for r, t in zip(regs, tmps): e(f"v_mov_b32 v{t}, v{r}")
        e("s_nop 1")
        for r, t in zip(regs, tmps): e(f"{sw} v{r}, v{t}")
        e("s_nop 0")
        for r, t in zip(regs, tmps): e(f"{op} v{r}, v{r}, v{t}")

def max8(e, d, sreg):
    e(f"v_max3_f32 v{d}, v{sreg}, v{sreg+1}, v{sreg+2}\nv_max3_f32 v{d}, v{d}, v{sreg+3}, v{sreg+4}\nv_max3_f32 v{d}, v{d}, v{sreg+5}, v{sreg+6}\nv_max_f32 v{d}, v{d}, v{sreg+7}")

def sm_ops(b, J):
    L = []; k = 0
    for j in J:
        for x in range(8):
            t = TT + (k & 3); tp = TT + ((k - 1) & 3)
            fol = []
            if x == 1: fol.append(f"v_add_f32 v{LT(b, j)}, v{tp}, v{t}")
            elif x > 1: fol.append(f"v_add_f32 v{LT(b, j)}, v{LT(b, j)}, v{t}")
            if x & 1: fol.append(f"v_cvt_pk_bf16_f32 v{Pr(b, j) + (x >> 1)}, v{tp}, v{t}")
            L.append((f"v_exp_f32 v{t}, v{Sr(b, j) + x}", fol)); k += 1
    return L

FBS = {}
STUBS = []
class Blk:
    def __init__(self, name, A, B, first=False): self.name, self.A, self.B, self.first = name, A, B, first
    def act(self, n):
        out = []
        for st, lo, hi in ((self.B, 2, 3), (self.A, 0, 1)):
            if n < 0 and self.first: continue
            if st == "F":
                a_lo = a_hi = True
            else:
                d = n - {"D": 0, "T": -4, "X": -100}[st]
                a_lo, a_hi = d < 2, d < 4
            if a_hi: out.append(hi)
            if a_lo: out.append(lo)
        return out
    def masked(self, n):
        out = []
        for st, lo, hi in ((self.B, 2, 3), (self.A, 0, 1)):
            if st == "D": out.append((lo if n < 2 else hi, n & 1))
        return out

def attn_block(e, bk):
    nm = bk.name
    dma = bk.B == "F"
    canon = [(regs_of(f"a[{FK+4*f}:{FK+4*f+3}]"), None) for f in range(8)]
    e.lg = list(canon) if bk.first else canon[4:]
    nper = 2 if bk.B == "T" else 4
    for lp in range(nper):
        p = lp - 2
        nq, ns, nv = p + 2, p + 1, p
        JQ = bk.act(nq) if bk.B != "T" else []
        JS = bk.act(ns); JV = bk.act(nv); JN = bk.act(ns + 1) if not (bk.B == "T" and lp == 1) else []
        if bk.B == "T" and lp == 1: JS = []
        bq, bs, bv = nq & 1, ns & 1, nv & 1
        pre = []
        msk = dict(bk.masked(nq)) if JQ else {}
        assert len(msk) <= 1
        first_qk = bk.first and lp == 0
        for j, par in msk.items():
            if not first_qk:
                for kt in range(2):
                    for r in range(4): pre.append(f"v_add_f32 v{CT(kt)+r}, v{NEGM(j)+r}, v{MASK(par, kt)+r}")
        mf = []; kstart = []; vstart = []
        for f in range(8 if JQ else 0):
            t, kt = f >> 1, f & 1
            kstart.append(len(mf))
            for j in JQ:
                d = Sr(bq, j, kt)
                if t: c = v(d, 4)
                elif first_qk: c = v(MASK(msk[j], kt), 4) if j in msk else "0"
                else: c = v(CT(kt), 4) if j in msk else v(NEGM(j), 4)
                mf.append(f"{MF} v[{d}:{d+3}], a[{FK+4*f}:{FK+4*f+3}], v[{Qr(j, t)}:{Qr(j, t)+3}], {c}")
        for f in range(8 if JV else 0):
            vstart.append(len(mf))
            for j in JV:
                o = Or(j, f)
                c = "0" if (bk.first and nv == 0) else ac(o, 4)
                mf.append(f"{MF} a[{o}:{o+3}], a[{FV+4*f}:{FV+4*f+3}], v[{Pr(bv, j)}:{Pr(bv, j)+3}], {c}")
        NG = len(mf)
        fill = [[] for _ in range(NG)]
        def odd(g): return min(g + 1, NG - 1)
        if JV:
            if lp == 2: pre.insert(0, f"v_xor_b32 v{vVR}, 0x8000, v{vVR}")
            if JQ:
                for f in range(8): fill[odd(kstart[f]) if len(JQ) > 1 else kstart[f]].append(vread(nv, f))
            else:
                for f in range(8): pre.append(vread(nv, f))
        needK = bk.B == "F" or (bk.B == "D" and lp < 3)
        if needK:
            if JV:
                if lp == 3: fill[vstart[0] - 1].append(f"v_xor_b32 v{vKR}, 0x8000, v{vKR}")
                for f in range(8): fill[odd(vstart[f]) if len(JV) > 1 else vstart[f]].append(kread(p + 3, f))
            else:
                for f in range(8): fill[kstart[f] + len(JQ) - 1].append(kread(p + 3, f))
        def needf(base, f0):
            def g(e): e.need(f"a[{base+4*f0}:{base+4*f0+15}]")
            return g
        if JQ and JV:
            fill[kstart[4] - 2].append(needf(FK, 4)); fill[vstart[0] - 2].append(needf(FV, 0)); fill[vstart[4] - 2].append(needf(FV, 4))
            if needK: fill[NG - 2].append(needf(FK, 0))
        if lp & 1 and bk.B != "T":
            gb = vstart[0] if JV else -1
            n = (20 if bk.first else 12) if dma else (8 if lp == 1 else 0)
            def mkb(n):
                def f(e):
                    lg = list(e.lg)
                    if OPT.get("ticks"): e("s_waitcnt lgkmcnt(0)")
                    tick_pre(e); e(f"s_waitcnt vmcnt({n})\ns_barrier"); tick_post(e)
                    e.lg = lg
                return f
            b_ins = mkb(n)
            if gb >= 0: fill[gb].append(b_ins)
            else: pre.insert(0, b_ins)
        if dma and not (bk.first and lp == 0):
            L, inc = kv_dma("V" if lp & 1 else "K")
            if lp & 1: g0, span = (vstart[0] if JV else 0), (8 * len(JV) if JV else NG)
            else: g0, span = 0, 8 * len(JQ)
            st = span // 4
            for x in reversed(L[0][0]): fill[max(0, g0 - 4)].append(x)
            for k, d in enumerate(L): fill[g0 + 1 + st * k].append(d[1])
            fill[g0 + 2 + st * 3].append(inc)
        if bk.A == "T" and lp == 1: fill[NG - 1].append(flag_store(sQ + 1))
        if bk.A == "T" and lp == 2:
            fill[NG - 5].append(f"buffer_load_dword a240, v4, s[{R0}:{R0+3}], 0 offen"); fill[NG - 1].append(f"buffer_load_dword a241, v5, s[{R1}:{R1+3}], 0 offen")
        if JS:
            ops = sm_ops(bs, JS)[2:]
            W = NG - 4 if JN else NG - 1
            W = max(W, 1)
            lastg = 0; tile_done = []
            for k, (ex, fol) in enumerate(ops):
                g = (k * W) // len(ops)
                if W >= 2 * len(ops): g &= ~1
                fill[g].append(ex)
                for x in fol: fill[min(g + 1, NG - 1)].append(x) if g + 1 <= NG - 1 else None
                lastg = g + 1
                if (k + 2) % 8 == 7: tile_done.append(lastg)
            lts = [LT(bs, j) for j in JS]
            ck = []
            if len(lts) == 4: fill[min(NG - 1, tile_done[2] + 2)].append(f"v_max3_f32 v{vCHK}, v{lts[0]}, v{lts[1]}, v{lts[2]}"); ck.append(f"v_max_f32 v{vCHK}, v{vCHK}, v{lts[3]}")
            elif len(lts) == 3: ck.append(f"v_max3_f32 v{vCHK}, v{lts[0]}, v{lts[1]}, v{lts[2]}")
            elif len(lts) == 2: ck.append(f"v_max_f32 v{vCHK}, v{lts[0]}, v{lts[1]}")
            ck.append(f"v_cmp_lt_f32 vcc, s{sTHR}, v{vCHK if len(lts) > 1 else lts[0]}")
            gck = max(lastg, NG - 3) if JN else lastg
            assert gck <= NG - 2
            fb = f"FB{bs}_{''.join(map(str, JS))}"
            FBS[fb] = (bs, JS)
            site = f"L_{nm}_{lp}"
            STUBS.append((site, fb))
            for x in ck: fill[gck].append(x)
            fill[NG - 1].append(grp([f"s_cbranch_vccnz {site}_fb", f"{site}_ret:"]))
        post = None
        if JV:
            for k, j in enumerate(JV):
                g = 1 if k == 0 else min(NG - 5, 16 * k - 3)
                fill[g].append(f"v_mov_b32 v{LL(j)}, v{LT(bv, j)}" if (bk.first and nv == 0) else f"v_add_f32 v{LL(j)}, v{LL(j)}, v{LT(bv, j)}")
        head = sm_ops((ns + 1) & 1, JN)[:2] if JN else []
        if head and not first_qk:
            assert post is None
            fill[NG - 4].append(head[0][0]); fill[NG - 2].append(head[1][0])
            for x in head[1][1]: fill[NG - 1].append(x)
        if lp == 0 and JQ: e.need(f"a[{FK}:{FK+15}]")
        for x in pre:
            if callable(x): x(e)
            else: e(x)
        if pre: e("s_nop 1")
        e.gaps(mf, fill)
        if post:
            for x in post: e(x)
            br(e); e("s_nop 1")
        if first_qk:
            e("s_nop 7")
            for j in range(4): max8(e, NEGM(j), Sr(0, j))
            xreduce(e, "v_max_f32", [NEGM(j) for j in range(4)], [NEGM(j) + 1 for j in range(4)])
            for j in range(4):
                e(f"v_sub_f32 v{NEGM(j)}, 0, v{NEGM(j)}")
                for r in range(1, 4): e(f"v_mov_b32 v{NEGM(j)+r}, v{NEGM(j)}")
            for j in (3, 2, 1, 0):
                for x in range(8): e(f"v_add_f32 v{Sr(0, j)+x}, v{Sr(0, j)+x}, v{NEGM(j)}")
            e(head[0][0]); e(head[1][0]); e("s_nop 0")
            for x in head[1][1]: e(x)
    if bk.B == "F":
        assert len(e.lg) <= 4 and [r for r, _ in e.lg] == [r for r, _ in canon][8 - len(e.lg):], (nm, len(e.lg))

def attn_epilogue(e, tiles, sbase):
    e("s_nop 7")
    ls = [LL(j) for j in tiles]
    xreduce(e, "v_add_f32", ls, [89, 90])
    for j in tiles: e(f"v_rcp_f32 v{LL(j)}, v{LL(j)}")
    for hi, j in enumerate(tiles):
        for t in range(4):
            pk = 64 + 4 * (t & 1)
            for k in range(4):
                src = Or(j, 2 * t) + 2 * k; tr = 90 + 2 * (k & 1)
                e(f"v_accvgpr_read_b32 v{tr}, a{src}\nv_accvgpr_read_b32 v{tr+1}, a{src+1}")
                e(f"v_mul_f32 v{tr}, v{tr}, v{LL(j)}\nv_mul_f32 v{tr+1}, v{tr+1}, v{LL(j)}")
                e(f"v_cvt_pk_bf16_f32 v{pk+k}, v{tr}, v{tr+1}")
            e(f"s_add_u32 s{sT}, s{sbase}, {hi * 4096 + t * 8192}")
            e(f"buffer_store_dwordx4 v[{pk}:{pk+3}], v{vL16}, s[{RWS}:{RWS+3}], s{sT} offen sc1")

def fallback(e, name, b, J):
    e(f"{name}:\ns_nop 15")
    for j in J:
        d = 89
        max8(e, d, Sr(b, j))
        xreduce(e, "v_max_f32", [d], [90])
        e(f"v_max_f32 v{d}, 0, v{d}\nv_sub_f32 v90, 0, v{d}\nv_exp_f32 v90, v90")
        for r in range(4): e(f"v_sub_f32 v{NEGM(j)+r}, v{NEGM(j)+r}, v{d}")
        for x in range(8): e(f"v_sub_f32 v{Sr(b, j)+x}, v{Sr(b, j)+x}, v{d}\nv_sub_f32 v{Sr(b ^ 1, j)+x}, v{Sr(b ^ 1, j)+x}, v{d}")
        e(f"v_mul_f32 v{LL(j)}, v{LL(j)}, v90")
        for x in range(0, 32, 2):
            o = Or(j, 0) + x
            e(f"v_accvgpr_read_b32 v91, a{o}\nv_accvgpr_read_b32 v92, a{o+1}\nv_mul_f32 v91, v91, v90\nv_mul_f32 v92, v92, v90\nv_accvgpr_write_b32 a{o}, v91\nv_accvgpr_write_b32 a{o+1}, v92")
    for ex, fol in sm_ops(b, J):
        e(ex); e("s_nop 0")
        for x in fol: e(x)
    for ex, fol in sm_ops(b ^ 1, [3])[:2]: e(ex)
    e(f"s_nop 1\ns_setpc_b64 s[{sRET}:{sRET+1}]")

def attn_pre(e):
    e.need(vmtags=("k0",), lg0=True)
    e("s_barrier")
    for f in range(8): e(kread(0, f))

def attention(e):
    B = {k: Blk(k, k[-2], k[-1], k.startswith("f")) for k in ("fFF", "fDF", "FF", "DF", "TF", "TD", "XF", "XD", "XT")}
    segs = {}
    def seg(name, fn):
        n0 = len(e.l); fn(); segs[name] = e.l[n0:]
    e(f"s_cmp_eq_u32 s{sIDX}, 0\ns_cbranch_scc1 L_fDF")
    seg("fFF", lambda: attn_block(e, B["fFF"]))
    e(f"s_sub_u32 s{sCNT}, s{sIDX}, 1\ns_cmp_eq_u32 s{sCNT}, 0\ns_cbranch_scc1 L_DF\n.p2align 3\nL_FF:")
    seg("FF", lambda: attn_block(e, B["FF"]))
    e(f"s_sub_u32 s{sCNT}, s{sCNT}, 1\ns_cmp_lg_u32 s{sCNT}, 0\ns_cbranch_scc1 L_FF\nL_DF:")
    seg("DF", lambda: attn_block(e, B["DF"]))
    e(f"s_cmp_eq_u32 s{sIDX}, 7\ns_cbranch_scc1 L_TD\nL_TF:")
    seg("TF", lambda: (attn_block(e, B["TF"]), attn_epilogue(e, (0, 1), sCA)))
    stamp(e, 7)
    e(f"s_lshl_b32 s{sCNT}, s{sIDX}, 1\ns_sub_u32 s{sCNT}, 13, s{sCNT}\n.p2align 3\nL_XF:")
    seg("XF", lambda: attn_block(e, B["XF"]))
    e(f"s_sub_u32 s{sCNT}, s{sCNT}, 1\ns_cmp_lg_u32 s{sCNT}, 0\ns_cbranch_scc1 L_XF")
    seg("XD", lambda: attn_block(e, B["XD"]))
    e("L_XT:")
    seg("XT", lambda: attn_block(e, B["XT"]))
    def out_of_line():
        e("L_fDF:")
        seg("fDF", lambda: attn_block(e, B["fDF"]))
        e("s_branch L_TF\nL_TD:")
        seg("TD", lambda: (attn_block(e, B["TD"]), attn_epilogue(e, (0, 1), sCA)))
        e("s_branch L_XT")
        for site, fb in STUBS:
            e(f"{site}_fb:\ns_call_b64 s[{sRET}:{sRET+1}], {fb}\ns_branch {site}_ret")
        for name, (b, J) in FBS.items():
            seg(name, lambda: fallback(e, name, b, J))
    return segs, out_of_line

sMT, sNT, sS, sAH, sAC, sWH, sWC, sXO, sFH, sFC = 64, 65, 66, 67, 68, 69, 70, 76, 77, 78
sMA, sMW, sBO, sEXs, sEXl, sFE = 79, 80, 81, 82, 83, 84
SLOT = 36864
vWD5, vRB, vRE, vRO, vP1, vP2, vL4K, vXO, vBO = 4, 10, 12, 14, 16, 17, 9, 18, 19
def p5_setup(e):
    e(f"""
    s_lshr_b32 s{sMT}, s{sX}, 2
    s_lshl_b32 s{sMT}, s{sMT}, 3
    s_lshr_b32 s{sT}, s2, 3
    s_and_b32 s{sT}, s{sT}, 7
    s_add_u32 s{sMT}, s{sMT}, s{sT}
    s_lshr_b32 s{sNT}, s2, 6
    s_and_b32 s{sS}, s{sX}, 3
    s_sub_u32 s{sT+1}, 15, s{sMT}
    s_min_u32 s{sT}, s{sMT}, s{sT+1}
    s_mul_i32 s{sT}, s{sT}, {32*FS}
    s_add_u32 s{sFH}, s{sT}, {FH}
    s_mul_i32 s{sT+1}, s{sS}, {8*FS}
    s_add_u32 s{sFC}, s{sT}, s{sT+1}
    s_add_u32 s{sFC}, s{sFC}, {FC}
    v_lshlrev_b32 v{vP1}, 3, v{vL16}
    v_and_b32 v{vP2}, {7*FS}, v{vP1}
    v_and_b32 v{vP1}, {31*FS}, v{vP1}
    """)
    e(f"buffer_load_dword v20, v{vP1}, s[{RWS}:{RWS+3}], s{sFH} offen sc1")
    e(f"""
    s_mul_i32 s{sT+3}, s{sMT}, {54*8192}
    s_add_u32 s{sT+3}, s{sT+3}, {HF}
    s_lshl_b32 s{sT+4}, s{sMT}, 20
    s_add_u32 s{sT+4}, s{sT+4}, {CF}
    """)
    srd(e, R0, pWS, 54 * 8192, f"s{sT+3}")
    srd(e, R1, pWS, 128 * 8192, f"s{sT+4}")
    srd(e, R2, pW2, 1728 * 1280)
    srd(e, R3, pWO, 4096 * 1280)
    e(f"""
    s_lshl_b32 s{sMA}, s{sW}, 12
    s_mul_i32 s{sAH}, s{sS}, {14*8192}
    s_add_u32 s{sAH}, s{sAH}, s{sMA}
    s_lshl_b32 s{sAC}, s{sS}, 18
    s_add_u32 s{sAC}, s{sAC}, s{sMA}
    s_mul_i32 s{sMW}, s{sW}, 5120
    s_add_u32 s{sMW}, s{sMW}, 16384
    s_mul_i32 s{sT}, s{sW}, {16*1280}
    s_mul_i32 s{sBO}, s{sNT}, 320
    s_add_u32 s{sT}, s{sT}, s{sBO}
    s_mul_i32 s{sWH}, s{sS}, {14*32*1280}
    s_add_u32 s{sWH}, s{sWH}, s{sT}
    s_mul_i32 s{sWC}, s{sS}, {1024*1280}
    s_add_u32 s{sWC}, s{sWC}, s{sT}
    v_lshrrev_b32 v{vXO}, 4, v{vL16}
    """)
    for k in range(5):
        e(f"""
        v_add_u32 v{vRB}, {64*k}, v{vXO}
        v_mul_u32_u24 v{vRB+1}, 3277, v{vRB}
        v_lshrrev_b32 v{vRB+1}, 16, v{vRB+1}
        v_mul_u32_u24 v{vRE}, 20, v{vRB+1}
        v_sub_u32 v{vRB}, v{vRB}, v{vRE}
        v_lshrrev_b32 v{vRE}, 1, v{vRB+1}
        v_and_b32 v{vRE}, 2, v{vRE}
        v_xor_b32 v{vRB}, v{vRB}, v{vRE}
        v_mul_u32_u24 v{vRB+1}, 1280, v{vRB+1}
        v_lshl_add_u32 v{vWD5+k}, v{vRB}, 4, v{vRB+1}
        """)
        if 0 < k < 4: e(f"v_subrev_u32 v{vWD5+k}, {1024*k}, v{vWD5+k}")
    e(f"""
    s_and_b32 s{sT}, s{sW}, 1
    s_lshl_b32 s{sT+1}, s{sT}, 12
    v_add_u32 v{vRB}, s{sT+1}, v{vL16}
    v_add_u32 v{vRB+1}, {2*SLOT}, v{vRB}
    s_lshr_b32 s{sT+1}, s{sW}, 1
    s_mul_i32 s{sT+2}, s{sT+1}, 160
    s_add_u32 s{sBO}, s{sBO}, s{sT+2}
    s_add_u32 s{sT+2}, s{sT+2}, 16384
    v_lshrrev_b32 v{vRE}, 2, v{vXO}
    v_mul_u32_u24 v{vRE}, 320, v{vRE}
    v_and_b32 v{vRO}, 3, v{vXO}
    v_lshl_add_u32 v{vRE}, v{vRO}, 3, v{vRE}
    v_add_u32 v{vRE}, s{sT+2}, v{vRE}
    v_lshlrev_b32 v{vRO+1}, 1, v{vXO}
    v_and_b32 v{vRO+1}, 32, v{vRO+1}
    s_cmp_eq_u32 s{sT+1}, 0
    s_cselect_b32 s{sT+3}, 1, -1
    v_mul_i32_i24 v{vRO+1}, s{sT+3}, v{vRO+1}
    v_sub_u32 v{vRO}, v{vRE}, v{vRO+1}
    v_add_u32 v{vRE}, v{vRE}, v{vRO+1}
    v_add_u32 v{vRE+1}, {2*SLOT}, v{vRE}
    v_add_u32 v{vRO+1}, {2*SLOT}, v{vRO}
    v_add_u32 v{vL4K}, 4096, v{vL16}
    s_lshl_b32 s{sXO}, s{sMT}, 3
    s_lshl_b32 s{sT}, s{sT}, 2
    s_add_u32 s{sXO}, s{sXO}, s{sT}
    s_add_u32 s{sXO}, s{sXO}, s{sS}
    s_mul_i32 s{sXO}, s{sXO}, {16*1280}
    s_add_u32 s{sXO}, s{sXO}, s{sBO}
    v_lshrrev_b32 v{vBO}, 4, v{vXO}
    v_lshlrev_b32 v{vBO}, 3, v{vBO}
    v_and_b32 v{vXO}, 15, v{vXO}
    v_mul_u32_u24 v{vXO}, 1280, v{vXO}
    v_add_u32 v{vXO}, v{vXO}, v{vBO}
    s_lshl_b32 s{sT}, s{sMT}, 2
    s_add_u32 s{sT}, s{sT}, s{sNT}
    s_lshl_b32 s{sFE}, s{sT}, 2
    s_add_u32 s{sFE}, s{sFE}, s{sW}
    s_mul_i32 s{sFE}, s{sFE}, {FS}
    s_add_u32 s{sFE}, s{sFE}, {FEX}
    s_mul_i32 s{sT}, s{sT}, {16*20480}
    s_mul_i32 s{sT+1}, s{sW}, 5120
    s_add_u32 s{sT}, s{sT}, s{sT+1}
    s_add_u32 s{sT}, s{sT}, {EX}
    s_mul_i32 s{sT+1}, s{sS}, 20480
    s_add_u32 s{sEXs}, s{sT}, s{sT+1}
    s_lshl_b32 s{sT+1}, s{sT+1}, 2
    s_add_u32 s{sEXl}, s{sT}, s{sT+1}
    """)

def p5_dmas(d):
    sl = (d & 3) * SLOT
    if d < 7: ra, sa, oa, rw, sw, ow = R0, sAH, d * 16384, R2, sWH, d * 64 * 1280
    else: ra, sa, oa, rw, sw, ow = R1, sAC, (d - 7) * 16384, R3, sWC, (d - 7) * 64 * 1280
    W = []
    for k in range(5):
        su = []
        if k == 0: su = [f"s_add_u32 m0, s{sMW}, {sl}", f"s_add_u32 s{sT+1}, s{sw}, {ow}"]
        if k == 4: su = [f"s_add_u32 m0, s{sMW}, {sl + 4096}"]
        W.append((su, f"buffer_load_dwordx4 v{vWD5+k}, s[{rw}:{rw+3}], s{sT+1} offen offset:{(k & 3) * 1024} lds"))
    A = []
    for k in range(4):
        su = [f"s_add_u32 m0, s{sMA}, {sl}", f"s_add_u32 s{sT}, s{sa}, {oa}"] if k == 0 else []
        A.append((su, f"buffer_load_dwordx4 v{vL16}, s[{ra}:{ra+3}], s{sT} offen offset:{k * 1024} lds"))
    return W + A
def p5_reads(m):
    d, ks = m >> 1, m & 1; b = (m & 1) * 36; hi = (d >> 1) & 1; o = (d & 1) * SLOT
    L = []
    for n in range(5):
        a = (vRO if n & 1 else vRE) + hi; off = o + ks * 32 * 320 + n * 32
        Wn = [f"ds_read_b64_tr_b16 a[{b+4*n}:{b+4*n+1}], v{a} offset:{off}", f"ds_read_b64_tr_b16 a[{b+4*n+2}:{b+4*n+3}], v{a} offset:{off + 5120}"]
        L += Wn
        if n == 0: L += [f"ds_read_b128 a[{b+20+4*r}:{b+23+4*r}], v{vRB+hi} offset:{o + ks * 8192 + r * 1024}" for r in range(4)]
    return L

def p5(e):
    ACC = 32; ND = 23
    tick_dump(e, 2)
    p5_setup(e)
    e("s_waitcnt lgkmcnt(0)\ns_barrier")
    async_check("L_p5h", 20, f"buffer_load_dword v20, v{vP1}, s[{RWS}:{RWS+3}], s{sFH} offen sc1")(e)
    for d in range(3):
        for su, x in p5_dmas(d):
            for y in reversed(su): e(y)
            if su: e("s_nop 0")
            e(x, tag=f"d{d}")
    attn_epilogue(e, (2, 3), sCB)
    stamp(e, 8)
    e(f"s_add_u32 s{sT+2}, s{sQ+1}, {FC - FH}\ns_waitcnt vmcnt(0)\ns_barrier")
    e(flag_store(sT + 2))
    stamp(e, 9)
    for x in p5_reads(0): e(x)
    PCL = f"buffer_load_dword v20, v{vP2}, s[{RWS}:{RWS+3}], s{sFC} offen sc1"
    mfs = []; fills = []
    for m in range(2 * ND):
        b = (m & 1) * 36; mf = []
        for n in range(5):
            for r in range(4):
                dd = ACC + (r * 5 + n) * 4
                mf.append(f"{MF} v[{dd}:{dd+3}], a[{b+4*n}:{b+4*n+3}], a[{b+20+4*r}:{b+23+4*r}], " + ("0" if m == 0 else v(dd, 4)))
        mfs.append(mf); fills.append([[] for _ in range(20)])
    CK = OPT.get("ck", 7)
    for m in range(2 * ND):
        f = fills[m]; d = m >> 1
        if m + 1 < 2 * ND:
            R = p5_reads(m + 1)
            g0 = 1 if m & 1 else 0
            for k, x in enumerate(R): f[g0 + k].append(x)
            if m & 1: f[0].append(bar([f"d{d+1}"]))
    for d in range(3, ND):
        L = p5_dmas(d); m0 = 2 * (d - 3) - 1
        P = [(m0, g) for g in (3, 7, 11, 15, 18)] + [(m0 + 1, g) for g in (2, 6, 10, 14)] if m0 >= 0 else [(0, g) for g in (1, 3, 5, 7, 9, 11, 13, 15, 17)]
        for k, (x, (m, g)) in enumerate(zip(L, P)):
            if d == 7 and k == 5:
                fills[m][g - 1].append(async_check("L_p5c", 20, PCL))
                fills[m0][1].append(PCL)
            put_dma(fills[m], g, x, f"d{d}")
    mx = 2 * ND - 4
    fills[mx][0].append(grp([f"s_mov_b32 s{R0}, s{pX}", f"s_and_b32 s{R0+1}, s{pX+1}, 0xffff", f"s_mov_b32 s{R0+2}, {2048*1280}", f"s_mov_b32 s{R0+3}, 0x20000",
                             f"s_mov_b32 s{R2}, s{pB2}", f"s_and_b32 s{R2+1}, s{pB2+1}, 0xffff", f"s_mov_b32 s{R2+2}, 1280", f"s_mov_b32 s{R2+3}, 0x20000"]))
    for n in range(5):
        fills[mx][2 + 3 * n].append(f"buffer_load_dwordx2 v[{112+2*n}:{113+2*n}], v{vXO}, s[{R0}:{R0+3}], s{sXO} offen offset:{32*n}")
        fills[mx + 1][2 + 3 * n].append(f"buffer_load_dwordx2 v[{122+2*n}:{123+2*n}], v{vBO}, s[{R2}:{R2+3}], s{sBO} offen offset:{32*n}")
    for m in range(2 * ND):
        if m == 8: stamp(e, 11)
        if m == 10: stamp(e, 12)
        e.gaps(mfs[m], fills[m], mfs[m + 1][0] if m + 1 < 2 * ND else None)
    tick_dump(e, 3)
    stamp(e, 13)
    e("s_nop 4")
    for r in range(4):
        e(f"s_add_u32 s{sT}, s{sEXs}, {r * 4 * 20480}\ns_cmp_eq_u32 s{sS}, {r}\ns_cselect_b32 s{sT}, {WS_END}, s{sT}")
        for n in range(5):
            t = ACC + (r * 5 + n) * 4
            e(f"buffer_store_dwordx4 v[{t}:{t+3}], v{vL4K if n == 4 else vL16}, s[{RWS}:{RWS+3}], s{sT} offen offset:{(n & 3) * 1024} sc1")
    e(f"""
    v_mov_b32 v20, 0
    v_mov_b32 v132, 0x10000000
    v_cmp_eq_u32 vcc, 0, v{vL16}
    s_lshl_b32 s{sT+1}, s{sS}, 2
    s_add_u32 s{sT+1}, s{sT+1}, s{sFE}
    v_cndmask_b32 v132, v132, v20, vcc
    v_lshrrev_b32 v133, 2, v{vL16}
    v_and_b32 v133, 12, v133
    """)
    for r in range(1, 4):
        e(f"s_cmp_lg_u32 s{sS}, {r}\ns_cbranch_scc1 L_own{r}")
        for k in range(20): e(f"v_mov_b32 v{ACC+k}, v{ACC+20*r+k}")
        e(f"L_own{r}:")
    srd(e, R0, pOUT, 2048 * 1280)
    e("s_waitcnt vmcnt(0)")
    e(f"buffer_store_dword v{vTAG}, v132, s[{RWS}:{RWS+3}], s{sT+1} offen sc1")
    stamp(e, 10)
    for n in range(5):
        for k in range(2):
            t = ACC + 4 * n + 2 * k
            e(f"v_lshlrev_b32 v134, 16, v{112+2*n+k}\nv_and_b32 v135, 0xffff0000, v{112+2*n+k}")
            e(f"v_lshlrev_b32 v136, 16, v{122+2*n+k}\nv_and_b32 v137, 0xffff0000, v{122+2*n+k}")
            e(f"v_pk_add_f32 v[134:135], v[134:135], v[136:137]\nv_pk_add_f32 v[{t}:{t+1}], v[{t}:{t+1}], v[134:135]")
    def poll(e):
        e(f"buffer_load_dword v20, v133, s[{RWS}:{RWS+3}], s{sFE} offen sc1\ns_waitcnt vmcnt(0)\nv_cmp_ne_u32 vcc, s{sTAG}, v20")
    spin(e, "L_p5x", poll, None, sleep=1)
    for k in range(1, 4):
        e(f"s_add_u32 s{sT}, s{sS}, {k}\ns_and_b32 s{sT}, s{sT}, 3\ns_mul_i32 s{sT}, s{sT}, 20480\ns_add_u32 s{sT}, s{sT}, s{sEXl}")
        for n in range(5):
            t = 140 + ((k - 1) * 5 + n) * 4
            e(f"buffer_load_dwordx4 v[{t}:{t+3}], v{vL4K if n == 4 else vL16}, s[{RWS}:{RWS+3}], s{sT} offen offset:{(n & 3) * 1024}")
    e(f"s_cmp_eq_u32 s2, 0\ns_cselect_b32 s{sT}, {FL}, {0}\ns_cmp_eq_u32 s{sT}, 0\ns_cselect_b32 s{sT}, {WS_END}, s{sT}")
    e(flag_store(sT))
    for n in range(5):
        t = ACC + 4 * n
        for k in range(3):
            u = 140 + (k * 5 + n) * 4
            e.need(f"v[{u}:{u+3}]")
            e(f"v_pk_add_f32 v[{t}:{t+1}], v[{t}:{t+1}], v[{u}:{u+1}]\nv_pk_add_f32 v[{t+2}:{t+3}], v[{t+2}:{t+3}], v[{u+2}:{u+3}]")
        e(f"v_cvt_pk_bf16_f32 v{112+2*n}, v{t}, v{t+1}\nv_cvt_pk_bf16_f32 v{113+2*n}, v{t+2}, v{t+3}")
        e(f"buffer_store_dwordx2 v[{112+2*n}:{113+2*n}], v{vXO}, s[{R0}:{R0+3}], s{sXO} offen offset:{32*n}")

def clone_state(e): return (list(e.vm), list(e.lg))

def build(stop=None):
    FBS.clear(); STUBS.clear()
    e = E(); seg = {}
    def mark(name, n0): seg[name] = e.l[n0:]
    n0 = 0
    if STAMP: e("s_mov_b32 s71, 0\ns_memrealtime s[96:97]\ns_memtime s[98:99]")
    prologue(e); stamp(e, 0); p0_ln(e); stamp(e, 1); p1_pre(e); stamp(e, 2)
    mark("pro", n0)
    e(f"s_cmp_ge_u32 s{sW}, 2\ns_cbranch_scc1 L_p1V")
    st0 = clone_state(e); st1 = {}; bq = {}
    def p1(T):
        e.vm, e.lg = list(st0[0]), list(st0[1])
        n0 = len(e.l); bg = Bg(); p1_main(e, T, bg); tick_dump(e, 0); stamp(e, 3); mark("p1" + T, n0)
        st1[T] = clone_state(e); bq[T] = list(bg.q)
        e(f"s_cmp_ge_u32 s{sU}, 27\ns_cbranch_scc1 L_qhN{T}")
    def qh(T, hasH):
        e.vm, e.lg = list(st1[T][0]), list(st1[T][1])
        n0 = len(e.l); b = Bg(); b.q = list(bq[T]); qh_main(e, T, hasH, b); mark("qh" + "NH"[hasH] + T, n0)
    p1("K"); qh("K", True)
    e("s_branch L_postH\nL_p1V:")
    p1("V"); qh("V", True)
    e("L_postH:")
    n0 = len(e.l)
    tick_dump(e, 1); stamp(e, 4); e("s_nop 7"); q_pack(e); gelu(e, "L_skH"); attn_setup(e); stamp(e, 5); attn_pre(e); stamp(e, 6); mark("postH", n0)
    e("L_attn:")
    segsA, ool = attention(e)
    n0 = len(e.l); e.vm = []
    p5(e); stamp(e, 14); mark("p5", n0)
    e("L_exit:\ns_endpgm")
    e("L_qhNK:"); qh("K", False)
    e("s_branch L_postN\nL_qhNV:"); qh("V", False)
    e("L_postN:")
    n0 = len(e.l)
    tick_dump(e, 1); stamp(e, 4); e(PKL); e("s_nop 7"); q_pack(e); kv_prologue(e, "L_skN"); touch_prefetch(e); attn_setup(e); stamp(e, 5); attn_pre(e); stamp(e, 6); mark("postN", n0)
    e("s_branch L_attn")
    ool()
    seg.update(segsA)
    errs = []
    for T in "KV":
        for Hh in "HN":
            class X: pass
            x = X(); x.l = seg["p1" + T] + seg["qh" + Hh + T]; check_drain_order(x)
    def path(i):
        if i == 0: a = ["fDF"]
        else: a = ["fFF"] + ["FF"] * min(i - 1, 2) + ["DF"]
        a += ["TD"] if i == 7 else ["TF"] + ["XF"] * min(13 - 2 * i, 2) + ["XD"]
        return a + ["XT"]
    for T, Hh, i in (("K", "H", 0), ("V", "N", 1), ("K", "N", 3), ("V", "H", 6), ("K", "H", 7)):
        tr = []
        for nme in ["pro", "p1" + T, "qh" + Hh + T, "post" + Hh] + path(i) + ["p5"]: tr += seg[nme]
        errs += check_trace(tr, f"{T},{Hh},{i}")
    for nme in FBS: errs += check_trace(seg[nme], nme)
    seen = set()
    for x in errs:
        k = x.split("]", 1)[1]
        if k not in seen:
            seen.add(k)
            if len(seen) < 12: print("HAZARD", x)
    print("instructions:", sum(1 for i in e.l if i.kind != "label"), {k: len(vv) for k, vv in seg.items()})
    mac, body = compress([i.t for i in e.l])
    h = header(); k = h.index(".text")
    open("k_full.s", "w").write(h + e.text() + footer())
    return h[:k] + mac + h[k:] + body + footer(), len(seen)

if __name__ == "__main__":
    STAMP = "stamp" in sys.argv
    txt, ne = build()
    out = sys.argv[1] if len(sys.argv) > 1 else "k.s"
    open(out, "w").write(txt)
    print("bytes", len(txt), "hazards", ne)
```

```python
import sys, math, struct
from core import *

NAME = "parallel_sum__compressed_kv_cla__dense_activation_gelu__prompt"
def f32(x): return "0x%08x" % struct.unpack("<I", struct.pack("<f", x))[0]
CS = math.log2(math.e) / math.sqrt(128.0)

OPT = dict(kvst="sc1", norole=1, rate=1, bstep=2, bkv=17, notouch1=1)
for a in sys.argv[1:]:
    if "=" in a:
        k, vv = a.split("=", 1); OPT[k] = int(vv) if vv.lstrip("-").isdigit() else vv.replace("+", " ")
def NT(k): return ' nt' if OPT.get(k) else ''
XS = 0x0010000; KF = 0x0400000; VF = 0x1500000 + OPT.get('vsk', 0); HF = 0x2600000; CF = 0x2E00000; EX = 0x3F00000; FL = 0x5400000; WS_END = 0x5A00000
HS = 524288 + OPT.get('sk', 0)
FXS = FL + 0x8000; FKV = FL + 0x10000; FH = FL + 0x18000; FC = FL + 0x20000; FEX = FL + 0x28000
FS = 128
sTAG = 88
sW, sH, sIDX, sX = 3, 4, 5, 6
pX, pC, pWQ, pWUK, pWUV, pWO, pW1, pB1, pW2, pB2, pOUT, pDBG, pWS = 8, 10, 12, 14, 16, 18, 22, 24, 26, 28, 30, 32, 34
R0, R1, R2, R3, RWS = 36, 40, 44, 48, 52
sT = 56
sU = 64
sM0a, sM0b, sSa, sSb, sSc, sST = 65, 66, 67, 68, 69, 70
sQ = 72
MF = "v_mfma_f32_16x16x32_bf16"

def srd(e, r, p, nbytes, add=None):
    if add is None:
        e(f"s_mov_b32 s{r}, s{p}\ns_and_b32 s{r+1}, s{p+1}, 0xffff")
    else:
        e(f"s_add_u32 s{r}, s{p}, {add}\ns_addc_u32 s{r+1}, s{p+1}, 0\ns_and_b32 s{r+1}, s{r+1}, 0xffff")
    e(f"s_mov_b32 s{r+2}, {nbytes}\ns_mov_b32 s{r+3}, 0x20000")

vL16, vXR, vWQR, vW1R, vXD, vWQD, vW1D, vSC = 0, 1, 2, 10, 14, 18, 20, 21
vTR, vPK = 24, 28
vTAG = 23
sXS = 80
vCD, vWD, vCR, vWR = 96, 100, 104, 106
vWWIN, vCB = 176, (224, 192)
HACC, QACC = 32, 96
XNB = (224, 240)

def prologue(e):
    e(f"""
    s_cmp_ge_u32 s2, {0 if OPT.get("exit0") else 256}
    s_cbranch_scc1 L_exit
    s_load_dwordx16 s[8:23], s[0:1], 0
    s_load_dwordx8 s[24:31], s[0:1], 64
    s_load_dwordx4 s[32:35], s[0:1], 96
    v_lshrrev_b32 v33, 6, v0
    v_and_b32 v32, 63, v0
    v_readfirstlane_b32 s{sW}, v33
    v_lshlrev_b32 v{vL16}, 4, v32
    s_and_b32 s{sX}, s2, 7
    s_lshr_b32 s{sT}, s2, 3
    s_and_b32 s{sT}, s{sT}, 3
    s_lshl_b32 s{sH}, s{sX}, 2
    s_add_u32 s{sH}, s{sH}, s{sT}
    s_lshr_b32 s{sIDX}, s2, 5
    """)
    e(f"""
    s_mul_i32 s{sU}, s{sX}, 3
    s_add_u32 s{sU}, s{sU}, s{sT}
    s_sub_u32 s{sT+1}, s{sX}, s{sIDX}
    s_and_b32 s{sT+1}, s{sT+1}, 7
    s_add_u32 s{sT+1}, s{sT+1}, 24
    s_cmp_eq_u32 s{sT}, 3
    s_cselect_b32 s{sU}, s{sT+1}, s{sU}
    """)
    e(f"""
    v_lshrrev_b32 v37, 3, v32
    v_and_b32 v38, 7, v32
    v_lshrrev_b32 v39, 4, v32
    v_xor_b32 v50, v38, v39
    v_lshlrev_b32 v50, 4, v50
    v_lshl_add_u32 v{vCD}, v37, 10, v50
    v_xor_b32 v51, 64, v{vCD}
    v_add_u32 v{vCD+1}, 7168, v51
    v_add_u32 v{vCD+2}, {2*7168}, v{vCD}
    v_add_u32 v{vCD+3}, {3*7168}, v51
    v_and_b32 v52, 15, v32
    v_lshlrev_b32 v53, 1, v39
    v_xor_b32 v53, v52, v53
    v_lshlrev_b32 v53, 4, v53
    v_lshl_add_u32 v{vWD}, v39, 13, v53
    v_add_u32 v{vWD+1}, {31744}, v{vWD}
    v_xor_b32 v51, 128, v{vWD}
    v_add_u32 v{vWD+2}, {2*31744}, v51
    v_add_u32 v{vWD+3}, {3*31744}, v51
    """)
    e(f"""
    s_lshl_b32 s{sSa}, s{sIDX}, 18
    s_lshl_b32 s{sT+1}, s{sW}, 16
    s_add_u32 s{sSa}, s{sSa}, s{sT+1}
    s_lshl_b32 s{sM0a}, s{sW}, 13
    s_and_b32 s{sT+1}, s{sW}, 1
    s_lshl_b32 s{sSb}, s{sT+1}, 17
    s_lshl_b32 s{sT+2}, s{sH}, 8
    s_add_u32 s{sSb}, s{sSb}, s{sT+2}
    s_lshl_b32 s{sM0b}, s{sW}, 12
    s_add_u32 s{sM0b}, s{sM0b}, 0x10000
    s_waitcnt lgkmcnt(0)
    """)
    srd(e, R1, pC, 2048 * 1024)
    e(f"s_cmp_ge_u32 s{sW}, 2\ns_cselect_b32 s{R2}, s{pWUV}, s{pWUK}\ns_cselect_b32 s{R2+1}, s{pWUV+1}, s{pWUK+1}")
    e(f"s_and_b32 s{R2+1}, s{R2+1}, 0xffff\ns_mov_b32 s{R2+2}, {512*8192}\ns_mov_b32 s{R2+3}, 0x20000")
    for q in range(8): emit_dma(e, p1_cdma(0, q), "c0")
    for u in range(4): emit_dma(e, p1_wdma(0, u), "w0")
    for u in range(4): emit_dma(e, p1_wdma(1, u), "w1")
    for q in range(8): emit_dma(e, p1_cdma(1, q), "c1")
    for u in range(4): emit_dma(e, p1_wdma(2, u), "w2")
    for u in range(4): emit_dma(e, p1_wdma(3, u), "w3")
    e(f"s_add_u32 s{sT+2}, s{pWS}, {FL}\ns_addc_u32 s{sT+3}, s{pWS+1}, 0\ns_load_dword s{sTAG}, s[{sT+2}:{sT+3}], 0")
    srd(e, RWS, pWS, WS_END)
    srd(e, R0, pX, 2048 * 1280)
    srd(e, R3, pB1, 1728 * 2)
    e(f"""
    v_lshrrev_b32 v34, 5, v32
    v_and_b32 v35, 31, v32
    v_mul_u32_u24 v36, 1280, v34
    v_lshl_add_u32 v36, v35, 3, v36
    s_lshl_b32 s{sT}, s2, 2
    s_add_u32 s{sT}, s{sT}, s{sW}
    s_mul_i32 s{sT}, s{sT}, 2560
    v_lshlrev_b32 v94, 3, v39
    s_lshl_b32 s{sT+4}, s{sU}, 7
    """)
    e(f"s_mov_b32 s89, s{sT}\ns_mov_b32 s90, s{sT+4}\nv_mov_b32 v151, v94")
    e(f"""
    s_and_b32 s{sT+2}, s{sH}, 3
    s_lshl_b32 s{sT+2}, s{sT+2}, 2
    s_add_u32 s{sT+2}, s{sT+2}, s{sW}
    s_lshl_b32 s{sT+2}, s{sT+2}, 14
    s_lshl_b32 s{sT+3}, s{sIDX}, 18
    s_add_u32 s{sT+2}, s{sT+2}, s{sT+3}
    v_lshlrev_b32 v140, 10, v52
    v_lshl_add_u32 v141, v39, 7, v140
    v_and_b32 v142, 1, v39
    v_lshl_add_u32 v142, v142, 7, v140
    s_mul_i32 s{sT+3}, s{sIDX}, 48
    s_and_b32 s{sT+4}, s{sW}, 1
    s_mul_i32 s{sT+4}, s{sT+4}, 24
    s_add_u32 s{sT+3}, s{sT+3}, s{sT+4}
    s_add_u32 s{sT+3}, s{sT+3}, 128
    s_lshl_b32 s{sT+3}, s{sT+3}, 13
    s_lshl_b32 s{sT+4}, s{sH}, 8
    s_add_u32 s{sT+3}, s{sT+3}, s{sT+4}
    v_and_b32 v144, 1, v32
    v_lshlrev_b32 v144, 7, v144
    v_min_u32 v143, 47, v32
    v_lshrrev_b32 v143, 1, v143
    v_lshl_add_u32 v143, v143, 13, v144
    """)
    e(f"s_mov_b32 s91, s{sT+2}\ns_mov_b32 s92, s{sT+3}")
    e(f"""
    s_mul_i32 s{sT+2}, s{sIDX}, 80
    s_mul_i32 s{sT+3}, s{sW}, 20
    s_add_u32 s{sT+2}, s{sT+2}, s{sT+3}
    s_lshl_b32 s{sT+3}, s{sT+2}, 13
    s_add_u32 s{sT+3}, s{sT+3}, s{sT+4}
    s_mul_i32 s{sT+2}, s{sT+2}, 3456
    s_lshl_b32 s{sT+4}, s{sU}, 7
    s_add_u32 s{sT+2}, s{sT+2}, s{sT+4}
    v_min_u32 v140, 39, v32
    v_lshrrev_b32 v140, 1, v140
    v_lshl_add_u32 v140, v140, 13, v144
    v_min_u32 v145, 19, v32
    v_mul_u32_u24 v145, 3456, v145
    """)
    srd(e, 84, pWQ, 640 * 8192)
    e(f"s_mov_b32 s93, s{sT+3}\ns_mov_b32 s94, s{sT+2}")

CSLOT = (0, 32768, 131072)
vCR2 = 124
def p1_cdma(j, q):
    setup = []
    if q % 4 == 0:
        setup = [f"s_add_u32 m0, s{sM0a}, {(j & 1) * 32768 + (q >> 2) * 4096}", f"s_add_u32 s{sT}, s{sSa}, {j * 128 + (q >> 2) * 32768}"]
    return setup, f"buffer_load_dwordx4 v{vCD + (q & 3)}, s[{R1}:{R1+3}], s{sT} offen offset:{(q & 3) * 1024}{NT('cnt')} lds"
def p1_wslot(sidx): return ((sidx + 2) & 3) * 16384
def p1_wdma(sidx, u):
    setup = []
    if u == 0:
        setup = [f"s_add_u32 m0, s{sM0b}, {p1_wslot(sidx)}", f"s_add_u32 s{sT+1}, s{sSb}, {sidx * 32 * 8192}"]
    return setup, f"buffer_load_dwordx4 v{vWD + u}, s[{R2}:{R2+3}], s{sT+1} offen offset:{u * 1024}{NT('wnt')} lds"

def emit_dma(e, pair, tag):
    su, d = pair
    for x in su: e(x)
    if su: e("s_nop 0")
    e(d, tag=tag)

def reduce32(r, t):
    L = []
    for mod in ("quad_perm:[1,0,3,2]", "quad_perm:[2,3,0,1]", "row_half_mirror", "row_mirror"):
        L += ["s_nop 0", f"v_add_f32_dpp v{r}, v{r}, v{r} {mod} row_mask:0xf bank_mask:0xf"]
    return L + [f"v_mov_b32 v{t}, v{r}", "s_nop 0", f"v_permlane16_swap_b32 v{r}, v{t}", f"v_add_f32 v{r}, v{r}, v{t}"]

def ln_ops():
    L = []; U = 50
    for k in range(10): L += [f"v_lshlrev_b32 v{U+2*k}, 16, v{40+k}", f"v_and_b32 v{U+1+2*k}, 0xffff0000, v{40+k}"]
    L += [f"v_add_f32 v70, v{U}, v{U+1}"] + [f"v_add_f32 v70, v70, v{U+k}" for k in range(2, 20)]
    L += reduce32(70, 71) + [f"v_mul_f32 v70, {f32(1/640)}, v70"]
    L += [f"v_sub_f32 v{U+k}, v{U+k}, v70" for k in range(20)]
    L += [f"v_mul_f32 v72, v{U}, v{U}"] + [f"v_fmac_f32 v72, v{U+k}, v{U+k}" for k in range(1, 20)]
    L += reduce32(72, 73)
    L += [f"v_mov_b32 v73, {f32(1e-5)}", f"v_fmac_f32 v73, {f32(1/640)}, v72", "v_rsq_f32 v73, v73", f"v_mul_f32 v73, {f32(CS)}, v73"]
    L += [f"v_mul_f32 v{U+k}, v{U+k}, v73" for k in range(20)]
    for k in range(5):
        L += [f"v_cvt_pk_bf16_f32 v{40+2*k}, v{U+4*k}, v{U+4*k+1}", f"v_cvt_pk_bf16_f32 v{41+2*k}, v{U+4*k+2}, v{U+4*k+3}", f"ds_write_b64 v76, v[{40+2*k}:{41+2*k}] offset:{k*2048}"]
    return L

def p0_ln(e):
    e(f"""
    v_lshrrev_b32 v54, 1, v52
    v_xor_b32 v54, v54, v39
    v_lshlrev_b32 v54, 4, v54
    v_lshl_add_u32 v54, v52, 7, v54
    s_and_b32 s{sT+2}, s{sW}, 1
    s_lshl_b32 s{sT+2}, s{sT+2}, 14
    v_add_u32 v{vCR}, s{sT+2}, v54
    v_xor_b32 v{vCR+1}, 64, v{vCR}
    v_lshrrev_b32 v55, 2, v52
    v_and_b32 v56, 1, v39
    v_lshl_add_u32 v56, v56, 2, v55
    v_lshlrev_b32 v56, 5, v56
    v_and_b32 v57, 3, v32
    v_lshlrev_b32 v57, 3, v57
    v_lshl_add_u32 v57, v55, 8, v57
    v_lshl_add_u32 v58, v39, 11, v57
    s_lshr_b32 s{sT+2}, s{sW}, 1
    s_lshl_b32 s{sT+2}, s{sT+2}, 13
    s_add_u32 s{sT+2}, s{sT+2}, 0x10000
    v_add_u32 v58, s{sT+2}, v58
    v_mul_u32_u24 v59, 3072, v39
    v_add_u32 v59, v59, v57
    v_add_u32 v59, {96*1024}, v59
    """)
    for i in range(8):
        e(f"v_xor_b32 v60, {32*i}, v56\nv_add_u32 v{vWR+i}, v60, v58\nv_add_u32 v{vWQR+i}, v60, v59")
    e(f"""
    v_lshrrev_b32 v60, 1, v55
    v_and_b32 v61, 1, v39
    v_lshl_add_u32 v60, v61, 1, v60
    v_lshlrev_b32 v60, 5, v60
    v_and_b32 v61, 3, v32
    v_lshlrev_b32 v61, 3, v61
    v_lshl_add_u32 v61, v55, 7, v61
    v_mul_u32_u24 v62, 3072, v39
    v_add3_u32 v61, v61, v62, 0
    v_add_u32 v61, {96*1024 + 2048}, v61
    """)
    for i in range(4):
        e(f"v_xor_b32 v62, {32*i}, v60\nv_add_u32 v{vW1R+i}, v62, v61")
    e(f"s_waitcnt lgkmcnt(0)\ns_mul_i32 s{sTAG}, s{sTAG}, 0x9E3779B1\ns_add_u32 s{sTAG}, s{sTAG}, 0x7F4A7C15")
    e(f"""
    v_lshrrev_b32 v88, 1, v35
    v_lshlrev_b32 v88, 7, v88
    v_and_b32 v89, 1, v35
    v_lshl_add_u32 v88, v89, 3, v88
    v_lshl_add_u32 v88, v34, 4, v88
    s_lshl_b32 s{sT+2}, s{sW}, 5
    s_add_u32 s{sT+2}, s{sT+2}, 0x20000
    v_add_u32 v76, s{sT+2}, v88
    """)
    e(f"""
    v_lshlrev_b32 v126, 8, v37
    v_lshl_add_u32 v126, v38, 4, v126
    s_lshr_b32 s{sXS}, s2, 1
    s_mul_i32 s{sXS}, s{sXS}, 20480
    s_and_b32 s{sT+3}, s2, 1
    s_lshl_b32 s{sT+3}, s{sT+3}, 7
    s_add_u32 s{sXS}, s{sXS}, s{sT+3}
    s_lshl_b32 s{sT+3}, s{sW}, 11
    s_add_u32 s{sXS}, s{sXS}, s{sT+3}
    s_add_u32 s{sXS}, s{sXS}, {XS}
    s_add_u32 s{sXS+1}, s{sXS}, 8192
    s_add_u32 s{sXS+2}, s{sXS}, 16384
    s_cmp_ge_u32 s{sW}, 2
    s_cselect_b32 s{sXS+2}, {WS_END}, s{sXS+2}
    s_lshl_b32 s{sT+5}, s{sW}, 10
    s_add_u32 s{sT+5}, s{sT+5}, 0x20000
    v_add_u32 v77, s{sT+5}, v{vL16}
    """)
    e(f"""
    s_lshl_b32 s{sQ}, s{sH}, 3
    s_add_u32 s{sQ}, s{sQ}, s{sIDX}
    s_mul_i32 s{sQ}, s{sQ}, {FS}
    s_add_u32 s{sQ}, s{sQ}, {FKV}
    s_lshl_b32 s{sQ+1}, s{sIDX}, 5
    s_add_u32 s{sQ+1}, s{sQ+1}, s{sH}
    s_mul_i32 s{sQ+1}, s{sQ+1}, {FS}
    s_add_u32 s{sQ+1}, s{sQ+1}, {FH}
    s_mul_i32 s{sQ+2}, s2, {FS}
    s_add_u32 s{sQ+2}, s{sQ+2}, {FXS}
    s_sub_u32 s{sQ+3}, s{sU}, 27
    s_mul_i32 s{sT+5}, s{sX}, 5
    s_add_u32 s{sQ+3}, s{sQ+3}, s{sT+5}
    v_mov_b32 v91, 0
    v_mov_b32 v92, 0x10000000
    v_lshl_add_u32 v93, v33, 6, v32
    v_cmp_eq_u32 vcc, 0, v93
    v_mov_b32 v{vTAG}, s{sTAG}
    v_and_b32 v127, 15, v32
    v_cndmask_b32 v{vSC}, v92, v91, vcc
    s_lshl_b32 s{sT+5}, s{sIDX}, 4
    s_sub_u32 s{sT+4}, 240, s{sT+5}
    v_and_b32 v93, 16, v32
    v_cmp_eq_u32 vcc, 0, v93
    v_mov_b32 v91, s{sT+5}
    v_mov_b32 v92, s{sT+4}
    v_cndmask_b32 v91, v92, v91, vcc
    v_add_u32 v127, v127, v91
    v_lshlrev_b32 v127, 7, v127
    """)

def p1_acc(T, i, j):
    if OPT.get("contig"):
        if T == "K": return 8 * (8 * (j >> 1) + 2 * (i >> 1) + (j & 1)) + 4 * (i & 1)
        return 8 * (8 * (j >> 1) + i) + 4 * (j & 1)
    if T == "K": return 8 * (8 * (i >> 1) + 4 * (j & 1) + (j >> 1)) + 4 * (i & 1)
    return 32 * i + 4 * j
def p1_units():
    U = []
    for n in range(32):
        off = n * 1024 if OPT.get("contig") else (n & 3) * 8192 + (n >> 2) * 1024
        ins = []
        for k in range(4):
            tr = vTR + 2 * (k & 1); src = 8 * n + 2 * k
            ins += [f"v_accvgpr_read_b32 v{tr}, a{src}", f"v_accvgpr_read_b32 v{tr+1}, a{src+1}", f"v_cvt_pk_bf16_f32 v{vPK+k}, v{tr}, v{tr+1}"]
        ins.insert(6, f"s_add_u32 s{sT+7}, s{sST}, {off & ~4095}")
        if OPT["kvst"] != "skip": ins.append((f"buffer_store_dwordx4 v[{vPK}:{vPK+3}], v{vL16}, s[{RWS}:{RWS+3}], s{sT+7} offen offset:{off & 4095} {OPT['kvst']}", "kv"))
        U.append(ins)
    return U

def _kind(y):
    if callable(y): return "call"
    if isinstance(y, tuple) and y[0] == "BG": y = y[1]
    return I(y[0] if isinstance(y, tuple) else y).kind
class Bg:
    def __init__(self): self.q = []
    def push(self, ins): self.q += list(ins)
    def place(self, fill, g0, g1, maxv=1, step=1):
        for g in range(g0, g1, step):
            n = 0
            while self.q and n < maxv:
                x = self.q[0]; t = x[0] if isinstance(x, tuple) else x
                k = I(t).kind if not callable(t) else "call"
                if k in ("vms", "vml") and (n > 0 or any(_kind(y) in ("vml", "vms") for y in fill[g])): break
                fill[g].append(("BG", self.q.pop(0)))
                if k in ("salu", "nop"): continue
                n += 1
                if k in ("vms", "vml"): break
    def flush(self, e):
        for x in self.q:
            t, tag = x if isinstance(x, tuple) else (x, None)
            q = I(t); e.need(q.rd | q.wr); e(t, tag)
        self.q = []

def run_gaps(e, mf, fill, nxt=None):
    f2 = []
    for g in range(len(mf)):
        a = [x for x in fill[g] if not (isinstance(x, tuple) and x[0] == "BG")]
        b = [x[1] for x in fill[g] if isinstance(x, tuple) and x[0] == "BG"]
        if b:
            def mk(b):
                def f(e):
                    for x in b:
                        t, tag = x if isinstance(x, tuple) else (x, None)
                        q = I(t); e.need(q.rd | q.wr); e(t, tag)
                f.last = True
                return f
            a.append(mk(b))
        f2.append(a)
    e.gaps(mf, f2, nxt)

def put_dma(fill, g, pair, tag):
    su, d = pair
    for x in reversed(su): fill[g - 1].append(x)
    fill[g].append((d, tag))

def qh_wslot(sidx): return ((sidx + 3) % 5) * 12288
def qh_dmas(sidx, hasH, d=0):
    L = []
    u32 = lambda x: x & 0xffffffff
    for j in range(4):
        su = [f"s_add_u32 m0, s{sM0a}, {u32((sidx & 3) * 16384 + d * 8192)}", f"s_mov_b32 s{sT}, {XS + sidx * 1024 + d * 40960}"] if j == 0 else []
        L.append((su, f"buffer_load_dwordx4 v{vXD + j}, s[{RWS}:{RWS+3}], s{sT} offen offset:{j * 1024} lds"))
    for u in range(2):
        su = [f"s_add_u32 m0, s{sM0b}, {u32(qh_wslot(sidx) + d * 6144)}", f"s_mov_b32 s{sT+1}, {sidx * 32 * 8192 + d * 131072}"] if u == 0 else []
        L.append((su, f"buffer_load_dwordx4 v{vWQD + u}, s[{R0}:{R0+3}], s{sT+1} offen offset:{u * 1024} lds"))
    if hasH:
        L.append(([f"s_mov_b32 s{sT+2}, {sidx * 32 * 3456 + d * 55296}"], f"buffer_load_dwordx4 v{vW1D}, s[{R1}:{R1+3}], s{sT+2} offen offset:2048 lds"))
    return L
def qh_xread(sidx, j):
    b = XNB[sidx & 1] + 4 * j
    return f"ds_read_b128 v[{b}:{b+3}], v{vXR} offset:{(sidx & 3) * 16384 + j * 1024}"
def qh_wread(sidx, i, n):
    r = (n & 3) * 4
    if i < 8: a, second = vWQR + i, 1024
    else: a, second = vW1R + i - 8, 512
    o = qh_wslot(sidx)
    return [f"ds_read_b64_tr_b16 a[{r}:{r+1}], v{a} offset:{o}", f"ds_read_b64_tr_b16 a[{r+2}:{r+3}], v{a} offset:{o + second}"]

def spin(e, lab, pollA, cond, limit=200000, sleep=2):
    e(f"s_mov_b32 s{sT+6}, {limit}\n{lab}:")
    pollA(e)
    e(f"s_cbranch_vccz {lab}_ok\ns_sub_u32 s{sT+6}, s{sT+6}, 1\ns_cmp_eq_u32 s{sT+6}, 0\ns_cbranch_scc1 {lab}_ok\ns_sleep {sleep}\ns_branch {lab}\n{lab}_ok:")

def qh_setup(e):
    L = []
    L += [f"s_lshl_b32 s{sQ+4}, s{sIDX}, 3", f"s_add_u32 s{sQ+4}, s{sQ+4}, s{sW}", f"s_mul_i32 s{sQ+4}, s{sQ+4}, 20480",
          f"s_sub_u32 s{sQ+5}, 15, s{sIDX}", f"s_lshl_b32 s{sQ+5}, s{sQ+5}, 3", f"s_add_u32 s{sQ+5}, s{sQ+5}, s{sW}", f"s_mul_i32 s{sQ+5}, s{sQ+5}, 20480"]
    L += [f"v_add_u32 v{vXD}, s{sQ+4}, v{vL16}", f"v_add_u32 v{vXD+1}, {4*20480 - 1024}, v{vXD}",
          f"v_add_u32 v{vXD+2}, s{sQ+5}, v{vL16}", f"v_add_u32 v{vXD+3}, {4*20480 - 3072}, v{vXD+2}", f"v_subrev_u32 v{vXD+2}, 2048, v{vXD+2}"]
    return L

STAMP = False
TS = FL + 0x40000
def stamp(e, k):
    if not STAMP or (OPT.get("lite") and k not in (0, 14)): return
    if k: e("s_memrealtime s[96:97]\ns_memtime s[98:99]")
    e(f"""s_waitcnt lgkmcnt(0)
    s_lshl_b32 s97, s2, 2
    s_add_u32 s97, s97, s{sW}
    s_lshl_b32 s97, s97, 8
    s_add_u32 s97, s97, {TS + 8 * k}
    s_mov_b64 s[100:101], exec
    s_mov_b64 exec, 1
    {"v_mov_b32 v122" if k == 3 else "v_accvgpr_write_b32 a254"}, s96
    {"v_mov_b32 v123" if k == 3 else "v_accvgpr_write_b32 a255"}, s98
    s_nop 1
    buffer_store_dwordx2 {"v[122:123]" if k == 3 else "a[254:255]"}, off, s[{RWS}:{RWS+3}], s97
    s_mov_b64 exec, s[100:101]
    s_nop 3""")

def header():
    return f"""; @launch grid=(256,1,1) block=(256,1,1) lds=163840
.amdgcn_target "amdgcn-amd-amdhsa--gfx950"
.text
.globl {NAME}_kernel
.p2align 8
.type {NAME}_kernel,@function
{NAME}_kernel:
"""
def footer():
    return f"""
.section .rodata,"a"
.p2align 6
.amdhsa_kernel {NAME}_kernel
  .amdhsa_next_free_vgpr 512
  .amdhsa_next_free_sgpr 102
  .amdhsa_accum_offset 256
  .amdhsa_group_segment_fixed_size 0
  .amdhsa_kernarg_size 112
  .amdhsa_user_sgpr_count 2
  .amdhsa_user_sgpr_kernarg_segment_ptr 1
  .amdhsa_system_sgpr_workgroup_id_x 1
.end_amdhsa_kernel
"""

def grp(L):
    def f(e):
        for x in L: e(x)
    return f
vTK = 22
def tick_pre(e):
    if OPT.get("ticks"): e("s_memtime s[96:97]")
def tick_post(e):
    if OPT.get("ticks"):
        e(f"s_waitcnt lgkmcnt(0)\ns_lshl_b64 exec, 1, s71\nv_mov_b32 v{vTK}, s96\ns_mov_b64 exec, -1\ns_add_u32 s71, s71, 1")
def tick_dump(e, k):
    if OPT.get("ticks"):
        e(f"""s_lshl_b32 s97, s2, 2
        s_add_u32 s97, s97, s{sW}
        s_lshl_b32 s97, s97, 12
        s_add_u32 s97, s97, {FL + 0x100000 + 1024 * k}
        buffer_store_dword v{vTK}, v{vL16}, s[{RWS}:{RWS+3}], s97 offen
        s_mov_b32 s71, 0
        s_nop 1""")
def bar(vmtags=(), lg0=True):
    def f(e):
        tick_pre(e)
        e.need(vmtags=vmtags, lg0=lg0); e("s_barrier")
        tick_post(e)
    return f

def p1_pre(e):
    e(f"""
    s_mul_i32 s{sST}, s{sH}, {HS}
    s_lshl_b32 s{sT+2}, s{sIDX}, 16
    s_add_u32 s{sST}, s{sST}, s{sT+2}
    s_and_b32 s{sT+2}, s{sW}, 1
    s_lshl_b32 s{sT+2}, s{sT+2}, 15
    s_add_u32 s{sST}, s{sST}, s{sT+2}
    s_cmp_ge_u32 s{sW}, 2
    s_cselect_b32 s{sT+2}, {VF-KF}, 0
    s_add_u32 s{sST}, s{sST}, s{sT+2}
    s_add_u32 s{sST}, s{sST}, {KF}
    s_lshl_b32 s{sT+2}, s{sW}, 12
    v_add_u32 v{vXR}, s{sT+2}, v{vL16}
    """)
    e(f"""
    s_and_b32 s{sT+2}, s{sW}, 1
    s_lshl_b32 s{sT+3}, s{sT+2}, 7
    v_xor_b32 v94, s{sT+3}, v{vWD}
    s_lshl_b32 s{sT+3}, s{sW}, 16
    s_lshl_b32 s{sT+4}, s{sH}, 8
    s_add_u32 s{sT+3}, s{sT+3}, s{sT+4}
    v_add_u32 v{vWQD}, s{sT+3}, v94
    v_add_u32 v{vWQD+1}, 31744, v{vWQD}
    """)
    e(f"""
    v_and_b32 v94, 1, v39
    v_lshlrev_b32 v94, 1, v94
    s_lshl_b32 s{sT+3}, s{sT+2}, 2
    v_or_b32 v94, s{sT+3}, v94
    v_xor_b32 v94, v94, v38
    v_lshlrev_b32 v94, 4, v94
    v_mul_u32_u24 v95, 3456, v37
    v_add_u32 v94, v94, v95
    s_mul_i32 s{sT+3}, s{sW}, {8*3456}
    s_lshl_b32 s{sT+4}, s{sU}, 7
    s_add_u32 s{sT+3}, s{sT+3}, s{sT+4}
    v_add_u32 v{vW1D}, s{sT+3}, v94
    """)
    for x in qh_setup(e): e(x)
    e.need(vmtags=("c0", "w0"), lg0=True)
    e("s_barrier")
    for j in range(8): e(p1_cread(0, j))
    for n in range(2):
        for x in p1_wread(n): e(x)

def hacc(ft, j): return HACC + (j * 2 + (ft >> 1)) * 8 + (ft & 1) * 4
def qacc(i, j): return QACC + (j * 4 + (i >> 1)) * 8 + (i & 1) * 4
def bias_init():
    L = []
    for ft in range(4):
        d = hacc(ft, 3)
        for k in range(2):
            L += [f"v_lshlrev_b32 v{d+2*k}, 16, v{114+2*ft+k}", f"v_and_b32 v{d+2*k+1}, 0xffff0000, v{114+2*ft+k}",
                  f"v_mul_f32 v{d+2*k}, {f32(CS)}, v{d+2*k}", f"v_mul_f32 v{d+2*k+1}, {f32(CS)}, v{d+2*k+1}"]
    return L

def p1_cread(sidx, j):
    b = vCB[sidx & 1] + 4 * j
    return f"ds_read_b128 v[{b}:{b+3}], v{vCR + (sidx & 1)} offset:{((sidx >> 1) & 1) * 32768 + j * 2048}"
def p1_wread(n):
    sidx, i = divmod(n, 8); r = vWWIN + 4 * (n & 3); o = p1_wslot(sidx)
    return [f"ds_read_b64_tr_b16 v[{r}:{r+1}], v{vWR+i} offset:{o}", f"ds_read_b64_tr_b16 v[{r+2}:{r+3}], v{vWR+i} offset:{o+1024}"]

def async_check(lab, reg, reload):
    def f(e):
        e.need(f"v{reg}")
        e(f"v_cmp_ne_u32 vcc, s{sTAG}, v{reg}\ns_cbranch_vccz {lab}_ok")
        sv, sl = list(e.vm), list(e.lg)
        def poll(e):
            e(reload); e("s_waitcnt vmcnt(0)"); e(f"v_cmp_ne_u32 vcc, s{sTAG}, v{reg}")
        spin(e, lab, poll, None)
        e.vm, e.lg = sv, sl
    return f
def flag_store(sreg): return f"buffer_store_dword v{vTAG}, v{vSC}, s[{RWS}:{RWS+3}], s{sreg} offen sc1"

PARK = {0: 20, 1: 28, 2: 16, 3: 24}
def park_units():
    L = []
    for n in (2, 3, 0, 1):
        for k in range(4):
            tr = vTR + 2 * (k & 1); src = 8 * n + 2 * k
            L += [f"v_accvgpr_read_b32 v{tr}, a{src}", f"v_accvgpr_read_b32 v{tr+1}, a{src+1}", f"v_cvt_pk_bf16_f32 v{vPK+k}, v{tr}, v{tr+1}"]
        L += [f"v_accvgpr_write_b32 a{PARK[n]+k}, v{vPK+k}" for k in range(4)]
    return L
def parked_stores():
    L = []
    for n in range(4):
        L += [f"s_add_u32 s{sT+7}, s{sST}, {n * 8192}", (f"buffer_store_dwordx4 a[{PARK[n]}:{PARK[n]+3}], v{vL16}, s[{RWS}:{RWS+3}], s{sT+7} offen sc1", "kv")]
    return L

def p1_main(e, T, bg):
    fills = [[[] for _ in range(64)] for _ in range(16)]
    LNE = OPT.get("lne", 6)
    def pos(ep):
        p = [(ep - 1, g) for g in (50, 54, 58, 62)] + [(ep, g) for g in (range(2, 47, 4) if ep < 15 else range(2, 30, 3))]
        return [x for x in p if 0 <= x[0] < 16]
    for ep in range(0, 16):
        L = []
        if ep & 1 and (ep + 3) // 2 < 8: L += [(p1_cdma((ep + 3) // 2, q), f"c{(ep+3)//2}") for q in range(8)]
        if ep >= 1 and ep + 3 < 16: L += [(p1_wdma(ep + 3, u), f"w{ep+3}") for u in range(4)]
        if ep == 0 and not OPT.get("notouch1"):
            L += [(([], f"buffer_load_dword v146, v141, s[{R1}:{R1+3}], s91 offen offset:256"), "tc"), (([], f"buffer_load_dword v147, v143, s[{R2}:{R2+3}], s92 offen"), "tc"),
                  (([], f"buffer_load_dword v148, v142, s[{R1}:{R1+3}], s91 offen offset:768"), "tc")]
        if ep == OPT.get("xe", 0):
            L += [(([], f"buffer_load_dwordx2 v[{40+2*k}:{41+2*k}], v36, s[{R0}:{R0+3}], s89 offen offset:{256*k}"), "x") for k in range(5)]
        if ep == 2:
            L += [(([], f"buffer_load_dwordx2 v[{114+2*ft}:{115+2*ft}], v151, s[{R3}:{R3+3}], s90 offen offset:{32*ft}"), "b1") for ft in range(4)]
        if ep == OPT.get("te", 2):
            L += [(([], f"buffer_load_dword v149, v140, s[84:87], s93 offen"), "tc"),
                  (([grp([f"s_mov_b32 s84, s{pW1}", f"s_and_b32 s85, s{pW1+1}, 0xffff", f"s_mov_b32 s86, {640*3456}", "s_mov_b32 s87, 0x20000"])], f"buffer_load_dword v150, v145, s[84:87], s94 offen"), "tc")]
        if ep == LNE: L += [(([], f"buffer_store_dwordx4 v[{128+4*k}:{131+4*k}], v126, s[{RWS}:{RWS+3}], s{sXS+k} offen sc1"), "xs") for k in range(3)]
        if ep == LNE + 2: L += [(([], flag_store(sQ + 2)), "fl")]
        if ep == 11: L += [(([f"s_mov_b32 s{sT+5}, {FXS}"], f"buffer_load_dword v122, v127, s[{RWS}:{RWS+3}], s{sT+5} offen sc1"), "pa")]
        if ep == 13: L += [(d, "q0") for d in qh_dmas(0, True)]
        if ep == 14: L += [(d, "q1") for d in qh_dmas(1, True)]
        if ep == 15: L += [(d, "q2") for d in qh_dmas(2, True)] + [(d, "q3") for d in qh_dmas(3, True)]
        P = pos(ep); assert len(L) <= len(P)
        for (d, tag), (ks, g) in zip(L, P): put_dma(fills[ks], g, d, tag)
    for sidx in range(16):
        f = fills[sidx]
        for i in range(8):
            n = 8 * sidx + i + 2
            if n < 128:
                a, b = p1_wread(n); f[8 * i].append(a); f[8 * i + 1].append(b)
        if sidx < 15:
            for j in range(8): f[3 + 4 * j].append(p1_cread(sidx + 1, j))
            tags = [f"w{sidx+1}", f"c{(sidx+2)>>1}"]
            if sidx == LNE + 1: tags.append("xs")
            if sidx == 12:
                f[47].append(async_check(f"L_sa{T}", 122, f"buffer_load_dword v122, v127, s[{RWS}:{RWS+3}], s{sT+5} offen sc1"))
            f[47].append(bar(tags))
        else:
            f[47].append(bar(["q0", "q1"]))
            for j in range(4): f[49 + 2 * j].append(qh_xread(0, j))
            for n in range(3):
                a, b = qh_wread(0, n, n); f[56 + 2 * n].append(a); f[57 + 2 * n].append(b)
    for k, x in enumerate(bias_init()): fills[8 + (k >> 4)][32 + (k & 15) + ((k & 15) == 15)].append(x)
    lb = Bg(); lb.push(ln_ops())
    for ks in range(LNE - 4, LNE): lb.place(fills[ks], 0, 64 if ks < LNE - 1 else 44)
    assert not lb.q, len(lb.q)
    for k in range(3): fills[LNE - 1][51 + 4 * k].append(f"ds_read_b128 v[{128+4*k}:{131+4*k}], v77 offset:{4096*k}")
    qs = [f"s_mov_b32 s{R0}, s{pWQ}", f"s_and_b32 s{R0+1}, s{pWQ+1}, 0xffff", f"s_mov_b32 s{R0+2}, {640*8192}", f"s_mov_b32 s{R0+3}, 0x20000",
          f"s_sub_u32 s{R1}, s{pW1}, 2048", f"s_subb_u32 s{R1+1}, s{pW1+1}, 0", f"s_and_b32 s{R1+1}, s{R1+1}, 0xffff",
          f"s_cmp_lt_u32 s{sU}, 27", f"s_cselect_b32 s{R1+2}, {640*3456 + 2048}, 0", f"s_mov_b32 s{R1+3}, 0x20000",
          f"s_lshl_b32 s{sM0a}, s{sW}, 12", f"s_mul_i32 s{sM0b}, s{sW}, 3072", f"s_add_u32 s{sM0b}, s{sM0b}, {96*1024}"]
    fills[12][4].append(grp(qs[:4])); fills[12][10].append(grp(qs[4:10])); fills[12][14].append(grp(qs[10:]))
    if OPT.get("contig"):
        U = p1_units()
        bg.push(U[0] + U[1]); bg.place(fills[15], 24, 46, maxv=2); assert not bg.q
        bg.push(U[2] + U[3]); bg.place(fills[15], 48, 64, maxv=2)
        bg.push([x for u in U[4:] for x in u])
    elif T == "K" or OPT.get("norole"):
        bg.push([x for u in p1_units() for x in u])
        bg.place(fills[15], 24, 46, maxv=2); bg.place(fills[15], 48, 64, maxv=2)
    else:
        bg.push(park_units())
        bg.place(fills[15], 19, 46, maxv=2); bg.place(fills[15], 48, 55, maxv=2)
        assert not bg.q
        bg.push(parked_stores() + [x for u in p1_units()[4:] for x in u])
    mfs = []
    for sidx in range(16):
        mf = []
        for i in range(8):
            for j in range(8):
                d = p1_acc(T, i, j); w = vWWIN + 4 * ((8 * sidx + i) & 3); c = vCB[sidx & 1] + 4 * j
                A, B = (w, c) if T == "K" else (c, w)
                mf.append(f"{MF} a[{d}:{d+3}], v[{A}:{A+3}], v[{B}:{B+3}], " + ("0" if sidx == 0 else f"a[{d}:{d+3}]"))
        mfs.append(mf)
    for sidx in range(16):
        run_gaps(e, mfs[sidx], fills[sidx], mfs[sidx + 1][0] if sidx < 15 else None)

vKVD = vXR
sKo, sVo, sMK, sMV = 76, 77, 78, 79
def kv_dma(kind, static_pair=None):
    so, mb, rs = (sKo, sMK, R2) if kind == "K" else (sVo, sMV, R3)
    L = []
    for k in range(4):
        su = []
        if k == 0:
            su = [f"s_add_u32 m0, s{sT+3}, s{mb}", f"s_and_b32 s{sT+3}, s{so}, 0xc000"]
        L.append((su, f"buffer_load_dwordx4 v{vKVD}, s[{rs}:{rs+3}], s{so} offen offset:{k*1024} lds"))
    return L, f"s_add_u32 s{so}, s{so}, 16384"

def qh_main(e, T, hasH, bg):
    NI = 12 if hasH else 8; NG = 4 * NI; LA = 3
    NA = OPT.get("na", 7); BKV = OPT.get("bkv", 16); RATE = OPT.get("rate", 2) if hasH else 2
    fills = [[[] for _ in range(NG)] for _ in range(20)]
    bp = NG - 4 * LA - 1
    st = 3 if hasH else 2
    def pos(ep):
        p = [(ep - 1, g) for g in range(bp + 2, NG, st)] + [(ep, g) for g in range(5 if ep == 0 else 2, bp, st)]
        return [x for x in p if 0 <= x[0] < 20]
    pend = []; lastdma = None
    for ep in range(0, 16):
        if OPT.get("norole"):
            a = qh_dmas(ep + 4, hasH)
            pend += [(d, f"q{ep+4}x") for d in a[:4]] + [(d, f"q{ep+4}") for d in a[4:]]
        elif (ep < NA) == (T == "V"):
            a, b = qh_dmas(ep + 4, hasH), qh_dmas(ep + 4, hasH, 1 if T == "K" else -1)
            pend += [(d, f"q{ep+4}x") for d in a[:4] + b[:4]] + [(d, f"q{ep+4}") for d in a[4:] + b[4:]]
        for ks, g in pos(ep):
            if pend:
                d, tag = pend.pop(0); put_dma(fills[ks], g, d, tag); lastdma = (ks, g)
    assert not pend
    for sidx in range(20):
        f = fills[sidx]
        for i in range(NI):
            s2, i2 = divmod(NI * sidx + i + LA, NI)
            if s2 < 20:
                a, b = qh_wread(s2, i2, NI * sidx + i + LA); f[4 * i].append(a); f[4 * i + 1].append(b)
        if sidx < 19:
            for j in range(4): f[3 + 4 * j].append(qh_xread(sidx + 1, j))
            tags = [f"q{sidx+1}", f"q{sidx+2}x"]
            if sidx + 2 <= 3: tags.append(f"q{sidx+2}")
            if sidx == BKV: tags.append("kv")
            f[bp].append(bar(tags))
    fills[BKV][bp + 2].append((flag_store(sQ), "fl"))
    qs = [f"s_mul_i32 s{sT+4}, s{sH}, {HS}", f"s_add_u32 s{sT+5}, s{sT+4}, {KF}", f"s_add_u32 s{R2}, s{pWS}, s{sT+5}", f"s_addc_u32 s{R2+1}, s{pWS+1}, 0",
          f"s_and_b32 s{R2+1}, s{R2+1}, 0xffff", f"s_sub_u32 s{R2+2}, 16, s{sIDX}", f"s_lshl_b32 s{R2+2}, s{R2+2}, 15", f"s_mov_b32 s{R2+3}, 0x20000",
          f"s_add_u32 s{sT+5}, s{sT+4}, {VF}", f"s_add_u32 s{R3}, s{pWS}, s{sT+5}", f"s_addc_u32 s{R3+1}, s{pWS+1}, 0",
          f"s_and_b32 s{R3+1}, s{R3+1}, 0xffff", f"s_mov_b32 s{R3+2}, s{R2+2}", f"s_mov_b32 s{R3+3}, 0x20000",
          f"s_mov_b32 s{sKo}, 0", f"s_mov_b32 s{sVo}, 0", f"s_lshl_b32 s{sMK}, s{sW}, 12", f"s_add_u32 s{sMV}, s{sMK}, 0x10000",
          f"s_mul_i32 s{sPK}, s{sH}, {8*FS}", f"s_add_u32 s{sPK}, s{sPK}, {FKV}"]
    fills[18][6].append(grp(qs[:8])); fills[18][10].append(grp(qs[8:14])); fills[18][14].append(grp(qs[14:]))
    fills[19][2].append(f"v_lshlrev_b32 v{vTR}, 3, v{vL16}"); fills[19][6].append(f"v_and_b32 v{vTR}, {7*FS}, v{vTR}")
    hs = [f"s_mul_i32 s{sHA}, s{sIDX}, {54*8192}", f"s_lshl_b32 s{sT+5}, s{sU}, 14", f"s_add_u32 s{sT+5}, s{sT+5}, {HF}", f"s_lshl_b32 s{sT+4}, s{sW}, 10",
          f"s_add_u32 s{sT+5}, s{sT+5}, s{sT+4}", f"s_add_u32 s{sHA}, s{sHA}, s{sT+5}", f"s_sub_u32 s{sHB}, 15, s{sIDX}", f"s_mul_i32 s{sHB}, s{sHB}, {54*8192}",
          f"s_add_u32 s{sHB}, s{sHB}, s{sT+5}"] if hasH else [f"s_mov_b32 s{sHA}, {WS_END}", f"s_mov_b32 s{sHB}, {WS_END}"]
    fills[19][10].append(grp(hs))
    if T == "K" or OPT.get("norole"): k0, g0 = 0, 0
    else: k0, g0 = lastdma[0], lastdma[1] + 1
    for sidx in range(k0, BKV):
        bg.place(fills[sidx], g0 if sidx == k0 else 0, NG, maxv=RATE, step=OPT.get("bstep", 1) if hasH else 1)
    assert not bg.q, len(bg.q)
    mfs = []
    for sidx in range(20):
        mf = []
        for i in range(NI):
            w = ((NI * sidx + i) & 3) * 4
            for j in range(4):
                d = qacc(i, j) if i < 8 else hacc(i - 8, j)
                x = XNB[sidx & 1] + 4 * j
                if sidx: c = f"v[{d}:{d+3}]"
                elif i < 8: c = "0"
                else: c = v(hacc(i - 8, 3), 4)
                mf.append(f"{MF} v[{d}:{d+3}], a[{w}:{w+3}], v[{x}:{x+3}], {c}")
        mfs.append(mf)
    for sidx in range(20):
        run_gaps(e, mfs[sidx], fills[sidx], mfs[sidx + 1][0] if sidx < 19 else None)
    e.vm = []
sPK = 83; sHA, sHB = 74, 75
PKL = f"buffer_load_dword v{vTR+1}, v{vTR}, s[{RWS}:{RWS+3}], s{sPK} offen sc1"
def kv_prologue_list():
    L = []
    for kind, tag in (("K", "k0"), ("V", "v0"), ("K", "k1"), ("K", "k2"), ("V", "v1"), ("K", "k3")):
        D, inc = kv_dma(kind)
        for k, (su, d) in enumerate(D):
            L.append((list(reversed(su)), d, tag, [inc] if k == 3 else []))
    return L
def sprinkle(e, ops, dm, every):
    for k, x in enumerate(ops):
        if dm and k % every == 0:
            for y in dm[0][0]: e(y)
        e(x)
        if dm and k % every == 0:
            su, d, tag, post = dm.pop(0); e(d, tag=tag)
            for y in post: e(y)
def flush_dma(e, dm):
    for su, d, tag, post in dm:
        for y in su: e(y)
        if su: e("s_nop 0")
        e(d, tag=tag)
        for y in post: e(y)
    dm.clear()

def check_drain_order(e):
    written = set()
    for i in e.l:
        if i.kind == "dsr": written |= {r for r in i.wr if r[0] == "a"}
        if i.mn == "v_accvgpr_read_b32" and (i.rd & written): raise AssertionError("drain order " + i.t)
        if i.mn == "v_accvgpr_write_b32": written |= i.wr

def q_pack(e):
    for n in range(16):
        for k in range(4):
            e(f"v_cvt_pk_bf16_f32 v{QACC + 4*n + k}, v{QACC + 8*n + 2*k}, v{QACC + 8*n + 2*k + 1}")

HPK = 192
def gelu(e, lab):
    a = -2.0 * math.sqrt(2.0 / math.pi) * math.log2(math.e)
    k1 = a / CS; k2 = a * 0.044715 / CS ** 3
    GP = OPT.get("gp", 3); dm = []
    e(f"s_mov_b32 s84, {f32(k2)}\ns_mov_b32 s85, {f32(k2)}\ns_mov_b32 s86, {f32(CS)}\ns_mov_b32 s87, {f32(CS)}")
    e(f"v_mov_b32 v160, {f32(k1)}\nv_mov_b32 v161, {f32(k1)}\nv_mov_b32 v162, {f32(CS)}\nv_mov_b32 v163, {f32(CS)}")
    for n in range(8):
        if n == max(0, GP - 2): e(PKL)
        if n == GP: async_check(lab, vTR + 1, PKL)(e); dm = kv_prologue_list()
        b = HACC + 8 * n; t = 164 + 8 * (n & 1); L = []
        L += [f"v_pk_mul_f32 v[{t+2*k}:{t+2*k+1}], v[{b+2*k}:{b+2*k+1}], v[{b+2*k}:{b+2*k+1}]" for k in range(4)]
        L += [f"v_pk_fma_f32 v[{t+2*k}:{t+2*k+1}], v[{t+2*k}:{t+2*k+1}], s[84:85], v[160:161]" for k in range(4)]
        L += [f"v_pk_mul_f32 v[{t+2*k}:{t+2*k+1}], v[{t+2*k}:{t+2*k+1}], v[{b+2*k}:{b+2*k+1}]" for k in range(4)]
        L += [f"v_exp_f32 v{t+k}, v{t+k}" for k in range(8)]
        L += [f"v_pk_fma_f32 v[{t+2*k}:{t+2*k+1}], v[{t+2*k}:{t+2*k+1}], s[86:87], v[162:163]" for k in range(4)]
        L += [f"v_rcp_f32 v{t+k}, v{t+k}" for k in range(8)]
        L += [f"v_pk_mul_f32 v[{t+2*k}:{t+2*k+1}], v[{t+2*k}:{t+2*k+1}], v[{b+2*k}:{b+2*k+1}]" for k in range(4)]
        L += [f"v_cvt_pk_bf16_f32 v{t+k}, v{t+2*k}, v{t+2*k+1}" for k in range(4)]
        L += [f"v_accvgpr_write_b32 a{HPK+4*n+k}, v{t+k}" for k in range(4)]
        sprinkle(e, L, dm, 11)
    return dm
def h_store(n):
    j, up = n >> 1, n & 1
    return ([f"s_add_u32 s{sT+7}, s{sHA + (j >> 1)}, {(j & 1) * 4096 + up * 8192}"],
            f"buffer_store_dwordx4 a[{HPK+4*n}:{HPK+4*n+3}], v{vL16}, s[{RWS}:{RWS+3}], s{sT+7} offen sc1")

def Qr(j, t): return 96 + (4 * j + t) * 4
def Sr(b, j, kt=0): return 160 + 32 * b + 8 * j + 4 * kt
def Pr(b, j): return 224 + 16 * b + 4 * j
def NEGM(j): return 32 + 4 * j
def MASK(par, kt): return 48 + 8 * par + 4 * kt
def CT(kt): return 64 + 4 * kt
TT = 72
def LT(b, j): return 76 + 4 * b + j
def LL(j): return 84 + j
vCHK = 88
def Or(j, dt): return 32 * j + 4 * dt
FK, FV = 128, 160
vKR, vVR = 2, 3
sTHR, sCNT, sRET, sCA, sCB = 90, 91, 92, 94, 95
NEG_INF = "0xff800000"

def attn_setup(e0, dm):
    L = []
    class C:
        def __call__(self, t, tag=None): L.extend(x.strip() for x in t.strip().split("\n") if x.strip())
    _attn_setup(C())
    G = []
    for x in L:
        if G and (x.startswith(("s_addc", "s_subb", "s_cselect")) or G[-1].split("\n")[-1].startswith("s_nop")): G[-1] += "\n" + x
        else: G.append(x)
    sprinkle(e0, G, dm, 8); flush_dma(e0, dm)
def _attn_setup(e):
    e(f"""
    v_lshrrev_b32 v89, 4, v{vL16}
    v_and_b32 v90, 15, v89
    v_lshrrev_b32 v89, 4, v89
    v_lshlrev_b32 v89, 2, v89
    v_sub_u32 v89, v89, v90
    v_mov_b32 v90, {NEG_INF}
    v_mov_b32 v91, 0
    s_lshl_b32 s{sT}, s{sW}, 4
    s_mov_b32 s{sTHR}, {f32(2.0**40)}
    v_mov_b32 v{vKR}, v{vL16}
    v_add_u32 v{vVR}, 0x18000, v{vL16}
    """)
    for par in range(2):
        for kt in range(2):
            for r in range(4):
                k = (par * 2 + kt) * 4 + r
                e(f"s_sub_i32 s{sT+1}, s{sT}, {32*par + 16*kt + r}\nv_cmp_ge_i32 s[{sCA}:{sCA+1}], s{sT+1}, v89\ns_nop 1\nv_cndmask_b32 v{MASK(par, kt)+r}, v90, v91, s[{sCA}:{sCA+1}]")
    srd(e, R0, pWO, 4096 * 1280); srd(e, R1, pW2, 1728 * 1280)
    e(f"""
    s_lshl_b32 s{sT}, s2, 2
    s_add_u32 s{sT}, s{sT}, s{sW}
    v_lshrrev_b32 v5, 4, v{vL16}
    s_mul_i32 s{sT+1}, s{sT}, 40
    v_min_u32 v4, 39, v5
    v_add_u32 v4, s{sT+1}, v4
    v_lshlrev_b32 v4, 7, v4
    s_mul_i32 s{sT+1}, s{sT}, 17
    v_min_u32 v5, 16, v5
    v_add_u32 v5, s{sT+1}, v5
    v_lshlrev_b32 v5, 7, v5
    """)
    e(f"""
    s_lshl_b32 s{sT}, s{sH}, 15
    s_lshl_b32 s{sT+1}, s{sW}, 10
    s_add_u32 s{sT}, s{sT}, s{sT+1}
    s_add_u32 s{sT}, s{sT}, {CF}
    s_lshl_b32 s{sCA}, s{sIDX}, 20
    s_add_u32 s{sCA}, s{sCA}, s{sT}
    s_sub_u32 s{sCB}, 15, s{sIDX}
    s_lshl_b32 s{sCB}, s{sCB}, 20
    s_add_u32 s{sCB}, s{sCB}, s{sT}
    """)

def kread(n, f): return f"ds_read_b128 a[{FK+4*f}:{FK+4*f+3}], v{vKR} offset:{(n & 3) * 8192 + f * 1024}"
def vread(n, f): return f"ds_read_b128 a[{FV+4*f}:{FV+4*f+3}], v{vVR} offset:{(n & 3) * 8192 + f * 1024}"

def xreduce(e, op, regs, tmps):
    for sw in ("v_permlane16_swap_b32", "v_permlane32_swap_b32"):
        for r, t in zip(regs, tmps): e(f"v_mov_b32 v{t}, v{r}")
        e("s_nop 1")
        for r, t in zip(regs, tmps): e(f"{sw} v{r}, v{t}")
        e("s_nop 0")
        for r, t in zip(regs, tmps): e(f"{op} v{r}, v{r}, v{t}")

def max8(e, d, sreg):
    e(f"v_max3_f32 v{d}, v{sreg}, v{sreg+1}, v{sreg+2}\nv_max3_f32 v{d}, v{d}, v{sreg+3}, v{sreg+4}\nv_max3_f32 v{d}, v{d}, v{sreg+5}, v{sreg+6}\nv_max_f32 v{d}, v{d}, v{sreg+7}")

def sm_ops(b, J):
    L = []; k = 0
    for j in J:
        for x in range(8):
            t = TT + (k & 3); tp = TT + ((k - 1) & 3)
            fol = []
            if x == 1: fol.append(f"v_add_f32 v{LT(b, j)}, v{tp}, v{t}")
            elif x > 1: fol.append(f"v_add_f32 v{LT(b, j)}, v{LT(b, j)}, v{t}")
            if OPT.get("summ"): fol = []
            if x & 1: fol.insert(0 if OPT.get("cfirst") else len(fol), f"v_cvt_pk_bf16_f32 v{Pr(b, j) + (x >> 1)}, v{tp}, v{t}")
            L.append((f"v_exp_f32 v{t}, v{Sr(b, j) + x}", fol)); k += 1
    return L

FBS = {}
STUBS = []
class Blk:
    def __init__(self, name, A, B, first=False): self.name, self.A, self.B, self.first = name, A, B, first
    def act(self, n):
        out = []
        for st, lo, hi in ((self.B, 2, 3), (self.A, 0, 1)):
            if n < 0 and self.first: continue
            if st == "F":
                a_lo = a_hi = True
            else:
                d = n - {"D": 0, "T": -4, "X": -100}[st]
                a_lo, a_hi = d < 2, d < 4
            if a_hi: out.append(hi)
            if a_lo: out.append(lo)
        return out
    def masked(self, n):
        out = []
        for st, lo, hi in ((self.B, 2, 3), (self.A, 0, 1)):
            if st == "D": out.append((lo if n < 2 else hi, n & 1))
        return out

def attn_block(e, bk):
    nm = bk.name
    dma = bk.B == "F"
    canon = [(regs_of(f"a[{FK+4*f}:{FK+4*f+3}]"), None) for f in range(8)]
    e.lg = list(canon) if bk.first else canon[4:]
    nper = 2 if bk.B == "T" else 4
    nextra = [0]
    for lp in range(nper):
        p = lp - 2
        nq, ns, nv = p + 2, p + 1, p
        JQ = bk.act(nq) if bk.B != "T" else []
        JS = bk.act(ns); JV = bk.act(nv); JN = bk.act(ns + 1) if not (bk.B == "T" and lp == 1) else []
        if bk.B == "T" and lp == 1: JS = []
        bq, bs, bv = nq & 1, ns & 1, nv & 1
        pre = []
        msk = dict(bk.masked(nq)) if JQ else {}
        assert len(msk) <= 1
        first_qk = bk.first and lp == 0
        for j, par in msk.items():
            if not first_qk:
                for kt in range(2):
                    for r in range(4): pre.append(f"v_add_f32 v{CT(kt)+r}, v{NEGM(j)+r}, v{MASK(par, kt)+r}")
        mf = []; kstart = []; vstart = []
        for f in range(8 if JQ else 0):
            t, kt = f >> 1, f & 1
            kstart.append(len(mf))
            for j in JQ:
                d = Sr(bq, j, kt)
                if t: c = v(d, 4)
                elif first_qk: c = v(MASK(msk[j], kt), 4) if j in msk else "0"
                else: c = v(CT(kt), 4) if j in msk else v(NEGM(j), 4)
                mf.append(f"{MF} v[{d}:{d+3}], a[{FK+4*f}:{FK+4*f+3}], v[{Qr(j, t)}:{Qr(j, t)+3}], {c}")
        for f in range(8 if JV else 0):
            vstart.append(len(mf))
            for j in JV:
                o = Or(j, f)
                c = "0" if (bk.first and nv == 0) else ac(o, 4)
                mf.append(f"{MF} a[{o}:{o+3}], a[{FV+4*f}:{FV+4*f+3}], v[{Pr(bv, j)}:{Pr(bv, j)+3}], {c}")
        NG = len(mf)
        fill = [[] for _ in range(NG)]
        def odd(g): return min(g + 1, NG - 1)
        if JV:
            if lp == 2: pre.insert(0, f"v_xor_b32 v{vVR}, 0x8000, v{vVR}")
            if JQ:
                for f in range(8): fill[odd(kstart[f]) if len(JQ) > 1 else kstart[f]].append(vread(nv, f))
            else:
                for f in range(8): pre.append(vread(nv, f))
        needK = bk.B == "F" or (bk.B == "D" and lp < 3)
        if needK:
            if JV:
                if lp == 3: fill[vstart[0] - 1].append(f"v_xor_b32 v{vKR}, 0x8000, v{vKR}")
                for f in range(8): fill[odd(vstart[f]) if len(JV) > 1 else vstart[f]].append(kread(p + 3, f))
            else:
                for f in range(8): fill[kstart[f] + len(JQ) - 1].append(kread(p + 3, f))
        def needf(base, f0):
            def g(e): e.need(f"a[{base+4*f0}:{base+4*f0+15}]")
            return g
        if JQ and JV:
            fill[kstart[4] - 2].append(needf(FK, 4)); fill[vstart[0] - 2].append(needf(FV, 0)); fill[vstart[4] - 2].append(needf(FV, 4))
            if needK: fill[NG - 2].append(needf(FK, 0))
        def ride(L, g0, g1, tag=None):
            st = max(2, (g1 - g0) // len(L))
            for k, x in enumerate(L): put_dma(fill, (g0 + st * k) | 1, x, tag)
        if bk.first and lp >= 2: ride([h_store(n) for n in range(4 * lp - 8, 4 * lp - 4)], 4, NG)
        if nm == "XD" and lp < 3: ride([ctx_store(96, sCA, n) for n in range(3 * lp, min(8, 3 * lp + 3))], 4, NG)
        if nm == "TD" and lp >= 2: ride([ctx_store(96, sCA, n) for n in range(4 * lp - 8, 4 * lp - 4)], 2 if lp == 2 else 0, NG if lp == 2 else vstart[0])
        if bk.B == "D" and lp == 2: fill[1].append(PHL)
        if bk.B == "D" and lp == 3: ride((p5_dmas(0) + p5_dmas(1))[:8], vstart[0], NG)
        if bk.B == "T": ride((p5_dmas(0) + p5_dmas(1))[8 + 4 * lp:12 + 4 * lp], 0, NG)
        if lp & 1 and bk.B != "T":
            gb = vstart[0] if JV else -1
            if dma: n = 12 + (6 + sum(1 for g in range(gb) for x in fill[g] if _kind(x) == "vms") if (bk.first and lp == 3) else 0)
            else: n = (8 if lp == 1 else 0) + nextra[0] + sum(1 for g in range(gb) for x in fill[g] if _kind(x) in ("vml", "vms"))
            def mkb(n):
                def f(e):
                    lg = list(e.lg)
                    if OPT.get("ticks"): e("s_waitcnt lgkmcnt(0)")
                    tick_pre(e); e(f"s_waitcnt vmcnt({n})\ns_barrier"); tick_post(e)
                    e.lg = lg
                return f
            b_ins = mkb(n)
            if bk.B == "D" and lp == 3: fill[gb].append(async_check(f"L_h{nm}", 20, PHL))
            if gb >= 0: fill[gb].append(b_ins)
            else: pre.insert(0, b_ins)
        if dma and not (bk.first and lp == 0):
            L, inc = kv_dma("V" if lp & 1 else "K")
            if lp & 1: g0, span = (vstart[0] if JV else 0), (8 * len(JV) if JV else NG)
            else: g0, span = 0, 8 * len(JQ)
            st = span // 4
            for x in reversed(L[0][0]): fill[max(0, g0 - 4)].append(x)
            dp = OPT.get("dpos", 1)
            for k, d in enumerate(L): fill[g0 + dp + st * k].append(d[1])
            fill[min(NG - 1, g0 + dp + 1 + st * 3)].append(inc if g0 + dp + 1 + st * 3 < NG else ("BG", inc))
        if nm in ("DF", "TF") and lp == 3: fill[NG - 1].append(flag_store(sQ + 1))
        if bk.first and lp == 1:
            fill[NG - 5].append(f"buffer_load_dword a240, v4, s[{R0}:{R0+3}], 0 offen"); fill[NG - 1].append(f"buffer_load_dword a241, v5, s[{R1}:{R1+3}], 0 offen")
        if JS:
            ops = sm_ops(bs, JS)[2:]
            W = NG - 4 if JN else NG - 1
            W = max(W, 1)
            lastg = 0; tile_done = []
            for k, (ex, fol) in enumerate(ops):
                g = (k * W) // len(ops)
                if W >= 2 * len(ops): g &= ~1
                fill[g].append(ex)
                for x in fol: fill[min(g + 1, NG - 1)].append(x) if g + 1 <= NG - 1 else None
                lastg = g + 1
                if (k + 2) % 8 == 7: tile_done.append(lastg)
            lts = [LT(bs, j) for j in JS]
            ck = []
            if len(lts) == 4: fill[min(NG - 1, tile_done[2] + 2)].append(f"v_max3_f32 v{vCHK}, v{lts[0]}, v{lts[1]}, v{lts[2]}"); ck.append(f"v_max_f32 v{vCHK}, v{vCHK}, v{lts[3]}")
            elif len(lts) == 3: ck.append(f"v_max3_f32 v{vCHK}, v{lts[0]}, v{lts[1]}, v{lts[2]}")
            elif len(lts) == 2: ck.append(f"v_max_f32 v{vCHK}, v{lts[0]}, v{lts[1]}")
            ck.append(f"v_cmp_lt_f32 vcc, s{sTHR}, v{vCHK if len(lts) > 1 else lts[0]}")
            gck = max(lastg, NG - 3) if JN else lastg
            assert gck <= NG - 2
            fb = f"FB{bs}_{''.join(map(str, JS))}"
            FBS[fb] = (bs, JS)
            site = f"L_{nm}_{lp}"
            STUBS.append((site, fb))
            for x in ck: fill[gck].append(x)
            fill[NG - 1].append(grp([f"s_cbranch_vccnz {site}_fb", f"{site}_ret:"]))
        post = None
        if JV:
            for k, j in enumerate(JV):
                g = 1 if k == 0 else min(NG - 5, 16 * k - 3)
                fill[g].append(f"v_mov_b32 v{LL(j)}, v{LT(bv, j)}" if (bk.first and nv == 0) else f"v_add_f32 v{LL(j)}, v{LL(j)}, v{LT(bv, j)}")
        head = sm_ops((ns + 1) & 1, JN)[:2] if JN else []
        if head and not first_qk:
            assert post is None
            fill[NG - 4].append(head[0][0]); fill[NG - 2].append(head[1][0])
            for x in head[1][1]: fill[NG - 1].append(x)
        if lp == 0 and JQ: e.need(f"a[{FK}:{FK+15}]")
        for x in pre:
            if callable(x): x(e)
            else: e(x)
        if pre: e("s_nop 1")
        if OPT.get("summ"):
            for g in range(NG): fill[g] = [x for x in fill[g] if not (isinstance(x, str) and (x.startswith(f"v_add_f32 v8") or x.startswith("v_max") or x.startswith("v_cmp")))]
            fill[1].append(f"v_max_f32 v{vCHK}, v{160+8*bv}, v{164+8*bv}"); fill[5 if OPT["summ"] == 1 else 1].append(f"v_cmp_lt_f32 vcc, s{sTHR}, v{vCHK}")
            br_ = [x for x in fill[NG - 1] if callable(x)]; fill[NG - 1] = [x for x in fill[NG - 1] if not callable(x)]; fill[6 if OPT["summ"] == 1 else 4] += br_
            for pos, j in ((NG - 3, 2), (13, 3)):
                mf.insert(pos, f"{MF} v[{160+8*bs+4*(j-2)}:{163+8*bs+4*(j-2)}], v[192:195], v[{Pr(bs, j)}:{Pr(bs, j)+3}], v[{160+8*bv+4*(j-2)}:{163+8*bv+4*(j-2)}]")
                fill.insert(pos, [])
            NG += 2
        fill = [[(x[1] if isinstance(x, tuple) and x[0] == "BG" else x) for x in f] for f in fill] if False else fill
        nextra[0] += sum(1 for g in range(NG) for x in fill[g] if _kind(x) in ("vml", "vms"))
        run_gaps(e, mf, fill)
        if nm == "TD" and lp == 1: attn_epilogue(e, (0, 1), 96)
        if post:
            for x in post: e(x)
            br(e); e("s_nop 1")
        if first_qk:
            e("s_nop 7")
            for j in range(4): max8(e, NEGM(j), Sr(0, j))
            xreduce(e, "v_max_f32", [NEGM(j) for j in range(4)], [NEGM(j) + 1 for j in range(4)])
            for j in range(4):
                e(f"v_sub_f32 v{NEGM(j)}, 0, v{NEGM(j)}")
                for r in range(1, 4): e(f"v_mov_b32 v{NEGM(j)+r}, v{NEGM(j)}")
            for j in (3, 2, 1, 0):
                for x in range(8): e(f"v_add_f32 v{Sr(0, j)+x}, v{Sr(0, j)+x}, v{NEGM(j)}")
            e(head[0][0]); e(head[1][0]); e("s_nop 0")
            for x in head[1][1]: e(x)
    if bk.B == "F":
        assert len(e.lg) <= 4 and [r for r, _ in e.lg] == [r for r, _ in canon][8 - len(e.lg):], (nm, len(e.lg))

def ctx_store(pk, sbase, n):
    return ([f"s_add_u32 s{sT+7}, s{sbase}, {(n >> 2) * 4096 + (n & 3) * 8192}"],
            f"buffer_store_dwordx4 v[{pk+4*n}:{pk+4*n+3}], v{vL16}, s[{RWS}:{RWS+3}], s{sT+7} offen sc1")
def attn_epilogue(e, tiles, pk0, sbase=None):
    e("s_nop 7")
    ls = [LL(j) for j in tiles]
    xreduce(e, "v_add_f32", ls, [89, 90])
    for j in tiles: e(f"v_rcp_f32 v{LL(j)}, v{LL(j)}")
    for hi, j in enumerate(tiles):
        e(f"v_mov_b32 v94, v{LL(j)}\nv_mov_b32 v95, v{LL(j)}")
        for t in range(4):
            pk = pk0 + 16 * hi + 4 * t
            for k in range(4):
                src = Or(j, 2 * t) + 2 * k; tr = 90 + 2 * (k & 1)
                e(f"v_accvgpr_read_b32 v{tr}, a{src}\nv_accvgpr_read_b32 v{tr+1}, a{src+1}")
                e(f"v_pk_mul_f32 v[{tr}:{tr+1}], v[{tr}:{tr+1}], v[94:95]")
                e(f"v_cvt_pk_bf16_f32 v{pk+k}, v{tr}, v{tr+1}")
            if sbase is not None:
                su, x = ctx_store(pk0, sbase, 4 * hi + t); e(su[0]); e(x)

def fallback(e, name, b, J):
    e(f"{name}:\ns_nop 15")
    for j in J:
        d = 89
        max8(e, d, Sr(b, j))
        xreduce(e, "v_max_f32", [d], [90])
        e(f"v_max_f32 v{d}, 0, v{d}\nv_sub_f32 v90, 0, v{d}\nv_exp_f32 v90, v90")
        for r in range(4): e(f"v_sub_f32 v{NEGM(j)+r}, v{NEGM(j)+r}, v{d}")
        for x in range(8): e(f"v_sub_f32 v{Sr(b, j)+x}, v{Sr(b, j)+x}, v{d}\nv_sub_f32 v{Sr(b ^ 1, j)+x}, v{Sr(b ^ 1, j)+x}, v{d}")
        e(f"v_mul_f32 v{LL(j)}, v{LL(j)}, v90")
        for x in range(0, 32, 2):
            o = Or(j, 0) + x
            e(f"v_accvgpr_read_b32 v91, a{o}\nv_accvgpr_read_b32 v92, a{o+1}\nv_mul_f32 v91, v91, v90\nv_mul_f32 v92, v92, v90\nv_accvgpr_write_b32 a{o}, v91\nv_accvgpr_write_b32 a{o+1}, v92")
    for ex, fol in sm_ops(b, J):
        e(ex); e("s_nop 0")
        for x in fol: e(x)
    for ex, fol in sm_ops(b ^ 1, [3])[:2]: e(ex)
    e(f"s_nop 1\ns_setpc_b64 s[{sRET}:{sRET+1}]")

def attn_pre(e):
    e.need(vmtags=("k0",), lg0=True)
    e("s_barrier")
    for f in range(8): e(kread(0, f))

def attention(e):
    B = {k: Blk(k, k[-2], k[-1], k.startswith("f")) for k in ("fFF", "fDF", "FF", "DF", "TF", "TD", "XF", "XD", "XT")}
    segs = {}
    def seg(name, fn):
        n0 = len(e.l); fn(); segs[name] = e.l[n0:]
    e(f"s_cmp_eq_u32 s{sIDX}, 0\ns_cbranch_scc1 L_fDF")
    seg("fFF", lambda: attn_block(e, B["fFF"]))
    e(f"s_sub_u32 s{sCNT}, s{sIDX}, 1\ns_cmp_eq_u32 s{sCNT}, 0\ns_cbranch_scc1 L_DF\n.p2align 3\nL_FF:")
    seg("FF", lambda: attn_block(e, B["FF"]))
    e(f"s_sub_u32 s{sCNT}, s{sCNT}, 1\ns_cmp_lg_u32 s{sCNT}, 0\ns_cbranch_scc1 L_FF\nL_DF:")
    seg("DF", lambda: attn_block(e, B["DF"]))
    e(f"s_cmp_eq_u32 s{sIDX}, 7\ns_cbranch_scc1 L_TD\nL_TF:")
    seg("TF", lambda: (attn_block(e, B["TF"]), attn_epilogue(e, (0, 1), 96)))
    stamp(e, 7)
    e(f"s_lshl_b32 s{sCNT}, s{sIDX}, 1\ns_sub_u32 s{sCNT}, 13, s{sCNT}\n.p2align 3\nL_XF:")
    seg("XF", lambda: attn_block(e, B["XF"]))
    e(f"s_sub_u32 s{sCNT}, s{sCNT}, 1\ns_cmp_lg_u32 s{sCNT}, 0\ns_cbranch_scc1 L_XF")
    seg("XD", lambda: (p5_setup(e), attn_block(e, B["XD"])))
    e("L_XT:")
    seg("XT", lambda: attn_block(e, B["XT"]))
    def out_of_line():
        e("L_fDF:")
        seg("fDF", lambda: attn_block(e, B["fDF"]))
        e("s_branch L_TF\nL_TD:")
        seg("TD", lambda: (p5_setup(e), attn_block(e, B["TD"])))
        e("s_branch L_XT")
        for site, fb in STUBS:
            e(f"{site}_fb:\ns_call_b64 s[{sRET}:{sRET+1}], {fb}\ns_branch {site}_ret")
        for name, (b, J) in FBS.items():
            seg(name, lambda: fallback(e, name, b, J))
    return segs, out_of_line

sMT, sNT, sS, sAH, sAC, sWH, sWC, sXO, sFH, sFC = 64, 65, 66, 67, 68, 69, 70, 76, 77, 78
sMA, sMW, sBO, sEXs, sEXl, sFE = 79, 80, 81, 82, 83, 84
SLOT = 36864
vWD5, vRB, vRE, vRO, vP1, vP2, vL4K, vXO, vBO = 4, 10, 12, 14, 16, 17, 9, 18, 19
PHL = f"buffer_load_dword v20, v{vP1}, s[{RWS}:{RWS+3}], s{sFH} offen sc1"
def p5_setup(e):
    e(f"""
    s_lshr_b32 s{sMT}, s{sX}, 2
    s_lshl_b32 s{sMT}, s{sMT}, 3
    s_lshr_b32 s{sT}, s2, 3
    s_and_b32 s{sT}, s{sT}, 7
    s_add_u32 s{sMT}, s{sMT}, s{sT}
    s_lshr_b32 s{sNT}, s2, 6
    s_and_b32 s{sS}, s{sX}, 3
    s_sub_u32 s{sT+1}, 15, s{sMT}
    s_min_u32 s{sT}, s{sMT}, s{sT+1}
    s_mul_i32 s{sT}, s{sT}, {32*FS}
    s_add_u32 s{sFH}, s{sT}, {FH}
    s_mul_i32 s{sT+1}, s{sS}, {8*FS}
    s_add_u32 s{sFC}, s{sT}, s{sT+1}
    s_add_u32 s{sFC}, s{sFC}, {FC}
    v_lshlrev_b32 v{vP1}, 3, v{vL16}
    v_and_b32 v{vP2}, {7*FS}, v{vP1}
    v_and_b32 v{vP1}, {31*FS}, v{vP1}
    """)
    e(f"""
    s_mul_i32 s{sT+3}, s{sMT}, {54*8192}
    s_add_u32 s{sT+3}, s{sT+3}, {HF}
    s_lshl_b32 s{sT+4}, s{sMT}, 20
    s_add_u32 s{sT+4}, s{sT+4}, {CF}
    """)
    srd(e, R0, pWS, 54 * 8192, f"s{sT+3}")
    srd(e, R1, pWS, 128 * 8192, f"s{sT+4}")
    srd(e, R2, pW2, 1728 * 1280)
    srd(e, R3, pWO, 4096 * 1280)
    e(f"""
    s_lshl_b32 s{sMA}, s{sW}, 12
    s_mul_i32 s{sAH}, s{sS}, {14*8192}
    s_add_u32 s{sAH}, s{sAH}, s{sMA}
    s_lshl_b32 s{sAC}, s{sS}, 18
    s_add_u32 s{sAC}, s{sAC}, s{sMA}
    s_mul_i32 s{sMW}, s{sW}, 5120
    s_add_u32 s{sMW}, s{sMW}, 16384
    s_mul_i32 s{sT}, s{sW}, {16*1280}
    s_mul_i32 s{sBO}, s{sNT}, 320
    s_add_u32 s{sT}, s{sT}, s{sBO}
    s_mul_i32 s{sWH}, s{sS}, {14*32*1280}
    s_add_u32 s{sWH}, s{sWH}, s{sT}
    s_mul_i32 s{sWC}, s{sS}, {1024*1280}
    s_add_u32 s{sWC}, s{sWC}, s{sT}
    v_lshrrev_b32 v{vXO}, 4, v{vL16}
    """)
    for k in range(5):
        e(f"""
        v_add_u32 v{vRB}, {64*k}, v{vXO}
        v_mul_u32_u24 v{vRB+1}, 3277, v{vRB}
        v_lshrrev_b32 v{vRB+1}, 16, v{vRB+1}
        v_mul_u32_u24 v{vRE}, 20, v{vRB+1}
        v_sub_u32 v{vRB}, v{vRB}, v{vRE}
        v_lshrrev_b32 v{vRE}, 1, v{vRB+1}
        v_and_b32 v{vRE}, 2, v{vRE}
        v_xor_b32 v{vRB}, v{vRB}, v{vRE}
        v_mul_u32_u24 v{vRB+1}, 1280, v{vRB+1}
        v_lshl_add_u32 v{vWD5+k}, v{vRB}, 4, v{vRB+1}
        """)
        if 0 < k < 4: e(f"v_subrev_u32 v{vWD5+k}, {1024*k}, v{vWD5+k}")
    e(f"""
    s_and_b32 s{sT}, s{sW}, 1
    s_lshl_b32 s{sT+1}, s{sT}, 12
    v_add_u32 v{vRB}, s{sT+1}, v{vL16}
    v_add_u32 v{vRB+1}, {2*SLOT}, v{vRB}
    s_lshr_b32 s{sT+1}, s{sW}, 1
    s_mul_i32 s{sT+2}, s{sT+1}, 160
    s_add_u32 s{sBO}, s{sBO}, s{sT+2}
    s_add_u32 s{sT+2}, s{sT+2}, 16384
    v_lshrrev_b32 v{vRE}, 2, v{vXO}
    v_mul_u32_u24 v{vRE}, 320, v{vRE}
    v_and_b32 v{vRO}, 3, v{vXO}
    v_lshl_add_u32 v{vRE}, v{vRO}, 3, v{vRE}
    v_add_u32 v{vRE}, s{sT+2}, v{vRE}
    v_lshlrev_b32 v{vRO+1}, 1, v{vXO}
    v_and_b32 v{vRO+1}, 32, v{vRO+1}
    s_cmp_eq_u32 s{sT+1}, 0
    s_cselect_b32 s{sT+3}, 1, -1
    v_mul_i32_i24 v{vRO+1}, s{sT+3}, v{vRO+1}
    v_sub_u32 v{vRO}, v{vRE}, v{vRO+1}
    v_add_u32 v{vRE}, v{vRE}, v{vRO+1}
    v_add_u32 v{vRE+1}, {2*SLOT}, v{vRE}
    v_add_u32 v{vRO+1}, {2*SLOT}, v{vRO}
    v_add_u32 v{vL4K}, 4096, v{vL16}
    s_lshl_b32 s{sXO}, s{sMT}, 3
    s_lshl_b32 s{sT}, s{sT}, 2
    s_add_u32 s{sXO}, s{sXO}, s{sT}
    s_add_u32 s{sXO}, s{sXO}, s{sS}
    s_mul_i32 s{sXO}, s{sXO}, {16*1280}
    s_add_u32 s{sXO}, s{sXO}, s{sBO}
    v_lshrrev_b32 v{vBO}, 4, v{vXO}
    v_lshlrev_b32 v{vBO}, 3, v{vBO}
    v_and_b32 v{vXO}, 15, v{vXO}
    v_mul_u32_u24 v{vXO}, 1280, v{vXO}
    v_add_u32 v{vXO}, v{vXO}, v{vBO}
    s_lshl_b32 s{sT}, s{sMT}, 2
    s_add_u32 s{sT}, s{sT}, s{sNT}
    s_lshl_b32 s{sFE}, s{sT}, 2
    s_add_u32 s{sFE}, s{sFE}, s{sW}
    s_mul_i32 s{sFE}, s{sFE}, {FS}
    s_add_u32 s{sFE}, s{sFE}, {FEX}
    s_mul_i32 s{sT}, s{sT}, {16*20480}
    s_mul_i32 s{sT+1}, s{sW}, 5120
    s_add_u32 s{sT}, s{sT}, s{sT+1}
    s_add_u32 s{sT}, s{sT}, {EX}
    s_mul_i32 s{sT+1}, s{sS}, 20480
    s_add_u32 s{sEXs}, s{sT}, s{sT+1}
    s_lshl_b32 s{sT+1}, s{sT+1}, 2
    s_add_u32 s{sEXl}, s{sT}, s{sT+1}
    """)

def p5_dmas(d):
    sl = (d & 3) * SLOT
    if d < 7: ra, sa, oa, rw, sw, ow = R0, sAH, d * 16384, R2, sWH, d * 64 * 1280
    else: ra, sa, oa, rw, sw, ow = R1, sAC, (d - 7) * 16384, R3, sWC, (d - 7) * 64 * 1280
    W = []
    for k in range(5):
        su = []
        if k == 0: su = [f"s_add_u32 m0, s{sMW}, {sl}", f"s_add_u32 s{sT+1}, s{sw}, {ow}"]
        if k == 4: su = [f"s_add_u32 m0, s{sMW}, {sl + 4096}"]
        W.append((su, f"buffer_load_dwordx4 v{vWD5+k}, s[{rw}:{rw+3}], s{sT+1} offen offset:{(k & 3) * 1024} lds"))
    A = []
    for k in range(4):
        su = [f"s_add_u32 m0, s{sMA}, {sl}", f"s_add_u32 s{sT}, s{sa}, {oa}"] if k == 0 else []
        A.append((su, f"buffer_load_dwordx4 v{vL16}, s[{ra}:{ra+3}], s{sT} offen offset:{k * 1024} lds"))
    return W + A
def p5_reads(m):
    d, ks = m >> 1, m & 1; b = (m & 1) * 36; hi = (d >> 1) & 1; o = (d & 1) * SLOT
    L = []
    for n in range(5):
        a = (vRO if n & 1 else vRE) + hi; off = o + ks * 32 * 320 + n * 32
        Wn = [f"ds_read_b64_tr_b16 a[{b+4*n}:{b+4*n+1}], v{a} offset:{off}", f"ds_read_b64_tr_b16 a[{b+4*n+2}:{b+4*n+3}], v{a} offset:{off + 5120}"]
        L += Wn
        if n == 0: L += [f"ds_read_b128 a[{b+20+4*r}:{b+23+4*r}], v{vRB+hi} offset:{o + ks * 8192 + r * 1024}" for r in range(4)]
    return L

def p5(e):
    ACC = 32; ND = 23
    tick_dump(e, 2)
    for su, x in p5_dmas(1)[7:]: e(x)
    attn_epilogue(e, (2, 3), 128, sCB)
    stamp(e, 8)
    e(f"s_add_u32 s{sT+2}, s{sQ+1}, {FC - FH}\ns_waitcnt vmcnt(0) lgkmcnt(0)\ns_barrier")
    e(flag_store(sT + 2))
    stamp(e, 9)
    for x in p5_reads(0): e(x)
    PCL = f"buffer_load_dword v20, v{vP2}, s[{RWS}:{RWS+3}], s{sFC} offen sc1"
    mfs = []; fills = []
    for m in range(2 * ND):
        b = (m & 1) * 36; mf = []
        for n in range(5):
            for r in range(4):
                dd = ACC + (r * 5 + n) * 4
                mf.append(f"{MF} v[{dd}:{dd+3}], a[{b+4*n}:{b+4*n+3}], a[{b+20+4*r}:{b+23+4*r}], " + ("0" if m == 0 else v(dd, 4)))
        mfs.append(mf); fills.append([[] for _ in range(20)])
    CK = OPT.get("ck", 7)
    for m in range(2 * ND):
        f = fills[m]; d = m >> 1
        if m + 1 < 2 * ND:
            R = p5_reads(m + 1)
            g0 = 1 if m & 1 else 0
            for k, x in enumerate(R): f[g0 + k].append(x)
            if m & 1: f[0].append(bar([f"d{d+1}"]))
    for d in range(2, ND):
        L = p5_dmas(d); m0 = 2 * (d - 3) - 1
        P = [(m0, g) for g in (3, 7, 11, 15, 18)] + [(m0 + 1, g) for g in (2, 6, 10, 14)]
        if d == 2: P = [(0, g) for g in (1, 3, 5, 7, 9, 11, 13, 15, 17)]
        if d == 3: P = [(1, g) for g in (2, 4, 6, 8, 10, 12, 14, 16, 18)]
        if d == 4: P = [(2, g) for g in (1, 3, 5, 7, 9, 11, 13, 15, 17)]
        for k, (x, (m, g)) in enumerate(zip(L, P)):
            if d == 7 and k == 5:
                fills[m][g - 1].append(async_check("L_p5c", 20, PCL))
                fills[m0][1].append(PCL)
            put_dma(fills[m], g, x, f"d{d}")
    mx = 2 * ND - 4
    fills[mx][0].append(grp([f"s_mov_b32 s{R0}, s{pX}", f"s_and_b32 s{R0+1}, s{pX+1}, 0xffff", f"s_mov_b32 s{R0+2}, {2048*1280}", f"s_mov_b32 s{R0+3}, 0x20000",
                             f"s_mov_b32 s{R2}, s{pB2}", f"s_and_b32 s{R2+1}, s{pB2+1}, 0xffff", f"s_mov_b32 s{R2+2}, 1280", f"s_mov_b32 s{R2+3}, 0x20000"]))
    for n in range(5):
        fills[mx][2 + 3 * n].append(f"buffer_load_dwordx2 v[{112+2*n}:{113+2*n}], v{vXO}, s[{R0}:{R0+3}], s{sXO} offen offset:{32*n}")
        fills[mx + 1][2 + 3 * n].append(f"buffer_load_dwordx2 v[{164+2*n}:{165+2*n}], v{vBO}, s[{R2}:{R2+3}], s{sBO} offen offset:{32*n}")
    for m in range(2 * ND):
        if m == 8: stamp(e, 11)
        if m == 10: stamp(e, 12)
        e.gaps(mfs[m], fills[m], mfs[m + 1][0] if m + 1 < 2 * ND else None)
    tick_dump(e, 3)
    stamp(e, 13)
    e("s_nop 4")
    e(f"v_lshrrev_b32 v131, 1, v{vL16}")
    for r in range(4):
        pk = 140 + 12 * (r & 1)
        for k in range(10): e(f"v_cvt_pk_bf16_f32 v{pk+k}, v{ACC+20*r+2*k}, v{ACC+20*r+2*k+1}")
        e(f"s_add_u32 s{sT}, s{sEXs}, {r * 4 * 20480}\ns_cmp_eq_u32 s{sS}, {r}\ns_cselect_b32 s{sT}, {WS_END}, s{sT}")
        e(f"buffer_store_dwordx4 v[{pk}:{pk+3}], v{vL16}, s[{RWS}:{RWS+3}], s{sT} offen sc1")
        e(f"buffer_store_dwordx4 v[{pk+4}:{pk+7}], v{vL16}, s[{RWS}:{RWS+3}], s{sT} offen offset:1024 sc1")
        e(f"buffer_store_dwordx2 v[{pk+8}:{pk+9}], v131, s[{RWS}:{RWS+3}], s{sT} offen offset:2048 sc1")
    e(f"""
    v_mov_b32 v20, 0
    v_mov_b32 v132, 0x10000000
    v_cmp_eq_u32 vcc, 0, v{vL16}
    s_lshl_b32 s{sT+1}, s{sS}, 2
    s_add_u32 s{sT+1}, s{sT+1}, s{sFE}
    v_cndmask_b32 v132, v132, v20, vcc
    v_lshrrev_b32 v133, 2, v{vL16}
    v_and_b32 v133, 12, v133
    """)
    for r in range(1, 4):
        e(f"s_cmp_lg_u32 s{sS}, {r}\ns_cbranch_scc1 L_own{r}")
        for k in range(20): e(f"v_mov_b32 v{ACC+k}, v{ACC+20*r+k}")
        e(f"L_own{r}:")
    srd(e, R0, pOUT, 2048 * 1280)
    e.need("v[112:121],v[164:173]")
    for n in range(5):
        for k in range(2):
            t = ACC + 4 * n + 2 * k
            e(f"v_lshlrev_b32 v134, 16, v{112+2*n+k}\nv_and_b32 v135, 0xffff0000, v{112+2*n+k}")
            e(f"v_lshlrev_b32 v136, 16, v{120+1+2*n+k}\nv_and_b32 v137, 0xffff0000, v{120+1+2*n+k}".replace(f"v{121+2*n+k}", f"v{164+2*n+k}"))
            e(f"v_pk_add_f32 v[134:135], v[134:135], v[136:137]\nv_pk_add_f32 v[{t}:{t+1}], v[{t}:{t+1}], v[134:135]")
    e("s_waitcnt vmcnt(0)")
    e(f"buffer_store_dword v{vTAG}, v132, s[{RWS}:{RWS+3}], s{sT+1} offen sc1")
    stamp(e, 10)
    def poll(e):
        e(f"buffer_load_dword v20, v133, s[{RWS}:{RWS+3}], s{sFE} offen sc1\ns_waitcnt vmcnt(0)\nv_cmp_ne_u32 vcc, s{sTAG}, v20")
    spin(e, "L_p5x", poll, None, sleep=1)
    for k in range(1, 4):
        e(f"s_add_u32 s{sT}, s{sS}, {k}\ns_and_b32 s{sT}, s{sT}, 3\ns_mul_i32 s{sT}, s{sT}, 20480\ns_add_u32 s{sT}, s{sT}, s{sEXl}")
        t = 176 + (k - 1) * 12
        e(f"buffer_load_dwordx4 v[{t}:{t+3}], v{vL16}, s[{RWS}:{RWS+3}], s{sT} offen")
        e(f"buffer_load_dwordx4 v[{t+4}:{t+7}], v{vL16}, s[{RWS}:{RWS+3}], s{sT} offen offset:1024")
        e(f"buffer_load_dwordx2 v[{t+8}:{t+9}], v131, s[{RWS}:{RWS+3}], s{sT} offen offset:2048")
    e(f"s_cmp_eq_u32 s2, 0\ns_cselect_b32 s{sT}, {FL}, {0}\ns_cmp_eq_u32 s{sT}, 0\ns_cselect_b32 s{sT}, {WS_END}, s{sT}")
    e(flag_store(sT))
    for k in range(3):
        u = 176 + 12 * k
        e.need(f"v[{u}:{u+9}]")
        for q in range(10):
            t = ACC + 2 * q; z = 134 + 2 * (q & 1)
            e(f"v_lshlrev_b32 v{z}, 16, v{u+q}\nv_and_b32 v{z+1}, 0xffff0000, v{u+q}\nv_pk_add_f32 v[{t}:{t+1}], v[{t}:{t+1}], v[{z}:{z+1}]")
            if k == 2:
                e(f"v_cvt_pk_bf16_f32 v{112+q}, v{t}, v{t+1}")
                if q & 1: e(f"buffer_store_dwordx2 v[{111+q}:{112+q}], v{vXO}, s[{R0}:{R0+3}], s{sXO} offen offset:{16*(q-1)} {OPT.get('outst', '')}")

def clone_state(e): return (list(e.vm), list(e.lg))

def build(stop=None):
    FBS.clear(); STUBS.clear()
    e = E(); seg = {}
    def mark(name, n0): seg[name] = e.l[n0:]
    n0 = 0
    if STAMP: e("s_mov_b32 s71, 0\ns_memrealtime s[96:97]\ns_memtime s[98:99]")
    prologue(e); stamp(e, 0); p0_ln(e); stamp(e, 1); p1_pre(e); stamp(e, 2)
    mark("pro", n0)
    e(f"s_cmp_ge_u32 s{sW}, 2\ns_cbranch_scc1 L_p1V")
    st0 = clone_state(e); st1 = {}; bq = {}
    def p1(T):
        e.vm, e.lg = list(st0[0]), list(st0[1])
        n0 = len(e.l); bg = Bg(); p1_main(e, T, bg); tick_dump(e, 0); stamp(e, 3); mark("p1" + T, n0)
        st1[T] = clone_state(e); bq[T] = list(bg.q)
        e(f"s_cmp_ge_u32 s{sU}, 27\ns_cbranch_scc1 L_qhN{T}")
    def qh(T, hasH):
        e.vm, e.lg = list(st1[T][0]), list(st1[T][1])
        n0 = len(e.l); b = Bg(); b.q = list(bq[T]); qh_main(e, T, hasH, b); mark("qh" + "NH"[hasH] + T, n0)
    p1("K"); qh("K", True)
    e("s_branch L_postH\nL_p1V:")
    p1("V"); qh("V", True)
    e("L_postH:")
    n0 = len(e.l)
    tick_dump(e, 1); stamp(e, 4); e("s_nop 7"); q_pack(e); dm = gelu(e, "L_skH"); attn_setup(e, dm); stamp(e, 5); attn_pre(e); stamp(e, 6); mark("postH", n0)
    e("L_attn:")
    segsA, ool = attention(e)
    n0 = len(e.l); e.vm = []
    p5(e); stamp(e, 14); mark("p5", n0)
    e("L_exit:\ns_endpgm")
    e("L_qhNK:"); qh("K", False)
    e("s_branch L_postN\nL_qhNV:"); qh("V", False)
    e("L_postN:")
    n0 = len(e.l)
    tick_dump(e, 1); stamp(e, 4); e(PKL); e("s_nop 7"); q_pack(e); async_check("L_skN", vTR + 1, PKL)(e); attn_setup(e, kv_prologue_list()); stamp(e, 5); attn_pre(e); stamp(e, 6); mark("postN", n0)
    e("s_branch L_attn")
    ool()
    seg.update(segsA)
    errs = []
    for T in "KV":
        for Hh in "HN":
            class X: pass
            x = X(); x.l = seg["p1" + T] + seg["qh" + Hh + T]; check_drain_order(x)
    def path(i):
        if i == 0: a = ["fDF"]
        else: a = ["fFF"] + ["FF"] * min(i - 1, 2) + ["DF"]
        a += ["TD"] if i == 7 else ["TF"] + ["XF"] * min(13 - 2 * i, 2) + ["XD"]
        return a + ["XT"]
    for T, Hh, i in (("K", "H", 0), ("V", "N", 1), ("K", "N", 3), ("V", "H", 6), ("K", "H", 7)):
        tr = []
        for nme in ["pro", "p1" + T, "qh" + Hh + T, "post" + Hh] + path(i) + ["p5"]: tr += seg[nme]
        errs += check_trace(tr, f"{T},{Hh},{i}")
    for nme in FBS: errs += check_trace(seg[nme], nme)
    seen = set()
    for x in errs:
        k = x.split("]", 1)[1]
        if k not in seen:
            seen.add(k)
            if len(seen) < 12: print("HAZARD", x)
    print("instructions:", sum(1 for i in e.l if i.kind != "label"), {k: len(vv) for k, vv in seg.items()})
    mac, body = compress([i.t for i in e.l])
    h = header(); k = h.index(".text")
    open("k_full.s", "w").write(h + e.text() + footer())
    return h[:k] + mac + h[k:] + body + footer(), len(seen)

if __name__ == "__main__":
    STAMP = "stamp" in sys.argv
    txt, ne = build()
    out = sys.argv[1] if len(sys.argv) > 1 else "k.s"
    open(out, "w").write(txt)
    print("bytes", len(txt), "hazards", ne)

def mb_init(e):
    for r in range(4): e(f"v_mov_b32 v{192+r}, 0x3f803f80")
```

```python
import sys, math, struct
from core import *

NAME = "parallel_sum__compressed_kv_cla__dense_activation_gelu__prompt"
def f32(x): return "0x%08x" % struct.unpack("<I", struct.pack("<f", x))[0]
CS = math.log2(math.e) / math.sqrt(128.0)

OPT = dict(kvst="sc1", norole=1, rate=1, bstep=2, bkv=17, notouch1=1, wnt=1, cnt=1, cpf=9)
for a in sys.argv[1:]:
    if "=" in a:
        k, vv = a.split("=", 1); OPT[k] = int(vv) if vv.lstrip("-").isdigit() else vv.replace("+", " ")
def NT(k): return ' nt' if OPT.get(k) else ''
XS = 0x0010000; KF = 0x0400000; VF = 0x1500000 + OPT.get('vsk', 0); HF = 0x2600000; CF = 0x2E00000; EX = 0x3F00000; FL = 0x5400000; WS_END = 0x5A00000
HS = 524288 + OPT.get('sk', 0)
FXS = FL + 0x8000; FKV = FL + 0x10000; FH = FL + 0x18000; FC = FL + 0x20000; FEX = FL + 0x28000
FS = 128
sTAG = 88
sW, sH, sIDX, sX = 3, 4, 5, 6
pX, pC, pWQ, pWUK, pWUV, pWO, pW1, pB1, pW2, pB2, pOUT, pDBG, pWS = 8, 10, 12, 14, 16, 18, 22, 24, 26, 28, 30, 32, 34
R0, R1, R2, R3, RWS = 36, 40, 44, 48, 52
sT = 56
sU = 64
sM0a, sM0b, sSa, sSb, sSc, sST = 65, 66, 67, 68, 69, 70
sQ = 72
MF = "v_mfma_f32_16x16x32_bf16"

def srd(e, r, p, nbytes, add=None):
    if add is None:
        e(f"s_mov_b32 s{r}, s{p}\ns_and_b32 s{r+1}, s{p+1}, 0xffff")
    else:
        e(f"s_add_u32 s{r}, s{p}, {add}\ns_addc_u32 s{r+1}, s{p+1}, 0\ns_and_b32 s{r+1}, s{r+1}, 0xffff")
    e(f"s_mov_b32 s{r+2}, {nbytes}\ns_mov_b32 s{r+3}, 0x20000")

vL16, vXR, vWQR, vW1R, vXD, vWQD, vW1D, vSC = 0, 1, 2, 10, 14, 18, 20, 21
vTR, vPK = 24, 28
vTAG = 23
sXS = 80
vCD, vWD, vCR, vWR = 96, 100, 104, 106
vWWIN, vCB = 176, (224, 192)
HACC, QACC = 32, 96
XNB = (224, 240)

def prologue(e):
    e(f"""
    s_cmp_ge_u32 s2, {0 if OPT.get("exit0") else 256}
    s_cbranch_scc1 L_exit
    s_load_dwordx16 s[8:23], s[0:1], 0
    s_load_dwordx8 s[24:31], s[0:1], 64
    s_load_dwordx4 s[32:35], s[0:1], 96
    v_lshrrev_b32 v33, 6, v0
    v_and_b32 v32, 63, v0
    v_readfirstlane_b32 s{sW}, v33
    v_lshlrev_b32 v{vL16}, 4, v32
    s_and_b32 s{sX}, s2, 7
    s_lshr_b32 s{sT}, s2, 3
    s_and_b32 s{sT}, s{sT}, 3
    s_lshl_b32 s{sH}, s{sX}, 2
    s_add_u32 s{sH}, s{sH}, s{sT}
    s_lshr_b32 s{sIDX}, s2, 5
    """)
    if OPT.get("cpf"):
        e(f"""
        s_getpc_b64 s[{sT+4}:{sT+5}]
        s_and_b32 s{sT+4}, s{sT+4}, 0xffffff00
        s_lshr_b32 s{sT+2}, s2, 3
        s_lshl_b32 s{sT+2}, s{sT+2}, 2
        s_add_u32 s{sT+2}, s{sT+2}, s{sW}
        v_min_u32 v152, {OPT["cpf"] - 1}, v32
        v_lshlrev_b32 v152, 14, v152
        s_lshl_b32 s{sT+2}, s{sT+2}, 7
        v_add_u32 v152, s{sT+2}, v152
        v_min_u32 v152, L_code_end-L_code_begin-4, v152
        global_load_dword v153, v152, s[{sT+4}:{sT+5}]{NT('cpnt')}
        """)
    e(f"""
    s_mul_i32 s{sU}, s{sX}, 3
    s_add_u32 s{sU}, s{sU}, s{sT}
    s_sub_u32 s{sT+1}, s{sX}, s{sIDX}
    s_and_b32 s{sT+1}, s{sT+1}, 7
    s_add_u32 s{sT+1}, s{sT+1}, 24
    s_cmp_eq_u32 s{sT}, 3
    s_cselect_b32 s{sU}, s{sT+1}, s{sU}
    """)
    e(f"""
    v_lshrrev_b32 v37, 3, v32
    v_and_b32 v38, 7, v32
    v_lshrrev_b32 v39, 4, v32
    v_xor_b32 v50, v38, v39
    v_lshlrev_b32 v50, 4, v50
    v_lshl_add_u32 v{vCD}, v37, 10, v50
    v_xor_b32 v51, 64, v{vCD}
    v_add_u32 v{vCD+1}, 7168, v51
    v_add_u32 v{vCD+2}, {2*7168}, v{vCD}
    v_add_u32 v{vCD+3}, {3*7168}, v51
    v_and_b32 v52, 15, v32
    v_lshlrev_b32 v53, 1, v39
    v_xor_b32 v53, v52, v53
    v_lshlrev_b32 v53, 4, v53
    v_lshl_add_u32 v{vWD}, v39, 13, v53
    v_add_u32 v{vWD+1}, {31744}, v{vWD}
    v_xor_b32 v51, 128, v{vWD}
    v_add_u32 v{vWD+2}, {2*31744}, v51
    v_add_u32 v{vWD+3}, {3*31744}, v51
    """)
    e(f"""
    s_lshl_b32 s{sSa}, s{sIDX}, 18
    s_lshl_b32 s{sT+1}, s{sW}, 16
    s_add_u32 s{sSa}, s{sSa}, s{sT+1}
    s_lshl_b32 s{sM0a}, s{sW}, 13
    s_and_b32 s{sT+1}, s{sW}, 1
    s_lshl_b32 s{sSb}, s{sT+1}, 17
    s_lshl_b32 s{sT+2}, s{sH}, 8
    s_add_u32 s{sSb}, s{sSb}, s{sT+2}
    s_lshl_b32 s{sM0b}, s{sW}, 12
    s_add_u32 s{sM0b}, s{sM0b}, 0x10000
    s_waitcnt lgkmcnt(0)
    """)
    srd(e, R1, pC, 2048 * 1024)
    e(f"s_cmp_ge_u32 s{sW}, 2\ns_cselect_b32 s{R2}, s{pWUV}, s{pWUK}\ns_cselect_b32 s{R2+1}, s{pWUV+1}, s{pWUK+1}")
    e(f"s_and_b32 s{R2+1}, s{R2+1}, 0xffff\ns_mov_b32 s{R2+2}, {512*8192}\ns_mov_b32 s{R2+3}, 0x20000")
    for q in range(8): emit_dma(e, p1_cdma(0, q), "c0")
    for u in range(4): emit_dma(e, p1_wdma(0, u), "w0")
    for u in range(4): emit_dma(e, p1_wdma(1, u), "w1")
    for q in range(8): emit_dma(e, p1_cdma(1, q), "c1")
    for u in range(4): emit_dma(e, p1_wdma(2, u), "w2")
    for u in range(4): emit_dma(e, p1_wdma(3, u), "w3")
    e(f"s_add_u32 s{sT+2}, s{pWS}, {FL}\ns_addc_u32 s{sT+3}, s{pWS+1}, 0\ns_load_dword s{sTAG}, s[{sT+2}:{sT+3}], 0")
    srd(e, RWS, pWS, WS_END)
    srd(e, R0, pX, 2048 * 1280)
    srd(e, R3, pB1, 1728 * 2)
    e(f"""
    v_lshrrev_b32 v34, 5, v32
    v_and_b32 v35, 31, v32
    v_mul_u32_u24 v36, 1280, v34
    v_lshl_add_u32 v36, v35, 3, v36
    s_lshl_b32 s{sT}, s2, 2
    s_add_u32 s{sT}, s{sT}, s{sW}
    s_mul_i32 s{sT}, s{sT}, 2560
    v_lshlrev_b32 v94, 3, v39
    s_lshl_b32 s{sT+4}, s{sU}, 7
    """)
    e(f"s_mov_b32 s89, s{sT}\ns_mov_b32 s90, s{sT+4}\nv_mov_b32 v151, v94")
    e(f"""
    s_and_b32 s{sT+2}, s{sH}, 3
    s_lshl_b32 s{sT+2}, s{sT+2}, 2
    s_add_u32 s{sT+2}, s{sT+2}, s{sW}
    s_lshl_b32 s{sT+2}, s{sT+2}, 14
    s_lshl_b32 s{sT+3}, s{sIDX}, 18
    s_add_u32 s{sT+2}, s{sT+2}, s{sT+3}
    v_lshlrev_b32 v140, 10, v52
    v_lshl_add_u32 v141, v39, 7, v140
    v_and_b32 v142, 1, v39
    v_lshl_add_u32 v142, v142, 7, v140
    s_mul_i32 s{sT+3}, s{sIDX}, 48
    s_and_b32 s{sT+4}, s{sW}, 1
    s_mul_i32 s{sT+4}, s{sT+4}, 24
    s_add_u32 s{sT+3}, s{sT+3}, s{sT+4}
    s_add_u32 s{sT+3}, s{sT+3}, 128
    s_lshl_b32 s{sT+3}, s{sT+3}, 13
    s_lshl_b32 s{sT+4}, s{sH}, 8
    s_add_u32 s{sT+3}, s{sT+3}, s{sT+4}
    v_and_b32 v144, 1, v32
    v_lshlrev_b32 v144, 7, v144
    v_min_u32 v143, 47, v32
    v_lshrrev_b32 v143, 1, v143
    v_lshl_add_u32 v143, v143, 13, v144
    """)
    e(f"s_mov_b32 s91, s{sT+2}\ns_mov_b32 s92, s{sT+3}")
    e(f"""
    s_mul_i32 s{sT+2}, s{sIDX}, 80
    s_mul_i32 s{sT+3}, s{sW}, 20
    s_add_u32 s{sT+2}, s{sT+2}, s{sT+3}
    s_lshl_b32 s{sT+3}, s{sT+2}, 13
    s_add_u32 s{sT+3}, s{sT+3}, s{sT+4}
    s_mul_i32 s{sT+2}, s{sT+2}, 3456
    s_lshl_b32 s{sT+4}, s{sU}, 7
    s_add_u32 s{sT+2}, s{sT+2}, s{sT+4}
    v_min_u32 v140, {7 if OPT.get("tsp") else 39}, v32
    v_and_b32 v144, 1, v140
    v_lshlrev_b32 v144, 7, v144
    v_lshrrev_b32 v140, 1, v140
    v_lshl_add_u32 v140, v140, 13, v144
    v_min_u32 v145, {3 if OPT.get("tsp") else 19}, v32
    v_mul_u32_u24 v145, 3456, v145
    """)
    srd(e, 84, pWQ, 640 * 8192)
    e(f"s_mov_b32 s93, s{sT+3}\ns_mov_b32 s94, s{sT+2}")

CSLOT = (0, 32768, 131072)
vCR2 = 124
def p1_cdma(j, q):
    setup = []
    if q % 4 == 0:
        setup = [f"s_add_u32 m0, s{sM0a}, {(j & 1) * 32768 + (q >> 2) * 4096}", f"s_add_u32 s{sT}, s{sSa}, {j * 128 + (q >> 2) * 32768}"]
    return setup, f"buffer_load_dwordx4 v{vCD + (q & 3)}, s[{R1}:{R1+3}], s{sT} offen offset:{(q & 3) * 1024}{NT('cnt')} lds"
def p1_wslot(sidx): return ((sidx + 2) & 3) * 16384
def p1_wdma(sidx, u):
    setup = []
    if u == 0:
        setup = [f"s_add_u32 m0, s{sM0b}, {p1_wslot(sidx)}", f"s_add_u32 s{sT+1}, s{sSb}, {sidx * 32 * 8192}"]
    return setup, f"buffer_load_dwordx4 v{vWD + u}, s[{R2}:{R2+3}], s{sT+1} offen offset:{u * 1024}{NT('wnt')} lds"

def emit_dma(e, pair, tag):
    su, d = pair
    for x in su: e(x)
    if su: e("s_nop 0")
    e(d, tag=tag)

def reduce32(r, t):
    L = []
    for mod in ("quad_perm:[1,0,3,2]", "quad_perm:[2,3,0,1]", "row_half_mirror", "row_mirror"):
        L += ["s_nop 0", f"v_add_f32_dpp v{r}, v{r}, v{r} {mod} row_mask:0xf bank_mask:0xf"]
    return L + [f"v_mov_b32 v{t}, v{r}", "s_nop 0", f"v_permlane16_swap_b32 v{r}, v{t}", f"v_add_f32 v{r}, v{r}, v{t}"]

def ln_ops():
    L = []; U = 50
    for k in range(10): L += [f"v_lshlrev_b32 v{U+2*k}, 16, v{40+k}", f"v_and_b32 v{U+1+2*k}, 0xffff0000, v{40+k}"]
    L += [f"v_add_f32 v70, v{U}, v{U+1}"] + [f"v_add_f32 v70, v70, v{U+k}" for k in range(2, 20)]
    L += reduce32(70, 71) + [f"v_mul_f32 v70, {f32(1/640)}, v70"]
    L += [f"v_sub_f32 v{U+k}, v{U+k}, v70" for k in range(20)]
    L += [f"v_mul_f32 v72, v{U}, v{U}"] + [f"v_fmac_f32 v72, v{U+k}, v{U+k}" for k in range(1, 20)]
    L += reduce32(72, 73)
    L += [f"v_mov_b32 v73, {f32(1e-5)}", f"v_fmac_f32 v73, {f32(1/640)}, v72", "v_rsq_f32 v73, v73", f"v_mul_f32 v73, {f32(CS)}, v73"]
    L += [f"v_mul_f32 v{U+k}, v{U+k}, v73" for k in range(20)]
    for k in range(5):
        L += [f"v_cvt_pk_bf16_f32 v{40+2*k}, v{U+4*k}, v{U+4*k+1}", f"v_cvt_pk_bf16_f32 v{41+2*k}, v{U+4*k+2}, v{U+4*k+3}", f"ds_write_b64 v76, v[{40+2*k}:{41+2*k}] offset:{k*2048}"]
    return L

def p0_ln(e):
    e(f"""
    v_lshrrev_b32 v54, 1, v52
    v_xor_b32 v54, v54, v39
    v_lshlrev_b32 v54, 4, v54
    v_lshl_add_u32 v54, v52, 7, v54
    s_and_b32 s{sT+2}, s{sW}, 1
    s_lshl_b32 s{sT+2}, s{sT+2}, 14
    v_add_u32 v{vCR}, s{sT+2}, v54
    v_xor_b32 v{vCR+1}, 64, v{vCR}
    v_lshrrev_b32 v55, 2, v52
    v_and_b32 v56, 1, v39
    v_lshl_add_u32 v56, v56, 2, v55
    v_lshlrev_b32 v56, 5, v56
    v_and_b32 v57, 3, v32
    v_lshlrev_b32 v57, 3, v57
    v_lshl_add_u32 v57, v55, 8, v57
    v_lshl_add_u32 v58, v39, 11, v57
    s_lshr_b32 s{sT+2}, s{sW}, 1
    s_lshl_b32 s{sT+2}, s{sT+2}, 13
    s_add_u32 s{sT+2}, s{sT+2}, 0x10000
    v_add_u32 v58, s{sT+2}, v58
    v_mul_u32_u24 v59, 3072, v39
    v_add_u32 v59, v59, v57
    v_add_u32 v59, {96*1024}, v59
    """)
    for i in range(8):
        e(f"v_xor_b32 v60, {32*i}, v56\nv_add_u32 v{vWR+i}, v60, v58\nv_add_u32 v{vWQR+i}, v60, v59")
    e(f"""
    v_lshrrev_b32 v60, 1, v55
    v_and_b32 v61, 1, v39
    v_lshl_add_u32 v60, v61, 1, v60
    v_lshlrev_b32 v60, 5, v60
    v_and_b32 v61, 3, v32
    v_lshlrev_b32 v61, 3, v61
    v_lshl_add_u32 v61, v55, 7, v61
    v_mul_u32_u24 v62, 3072, v39
    v_add3_u32 v61, v61, v62, 0
    v_add_u32 v61, {96*1024 + 2048}, v61
    """)
    for i in range(4):
        e(f"v_xor_b32 v62, {32*i}, v60\nv_add_u32 v{vW1R+i}, v62, v61")
    e(f"s_waitcnt lgkmcnt(0)\ns_mul_i32 s{sTAG}, s{sTAG}, 0x9E3779B1\ns_add_u32 s{sTAG}, s{sTAG}, 0x7F4A7C15")
    e(f"""
    v_lshrrev_b32 v88, 1, v35
    v_lshlrev_b32 v88, 7, v88
    v_and_b32 v89, 1, v35
    v_lshl_add_u32 v88, v89, 3, v88
    v_lshl_add_u32 v88, v34, 4, v88
    s_lshl_b32 s{sT+2}, s{sW}, 5
    s_add_u32 s{sT+2}, s{sT+2}, 0x20000
    v_add_u32 v76, s{sT+2}, v88
    """)
    e(f"""
    v_lshlrev_b32 v126, 8, v37
    v_lshl_add_u32 v126, v38, 4, v126
    s_lshr_b32 s{sXS}, s2, 1
    s_mul_i32 s{sXS}, s{sXS}, 20480
    s_and_b32 s{sT+3}, s2, 1
    s_lshl_b32 s{sT+3}, s{sT+3}, 7
    s_add_u32 s{sXS}, s{sXS}, s{sT+3}
    s_lshl_b32 s{sT+3}, s{sW}, 11
    s_add_u32 s{sXS}, s{sXS}, s{sT+3}
    s_add_u32 s{sXS}, s{sXS}, {XS}
    s_add_u32 s{sXS+1}, s{sXS}, 8192
    s_add_u32 s{sXS+2}, s{sXS}, 16384
    s_cmp_ge_u32 s{sW}, 2
    s_cselect_b32 s{sXS+2}, {WS_END}, s{sXS+2}
    s_lshl_b32 s{sT+5}, s{sW}, 10
    s_add_u32 s{sT+5}, s{sT+5}, 0x20000
    v_add_u32 v77, s{sT+5}, v{vL16}
    """)
    e(f"""
    s_lshl_b32 s{sQ}, s{sH}, 3
    s_add_u32 s{sQ}, s{sQ}, s{sIDX}
    s_mul_i32 s{sQ}, s{sQ}, {FS}
    s_add_u32 s{sQ}, s{sQ}, {FKV}
    s_lshl_b32 s{sQ+1}, s{sIDX}, 5
    s_add_u32 s{sQ+1}, s{sQ+1}, s{sH}
    s_mul_i32 s{sQ+1}, s{sQ+1}, {FS}
    s_add_u32 s{sQ+1}, s{sQ+1}, {FH}
    s_mul_i32 s{sQ+2}, s2, {FS}
    s_add_u32 s{sQ+2}, s{sQ+2}, {FXS}
    s_sub_u32 s{sQ+3}, s{sU}, 27
    s_mul_i32 s{sT+5}, s{sX}, 5
    s_add_u32 s{sQ+3}, s{sQ+3}, s{sT+5}
    v_mov_b32 v91, 0
    v_mov_b32 v92, 0x10000000
    v_lshl_add_u32 v93, v33, 6, v32
    v_cmp_eq_u32 vcc, 0, v93
    v_mov_b32 v{vTAG}, s{sTAG}
    v_and_b32 v127, 15, v32
    v_cndmask_b32 v{vSC}, v92, v91, vcc
    s_lshl_b32 s{sT+5}, s{sIDX}, 4
    s_sub_u32 s{sT+4}, 240, s{sT+5}
    v_and_b32 v93, 16, v32
    v_cmp_eq_u32 vcc, 0, v93
    v_mov_b32 v91, s{sT+5}
    v_mov_b32 v92, s{sT+4}
    v_cndmask_b32 v91, v92, v91, vcc
    v_add_u32 v127, v127, v91
    v_lshlrev_b32 v127, 7, v127
    """)

def p1_acc(T, i, j):
    if OPT.get("contig"):
        if T == "K": return 8 * (8 * (j >> 1) + 2 * (i >> 1) + (j & 1)) + 4 * (i & 1)
        return 8 * (8 * (j >> 1) + i) + 4 * (j & 1)
    if T == "K": return 8 * (8 * (i >> 1) + 4 * (j & 1) + (j >> 1)) + 4 * (i & 1)
    return 32 * i + 4 * j
def p1_units():
    U = []
    for n in range(32):
        off = n * 1024 if OPT.get("contig") else (n & 3) * 8192 + (n >> 2) * 1024
        ins = []
        for k in range(4):
            tr = vTR + 2 * (k & 1); src = 8 * n + 2 * k
            ins += [f"v_accvgpr_read_b32 v{tr}, a{src}", f"v_accvgpr_read_b32 v{tr+1}, a{src+1}", f"v_cvt_pk_bf16_f32 v{vPK+k}, v{tr}, v{tr+1}"]
        ins.insert(6, f"s_add_u32 s{sT+7}, s{sST}, {off & ~4095}")
        if OPT["kvst"] != "skip": ins.append((f"buffer_store_dwordx4 v[{vPK}:{vPK+3}], v{vL16}, s[{RWS}:{RWS+3}], s{sT+7} offen offset:{off & 4095} {OPT['kvst']}", "kv"))
        U.append(ins)
    return U

def _kind(y):
    if callable(y): return "call"
    if isinstance(y, tuple) and y[0] == "BG": y = y[1]
    return I(y[0] if isinstance(y, tuple) else y).kind
class Bg:
    def __init__(self): self.q = []
    def push(self, ins): self.q += list(ins)
    def place(self, fill, g0, g1, maxv=1, step=1):
        for g in range(g0, g1, step):
            n = 0
            while self.q and n < maxv:
                x = self.q[0]; t = x[0] if isinstance(x, tuple) else x
                k = I(t).kind if not callable(t) else "call"
                if k in ("vms", "vml") and (n > 0 or any(_kind(y) in ("vml", "vms") for y in fill[g])): break
                fill[g].append(("BG", self.q.pop(0)))
                if k in ("salu", "nop"): continue
                n += 1
                if k in ("vms", "vml"): break
    def flush(self, e):
        for x in self.q:
            t, tag = x if isinstance(x, tuple) else (x, None)
            q = I(t); e.need(q.rd | q.wr); e(t, tag)
        self.q = []

def run_gaps(e, mf, fill, nxt=None):
    f2 = []
    for g in range(len(mf)):
        a = [x for x in fill[g] if not (isinstance(x, tuple) and x[0] == "BG")]
        b = [x[1] for x in fill[g] if isinstance(x, tuple) and x[0] == "BG"]
        if b:
            def mk(b):
                def f(e):
                    for x in b:
                        t, tag = x if isinstance(x, tuple) else (x, None)
                        q = I(t); e.need(q.rd | q.wr); e(t, tag)
                f.last = True
                return f
            a.append(mk(b))
        f2.append(a)
    e.gaps(mf, f2, nxt)

def put_dma(fill, g, pair, tag):
    su, d = pair
    for x in reversed(su): fill[g - 1].append(x)
    fill[g].append((d, tag))

def qh_wslot(sidx): return ((sidx + 3) % 5) * 12288
def qh_dmas(sidx, hasH, d=0):
    L = []
    u32 = lambda x: x & 0xffffffff
    for j in range(4):
        su = [f"s_add_u32 m0, s{sM0a}, {u32((sidx & 3) * 16384 + d * 8192)}", f"s_mov_b32 s{sT}, {XS + sidx * 1024 + d * 40960}"] if j == 0 else []
        L.append((su, f"buffer_load_dwordx4 v{vXD + j}, s[{RWS}:{RWS+3}], s{sT} offen offset:{j * 1024} lds"))
    for u in range(2):
        su = [f"s_add_u32 m0, s{sM0b}, {u32(qh_wslot(sidx) + d * 6144)}", f"s_mov_b32 s{sT+1}, {sidx * 32 * 8192 + d * 131072}"] if u == 0 else []
        L.append((su, f"buffer_load_dwordx4 v{vWQD + u}, s[{R0}:{R0+3}], s{sT+1} offen offset:{u * 1024} lds"))
    if hasH:
        L.append(([f"s_mov_b32 s{sT+2}, {sidx * 32 * 3456 + d * 55296}"], f"buffer_load_dwordx4 v{vW1D}, s[{R1}:{R1+3}], s{sT+2} offen offset:2048 lds"))
    return L
def qh_xread(sidx, j):
    b = XNB[sidx & 1] + 4 * j
    return f"ds_read_b128 v[{b}:{b+3}], v{vXR} offset:{(sidx & 3) * 16384 + j * 1024}"
def qh_wread(sidx, i, n):
    r = (n & 3) * 4
    if i < 8: a, second = vWQR + i, 1024
    else: a, second = vW1R + i - 8, 512
    o = qh_wslot(sidx)
    return [f"ds_read_b64_tr_b16 a[{r}:{r+1}], v{a} offset:{o}", f"ds_read_b64_tr_b16 a[{r+2}:{r+3}], v{a} offset:{o + second}"]

def spin(e, lab, pollA, cond, limit=200000, sleep=2):
    e(f"s_mov_b32 s{sT+6}, {limit}\n{lab}:")
    pollA(e)
    e(f"s_cbranch_vccz {lab}_ok\ns_sub_u32 s{sT+6}, s{sT+6}, 1\ns_cmp_eq_u32 s{sT+6}, 0\ns_cbranch_scc1 {lab}_ok\ns_sleep {sleep}\ns_branch {lab}\n{lab}_ok:")

def qh_setup(e):
    L = []
    L += [f"s_lshl_b32 s{sQ+4}, s{sIDX}, 3", f"s_add_u32 s{sQ+4}, s{sQ+4}, s{sW}", f"s_mul_i32 s{sQ+4}, s{sQ+4}, 20480",
          f"s_sub_u32 s{sQ+5}, 15, s{sIDX}", f"s_lshl_b32 s{sQ+5}, s{sQ+5}, 3", f"s_add_u32 s{sQ+5}, s{sQ+5}, s{sW}", f"s_mul_i32 s{sQ+5}, s{sQ+5}, 20480"]
    L += [f"v_add_u32 v{vXD}, s{sQ+4}, v{vL16}", f"v_add_u32 v{vXD+1}, {4*20480 - 1024}, v{vXD}",
          f"v_add_u32 v{vXD+2}, s{sQ+5}, v{vL16}", f"v_add_u32 v{vXD+3}, {4*20480 - 3072}, v{vXD+2}", f"v_subrev_u32 v{vXD+2}, 2048, v{vXD+2}"]
    return L

STAMP = False
TS = FL + 0x40000
def stamp(e, k):
    if not STAMP or (OPT.get("lite") and k not in (0, 14)): return
    if k: e("s_memrealtime s[96:97]\ns_memtime s[98:99]")
    e(f"""s_waitcnt lgkmcnt(0)
    s_lshl_b32 s97, s2, 2
    s_add_u32 s97, s97, s{sW}
    s_lshl_b32 s97, s97, 8
    s_add_u32 s97, s97, {TS + 8 * k}
    s_mov_b64 s[100:101], exec
    s_mov_b64 exec, 1
    {"v_mov_b32 v122" if k == 3 else "v_accvgpr_write_b32 a254"}, s96
    {"v_mov_b32 v123" if k == 3 else "v_accvgpr_write_b32 a255"}, s98
    s_nop 1
    buffer_store_dwordx2 {"v[122:123]" if k == 3 else "a[254:255]"}, off, s[{RWS}:{RWS+3}], s97
    s_mov_b64 exec, s[100:101]
    s_nop 3""")

def header():
    return f"""; @launch grid=(256,1,1) block=(256,1,1) lds=163840
.amdgcn_target "amdgcn-amd-amdhsa--gfx950"
.text
.globl {NAME}_kernel
.p2align 8
.type {NAME}_kernel,@function
{NAME}_kernel:
"""
def footer():
    return f"""
.section .rodata,"a"
.p2align 6
.amdhsa_kernel {NAME}_kernel
  .amdhsa_next_free_vgpr 512
  .amdhsa_next_free_sgpr 102
  .amdhsa_accum_offset 256
  .amdhsa_group_segment_fixed_size 0
  .amdhsa_kernarg_size 112
  .amdhsa_user_sgpr_count 2
  .amdhsa_user_sgpr_kernarg_segment_ptr 1
  .amdhsa_system_sgpr_workgroup_id_x 1
.end_amdhsa_kernel
"""

def code_touch(a, b, nl, vt, dst):
    return [grp([f"s_getpc_b64 s[{sT+4}:{sT+5}]", f"LT_{a}_{code_touch.n}:", f"s_add_u32 s{sT+4}, s{sT+4}, {a}-LT_{a}_{code_touch.n}", f"s_addc_u32 s{sT+5}, s{sT+5}, {code_touch.hi(a)}",
                 f"s_lshr_b32 s{sT+6}, s2, 3", f"s_lshl_b32 s{sT+6}, s{sT+6}, 2", f"s_add_u32 s{sT+6}, s{sT+6}, s{sW}", f"s_lshl_b32 s{sT+6}, s{sT+6}, 7"]),
            f"v_lshlrev_b32 v{vt}, 10, v{vL16}", f"v_min_u32 v{vt}, {(nl - 1) << 14}, v{vt}", f"v_add_u32 v{vt}, s{sT+6}, v{vt}", f"v_min_u32 v{vt}, {b}-{a}-4, v{vt}",
            f"global_load_dword {dst}, v{vt}, s[{sT+4}:{sT+5}]"]
code_touch.n = 0
code_touch.hi = lambda a: 0
def grp_all(L):
    def f(e):
        for x in L: x(e) if callable(x) else e(x)
    return f
def grp(L):
    def f(e):
        for x in L: e(x)
    return f
vTK = 22
def tick_pre(e):
    if OPT.get("ticks"): e("s_memtime s[96:97]")
def tick_post(e):
    if OPT.get("ticks"):
        e(f"s_waitcnt lgkmcnt(0)\ns_lshl_b64 exec, 1, s71\nv_mov_b32 v{vTK}, s96\ns_mov_b64 exec, -1\ns_add_u32 s71, s71, 1")
def tick_dump(e, k):
    if OPT.get("ticks"):
        e(f"""s_lshl_b32 s97, s2, 2
        s_add_u32 s97, s97, s{sW}
        s_lshl_b32 s97, s97, 12
        s_add_u32 s97, s97, {FL + 0x100000 + 1024 * k}
        buffer_store_dword v{vTK}, v{vL16}, s[{RWS}:{RWS+3}], s97 offen
        s_mov_b32 s71, 0
        s_nop 1""")
def bar(vmtags=(), lg0=True):
    def f(e):
        tick_pre(e)
        e.need(vmtags=vmtags, lg0=lg0); e("s_barrier")
        tick_post(e)
    return f

def p1_pre(e):
    e(f"""
    s_mul_i32 s{sST}, s{sH}, {HS}
    s_lshl_b32 s{sT+2}, s{sIDX}, 16
    s_add_u32 s{sST}, s{sST}, s{sT+2}
    s_and_b32 s{sT+2}, s{sW}, 1
    s_lshl_b32 s{sT+2}, s{sT+2}, 15
    s_add_u32 s{sST}, s{sST}, s{sT+2}
    s_cmp_ge_u32 s{sW}, 2
    s_cselect_b32 s{sT+2}, {VF-KF}, 0
    s_add_u32 s{sST}, s{sST}, s{sT+2}
    s_add_u32 s{sST}, s{sST}, {KF}
    s_lshl_b32 s{sT+2}, s{sW}, 12
    v_add_u32 v{vXR}, s{sT+2}, v{vL16}
    """)
    e(f"""
    s_and_b32 s{sT+2}, s{sW}, 1
    s_lshl_b32 s{sT+3}, s{sT+2}, 7
    v_xor_b32 v94, s{sT+3}, v{vWD}
    s_lshl_b32 s{sT+3}, s{sW}, 16
    s_lshl_b32 s{sT+4}, s{sH}, 8
    s_add_u32 s{sT+3}, s{sT+3}, s{sT+4}
    v_add_u32 v{vWQD}, s{sT+3}, v94
    v_add_u32 v{vWQD+1}, 31744, v{vWQD}
    """)
    e(f"""
    v_and_b32 v94, 1, v39
    v_lshlrev_b32 v94, 1, v94
    s_lshl_b32 s{sT+3}, s{sT+2}, 2
    v_or_b32 v94, s{sT+3}, v94
    v_xor_b32 v94, v94, v38
    v_lshlrev_b32 v94, 4, v94
    v_mul_u32_u24 v95, 3456, v37
    v_add_u32 v94, v94, v95
    s_mul_i32 s{sT+3}, s{sW}, {8*3456}
    s_lshl_b32 s{sT+4}, s{sU}, 7
    s_add_u32 s{sT+3}, s{sT+3}, s{sT+4}
    v_add_u32 v{vW1D}, s{sT+3}, v94
    """)
    for x in qh_setup(e): e(x)
    e.need(vmtags=("c0", "w0"), lg0=True)
    e("s_barrier")
    for j in range(8): e(p1_cread(0, j))
    for n in range(2):
        for x in p1_wread(n): e(x)

def hacc(ft, j): return HACC + (j * 2 + (ft >> 1)) * 8 + (ft & 1) * 4
def qacc(i, j): return QACC + (j * 4 + (i >> 1)) * 8 + (i & 1) * 4
def bias_init():
    L = []
    for ft in range(4):
        d = hacc(ft, 3)
        for k in range(2):
            L += [f"v_lshlrev_b32 v{d+2*k}, 16, v{114+2*ft+k}", f"v_and_b32 v{d+2*k+1}, 0xffff0000, v{114+2*ft+k}",
                  f"v_mul_f32 v{d+2*k}, {f32(CS)}, v{d+2*k}", f"v_mul_f32 v{d+2*k+1}, {f32(CS)}, v{d+2*k+1}"]
    return L

def p1_cread(sidx, j):
    b = vCB[sidx & 1] + 4 * j
    return f"ds_read_b128 v[{b}:{b+3}], v{vCR + (sidx & 1)} offset:{((sidx >> 1) & 1) * 32768 + j * 2048}"
def p1_wread(n):
    sidx, i = divmod(n, 8); r = vWWIN + 4 * (n & 3); o = p1_wslot(sidx)
    return [f"ds_read_b64_tr_b16 v[{r}:{r+1}], v{vWR+i} offset:{o}", f"ds_read_b64_tr_b16 v[{r+2}:{r+3}], v{vWR+i} offset:{o+1024}"]

def async_check(lab, reg, reload):
    def f(e):
        e.need(f"v{reg}")
        e(f"v_cmp_ne_u32 vcc, s{sTAG}, v{reg}\ns_cbranch_vccz {lab}_ok")
        sv, sl = list(e.vm), list(e.lg)
        def poll(e):
            e(reload); e("s_waitcnt vmcnt(0)"); e(f"v_cmp_ne_u32 vcc, s{sTAG}, v{reg}")
        spin(e, lab, poll, None)
        e.vm, e.lg = sv, sl
    return f
def flag_store(sreg): return f"buffer_store_dword v{vTAG}, v{vSC}, s[{RWS}:{RWS+3}], s{sreg} offen sc1"

PARK = {0: 20, 1: 28, 2: 16, 3: 24}
def park_units():
    L = []
    for n in (2, 3, 0, 1):
        for k in range(4):
            tr = vTR + 2 * (k & 1); src = 8 * n + 2 * k
            L += [f"v_accvgpr_read_b32 v{tr}, a{src}", f"v_accvgpr_read_b32 v{tr+1}, a{src+1}", f"v_cvt_pk_bf16_f32 v{vPK+k}, v{tr}, v{tr+1}"]
        L += [f"v_accvgpr_write_b32 a{PARK[n]+k}, v{vPK+k}" for k in range(4)]
    return L
def parked_stores():
    L = []
    for n in range(4):
        L += [f"s_add_u32 s{sT+7}, s{sST}, {n * 8192}", (f"buffer_store_dwordx4 a[{PARK[n]}:{PARK[n]+3}], v{vL16}, s[{RWS}:{RWS+3}], s{sT+7} offen sc1", "kv")]
    return L

def p1_main(e, T, bg):
    fills = [[[] for _ in range(64)] for _ in range(16)]
    LNE = OPT.get("lne", 6)
    def pos(ep):
        p = [(ep - 1, g) for g in (50, 54, 58, 62)] + [(ep, g) for g in (range(2, 47, 4) if ep < 15 else range(2, 30, 3))]
        return [x for x in p if 0 <= x[0] < 16]
    for ep in range(0, 16):
        L = []
        if ep & 1 and (ep + 3) // 2 < 8: L += [(p1_cdma((ep + 3) // 2, q), f"c{(ep+3)//2}") for q in range(8)]
        if ep >= 1 and ep + 3 < 16: L += [(p1_wdma(ep + 3, u), f"w{ep+3}") for u in range(4)]
        if ep == 0 and not OPT.get("notouch1"):
            L += [(([], f"buffer_load_dword v146, v141, s[{R1}:{R1+3}], s91 offen offset:256"), "tc"), (([], f"buffer_load_dword v147, v143, s[{R2}:{R2+3}], s92 offen"), "tc"),
                  (([], f"buffer_load_dword v148, v142, s[{R1}:{R1+3}], s91 offen offset:768"), "tc")]
        if ep == OPT.get("xe", 0):
            L += [(([], f"buffer_load_dwordx2 v[{40+2*k}:{41+2*k}], v36, s[{R0}:{R0+3}], s89 offen offset:{256*k}{NT('xnt')}"), "x") for k in range(5)]
        if ep == OPT.get("be", 2):
            L += [(([], f"buffer_load_dwordx2 v[{114+2*ft}:{115+2*ft}], v151, s[{R3}:{R3+3}], s90 offen offset:{32*ft}{NT('xnt')}"), "b1") for ft in range(4)]
        if OPT.get("tsp") and OPT.get("te", 2) <= ep < OPT.get("te", 2) + 5 * OPT["tsp"] and (ep - OPT.get("te", 2)) % OPT["tsp"] == 0:
            su = [grp([f"s_mov_b32 s{R3}, s{pW1}", f"s_and_b32 s{R3+1}, s{pW1+1}, 0xffff", f"s_mov_b32 s{R3+2}, {640*3456}", f"s_mov_b32 s{R3+3}, 0x20000"])] if ep == OPT.get("te", 2) else [f"s_add_u32 s94, s94, {4*3456}"]
            L += [(([] if ep == OPT.get("te", 2) else [f"s_add_u32 s93, s93, {4*8192}"], f"buffer_load_dword v149, v140, s[84:87], s93 offen"), "tc"),
                  ((su, f"buffer_load_dword v150, v145, s[{R3}:{R3+3}], s94 offen"), "tc")]
        if ep == OPT.get("ce", 99):
            code_touch.n += 1
            ct = code_touch("L_qhH", "L_code_end", 7, 154, "v155")
            L += [(([grp_all(ct[:-1])], ct[-1]), "tc")]
        if ep == OPT.get("te", 2) and not OPT.get("tsp"):
            L += [(([], f"buffer_load_dword v149, v140, s[84:87], s93 offen{NT('tnt')}"), "tc"),
                  (([grp([f"s_mov_b32 s84, s{pW1}", f"s_and_b32 s85, s{pW1+1}, 0xffff", f"s_mov_b32 s86, {640*3456}", "s_mov_b32 s87, 0x20000"])], f"buffer_load_dword v150, v145, s[84:87], s94 offen{NT('tnt')}"), "tc")]
        if ep == LNE: L += [(([], f"buffer_store_dwordx4 v[{128+4*k}:{131+4*k}], v126, s[{RWS}:{RWS+3}], s{sXS+k} offen sc1"), "xs") for k in range(3)]
        if ep == LNE + 2: L += [(([], flag_store(sQ + 2)), "fl")]
        if ep == 11: L += [(([f"s_mov_b32 s{sT+5}, {FXS}"], f"buffer_load_dword v122, v127, s[{RWS}:{RWS+3}], s{sT+5} offen sc1"), "pa")]
        if ep == 13: L += [(d, "q0") for d in qh_dmas(0, True)]
        if ep == 14: L += [(d, "q1") for d in qh_dmas(1, True)]
        if ep == 15: L += [(d, "q2") for d in qh_dmas(2, True)] + [(d, "q3") for d in qh_dmas(3, True)]
        P = pos(ep); assert len(L) <= len(P)
        for (d, tag), (ks, g) in zip(L, P): put_dma(fills[ks], g, d, tag)
    for sidx in range(16):
        f = fills[sidx]
        for i in range(8):
            n = 8 * sidx + i + 2
            if n < 128:
                a, b = p1_wread(n); f[8 * i].append(a); f[8 * i + 1].append(b)
        if sidx < 15:
            for j in range(8): f[3 + 4 * j].append(p1_cread(sidx + 1, j))
            tags = [f"w{sidx+1}", f"c{(sidx+2)>>1}"]
            if sidx == LNE + 1: tags.append("xs")
            if sidx == 12:
                f[47].append(async_check(f"L_sa{T}", 122, f"buffer_load_dword v122, v127, s[{RWS}:{RWS+3}], s{sT+5} offen sc1"))
            f[47].append(bar(tags))
        else:
            f[47].append(bar(["q0", "q1"]))
            for j in range(4): f[49 + 2 * j].append(qh_xread(0, j))
            for n in range(3):
                a, b = qh_wread(0, n, n); f[56 + 2 * n].append(a); f[57 + 2 * n].append(b)
    for k, x in enumerate(bias_init()): fills[8 + (k >> 4)][32 + (k & 15) + ((k & 15) == 15)].append(x)
    lb = Bg(); lb.push(ln_ops())
    LNK = OPT.get("lnk", 4)
    for ks in range(LNE - LNK, LNE): lb.place(fills[ks], 0, 64 if ks < LNE - 1 else 44, maxv=1 if LNK >= 4 else 2)
    assert not lb.q, len(lb.q)
    for k in range(3): fills[LNE - 1][51 + 4 * k].append(f"ds_read_b128 v[{128+4*k}:{131+4*k}], v77 offset:{4096*k}")
    qs = [f"s_mov_b32 s{R0}, s{pWQ}", f"s_and_b32 s{R0+1}, s{pWQ+1}, 0xffff", f"s_mov_b32 s{R0+2}, {640*8192}", f"s_mov_b32 s{R0+3}, 0x20000",
          f"s_sub_u32 s{R1}, s{pW1}, 2048", f"s_subb_u32 s{R1+1}, s{pW1+1}, 0", f"s_and_b32 s{R1+1}, s{R1+1}, 0xffff",
          f"s_cmp_lt_u32 s{sU}, 27", f"s_cselect_b32 s{R1+2}, {640*3456 + 2048}, 0", f"s_mov_b32 s{R1+3}, 0x20000",
          f"s_lshl_b32 s{sM0a}, s{sW}, 12", f"s_mul_i32 s{sM0b}, s{sW}, 3072", f"s_add_u32 s{sM0b}, s{sM0b}, {96*1024}"]
    fills[12][4].append(grp(qs[:4])); fills[12][10].append(grp(qs[4:10])); fills[12][14].append(grp(qs[10:]))
    if OPT.get("contig"):
        U = p1_units()
        bg.push(U[0] + U[1]); bg.place(fills[15], 24, 46, maxv=2); assert not bg.q
        bg.push(U[2] + U[3]); bg.place(fills[15], 48, 64, maxv=2)
        bg.push([x for u in U[4:] for x in u])
    elif T == "K" or OPT.get("norole"):
        bg.push([x for u in p1_units() for x in u])
        bg.place(fills[15], 24, 46, maxv=2); bg.place(fills[15], 48, 64, maxv=2)
    else:
        bg.push(park_units())
        bg.place(fills[15], 19, 46, maxv=2); bg.place(fills[15], 48, 55, maxv=2)
        assert not bg.q
        bg.push(parked_stores() + [x for u in p1_units()[4:] for x in u])
    mfs = []
    for sidx in range(16):
        mf = []
        for i in range(8):
            for j in range(8):
                d = p1_acc(T, i, j); w = vWWIN + 4 * ((8 * sidx + i) & 3); c = vCB[sidx & 1] + 4 * j
                A, B = (w, c) if T == "K" else (c, w)
                mf.append(f"{MF} a[{d}:{d+3}], v[{A}:{A+3}], v[{B}:{B+3}], " + ("0" if sidx == 0 else f"a[{d}:{d+3}]"))
        mfs.append(mf)
    for sidx in range(16):
        run_gaps(e, mfs[sidx], fills[sidx], mfs[sidx + 1][0] if sidx < 15 else None)

vKVD = vXR
sKo, sVo, sMK, sMV = 76, 77, 78, 79
def kv_dma(kind, static_pair=None):
    so, mb, rs = (sKo, sMK, R2) if kind == "K" else (sVo, sMV, R3)
    L = []
    for k in range(4):
        su = []
        if k == 0:
            su = [f"s_add_u32 m0, s{sT+3}, s{mb}", f"s_and_b32 s{sT+3}, s{so}, 0xc000"]
        L.append((su, f"buffer_load_dwordx4 v{vKVD}, s[{rs}:{rs+3}], s{so} offen offset:{k*1024} lds"))
    return L, f"s_add_u32 s{so}, s{so}, 16384"

def qh_main(e, T, hasH, bg):
    NI = 12 if hasH else 8; NG = 4 * NI; LA = 3
    NA = OPT.get("na", 7); BKV = OPT.get("bkv", 16); RATE = OPT.get("rate", 2) if hasH else 2
    fills = [[[] for _ in range(NG)] for _ in range(20)]
    bp = NG - 4 * LA - 1
    st = 3 if hasH else 2
    def pos(ep):
        p = [(ep - 1, g) for g in range(bp + 2, NG, st)] + [(ep, g) for g in range(5 if ep == 0 else 2, bp, st)]
        return [x for x in p if 0 <= x[0] < 20]
    pend = []; lastdma = None
    for ep in range(0, 16):
        if OPT.get("norole"):
            a = qh_dmas(ep + 4, hasH)
            pend += [(d, f"q{ep+4}x") for d in a[:4]] + [(d, f"q{ep+4}") for d in a[4:]]
        elif (ep < NA) == (T == "V"):
            a, b = qh_dmas(ep + 4, hasH), qh_dmas(ep + 4, hasH, 1 if T == "K" else -1)
            pend += [(d, f"q{ep+4}x") for d in a[:4] + b[:4]] + [(d, f"q{ep+4}") for d in a[4:] + b[4:]]
        for ks, g in pos(ep):
            if pend:
                d, tag = pend.pop(0); put_dma(fills[ks], g, d, tag); lastdma = (ks, g)
    assert not pend
    for sidx in range(20):
        f = fills[sidx]
        for i in range(NI):
            s2, i2 = divmod(NI * sidx + i + LA, NI)
            if s2 < 20:
                a, b = qh_wread(s2, i2, NI * sidx + i + LA); f[4 * i].append(a); f[4 * i + 1].append(b)
        if sidx < 19:
            for j in range(4): f[3 + 4 * j].append(qh_xread(sidx + 1, j))
            tags = [f"q{sidx+1}", f"q{sidx+2}x"]
            if sidx + 2 <= 3: tags.append(f"q{sidx+2}")
            if sidx == BKV: tags.append("kv")
            f[bp].append(bar(tags))
    fills[BKV][bp + 2].append((flag_store(sQ), "fl"))
    qs = [f"s_mul_i32 s{sT+4}, s{sH}, {HS}", f"s_add_u32 s{sT+5}, s{sT+4}, {KF}", f"s_add_u32 s{R2}, s{pWS}, s{sT+5}", f"s_addc_u32 s{R2+1}, s{pWS+1}, 0",
          f"s_and_b32 s{R2+1}, s{R2+1}, 0xffff", f"s_sub_u32 s{R2+2}, 16, s{sIDX}", f"s_lshl_b32 s{R2+2}, s{R2+2}, 15", f"s_mov_b32 s{R2+3}, 0x20000",
          f"s_add_u32 s{sT+5}, s{sT+4}, {VF}", f"s_add_u32 s{R3}, s{pWS}, s{sT+5}", f"s_addc_u32 s{R3+1}, s{pWS+1}, 0",
          f"s_and_b32 s{R3+1}, s{R3+1}, 0xffff", f"s_mov_b32 s{R3+2}, s{R2+2}", f"s_mov_b32 s{R3+3}, 0x20000",
          f"s_mov_b32 s{sKo}, 0", f"s_mov_b32 s{sVo}, 0", f"s_lshl_b32 s{sMK}, s{sW}, 12", f"s_add_u32 s{sMV}, s{sMK}, 0x10000",
          f"s_mul_i32 s{sPK}, s{sH}, {8*FS}", f"s_add_u32 s{sPK}, s{sPK}, {FKV}"]
    fills[18][6].append(grp(qs[:8])); fills[18][10].append(grp(qs[8:14])); fills[18][14].append(grp(qs[14:]))
    fills[19][2].append(f"v_lshlrev_b32 v{vTR}, 3, v{vL16}"); fills[19][6].append(f"v_and_b32 v{vTR}, {7*FS}, v{vTR}")
    hs = [f"s_mul_i32 s{sHA}, s{sIDX}, {54*8192}", f"s_lshl_b32 s{sT+5}, s{sU}, 14", f"s_add_u32 s{sT+5}, s{sT+5}, {HF}", f"s_lshl_b32 s{sT+4}, s{sW}, 10",
          f"s_add_u32 s{sT+5}, s{sT+5}, s{sT+4}", f"s_add_u32 s{sHA}, s{sHA}, s{sT+5}", f"s_sub_u32 s{sHB}, 15, s{sIDX}", f"s_mul_i32 s{sHB}, s{sHB}, {54*8192}",
          f"s_add_u32 s{sHB}, s{sHB}, s{sT+5}"] if hasH else [f"s_mov_b32 s{sHA}, {WS_END}", f"s_mov_b32 s{sHB}, {WS_END}"]
    fills[19][10].append(grp(hs))
    if OPT.get("cpf2") and hasH:
        code_touch.n += 1
        for k, x in enumerate(code_touch("L_attn", "L_p5", 3, vPK, f"v{vPK+1}")): fills[17][2 + 2 * k].append(x)
    if T == "K" or OPT.get("norole"): k0, g0 = 0, 0
    else: k0, g0 = lastdma[0], lastdma[1] + 1
    for sidx in range(k0, BKV):
        bg.place(fills[sidx], g0 if sidx == k0 else 0, NG, maxv=RATE, step=OPT.get("bstep", 1) if hasH else 1)
    assert not bg.q, len(bg.q)
    mfs = []
    for sidx in range(20):
        mf = []
        for i in range(NI):
            w = ((NI * sidx + i) & 3) * 4
            for j in range(4):
                d = qacc(i, j) if i < 8 else hacc(i - 8, j)
                x = XNB[sidx & 1] + 4 * j
                if sidx: c = f"v[{d}:{d+3}]"
                elif i < 8: c = "0"
                else: c = v(hacc(i - 8, 3), 4)
                mf.append(f"{MF} v[{d}:{d+3}], a[{w}:{w+3}], v[{x}:{x+3}], {c}")
        mfs.append(mf)
    for sidx in range(20):
        run_gaps(e, mfs[sidx], fills[sidx], mfs[sidx + 1][0] if sidx < 19 else None)
    e.vm = []
sPK = 83; sHA, sHB = 74, 75
PKL = f"buffer_load_dword v{vTR+1}, v{vTR}, s[{RWS}:{RWS+3}], s{sPK} offen sc1"
def kv_prologue_list():
    L = []
    for kind, tag in (("K", "k0"), ("V", "v0"), ("K", "k1"), ("K", "k2"), ("V", "v1"), ("K", "k3")):
        D, inc = kv_dma(kind)
        for k, (su, d) in enumerate(D):
            L.append((list(reversed(su)), d, tag, [inc] if k == 3 else []))
    return L
def sprinkle(e, ops, dm, every):
    for k, x in enumerate(ops):
        if dm and k % every == 0:
            for y in dm[0][0]: e(y)
        e(x)
        if dm and k % every == 0:
            su, d, tag, post = dm.pop(0); e(d, tag=tag)
            for y in post: e(y)
def flush_dma(e, dm):
    for su, d, tag, post in dm:
        for y in su: e(y)
        if su: e("s_nop 0")
        e(d, tag=tag)
        for y in post: e(y)
    dm.clear()

def check_drain_order(e):
    written = set()
    for i in e.l:
        if i.kind == "dsr": written |= {r for r in i.wr if r[0] == "a"}
        if i.mn == "v_accvgpr_read_b32" and (i.rd & written): raise AssertionError("drain order " + i.t)
        if i.mn == "v_accvgpr_write_b32": written |= i.wr

def q_pack(e):
    for n in range(16):
        for k in range(4):
            e(f"v_cvt_pk_bf16_f32 v{QACC + 4*n + k}, v{QACC + 8*n + 2*k}, v{QACC + 8*n + 2*k + 1}")

HPK = 192
def gelu(e, lab):
    a = -2.0 * math.sqrt(2.0 / math.pi) * math.log2(math.e)
    k1 = a / CS; k2 = a * 0.044715 / CS ** 3
    GP = OPT.get("gp", 3); dm = []
    e(f"s_mov_b32 s84, {f32(k2)}\ns_mov_b32 s85, {f32(k2)}\ns_mov_b32 s86, {f32(CS)}\ns_mov_b32 s87, {f32(CS)}")
    e(f"v_mov_b32 v160, {f32(k1)}\nv_mov_b32 v161, {f32(k1)}\nv_mov_b32 v162, {f32(CS)}\nv_mov_b32 v163, {f32(CS)}")
    for n in range(8):
        if n == max(0, GP - 2): e(PKL)
        if n == GP: async_check(lab, vTR + 1, PKL)(e); dm = kv_prologue_list()
        b = HACC + 8 * n; t = 164 + 8 * (n & 1); L = []
        L += [f"v_pk_mul_f32 v[{t+2*k}:{t+2*k+1}], v[{b+2*k}:{b+2*k+1}], v[{b+2*k}:{b+2*k+1}]" for k in range(4)]
        L += [f"v_pk_fma_f32 v[{t+2*k}:{t+2*k+1}], v[{t+2*k}:{t+2*k+1}], s[84:85], v[160:161]" for k in range(4)]
        L += [f"v_pk_mul_f32 v[{t+2*k}:{t+2*k+1}], v[{t+2*k}:{t+2*k+1}], v[{b+2*k}:{b+2*k+1}]" for k in range(4)]
        L += [f"v_exp_f32 v{t+k}, v{t+k}" for k in range(8)]
        L += [f"v_pk_fma_f32 v[{t+2*k}:{t+2*k+1}], v[{t+2*k}:{t+2*k+1}], s[86:87], v[162:163]" for k in range(4)]
        L += [f"v_rcp_f32 v{t+k}, v{t+k}" for k in range(8)]
        L += [f"v_pk_mul_f32 v[{t+2*k}:{t+2*k+1}], v[{t+2*k}:{t+2*k+1}], v[{b+2*k}:{b+2*k+1}]" for k in range(4)]
        L += [f"v_cvt_pk_bf16_f32 v{t+k}, v{t+2*k}, v{t+2*k+1}" for k in range(4)]
        L += [f"v_accvgpr_write_b32 a{HPK+4*n+k}, v{t+k}" for k in range(4)]
        sprinkle(e, L, dm, 11)
    return dm
def h_store(n):
    j, up = n >> 1, n & 1
    return ([f"s_add_u32 s{sT+7}, s{sHA + (j >> 1)}, {(j & 1) * 4096 + up * 8192}"],
            f"buffer_store_dwordx4 a[{HPK+4*n}:{HPK+4*n+3}], v{vL16}, s[{RWS}:{RWS+3}], s{sT+7} offen sc1")

def Qr(j, t): return 96 + (4 * j + t) * 4
def Sr(b, j, kt=0): return 160 + 32 * b + 8 * j + 4 * kt
def Pr(b, j): return 224 + 16 * b + 4 * j
def NEGM(j): return 32 + 4 * j
def MASK(par, kt): return 48 + 8 * par + 4 * kt
def CT(kt): return 64 + 4 * kt
TT = 72
def LT(b, j): return 76 + 4 * b + j
def LL(j): return 84 + j
vCHK = 88
def Or(j, dt): return 32 * j + 4 * dt
FK, FV = 128, 160
vKR, vVR = 2, 3
sTHR, sCNT, sRET, sCA, sCB = 90, 91, 92, 94, 95
NEG_INF = "0xff800000"

def attn_setup(e0, dm):
    L = []
    class C:
        def __call__(self, t, tag=None): L.extend(x.strip() for x in t.strip().split("\n") if x.strip())
    _attn_setup(C())
    G = []
    for x in L:
        if G and (x.startswith(("s_addc", "s_subb", "s_cselect")) or G[-1].split("\n")[-1].startswith("s_nop")): G[-1] += "\n" + x
        else: G.append(x)
    sprinkle(e0, G, dm, 8); flush_dma(e0, dm)
def _attn_setup(e):
    e(f"""
    v_lshrrev_b32 v89, 4, v{vL16}
    v_and_b32 v90, 15, v89
    v_lshrrev_b32 v89, 4, v89
    v_lshlrev_b32 v89, 2, v89
    v_sub_u32 v89, v89, v90
    v_mov_b32 v90, {NEG_INF}
    v_mov_b32 v91, 0
    s_lshl_b32 s{sT}, s{sW}, 4
    s_mov_b32 s{sTHR}, {f32(2.0**40)}
    v_mov_b32 v{vKR}, v{vL16}
    v_add_u32 v{vVR}, 0x18000, v{vL16}
    """)
    for par in range(2):
        for kt in range(2):
            for r in range(4):
                k = (par * 2 + kt) * 4 + r
                e(f"s_sub_i32 s{sT+1}, s{sT}, {32*par + 16*kt + r}\nv_cmp_ge_i32 s[{sCA}:{sCA+1}], s{sT+1}, v89\ns_nop 1\nv_cndmask_b32 v{MASK(par, kt)+r}, v90, v91, s[{sCA}:{sCA+1}]")
    srd(e, R0, pWO, 4096 * 1280); srd(e, R1, pW2, 1728 * 1280)
    e(f"""
    s_lshl_b32 s{sT}, s2, 2
    s_add_u32 s{sT}, s{sT}, s{sW}
    v_lshrrev_b32 v5, 4, v{vL16}
    s_mul_i32 s{sT+1}, s{sT}, 40
    v_min_u32 v4, 39, v5
    v_add_u32 v4, s{sT+1}, v4
    v_lshlrev_b32 v4, 7, v4
    s_mul_i32 s{sT+1}, s{sT}, 17
    v_min_u32 v5, 16, v5
    v_add_u32 v5, s{sT+1}, v5
    v_lshlrev_b32 v5, 7, v5
    """)
    e(f"""
    s_lshl_b32 s{sT}, s{sH}, 15
    s_lshl_b32 s{sT+1}, s{sW}, 10
    s_add_u32 s{sT}, s{sT}, s{sT+1}
    s_add_u32 s{sT}, s{sT}, {CF}
    s_lshl_b32 s{sCA}, s{sIDX}, 20
    s_add_u32 s{sCA}, s{sCA}, s{sT}
    s_sub_u32 s{sCB}, 15, s{sIDX}
    s_lshl_b32 s{sCB}, s{sCB}, 20
    s_add_u32 s{sCB}, s{sCB}, s{sT}
    """)

def kread(n, f): return f"ds_read_b128 a[{FK+4*f}:{FK+4*f+3}], v{vKR} offset:{(n & 3) * 8192 + f * 1024}"
def vread(n, f): return f"ds_read_b128 a[{FV+4*f}:{FV+4*f+3}], v{vVR} offset:{(n & 3) * 8192 + f * 1024}"

def xreduce(e, op, regs, tmps):
    for sw in ("v_permlane16_swap_b32", "v_permlane32_swap_b32"):
        for r, t in zip(regs, tmps): e(f"v_mov_b32 v{t}, v{r}")
        e("s_nop 1")
        for r, t in zip(regs, tmps): e(f"{sw} v{r}, v{t}")
        e("s_nop 0")
        for r, t in zip(regs, tmps): e(f"{op} v{r}, v{r}, v{t}")

def max8(e, d, sreg):
    e(f"v_max3_f32 v{d}, v{sreg}, v{sreg+1}, v{sreg+2}\nv_max3_f32 v{d}, v{d}, v{sreg+3}, v{sreg+4}\nv_max3_f32 v{d}, v{d}, v{sreg+5}, v{sreg+6}\nv_max_f32 v{d}, v{d}, v{sreg+7}")

def sm_ops(b, J):
    L = []; k = 0
    for j in J:
        for x in range(8):
            t = TT + (k & 3); tp = TT + ((k - 1) & 3)
            fol = []
            if x == 1: fol.append(f"v_add_f32 v{LT(b, j)}, v{tp}, v{t}")
            elif x > 1: fol.append(f"v_add_f32 v{LT(b, j)}, v{LT(b, j)}, v{t}")
            if OPT.get("summ"): fol = []
            if x & 1: fol.insert(0 if OPT.get("cfirst") else len(fol), f"v_cvt_pk_bf16_f32 v{Pr(b, j) + (x >> 1)}, v{tp}, v{t}")
            L.append((f"v_exp_f32 v{t}, v{Sr(b, j) + x}", fol)); k += 1
    return L

FBS = {}
STUBS = []
class Blk:
    def __init__(self, name, A, B, first=False): self.name, self.A, self.B, self.first = name, A, B, first
    def act(self, n):
        out = []
        for st, lo, hi in ((self.B, 2, 3), (self.A, 0, 1)):
            if n < 0 and self.first: continue
            if st == "F":
                a_lo = a_hi = True
            else:
                d = n - {"D": 0, "T": -4, "X": -100}[st]
                a_lo, a_hi = d < 2, d < 4
            if a_hi: out.append(hi)
            if a_lo: out.append(lo)
        return out
    def masked(self, n):
        out = []
        for st, lo, hi in ((self.B, 2, 3), (self.A, 0, 1)):
            if st == "D": out.append((lo if n < 2 else hi, n & 1))
        return out

def attn_block(e, bk):
    nm = bk.name
    dma = bk.B == "F"
    canon = [(regs_of(f"a[{FK+4*f}:{FK+4*f+3}]"), None) for f in range(8)]
    e.lg = list(canon) if bk.first else canon[4:]
    nper = 2 if bk.B == "T" else 4
    nextra = [0]
    for lp in range(nper):
        p = lp - 2
        nq, ns, nv = p + 2, p + 1, p
        JQ = bk.act(nq) if bk.B != "T" else []
        JS = bk.act(ns); JV = bk.act(nv); JN = bk.act(ns + 1) if not (bk.B == "T" and lp == 1) else []
        if bk.B == "T" and lp == 1: JS = []
        bq, bs, bv = nq & 1, ns & 1, nv & 1
        pre = []
        msk = dict(bk.masked(nq)) if JQ else {}
        assert len(msk) <= 1
        first_qk = bk.first and lp == 0
        for j, par in msk.items():
            if not first_qk:
                for kt in range(2):
                    for r in range(4): pre.append(f"v_add_f32 v{CT(kt)+r}, v{NEGM(j)+r}, v{MASK(par, kt)+r}")
        mf = []; kstart = []; vstart = []
        for f in range(8 if JQ else 0):
            t, kt = f >> 1, f & 1
            kstart.append(len(mf))
            for j in JQ:
                d = Sr(bq, j, kt)
                if t: c = v(d, 4)
                elif first_qk: c = v(MASK(msk[j], kt), 4) if j in msk else "0"
                else: c = v(CT(kt), 4) if j in msk else v(NEGM(j), 4)
                mf.append(f"{MF} v[{d}:{d+3}], a[{FK+4*f}:{FK+4*f+3}], v[{Qr(j, t)}:{Qr(j, t)+3}], {c}")
        for f in range(8 if JV else 0):
            vstart.append(len(mf))
            for j in JV:
                o = Or(j, f)
                c = "0" if (bk.first and nv == 0) else ac(o, 4)
                mf.append(f"{MF} a[{o}:{o+3}], a[{FV+4*f}:{FV+4*f+3}], v[{Pr(bv, j)}:{Pr(bv, j)+3}], {c}")
        NG = len(mf)
        fill = [[] for _ in range(NG)]
        def odd(g): return min(g + 1, NG - 1)
        if JV:
            if lp == 2: pre.insert(0, f"v_xor_b32 v{vVR}, 0x8000, v{vVR}")
            if JQ:
                for f in range(8): fill[odd(kstart[f]) if len(JQ) > 1 else kstart[f]].append(vread(nv, f))
            else:
                for f in range(8): pre.append(vread(nv, f))
        needK = bk.B == "F" or (bk.B == "D" and lp < 3)
        if needK:
            if JV:
                if lp == 3: fill[vstart[0] - 1].append(f"v_xor_b32 v{vKR}, 0x8000, v{vKR}")
                for f in range(8): fill[odd(vstart[f]) if len(JV) > 1 else vstart[f]].append(kread(p + 3, f))
            else:
                for f in range(8): fill[kstart[f] + len(JQ) - 1].append(kread(p + 3, f))
        def needf(base, f0):
            def g(e): e.need(f"a[{base+4*f0}:{base+4*f0+15}]")
            return g
        if JQ and JV:
            fill[kstart[4] - 2].append(needf(FK, 4)); fill[vstart[0] - 2].append(needf(FV, 0)); fill[vstart[4] - 2].append(needf(FV, 4))
            if needK: fill[NG - 2].append(needf(FK, 0))
        def ride(L, g0, g1, tag=None):
            st = max(2, (g1 - g0) // len(L))
            for k, x in enumerate(L): put_dma(fill, (g0 + st * k) | 1, x, tag)
        if bk.first and lp >= 2: ride([h_store(n) for n in range(4 * lp - 8, 4 * lp - 4)], 4, NG)
        if nm == "XD" and lp < 3: ride([ctx_store(96, sCA, n) for n in range(3 * lp, min(8, 3 * lp + 3))], 4, NG)
        if nm == "TD" and lp >= 2: ride([ctx_store(96, sCA, n) for n in range(4 * lp - 8, 4 * lp - 4)], 2 if lp == 2 else 0, NG if lp == 2 else vstart[0])
        if bk.B == "D" and lp == 2: fill[1].append(PHL)
        if bk.B == "D" and lp == 3: ride((p5_dmas(0) + p5_dmas(1))[:8], vstart[0], NG)
        if bk.B == "T": ride((p5_dmas(0) + p5_dmas(1))[8 + 4 * lp:12 + 4 * lp], 0, NG)
        if lp & 1 and bk.B != "T":
            gb = vstart[0] if JV else -1
            if dma: n = 12 + (6 + sum(1 for g in range(gb) for x in fill[g] if _kind(x) == "vms") if (bk.first and lp == 3) else 0)
            else: n = (8 if lp == 1 else 0) + nextra[0] + sum(1 for g in range(gb) for x in fill[g] if _kind(x) in ("vml", "vms"))
            def mkb(n):
                def f(e):
                    lg = list(e.lg)
                    if OPT.get("ticks"): e("s_waitcnt lgkmcnt(0)")
                    tick_pre(e); e(f"s_waitcnt vmcnt({n})\ns_barrier"); tick_post(e)
                    e.lg = lg
                return f
            b_ins = mkb(n)
            if bk.B == "D" and lp == 3: fill[gb].append(async_check(f"L_h{nm}", 20, PHL))
            if gb >= 0: fill[gb].append(b_ins)
            else: pre.insert(0, b_ins)
        if dma and not (bk.first and lp == 0):
            L, inc = kv_dma("V" if lp & 1 else "K")
            if lp & 1: g0, span = (vstart[0] if JV else 0), (8 * len(JV) if JV else NG)
            else: g0, span = 0, 8 * len(JQ)
            st = span // 4
            for x in reversed(L[0][0]): fill[max(0, g0 - 4)].append(x)
            dp = OPT.get("dpos", 1)
            for k, d in enumerate(L): fill[g0 + dp + st * k].append(d[1])
            fill[min(NG - 1, g0 + dp + 1 + st * 3)].append(inc if g0 + dp + 1 + st * 3 < NG else ("BG", inc))
        if nm in ("DF", "TF") and lp == 3: fill[NG - 1].append(flag_store(sQ + 1))
        if OPT.get("cpf2") and nm == "TF" and lp == 3:
            code_touch.n += 1
            for k, x in enumerate(code_touch("L_XD", "L_exit", 2, 6, "a242")): fill[2 * k + (0 if k == 0 else 1)].append(x)
        if bk.first and lp == 1:
            fill[NG - 5].append(f"buffer_load_dword a240, v4, s[{R0}:{R0+3}], 0 offen"); fill[NG - 1].append(f"buffer_load_dword a241, v5, s[{R1}:{R1+3}], 0 offen")
        if JS:
            ops = sm_ops(bs, JS)[2:]
            W = NG - 4 if JN else NG - 1
            W = max(W, 1)
            lastg = 0; tile_done = []
            for k, (ex, fol) in enumerate(ops):
                g = (k * W) // len(ops)
                if W >= 2 * len(ops): g &= ~1
                fill[g].append(ex)
                for x in fol: fill[min(g + 1, NG - 1)].append(x) if g + 1 <= NG - 1 else None
                lastg = g + 1
                if (k + 2) % 8 == 7: tile_done.append(lastg)
            lts = [LT(bs, j) for j in JS]
            ck = []
            if len(lts) == 4: fill[min(NG - 1, tile_done[2] + 2)].append(f"v_max3_f32 v{vCHK}, v{lts[0]}, v{lts[1]}, v{lts[2]}"); ck.append(f"v_max_f32 v{vCHK}, v{vCHK}, v{lts[3]}")
            elif len(lts) == 3: ck.append(f"v_max3_f32 v{vCHK}, v{lts[0]}, v{lts[1]}, v{lts[2]}")
            elif len(lts) == 2: ck.append(f"v_max_f32 v{vCHK}, v{lts[0]}, v{lts[1]}")
            ck.append(f"v_cmp_lt_f32 vcc, s{sTHR}, v{vCHK if len(lts) > 1 else lts[0]}")
            gck = max(lastg, NG - 3) if JN else lastg
            assert gck <= NG - 2
            fb = f"FB{bs}_{''.join(map(str, JS))}"
            FBS[fb] = (bs, JS)
            site = f"L_{nm}_{lp}"
            STUBS.append((site, fb))
            for x in ck: fill[gck].append(x)
            fill[NG - 1].append(grp([f"s_cbranch_vccnz {site}_fb", f"{site}_ret:"]))
        post = None
        if JV:
            for k, j in enumerate(JV):
                g = 1 if k == 0 else min(NG - 5, 16 * k - 3)
                fill[g].append(f"v_mov_b32 v{LL(j)}, v{LT(bv, j)}" if (bk.first and nv == 0) else f"v_add_f32 v{LL(j)}, v{LL(j)}, v{LT(bv, j)}")
        head = sm_ops((ns + 1) & 1, JN)[:2] if JN else []
        if head and not first_qk:
            assert post is None
            fill[NG - 4].append(head[0][0]); fill[NG - 2].append(head[1][0])
            for x in head[1][1]: fill[NG - 1].append(x)
        if lp == 0 and JQ: e.need(f"a[{FK}:{FK+15}]")
        for x in pre:
            if callable(x): x(e)
            else: e(x)
        if pre: e("s_nop 1")
        if OPT.get("summ"):
            for g in range(NG): fill[g] = [x for x in fill[g] if not (isinstance(x, str) and (x.startswith(f"v_add_f32 v8") or x.startswith("v_max") or x.startswith("v_cmp")))]
            fill[1].append(f"v_max_f32 v{vCHK}, v{160+8*bv}, v{164+8*bv}"); fill[5 if OPT["summ"] == 1 else 1].append(f"v_cmp_lt_f32 vcc, s{sTHR}, v{vCHK}")
            br_ = [x for x in fill[NG - 1] if callable(x)]; fill[NG - 1] = [x for x in fill[NG - 1] if not callable(x)]; fill[6 if OPT["summ"] == 1 else 4] += br_
            for pos, j in ((NG - 3, 2), (13, 3)):
                mf.insert(pos, f"{MF} v[{160+8*bs+4*(j-2)}:{163+8*bs+4*(j-2)}], v[192:195], v[{Pr(bs, j)}:{Pr(bs, j)+3}], v[{160+8*bv+4*(j-2)}:{163+8*bv+4*(j-2)}]")
                fill.insert(pos, [])
            NG += 2
        fill = [[(x[1] if isinstance(x, tuple) and x[0] == "BG" else x) for x in f] for f in fill] if False else fill
        nextra[0] += sum(1 for g in range(NG) for x in fill[g] if _kind(x) in ("vml", "vms"))
        run_gaps(e, mf, fill)
        if nm == "TD" and lp == 1: attn_epilogue(e, (0, 1), 96)
        if post:
            for x in post: e(x)
            br(e); e("s_nop 1")
        if first_qk:
            e("s_nop 7")
            for j in range(4): max8(e, NEGM(j), Sr(0, j))
            xreduce(e, "v_max_f32", [NEGM(j) for j in range(4)], [NEGM(j) + 1 for j in range(4)])
            for j in range(4):
                e(f"v_sub_f32 v{NEGM(j)}, 0, v{NEGM(j)}")
                for r in range(1, 4): e(f"v_mov_b32 v{NEGM(j)+r}, v{NEGM(j)}")
            for j in (3, 2, 1, 0):
                for x in range(8): e(f"v_add_f32 v{Sr(0, j)+x}, v{Sr(0, j)+x}, v{NEGM(j)}")
            e(head[0][0]); e(head[1][0]); e("s_nop 0")
            for x in head[1][1]: e(x)
    if bk.B == "F":
        assert len(e.lg) <= 4 and [r for r, _ in e.lg] == [r for r, _ in canon][8 - len(e.lg):], (nm, len(e.lg))

def ctx_store(pk, sbase, n):
    return ([f"s_add_u32 s{sT+7}, s{sbase}, {(n >> 2) * 4096 + (n & 3) * 8192}"],
            f"buffer_store_dwordx4 v[{pk+4*n}:{pk+4*n+3}], v{vL16}, s[{RWS}:{RWS+3}], s{sT+7} offen sc1")
def attn_epilogue(e, tiles, pk0, sbase=None):
    e("s_nop 7")
    ls = [LL(j) for j in tiles]
    xreduce(e, "v_add_f32", ls, [89, 90])
    for j in tiles: e(f"v_rcp_f32 v{LL(j)}, v{LL(j)}")
    for hi, j in enumerate(tiles):
        e(f"v_mov_b32 v94, v{LL(j)}\nv_mov_b32 v95, v{LL(j)}")
        for t in range(4):
            pk = pk0 + 16 * hi + 4 * t
            for k in range(4):
                src = Or(j, 2 * t) + 2 * k; tr = 90 + 2 * (k & 1)
                e(f"v_accvgpr_read_b32 v{tr}, a{src}\nv_accvgpr_read_b32 v{tr+1}, a{src+1}")
                e(f"v_pk_mul_f32 v[{tr}:{tr+1}], v[{tr}:{tr+1}], v[94:95]")
                e(f"v_cvt_pk_bf16_f32 v{pk+k}, v{tr}, v{tr+1}")
            if sbase is not None:
                su, x = ctx_store(pk0, sbase, 4 * hi + t); e(su[0]); e(x)

def fallback(e, name, b, J):
    e(f"{name}:\ns_nop 15")
    for j in J:
        d = 89
        max8(e, d, Sr(b, j))
        xreduce(e, "v_max_f32", [d], [90])
        e(f"v_max_f32 v{d}, 0, v{d}\nv_sub_f32 v90, 0, v{d}\nv_exp_f32 v90, v90")
        for r in range(4): e(f"v_sub_f32 v{NEGM(j)+r}, v{NEGM(j)+r}, v{d}")
        for x in range(8): e(f"v_sub_f32 v{Sr(b, j)+x}, v{Sr(b, j)+x}, v{d}\nv_sub_f32 v{Sr(b ^ 1, j)+x}, v{Sr(b ^ 1, j)+x}, v{d}")
        e(f"v_mul_f32 v{LL(j)}, v{LL(j)}, v90")
        for x in range(0, 32, 2):
            o = Or(j, 0) + x
            e(f"v_accvgpr_read_b32 v91, a{o}\nv_accvgpr_read_b32 v92, a{o+1}\nv_mul_f32 v91, v91, v90\nv_mul_f32 v92, v92, v90\nv_accvgpr_write_b32 a{o}, v91\nv_accvgpr_write_b32 a{o+1}, v92")
    for ex, fol in sm_ops(b, J):
        e(ex); e("s_nop 0")
        for x in fol: e(x)
    for ex, fol in sm_ops(b ^ 1, [3])[:2]: e(ex)
    e(f"s_nop 1\ns_setpc_b64 s[{sRET}:{sRET+1}]")

def attn_pre(e):
    e.need(vmtags=("k0",), lg0=True)
    e("s_barrier")
    for f in range(8): e(kread(0, f))

def attention(e):
    B = {k: Blk(k, k[-2], k[-1], k.startswith("f")) for k in ("fFF", "fDF", "FF", "DF", "TF", "TD", "XF", "XD", "XT")}
    segs = {}
    def seg(name, fn):
        n0 = len(e.l); fn(); segs[name] = e.l[n0:]
    e(f"s_cmp_eq_u32 s{sIDX}, 0\ns_cbranch_scc1 L_fDF")
    seg("fFF", lambda: attn_block(e, B["fFF"]))
    e(f"s_sub_u32 s{sCNT}, s{sIDX}, 1\ns_cmp_eq_u32 s{sCNT}, 0\ns_cbranch_scc1 L_DF\n.p2align 3\nL_FF:")
    seg("FF", lambda: attn_block(e, B["FF"]))
    e(f"s_sub_u32 s{sCNT}, s{sCNT}, 1\ns_cmp_lg_u32 s{sCNT}, 0\ns_cbranch_scc1 L_FF\nL_DF:")
    seg("DF", lambda: attn_block(e, B["DF"]))
    e(f"s_cmp_eq_u32 s{sIDX}, 7\ns_cbranch_scc1 L_TD\nL_TF:")
    seg("TF", lambda: (attn_block(e, B["TF"]), attn_epilogue(e, (0, 1), 96)))
    stamp(e, 7)
    e(f"s_lshl_b32 s{sCNT}, s{sIDX}, 1\ns_sub_u32 s{sCNT}, 13, s{sCNT}\n.p2align 3\nL_XF:")
    seg("XF", lambda: attn_block(e, B["XF"]))
    e(f"s_sub_u32 s{sCNT}, s{sCNT}, 1\ns_cmp_lg_u32 s{sCNT}, 0\ns_cbranch_scc1 L_XF")
    e("L_XD:")
    seg("XD", lambda: (p5_setup(e), attn_block(e, B["XD"])))
    e("L_XT:")
    seg("XT", lambda: attn_block(e, B["XT"]))
    def out_of_line():
        e("L_fDF:")
        seg("fDF", lambda: attn_block(e, B["fDF"]))
        e("s_branch L_TF\nL_TD:")
        seg("TD", lambda: (p5_setup(e), attn_block(e, B["TD"])))
        e("s_branch L_XT")
        for site, fb in STUBS:
            e(f"{site}_fb:\ns_call_b64 s[{sRET}:{sRET+1}], {fb}\ns_branch {site}_ret")
        for name, (b, J) in FBS.items():
            seg(name, lambda: fallback(e, name, b, J))
    return segs, out_of_line

sMT, sNT, sS, sAH, sAC, sWH, sWC, sXO, sFH, sFC = 64, 65, 66, 67, 68, 69, 70, 76, 77, 78
sMA, sMW, sBO, sEXs, sEXl, sFE = 79, 80, 81, 82, 83, 84
SLOT = 36864
vWD5, vRB, vRE, vRO, vP1, vP2, vL4K, vXO, vBO = 4, 10, 12, 14, 16, 17, 9, 18, 19
PHL = f"buffer_load_dword v20, v{vP1}, s[{RWS}:{RWS+3}], s{sFH} offen sc1"
def p5_setup(e):
    e(f"""
    s_lshr_b32 s{sMT}, s{sX}, 2
    s_lshl_b32 s{sMT}, s{sMT}, 3
    s_lshr_b32 s{sT}, s2, 3
    s_and_b32 s{sT}, s{sT}, 7
    s_add_u32 s{sMT}, s{sMT}, s{sT}
    s_lshr_b32 s{sNT}, s2, 6
    s_and_b32 s{sS}, s{sX}, 3
    s_sub_u32 s{sT+1}, 15, s{sMT}
    s_min_u32 s{sT}, s{sMT}, s{sT+1}
    s_mul_i32 s{sT}, s{sT}, {32*FS}
    s_add_u32 s{sFH}, s{sT}, {FH}
    s_mul_i32 s{sT+1}, s{sS}, {8*FS}
    s_add_u32 s{sFC}, s{sT}, s{sT+1}
    s_add_u32 s{sFC}, s{sFC}, {FC}
    v_lshlrev_b32 v{vP1}, 3, v{vL16}
    v_and_b32 v{vP2}, {7*FS}, v{vP1}
    v_and_b32 v{vP1}, {31*FS}, v{vP1}
    """)
    e(f"""
    s_mul_i32 s{sT+3}, s{sMT}, {54*8192}
    s_add_u32 s{sT+3}, s{sT+3}, {HF}
    s_lshl_b32 s{sT+4}, s{sMT}, 20
    s_add_u32 s{sT+4}, s{sT+4}, {CF}
    """)
    srd(e, R0, pWS, 54 * 8192, f"s{sT+3}")
    srd(e, R1, pWS, 128 * 8192, f"s{sT+4}")
    srd(e, R2, pW2, 1728 * 1280)
    srd(e, R3, pWO, 4096 * 1280)
    e(f"""
    s_lshl_b32 s{sMA}, s{sW}, 12
    s_mul_i32 s{sAH}, s{sS}, {14*8192}
    s_add_u32 s{sAH}, s{sAH}, s{sMA}
    s_lshl_b32 s{sAC}, s{sS}, 18
    s_add_u32 s{sAC}, s{sAC}, s{sMA}
    s_mul_i32 s{sMW}, s{sW}, 5120
    s_add_u32 s{sMW}, s{sMW}, 16384
    s_mul_i32 s{sT}, s{sW}, {16*1280}
    s_mul_i32 s{sBO}, s{sNT}, 320
    s_add_u32 s{sT}, s{sT}, s{sBO}
    s_mul_i32 s{sWH}, s{sS}, {14*32*1280}
    s_add_u32 s{sWH}, s{sWH}, s{sT}
    s_mul_i32 s{sWC}, s{sS}, {1024*1280}
    s_add_u32 s{sWC}, s{sWC}, s{sT}
    v_lshrrev_b32 v{vXO}, 4, v{vL16}
    """)
    for k in range(5):
        e(f"""
        v_add_u32 v{vRB}, {64*k}, v{vXO}
        v_mul_u32_u24 v{vRB+1}, 3277, v{vRB}
        v_lshrrev_b32 v{vRB+1}, 16, v{vRB+1}
        v_mul_u32_u24 v{vRE}, 20, v{vRB+1}
        v_sub_u32 v{vRB}, v{vRB}, v{vRE}
        v_lshrrev_b32 v{vRE}, 1, v{vRB+1}
        v_and_b32 v{vRE}, 2, v{vRE}
        v_xor_b32 v{vRB}, v{vRB}, v{vRE}
        v_mul_u32_u24 v{vRB+1}, 1280, v{vRB+1}
        v_lshl_add_u32 v{vWD5+k}, v{vRB}, 4, v{vRB+1}
        """)
        if 0 < k < 4: e(f"v_subrev_u32 v{vWD5+k}, {1024*k}, v{vWD5+k}")
    e(f"""
    s_and_b32 s{sT}, s{sW}, 1
    s_lshl_b32 s{sT+1}, s{sT}, 12
    v_add_u32 v{vRB}, s{sT+1}, v{vL16}
    v_add_u32 v{vRB+1}, {2*SLOT}, v{vRB}
    s_lshr_b32 s{sT+1}, s{sW}, 1
    s_mul_i32 s{sT+2}, s{sT+1}, 160
    s_add_u32 s{sBO}, s{sBO}, s{sT+2}
    s_add_u32 s{sT+2}, s{sT+2}, 16384
    v_lshrrev_b32 v{vRE}, 2, v{vXO}
    v_mul_u32_u24 v{vRE}, 320, v{vRE}
    v_and_b32 v{vRO}, 3, v{vXO}
    v_lshl_add_u32 v{vRE}, v{vRO}, 3, v{vRE}
    v_add_u32 v{vRE}, s{sT+2}, v{vRE}
    v_lshlrev_b32 v{vRO+1}, 1, v{vXO}
    v_and_b32 v{vRO+1}, 32, v{vRO+1}
    s_cmp_eq_u32 s{sT+1}, 0
    s_cselect_b32 s{sT+3}, 1, -1
    v_mul_i32_i24 v{vRO+1}, s{sT+3}, v{vRO+1}
    v_sub_u32 v{vRO}, v{vRE}, v{vRO+1}
    v_add_u32 v{vRE}, v{vRE}, v{vRO+1}
    v_add_u32 v{vRE+1}, {2*SLOT}, v{vRE}
    v_add_u32 v{vRO+1}, {2*SLOT}, v{vRO}
    v_add_u32 v{vL4K}, 4096, v{vL16}
    s_lshl_b32 s{sXO}, s{sMT}, 3
    s_lshl_b32 s{sT}, s{sT}, 2
    s_add_u32 s{sXO}, s{sXO}, s{sT}
    s_add_u32 s{sXO}, s{sXO}, s{sS}
    s_mul_i32 s{sXO}, s{sXO}, {16*1280}
    s_add_u32 s{sXO}, s{sXO}, s{sBO}
    v_lshrrev_b32 v{vBO}, 4, v{vXO}
    v_lshlrev_b32 v{vBO}, 3, v{vBO}
    v_and_b32 v{vXO}, 15, v{vXO}
    v_mul_u32_u24 v{vXO}, 1280, v{vXO}
    v_add_u32 v{vXO}, v{vXO}, v{vBO}
    s_lshl_b32 s{sT}, s{sMT}, 2
    s_add_u32 s{sT}, s{sT}, s{sNT}
    s_lshl_b32 s{sFE}, s{sT}, 2
    s_add_u32 s{sFE}, s{sFE}, s{sW}
    s_mul_i32 s{sFE}, s{sFE}, {FS}
    s_add_u32 s{sFE}, s{sFE}, {FEX}
    s_mul_i32 s{sT}, s{sT}, {16*20480}
    s_mul_i32 s{sT+1}, s{sW}, 5120
    s_add_u32 s{sT}, s{sT}, s{sT+1}
    s_add_u32 s{sT}, s{sT}, {EX}
    s_mul_i32 s{sT+1}, s{sS}, 20480
    s_add_u32 s{sEXs}, s{sT}, s{sT+1}
    s_lshl_b32 s{sT+1}, s{sT+1}, 2
    s_add_u32 s{sEXl}, s{sT}, s{sT+1}
    """)

def p5_dmas(d):
    sl = (d & 3) * SLOT
    if d < 7: ra, sa, oa, rw, sw, ow = R0, sAH, d * 16384, R2, sWH, d * 64 * 1280
    else: ra, sa, oa, rw, sw, ow = R1, sAC, (d - 7) * 16384, R3, sWC, (d - 7) * 64 * 1280
    W = []
    for k in range(5):
        su = []
        if k == 0: su = [f"s_add_u32 m0, s{sMW}, {sl}", f"s_add_u32 s{sT+1}, s{sw}, {ow}"]
        if k == 4: su = [f"s_add_u32 m0, s{sMW}, {sl + 4096}"]
        W.append((su, f"buffer_load_dwordx4 v{vWD5+k}, s[{rw}:{rw+3}], s{sT+1} offen offset:{(k & 3) * 1024} lds"))
    A = []
    for k in range(4):
        su = [f"s_add_u32 m0, s{sMA}, {sl}", f"s_add_u32 s{sT}, s{sa}, {oa}"] if k == 0 else []
        A.append((su, f"buffer_load_dwordx4 v{vL16}, s[{ra}:{ra+3}], s{sT} offen offset:{k * 1024} lds"))
    return W + A
def p5_reads(m):
    d, ks = m >> 1, m & 1; b = (m & 1) * 36; hi = (d >> 1) & 1; o = (d & 1) * SLOT
    L = []
    for n in range(5):
        a = (vRO if n & 1 else vRE) + hi; off = o + ks * 32 * 320 + n * 32
        Wn = [f"ds_read_b64_tr_b16 a[{b+4*n}:{b+4*n+1}], v{a} offset:{off}", f"ds_read_b64_tr_b16 a[{b+4*n+2}:{b+4*n+3}], v{a} offset:{off + 5120}"]
        L += Wn
        if n == 0: L += [f"ds_read_b128 a[{b+20+4*r}:{b+23+4*r}], v{vRB+hi} offset:{o + ks * 8192 + r * 1024}" for r in range(4)]
    return L

def p5(e):
    ACC = 32; ND = 23
    tick_dump(e, 2)
    for su, x in p5_dmas(1)[7:]: e(x)
    e("s_waitcnt lgkmcnt(0)\ns_barrier")
    attn_epilogue(e, (2, 3), 128, sCB)
    for su, x in p5_dmas(2):
        for y in reversed(su): e(y)
        if su: e("s_nop 0")
        e(x, tag="d2")
    stamp(e, 8)
    e(f"s_add_u32 s{sT+2}, s{sQ+1}, {FC - FH}\ns_waitcnt vmcnt({9 + (1 if STAMP and not OPT.get('lite') else 0)})\ns_barrier")
    e(flag_store(sT + 2))
    stamp(e, 9)
    for x in p5_reads(0): e(x)
    PCL = f"buffer_load_dword v20, v{vP2}, s[{RWS}:{RWS+3}], s{sFC} offen sc1"
    mfs = []; fills = []
    for m in range(2 * ND):
        b = (m & 1) * 36; mf = []
        for n in range(5):
            for r in range(4):
                dd = ACC + (r * 5 + n) * 4
                mf.append(f"{MF} v[{dd}:{dd+3}], a[{b+4*n}:{b+4*n+3}], a[{b+20+4*r}:{b+23+4*r}], " + ("0" if m == 0 else v(dd, 4)))
        mfs.append(mf); fills.append([[] for _ in range(20)])
    CK = OPT.get("ck", 7)
    for m in range(2 * ND):
        f = fills[m]; d = m >> 1
        if m + 1 < 2 * ND:
            R = p5_reads(m + 1)
            g0 = 1 if m & 1 else 0
            for k, x in enumerate(R): f[g0 + k].append(x)
            if m & 1: f[0].append(bar([f"d{d+1}"]))
    for d in range(3, ND):
        L = p5_dmas(d); m0 = 2 * (d - 3) - 1
        P = [(m0, g) for g in (3, 7, 11, 15, 18)] + [(m0 + 1, g) for g in (2, 6, 10, 14)]
        if d == 3: P = [(0, g) for g in (1, 3, 5, 7, 9, 11, 13, 15, 17)]
        for k, (x, (m, g)) in enumerate(zip(L, P)):
            if d == 7 and k == 5:
                fills[m][g - 1].append(async_check("L_p5c", 20, PCL))
                fills[m0][1].append(PCL)
            put_dma(fills[m], g, x, f"d{d}")
    mx = 2 * ND - 4
    fills[mx][0].append(grp([f"s_mov_b32 s{R0}, s{pX}", f"s_and_b32 s{R0+1}, s{pX+1}, 0xffff", f"s_mov_b32 s{R0+2}, {2048*1280}", f"s_mov_b32 s{R0+3}, 0x20000",
                             f"s_mov_b32 s{R2}, s{pB2}", f"s_and_b32 s{R2+1}, s{pB2+1}, 0xffff", f"s_mov_b32 s{R2+2}, 1280", f"s_mov_b32 s{R2+3}, 0x20000"]))
    for n in range(5):
        fills[mx][2 + 3 * n].append(f"buffer_load_dwordx2 v[{112+2*n}:{113+2*n}], v{vXO}, s[{R0}:{R0+3}], s{sXO} offen offset:{32*n}")
        fills[mx + 1][2 + 3 * n].append(f"buffer_load_dwordx2 v[{164+2*n}:{165+2*n}], v{vBO}, s[{R2}:{R2+3}], s{sBO} offen offset:{32*n}")
    for m in range(2 * ND):
        if m == 8: stamp(e, 11)
        if m == 10: stamp(e, 12)
        e.gaps(mfs[m], fills[m], mfs[m + 1][0] if m + 1 < 2 * ND else None)
    tick_dump(e, 3)
    stamp(e, 13)
    e("s_nop 4")
    e(f"v_lshrrev_b32 v131, 1, v{vL16}")
    for r in range(4):
        pk = 140 + 12 * (r & 1)
        for k in range(10): e(f"v_cvt_pk_bf16_f32 v{pk+k}, v{ACC+20*r+2*k}, v{ACC+20*r+2*k+1}")
        e(f"s_add_u32 s{sT}, s{sEXs}, {r * 4 * 20480}\ns_cmp_eq_u32 s{sS}, {r}\ns_cselect_b32 s{sT}, {WS_END}, s{sT}")
        e(f"buffer_store_dwordx4 v[{pk}:{pk+3}], v{vL16}, s[{RWS}:{RWS+3}], s{sT} offen sc1")
        e(f"buffer_store_dwordx4 v[{pk+4}:{pk+7}], v{vL16}, s[{RWS}:{RWS+3}], s{sT} offen offset:1024 sc1")
        e(f"buffer_store_dwordx2 v[{pk+8}:{pk+9}], v131, s[{RWS}:{RWS+3}], s{sT} offen offset:2048 sc1")
    e(f"""
    v_mov_b32 v20, 0
    v_mov_b32 v132, 0x10000000
    v_cmp_eq_u32 vcc, 0, v{vL16}
    s_lshl_b32 s{sT+1}, s{sS}, 2
    s_add_u32 s{sT+1}, s{sT+1}, s{sFE}
    v_cndmask_b32 v132, v132, v20, vcc
    v_lshrrev_b32 v133, 2, v{vL16}
    v_and_b32 v133, 12, v133
    """)
    for r in range(1, 4):
        e(f"s_cmp_lg_u32 s{sS}, {r}\ns_cbranch_scc1 L_own{r}")
        for k in range(20): e(f"v_mov_b32 v{ACC+k}, v{ACC+20*r+k}")
        e(f"L_own{r}:")
    srd(e, R0, pOUT, 2048 * 1280)
    e.need("v[112:121],v[164:173]")
    for n in range(5):
        for k in range(2):
            t = ACC + 4 * n + 2 * k
            e(f"v_lshlrev_b32 v134, 16, v{112+2*n+k}\nv_and_b32 v135, 0xffff0000, v{112+2*n+k}")
            e(f"v_lshlrev_b32 v136, 16, v{120+1+2*n+k}\nv_and_b32 v137, 0xffff0000, v{120+1+2*n+k}".replace(f"v{121+2*n+k}", f"v{164+2*n+k}"))
            e(f"v_pk_add_f32 v[134:135], v[134:135], v[136:137]\nv_pk_add_f32 v[{t}:{t+1}], v[{t}:{t+1}], v[134:135]")
    e("s_waitcnt vmcnt(0)")
    e(f"buffer_store_dword v{vTAG}, v132, s[{RWS}:{RWS+3}], s{sT+1} offen sc1")
    stamp(e, 10)
    def poll(e):
        e(f"buffer_load_dword v20, v133, s[{RWS}:{RWS+3}], s{sFE} offen sc1\ns_waitcnt vmcnt(0)\nv_cmp_ne_u32 vcc, s{sTAG}, v20")
    spin(e, "L_p5x", poll, None, sleep=1)
    for k in range(1, 4):
        e(f"s_add_u32 s{sT}, s{sS}, {k}\ns_and_b32 s{sT}, s{sT}, 3\ns_mul_i32 s{sT}, s{sT}, 20480\ns_add_u32 s{sT}, s{sT}, s{sEXl}")
        t = 176 + (k - 1) * 12
        e(f"buffer_load_dwordx4 v[{t}:{t+3}], v{vL16}, s[{RWS}:{RWS+3}], s{sT} offen")
        e(f"buffer_load_dwordx4 v[{t+4}:{t+7}], v{vL16}, s[{RWS}:{RWS+3}], s{sT} offen offset:1024")
        e(f"buffer_load_dwordx2 v[{t+8}:{t+9}], v131, s[{RWS}:{RWS+3}], s{sT} offen offset:2048")
    e(f"s_cmp_eq_u32 s2, 0\ns_cselect_b32 s{sT}, {FL}, {0}\ns_cmp_eq_u32 s{sT}, 0\ns_cselect_b32 s{sT}, {WS_END}, s{sT}")
    e(flag_store(sT))
    for k in range(3):
        u = 176 + 12 * k
        e.need(f"v[{u}:{u+9}]")
        for q in range(10):
            t = ACC + 2 * q; z = 134 + 2 * (q & 1)
            e(f"v_lshlrev_b32 v{z}, 16, v{u+q}\nv_and_b32 v{z+1}, 0xffff0000, v{u+q}\nv_pk_add_f32 v[{t}:{t+1}], v[{t}:{t+1}], v[{z}:{z+1}]")
            if k == 2:
                e(f"v_cvt_pk_bf16_f32 v{112+q}, v{t}, v{t+1}")
                if q & 1: e(f"buffer_store_dwordx2 v[{111+q}:{112+q}], v{vXO}, s[{R0}:{R0+3}], s{sXO} offen offset:{16*(q-1)} {OPT.get('outst', '')}")

def clone_state(e): return (list(e.vm), list(e.lg))

def build(stop=None):
    FBS.clear(); STUBS.clear()
    e = E(); seg = {}
    def mark(name, n0): seg[name] = e.l[n0:]
    n0 = 0
    e("L_code_begin:")
    if STAMP: e("s_mov_b32 s71, 0\ns_memrealtime s[96:97]\ns_memtime s[98:99]")
    prologue(e); stamp(e, 0); p0_ln(e); stamp(e, 1); p1_pre(e); stamp(e, 2)
    mark("pro", n0)
    e(f"s_cmp_ge_u32 s{sW}, 2\ns_cbranch_scc1 L_p1V")
    st0 = clone_state(e); st1 = {}; bq = {}
    def p1(T):
        e.vm, e.lg = list(st0[0]), list(st0[1])
        n0 = len(e.l); bg = Bg(); p1_main(e, T, bg); tick_dump(e, 0); stamp(e, 3); mark("p1" + T, n0)
        st1[T] = clone_state(e); bq[T] = list(bg.q)
        e(f"s_cmp_ge_u32 s{sU}, 27\ns_cbranch_scc1 L_qhN{T}")
    def qh(T, hasH):
        e.vm, e.lg = list(st1[T][0]), list(st1[T][1])
        n0 = len(e.l); b = Bg(); b.q = list(bq[T]); qh_main(e, T, hasH, b); mark("qh" + "NH"[hasH] + T, n0)
    p1("K")
    e("s_branch L_qhH\nL_p1V:")
    p1("V")
    assert [t for _, t in st1["K"][0]] == [t for _, t in st1["V"][0]] and [r for r, _ in st1["K"][1]] == [r for r, _ in st1["V"][1]] and bq["K"] == bq["V"]
    e("L_qhH:"); qh("V", True); seg["qhHK"] = seg["qhHV"]
    n0 = len(e.l)
    tick_dump(e, 1); stamp(e, 4); e("s_nop 7"); q_pack(e); dm = gelu(e, "L_skH"); attn_setup(e, dm); stamp(e, 5); attn_pre(e); stamp(e, 6); mark("postH", n0)
    e("L_attn:")
    segsA, ool = attention(e)
    e("L_p5:")
    n0 = len(e.l); e.vm = []
    p5(e); stamp(e, 14); mark("p5", n0)
    e("L_exit:\ns_endpgm")
    e("L_qhNK:\nL_qhNV:"); qh("V", False); seg["qhNK"] = seg["qhNV"]
    n0 = len(e.l)
    tick_dump(e, 1); stamp(e, 4); e(PKL); e("s_nop 7"); q_pack(e); async_check("L_skN", vTR + 1, PKL)(e); attn_setup(e, kv_prologue_list()); stamp(e, 5); attn_pre(e); stamp(e, 6); mark("postN", n0)
    e("s_branch L_attn")
    ool()
    e("L_code_end:")
    seg.update(segsA)
    errs = []
    for T in "KV":
        for Hh in "HN":
            class X: pass
            x = X(); x.l = seg["p1" + T] + seg["qh" + Hh + T]; check_drain_order(x)
    def path(i):
        if i == 0: a = ["fDF"]
        else: a = ["fFF"] + ["FF"] * min(i - 1, 2) + ["DF"]
        a += ["TD"] if i == 7 else ["TF"] + ["XF"] * min(13 - 2 * i, 2) + ["XD"]
        return a + ["XT"]
    for T, Hh, i in (("K", "H", 0), ("V", "N", 1), ("K", "N", 3), ("V", "H", 6), ("K", "H", 7)):
        tr = []
        for nme in ["pro", "p1" + T, "qh" + Hh + T, "post" + Hh] + path(i) + ["p5"]: tr += seg[nme]
        errs += check_trace(tr, f"{T},{Hh},{i}")
    for nme in FBS: errs += check_trace(seg[nme], nme)
    seen = set()
    for x in errs:
        k = x.split("]", 1)[1]
        if k not in seen:
            seen.add(k)
            if len(seen) < 12: print("HAZARD", x)
    print("instructions:", sum(1 for i in e.l if i.kind != "label"), {k: len(vv) for k, vv in seg.items()})
    mac, body = compress([i.t for i in e.l])
    h = header(); k = h.index(".text")
    open("k_full.s", "w").write(h + e.text() + footer())
    return h[:k] + mac + h[k:] + body + footer(), len(seen)

if __name__ == "__main__":
    STAMP = "stamp" in sys.argv
    txt, ne = build()
    out = sys.argv[1] if len(sys.argv) > 1 else "k.s"
    open(out, "w").write(txt)
    print("bytes", len(txt), "hazards", ne)

def mb_init(e):
    for r in range(4): e(f"v_mov_b32 v{192+r}, 0x3f803f80")
```

```python
import re, sys
import numpy as np
from core import *
M32 = 0xffffffff
def run_wave(prog, labels, wg, w, maxsteps=200000):
    S = {}; V = {}; scc = 0; S["exec"] = (1 << 64) - 1
    S["s2"] = wg; V[0] = (np.arange(64) + 64 * w).astype(np.int64)
    ev = []
    lg = []; vm = []; ep = 0; pc = 0; pos = 0
    def sval(t):
        t = t.strip()
        if t in S: return S[t]
        if re.fullmatch(r"s\d+|m0|vcc", t): return None
        if re.fullmatch(r"-?\d+\.\d+", t): return None
        try: return int(t, 0) & M32
        except ValueError: return None
    def vval(t):
        t = t.strip()
        m = re.fullmatch(r"v(\d+)", t)
        if m: return V.get(int(m.group(1)))
        x = sval(t)
        return None if x is None else np.full(64, x, dtype=np.int64)
    def sgn(x): return x - (1 << 32) if x >> 31 else x
    while True:
        pos += 1
        assert pos < maxsteps
        i = prog[pc]; pc += 1
        k, mn, o = i.kind, i.mn, i.ops
        if k == "label" or k == "nop": continue
        if mn == "s_endpgm": break
        if k == "wait":
            m = re.search(r"vmcnt\((\d+)\)", i.mods)
            if m:
                n = int(m.group(1))
                while len(vm) > n:
                    x = vm.pop(0)
                    if x is not None: x["dep"], x["dpos"] = ep, pos
            m = re.search(r"lgkmcnt\((\d+)\)", i.mods)
            if m:
                n = int(m.group(1))
                while len(lg) > n:
                    x = lg.pop(0)
                    if x is not None: x["dep"], x["dpos"] = ep, pos
            continue
        if k == "bar": ep += 1; continue
        if k == "br":
            if mn == "s_branch": pc = labels[o[0]]
            elif mn == "s_cbranch_scc1":
                assert scc is not None, i.t
                if scc: pc = labels[o[0]]
            elif mn == "s_cbranch_scc0":
                if not scc: pc = labels[o[0]]
            elif mn == "s_cbranch_vccz": pc = labels[o[0]]
            elif mn == "s_cbranch_vccnz": pass
            else: raise ValueError(i.t)
            continue
        if k == "smem":
            for r in i.wr: S[f"s{r[1]}"] = 0x1000 * r[1] if mn.startswith("s_load_dwordx") else 12345
            lg.append(None); continue
        if k == "salu":
            a = sval(o[1]) if len(o) > 1 else None; b = sval(o[2]) if len(o) > 2 else None
            if mn.startswith("s_cmp"):
                a, b = sval(o[0]), sval(o[1])
                if a is None or b is None: scc = None; continue
                if mn.endswith("i32"): a, b = sgn(a), sgn(b)
                scc = int({"eq": a == b, "lg": a != b, "ge": a >= b, "lt": a < b, "gt": a > b, "le": a <= b}[mn.split("_")[2]]); continue
            if mn in ("s_sleep", "s_setprio"): continue
            if mn == "s_bitcmp1_b32": scc = (sval(o[0]) >> sval(o[1])) & 1; continue
            if mn.endswith("_b64"):
                for r in i.wr: S.pop(f"s{r[1]}", None)
                continue
            r = None
            if mn == "s_mov_b32": r = a
            elif mn == "s_cselect_b32": r = (a if scc else b) if scc is not None else None
            elif a is not None and b is not None:
                if mn == "s_add_u32": r = a + b; scc = r >> 32
                elif mn == "s_addc_u32": r = a + b + (scc or 0); scc = r >> 32
                elif mn in ("s_sub_u32", "s_sub_i32"): r = a - b; scc = int(a < b)
                elif mn == "s_subb_u32": r = a - b - (scc or 0); scc = int(r < 0)
                elif mn == "s_mul_i32": r = a * b
                elif mn == "s_lshl_b32": r = a << (b & 31); scc = int(r & M32 != 0)
                elif mn == "s_lshr_b32": r = a >> (b & 31); scc = int(r != 0)
                elif mn == "s_and_b32": r = a & b; scc = int(r != 0)
                elif mn == "s_xor_b32": r = a ^ b; scc = int(r != 0)
                elif mn == "s_min_u32": r = min(a, b); scc = int(a < b)
                else: raise ValueError(i.t)
            else: scc = None if mn not in ("s_mul_i32",) else scc
            if r is None: S.pop(o[0], None)
            else: S[o[0]] = r & M32
            continue
        if k == "valu":
            base = mn.replace("_e32", "")
            x = [vval(t) for t in o[1:]]
            r = None
            if base == "v_readfirstlane_b32": S[o[0]] = int(x[0][0]); continue
            if base.startswith("v_cmp"):
                for q in i.wr: S.pop(f"s{q[1]}", None)
                continue
            if all(t is not None for t in x) and len(i.wr) == 1:
                f = {"v_mov_b32": lambda: x[0], "v_add_u32": lambda: x[0] + x[1], "v_sub_u32": lambda: x[0] - x[1], "v_subrev_u32": lambda: x[1] - x[0],
                     "v_and_b32": lambda: x[0] & x[1], "v_or_b32": lambda: x[0] | x[1], "v_xor_b32": lambda: x[0] ^ x[1],
                     "v_lshlrev_b32": lambda: x[1] << x[0], "v_lshrrev_b32": lambda: x[1] >> x[0], "v_lshl_add_u32": lambda: (x[0] << x[1]) + x[2],
                     "v_add3_u32": lambda: x[0] + x[1] + x[2], "v_mul_u32_u24": lambda: (x[0] & 0xffffff) * (x[1] & 0xffffff),
                     "v_mul_i32_i24": lambda: (((x[0] & 0xffffff) ^ 0x800000) - 0x800000) * (((x[1] & 0xffffff) ^ 0x800000) - 0x800000),
                     "v_min_u32": lambda: np.minimum(x[0], x[1])}.get(base)
                if f: r = f() & M32
            for q in i.wr:
                if q[0] == "v": V.pop(q[1], None)
            if r is not None and o[0].startswith("v"): V[int(o[0][1:])] = r
            continue
        if k == "mfma":
            for q in i.wr:
                if q[0] == "v": V.pop(q[1], None)
            continue
        m = re.search(r"offset:(\d+)", i.mods); off = int(m.group(1)) if m else 0
        if k in ("dsr", "dsw"):
            a = vval(o[1] if k == "dsr" else o[0]); assert a is not None, i.t
            nb = 16 if "b128" in mn else 8
            g = set()
            for d in range(0, nb, 8): g.update(((a + off + d) >> 3).tolist())
            assert max(g) < 163840 // 8, i.t
            x = dict(w=k == "dsw", g=g, ep=ep, pos=pos, dep=None, dpos=None, t=i.t, wave=w); ev.append(x); lg.append(x)
            for q in i.wr:
                if q[0] == "v": V.pop(q[1], None)
            continue
        if k in ("vml", "vms"):
            if i.lds:
                b = S["m0"] + off; assert b + 1024 <= 163840, i.t
                x = dict(w=True, g=set(range(b >> 3, (b + 1024) >> 3)), ep=ep, pos=pos, dep=None, dpos=None, t=i.t + f"  [lds {b}]", wave=w); ev.append(x); vm.append(x)
            else:
                vm.append(None)
                for q in i.wr:
                    if q[0] == "v": V.pop(q[1], None)
            continue
        raise ValueError(i.t)
    return ev, ep

def before(a, b):
    if a["dep"] is None: return False
    if a["wave"] == b["wave"]: return a["dpos"] < b["pos"]
    return a["dep"] < b["ep"]
def check_wg(prog, wg):
    labels = {i.mn[:-1]: n for n, i in enumerate(prog) if i.kind == "label" and i.mn.endswith(":")}
    E_ = []; eps = []
    for w in range(4):
        ev, ep = run_wave(prog, labels, wg, w); E_ += ev; eps.append(ep)
    errs = []
    if len(set(eps)) != 1: errs.append(f"barrier counts differ {eps}")
    B = {}
    for x in E_:
        for blk in {g >> 7 for g in x["g"]}: B.setdefault(blk, []).append(x)
    seen = set()
    for blk, L in B.items():
        L.sort(key=lambda x: (x["ep"], x["pos"]))
        W = [x for x in L if x["w"]]
        for a in W:
            for b in L:
                if b is a or (b["w"] and id(b) < id(a)): continue
                if abs(b["ep"] - a["ep"]) > 12: continue
                if not (a["g"] & b["g"]): continue
                if before(a, b) or before(b, a): continue
                if a["wave"] == b["wave"] and not ("lds" in a["t"] or "lds" in b["t"]): continue
                key = (a["t"], b["t"])
                if key not in seen:
                    seen.add(key); errs.append(f"wg {wg}: W(wave {a['wave']} ep {a['ep']} done {a['dep']}) {a['t']}  <->  (wave {b['wave']} ep {b['ep']} done {b['dep']}) {b['t']}")
    return errs, eps[0], len(E_)
def check_all(prog):
    n = 0
    for wg in (0, 33, 66, 99, 132, 165, 198, 231, 27, 252):
        errs, ep, ne = check_wg(prog, wg)
        for x in errs[:(3 if n == 0 else 0)]: print("RACE", x)
        n += len(errs)
    print("race check: findings", n)
    return n
```

```python
import sys, math, struct
from core import *

NAME = "parallel_sum__compressed_kv_cla__dense_activation_gelu__prompt"
def f32(x): return "0x%08x" % struct.unpack("<I", struct.pack("<f", x))[0]
CS = math.log2(math.e) / math.sqrt(128.0)

OPT = dict(kvst="sc1", norole=1, rate=1, bstep=2, bkv=17, notouch1=1, wnt=1, cnt=0, cpf=9, te=3, cs=2, sp0=3, xe=1, be=1, tsp=1)
for a in sys.argv[1:]:
    if "=" in a:
        k, vv = a.split("=", 1); OPT[k] = int(vv) if vv.lstrip("-").isdigit() else vv.replace("+", " ")
def NT(k): return ' nt' if OPT.get(k) else ''
XS = 0x0010000; KF = 0x0400000; VF = 0x1500000 + OPT.get('vsk', 0); HF = 0x2600000; CF = 0x2E00000; EX = 0x3F00000; FL = 0x5400000; WS_END = 0x5A00000
HS = 524288 + OPT.get('sk', 0)
FXS = FL + 0x8000; FKV = FL + 0x10000; FH = FL + 0x18000; FC = FL + 0x20000; FEX = FL + 0x28000
FS = 128
sTAG = 88
sW, sH, sIDX, sX = 3, 4, 5, 6
pX, pC, pWQ, pWUK, pWUV, pWO, pW1, pB1, pW2, pB2, pOUT, pDBG, pWS = 8, 10, 12, 14, 16, 18, 22, 24, 26, 28, 30, 32, 34
R0, R1, R2, R3, RWS = 36, 40, 44, 48, 52
sT = 56
sU = 64
sM0a, sM0b, sSa, sSb, sSc, sST = 65, 66, 67, 68, 69, 70
sQ = 72
MF = "v_mfma_f32_16x16x32_bf16"

def srd(e, r, p, nbytes, add=None):
    if add is None:
        e(f"s_mov_b32 s{r}, s{p}\ns_and_b32 s{r+1}, s{p+1}, 0xffff")
    else:
        e(f"s_add_u32 s{r}, s{p}, {add}\ns_addc_u32 s{r+1}, s{p+1}, 0\ns_and_b32 s{r+1}, s{r+1}, 0xffff")
    e(f"s_mov_b32 s{r+2}, {nbytes}\ns_mov_b32 s{r+3}, 0x20000")

vL16, vXR, vWQR, vW1R, vXD, vWQD, vW1D, vSC = 0, 1, 2, 10, 14, 18, 20, 21
vTR, vPK = 24, 28
vTAG = 23
sXS = 80
vCD, vWD, vCR, vWR = 96, 100, 104, 106
vWWIN, vCB = 176, (224, 192)
HACC, QACC = 32, 96
XNB = (224, 240)

def prologue(e):
    e(f"""
    s_cmp_ge_u32 s2, {0 if OPT.get("exit0") else 256}
    s_cbranch_scc1 L_exit
    s_load_dwordx16 s[8:23], s[0:1], 0
    s_load_dwordx8 s[24:31], s[0:1], 64
    s_load_dwordx4 s[32:35], s[0:1], 96
    v_lshrrev_b32 v33, 6, v0
    v_and_b32 v32, 63, v0
    v_readfirstlane_b32 s{sW}, v33
    v_lshlrev_b32 v{vL16}, 4, v32
    s_and_b32 s{sX}, s2, 7
    s_lshr_b32 s{sT}, s2, 3
    s_and_b32 s{sT}, s{sT}, 3
    s_lshl_b32 s{sH}, s{sX}, 2
    s_add_u32 s{sH}, s{sH}, s{sT}
    s_lshr_b32 s{sIDX}, s2, 5
    """)
    if OPT.get("cpf"):
        e(f"""
        s_getpc_b64 s[{sT+4}:{sT+5}]
        s_and_b32 s{sT+4}, s{sT+4}, 0xffffff00
        s_lshr_b32 s{sT+2}, s2, 3
        s_lshl_b32 s{sT+2}, s{sT+2}, 2
        s_add_u32 s{sT+2}, s{sT+2}, s{sW}
        v_min_u32 v152, {OPT["cpf"] - 1}, v32
        v_lshlrev_b32 v152, 14, v152
        s_lshl_b32 s{sT+2}, s{sT+2}, 7
        v_add_u32 v152, s{sT+2}, v152
        v_min_u32 v152, L_code_end-L_code_begin-4, v152
        global_load_dword v153, v152, s[{sT+4}:{sT+5}]{NT('cpnt')}
        """)
    e(f"""
    s_mul_i32 s{sU}, s{sX}, 3
    s_add_u32 s{sU}, s{sU}, s{sT}
    s_sub_u32 s{sT+1}, s{sX}, s{sIDX}
    s_and_b32 s{sT+1}, s{sT+1}, 7
    s_add_u32 s{sT+1}, s{sT+1}, 24
    s_cmp_eq_u32 s{sT}, 3
    s_cselect_b32 s{sU}, s{sT+1}, s{sU}
    """)
    e(f"""
    v_lshrrev_b32 v37, 3, v32
    v_and_b32 v38, 7, v32
    v_lshrrev_b32 v39, 4, v32
    v_xor_b32 v50, v38, v39
    v_lshlrev_b32 v50, 4, v50
    v_lshl_add_u32 v{vCD}, v37, 10, v50
    v_xor_b32 v51, 64, v{vCD}
    v_add_u32 v{vCD+1}, 7168, v51
    v_add_u32 v{vCD+2}, {2*7168}, v{vCD}
    v_add_u32 v{vCD+3}, {3*7168}, v51
    v_and_b32 v52, 15, v32
    v_lshlrev_b32 v53, 1, v39
    v_xor_b32 v53, v52, v53
    v_lshlrev_b32 v53, 4, v53
    v_lshl_add_u32 v{vWD}, v39, 13, v53
    v_add_u32 v{vWD+1}, {31744}, v{vWD}
    v_xor_b32 v51, 128, v{vWD}
    v_add_u32 v{vWD+2}, {2*31744}, v51
    v_add_u32 v{vWD+3}, {3*31744}, v51
    """)
    e(f"""
    s_lshl_b32 s{sSa}, s{sIDX}, 18
    s_lshl_b32 s{sT+1}, s{sW}, 16
    s_add_u32 s{sSa}, s{sSa}, s{sT+1}
    s_lshl_b32 s{sM0a}, s{sW}, 13
    s_and_b32 s{sT+1}, s{sW}, 1
    s_lshl_b32 s{sSb}, s{sT+1}, 17
    s_lshl_b32 s{sT+2}, s{sH}, 8
    s_add_u32 s{sSb}, s{sSb}, s{sT+2}
    s_lshl_b32 s{sM0b}, s{sW}, 12
    s_add_u32 s{sM0b}, s{sM0b}, 0x10000
    s_waitcnt lgkmcnt(0)
    """)
    srd(e, R1, pC, 2048 * 1024)
    e(f"s_cmp_ge_u32 s{sW}, 2\ns_cselect_b32 s{R2}, s{pWUV}, s{pWUK}\ns_cselect_b32 s{R2+1}, s{pWUV+1}, s{pWUK+1}")
    e(f"s_and_b32 s{R2+1}, s{R2+1}, 0xffff\ns_mov_b32 s{R2+2}, {512*8192}\ns_mov_b32 s{R2+3}, 0x20000")
    for q in range(8): emit_dma(e, p1_cdma(0, q), "c0")
    for u in range(4): emit_dma(e, p1_wdma(0, u), "w0")
    for u in range(4): emit_dma(e, p1_wdma(1, u), "w1")
    for q in range(8): emit_dma(e, p1_cdma(1, q), "c1")
    for u in range(4): emit_dma(e, p1_wdma(2, u), "w2")
    e(f"s_add_u32 s{sT+2}, s{pWS}, {FL}\ns_addc_u32 s{sT+3}, s{pWS+1}, 0\ns_load_dword s{sTAG}, s[{sT+2}:{sT+3}], 0")
    srd(e, RWS, pWS, WS_END)
    srd(e, R0, pX, 2048 * 1280)
    srd(e, R3, pB1, 1728 * 2)
    e(f"""
    v_lshrrev_b32 v34, 5, v32
    v_and_b32 v35, 31, v32
    v_mul_u32_u24 v36, 1280, v34
    v_lshl_add_u32 v36, v35, 3, v36
    s_lshl_b32 s{sT}, s2, 2
    s_add_u32 s{sT}, s{sT}, s{sW}
    s_mul_i32 s{sT}, s{sT}, 2560
    v_lshlrev_b32 v94, 3, v39
    s_lshl_b32 s{sT+4}, s{sU}, 7
    """)
    e(f"s_mov_b32 s89, s{sT}\ns_mov_b32 s90, s{sT+4}\nv_mov_b32 v151, v94")
    e(f"""
    s_and_b32 s{sT+2}, s{sH}, 3
    s_lshl_b32 s{sT+2}, s{sT+2}, 2
    s_add_u32 s{sT+2}, s{sT+2}, s{sW}
    s_lshl_b32 s{sT+2}, s{sT+2}, 14
    s_lshl_b32 s{sT+3}, s{sIDX}, 18
    s_add_u32 s{sT+2}, s{sT+2}, s{sT+3}
    v_lshlrev_b32 v140, 10, v52
    v_lshl_add_u32 v141, v39, 7, v140
    v_and_b32 v142, 1, v39
    v_lshl_add_u32 v142, v142, 7, v140
    s_mul_i32 s{sT+3}, s{sIDX}, 48
    s_and_b32 s{sT+4}, s{sW}, 1
    s_mul_i32 s{sT+4}, s{sT+4}, 24
    s_add_u32 s{sT+3}, s{sT+3}, s{sT+4}
    s_add_u32 s{sT+3}, s{sT+3}, 128
    s_lshl_b32 s{sT+3}, s{sT+3}, 13
    s_lshl_b32 s{sT+4}, s{sH}, 8
    s_add_u32 s{sT+3}, s{sT+3}, s{sT+4}
    v_and_b32 v144, 1, v32
    v_lshlrev_b32 v144, 7, v144
    v_min_u32 v143, 47, v32
    v_lshrrev_b32 v143, 1, v143
    v_lshl_add_u32 v143, v143, 13, v144
    """)
    e(f"s_mov_b32 s91, s{sT+2}\ns_mov_b32 s92, s{sT+3}")
    e(f"""
    s_mul_i32 s{sT+2}, s{sIDX}, 80
    s_mul_i32 s{sT+3}, s{sW}, 20
    s_add_u32 s{sT+2}, s{sT+2}, s{sT+3}
    s_lshl_b32 s{sT+3}, s{sT+2}, 13
    s_add_u32 s{sT+3}, s{sT+3}, s{sT+4}
    s_mul_i32 s{sT+2}, s{sT+2}, 3456
    s_lshl_b32 s{sT+4}, s{sU}, 7
    s_add_u32 s{sT+2}, s{sT+2}, s{sT+4}
    v_min_u32 v140, {7 if OPT.get("tsp") else 39}, v32
    v_and_b32 v144, 1, v140
    v_lshlrev_b32 v144, 7, v144
    v_lshrrev_b32 v140, 1, v140
    v_lshl_add_u32 v140, v140, 13, v144
    v_min_u32 v145, {3 if OPT.get("tsp") else 19}, v32
    v_mul_u32_u24 v145, 3456, v145
    """)
    srd(e, 84, pWQ, 640 * 8192)
    e(f"s_mov_b32 s93, s{sT+3}\ns_mov_b32 s94, s{sT+2}")

CSLOT = (32768, 0, 131072, 32768, 0, 32768, 0, 32768)
vCR2 = 124
def p1_cdma(j, q):
    setup = []
    if q % 4 == 0:
        setup = [f"s_add_u32 m0, s{sM0a}, {CSLOT[j] + (q >> 2) * 4096}", f"s_add_u32 s{sT}, s{sSa}, {j * 128 + (q >> 2) * 32768}"]
    return setup, f"buffer_load_dwordx4 v{vCD + (q & 3)}, s[{R1}:{R1+3}], s{sT} offen offset:{(q & 3) * 1024}{NT('cnt')} lds"
def p1_wslot(sidx): return ((sidx + 2) & 3) * 16384
def p1_wdma(sidx, u):
    setup = []
    if u == 0:
        setup = [f"s_add_u32 m0, s{sM0b}, {p1_wslot(sidx)}", f"s_add_u32 s{sT+1}, s{sSb}, {sidx * 32 * 8192}"]
    return setup, f"buffer_load_dwordx4 v{vWD + u}, s[{R2}:{R2+3}], s{sT+1} offen offset:{u * 1024}{NT('wnt')} lds"

def emit_dma(e, pair, tag):
    su, d = pair
    for x in su: e(x)
    if su: e("s_nop 0")
    e(d, tag=tag)

def reduce32(r, t):
    L = []
    for mod in ("quad_perm:[1,0,3,2]", "quad_perm:[2,3,0,1]", "row_half_mirror", "row_mirror"):
        L += ["s_nop 0", f"v_add_f32_dpp v{r}, v{r}, v{r} {mod} row_mask:0xf bank_mask:0xf"]
    return L + [f"v_mov_b32 v{t}, v{r}", "s_nop 0", f"v_permlane16_swap_b32 v{r}, v{t}", f"v_add_f32 v{r}, v{r}, v{t}"]

def ln_ops():
    L = []; U = 50
    for k in range(10): L += [f"v_lshlrev_b32 v{U+2*k}, 16, v{40+k}", f"v_and_b32 v{U+1+2*k}, 0xffff0000, v{40+k}"]
    L += [f"v_add_f32 v70, v{U}, v{U+1}"] + [f"v_add_f32 v70, v70, v{U+k}" for k in range(2, 20)]
    L += reduce32(70, 71) + [f"v_mul_f32 v70, {f32(1/640)}, v70"]
    L += [f"v_sub_f32 v{U+k}, v{U+k}, v70" for k in range(20)]
    L += [f"v_mul_f32 v72, v{U}, v{U}"] + [f"v_fmac_f32 v72, v{U+k}, v{U+k}" for k in range(1, 20)]
    L += reduce32(72, 73)
    L += [f"v_mov_b32 v73, {f32(1e-5)}", f"v_fmac_f32 v73, {f32(1/640)}, v72", "v_rsq_f32 v73, v73", f"v_mul_f32 v73, {f32(CS)}, v73"]
    L += [f"v_mul_f32 v{U+k}, v{U+k}, v73" for k in range(20)]
    for k in range(5):
        L += [f"v_cvt_pk_bf16_f32 v{40+2*k}, v{U+4*k}, v{U+4*k+1}", f"v_cvt_pk_bf16_f32 v{41+2*k}, v{U+4*k+2}, v{U+4*k+3}"]
    return L

def p0_ln(e):
    e(f"""
    v_lshrrev_b32 v54, 1, v52
    v_xor_b32 v54, v54, v39
    v_lshlrev_b32 v54, 4, v54
    v_lshl_add_u32 v54, v52, 7, v54
    s_and_b32 s{sT+2}, s{sW}, 1
    s_lshl_b32 s{sT+2}, s{sT+2}, 14
    v_add_u32 v{vCR}, s{sT+2}, v54
    v_xor_b32 v{vCR+1}, 64, v{vCR}
    v_add_u32 v{vCR2}, 0x20000, v{vCR}
    v_add_u32 v{vCR2+1}, 0x20000, v{vCR+1}
    v_lshrrev_b32 v55, 2, v52
    v_and_b32 v56, 1, v39
    v_lshl_add_u32 v56, v56, 2, v55
    v_lshlrev_b32 v56, 5, v56
    v_and_b32 v57, 3, v32
    v_lshlrev_b32 v57, 3, v57
    v_lshl_add_u32 v57, v55, 8, v57
    v_lshl_add_u32 v58, v39, 11, v57
    s_lshr_b32 s{sT+2}, s{sW}, 1
    s_lshl_b32 s{sT+2}, s{sT+2}, 13
    s_add_u32 s{sT+2}, s{sT+2}, 0x10000
    v_add_u32 v58, s{sT+2}, v58
    v_mul_u32_u24 v59, 3072, v39
    v_add_u32 v59, v59, v57
    v_add_u32 v59, {96*1024}, v59
    """)
    for i in range(8):
        e(f"v_xor_b32 v60, {32*i}, v56\nv_add_u32 v{vWR+i}, v60, v58\nv_add_u32 v{vWQR+i}, v60, v59")
    e(f"""
    v_lshrrev_b32 v60, 1, v55
    v_and_b32 v61, 1, v39
    v_lshl_add_u32 v60, v61, 1, v60
    v_lshlrev_b32 v60, 5, v60
    v_and_b32 v61, 3, v32
    v_lshlrev_b32 v61, 3, v61
    v_lshl_add_u32 v61, v55, 7, v61
    v_mul_u32_u24 v62, 3072, v39
    v_add3_u32 v61, v61, v62, 0
    v_add_u32 v61, {96*1024 + 2048}, v61
    """)
    for i in range(4):
        e(f"v_xor_b32 v62, {32*i}, v60\nv_add_u32 v{vW1R+i}, v62, v61")
    e(f"s_waitcnt lgkmcnt(0)\ns_mul_i32 s{sTAG}, s{sTAG}, 0x9E3779B1\ns_add_u32 s{sTAG}, s{sTAG}, 0x7F4A7C15")
    e(f"""
    v_lshrrev_b32 v88, 1, v35
    v_mul_u32_u24 v88, 144, v88
    v_and_b32 v89, 1, v35
    v_lshl_add_u32 v88, v89, 3, v88
    v_lshl_add_u32 v88, v34, 4, v88
    s_lshl_b32 s{sT+2}, s{sW}, 5
    s_add_u32 s{sT+2}, s{sT+2}, 0x20000
    v_add_u32 v76, s{sT+2}, v88
    """)
    e(f"""
    v_lshlrev_b32 v126, 8, v37
    v_lshl_add_u32 v126, v38, 4, v126
    s_lshr_b32 s{sXS}, s2, 1
    s_mul_i32 s{sXS}, s{sXS}, 20480
    s_and_b32 s{sT+3}, s2, 1
    s_lshl_b32 s{sT+3}, s{sT+3}, 7
    s_add_u32 s{sXS}, s{sXS}, s{sT+3}
    s_lshl_b32 s{sT+3}, s{sW}, 11
    s_add_u32 s{sXS}, s{sXS}, s{sT+3}
    s_add_u32 s{sXS}, s{sXS}, {XS}
    s_add_u32 s{sXS+1}, s{sXS}, 8192
    s_add_u32 s{sXS+2}, s{sXS}, 16384
    s_cmp_ge_u32 s{sW}, 2
    s_cselect_b32 s{sXS+2}, {WS_END}, s{sXS+2}
    s_mul_i32 s{sT+5}, s{sW}, {8*144}
    s_add_u32 s{sT+5}, s{sT+5}, 0x20000
    v_mul_u32_u24 v77, 144, v37
    v_lshl_add_u32 v77, v38, 4, v77
    v_add_u32 v77, s{sT+5}, v77
    """)
    e(f"""
    s_lshl_b32 s{sQ}, s{sH}, 3
    s_add_u32 s{sQ}, s{sQ}, s{sIDX}
    s_mul_i32 s{sQ}, s{sQ}, {FS}
    s_add_u32 s{sQ}, s{sQ}, {FKV}
    s_lshl_b32 s{sQ+1}, s{sIDX}, 5
    s_add_u32 s{sQ+1}, s{sQ+1}, s{sH}
    s_mul_i32 s{sQ+1}, s{sQ+1}, {FS}
    s_add_u32 s{sQ+1}, s{sQ+1}, {FH}
    s_mul_i32 s{sQ+2}, s2, {FS}
    s_add_u32 s{sQ+2}, s{sQ+2}, {FXS}
    s_sub_u32 s{sQ+3}, s{sU}, 27
    s_mul_i32 s{sT+5}, s{sX}, 5
    s_add_u32 s{sQ+3}, s{sQ+3}, s{sT+5}
    v_mov_b32 v91, 0
    v_mov_b32 v92, 0x10000000
    v_lshl_add_u32 v93, v33, 6, v32
    v_cmp_eq_u32 vcc, 0, v93
    v_mov_b32 v{vTAG}, s{sTAG}
    v_and_b32 v127, 15, v32
    v_cndmask_b32 v{vSC}, v92, v91, vcc
    s_lshl_b32 s{sT+5}, s{sIDX}, 4
    s_sub_u32 s{sT+4}, 240, s{sT+5}
    v_and_b32 v93, 16, v32
    v_cmp_eq_u32 vcc, 0, v93
    v_mov_b32 v91, s{sT+5}
    v_mov_b32 v92, s{sT+4}
    v_cndmask_b32 v91, v92, v91, vcc
    v_add_u32 v127, v127, v91
    v_lshlrev_b32 v127, 7, v127
    """)

def p1_acc(T, i, j):
    if OPT.get("contig"):
        if T == "K": return 8 * (8 * (j >> 1) + 2 * (i >> 1) + (j & 1)) + 4 * (i & 1)
        return 8 * (8 * (j >> 1) + i) + 4 * (j & 1)
    if T == "K": return 8 * (8 * (i >> 1) + 4 * (j & 1) + (j >> 1)) + 4 * (i & 1)
    return 32 * i + 4 * j
def p1_units():
    U = []
    for n in range(32):
        off = n * 1024 if OPT.get("contig") else (n & 3) * 8192 + (n >> 2) * 1024
        ins = []
        for k in range(4):
            tr = vTR + 2 * (k & 1); src = 8 * n + 2 * k
            ins += [f"v_accvgpr_read_b32 v{tr}, a{src}", f"v_accvgpr_read_b32 v{tr+1}, a{src+1}", f"v_cvt_pk_bf16_f32 v{vPK+k}, v{tr}, v{tr+1}"]
        ins.insert(6, f"s_add_u32 s{sT+7}, s{sST}, {off & ~4095}")
        if OPT["kvst"] != "skip": ins.append((f"buffer_store_dwordx4 v[{vPK}:{vPK+3}], v{vL16}, s[{RWS}:{RWS+3}], s{sT+7} offen offset:{off & 4095} {OPT['kvst']}", "kv"))
        U.append(ins)
    return U

def _kind(y):
    if callable(y): return "call"
    if isinstance(y, tuple) and y[0] == "BG": y = y[1]
    return I(y[0] if isinstance(y, tuple) else y).kind
class Bg:
    def __init__(self): self.q = []
    def push(self, ins): self.q += list(ins)
    def place(self, fill, g0, g1, maxv=1, step=1):
        for g in range(g0, g1, step):
            n = 0
            while self.q and n < maxv:
                x = self.q[0]; t = x[0] if isinstance(x, tuple) else x
                k = I(t).kind if not callable(t) else "call"
                if k in ("vms", "vml") and (n > 0 or any(_kind(y) in ("vml", "vms") for y in fill[g])): break
                fill[g].append(("BG", self.q.pop(0)))
                if k in ("salu", "nop"): continue
                n += 1
                if k in ("vms", "vml"): break
    def flush(self, e):
        for x in self.q:
            t, tag = x if isinstance(x, tuple) else (x, None)
            q = I(t); e.need(q.rd | q.wr); e(t, tag)
        self.q = []

def run_gaps(e, mf, fill, nxt=None):
    f2 = []
    for g in range(len(mf)):
        a = [x for x in fill[g] if not (isinstance(x, tuple) and x[0] == "BG")]
        b = [x[1] for x in fill[g] if isinstance(x, tuple) and x[0] == "BG"]
        if b:
            def mk(b):
                def f(e):
                    for x in b:
                        t, tag = x if isinstance(x, tuple) else (x, None)
                        q = I(t); e.need(q.rd | q.wr); e(t, tag)
                f.last = True
                return f
            a.append(mk(b))
        f2.append(a)
    e.gaps(mf, f2, nxt)

def put_dma(fill, g, pair, tag):
    su, d = pair
    for x in reversed(su): fill[g - 1].append(x)
    fill[g].append((d, tag))

def qh_wslot(sidx): return ((sidx + 3) % 5) * 12288
def qh_dmas(sidx, hasH, d=0):
    L = []
    u32 = lambda x: x & 0xffffffff
    for j in range(4):
        su = [f"s_add_u32 m0, s{sM0a}, {u32((sidx & 3) * 16384 + d * 8192)}", f"s_mov_b32 s{sT}, {XS + sidx * 1024 + d * 40960}"] if j == 0 else []
        L.append((su, f"buffer_load_dwordx4 v{vXD + j}, s[{RWS}:{RWS+3}], s{sT} offen offset:{j * 1024} lds"))
    for u in range(2):
        su = [f"s_add_u32 m0, s{sM0b}, {u32(qh_wslot(sidx) + d * 6144)}", f"s_mov_b32 s{sT+1}, {sidx * 32 * 8192 + d * 131072}"] if u == 0 else []
        L.append((su, f"buffer_load_dwordx4 v{vWQD + u}, s[{R0}:{R0+3}], s{sT+1} offen offset:{u * 1024} lds"))
    if hasH:
        L.append(([f"s_mov_b32 s{sT+2}, {sidx * 32 * 3456 + d * 55296}"], f"buffer_load_dwordx4 v{vW1D}, s[{R1}:{R1+3}], s{sT+2} offen offset:2048 lds"))
    return L
def qh_xread(sidx, j):
    b = XNB[sidx & 1] + 4 * j
    return f"ds_read_b128 v[{b}:{b+3}], v{vXR} offset:{(sidx & 3) * 16384 + j * 1024}"
def qh_wread(sidx, i, n):
    r = (n & 3) * 4
    if i < 8: a, second = vWQR + i, 1024
    else: a, second = vW1R + i - 8, 512
    o = qh_wslot(sidx)
    return [f"ds_read_b64_tr_b16 a[{r}:{r+1}], v{a} offset:{o}", f"ds_read_b64_tr_b16 a[{r+2}:{r+3}], v{a} offset:{o + second}"]

def spin(e, lab, pollA, cond, limit=200000, sleep=2):
    e(f"s_mov_b32 s{sT+6}, {limit}\n{lab}:")
    pollA(e)
    e(f"s_cbranch_vccz {lab}_ok\ns_sub_u32 s{sT+6}, s{sT+6}, 1\ns_cmp_eq_u32 s{sT+6}, 0\ns_cbranch_scc1 {lab}_ok\ns_sleep {sleep}\ns_branch {lab}\n{lab}_ok:")

def qh_setup(e):
    L = []
    L += [f"s_lshl_b32 s{sQ+4}, s{sIDX}, 3", f"s_add_u32 s{sQ+4}, s{sQ+4}, s{sW}", f"s_mul_i32 s{sQ+4}, s{sQ+4}, 20480",
          f"s_sub_u32 s{sQ+5}, 15, s{sIDX}", f"s_lshl_b32 s{sQ+5}, s{sQ+5}, 3", f"s_add_u32 s{sQ+5}, s{sQ+5}, s{sW}", f"s_mul_i32 s{sQ+5}, s{sQ+5}, 20480"]
    L += [f"v_add_u32 v{vXD}, s{sQ+4}, v{vL16}", f"v_add_u32 v{vXD+1}, {4*20480 - 1024}, v{vXD}",
          f"v_add_u32 v{vXD+2}, s{sQ+5}, v{vL16}", f"v_add_u32 v{vXD+3}, {4*20480 - 3072}, v{vXD+2}", f"v_subrev_u32 v{vXD+2}, 2048, v{vXD+2}"]
    return L

STAMP = False
TS = FL + 0x40000
def stamp(e, k):
    if not STAMP or (OPT.get("lite") and k not in (0, 14)): return
    if k: e("s_memrealtime s[96:97]\ns_memtime s[98:99]")
    e(f"""s_waitcnt lgkmcnt(0)
    s_lshl_b32 s97, s2, 2
    s_add_u32 s97, s97, s{sW}
    s_lshl_b32 s97, s97, 8
    s_add_u32 s97, s97, {TS + 8 * k}
    s_mov_b64 s[100:101], exec
    s_mov_b64 exec, 1
    {"v_mov_b32 v122" if k == 3 else "v_accvgpr_write_b32 a194" if k >= 7 else "v_accvgpr_write_b32 a254"}, s96
    {"v_mov_b32 v123" if k == 3 else "v_accvgpr_write_b32 a195" if k >= 7 else "v_accvgpr_write_b32 a255"}, s98
    s_nop 1
    buffer_store_dwordx2 {"v[122:123]" if k == 3 else "a[194:195]" if k >= 7 else "a[254:255]"}, off, s[{RWS}:{RWS+3}], s97
    s_mov_b64 exec, s[100:101]
    s_nop 3""")

def header():
    return f"""; @launch grid=(256,1,1) block=(256,1,1) lds=163840
.amdgcn_target "amdgcn-amd-amdhsa--gfx950"
.text
.globl {NAME}_kernel
.p2align 8
.type {NAME}_kernel,@function
{NAME}_kernel:
"""
def footer():
    return f"""
.section .rodata,"a"
.p2align 6
.amdhsa_kernel {NAME}_kernel
  .amdhsa_next_free_vgpr 512
  .amdhsa_next_free_sgpr 102
  .amdhsa_accum_offset 256
  .amdhsa_group_segment_fixed_size 0
  .amdhsa_kernarg_size 112
  .amdhsa_user_sgpr_count 2
  .amdhsa_user_sgpr_kernarg_segment_ptr 1
  .amdhsa_system_sgpr_workgroup_id_x 1
.end_amdhsa_kernel
"""

def code_touch(a, b, nl, vt, dst):
    return [grp([f"s_getpc_b64 s[{sT+4}:{sT+5}]", f"LT_{a}_{code_touch.n}:", f"s_add_u32 s{sT+4}, s{sT+4}, {a}-LT_{a}_{code_touch.n}", f"s_addc_u32 s{sT+5}, s{sT+5}, {code_touch.hi(a)}",
                 f"s_lshr_b32 s{sT+6}, s2, 3", f"s_lshl_b32 s{sT+6}, s{sT+6}, 2", f"s_add_u32 s{sT+6}, s{sT+6}, s{sW}", f"s_lshl_b32 s{sT+6}, s{sT+6}, 7"]),
            f"v_lshlrev_b32 v{vt}, 10, v{vL16}", f"v_min_u32 v{vt}, {(nl - 1) << 14}, v{vt}", f"v_add_u32 v{vt}, s{sT+6}, v{vt}", f"v_min_u32 v{vt}, {b}-{a}-4, v{vt}",
            f"global_load_dword {dst}, v{vt}, s[{sT+4}:{sT+5}]"]
code_touch.n = 0
code_touch.hi = lambda a: 0
def grp_all(L):
    def f(e):
        for x in L: x(e) if callable(x) else e(x)
    return f
def grp(L):
    def f(e):
        for x in L: e(x)
    return f
vTK = 22
def tick_pre(e):
    if OPT.get("ticks"): e("s_memtime s[96:97]")
def tick_post(e):
    if OPT.get("ticks") == 2:
        e(f"s_memtime s[98:99]\ns_waitcnt lgkmcnt(0)\ns_lshl_b64 exec, 1, s71\nv_mov_b32 v{vTK}, s96\ns_lshl_b64 exec, 2, s71\nv_mov_b32 v{vTK}, s98\ns_mov_b64 exec, -1\ns_add_u32 s71, s71, 2\ns_and_b32 s71, s71, 63")
    elif OPT.get("ticks"):
        e(f"s_waitcnt lgkmcnt(0)\ns_lshl_b64 exec, 1, s71\nv_mov_b32 v{vTK}, s96\ns_mov_b64 exec, -1\ns_add_u32 s71, s71, 1")
def tick_dump(e, k):
    if OPT.get("ticks"):
        e(f"""s_lshl_b32 s97, s2, 2
        s_add_u32 s97, s97, s{sW}
        s_lshl_b32 s97, s97, 12
        s_add_u32 s97, s97, {FL + 0x100000 + 1024 * k}
        buffer_store_dword v{vTK}, v{vL16}, s[{RWS}:{RWS+3}], s97 offen
        s_mov_b32 s71, 0
        s_nop 1""")
def bar(vmtags=(), lg0=True):
    def f(e):
        tick_pre(e)
        e.need(vmtags=vmtags, lg0=lg0); e("s_barrier")
        tick_post(e)
    return f

def p1_pre(e):
    e(f"""
    s_mul_i32 s{sST}, s{sH}, {HS}
    s_lshl_b32 s{sT+2}, s{sIDX}, 16
    s_add_u32 s{sST}, s{sST}, s{sT+2}
    s_and_b32 s{sT+2}, s{sW}, 1
    s_lshl_b32 s{sT+2}, s{sT+2}, 15
    s_add_u32 s{sST}, s{sST}, s{sT+2}
    s_cmp_ge_u32 s{sW}, 2
    s_cselect_b32 s{sT+2}, {VF-KF}, 0
    s_add_u32 s{sST}, s{sST}, s{sT+2}
    s_add_u32 s{sST}, s{sST}, {KF}
    s_lshl_b32 s{sT+2}, s{sW}, 12
    v_add_u32 v{vXR}, s{sT+2}, v{vL16}
    """)
    e(f"""
    s_and_b32 s{sT+2}, s{sW}, 1
    s_lshl_b32 s{sT+3}, s{sT+2}, 7
    v_xor_b32 v94, s{sT+3}, v{vWD}
    s_lshl_b32 s{sT+3}, s{sW}, 16
    s_lshl_b32 s{sT+4}, s{sH}, 8
    s_add_u32 s{sT+3}, s{sT+3}, s{sT+4}
    v_add_u32 v{vWQD}, s{sT+3}, v94
    v_add_u32 v{vWQD+1}, 31744, v{vWQD}
    """)
    e(f"""
    v_and_b32 v94, 1, v39
    v_lshlrev_b32 v94, 1, v94
    s_lshl_b32 s{sT+3}, s{sT+2}, 2
    v_or_b32 v94, s{sT+3}, v94
    v_xor_b32 v94, v94, v38
    v_lshlrev_b32 v94, 4, v94
    v_mul_u32_u24 v95, 3456, v37
    v_add_u32 v94, v94, v95
    s_mul_i32 s{sT+3}, s{sW}, {8*3456}
    s_lshl_b32 s{sT+4}, s{sU}, 7
    s_add_u32 s{sT+3}, s{sT+3}, s{sT+4}
    v_add_u32 v{vW1D}, s{sT+3}, v94
    """)
    for x in qh_setup(e): e(x)
    e.need(vmtags=("c0", "w0"), lg0=True)
    e("s_barrier")
    for j in range(8): e(p1_cread(0, j))
    for n in range(2):
        for x in p1_wread(n): e(x)

def hacc(ft, j): return HACC + (j * 2 + (ft >> 1)) * 8 + (ft & 1) * 4
def qacc(i, j): return QACC + (j * 4 + (i >> 1)) * 8 + (i & 1) * 4
def bias_init():
    L = []
    for ft in range(4):
        d = hacc(ft, 3)
        for k in range(2):
            L += [f"v_lshlrev_b32 v{d+2*k}, 16, v{114+2*ft+k}", f"v_and_b32 v{d+2*k+1}, 0xffff0000, v{114+2*ft+k}",
                  f"v_mul_f32 v{d+2*k}, {f32(CS)}, v{d+2*k}", f"v_mul_f32 v{d+2*k+1}, {f32(CS)}, v{d+2*k+1}"]
    return L

def p1_cread(sidx, j):
    b = vCB[sidx & 1] + 4 * j
    sl = CSLOT[sidx >> 1]
    return f"ds_read_b128 v[{b}:{b+3}], v{(vCR2 if sl > 65535 else vCR) + (sidx & 1)} offset:{(sl & 65535) + j * 2048}"
def p1_wread(n):
    sidx, i = divmod(n, 8); r = vWWIN + 4 * (n & 3); o = p1_wslot(sidx)
    return [f"ds_read_b64_tr_b16 v[{r}:{r+1}], v{vWR+i} offset:{o}", f"ds_read_b64_tr_b16 v[{r+2}:{r+3}], v{vWR+i} offset:{o+1024}"]

def async_check(lab, reg, reload):
    def f(e):
        e.need(f"v{reg}")
        e(f"v_cmp_ne_u32 vcc, s{sTAG}, v{reg}\ns_cbranch_vccz {lab}_ok")
        sv, sl = list(e.vm), list(e.lg)
        def poll(e):
            e(reload); e("s_waitcnt vmcnt(0)"); e(f"v_cmp_ne_u32 vcc, s{sTAG}, v{reg}")
        spin(e, lab, poll, None)
        e.vm, e.lg = sv, sl
    return f
def flag_store(sreg): return f"buffer_store_dword v{vTAG}, v{vSC}, s[{RWS}:{RWS+3}], s{sreg} offen sc1"

PARK = {0: 20, 1: 28, 2: 16, 3: 24}
def park_units():
    L = []
    for n in (2, 3, 0, 1):
        for k in range(4):
            tr = vTR + 2 * (k & 1); src = 8 * n + 2 * k
            L += [f"v_accvgpr_read_b32 v{tr}, a{src}", f"v_accvgpr_read_b32 v{tr+1}, a{src+1}", f"v_cvt_pk_bf16_f32 v{vPK+k}, v{tr}, v{tr+1}"]
        L += [f"v_accvgpr_write_b32 a{PARK[n]+k}, v{vPK+k}" for k in range(4)]
    return L
def parked_stores():
    L = []
    for n in range(4):
        L += [f"s_add_u32 s{sT+7}, s{sST}, {n * 8192}", (f"buffer_store_dwordx4 a[{PARK[n]}:{PARK[n]+3}], v{vL16}, s[{RWS}:{RWS+3}], s{sT+7} offen sc1", "kv")]
    return L

def p1_main(e, T, bg):
    fills = [[[] for _ in range(64)] for _ in range(16)]
    LNE = OPT.get("lne", 6)
    def pos(ep):
        p = [(ep - 1, g) for g in (50, 54, 58, 62)] + [(ep, g) for g in (range(2, 47, OPT.get("sp0", 2)) if ep == 0 else range(2, 47, 3 if ep < 7 else 4) if ep < 15 else range(2, 30, 3))]
        return [x for x in p if 0 <= x[0] < 16]
    for ep in range(0, 16):
        L = []
        cj = ({0: 2, 1: 3, 3: 4, 7: 5, 9: 6, 11: 7} if OPT.get("cs", 0) == 0 else {1: 2, 2: 3, 4: 4, 7: 5, 9: 6, 11: 7} if OPT["cs"] == 1 else {0: 2, 2: 3, 4: 4, 7: 5, 9: 6, 11: 7}).get(ep)
        Lc = [(p1_cdma(cj, q), f"c{cj}") for q in range(8)] if cj else []
        Lw = [(p1_wdma(ep + 3, u), f"w{ep+3}") for u in range(4)] if ep + 3 < 16 else []
        L += Lw + Lc if ep < 5 else Lc + Lw
        if ep == 0 and not OPT.get("notouch1"):
            L += [(([], f"buffer_load_dword v146, v141, s[{R1}:{R1+3}], s91 offen offset:512"), "tc")]
        if ep == OPT.get("xe", 0):
            L += [(([], f"buffer_load_dwordx2 v[{40+2*k}:{41+2*k}], v36, s[{R0}:{R0+3}], s89 offen offset:{256*k}{NT('xnt')}"), "x") for k in range(5)]
        if ep == OPT.get("be", 2):
            L += [(([], f"buffer_load_dwordx2 v[{114+2*ft}:{115+2*ft}], v151, s[{R3}:{R3+3}], s90 offen offset:{32*ft}{NT('xnt')}"), "b1") for ft in range(4)]
        if OPT.get("tsp") and OPT.get("te", 2) <= ep < OPT.get("te", 2) + 5 * OPT["tsp"] and (ep - OPT.get("te", 2)) % OPT["tsp"] == 0:
            su = [grp([f"s_mov_b32 s{R3}, s{pW1}", f"s_and_b32 s{R3+1}, s{pW1+1}, 0xffff", f"s_mov_b32 s{R3+2}, {640*3456}", f"s_mov_b32 s{R3+3}, 0x20000"])] if ep == OPT.get("te", 2) else [f"s_add_u32 s94, s94, {4*3456}"]
            L += [(([] if ep == OPT.get("te", 2) else [f"s_add_u32 s93, s93, {4*8192}"], f"buffer_load_dword v149, v140, s[84:87], s93 offen"), "tc"),
                  ((su, f"buffer_load_dword v150, v145, s[{R3}:{R3+3}], s94 offen"), "tc")]
        if ep == OPT.get("ce", 99):
            code_touch.n += 1
            ct = code_touch("L_qhH", "L_code_end", 7, 154, "v155")
            L += [(([grp_all(ct[:-1])], ct[-1]), "tc")]
        if ep == OPT.get("te", 2) and not OPT.get("tsp"):
            L += [(([], f"buffer_load_dword v149, v140, s[84:87], s93 offen{NT('tnt')}"), "tc"),
                  (([grp([f"s_mov_b32 s84, s{pW1}", f"s_and_b32 s85, s{pW1+1}, 0xffff", f"s_mov_b32 s86, {640*3456}", "s_mov_b32 s87, 0x20000"])], f"buffer_load_dword v150, v145, s[84:87], s94 offen{NT('tnt')}"), "tc")]
        if ep == LNE: L += [(([], f"buffer_store_dwordx4 v[{128+4*k}:{131+4*k}], v126, s[{RWS}:{RWS+3}], s{sXS+k} offen sc1"), "xs") for k in range(3)]
        if ep == LNE + 2: L += [(([], flag_store(sQ + 2)), "fl")]
        if ep == 11: L += [(([f"s_mov_b32 s{sT+5}, {FXS}"], f"buffer_load_dword v122, v127, s[{RWS}:{RWS+3}], s{sT+5} offen sc1"), "pa")]
        if ep == 13: L += [(d, "q0") for d in qh_dmas(0, True)]
        if ep == 14: L += [(d, "q1") for d in qh_dmas(1, True)]
        if ep == 15: L += [(d, "q2") for d in qh_dmas(2, True)] + [(d, "q3") for d in qh_dmas(3, True)]
        P = pos(ep); assert len(L) <= len(P)
        for (d, tag), (ks, g) in zip(L, P): put_dma(fills[ks], g, d, tag)
    for sidx in range(16):
        f = fills[sidx]
        for i in range(8):
            n = 8 * sidx + i + 2
            if n < 128:
                a, b = p1_wread(n); f[8 * i].append(a); f[8 * i + 1].append(b)
        if sidx < 15:
            for j in range(8): f[3 + 4 * j].append(p1_cread(sidx + 1, j))
            tags = [f"w{sidx+1}", f"c{(sidx+2)>>1}"]
            if sidx == LNE + 1: tags.append("xs")
            if sidx == 12:
                f[47].append(async_check(f"L_sa{T}", 122, f"buffer_load_dword v122, v127, s[{RWS}:{RWS+3}], s{sT+5} offen sc1"))
            f[47].append(bar(tags))
        else:
            f[47].append(bar(["q0", "q1"]))
            for j in range(4): f[49 + 2 * j].append(qh_xread(0, j))
            for n in range(3):
                a, b = qh_wread(0, n, n); f[56 + 2 * n].append(a); f[57 + 2 * n].append(b)
    for k, x in enumerate(bias_init()): fills[8 + (k >> 4)][32 + (k & 15) + ((k & 15) == 15)].append(x)
    lb = Bg(); lb.push(ln_ops())
    LNK = OPT.get("lnk", 4)
    for ks in range(LNE - LNK, LNE): lb.place(fills[ks], 0, 64 if ks < LNE - 1 else 20, maxv=1 if LNK >= 4 else 2)
    assert not lb.q and LNE >= 6, len(lb.q)
    for k in range(5): fills[LNE - 1][22 + 4 * k].append(f"ds_write_b64 v76, v[{40+2*k}:{41+2*k}] offset:{k*2304}")
    for k in range(3): fills[LNE - 1][51 + 4 * k].append(f"ds_read_b128 v[{128+4*k}:{131+4*k}], v77 offset:{4608*k}")
    qs = [f"s_mov_b32 s{R0}, s{pWQ}", f"s_and_b32 s{R0+1}, s{pWQ+1}, 0xffff", f"s_mov_b32 s{R0+2}, {640*8192}", f"s_mov_b32 s{R0+3}, 0x20000",
          f"s_sub_u32 s{R1}, s{pW1}, 2048", f"s_subb_u32 s{R1+1}, s{pW1+1}, 0", f"s_and_b32 s{R1+1}, s{R1+1}, 0xffff",
          f"s_cmp_lt_u32 s{sU}, 27", f"s_cselect_b32 s{R1+2}, {640*3456 + 2048}, 0", f"s_mov_b32 s{R1+3}, 0x20000",
          f"s_lshl_b32 s{sM0a}, s{sW}, 12", f"s_mul_i32 s{sM0b}, s{sW}, 3072", f"s_add_u32 s{sM0b}, s{sM0b}, {96*1024}"]
    fills[12][4].append(grp(qs[:4])); fills[12][10].append(grp(qs[4:10])); fills[12][14].append(grp(qs[10:]))
    if OPT.get("contig"):
        U = p1_units()
        bg.push(U[0] + U[1]); bg.place(fills[15], 24, 46, maxv=2); assert not bg.q
        bg.push(U[2] + U[3]); bg.place(fills[15], 48, 64, maxv=2)
        bg.push([x for u in U[4:] for x in u])
    elif T == "K" or OPT.get("norole"):
        bg.push([x for u in p1_units() for x in u])
        bg.place(fills[15], 24, 46, maxv=2); bg.place(fills[15], 48, 64, maxv=2)
    else:
        bg.push(park_units())
        bg.place(fills[15], 19, 46, maxv=2); bg.place(fills[15], 48, 55, maxv=2)
        assert not bg.q
        bg.push(parked_stores() + [x for u in p1_units()[4:] for x in u])
    mfs = []
    for sidx in range(16):
        mf = []
        for i in range(8):
            for j in range(8):
                d = p1_acc(T, i, j); w = vWWIN + 4 * ((8 * sidx + i) & 3); c = vCB[sidx & 1] + 4 * j
                A, B = (w, c) if T == "K" else (c, w)
                mf.append(f"{MF} a[{d}:{d+3}], v[{A}:{A+3}], v[{B}:{B+3}], " + ("0" if sidx == 0 else f"a[{d}:{d+3}]"))
        mfs.append(mf)
    for sidx in range(16):
        run_gaps(e, mfs[sidx], fills[sidx], mfs[sidx + 1][0] if sidx < 15 else None)

vKVD = vXR
sKo, sVo, sMK, sMV = 76, 77, 78, 79
def kv_dma(kind, static_pair=None):
    so, mb, rs = (sKo, sMK, R2) if kind == "K" else (sVo, sMV, R3)
    L = []
    for k in range(4):
        su = []
        if k == 0:
            su = [f"s_add_u32 m0, s{sT+3}, s{mb}", f"s_and_b32 s{sT+3}, s{so}, 0xc000"]
        L.append((su, f"buffer_load_dwordx4 v{vKVD}, s[{rs}:{rs+3}], s{so} offen offset:{k*1024} lds"))
    return L, f"s_add_u32 s{so}, s{so}, 16384"

def qh_main(e, T, hasH, bg):
    NI = 12 if hasH else 8; NG = 4 * NI; LA = 3
    NA = OPT.get("na", 7); BKV = OPT.get("bkv", 16); RATE = OPT.get("rate", 2) if hasH else 2
    fills = [[[] for _ in range(NG)] for _ in range(20)]
    bp = NG - 4 * LA - 1
    st = 3 if hasH else 2
    def pos(ep):
        p = [(ep - 1, g) for g in range(bp + 2, NG, st)] + [(ep, g) for g in range(5 if ep == 0 else 2, bp, st)]
        return [x for x in p if 0 <= x[0] < 20]
    pend = []; lastdma = None
    for ep in range(0, 16):
        if OPT.get("norole"):
            a = qh_dmas(ep + 4, hasH)
            pend += [(d, f"q{ep+4}x") for d in a[:4]] + [(d, f"q{ep+4}") for d in a[4:]]
        elif (ep < NA) == (T == "V"):
            a, b = qh_dmas(ep + 4, hasH), qh_dmas(ep + 4, hasH, 1 if T == "K" else -1)
            pend += [(d, f"q{ep+4}x") for d in a[:4] + b[:4]] + [(d, f"q{ep+4}") for d in a[4:] + b[4:]]
        for ks, g in pos(ep):
            if pend:
                d, tag = pend.pop(0); put_dma(fills[ks], g, d, tag); lastdma = (ks, g)
    assert not pend
    for sidx in range(20):
        f = fills[sidx]
        for i in range(NI):
            s2, i2 = divmod(NI * sidx + i + LA, NI)
            if s2 < 20:
                a, b = qh_wread(s2, i2, NI * sidx + i + LA); f[4 * i].append(a); f[4 * i + 1].append(b)
        if sidx < 19:
            for j in range(4): f[3 + 4 * j].append(qh_xread(sidx + 1, j))
            tags = [f"q{sidx+1}", f"q{sidx+2}x"]
            if sidx + 2 <= 3: tags.append(f"q{sidx+2}")
            if sidx == BKV: tags.append("kv")
            f[bp].append(bar(tags))
    fills[BKV][bp + 2].append((flag_store(sQ), "fl"))
    qs = [f"s_mul_i32 s{sT+4}, s{sH}, {HS}", f"s_add_u32 s{sT+5}, s{sT+4}, {KF}", f"s_add_u32 s{R2}, s{pWS}, s{sT+5}", f"s_addc_u32 s{R2+1}, s{pWS+1}, 0",
          f"s_and_b32 s{R2+1}, s{R2+1}, 0xffff", f"s_sub_u32 s{R2+2}, 16, s{sIDX}", f"s_lshl_b32 s{R2+2}, s{R2+2}, 15", f"s_mov_b32 s{R2+3}, 0x20000",
          f"s_add_u32 s{sT+5}, s{sT+4}, {VF}", f"s_add_u32 s{R3}, s{pWS}, s{sT+5}", f"s_addc_u32 s{R3+1}, s{pWS+1}, 0",
          f"s_and_b32 s{R3+1}, s{R3+1}, 0xffff", f"s_mov_b32 s{R3+2}, s{R2+2}", f"s_mov_b32 s{R3+3}, 0x20000",
          f"s_mov_b32 s{sKo}, 0", f"s_mov_b32 s{sVo}, 0", f"s_lshl_b32 s{sMK}, s{sW}, 12", f"s_add_u32 s{sMV}, s{sMK}, 0x10000",
          f"s_mul_i32 s{sPK}, s{sH}, {8*FS}", f"s_add_u32 s{sPK}, s{sPK}, {FKV}"]
    fills[18][6].append(grp(qs[:8])); fills[18][10].append(grp(qs[8:14])); fills[18][14].append(grp(qs[14:]))
    fills[19][2].append(f"v_lshlrev_b32 v{vTR}, 3, v{vL16}"); fills[19][6].append(f"v_and_b32 v{vTR}, {7*FS}, v{vTR}")
    hs = [f"s_mul_i32 s{sHA}, s{sIDX}, {54*8192}", f"s_lshl_b32 s{sT+5}, s{sU}, 14", f"s_add_u32 s{sT+5}, s{sT+5}, {HF}", f"s_lshl_b32 s{sT+4}, s{sW}, 10",
          f"s_add_u32 s{sT+5}, s{sT+5}, s{sT+4}", f"s_add_u32 s{sHA}, s{sHA}, s{sT+5}", f"s_sub_u32 s{sHB}, 15, s{sIDX}", f"s_mul_i32 s{sHB}, s{sHB}, {54*8192}",
          f"s_add_u32 s{sHB}, s{sHB}, s{sT+5}"] if hasH else [f"s_mov_b32 s{sHA}, {WS_END}", f"s_mov_b32 s{sHB}, {WS_END}"]
    fills[19][10].append(grp(hs))
    if OPT.get("cpf2") and hasH:
        code_touch.n += 1
        for k, x in enumerate(code_touch("L_attn", "L_p5", 3, vPK, f"v{vPK+1}")): fills[17][2 + 2 * k].append(x)
    if T == "K" or OPT.get("norole"): k0, g0 = 0, 0
    else: k0, g0 = lastdma[0], lastdma[1] + 1
    for sidx in range(k0, BKV):
        bg.place(fills[sidx], g0 if sidx == k0 else 0, NG, maxv=RATE, step=OPT.get("bstep", 1) if hasH else 1)
    assert not bg.q, len(bg.q)
    mfs = []
    for sidx in range(20):
        mf = []
        for i in range(NI):
            w = ((NI * sidx + i) & 3) * 4
            for j in range(4):
                d = qacc(i, j) if i < 8 else hacc(i - 8, j)
                x = XNB[sidx & 1] + 4 * j
                if sidx: c = f"v[{d}:{d+3}]"
                elif i < 8: c = "0"
                else: c = v(hacc(i - 8, 3), 4)
                mf.append(f"{MF} v[{d}:{d+3}], a[{w}:{w+3}], v[{x}:{x+3}], {c}")
        mfs.append(mf)
    for sidx in range(20):
        run_gaps(e, mfs[sidx], fills[sidx], mfs[sidx + 1][0] if sidx < 19 else None)
    e.vm = []
sPK = 83; sHA, sHB = 74, 75
PKL = f"buffer_load_dword v{vTR+1}, v{vTR}, s[{RWS}:{RWS+3}], s{sPK} offen sc1"
def kv_prologue_list():
    L = []
    for kind, tag in (("K", "k0"), ("V", "v0"), ("K", "k1"), ("K", "k2"), ("V", "v1"), ("K", "k3")):
        D, inc = kv_dma(kind)
        for k, (su, d) in enumerate(D):
            L.append((list(reversed(su)), d, tag, [inc] if k == 3 else []))
    return L
def sprinkle(e, ops, dm, every):
    for k, x in enumerate(ops):
        if dm and k % every == 0:
            for y in dm[0][0]: e(y)
        e(x)
        if dm and k % every == 0:
            su, d, tag, post = dm.pop(0); e(d, tag=tag)
            for y in post: e(y)
def flush_dma(e, dm):
    for su, d, tag, post in dm:
        for y in su: e(y)
        if su: e("s_nop 0")
        e(d, tag=tag)
        for y in post: e(y)
    dm.clear()

def check_drain_order(e):
    written = set()
    for i in e.l:
        if i.kind == "dsr": written |= {r for r in i.wr if r[0] == "a"}
        if i.mn == "v_accvgpr_read_b32" and (i.rd & written): raise AssertionError("drain order " + i.t)
        if i.mn == "v_accvgpr_write_b32": written |= i.wr

def q_pack(e):
    for n in range(16):
        for k in range(4):
            e(f"v_cvt_pk_bf16_f32 v{QACC + 4*n + k}, v{QACC + 8*n + 2*k}, v{QACC + 8*n + 2*k + 1}")

HPK = 192
def gelu(e, lab):
    a = -2.0 * math.sqrt(2.0 / math.pi) * math.log2(math.e)
    k1 = a / CS; k2 = a * 0.044715 / CS ** 3
    GP = OPT.get("gp", 3); dm = []
    e(f"s_mov_b32 s84, {f32(k2)}\ns_mov_b32 s85, {f32(k2)}\ns_mov_b32 s86, {f32(CS)}\ns_mov_b32 s87, {f32(CS)}")
    e(f"v_mov_b32 v160, {f32(k1)}\nv_mov_b32 v161, {f32(k1)}\nv_mov_b32 v162, {f32(CS)}\nv_mov_b32 v163, {f32(CS)}")
    for n in range(8):
        if n == max(0, GP - 2): e(PKL)
        if n == GP: async_check(lab, vTR + 1, PKL)(e); dm = kv_prologue_list()
        b = HACC + 8 * n; t = 164 + 8 * (n & 1); L = []
        L += [f"v_pk_mul_f32 v[{t+2*k}:{t+2*k+1}], v[{b+2*k}:{b+2*k+1}], v[{b+2*k}:{b+2*k+1}]" for k in range(4)]
        L += [f"v_pk_fma_f32 v[{t+2*k}:{t+2*k+1}], v[{t+2*k}:{t+2*k+1}], s[84:85], v[160:161]" for k in range(4)]
        L += [f"v_pk_mul_f32 v[{t+2*k}:{t+2*k+1}], v[{t+2*k}:{t+2*k+1}], v[{b+2*k}:{b+2*k+1}]" for k in range(4)]
        L += [f"v_exp_f32 v{t+k}, v{t+k}" for k in range(8)]
        L += [f"v_pk_fma_f32 v[{t+2*k}:{t+2*k+1}], v[{t+2*k}:{t+2*k+1}], s[86:87], v[162:163]" for k in range(4)]
        L += [f"v_rcp_f32 v{t+k}, v{t+k}" for k in range(8)]
        L += [f"v_pk_mul_f32 v[{t+2*k}:{t+2*k+1}], v[{t+2*k}:{t+2*k+1}], v[{b+2*k}:{b+2*k+1}]" for k in range(4)]
        L += [f"v_cvt_pk_bf16_f32 v{t+k}, v{t+2*k}, v{t+2*k+1}" for k in range(4)]
        L += [f"v_accvgpr_write_b32 a{HPK+4*n+k}, v{t+k}" for k in range(4)]
        sprinkle(e, L, dm, 11)
    return dm
def h_store(n):
    j, up = n >> 1, n & 1
    return ([f"s_add_u32 s{sT+7}, s{sHA + (j >> 1)}, {(j & 1) * 4096 + up * 8192}"],
            f"buffer_store_dwordx4 a[{HPK+4*n}:{HPK+4*n+3}], v{vL16}, s[{RWS}:{RWS+3}], s{sT+7} offen sc1")

def Qr(j, t): return 96 + (4 * j + t) * 4
QP = 224
def Sr(b, j, kt=0): return 160 + 32 * b + 8 * j + 4 * kt
def Pr(b, j): return 224 + 16 * b + 4 * j
def NEGM(j): return 32 + 4 * j
TRI = 48
def CT(k, kt): return (64, 52)[k] + 4 * kt
vMWo, vMRo, vMWs, vMRs = 60, 61, 62, 63
TT = 72
def LT(b, j): return 76 + 4 * b + j
def LL(j): return 84 + j
vCHK = 88
def Or(j, dt): return 32 * j + 4 * dt
FK, FV = 128, 160
vKR, vVR = 2, 3
vPN, vQW, vQR, vNW, vNR = 6, 8, 9, 12, 13
sTHR, sCNT, sRET, sCA, sCB, sP8K = 90, 91, 92, 94, 95, 89
BIG = f32(-1e30)
SEL = {k: r for k, r in zip([(m, kt) for m in range(4) for kt in range(2)], (10, 12, 14, 16, 20, 22, 24, 32))}

def attn_setup(e0, dm):
    L = []
    class C:
        def __call__(self, t, tag=None): L.extend(x.strip() for x in t.strip().split("\n") if x.strip())
    _attn_setup(C())
    G = []
    for x in L:
        if G and (x.startswith(("s_addc", "s_subb", "s_cselect")) or G[-1].split("\n")[-1].startswith("s_nop")): G[-1] += "\n" + x
        else: G.append(x)
    sprinkle(e0, G, dm, 8); flush_dma(e0, dm)
def _attn_setup(e):
    e(f"""
    v_lshrrev_b32 v89, 4, v{vL16}
    v_and_b32 v90, 15, v89
    v_lshrrev_b32 v89, 4, v89
    v_lshlrev_b32 v89, 2, v89
    v_sub_u32 v89, v89, v90
    v_mov_b32 v90, {BIG}
    v_mov_b32 v91, 0
    s_mov_b32 s{sTHR}, {f32(2.0**40)}
    v_mov_b32 v{vKR}, v{vL16}
    v_add_u32 v{vVR}, 0x18000, v{vL16}
    s_and_b32 s{sT}, s{sW}, 1
    s_lshl_b32 s{sP8K}, s{sT}, 13
    s_xor_b32 s{sT+1}, s{sW}, 1
    s_lshl_b32 s{sT}, s{sT}, 1
    """)
    for r in range(4):
        e(f"v_cmp_ge_i32 vcc, {-r}, v89\ns_nop 1\nv_cndmask_b32 v{TRI+r}, v90, v91, vcc")
    for (m, kt), r in SEL.items():
        if m < 2: e(f"s_sub_i32 s{sT+2}, s{sW}, {2*m + kt}")
        else: e(f"s_sub_i32 s{sT+2}, s{sW if m == 2 else sT+1}, s{sT}\ns_sub_i32 s{sT+2}, s{sT+2}, {kt}")
        e(f"s_cmp_eq_u32 s{sT+2}, 0\ns_cselect_b32 s{r}, 1.0, 0\ns_cmp_lt_i32 s{sT+2}, 0\ns_cselect_b32 s{r+1}, {BIG}, 0")
    e(f"""
    s_lshl_b32 s{sT+2}, s{sW}, 13
    s_add_u32 s{sT+2}, s{sT+2}, 0x20000
    v_add_u32 v{vQW}, s{sT+2}, v{vL16}
    v_xor_b32 v{vQR}, 0x2000, v{vQW}
    s_lshl_b32 s{sT+2}, s{sW}, 9
    s_add_u32 s{sT+2}, s{sT+2}, {112*1024}
    v_lshrrev_b32 v{vNW}, 1, v{vL16}
    v_add_u32 v{vNW}, s{sT+2}, v{vNW}
    v_xor_b32 v{vNR}, 0x200, v{vNW}
    s_lshr_b32 s{sT+2}, s{sW}, 1
    s_mul_i32 s{sT+2}, s{sT+2}, {92*1024}
    s_add_u32 s{sT+2}, s{sT+2}, {36*1024}
    s_lshl_b32 s{sT+4}, s{sP8K}, 1
    s_add_u32 s{sT+5}, s{sT+2}, s{sT+4}
    v_add_u32 v{vMWo}, s{sT+5}, v{vL16}
    s_xor_b32 s{sT+4}, s{sT+4}, 0x4000
    s_add_u32 s{sT+5}, s{sT+2}, s{sT+4}
    v_add_u32 v{vMRo}, s{sT+5}, v{vL16}
    s_lshl_b32 s{sT+2}, s{sW}, 10
    s_add_u32 s{sT+2}, s{sT+2}, {68*1024}
    v_add_u32 v{vMWs}, s{sT+2}, v{vL16}
    v_xor_b32 v{vMRs}, 0x400, v{vMWs}
    """)
    srd(e, R0, pWO, 4096 * 1280); srd(e, R1, pW2, 1728 * 1280)
    e(f"""
    s_lshl_b32 s{sT}, s2, 2
    s_add_u32 s{sT}, s{sT}, s{sW}
    v_lshrrev_b32 v5, 4, v{vL16}
    s_mul_i32 s{sT+1}, s{sT}, 40
    v_min_u32 v4, 39, v5
    v_add_u32 v4, s{sT+1}, v4
    v_lshlrev_b32 v4, 7, v4
    s_mul_i32 s{sT+1}, s{sT}, 17
    v_min_u32 v5, 16, v5
    v_add_u32 v5, s{sT+1}, v5
    v_lshlrev_b32 v5, 7, v5
    """)
    e(f"""
    s_lshl_b32 s{sT}, s{sH}, 15
    s_lshl_b32 s{sT+1}, s{sW}, 10
    s_add_u32 s{sT}, s{sT}, s{sT+1}
    s_add_u32 s{sT}, s{sT}, {CF}
    s_lshl_b32 s{sCA}, s{sIDX}, 20
    s_add_u32 s{sCA}, s{sCA}, s{sT}
    s_sub_u32 s{sCB}, 15, s{sIDX}
    s_lshl_b32 s{sCB}, s{sCB}, 20
    s_add_u32 s{sCB}, s{sCB}, s{sT}
    """)

def fread(base, areg, off, f): return f"ds_read_b128 a[{base+4*f}:{base+4*f+3}], v{areg} offset:{off + f * 1024}"
def kread(n, f): return fread(FK, vKR, (n & 3) * 8192, f)

def xreduce(e, op, regs, tmps):
    for sw in ("v_permlane16_swap_b32", "v_permlane32_swap_b32"):
        for r, t in zip(regs, tmps): e(f"v_mov_b32 v{t}, v{r}")
        e("s_nop 1")
        for r, t in zip(regs, tmps): e(f"{sw} v{r}, v{t}")
        e("s_nop 0")
        for r, t in zip(regs, tmps): e(f"{op} v{r}, v{r}, v{t}")

def max8(e, d, sreg):
    e(f"v_max3_f32 v{d}, v{sreg}, v{sreg+1}, v{sreg+2}\nv_max3_f32 v{d}, v{d}, v{sreg+3}, v{sreg+4}\nv_max3_f32 v{d}, v{d}, v{sreg+5}, v{sreg+6}\nv_max_f32 v{d}, v{d}, v{sreg+7}")

def sm_ops(b, J):
    L = []; k = 0
    for j in J:
        for x in range(8):
            t = TT + (k & 3); tp = TT + ((k - 1) & 3)
            fol = []
            if x == 1: fol.append(f"v_add_f32 v{LT(b, j)}, v{tp}, v{t}")
            elif x > 1: fol.append(f"v_add_f32 v{LT(b, j)}, v{LT(b, j)}, v{t}")
            if x & 1: fol.append(f"v_cvt_pk_bf16_f32 v{Pr(b, j) + (x >> 1)}, v{tp}, v{t}")
            L.append((f"v_exp_f32 v{t}, v{Sr(b, j) + x}", fol)); k += 1
    return L

FBS = {}
STUBS = []
class Blk:
    def __init__(self, name, prev, cur): self.name, self.prev, self.cur, self.first = name, prev, cur, prev is None
    def act(self, n):
        if n < 0: return {None: [], "F": [3, 2, 1, 0], "D": [3, 2, 1], "Y": [3, 2, 1, 0]}[self.prev]
        if self.cur == "D" and n in (2, 3): return [3, 2, 1]
        if self.cur == "E": return ([3, 2, 1, 0], [3, 1], [], [], [])[n]
        return [3, 2, 1, 0]
    def y(self, n): return self.prev == "Y" if n < 0 else (self.cur in "YE" or (n == 4 and self.cur == "D"))
    def masked(self, n):
        if self.cur == "D": return {0 if n < 2 else 1: n & 1}
        if self.cur == "E" and n < 2: return {2 + n: 2, n: 3}
        return {}

def attn_block(e, bk):
    nm = bk.name; E_ = bk.cur == "E"; sw = bk.prev == "D"
    canon = [(regs_of(f"a[{FK+4*f}:{FK+4*f+3}]"), None) for f in range(8)]
    e.lg = list(canon) if bk.first else canon[4:]
    nb = [0, 0]
    if sw:
        for j in range(2):
            for r in range(4): e(f"v_mov_b32 v{NEGM(j)+r}, v{vPN+j}")
    for lp in range(4):
        nq, ns, nv = lp, lp - 1, lp - 2
        JQ, JS, JV = bk.act(nq), bk.act(ns), bk.act(nv); JN = JQ
        bq, bs, bv = nq & 1, ns & 1, nv & 1
        pre = []
        msk = bk.masked(nq); first_qk = bk.first and lp == 0
        cti = {}
        for k, (j, m) in enumerate(msk.items()):
            cti[j] = k
            for kt in range(2):
                c = CT(k, kt); sel = SEL[(m, kt)]
                pre.append(f"v_mov_b32 v{c+3}, s{sel+1}" if first_qk else f"v_add_f32 v{c+3}, s{sel+1}, v{NEGM(j)}")
                pre += [f"v_fma_f32 v{c+r}, v{TRI+r}, s{sel}, v{c+3}" for r in range(4)]
        FVc = FK if (E_ and lp == 2) else FV
        mf = []; kstart = []; vstart = []
        for f in range(8 if JQ else 0):
            t, kt = f >> 1, f & 1
            kstart.append(len(mf))
            for j in JQ:
                d = Sr(bq, j, kt)
                c = v(d, 4) if t else v(CT(cti[j], kt), 4) if j in msk else "0" if first_qk else v(NEGM(j), 4)
                q = ac(QP + 16 * j + 4 * t, 4) if (j < 2 and bk.y(nq)) else v(Qr(j, t), 4)
                mf.append(f"{MF} v[{d}:{d+3}], a[{FK+4*f}:{FK+4*f+3}], {q}, {c}")
        fresh = lambda j: nv == 0 and (bk.first or (sw and j < 2))
        for f in range(8 if JV else 0):
            vstart.append(len(mf))
            for j in JV:
                o = Or(j, f)
                mf.append(f"{MF} a[{o}:{o+3}], a[{FVc+4*f}:{FVc+4*f+3}], v[{Pr(bv, j)}:{Pr(bv, j)+3}], " + ("0" if fresh(j) else ac(o, 4)))
        NG = len(mf)
        fill = [[] for _ in range(NG)]
        voff = lambda n: (n & 1) * 16384 if bk.y(n) else (n & 3) * 8192
        vtog = [f"v_xor_b32 v{vVR}, 0x8000, v{vVR}"] + ([f"v_add_u32 v{vVR}, s{sP8K}, v{vVR}"] if sw and lp == 1 else [])
        if JV and JQ:
            for f in range(8): fill[kstart[f] + 1].append(fread(FV, vVR, voff(nv), f))
        if E_ and lp == 1:
            for x in vtog: fill[vstart[0]].append(x)
            for f in range(8): fill[vstart[f] + 1].append(fread(FK, vVR, 0, f))
        elif E_ and lp == 2:
            for f in range(8): fill[vstart[f] + 1].append(fread(FV, vVR, 16384, f))
        elif lp == 1 or (lp == 3 and bk.cur == "Y"):
            for k, x in enumerate(vtog): fill[(vstart[1] + 1 + 8 * k) if JV else 1].append(x)
        needK = not E_ or lp == 0
        if needK:
            nk = lp + 1
            if lp == 3 or (lp == 1 and bk.cur == "Y"):
                fill[5].append(f"v_xor_b32 v{vKR}, 0x8000, v{vKR}")
                if bk.cur == "D": fill[13].append(f"v_add_u32 v{vKR}, s{sP8K}, v{vKR}")
            koff = (nk & 1) * 16384 if bk.y(nk) else (nk & 3) * 8192
            for f in range(8): fill[vstart[f] + 1 if JV else kstart[f] + len(JQ) - 1].append(fread(FK, vKR, koff, f))
        def needf(base, f0):
            def g(e): e.need(f"a[{base+4*f0}:{base+4*f0+15}]")
            return g
        if JQ and JV:
            fill[kstart[4] - 2].append(needf(FK, 4)); fill[vstart[0] - 2].append(needf(FV, 0))
        if JV:
            fill[vstart[4] - 2].append(needf(FVc, 4))
            if needK or (E_ and lp == 1): fill[NG - 2].append(needf(FK, 0))
            if E_ and lp == 2: fill[NG - 2].append(needf(FV, 0))
        grp_k = (bk.cur == "Y") or (not E_ and lp & 1 == 0 and not first_qk)
        grp_v = (nm == "YD" and lp == 0) or (bk.cur == "Y" and not (sw and lp == 0)) or (bk.cur in "FD" and lp & 1)
        vlast = None
        for kind, on in (("K", grp_k), ("V", grp_v)):
            if not on: continue
            L, inc = kv_dma(kind)
            g0, span = (0, 8 * len(JQ)) if kind == "K" else ((vstart[0], 8 * len(JV)) if JV else (0, NG))
            st = span // 4
            for x in reversed(L[0][0]): fill[max(0, g0 - 4)].append(x)
            for k, d in enumerate(L): fill[g0 + 1 + st * k].append(d[1])
            fill[g0 + 2 + st * 3].append(inc)
            if kind == "V": vlast = g0 + 1 + st * 3
        def ride(L, g0, g1, tag=None):
            st = max(2, (g1 - g0) // len(L))
            for k, x in enumerate(L):
                g = (g0 + st * k) | 1
                while any(_kind(y) in ("vml", "vms") for y in fill[g]): g += 2
                put_dma(fill, g, x, tag)
        cst = lambda a, b: [ctx_store(96, sCA, n) for n in range(a, b)]
        if bk.first and lp >= 2: ride([h_store(n) for n in range(4 * lp - 8, 4 * lp - 4)], 4, NG - 4)
        if nm == "TY" and lp >= 2: ride(cst(2 * lp - 4, 2 * lp - 2), 10, NG)
        if nm == "YD" and lp < 2: ride(cst(4 + 2 * lp, 6 + 2 * lp), 6, NG - 8)
        if nm == "TYD" and lp == 2: ride(cst(0, 4), 20, NG)
        if E_ and lp == 1: fill[3].append(PHL)
        if E_ and lp == 2: ride(p5_dmas(0), 2, 20)
        if first_qk:
            for k in range(8): fill[4 * k + 1].append(f"ds_write_b128 v{vQW}, v[{Qr(2, 0)+4*k}:{Qr(2, 0)+4*k+3}] offset:{k*1024}")
        if bk.first and lp == 1: fill[2].append(f"ds_read_b64 v[{vPN}:{vPN+1}], v{vNR}")
        if bk.first and lp == 2:
            for k in range(8): fill[kstart[k] + 2 + (len(JQ) & 1)].append(fread(QP, vQR, 0, k))
        if E_ and lp == 3:
            for k in range(8): fill[2 * k + 1].append(f"ds_write_b128 v{vMWo}, a[{Or(0, k)}:{Or(0, k)+3}] offset:{k*1024}")
        if nm in ("DF", "TY") and lp == 3: ride([([], flag_store(sQ + 1))], NG - 3, NG)
        if nm in ("DF", "TY") and lp == 0:
            ride([([], f"buffer_load_dword a192, v4, s[{R0}:{R0+3}], 0 offen"), ([], f"buffer_load_dword a193, v5, s[{R1}:{R1+3}], 0 offen")], NG - 9, NG - 1)
        if (lp & 1 or bk.cur in "YE") and not (E_ and lp == 3):
            gb = vstart[0] if JV else -1
            cnt = lambda kinds: sum(1 for g in range(gb) for x in fill[g] if _kind(x) in kinds)
            if E_: n = (8 + nb[0], nb[0], nb[1])[lp] + cnt(("vml", "vms"))
            else: n = 12 + (4 + cnt(("vms",)) if (bk.first and lp == 3) else 0)
            def mkb(n, lp=lp):
                def f(e):
                    lg = list(e.lg)
                    if OPT.get("ticks"): e("s_waitcnt lgkmcnt(0)")
                    z = (bk.first and lp == 1) or (E_ and lp == 2)
                    tick_pre(e); e(f"s_waitcnt vmcnt({n}){' lgkmcnt(0)' if z else ''}\ns_barrier"); tick_post(e)
                    e.lg = [] if z else lg
                return f
            if E_ and lp == 2: fill[gb].insert(0, async_check(f"L_h{nm}", 20, PHL))
            if gb >= 0: fill[gb].insert(1 if (E_ and lp == 2) else 0, mkb(n))
            else: pre.insert(0, mkb(n))
        if JS:
            ops = sm_ops(bs, JS)[2:]
            W = NG - 4 if JN else min(NG - 2, 2 * len(ops))
            lastg = 0; tile_done = []
            for k, (ex, fol) in enumerate(ops):
                g = (k * W) // len(ops)
                if W >= 2 * len(ops): g &= ~1
                fill[g].append(ex)
                for x in fol: fill[g + 1].append(x)
                lastg = g + 1
                if (k + 2) % 8 == 7: tile_done.append(lastg)
            lts = [LT(bs, j) for j in JS]
            ck = []
            if len(lts) == 4: fill[tile_done[2] + 2].append(f"v_max3_f32 v{vCHK}, v{lts[0]}, v{lts[1]}, v{lts[2]}"); ck.append(f"v_max_f32 v{vCHK}, v{vCHK}, v{lts[3]}")
            elif len(lts) == 3: ck.append(f"v_max3_f32 v{vCHK}, v{lts[0]}, v{lts[1]}, v{lts[2]}")
            else: ck.append(f"v_max_f32 v{vCHK}, v{lts[0]}, v{lts[1]}")
            ck.append(f"v_cmp_lt_f32 vcc, s{sTHR}, v{vCHK}")
            gck = max(lastg, NG - 3)
            assert gck <= NG - 2
            J3 = [(j, not (sw and lp == 1 and j < 2), not (sw and lp == 0 and j < 2)) for j in JS]
            fb = f"FB{bs}_" + "".join(f"{j}{'' if a else 'n'}{'' if b else 'l'}" for j, a, b in J3)
            FBS[fb] = (bs, J3)
            site = f"L_{nm}_{lp}"
            STUBS.append((site, fb))
            for x in ck: fill[gck].append(x)
            fill[NG - 1].append(grp([f"s_cbranch_vccnz {site}_fb", f"{site}_ret:"]))
        for k, j in enumerate(JV):
            g = 1 if k == 0 else min(NG - 5, 16 * k - 3)
            fill[g].append(f"v_mov_b32 v{LL(j)}, v{LT(bv, j)}" if fresh(j) else f"v_add_f32 v{LL(j)}, v{LL(j)}, v{LT(bv, j)}")
        head = sm_ops(bq, JN)[:2] if JN else []
        if head and not first_qk:
            fill[NG - 4].append(head[0][0]); fill[NG - 2].append(head[1][0])
            for x in head[1][1]: fill[NG - 1].append(x)
        if first_qk: e.need(f"a[{FK}:{FK+15}]")
        for x in pre:
            if callable(x): x(e)
            else: e(x)
        if pre: e("s_nop 1")
        for g in range(NG):
            c = sum(1 for x in fill[g] if _kind(x) in ("vml", "vms"))
            nb[0] += c; nb[1] = 0 if g == vlast else nb[1] + c
        run_gaps(e, mf, fill)
        if sw and lp == 1: attn_epilogue(e)
        if E_ and lp == 0: p5_setup(e)
        if first_qk:
            e("s_nop 7")
            for j in range(4): max8(e, NEGM(j), Sr(0, j))
            xreduce(e, "v_max_f32", [NEGM(j) for j in range(4)], [NEGM(j) + 1 for j in range(4)])
            for j in range(4):
                e(f"v_sub_f32 v{NEGM(j)}, 0, v{NEGM(j)}")
                for r in range(1, 4): e(f"v_mov_b32 v{NEGM(j)+r}, v{NEGM(j)}")
            e(f"ds_write_b64 v{vNW}, v[{NEGM(2)+3}:{NEGM(2)+4}]".replace(f"v[{NEGM(2)+3}:{NEGM(2)+4}]", "v[10:11]").replace("ds_write", f"v_mov_b32 v10, v{NEGM(2)}\nv_mov_b32 v11, v{NEGM(3)}\nds_write"))
            for j in (3, 2, 1, 0):
                for x in range(8): e(f"v_add_f32 v{Sr(0, j)+x}, v{Sr(0, j)+x}, v{NEGM(j)}")
            e(head[0][0]); e(head[1][0]); e("s_nop 0")
            for x in head[1][1]: e(x)
    if nm == "TYD":
        for su, x in cst(4, 8): e(su[0]); e(x)
    if not E_:
        assert len(e.lg) <= 4 and [r for r, _ in e.lg] == [r for r, _ in canon][8 - len(e.lg):], (nm, len(e.lg))

def ctx_store(pk, sbase, n):
    return ([f"s_add_u32 s{sT+7}, s{sbase}, {(n >> 2) * 4096 + (n & 3) * 8192}"],
            f"buffer_store_dwordx4 v[{pk+4*n}:{pk+4*n+3}], v{vL16}, s[{RWS}:{RWS+3}], s{sT+7} offen sc1")
def attn_epilogue(e):
    e("s_nop 7")
    xreduce(e, "v_add_f32", [LL(0), LL(1)], [89, 90])
    for j in range(2): e(f"v_rcp_f32 v{LL(j)}, v{LL(j)}")
    for j in range(2):
        e(f"v_mov_b32 v94, v{LL(j)}\nv_mov_b32 v95, v{LL(j)}")
        for k in range(16):
            src = Or(j, 0) + 2 * k; tr = 90 + 2 * (k & 1)
            e(f"v_accvgpr_read_b32 v{tr}, a{src}\nv_accvgpr_read_b32 v{tr+1}, a{src+1}")
            e(f"v_pk_mul_f32 v[{tr}:{tr+1}], v[{tr}:{tr+1}], v[94:95]")
            e(f"v_cvt_pk_bf16_f32 v{96+16*j+k}, v{tr}, v{tr+1}")

def attn_final(e):
    e.lg = [(set(), None)] * 8
    e(f"v_mov_b32 v72, v{LL(0)}\nv_mov_b32 v73, v{LL(1)}\nv_mov_b32 v74, v{NEGM(0)}\nv_mov_b32 v75, v{NEGM(1)}\ns_nop 3")
    e(f"ds_write_b128 v{vMWs}, v[72:75]")
    for k in range(8): e(f"ds_write_b128 v{vMWo}, a[{Or(1, k)}:{Or(1, k)+3}] offset:{8192 + k*1024}")
    e("s_waitcnt lgkmcnt(0)\ns_barrier")
    e(f"ds_read_b128 v[72:75], v{vMRs}")
    for k in range(14): e(f"ds_read_b128 v[{160+4*k}:{163+4*k}], v{vMRo} offset:{k*1024}")
    for su, x in p5_dmas(1):
        for y in reversed(su): e(y)
        if su: e("s_nop 0")
        e(x)
    e.need("v[72:75]")
    for k in range(14, 16): e(f"ds_read_b128 v[{160+4*k}:{163+4*k}], v{vMRo} offset:{k*1024}")
    for j in range(2):
        e(f"v_min_f32 v89, v{74+j}, v{NEGM(2+j)}\nv_sub_f32 v{64+2*j}, v89, v{NEGM(2+j)}\nv_sub_f32 v{68+2*j}, v89, v{74+j}")
    for j in range(2): e(f"v_exp_f32 v{64+2*j}, v{64+2*j}\nv_exp_f32 v{68+2*j}, v{68+2*j}")
    for j in range(2): e(f"v_mul_f32 v{LL(2+j)}, v{LL(2+j)}, v{64+2*j}")
    for j in range(2): e(f"v_fmac_f32 v{LL(2+j)}, v{72+j}, v{68+2*j}")
    xreduce(e, "v_add_f32", [LL(2), LL(3)], [89, 90])
    for j in range(2): e(f"v_rcp_f32 v{LL(2+j)}, v{LL(2+j)}")
    e("s_nop 0")
    for j in range(2):
        for b in (64, 68): e(f"v_mul_f32 v{b+2*j}, v{b+2*j}, v{LL(2+j)}\nv_mov_b32 v{b+2*j+1}, v{b+2*j}")
    for j in range(2):
        for k in range(16):
            src = Or(2 + j, 0) + 2 * k; tr = 90 + 2 * (k & 1); rx = 160 + 32 * j + 2 * k
            e(f"v_accvgpr_read_b32 v{tr}, a{src}\nv_accvgpr_read_b32 v{tr+1}, a{src+1}")
            e(f"v_pk_mul_f32 v[{tr}:{tr+1}], v[{tr}:{tr+1}], v[{64+2*j}:{65+2*j}]")
            e.need(f"v[{rx}:{rx+1}]")
            e(f"v_pk_fma_f32 v[{tr}:{tr+1}], v[{rx}:{rx+1}], v[{68+2*j}:{69+2*j}], v[{tr}:{tr+1}]")
            e(f"v_cvt_pk_bf16_f32 v{128+16*j+k}, v{tr}, v{tr+1}")
            if k & 3 == 3:
                su, x = ctx_store(128, sCB, 4 * j + (k >> 2)); e(su[0]); e(x)

def fallback(e, name, b, J3):
    e(f"{name}:\ns_nop 15")
    for j, scale, nxt in J3:
        d = 89
        max8(e, d, Sr(b, j))
        xreduce(e, "v_max_f32", [d], [90])
        e(f"v_max_f32 v{d}, 0, v{d}\nv_sub_f32 v90, 0, v{d}\nv_exp_f32 v90, v90")
        for x in range(8): e(f"v_sub_f32 v{Sr(b, j)+x}, v{Sr(b, j)+x}, v{d}")
        if nxt:
            for r in range(4): e(f"v_sub_f32 v{NEGM(j)+r}, v{NEGM(j)+r}, v{d}")
            for x in range(8): e(f"v_sub_f32 v{Sr(b ^ 1, j)+x}, v{Sr(b ^ 1, j)+x}, v{d}")
        if scale:
            e(f"v_mul_f32 v{LL(j)}, v{LL(j)}, v90")
            for x in range(0, 32, 2):
                o = Or(j, 0) + x
                e(f"v_accvgpr_read_b32 v91, a{o}\nv_accvgpr_read_b32 v92, a{o+1}\nv_mul_f32 v91, v91, v90\nv_mul_f32 v92, v92, v90\nv_accvgpr_write_b32 a{o}, v91\nv_accvgpr_write_b32 a{o+1}, v92")
    for ex, fol in sm_ops(b, [j for j, _, _ in J3]):
        e(ex); e("s_nop 0")
        for x in fol: e(x)
    for ex, fol in sm_ops(b ^ 1, [3])[:2]: e(ex)
    e(f"s_nop 1\ns_setpc_b64 s[{sRET}:{sRET+1}]")

def attn_pre(e):
    e.need(vmtags=("k0",), lg0=True)
    e("s_barrier")
    for f in range(8): e(kread(0, f))

def attention(e):
    B = {k: Blk(k, p, c) for k, p, c in (("fFF", None, "F"), ("fDF", None, "D"), ("FF", "F", "F"), ("DF", "F", "D"),
                                          ("TY", "D", "Y"), ("YY", "Y", "Y"), ("YD", "Y", "E"), ("TYD", "D", "E"))}
    segs = {}
    def seg(name):
        n0 = len(e.l); attn_block(e, B[name]); segs[name] = e.l[n0:]
    e(f"s_cmp_eq_u32 s{sIDX}, 0\ns_cbranch_scc1 L_fDF")
    seg("fFF")
    e(f"s_sub_u32 s{sCNT}, s{sIDX}, 1\ns_cmp_eq_u32 s{sCNT}, 0\ns_cbranch_scc1 L_DF\n.p2align 3\nL_FF:")
    seg("FF")
    e(f"s_sub_u32 s{sCNT}, s{sCNT}, 1\ns_cmp_lg_u32 s{sCNT}, 0\ns_cbranch_scc1 L_FF\nL_DF:")
    seg("DF")
    e(f"s_cmp_eq_u32 s{sIDX}, 7\ns_cbranch_scc1 L_TYD\nL_TY:")
    seg("TY")
    stamp(e, 7)
    e(f"s_sub_u32 s{sCNT}, 6, s{sIDX}\ns_cmp_eq_u32 s{sCNT}, 0\ns_cbranch_scc1 L_YD\n.p2align 3\nL_YY:")
    seg("YY")
    e(f"s_sub_u32 s{sCNT}, s{sCNT}, 1\ns_cmp_lg_u32 s{sCNT}, 0\ns_cbranch_scc1 L_YY\nL_YD:")
    seg("YD")
    e("L_fin:")
    def out_of_line():
        e("L_fDF:"); seg("fDF")
        e("s_branch L_TY\nL_TYD:"); seg("TYD")
        e("s_branch L_fin")
        for site, fb in STUBS:
            e(f"{site}_fb:\ns_call_b64 s[{sRET}:{sRET+1}], {fb}\ns_branch {site}_ret")
        for name, (b, J3) in FBS.items():
            n0 = len(e.l); fallback(e, name, b, J3); segs[name] = e.l[n0:]
    return segs, out_of_line

sMT, sNT, sS, sAH, sAC, sWH, sWC, sXO, sFH, sFC = 64, 65, 66, 67, 68, 69, 70, 76, 77, 78
sMA, sMW, sBO, sEXs, sEXl, sFE = 79, 80, 81, 82, 83, 84
SLOT = 36864; SLMAP = (0, 2, 1, 3)
vWD5, vRB, vRE, vRO, vP1, vP2, vL4K, vXO, vBO = 4, 10, 12, 14, 16, 17, 9, 18, 19
vRA = 24; sEX3 = 85
PHL = f"buffer_load_dword v20, v{vP1}, s[{RWS}:{RWS+3}], s{sFH} offen sc1"
def p5_setup(e):
    e(f"""
    s_lshr_b32 s{sMT}, s{sX}, 2
    s_lshl_b32 s{sMT}, s{sMT}, 3
    s_lshr_b32 s{sT}, s2, 3
    s_and_b32 s{sT}, s{sT}, 7
    s_add_u32 s{sMT}, s{sMT}, s{sT}
    s_lshr_b32 s{sNT}, s2, 6
    s_and_b32 s{sS}, s{sX}, 3
    s_sub_u32 s{sT+1}, 15, s{sMT}
    s_min_u32 s{sT}, s{sMT}, s{sT+1}
    s_mul_i32 s{sT}, s{sT}, {32*FS}
    s_add_u32 s{sFH}, s{sT}, {FH}
    s_mul_i32 s{sT+1}, s{sS}, {8*FS}
    s_add_u32 s{sFC}, s{sT}, s{sT+1}
    s_add_u32 s{sFC}, s{sFC}, {FC}
    v_lshlrev_b32 v{vP1}, 3, v{vL16}
    v_and_b32 v{vP2}, {7*FS}, v{vP1}
    v_and_b32 v{vP1}, {31*FS}, v{vP1}
    """)
    e(f"""
    s_mul_i32 s{sT+3}, s{sMT}, {54*8192}
    s_add_u32 s{sT+3}, s{sT+3}, {HF}
    s_lshl_b32 s{sT+4}, s{sMT}, 20
    s_add_u32 s{sT+4}, s{sT+4}, {CF}
    """)
    srd(e, R0, pWS, 54 * 8192, f"s{sT+3}")
    srd(e, R1, pWS, 128 * 8192, f"s{sT+4}")
    srd(e, R2, pW2, 1728 * 1280)
    srd(e, R3, pWO, 4096 * 1280)
    e(f"""
    s_lshl_b32 s{sMA}, s{sW}, 12
    s_mul_i32 s{sAH}, s{sS}, {14*8192}
    s_add_u32 s{sAH}, s{sAH}, s{sMA}
    s_lshl_b32 s{sAC}, s{sS}, 18
    s_add_u32 s{sAC}, s{sAC}, s{sMA}
    s_mul_i32 s{sMW}, s{sW}, 5120
    s_add_u32 s{sMW}, s{sMW}, 16384
    s_mul_i32 s{sT}, s{sW}, {16*1280}
    s_mul_i32 s{sBO}, s{sNT}, 320
    s_add_u32 s{sT}, s{sT}, s{sBO}
    s_mul_i32 s{sWH}, s{sS}, {14*32*1280}
    s_add_u32 s{sWH}, s{sWH}, s{sT}
    s_mul_i32 s{sWC}, s{sS}, {1024*1280}
    s_add_u32 s{sWC}, s{sWC}, s{sT}
    v_lshrrev_b32 v{vXO}, 4, v{vL16}
    """)
    for k in range(5):
        e(f"""
        v_add_u32 v{vRB}, {64*k}, v{vXO}
        v_mul_u32_u24 v{vRB+1}, 3277, v{vRB}
        v_lshrrev_b32 v{vRB+1}, 16, v{vRB+1}
        v_mul_u32_u24 v{vRE}, 20, v{vRB+1}
        v_sub_u32 v{vRB}, v{vRB}, v{vRE}
        v_lshrrev_b32 v{vRE}, 1, v{vRB+1}
        v_and_b32 v{vRE}, 2, v{vRE}
        v_xor_b32 v{vRB}, v{vRB}, v{vRE}
        v_mul_u32_u24 v{vRB+1}, 1280, v{vRB+1}
        v_lshl_add_u32 v{vWD5+k}, v{vRB}, 4, v{vRB+1}
        """)
        if 0 < k < 4: e(f"v_subrev_u32 v{vWD5+k}, {1024*k}, v{vWD5+k}")
    e(f"""
    s_and_b32 s{sT}, s{sW}, 1
    s_lshl_b32 s{sT+1}, s{sT}, 12
    v_add_u32 v{vRB}, s{sT+1}, v{vL16}
    s_lshr_b32 s{sT+1}, s{sW}, 1
    s_mul_i32 s{sT+2}, s{sT+1}, 160
    s_add_u32 s{sBO}, s{sBO}, s{sT+2}
    s_add_u32 s{sT+2}, s{sT+2}, 16384
    v_lshrrev_b32 v{vRE}, 2, v{vXO}
    v_mul_u32_u24 v{vRE}, 320, v{vRE}
    v_and_b32 v{vRO}, 3, v{vXO}
    v_lshl_add_u32 v{vRE}, v{vRO}, 3, v{vRE}
    v_add_u32 v{vRE}, s{sT+2}, v{vRE}
    v_lshlrev_b32 v{vRO+1}, 1, v{vXO}
    v_and_b32 v{vRO+1}, 32, v{vRO+1}
    s_cmp_eq_u32 s{sT+1}, 0
    s_cselect_b32 s{sT+3}, 1, -1
    v_mul_i32_i24 v{vRO+1}, s{sT+3}, v{vRO+1}
    v_sub_u32 v{vRO}, v{vRE}, v{vRO+1}
    v_add_u32 v{vRE}, v{vRE}, v{vRO+1}
    v_add_u32 v{vRE+1}, {2*SLOT}, v{vRE}
    v_add_u32 v{vRO+1}, {2*SLOT}, v{vRO}
    v_add_u32 v{vL4K}, 4096, v{vL16}
    s_lshl_b32 s{sXO}, s{sMT}, 3
    s_lshl_b32 s{sT}, s{sT}, 2
    s_add_u32 s{sXO}, s{sXO}, s{sT}
    s_add_u32 s{sXO}, s{sXO}, s{sS}
    s_mul_i32 s{sXO}, s{sXO}, {16*1280}
    s_add_u32 s{sXO}, s{sXO}, s{sBO}
    v_lshrrev_b32 v{vBO}, 4, v{vXO}
    v_lshlrev_b32 v{vBO}, 3, v{vBO}
    v_and_b32 v{vXO}, 15, v{vXO}
    v_mul_u32_u24 v{vXO}, 1280, v{vXO}
    v_add_u32 v{vXO}, v{vXO}, v{vBO}
    s_lshl_b32 s{sT}, s{sMT}, 2
    s_add_u32 s{sT}, s{sT}, s{sNT}
    s_lshl_b32 s{sFE}, s{sT}, 2
    s_add_u32 s{sFE}, s{sFE}, s{sW}
    s_mul_i32 s{sFE}, s{sFE}, {FS}
    s_add_u32 s{sFE}, s{sFE}, {FEX}
    s_mul_i32 s{sT}, s{sT}, {16*20480}
    s_mul_i32 s{sT+1}, s{sW}, 5120
    s_add_u32 s{sT}, s{sT}, s{sT+1}
    s_add_u32 s{sT}, s{sT}, {EX}
    s_mul_i32 s{sT+1}, s{sS}, 20480
    s_add_u32 s{sEXs}, s{sT}, s{sT+1}
    s_lshl_b32 s{sT+1}, s{sT+1}, 2
    s_add_u32 s{sEXl}, s{sT}, s{sT+1}
    """)
    for r in range(4):
        e(f"s_add_u32 s{sT}, s{sS}, {r + 1}\ns_and_b32 s{sT}, s{sT}, 3\ns_lshl_b32 s{sT+1}, s{sT}, 10\nv_add_u32 v{vRA+r}, s{sT+1}, v{vRB}\nv_add_u32 v{vRA+4+r}, {2*SLOT}, v{vRA+r}")
        if r < 3: e(f"s_mul_i32 s{sT}, s{sT}, {4*20480}\ns_add_u32 s{sEX3+r}, s{sEXs}, s{sT}")

def p5_dmas(d):
    sl = SLMAP[d & 3] * SLOT
    if d < 7: ra, sa, oa, rw, sw, ow = R0, sAH, d * 16384, R2, sWH, d * 64 * 1280
    else: ra, sa, oa, rw, sw, ow = R1, sAC, (d - 7) * 16384, R3, sWC, (d - 7) * 64 * 1280
    W = []
    for k in range(5):
        su = []
        if k == 0: su = [f"s_add_u32 m0, s{sMW}, {sl}", f"s_add_u32 s{sT+1}, s{sw}, {ow}"]
        if k == 4: su = [f"s_add_u32 m0, s{sMW}, {sl + 4096}"]
        W.append((su, f"buffer_load_dwordx4 v{vWD5+k}, s[{rw}:{rw+3}], s{sT+1} offen offset:{(k & 3) * 1024} lds"))
    A = []
    for k in range(4):
        su = [f"s_add_u32 m0, s{sMA}, {sl}", f"s_add_u32 s{sT}, s{sa}, {oa}"] if k == 0 else []
        A.append((su, f"buffer_load_dwordx4 v{vL16}, s[{ra}:{ra+3}], s{sT} offen offset:{k * 1024} lds"))
    return W + A
MG = OPT.get('mg', 4)
def p5_buf(m): return ({43: 72, 44: 108} if MG == 4 else {45: 72}).get(m, (m & 1) * 36)
def p5_wreads(m):
    d, ks = m >> 1, m & 1; b = p5_buf(m); hi = SLMAP[d & 3] >> 1; o = (SLMAP[d & 3] & 1) * SLOT
    L = []
    for n in range(5):
        a = (vRO if n & 1 else vRE) + hi; off = o + ks * 32 * 320 + n * 32
        L += [f"ds_read_b64_tr_b16 a[{b+4*n}:{b+4*n+1}], v{a} offset:{off}", f"ds_read_b64_tr_b16 a[{b+4*n+2}:{b+4*n+3}], v{a} offset:{off + 5120}"]
    return L
def p5_aread(m, r):
    d, ks = m >> 1, m & 1; b = p5_buf(m); hi = SLMAP[d & 3] >> 1; o = (SLMAP[d & 3] & 1) * SLOT
    return f"ds_read_b128 a[{b+20+4*r}:{b+23+4*r}], v{vRA+4*hi+r} offset:{o + ks * 8192}"
def p5_reads(m):
    W = p5_wreads(m)
    return W[:2] + [p5_aread(m, r) for r in range(4)] + W[2:]

def p5(e):
    ACC = 32; ND = 23
    tick_dump(e, 2)
    attn_final(e)
    stamp(e, 8)
    e(f"s_add_u32 s{sT+2}, s{sQ+1}, {FC - FH}\ns_waitcnt vmcnt(0) lgkmcnt(0)\ns_barrier")
    e(flag_store(sT + 2))
    stamp(e, 9)
    for x in p5_reads(0): e(x)
    PCL = f"buffer_load_dword v20, v{vP2}, s[{RWS}:{RWS+3}], s{sFC} offen sc1"
    mfs = []; fills = []
    NM = 2 * ND - MG
    def mfma(m, n, r):
        b = p5_buf(m); dd = ACC + (r * 5 + n) * 4
        return f"{MF} v[{dd}:{dd+3}], a[{b+4*n}:{b+4*n+3}], a[{b+20+4*r}:{b+23+4*r}], " + ("0" if m == 0 else v(dd, 4))
    for m in range(NM):
        mfs.append([mfma(m, n, r) for n in range(5) for r in range(4)]); fills.append([[] for _ in range(20)])
    mfs.append([mfma(m, n, r) for r in range(4) for m in range(NM, NM + MG) for n in range(5)]); fills.append([[] for _ in range(20 * MG)])
    for m in range(NM):
        f = fills[m]; d = m >> 1
        R = p5_reads(m + 1)
        if m == NM - 1:
            R = []
            for q in range(NM, NM + MG): R += p5_wreads(q)[:2] + [p5_aread(q, 0)] + p5_wreads(q)[2:]
            R += [p5_aread(q, r) for r in range(1, 4) for q in range(NM, NM + MG)]
            if MG == 4:
                for k, x in enumerate(R[19:45]): fills[NM][k >> 1].append(x)
                for k, x in enumerate(R[45:]): fills[NM][13 + k].append(x)
            else:
                for k, x in enumerate(R[19:]): fills[NM][k].append(x)
            R = R[:19]
        g0 = 1 if m & 1 else 0
        for k, x in enumerate(R): f[g0 + k].append(x)
        if m & 1: f[0].append(bar([f"d{d+1}"] + ([f"d{d+2}"] if m == NM - 1 and MG == 4 else [])))
    GR = 176
    for k in range(12): fills[36][4 + k].append(f"v_mov_b32 v{GR + 16*(k >> 2) + (4*(k & 3) + 3 if k & 3 < 3 else 13)}, s{sTAG}")
    fills[36][17].append(f"v_lshrrev_b32 v131, 1, v{vL16}")
    def send(r):
        L = []
        for k in range(10):
            L.append(f"v_cvt_pk_bf16_f32 v{GR + 16*r + 4*(k // 3) + k % 3}, v{ACC+20*r+2*k}, v{ACC+20*r+2*k+1}")
            q = GR + 16 * r + 4 * (k // 3)
            if k % 3 == 2: L.append(f"buffer_store_dwordx4 v[{q}:{q+3}], v{vL16}, s[{RWS}:{RWS+3}], s{sEX3+r} offen offset:{1024 * (k // 3)} sc1")
        L.append(f"buffer_store_dwordx2 v[{q}:{q+1}], v131, s[{RWS}:{RWS+3}], s{sEX3+r} offen offset:3072 sc1")
        return L
    late = []
    allsend = [(5 * MG * (r + 1) + 5, x) for r in range(3) for x in send(r)]
    g = 0
    for g0_, x in allsend:
        g = max(g, g0_)
        if g < 20 * MG: fills[NM][g].append(x)
        else: late.append(x)
        g += 1
    for d in range(2, ND):
        L = p5_dmas(d); m0 = 2 * (d - 3) - 1
        P = [(m0, g) for g in (3, 7, 11, 15, 18)] + [(m0 + 1, g) for g in (2, 6, 10, 14)]
        if d in (2, 4): P = [(d - 2, g) for g in (1, 3, 5, 7, 9, 11, 13, 15, 17)]
        if d == 3: P = [(1, g) for g in (2, 4, 6, 8, 10, 12, 14, 16, 18)]
        for k, (x, (m, g)) in enumerate(zip(L, P)):
            if d == 7 and k == 5:
                fills[m][g - 1].append(async_check("L_p5c", 20, PCL))
                fills[m0][1].append(PCL)
            put_dma(fills[m], g, x, f"d{d}")
    mx = 38
    fills[mx][0].append(grp([f"s_mov_b32 s{R0}, s{pX}", f"s_and_b32 s{R0+1}, s{pX+1}, 0xffff", f"s_mov_b32 s{R0+2}, {2048*1280}", f"s_mov_b32 s{R0+3}, 0x20000",
                             f"s_mov_b32 s{R2}, s{pB2}", f"s_and_b32 s{R2+1}, s{pB2+1}, 0xffff", f"s_mov_b32 s{R2+2}, 1280", f"s_mov_b32 s{R2+3}, 0x20000"]))
    for n in range(5):
        fills[mx][2 + 3 * n].append(f"buffer_load_dwordx2 v[{112+2*n}:{113+2*n}], v{vXO}, s[{R0}:{R0+3}], s{sXO} offen offset:{32*n}")
        fills[mx + 1][2 + 3 * n].append(f"buffer_load_dwordx2 v[{164+2*n}:{165+2*n}], v{vBO}, s[{R2}:{R2+3}], s{sBO} offen offset:{32*n}")
    for m in range(NM + 1):
        if m == 8: stamp(e, 11)
        if m == 10: stamp(e, 12)
        e.gaps(mfs[m], fills[m], mfs[m + 1][0] if m < NM else None)
    for x in late: e(x)
    tick_dump(e, 3)
    stamp(e, 13)
    OWN = ACC + 60; RX = 208
    for k in range(1, 4):
        e(f"s_add_u32 s{sT+k}, s{sS}, {k}\ns_and_b32 s{sT+k}, s{sT+k}, 3\ns_mul_i32 s{sT+k}, s{sT+k}, 20480\ns_add_u32 s{sT+k}, s{sT+k}, s{sEXl}")
    def fetch(e):
        for k in range(3):
            t = RX + 16 * k - (64 if k == 0 else 0) * 0
            for q in range(3): e(f"buffer_load_dwordx4 v[{RXR[k]+4*q}:{RXR[k]+4*q+3}], v{vL16}, s[{RWS}:{RWS+3}], s{sT+1+k} offen offset:{1024*q} sc1")
            e(f"buffer_load_dwordx2 v[{RXR[k]+12}:{RXR[k]+13}], v131, s[{RWS}:{RWS+3}], s{sT+1+k} offen offset:3072 sc1")
    RXR = (224, 240, 140)
    def verify(e):
        tg = [RXR[k] + q for k in range(3) for q in (3, 7, 11, 13)]
        for op, d in (("v_max3_u32", 134), ("v_min3_u32", 135)):
            e(f"{op} v{d}, v{tg[0]}, v{tg[1]}, v{tg[2]}")
            for q in range(3, 11, 2): e(f"{op} v{d}, v{d}, v{tg[q]}, v{tg[q+1]}")
            e(f"{op} v{d}, v{d}, v{tg[11]}, v{tg[11]}")
        e(f"v_xor_b32 v134, s{sTAG}, v134\nv_xor_b32 v135, s{sTAG}, v135\nv_or_b32 v134, v134, v135\nv_cmp_ne_u32 vcc, 0, v134")
    e("s_nop 3")
    fetch(e)
    srd(e, R0, pOUT, 2048 * 1280)
    e.need("v[112:121],v[164:173]")
    for n in range(5):
        for k in range(2):
            t = OWN + 4 * n + 2 * k
            e(f"v_lshlrev_b32 v134, 16, v{112+2*n+k}\nv_and_b32 v135, 0xffff0000, v{112+2*n+k}")
            e(f"v_lshlrev_b32 v136, 16, v{164+2*n+k}\nv_and_b32 v137, 0xffff0000, v{164+2*n+k}")
            e(f"v_pk_add_f32 v[134:135], v[134:135], v[136:137]\nv_pk_add_f32 v[{t}:{t+1}], v[{t}:{t+1}], v[134:135]")
    stamp(e, 10)
    e("s_waitcnt vmcnt(0)"); verify(e)
    e("s_cbranch_vccz L_p5x_ok")
    def poll(e):
        fetch(e); e("s_waitcnt vmcnt(0)"); verify(e)
    spin(e, "L_p5x", poll, None, sleep=1)
    e(f"s_cmp_eq_u32 s2, 0\ns_cselect_b32 s{sT}, {FL}, {0}\ns_cmp_eq_u32 s{sT}, 0\ns_cselect_b32 s{sT}, {WS_END}, s{sT}")
    e(flag_store(sT))
    for q in range(10):
        t = OWN + 2 * q
        for k in range(3):
            u = RXR[k] + 4 * (q // 3) + q % 3; z = 134 + 2 * (k & 1)
            e(f"v_lshlrev_b32 v{z}, 16, v{u}\nv_and_b32 v{z+1}, 0xffff0000, v{u}\nv_pk_add_f32 v[{t}:{t+1}], v[{t}:{t+1}], v[{z}:{z+1}]")
        e(f"v_cvt_pk_bf16_f32 v{112+q}, v{t}, v{t+1}")
        if q & 1: e(f"buffer_store_dwordx2 v[{111+q}:{112+q}], v{vXO}, s[{R0}:{R0+3}], s{sXO} offen offset:{16*(q-1)} {OPT.get('outst', '')}")

def clone_state(e): return (list(e.vm), list(e.lg))

def build(stop=None):
    FBS.clear(); STUBS.clear()
    e = E(); seg = {}
    def mark(name, n0): seg[name] = e.l[n0:]
    n0 = 0
    e("L_code_begin:")
    if STAMP: e("s_mov_b32 s71, 0\ns_memrealtime s[96:97]\ns_memtime s[98:99]")
    prologue(e); stamp(e, 0); p0_ln(e); stamp(e, 1); p1_pre(e); stamp(e, 2)
    mark("pro", n0)
    e(f"s_cmp_ge_u32 s{sW}, 2\ns_cbranch_scc1 L_p1V")
    st0 = clone_state(e); st1 = {}; bq = {}
    def p1(T):
        e.vm, e.lg = list(st0[0]), list(st0[1])
        n0 = len(e.l); bg = Bg(); p1_main(e, T, bg); tick_dump(e, 0); stamp(e, 3); mark("p1" + T, n0)
        st1[T] = clone_state(e); bq[T] = list(bg.q)
        e(f"s_cmp_ge_u32 s{sU}, 27\ns_cbranch_scc1 L_qhN{T}")
    def qh(T, hasH):
        e.vm, e.lg = list(st1[T][0]), list(st1[T][1])
        n0 = len(e.l); b = Bg(); b.q = list(bq[T]); qh_main(e, T, hasH, b); mark("qh" + "NH"[hasH] + T, n0)
    p1("K")
    e("s_branch L_qhH\nL_p1V:")
    p1("V")
    assert [t for _, t in st1["K"][0]] == [t for _, t in st1["V"][0]] and [r for r, _ in st1["K"][1]] == [r for r, _ in st1["V"][1]] and bq["K"] == bq["V"]
    e("L_qhH:"); qh("V", True); seg["qhHK"] = seg["qhHV"]
    n0 = len(e.l)
    tick_dump(e, 1); stamp(e, 4); e("s_nop 7"); q_pack(e); dm = gelu(e, "L_skH"); attn_setup(e, dm); stamp(e, 5); attn_pre(e); stamp(e, 6); mark("postH", n0)
    e("L_attn:")
    segsA, ool = attention(e)
    e("L_p5:")
    n0 = len(e.l); e.vm = []
    p5(e); stamp(e, 14); mark("p5", n0)
    e("L_exit:\ns_endpgm")
    e("L_qhNK:\nL_qhNV:"); qh("V", False); seg["qhNK"] = seg["qhNV"]
    n0 = len(e.l)
    tick_dump(e, 1); stamp(e, 4); e(PKL); e("s_nop 7"); q_pack(e); async_check("L_skN", vTR + 1, PKL)(e); attn_setup(e, kv_prologue_list()); stamp(e, 5); attn_pre(e); stamp(e, 6); mark("postN", n0)
    e("s_branch L_attn")
    ool()
    e("L_code_end:")
    seg.update(segsA)
    errs = []
    for T in "KV":
        for Hh in "HN":
            class X: pass
            x = X(); x.l = seg["p1" + T] + seg["qh" + Hh + T]; check_drain_order(x)
    def path(i):
        if i == 0: a = ["fDF"]
        else: a = ["fFF"] + ["FF"] * min(i - 1, 2) + ["DF"]
        return a + (["TYD"] if i == 7 else ["TY"] + ["YY"] * min(6 - i, 2) + ["YD"])
    for T, Hh, i in (("K", "H", 0), ("V", "N", 1), ("K", "N", 3), ("V", "H", 6), ("K", "H", 7)):
        tr = []
        for nme in ["pro", "p1" + T, "qh" + Hh + T, "post" + Hh] + path(i) + ["p5"]: tr += seg[nme]
        errs += check_trace(tr, f"{T},{Hh},{i}")
    for nme in FBS: errs += check_trace(seg[nme], nme)
    seen = set()
    for x in errs:
        k = x.split("]", 1)[1]
        if k not in seen:
            seen.add(k)
            if len(seen) < 12: print("HAZARD", x)
    print("instructions:", sum(1 for i in e.l if i.kind != "label"), {k: len(vv) for k, vv in seg.items()})
    if "race" in sys.argv:
        import race; race.check_all(e.l)
    mac, body = compress([i.t for i in e.l])
    h = header(); k = h.index(".text")
    open("k_full.s", "w").write(h + e.text() + footer())
    return h[:k] + mac + h[k:] + body + footer(), len(seen)

if __name__ == "__main__":
    STAMP = "stamp" in sys.argv
    txt, ne = build()
    out = sys.argv[1] if len(sys.argv) > 1 else "k.s"
    open(out, "w").write(txt)
    print("bytes", len(txt), "hazards", ne)

def mb_init(e):
    for r in range(4): e(f"v_mov_b32 v{192+r}, 0x3f803f80")
```

```python
import re

def R(p, a, n=1):
    return f"{p}{a}" if n == 1 else f"{p}[{a}:{a+n-1}]"
def v(a, n=1): return R("v", a, n)
def ac(a, n=1): return R("a", a, n)
def s(a, n=1): return R("s", a, n)

_REG = re.compile(r"^-?\|?([vas])(?:(\d+)|\[(\d+):(\d+)\])\|?$")
def regs_of(tok):
    tok = tok.strip()
    if tok in ("vcc", "exec", "m0", "scc"): return {(tok, 0)}
    if tok in ("vcc_lo", "vcc_hi"): return {("vcc", 0)}
    m = _REG.match(tok)
    if not m: return set()
    p = m.group(1)
    if m.group(2) is not None: return {(p, int(m.group(2)))}
    return {(p, i) for i in range(int(m.group(3)), int(m.group(4)) + 1)}

TRANS = ("v_exp_f32", "v_log_f32", "v_rcp_f32", "v_rsq_f32", "v_sqrt_f32")

class I:
    __slots__ = ("t", "mn", "ops", "mods", "kind", "rd", "wr", "a", "b", "c", "lds")
    def __init__(self, t):
        self.t = t
        t = t.split(";")[0].strip()
        self.lds = False
        if t.endswith(":") or t.startswith(".") or not t:
            self.kind = "label"; self.mn = t; self.rd = set(); self.wr = set(); self.ops = []; self.mods = ""; return
        sp = t.split(None, 1)
        self.mn = mn = sp[0]
        rest = sp[1] if len(sp) > 1 else ""
        parts = [x.strip() for x in rest.split(",")] if rest else []
        mods = ""
        if parts:
            last = parts[-1].split(None, 1)
            if len(last) > 1 and not mn.startswith("s_waitcnt"):
                parts[-1] = last[0]; mods = last[1]
        fixed = []
        for p in parts:
            if fixed and fixed[-1].count("[") > fixed[-1].count("]"): fixed[-1] += "," + p
            else: fixed.append(p)
        parts = []
        for p in fixed:
            q = p.split(None, 1)
            parts.append(q[0])
            if len(q) > 1: mods += " " + q[1]
        self.ops = parts; self.mods = mods
        rd, wr = set(), set()
        rg = [regs_of(p) for p in parts]
        if mn.startswith("v_mfma"):
            self.kind = "mfma"; wr = rg[0]; self.a, self.b, self.c = rg[1], rg[2], rg[3]; rd = rg[1] | rg[2] | rg[3]
        elif mn.startswith("ds_read"):
            self.kind = "dsr"; wr = rg[0]; rd = rg[1]
        elif mn.startswith("ds_write"):
            self.kind = "dsw"; rd = set().union(*rg)
        elif mn.startswith("ds_"):
            self.kind = "dsr"; wr = rg[0]; rd = set().union(*rg[1:])
        elif mn.startswith("buffer_load"):
            self.kind = "vml"
            if "lds" in mods.split():
                self.lds = True; rd = set().union(*rg) | {("m0", 0)}
            else:
                wr = rg[0]; rd = set().union(*rg[1:])
        elif mn.startswith("global_load"):
            self.kind = "vml"; wr = rg[0]; rd = set().union(*rg[1:])
        elif mn.startswith("buffer_store") or mn.startswith("global_store"):
            self.kind = "vms"; rd = set().union(*rg)
            self.a = rg[0] if mn.startswith("buffer") else rg[1]
        elif mn.startswith("buffer_atomic") or mn.startswith("global_atomic"):
            self.kind = "vms"; rd = set().union(*rg); self.a = set()
            if "sc0" in mods.split(): self.kind = "vml"; wr = rg[0]
        elif mn in ("buffer_inv", "buffer_wbl2"):
            self.kind = "vms"; self.a = set()
        elif mn.startswith("s_load") or mn in ("s_memtime", "s_memrealtime"):
            self.kind = "smem"; wr = rg[0]; rd = set().union(*rg[1:]) if len(rg) > 1 else set()
        elif mn == "s_waitcnt": self.kind = "wait"; self.mods = rest
        elif mn == "s_nop": self.kind = "nop"
        elif mn == "s_barrier": self.kind = "bar"
        elif mn.startswith("s_cbranch") or mn == "s_branch" or mn.startswith("s_setpc") or mn.startswith("s_swappc") or mn == "s_endpgm" or mn.startswith("s_call"):
            self.kind = "br"
            if "vcc" in mn: rd = {("vcc", 0)}
            if mn.startswith("s_swappc") or mn.startswith("s_call"): wr = rg[0]
        elif mn.startswith(("s_cmp", "s_bitcmp")): self.kind = "salu"; rd = set().union(*rg)
        elif mn.startswith("s_"):
            self.kind = "salu"
            if rg: wr = rg[0]; rd = set().union(*rg[1:]) if len(rg) > 1 else set()
        elif mn.startswith("v_"):
            self.kind = "valu"
            if mn.startswith("v_cmp"):
                wr = rg[0]; rd = set().union(*rg[1:])
            elif mn.startswith("v_permlane") and "swap" in mn:
                wr = rg[0] | rg[1]; rd = rg[0] | rg[1]
            else:
                wr = rg[0]; rd = set().union(*rg[1:]) if len(rg) > 1 else set()
                if mn.startswith(("v_fmac", "v_dot2c")): rd |= rg[0]
                if "_dpp" in mn: rd |= rg[0]
                if mn.startswith(("v_add_co", "v_addc_co", "v_sub_co")): wr |= rg[1]
                if mn.startswith("v_cndmask") and len(parts) == 3: rd |= {("vcc", 0)}
        else:
            raise ValueError("unknown instr " + t)
        self.rd, self.wr = rd, wr

def passes(mn): return 8 if "32x32" in mn else 4

def check_trace(trace, name="", entry_ok=True):
    errs = []
    pos = 0
    lastw = {}
    mfma_c = {}
    st_data = {}
    lg = []
    vm = []
    exec_w = -100
    def err(i, msg):
        errs.append(f"[{name}] {msg}: {i.t.strip()}")
    skip = None
    for i in trace:
        k = i.kind
        if skip is not None:
            if k == "label" and i.mn == skip: skip = None
            continue
        if i.mn == "s_cbranch_vccz" and i.ops[0].endswith("_ok"): skip = i.ops[0] + ":"
        if k == "label": continue
        if k == "wait":
            m = re.search(r"vmcnt\((\d+)\)", i.mods)
            if m:
                n = int(m.group(1)); vm = vm[len(vm) - n:] if n < len(vm) else vm
                if n == 0: vm = []
            m = re.search(r"lgkmcnt\((\d+)\)", i.mods)
            if m:
                n = int(m.group(1))
                if any(x[1].kind == "smem" for x in lg) and n != 0:
                    err(i, "counted lgkm wait with smem outstanding")
                lg = lg[len(lg) - n:] if n < len(lg) else lg
                if n == 0: lg = []
            pos += 1; continue
        if k == "nop":
            pos += int(i.ops[0], 0) + 1; continue
        touched = i.rd | i.wr
        for q, nm in ((lg, "lgkm"), (vm, "vm")):
            for regs, src in q:
                if regs & touched and not (k in ("dsr", "vml") and not (regs & i.rd) and src.kind == k):
                    err(i, f"touches pending {nm} load dest of '{src.t.strip()}'")
        def dist(p): return pos - p - 1
        for r in i.rd:
            if r in lastw:
                p, w = lastw[r]; d = dist(p); need = 0
                if w.kind == "mfma":
                    P = passes(w.mn)
                    if k == "mfma":
                        if r in i.a or r in i.b: need = P + 4
                        elif i.c == w.wr and passes(i.mn) == P: need = 0
                        else: need = P + 2
                    elif k in ("valu", "dsw", "dsr", "vml", "vms"): need = P + 4
                elif w.kind == "valu":
                    if r[0] in "va" and len(r[0]) == 1:
                        if k == "mfma": need = 2
                        elif k == "valu":
                            if i.mn.startswith("v_permlane") or "_dpp" in i.mn: need = 2
                            elif i.mn.startswith(("v_readfirstlane", "v_readlane")): need = 1
                            if w.mn.startswith(TRANS) and not i.mn.startswith(TRANS): need = max(need, 1)
                    else:
                        if k in ("vml", "vms"): need = 5
                        elif k == "valu":
                            need = 4 if i.mn.startswith(("v_readlane", "v_writelane", "v_div_fmas")) else 2
                        elif k in ("salu", "br"): need = 0
                elif w.kind == "salu" and r == ("m0", 0) and i.lds: need = 1
                if d < need: err(i, f"RAW needs {need} got {d} after '{w.t.strip()}'")
        for r in i.wr:
            if r in lastw:
                p, w = lastw[r]; d = dist(p)
                if w.kind == "mfma" and k in ("valu", "dsr", "vml"):
                    need = passes(w.mn) + 4
                    if d < need: err(i, f"WAW needs {need} got {d} after '{w.t.strip()}'")
                if w.kind == "mfma" and k == "mfma" and not (i.c == w.wr and i.wr == w.wr):
                    need = passes(w.mn) + 2 if r in i.c else 0
                    if d < need: err(i, f"WAW mfma needs {need} got {d} after '{w.t.strip()}'")
            if k == "valu" and r in mfma_c:
                p, w = mfma_c[r]; need = passes(w.mn) - 1
                if dist(p) < need: err(i, f"WAR srcC needs {need} got {dist(p)} after '{w.t.strip()}'")
            if r in st_data:
                need = 2 if k == "valu" else 1
                if dist(st_data[r]) < need: err(i, f"WAR store data needs {need}")
        if k == "valu" and ("exec", 0) in i.wr: exec_w = pos
        if k == "mfma" and pos - exec_w - 1 < 4: err(i, "exec write -> mfma needs 4")
        for r in i.wr: lastw[r] = (pos, i)
        if k == "mfma":
            for r in i.c: mfma_c[r] = (pos, i)
        if k == "vms" and ("x4" in i.mn or "x3" in i.mn):
            for r in i.a: st_data[r] = pos
        if k in ("dsr", "dsw"): lg.append((i.wr, i))
        if k == "smem": lg.append((i.wr, i))
        if k in ("vml", "vms"): vm.append((i.wr, i))
        if len(lg) > 15 and not any(x[1].kind == "smem" for x in lg): err(i, "more than 15 lgkm ops outstanding")
        if len(vm) > 63: err(i, "more than 63 vm ops outstanding")
        pos += 1
    return errs

class E:
    def __init__(self):
        self.l = []
        self.lg = []
        self.vm = []
    def __call__(self, txt, tag=None):
        for x in txt.strip("\n").split("\n"):
            x = x.strip()
            if not x or x.startswith(";"): continue
            i = I(x)
            if i.kind in ("vml", "vms") and len(self.vm) >= 62: self("s_waitcnt vmcnt(56)")
            if i.kind in ("dsr", "dsw") and len(self.lg) >= 15: self("s_waitcnt lgkmcnt(11)")
            self.l.append(i)
            if i.kind in ("dsr", "dsw", "smem"): self.lg.append((i.wr, tag))
            elif i.kind in ("vml", "vms"): self.vm.append((i.wr, tag))
            elif i.kind == "wait":
                m = re.search(r"vmcnt\((\d+)\)", i.mods)
                if m:
                    n = int(m.group(1)); self.vm = self.vm[len(self.vm) - n:] if 0 < n < len(self.vm) else ([] if n == 0 else self.vm)
                m = re.search(r"lgkmcnt\((\d+)\)", i.mods)
                if m:
                    n = int(m.group(1)); self.lg = self.lg[len(self.lg) - n:] if 0 < n < len(self.lg) else ([] if n == 0 else self.lg)
    def _n(self, q, regs, tags):
        idx = -1
        for k, (r, t) in enumerate(q):
            if (r & regs) or (t is not None and t in tags): idx = k
        return None if idx < 0 else len(q) - 1 - idx
    def wait_text(self, regs=frozenset(), lgtags=(), vmtags=(), lg0=False):
        a = self._n(self.lg, regs, lgtags); b = self._n(self.vm, regs, vmtags)
        if lg0 and self.lg: a = 0
        p = []
        if b is not None: p.append(f"vmcnt({b})")
        if a is not None: p.append(f"lgkmcnt({a})")
        return ("s_waitcnt " + " ".join(p)) if p else None
    def need(self, regs=frozenset(), lgtags=(), vmtags=(), lg0=False):
        if isinstance(regs, str): regs = set().union(*[regs_of(x) for x in regs.split(",")])
        t = self.wait_text(regs, lgtags, vmtags, lg0)
        if t: self(t)
    def gaps(self, mf, fill, nxt=None):
        order = {"wait": 0, "bar": 0, "salu": 1, "br": 1, "nop": 1, "vml": 2, "vms": 2, "dsr": 3, "dsw": 3, "valu": 4, "label": 5}
        n = len(mf)
        for g in range(n):
            cur = I(mf[g])
            self.need(cur.rd | cur.wr)
            self(mf[g])
            nx = mf[g + 1] if g + 1 < n else nxt
            if nx:
                q = I(nx); self.need(q.rd | q.wr)
            items = []
            for f in fill[g]:
                if callable(f): items.append((9 if getattr(f, 'last', False) else 0, f, None))
                else:
                    t, tag = f if isinstance(f, tuple) else (f, None)
                    items.append((order[I(t).kind], t, tag))
            items.sort(key=lambda x: x[0])
            for _, t, tag in items:
                if callable(t): t(self)
                else:
                    q = I(t)
                    if q.kind in ("valu", "vms", "dsw"): self.need(q.rd | q.wr)
                    self(t, tag)
    def text(self):
        return "\n".join(i.t for i in self.l) + "\n"

_R4 = r"([va])\[(\d+):(\d+)\]"
def compress(lines):
    macros = {}
    out = []
    def mac(name, args, body):
        macros[name] = f".macro {name} {args}\n{body}\n.endm"
    for t in lines:
        m = re.fullmatch(rf"v_mfma_f32_16x16x32_bf16 {_R4}, {_R4}, {_R4}, (?:{_R4}|0)", t)
        if m:
            d, a, b = m.group(1), m.group(4), m.group(7)
            rr = lambda p, x: f"{p}[\\{x}:\\{x}+3]"
            if m.group(10) is None:
                n = f"z{d}{a}{b}"; mac(n, "d,a,b", f"v_mfma_f32_16x16x32_bf16 {rr(d,'d')}, {rr(a,'a')}, {rr(b,'b')}, 0")
                out.append(f"{n} {m.group(2)},{m.group(5)},{m.group(8)}")
            elif m.group(11) == m.group(2):
                n = f"m{d}{a}{b}"; mac(n, "d,a,b", f"v_mfma_f32_16x16x32_bf16 {rr(d,'d')}, {rr(a,'a')}, {rr(b,'b')}, {rr(d,'d')}")
                out.append(f"{n} {m.group(2)},{m.group(5)},{m.group(8)}")
            else:
                n = f"c{d}{a}{b}"; mac(n, "d,a,b,c", f"v_mfma_f32_16x16x32_bf16 {rr(d,'d')}, {rr(a,'a')}, {rr(b,'b')}, {rr(d,'c')}")
                out.append(f"{n} {m.group(2)},{m.group(5)},{m.group(8)},{m.group(11)}")
            continue
        m = re.fullmatch(rf"ds_read_b128 {_R4}, v(\d+) offset:(\d+)", t)
        if m:
            n = f"r{m.group(1)}"; mac(n, "d,a,o", f"ds_read_b128 {m.group(1)}[\\d:\\d+3], v[\\a] offset:\\o")
            out.append(f"{n} {m.group(2)},{m.group(4)},{m.group(5)}"); continue
        m = re.fullmatch(rf"ds_read_b64_tr_b16 {_R4}, v(\d+) offset:(\d+)", t)
        if m:
            n = f"t{m.group(1)}"; mac(n, "d,a,o", f"ds_read_b64_tr_b16 {m.group(1)}[\\d:\\d+1], v[\\a] offset:\\o")
            out.append(f"{n} {m.group(2)},{m.group(4)},{m.group(5)}"); continue
        m = re.fullmatch(r"buffer_load_dwordx4 v(\d+), s\[(\d+):\d+\], s(\d+) offen offset:(\d+)((?: nt| sc0| sc1)*) lds", t)
        if m:
            n = "dma" + m.group(5).replace(" ", "")
            mac(n, "a,r,s,o", "buffer_load_dwordx4 v[\\a], s[\\r:\\r+3], s[\\s] offen offset:\\o" + m.group(5) + " lds")
            out.append(n + " " + ",".join(m.groups()[:4])); continue
        m = re.fullmatch(r"v_cvt_pk_bf16_f32 v(\d+), v(\d+), v(\d+)", t)
        if m:
            mac("cv", "d,a,b", "v_cvt_pk_bf16_f32 v[\\d], v[\\a], v[\\b]"); out.append("cv " + ",".join(m.groups())); continue
        m = re.fullmatch(r"v_accvgpr_read_b32 v(\d+), a(\d+)", t)
        if m:
            mac("ar", "d,a", "v_accvgpr_read_b32 v[\\d], a[\\a]"); out.append("ar " + ",".join(m.groups())); continue
        m = re.fullmatch(r"v_accvgpr_write_b32 a(\d+), v(\d+)", t)
        if m:
            mac("aw", "d,a", "v_accvgpr_write_b32 a[\\d], v[\\a]"); out.append("aw " + ",".join(m.groups())); continue
        out.append(t)
    return "\n".join(macros.values()) + "\n", "\n".join(out) + "\n"
```

```python
import sys, math, struct
from core import *

NAME = "parallel_sum__compressed_kv_cla__dense_activation_gelu__prompt"
def f32(x): return "0x%08x" % struct.unpack("<I", struct.pack("<f", x))[0]
CS = math.log2(math.e) / math.sqrt(128.0)

OPT = dict(kvst="sc1", norole=1, rate=1, bstep=2, bkv=17, notouch1=1, wnt=1, cnt=0, cpf=10, te=3, cs=2, sp0=3, xe=1, be=1, tsp=1, hop=1)
for a in sys.argv[1:]:
    if "=" in a:
        k, vv = a.split("=", 1); OPT[k] = int(vv) if vv.lstrip("-").isdigit() else vv.replace("+", " ")
def NT(k): return ' nt' if OPT.get(k) else ''
XS = 0x0010000; KF = 0x0400000; VF = 0x1500000 + OPT.get('vsk', 0); HF = 0x2600000; CF = 0x2E00000; EX = 0x3F00000; FL = 0x5400000; WS_END = 0x5A00000
HS = 524288 + OPT.get('sk', 0)
FXS = FL + 0x8000; FKV = FL + 0x10000; FH = FL + 0x18000; FC = FL + 0x20000; FEX = FL + 0x80000
FS = 128
sTAG = 88
sW, sH, sIDX, sX = 3, 4, 5, 6
pX, pC, pWQ, pWUK, pWUV, pWO, pW1, pB1, pW2, pB2, pOUT, pDBG, pWS = 8, 10, 12, 14, 16, 18, 22, 24, 26, 28, 30, 32, 34
R0, R1, R2, R3, RWS = 36, 40, 44, 48, 52
sT = 56
sU = 64
sM0a, sM0b, sSa, sSb, sSc, sST = 65, 66, 67, 68, 69, 70
sQ = 72
MF = "v_mfma_f32_16x16x32_bf16"

def srd(e, r, p, nbytes, add=None):
    if add is None:
        e(f"s_mov_b32 s{r}, s{p}\ns_and_b32 s{r+1}, s{p+1}, 0xffff")
    else:
        e(f"s_add_u32 s{r}, s{p}, {add}\ns_addc_u32 s{r+1}, s{p+1}, 0\ns_and_b32 s{r+1}, s{r+1}, 0xffff")
    e(f"s_mov_b32 s{r+2}, {nbytes}\ns_mov_b32 s{r+3}, 0x20000")

vL16, vXR, vWQR, vW1R, vXD, vWQD, vW1D, vSC = 0, 1, 2, 10, 14, 18, 20, 21
vTR, vPK = 24, 28
vTAG = 23
sXS = 80
vCD, vWD, vCR, vWR = 96, 100, 104, 106
vWWIN, vCB = 176, (224, 192)
HACC, QACC = 32, 96
XNB = (224, 240)

def prologue(e):
    e(f"""
    s_cmp_ge_u32 s2, {0 if OPT.get("exit0") else 256}
    s_cbranch_scc1 L_exit
    s_load_dwordx16 s[8:23], s[0:1], 0
    s_load_dwordx8 s[24:31], s[0:1], 64
    s_load_dwordx4 s[32:35], s[0:1], 96
    v_lshrrev_b32 v33, 6, v0
    v_and_b32 v32, 63, v0
    v_readfirstlane_b32 s{sW}, v33
    v_lshlrev_b32 v{vL16}, 4, v32
    s_and_b32 s{sX}, s2, 7
    s_lshr_b32 s{sT}, s2, 3
    s_and_b32 s{sT}, s{sT}, 3
    s_lshl_b32 s{sH}, s{sX}, 2
    s_add_u32 s{sH}, s{sH}, s{sT}
    s_lshr_b32 s{sIDX}, s2, 5
    s_mov_b32 s7, 0
    """)
    if OPT.get("cpf"):
        e(f"""
        s_getpc_b64 s[{sT+4}:{sT+5}]
        s_and_b32 s{sT+4}, s{sT+4}, 0xffffff00
        s_lshr_b32 s{sT+2}, s2, 3
        s_lshl_b32 s{sT+2}, s{sT+2}, 2
        s_add_u32 s{sT+2}, s{sT+2}, s{sW}
        v_min_u32 v152, {OPT["cpf"] - 1}, v32
        v_lshlrev_b32 v152, 14, v152
        s_lshl_b32 s{sT+2}, s{sT+2}, 7
        v_add_u32 v152, s{sT+2}, v152
        v_min_u32 v152, L_code_end-L_code_begin-4, v152
        global_load_dword v153, v152, s[{sT+4}:{sT+5}]{NT('cpnt')}
        """)
    e(f"""
    s_mul_i32 s{sU}, s{sX}, 3
    s_add_u32 s{sU}, s{sU}, s{sT}
    s_sub_u32 s{sT+1}, s{sX}, s{sIDX}
    s_and_b32 s{sT+1}, s{sT+1}, 7
    s_add_u32 s{sT+1}, s{sT+1}, 24
    s_cmp_eq_u32 s{sT}, 3
    s_cselect_b32 s{sU}, s{sT+1}, s{sU}
    """)
    e(f"""
    v_lshrrev_b32 v37, 3, v32
    v_and_b32 v38, 7, v32
    v_lshrrev_b32 v39, 4, v32
    v_xor_b32 v50, v38, v39
    v_lshlrev_b32 v50, 4, v50
    v_lshl_add_u32 v{vCD}, v37, 10, v50
    v_xor_b32 v51, 64, v{vCD}
    v_add_u32 v{vCD+1}, 7168, v51
    v_add_u32 v{vCD+2}, {2*7168}, v{vCD}
    v_add_u32 v{vCD+3}, {3*7168}, v51
    v_and_b32 v52, 15, v32
    v_lshlrev_b32 v53, 1, v39
    v_xor_b32 v53, v52, v53
    v_lshlrev_b32 v53, 4, v53
    v_lshl_add_u32 v{vWD}, v39, 13, v53
    v_add_u32 v{vWD+1}, {31744}, v{vWD}
    v_xor_b32 v51, 128, v{vWD}
    v_add_u32 v{vWD+2}, {2*31744}, v51
    v_add_u32 v{vWD+3}, {3*31744}, v51
    """)
    e(f"""
    s_lshl_b32 s{sSa}, s{sIDX}, 18
    s_lshl_b32 s{sT+1}, s{sW}, 16
    s_add_u32 s{sSa}, s{sSa}, s{sT+1}
    s_lshl_b32 s{sM0a}, s{sW}, 13
    s_and_b32 s{sT+1}, s{sW}, 1
    s_lshl_b32 s{sSb}, s{sT+1}, 17
    s_lshl_b32 s{sT+2}, s{sH}, 8
    s_add_u32 s{sSb}, s{sSb}, s{sT+2}
    s_lshl_b32 s{sM0b}, s{sW}, 12
    s_add_u32 s{sM0b}, s{sM0b}, 0x10000
    s_waitcnt lgkmcnt(0)
    """)
    srd(e, R1, pC, 2048 * 1024)
    e(f"s_cmp_ge_u32 s{sW}, 2\ns_cselect_b32 s{R2}, s{pWUV}, s{pWUK}\ns_cselect_b32 s{R2+1}, s{pWUV+1}, s{pWUK+1}")
    e(f"s_and_b32 s{R2+1}, s{R2+1}, 0xffff\ns_mov_b32 s{R2+2}, {512*8192}\ns_mov_b32 s{R2+3}, 0x20000")
    for q in range(8): emit_dma(e, p1_cdma(0, q), "c0")
    for u in range(4): emit_dma(e, p1_wdma(0, u), "w0")
    for u in range(4): emit_dma(e, p1_wdma(1, u), "w1")
    for q in range(8): emit_dma(e, p1_cdma(1, q), "c1")
    for u in range(4): emit_dma(e, p1_wdma(2, u), "w2")
    e(f"s_add_u32 s{sT+2}, s{pWS}, {FL}\ns_addc_u32 s{sT+3}, s{pWS+1}, 0\ns_load_dword s{sTAG}, s[{sT+2}:{sT+3}], 0")
    srd(e, RWS, pWS, WS_END)
    srd(e, R0, pX, 2048 * 1280)
    srd(e, R3, pB1, 1728 * 2)
    e(f"""
    v_lshrrev_b32 v34, 5, v32
    v_and_b32 v35, 31, v32
    v_mul_u32_u24 v36, 1280, v34
    v_lshl_add_u32 v36, v35, 3, v36
    s_lshl_b32 s{sT}, s2, 2
    s_add_u32 s{sT}, s{sT}, s{sW}
    s_mul_i32 s{sT}, s{sT}, 2560
    v_lshlrev_b32 v94, 3, v39
    s_lshl_b32 s{sT+4}, s{sU}, 7
    """)
    e(f"s_mov_b32 s89, s{sT}\ns_mov_b32 s90, s{sT+4}\nv_mov_b32 v151, v94")
    e(f"""
    s_and_b32 s{sT+2}, s{sH}, 3
    s_lshl_b32 s{sT+2}, s{sT+2}, 2
    s_add_u32 s{sT+2}, s{sT+2}, s{sW}
    s_lshl_b32 s{sT+2}, s{sT+2}, 14
    s_lshl_b32 s{sT+3}, s{sIDX}, 18
    s_add_u32 s{sT+2}, s{sT+2}, s{sT+3}
    v_lshlrev_b32 v140, 10, v52
    v_lshl_add_u32 v141, v39, 7, v140
    v_and_b32 v142, 1, v39
    v_lshl_add_u32 v142, v142, 7, v140
    s_mul_i32 s{sT+3}, s{sIDX}, 48
    s_and_b32 s{sT+4}, s{sW}, 1
    s_mul_i32 s{sT+4}, s{sT+4}, 24
    s_add_u32 s{sT+3}, s{sT+3}, s{sT+4}
    s_add_u32 s{sT+3}, s{sT+3}, 128
    s_lshl_b32 s{sT+3}, s{sT+3}, 13
    s_lshl_b32 s{sT+4}, s{sH}, 8
    s_add_u32 s{sT+3}, s{sT+3}, s{sT+4}
    v_and_b32 v144, 1, v32
    v_lshlrev_b32 v144, 7, v144
    v_min_u32 v143, 47, v32
    v_lshrrev_b32 v143, 1, v143
    v_lshl_add_u32 v143, v143, 13, v144
    """)
    e(f"s_mov_b32 s91, s{sT+2}\ns_mov_b32 s92, s{sT+3}")
    e(f"""
    s_mul_i32 s{sT+2}, s{sIDX}, 80
    s_mul_i32 s{sT+3}, s{sW}, 20
    s_add_u32 s{sT+2}, s{sT+2}, s{sT+3}
    s_lshl_b32 s{sT+3}, s{sT+2}, 13
    s_add_u32 s{sT+3}, s{sT+3}, s{sT+4}
    s_mul_i32 s{sT+2}, s{sT+2}, 3456
    s_lshl_b32 s{sT+4}, s{sU}, 7
    s_add_u32 s{sT+2}, s{sT+2}, s{sT+4}
    v_min_u32 v140, {7 if OPT.get("tsp") else 39}, v32
    v_and_b32 v144, 1, v140
    v_lshlrev_b32 v144, 7, v144
    v_lshrrev_b32 v140, 1, v140
    v_lshl_add_u32 v140, v140, 13, v144
    v_min_u32 v145, {3 if OPT.get("tsp") else 19}, v32
    v_mul_u32_u24 v145, 3456, v145
    """)
    srd(e, 84, pWQ, 640 * 8192)
    e(f"s_mov_b32 s93, s{sT+3}\ns_mov_b32 s94, s{sT+2}")

CSLOT = (32768, 0, 131072, 32768, 0, 32768, 0, 32768)
vCR2 = 124
def p1_cdma(j, q):
    setup = []
    if q % 4 == 0:
        setup = [f"s_add_u32 m0, s{sM0a}, {CSLOT[j] + (q >> 2) * 4096}", f"s_add_u32 s{sT}, s{sSa}, {j * 128 + (q >> 2) * 32768}"]
    return setup, f"buffer_load_dwordx4 v{vCD + (q & 3)}, s[{R1}:{R1+3}], s{sT} offen offset:{(q & 3) * 1024}{NT('cnt')} lds"
def p1_wslot(sidx): return ((sidx + 2) & 3) * 16384
def p1_wdma(sidx, u):
    setup = []
    if u == 0:
        setup = [f"s_add_u32 m0, s{sM0b}, {p1_wslot(sidx)}", f"s_add_u32 s{sT+1}, s{sSb}, {sidx * 32 * 8192}"]
    return setup, f"buffer_load_dwordx4 v{vWD + u}, s[{R2}:{R2+3}], s{sT+1} offen offset:{u * 1024}{NT('wnt')} lds"

def emit_dma(e, pair, tag):
    su, d = pair
    for x in su: e(x)
    if su: e("s_nop 0")
    e(d, tag=tag)

def reduce32(r, t):
    L = []
    for mod in ("quad_perm:[1,0,3,2]", "quad_perm:[2,3,0,1]", "row_half_mirror", "row_mirror"):
        L += ["s_nop 0", f"v_add_f32_dpp v{r}, v{r}, v{r} {mod} row_mask:0xf bank_mask:0xf"]
    return L + [f"v_mov_b32 v{t}, v{r}", "s_nop 0", f"v_permlane16_swap_b32 v{r}, v{t}", f"v_add_f32 v{r}, v{r}, v{t}"]

def ln_ops():
    L = []; U = 50
    for k in range(10): L += [f"v_lshlrev_b32 v{U+2*k}, 16, v{40+k}", f"v_and_b32 v{U+1+2*k}, 0xffff0000, v{40+k}"]
    L += [f"v_add_f32 v70, v{U}, v{U+1}"] + [f"v_add_f32 v70, v70, v{U+k}" for k in range(2, 20)]
    L += reduce32(70, 71) + [f"v_mul_f32 v70, {f32(1/640)}, v70"]
    L += [f"v_sub_f32 v{U+k}, v{U+k}, v70" for k in range(20)]
    L += [f"v_mul_f32 v72, v{U}, v{U}"] + [f"v_fmac_f32 v72, v{U+k}, v{U+k}" for k in range(1, 20)]
    L += reduce32(72, 73)
    L += [f"v_mov_b32 v73, {f32(1e-5)}", f"v_fmac_f32 v73, {f32(1/640)}, v72", "v_rsq_f32 v73, v73", f"v_mul_f32 v73, {f32(CS)}, v73"]
    L += [f"v_mul_f32 v{U+k}, v{U+k}, v73" for k in range(20)]
    for k in range(5):
        L += [f"v_cvt_pk_bf16_f32 v{40+2*k}, v{U+4*k}, v{U+4*k+1}", f"v_cvt_pk_bf16_f32 v{41+2*k}, v{U+4*k+2}, v{U+4*k+3}"]
    return L

def p0_ln(e):
    e(f"""
    v_lshrrev_b32 v54, 1, v52
    v_xor_b32 v54, v54, v39
    v_lshlrev_b32 v54, 4, v54
    v_lshl_add_u32 v54, v52, 7, v54
    s_and_b32 s{sT+2}, s{sW}, 1
    s_lshl_b32 s{sT+2}, s{sT+2}, 14
    v_add_u32 v{vCR}, s{sT+2}, v54
    v_xor_b32 v{vCR+1}, 64, v{vCR}
    v_add_u32 v{vCR2}, 0x20000, v{vCR}
    v_add_u32 v{vCR2+1}, 0x20000, v{vCR+1}
    v_lshrrev_b32 v55, 2, v52
    v_and_b32 v56, 1, v39
    v_lshl_add_u32 v56, v56, 2, v55
    v_lshlrev_b32 v56, 5, v56
    v_and_b32 v57, 3, v32
    v_lshlrev_b32 v57, 3, v57
    v_lshl_add_u32 v57, v55, 8, v57
    v_lshl_add_u32 v58, v39, 11, v57
    s_lshr_b32 s{sT+2}, s{sW}, 1
    s_lshl_b32 s{sT+2}, s{sT+2}, 13
    s_add_u32 s{sT+2}, s{sT+2}, 0x10000
    v_add_u32 v58, s{sT+2}, v58
    v_mul_u32_u24 v59, 3072, v39
    v_add_u32 v59, v59, v57
    v_add_u32 v59, {96*1024}, v59
    """)
    for i in range(8):
        e(f"v_xor_b32 v60, {32*i}, v56\nv_add_u32 v{vWR+i}, v60, v58\nv_add_u32 v{vWQR+i}, v60, v59")
    e(f"""
    v_lshrrev_b32 v60, 1, v55
    v_and_b32 v61, 1, v39
    v_lshl_add_u32 v60, v61, 1, v60
    v_lshlrev_b32 v60, 5, v60
    v_and_b32 v61, 3, v32
    v_lshlrev_b32 v61, 3, v61
    v_lshl_add_u32 v61, v55, 7, v61
    v_mul_u32_u24 v62, 3072, v39
    v_add3_u32 v61, v61, v62, 0
    v_add_u32 v61, {96*1024 + 2048}, v61
    """)
    for i in range(4):
        e(f"v_xor_b32 v62, {32*i}, v60\nv_add_u32 v{vW1R+i}, v62, v61")
    e(f"s_waitcnt lgkmcnt(0)\ns_mul_i32 s{sTAG}, s{sTAG}, 0x9E3779B1\ns_add_u32 s{sTAG}, s{sTAG}, 0x7F4A7C15")
    if W0: e(f"s_cmp_eq_u32 s{sW}, 0\ns_cselect_b32 s{sTAGW}, s{sTAG}, 0")
    e(f"""
    v_lshrrev_b32 v88, 1, v35
    v_mul_u32_u24 v88, 144, v88
    v_and_b32 v89, 1, v35
    v_lshl_add_u32 v88, v89, 3, v88
    v_lshl_add_u32 v88, v34, 4, v88
    s_lshl_b32 s{sT+2}, s{sW}, 5
    s_add_u32 s{sT+2}, s{sT+2}, 0x20000
    v_add_u32 v76, s{sT+2}, v88
    """)
    e(f"""
    v_lshlrev_b32 v126, 8, v37
    v_lshl_add_u32 v126, v38, 4, v126
    s_lshr_b32 s{sXS}, s2, 1
    s_mul_i32 s{sXS}, s{sXS}, 20480
    s_and_b32 s{sT+3}, s2, 1
    s_lshl_b32 s{sT+3}, s{sT+3}, 7
    s_add_u32 s{sXS}, s{sXS}, s{sT+3}
    s_lshl_b32 s{sT+3}, s{sW}, 11
    s_add_u32 s{sXS}, s{sXS}, s{sT+3}
    s_add_u32 s{sXS}, s{sXS}, {XS}
    s_add_u32 s{sXS+1}, s{sXS}, 8192
    s_add_u32 s{sXS+2}, s{sXS}, 16384
    s_cmp_ge_u32 s{sW}, 2
    s_cselect_b32 s{sXS+2}, {WS_END}, s{sXS+2}
    s_mul_i32 s{sT+5}, s{sW}, {8*144}
    s_add_u32 s{sT+5}, s{sT+5}, 0x20000
    v_mul_u32_u24 v77, 144, v37
    v_lshl_add_u32 v77, v38, 4, v77
    v_add_u32 v77, s{sT+5}, v77
    """)
    e(f"""
    s_lshl_b32 s{sQ}, s{sH}, 3
    s_add_u32 s{sQ}, s{sQ}, s{sIDX}
    s_mul_i32 s{sQ}, s{sQ}, {FS}
    s_add_u32 s{sQ}, s{sQ}, {FKV}
    s_lshl_b32 s{sQ+1}, s{sIDX}, 5
    s_add_u32 s{sQ+1}, s{sQ+1}, s{sH}
    s_mul_i32 s{sQ+1}, s{sQ+1}, {FS}
    s_add_u32 s{sQ+1}, s{sQ+1}, {FH}
    s_mul_i32 s{sQ+2}, s2, {FS}
    s_add_u32 s{sQ+2}, s{sQ+2}, {FXS}
    s_sub_u32 s{sQ+3}, s{sU}, 27
    s_mul_i32 s{sT+5}, s{sX}, 5
    s_add_u32 s{sQ+3}, s{sQ+3}, s{sT+5}
    v_mov_b32 v91, 0
    v_mov_b32 v92, 0x10000000
    v_lshl_add_u32 v93, v33, 6, v32
    v_cmp_eq_u32 vcc, 0, v93
    v_mov_b32 v{vTAG}, s{sTAG}
    v_and_b32 v127, 15, v32
    v_cndmask_b32 v{vSC}, v92, v91, vcc
    s_lshl_b32 s{sT+5}, s{sIDX}, 4
    s_sub_u32 s{sT+4}, 240, s{sT+5}
    v_and_b32 v93, 16, v32
    v_cmp_eq_u32 vcc, 0, v93
    v_mov_b32 v91, s{sT+5}
    v_mov_b32 v92, s{sT+4}
    v_cndmask_b32 v91, v92, v91, vcc
    v_add_u32 v127, v127, v91
    v_lshlrev_b32 v127, 7, v127
    """)

def p1_acc(T, i, j):
    if OPT.get("contig"):
        if T == "K": return 8 * (8 * (j >> 1) + 2 * (i >> 1) + (j & 1)) + 4 * (i & 1)
        return 8 * (8 * (j >> 1) + i) + 4 * (j & 1)
    if T == "K": return 8 * (8 * (i >> 1) + 4 * (j & 1) + (j >> 1)) + 4 * (i & 1)
    return 32 * i + 4 * j
def p1_units():
    U = []
    for n in range(32):
        off = n * 1024 if OPT.get("contig") else (n & 3) * 8192 + (n >> 2) * 1024
        ins = []
        for k in range(4):
            tr = vTR + 2 * (k & 1); src = 8 * n + 2 * k
            ins += [f"v_accvgpr_read_b32 v{tr}, a{src}", f"v_accvgpr_read_b32 v{tr+1}, a{src+1}", f"v_cvt_pk_bf16_f32 v{vPK+k}, v{tr}, v{tr+1}"]
        ins.insert(6, f"s_add_u32 s{sT+7}, s{sST}, {off & ~4095}")
        if OPT["kvst"] != "skip": ins.append((f"buffer_store_dwordx4 v[{vPK}:{vPK+3}], v{vL16}, s[{RWS}:{RWS+3}], s{sT+7} offen offset:{off & 4095} {OPT['kvst']}", "kv"))
        U.append(ins)
    return U

def _kind(y):
    if callable(y): return "call"
    if isinstance(y, tuple) and y[0] == "BG": y = y[1]
    return I(y[0] if isinstance(y, tuple) else y).kind
class Bg:
    def __init__(self): self.q = []
    def push(self, ins): self.q += list(ins)
    def place(self, fill, g0, g1, maxv=1, step=1):
        for g in range(g0, g1, step):
            n = 0
            while self.q and n < maxv:
                x = self.q[0]; t = x[0] if isinstance(x, tuple) else x
                k = I(t).kind if not callable(t) else "call"
                if k in ("vms", "vml") and (n > 0 or any(_kind(y) in ("vml", "vms") for y in fill[g])): break
                fill[g].append(("BG", self.q.pop(0)))
                if k in ("salu", "nop"): continue
                n += 1
                if k in ("vms", "vml"): break
    def flush(self, e):
        for x in self.q:
            t, tag = x if isinstance(x, tuple) else (x, None)
            q = I(t); e.need(q.rd | q.wr); e(t, tag)
        self.q = []

def run_gaps(e, mf, fill, nxt=None):
    f2 = []
    for g in range(len(mf)):
        a = [x for x in fill[g] if not (isinstance(x, tuple) and x[0] == "BG")]
        b = [x[1] for x in fill[g] if isinstance(x, tuple) and x[0] == "BG"]
        if b:
            def mk(b):
                def f(e):
                    for x in b:
                        t, tag = x if isinstance(x, tuple) else (x, None)
                        q = I(t); e.need(q.rd | q.wr); e(t, tag)
                f.last = True
                return f
            a.append(mk(b))
        f2.append(a)
    e.gaps(mf, f2, nxt)

def put_dma(fill, g, pair, tag):
    su, d = pair
    for x in reversed(su): fill[g - 1].append(x)
    fill[g].append((d, tag))

def qh_wslot(sidx): return ((sidx + 3) % 5) * 12288
def qh_dmas(sidx, hasH, d=0):
    L = []
    u32 = lambda x: x & 0xffffffff
    for j in range(4):
        su = [f"s_add_u32 m0, s{sM0a}, {u32((sidx & 3) * 16384 + d * 8192)}", f"s_mov_b32 s{sT}, {XS + sidx * 1024 + d * 40960}"] if j == 0 else []
        L.append((su, f"buffer_load_dwordx4 v{vXD + j}, s[{RWS}:{RWS+3}], s{sT} offen offset:{j * 1024} lds"))
    for u in range(2):
        su = [f"s_add_u32 m0, s{sM0b}, {u32(qh_wslot(sidx) + d * 6144)}", f"s_mov_b32 s{sT+1}, {sidx * 32 * 8192 + d * 131072}"] if u == 0 else []
        L.append((su, f"buffer_load_dwordx4 v{vWQD + u}, s[{R0}:{R0+3}], s{sT+1} offen offset:{u * 1024} lds"))
    if hasH:
        L.append(([f"s_mov_b32 s{sT+2}, {sidx * 32 * 3456 + d * 55296}"], f"buffer_load_dwordx4 v{vW1D}, s[{R1}:{R1+3}], s{sT+2} offen offset:2048 lds"))
    return L
def qh_xread(sidx, j):
    b = XNB[sidx & 1] + 4 * j
    return f"ds_read_b128 v[{b}:{b+3}], v{vXR} offset:{(sidx & 3) * 16384 + j * 1024}"
def qh_wread(sidx, i, n):
    r = (n & 3) * 4
    if i < 8: a, second = vWQR + i, 1024
    else: a, second = vW1R + i - 8, 512
    o = qh_wslot(sidx)
    return [f"ds_read_b64_tr_b16 a[{r}:{r+1}], v{a} offset:{o}", f"ds_read_b64_tr_b16 a[{r+2}:{r+3}], v{a} offset:{o + second}"]

def spin(e, lab, pollA, cond, limit=1000000, sleep=None):
    if sleep is None: sleep = OPT.get('slp', 2)
    e(f"s_mov_b32 s{sT+6}, {limit}\n{lab}:")
    pollA(e)
    e(f"s_cbranch_vccz {lab}_ok\ns_sub_u32 s{sT+6}, s{sT+6}, 1\ns_cmp_eq_u32 s{sT+6}, 0\ns_cbranch_scc1 {lab}_ok\ns_sleep {sleep}\ns_branch {lab}\n{lab}_ok:")

def qh_setup(e):
    L = []
    L += [f"s_lshl_b32 s{sQ+4}, s{sIDX}, 3", f"s_add_u32 s{sQ+4}, s{sQ+4}, s{sW}", f"s_mul_i32 s{sQ+4}, s{sQ+4}, 20480",
          f"s_sub_u32 s{sQ+5}, 15, s{sIDX}", f"s_lshl_b32 s{sQ+5}, s{sQ+5}, 3", f"s_add_u32 s{sQ+5}, s{sQ+5}, s{sW}", f"s_mul_i32 s{sQ+5}, s{sQ+5}, 20480"]
    L += [f"v_add_u32 v{vXD}, s{sQ+4}, v{vL16}", f"v_add_u32 v{vXD+1}, {4*20480 - 1024}, v{vXD}",
          f"v_add_u32 v{vXD+2}, s{sQ+5}, v{vL16}", f"v_add_u32 v{vXD+3}, {4*20480 - 3072}, v{vXD+2}", f"v_subrev_u32 v{vXD+2}, 2048, v{vXD+2}"]
    return L

STAMP = False
TS = FL + 0x40000
def stamp(e, k):
    if not STAMP or (OPT.get("lite") and k not in (0, 14)): return
    if k: e("s_memrealtime s[96:97]\ns_memtime s[98:99]")
    e(f"""s_waitcnt lgkmcnt(0)
    s_lshl_b32 s97, s2, 2
    s_add_u32 s97, s97, s{sW}
    s_lshl_b32 s97, s97, 8
    s_add_u32 s97, s97, {TS + 8 * k}
    s_mov_b64 s[100:101], exec
    s_mov_b64 exec, 1
    {"v_mov_b32 v122" if k == 3 else "v_accvgpr_write_b32 a194" if k >= 7 else "v_accvgpr_write_b32 a254"}, s96
    {"v_mov_b32 v123" if k == 3 else "v_accvgpr_write_b32 a195" if k >= 7 else "v_accvgpr_write_b32 a255"}, s98
    s_nop 1
    buffer_store_dwordx2 {"v[122:123]" if k == 3 else "a[194:195]" if k >= 7 else "a[254:255]"}, off, s[{RWS}:{RWS+3}], s97
    s_mov_b64 exec, s[100:101]
    s_nop 3""")

def header():
    return f"""; @launch grid=(256,1,1) block=(256,1,1) lds=163840
.amdgcn_target "amdgcn-amd-amdhsa--gfx950"
.text
.globl {NAME}_kernel
.p2align 8
.type {NAME}_kernel,@function
{NAME}_kernel:
"""
def footer():
    return f"""
.section .rodata,"a"
.p2align 6
.amdhsa_kernel {NAME}_kernel
  .amdhsa_next_free_vgpr 512
  .amdhsa_next_free_sgpr 102
  .amdhsa_accum_offset 256
  .amdhsa_group_segment_fixed_size 0
  .amdhsa_kernarg_size 112
  .amdhsa_user_sgpr_count 2
  .amdhsa_user_sgpr_kernarg_segment_ptr 1
  .amdhsa_system_sgpr_workgroup_id_x 1
.end_amdhsa_kernel
"""

def code_touch(a, b, nl, vt, dst):
    return [grp([f"s_getpc_b64 s[{sT+4}:{sT+5}]", f"LT_{a}_{code_touch.n}:", f"s_add_u32 s{sT+4}, s{sT+4}, {a}-LT_{a}_{code_touch.n}", f"s_addc_u32 s{sT+5}, s{sT+5}, {code_touch.hi(a)}",
                 f"s_lshr_b32 s{sT+6}, s2, 3", f"s_lshl_b32 s{sT+6}, s{sT+6}, 2", f"s_add_u32 s{sT+6}, s{sT+6}, s{sW}", f"s_lshl_b32 s{sT+6}, s{sT+6}, 7"]),
            f"v_lshlrev_b32 v{vt}, 10, v{vL16}", f"v_min_u32 v{vt}, {(nl - 1) << 14}, v{vt}", f"v_add_u32 v{vt}, s{sT+6}, v{vt}", f"v_min_u32 v{vt}, {b}-{a}-4, v{vt}",
            f"global_load_dword {dst}, v{vt}, s[{sT+4}:{sT+5}]"]
code_touch.n = 0
code_touch.hi = lambda a: 0
def grp_all(L):
    def f(e):
        for x in L: x(e) if callable(x) else e(x)
    return f
def grp(L):
    def f(e):
        for x in L: e(x)
    return f
vTK = 22
def tick_pre(e):
    if OPT.get("ticks"): e("s_memtime s[96:97]")
def tick_post(e):
    if OPT.get("ticks") == 2:
        e(f"s_memtime s[98:99]\ns_waitcnt lgkmcnt(0)\ns_lshl_b64 exec, 1, s71\nv_mov_b32 v{vTK}, s96\ns_lshl_b64 exec, 2, s71\nv_mov_b32 v{vTK}, s98\ns_mov_b64 exec, -1\ns_add_u32 s71, s71, 2\ns_and_b32 s71, s71, 63")
    elif OPT.get("ticks"):
        e(f"s_waitcnt lgkmcnt(0)\ns_lshl_b64 exec, 1, s71\nv_mov_b32 v{vTK}, s96\ns_mov_b64 exec, -1\ns_add_u32 s71, s71, 1")
def tick_dump(e, k):
    if OPT.get("ticks"):
        e(f"""s_lshl_b32 s97, s2, 2
        s_add_u32 s97, s97, s{sW}
        s_lshl_b32 s97, s97, 12
        s_add_u32 s97, s97, {FL + 0x100000 + 1024 * k}
        buffer_store_dword v{vTK}, v{vL16}, s[{RWS}:{RWS+3}], s97 offen
        s_mov_b32 s71, 0
        s_nop 1""")
def bar(vmtags=(), lg0=True):
    def f(e):
        tick_pre(e)
        e.need(vmtags=vmtags, lg0=lg0); e("s_barrier")
        tick_post(e)
    return f

def p1_pre(e):
    e(f"""
    s_mul_i32 s{sST}, s{sH}, {HS}
    s_lshl_b32 s{sT+2}, s{sIDX}, 16
    s_add_u32 s{sST}, s{sST}, s{sT+2}
    s_and_b32 s{sT+2}, s{sW}, 1
    s_lshl_b32 s{sT+2}, s{sT+2}, 15
    s_add_u32 s{sST}, s{sST}, s{sT+2}
    s_cmp_ge_u32 s{sW}, 2
    s_cselect_b32 s{sT+2}, {VF-KF}, 0
    s_add_u32 s{sST}, s{sST}, s{sT+2}
    s_add_u32 s{sST}, s{sST}, {KF}
    s_lshl_b32 s{sT+2}, s{sW}, 12
    v_add_u32 v{vXR}, s{sT+2}, v{vL16}
    """)
    e(f"""
    s_and_b32 s{sT+2}, s{sW}, 1
    s_lshl_b32 s{sT+3}, s{sT+2}, 7
    v_xor_b32 v94, s{sT+3}, v{vWD}
    s_lshl_b32 s{sT+3}, s{sW}, 16
    s_lshl_b32 s{sT+4}, s{sH}, 8
    s_add_u32 s{sT+3}, s{sT+3}, s{sT+4}
    v_add_u32 v{vWQD}, s{sT+3}, v94
    v_add_u32 v{vWQD+1}, 31744, v{vWQD}
    """)
    e(f"""
    v_and_b32 v94, 1, v39
    v_lshlrev_b32 v94, 1, v94
    s_lshl_b32 s{sT+3}, s{sT+2}, 2
    v_or_b32 v94, s{sT+3}, v94
    v_xor_b32 v94, v94, v38
    v_lshlrev_b32 v94, 4, v94
    v_mul_u32_u24 v95, 3456, v37
    v_add_u32 v94, v94, v95
    s_mul_i32 s{sT+3}, s{sW}, {8*3456}
    s_lshl_b32 s{sT+4}, s{sU}, 7
    s_add_u32 s{sT+3}, s{sT+3}, s{sT+4}
    v_add_u32 v{vW1D}, s{sT+3}, v94
    """)
    for x in qh_setup(e): e(x)
    warm(e, "a")
    e.need(vmtags=("c0", "w0"), lg0=True)
    e("s_barrier")
    for j in range(8): e(p1_cread(0, j))
    for n in range(2):
        for x in p1_wread(n): e(x)

def hacc(ft, j): return HACC + (j * 2 + (ft >> 1)) * 8 + (ft & 1) * 4
def qacc(i, j): return QACC + (j * 4 + (i >> 1)) * 8 + (i & 1) * 4
def bias_init():
    L = []
    for ft in range(4):
        d = hacc(ft, 3)
        for k in range(2):
            L += [f"v_lshlrev_b32 v{d+2*k}, 16, v{114+2*ft+k}", f"v_and_b32 v{d+2*k+1}, 0xffff0000, v{114+2*ft+k}",
                  f"v_mul_f32 v{d+2*k}, {f32(CS)}, v{d+2*k}", f"v_mul_f32 v{d+2*k+1}, {f32(CS)}, v{d+2*k+1}"]
    return L

def p1_cread(sidx, j):
    b = vCB[sidx & 1] + 4 * j
    sl = CSLOT[sidx >> 1]
    return f"ds_read_b128 v[{b}:{b+3}], v{(vCR2 if sl > 65535 else vCR) + (sidx & 1)} offset:{(sl & 65535) + j * 2048}"
def p1_wread(n):
    sidx, i = divmod(n, 8); r = vWWIN + 4 * (n & 3); o = p1_wslot(sidx)
    return [f"ds_read_b64_tr_b16 v[{r}:{r+1}], v{vWR+i} offset:{o}", f"ds_read_b64_tr_b16 v[{r+2}:{r+3}], v{vWR+i} offset:{o+1024}"]

W0 = OPT.get("w0", 1) and not OPT.get("ticks")
sTAGW = 71 if W0 else sTAG
def async_check(lab, reg, reload, tag=None):
    def f(e):
        e.need(f"v{reg}")
        e(f"v_cmp_ne_u32 vcc, s{tag or sTAG}, v{reg}\ns_cbranch_vccz {lab}_ok")
        sv, sl = list(e.vm), list(e.lg)
        def poll(e):
            e(reload); e("s_waitcnt vmcnt(0)"); e(f"v_cmp_ne_u32 vcc, s{tag or sTAG}, v{reg}")
        spin(e, lab, poll, None)
        e.vm, e.lg = sv, sl
    return f
def flag_store(sreg): return f"buffer_store_dword v{vTAG}, v{vSC}, s[{RWS}:{RWS+3}], s{sreg} offen sc1"

PARK = {0: 20, 1: 28, 2: 16, 3: 24}
def park_units():
    L = []
    for n in (2, 3, 0, 1):
        for k in range(4):
            tr = vTR + 2 * (k & 1); src = 8 * n + 2 * k
            L += [f"v_accvgpr_read_b32 v{tr}, a{src}", f"v_accvgpr_read_b32 v{tr+1}, a{src+1}", f"v_cvt_pk_bf16_f32 v{vPK+k}, v{tr}, v{tr+1}"]
        L += [f"v_accvgpr_write_b32 a{PARK[n]+k}, v{vPK+k}" for k in range(4)]
    return L
def parked_stores():
    L = []
    for n in range(4):
        L += [f"s_add_u32 s{sT+7}, s{sST}, {n * 8192}", (f"buffer_store_dwordx4 a[{PARK[n]}:{PARK[n]+3}], v{vL16}, s[{RWS}:{RWS+3}], s{sT+7} offen sc1", "kv")]
    return L

def p1_main(e, T, bg):
    fills = [[[] for _ in range(64)] for _ in range(16)]
    LNE = OPT.get("lne", 6)
    def pos(ep):
        p = [(ep - 1, g) for g in (50, 54, 58, 62)] + [(ep, g) for g in (range(2, 47, OPT.get("sp0", 2)) if ep == 0 else range(2, 47, 3 if ep < 7 else 4) if ep < 15 else range(2, 30, 3))]
        return [x for x in p if 0 <= x[0] < 16]
    for ep in range(0, 16):
        L = []
        cj = ({0: 2, 1: 3, 3: 4, 7: 5, 9: 6, 11: 7} if OPT.get("cs", 0) == 0 else {1: 2, 2: 3, 4: 4, 7: 5, 9: 6, 11: 7} if OPT["cs"] == 1 else {0: 2, 2: 3, 4: 4, 7: 5, 9: 6, 11: 7}).get(ep)
        Lc = [(p1_cdma(cj, q), f"c{cj}") for q in range(8)] if cj else []
        Lw = [(p1_wdma(ep + 3, u), f"w{ep+3}") for u in range(4)] if ep + 3 < 16 else []
        L += Lw + Lc if ep < 5 else Lc + Lw
        if ep == 0 and not OPT.get("notouch1"):
            L += [(([], f"buffer_load_dword v146, v141, s[{R1}:{R1+3}], s91 offen offset:512"), "tc")]
        if ep == OPT.get("xe", 0):
            L += [(([], f"buffer_load_dwordx2 v[{40+2*k}:{41+2*k}], v36, s[{R0}:{R0+3}], s89 offen offset:{256*k}{NT('xnt')}"), "x") for k in range(5)]
        if ep == OPT.get("be", 2):
            L += [(([], f"buffer_load_dwordx2 v[{114+2*ft}:{115+2*ft}], v151, s[{R3}:{R3+3}], s90 offen offset:{32*ft}{NT('xnt')}"), "b1") for ft in range(4)]
        if OPT.get("tsp") and OPT.get("te", 2) <= ep < OPT.get("te", 2) + 5 * OPT["tsp"] and (ep - OPT.get("te", 2)) % OPT["tsp"] == 0:
            su = [grp([f"s_mov_b32 s{R3}, s{pW1}", f"s_and_b32 s{R3+1}, s{pW1+1}, 0xffff", f"s_mov_b32 s{R3+2}, {640*3456}", f"s_mov_b32 s{R3+3}, 0x20000"])] if ep == OPT.get("te", 2) else [f"s_add_u32 s94, s94, {4*3456}"]
            L += [(([] if ep == OPT.get("te", 2) else [f"s_add_u32 s93, s93, {4*8192}"], f"buffer_load_dword v149, v140, s[84:87], s93 offen"), "tc"),
                  ((su, f"buffer_load_dword v150, v145, s[{R3}:{R3+3}], s94 offen"), "tc")]
        if ep == OPT.get("ce", 99):
            code_touch.n += 1
            ct = code_touch("L_qhH", "L_code_end", 7, 154, "v155")
            L += [(([grp_all(ct[:-1])], ct[-1]), "tc")]
        if ep == OPT.get("te", 2) and not OPT.get("tsp"):
            L += [(([], f"buffer_load_dword v149, v140, s[84:87], s93 offen{NT('tnt')}"), "tc"),
                  (([grp([f"s_mov_b32 s84, s{pW1}", f"s_and_b32 s85, s{pW1+1}, 0xffff", f"s_mov_b32 s86, {640*3456}", "s_mov_b32 s87, 0x20000"])], f"buffer_load_dword v150, v145, s[84:87], s94 offen{NT('tnt')}"), "tc")]
        if ep == LNE: L += [(([], f"buffer_store_dwordx4 v[{128+4*k}:{131+4*k}], v126, s[{RWS}:{RWS+3}], s{sXS+k} offen sc1"), "xs") for k in range(3)]
        if ep == LNE + 2: L += [(([], flag_store(sQ + 2)), "fl")]
        if ep == 11: L += [(([grp([f"s_mov_b32 s{sT+5}, {WS_END}", f"s_cmp_eq_u32 s{sW}, 0", f"s_cselect_b32 s{sT+5}, {FXS}, s{sT+5}"]) if W0 else f"s_mov_b32 s{sT+5}, {FXS}"], f"buffer_load_dword v122, v127, s[{RWS}:{RWS+3}], s{sT+5} offen sc1"), "pa")]
        if ep == 13: L += [(d, "q0") for d in qh_dmas(0, True)]
        if ep == 14: L += [(d, "q1") for d in qh_dmas(1, True)]
        if ep == 15: L += [(d, "q2") for d in qh_dmas(2, True)] + [(d, "q3") for d in qh_dmas(3, True)]
        P = pos(ep); assert len(L) <= len(P)
        for (d, tag), (ks, g) in zip(L, P): put_dma(fills[ks], g, d, tag)
    for sidx in range(16):
        f = fills[sidx]
        for i in range(8):
            n = 8 * sidx + i + 2
            if n < 128:
                a, b = p1_wread(n); f[8 * i].append(a); f[8 * i + 1].append(b)
        if sidx < 15:
            for j in range(8): f[3 + 4 * j].append(p1_cread(sidx + 1, j))
            tags = [f"w{sidx+1}", f"c{(sidx+2)>>1}"]
            if sidx == LNE + 1: tags.append("xs")
            if sidx == 12:
                f[47].append(async_check(f"L_sa{T}", 122, f"buffer_load_dword v122, v127, s[{RWS}:{RWS+3}], s{sT+5} offen sc1", sTAGW))
            f[47].append(bar(tags))
        else:
            f[47].append(bar(["q0", "q1"]))
            for j in range(4): f[49 + 2 * j].append(qh_xread(0, j))
            for n in range(3):
                a, b = qh_wread(0, n, n); f[56 + 2 * n].append(a); f[57 + 2 * n].append(b)
    for k, x in enumerate(bias_init()): fills[8 + (k >> 4)][32 + (k & 15) + ((k & 15) == 15)].append(x)
    lb = Bg(); lb.push(ln_ops())
    LNK = OPT.get("lnk", 4)
    for ks in range(LNE - LNK, LNE): lb.place(fills[ks], 0, 64 if ks < LNE - 1 else 20, maxv=1 if LNK >= 4 else 2)
    assert not lb.q and LNE >= 6, len(lb.q)
    for k in range(5): fills[LNE - 1][22 + 4 * k].append(f"ds_write_b64 v76, v[{40+2*k}:{41+2*k}] offset:{k*2304}")
    for k in range(3): fills[LNE - 1][51 + 4 * k].append(f"ds_read_b128 v[{128+4*k}:{131+4*k}], v77 offset:{4608*k}")
    qs = [f"s_mov_b32 s{R0}, s{pWQ}", f"s_and_b32 s{R0+1}, s{pWQ+1}, 0xffff", f"s_mov_b32 s{R0+2}, {640*8192}", f"s_mov_b32 s{R0+3}, 0x20000",
          f"s_sub_u32 s{R1}, s{pW1}, 2048", f"s_subb_u32 s{R1+1}, s{pW1+1}, 0", f"s_and_b32 s{R1+1}, s{R1+1}, 0xffff",
          f"s_cmp_lt_u32 s{sU}, 27", f"s_cselect_b32 s{R1+2}, {640*3456 + 2048}, 0", f"s_mov_b32 s{R1+3}, 0x20000",
          f"s_lshl_b32 s{sM0a}, s{sW}, 12", f"s_mul_i32 s{sM0b}, s{sW}, 3072", f"s_add_u32 s{sM0b}, s{sM0b}, {96*1024}"]
    fills[12][4].append(grp(qs[:4])); fills[12][10].append(grp(qs[4:10])); fills[12][14].append(grp(qs[10:]))
    if OPT.get("contig"):
        U = p1_units()
        bg.push(U[0] + U[1]); bg.place(fills[15], 24, 46, maxv=2); assert not bg.q
        bg.push(U[2] + U[3]); bg.place(fills[15], 48, 64, maxv=2)
        bg.push([x for u in U[4:] for x in u])
    elif T == "K" or OPT.get("norole"):
        bg.push([x for u in p1_units() for x in u])
        bg.place(fills[15], 24, 46, maxv=2); bg.place(fills[15], 48, 64, maxv=2)
    else:
        bg.push(park_units())
        bg.place(fills[15], 19, 46, maxv=2); bg.place(fills[15], 48, 55, maxv=2)
        assert not bg.q
        bg.push(parked_stores() + [x for u in p1_units()[4:] for x in u])
    mfs = []
    for sidx in range(16):
        mf = []
        for i in range(8):
            for j in range(8):
                d = p1_acc(T, i, j); w = vWWIN + 4 * ((8 * sidx + i) & 3); c = vCB[sidx & 1] + 4 * j
                A, B = (w, c) if T == "K" else (c, w)
                mf.append(f"{MF} a[{d}:{d+3}], v[{A}:{A+3}], v[{B}:{B+3}], " + ("0" if sidx == 0 else f"a[{d}:{d+3}]"))
        mfs.append(mf)
    for sidx in range(16):
        run_gaps(e, mfs[sidx], fills[sidx], mfs[sidx + 1][0] if sidx < 15 else None)

vKVD = vXR
sKo, sVo, sMK, sMV = 76, 77, 78, 79
def kv_dma(kind, static_pair=None):
    so, mb, rs = (sKo, sMK, R2) if kind == "K" else (sVo, sMV, R3)
    L = []
    for k in range(4):
        su = []
        if k == 0:
            su = [f"s_add_u32 m0, s{sT+3}, s{mb}", f"s_and_b32 s{sT+3}, s{so}, 0xc000"]
        L.append((su, f"buffer_load_dwordx4 v{vKVD}, s[{rs}:{rs+3}], s{so} offen offset:{k*1024} {OPT.get('kvld', '')} lds".replace("  ", " ")))
    return L, f"s_add_u32 s{so}, s{so}, 16384"

def qh_main(e, T, hasH, bg):
    NI = 12 if hasH else 8; NG = 4 * NI; LA = 3
    NA = OPT.get("na", 7); BKV = OPT.get("bkv", 16); RATE = OPT.get("rate", 2) if hasH else 2
    fills = [[[] for _ in range(NG)] for _ in range(20)]
    bp = NG - 4 * LA - 1
    st = 3 if hasH else 2
    def pos(ep):
        p = [(ep - 1, g) for g in range(bp + 2, NG, st)] + [(ep, g) for g in range(5 if ep == 0 else 2, bp, st)]
        return [x for x in p if 0 <= x[0] < 20]
    pend = []; lastdma = None
    for ep in range(0, 16):
        if OPT.get("norole"):
            a = qh_dmas(ep + 4, hasH)
            pend += [(d, f"q{ep+4}x") for d in a[:4]] + [(d, f"q{ep+4}") for d in a[4:]]
        elif (ep < NA) == (T == "V"):
            a, b = qh_dmas(ep + 4, hasH), qh_dmas(ep + 4, hasH, 1 if T == "K" else -1)
            pend += [(d, f"q{ep+4}x") for d in a[:4] + b[:4]] + [(d, f"q{ep+4}") for d in a[4:] + b[4:]]
        for ks, g in pos(ep):
            if pend:
                d, tag = pend.pop(0); put_dma(fills[ks], g, d, tag); lastdma = (ks, g)
    assert not pend
    for sidx in range(20):
        f = fills[sidx]
        for i in range(NI):
            s2, i2 = divmod(NI * sidx + i + LA, NI)
            if s2 < 20:
                a, b = qh_wread(s2, i2, NI * sidx + i + LA); f[4 * i].append(a); f[4 * i + 1].append(b)
        if sidx < 19:
            for j in range(4): f[3 + 4 * j].append(qh_xread(sidx + 1, j))
            tags = [f"q{sidx+1}", f"q{sidx+2}x"]
            if sidx + 2 <= 3: tags.append(f"q{sidx+2}")
            if sidx == BKV: tags.append("kv")
            f[bp].append(bar(tags))
    fills[BKV][bp + 2].append((flag_store(sQ), "fl"))
    qs = [f"s_mul_i32 s{sT+4}, s{sH}, {HS}", f"s_add_u32 s{sT+5}, s{sT+4}, {KF}", f"s_add_u32 s{R2}, s{pWS}, s{sT+5}", f"s_addc_u32 s{R2+1}, s{pWS+1}, 0",
          f"s_and_b32 s{R2+1}, s{R2+1}, 0xffff", f"s_sub_u32 s{R2+2}, 16, s{sIDX}", f"s_lshl_b32 s{R2+2}, s{R2+2}, 15", f"s_mov_b32 s{R2+3}, 0x20000",
          f"s_add_u32 s{sT+5}, s{sT+4}, {VF}", f"s_add_u32 s{R3}, s{pWS}, s{sT+5}", f"s_addc_u32 s{R3+1}, s{pWS+1}, 0",
          f"s_and_b32 s{R3+1}, s{R3+1}, 0xffff", f"s_mov_b32 s{R3+2}, s{R2+2}", f"s_mov_b32 s{R3+3}, 0x20000",
          f"s_mov_b32 s{sKo}, 0", f"s_mov_b32 s{sVo}, 0", f"s_lshl_b32 s{sMK}, s{sW}, 12", f"s_add_u32 s{sMV}, s{sMK}, 0x10000",
          f"s_mul_i32 s{sPK}, s{sH}, {8*FS}", f"s_add_u32 s{sPK}, s{sPK}, {FKV}"]
    fills[18][6].append(grp(qs[:8])); fills[18][10].append(grp(qs[8:14])); fills[18][14].append(grp(qs[14:]))
    fills[19][2].append(f"v_lshlrev_b32 v{vTR}, 3, v{vL16}"); fills[19][6].append(f"v_and_b32 v{vTR}, {7*FS}, v{vTR}")
    hs = [f"s_mul_i32 s{sHA}, s{sIDX}, {54*8192}", f"s_lshl_b32 s{sT+5}, s{sU}, 14", f"s_add_u32 s{sT+5}, s{sT+5}, {HF}", f"s_lshl_b32 s{sT+4}, s{sW}, 10",
          f"s_add_u32 s{sT+5}, s{sT+5}, s{sT+4}", f"s_add_u32 s{sHA}, s{sHA}, s{sT+5}", f"s_sub_u32 s{sHB}, 15, s{sIDX}", f"s_mul_i32 s{sHB}, s{sHB}, {54*8192}",
          f"s_add_u32 s{sHB}, s{sHB}, s{sT+5}"] if hasH else [f"s_mov_b32 s{sHA}, {WS_END}", f"s_mov_b32 s{sHB}, {WS_END}"]
    fills[19][10].append(grp(hs))
    if OPT.get("cpf2") and hasH:
        code_touch.n += 1
        for k, x in enumerate(code_touch("L_attn", "L_p5", 3, vPK, f"v{vPK+1}")): fills[17][2 + 2 * k].append(x)
    if T == "K" or OPT.get("norole"): k0, g0 = 0, 0
    else: k0, g0 = lastdma[0], lastdma[1] + 1
    for sidx in range(k0, BKV):
        bg.place(fills[sidx], g0 if sidx == k0 else 0, NG, maxv=RATE, step=OPT.get("bstep", 1) if hasH else 1)
    assert not bg.q, len(bg.q)
    mfs = []
    for sidx in range(20):
        mf = []
        for i in range(NI):
            w = ((NI * sidx + i) & 3) * 4
            for j in range(4):
                d = qacc(i, j) if i < 8 else hacc(i - 8, j)
                x = XNB[sidx & 1] + 4 * j
                if sidx: c = f"v[{d}:{d+3}]"
                elif i < 8: c = "0"
                else: c = v(hacc(i - 8, 3), 4)
                mf.append(f"{MF} v[{d}:{d+3}], a[{w}:{w+3}], v[{x}:{x+3}], {c}")
        mfs.append(mf)
    for sidx in range(20):
        run_gaps(e, mfs[sidx], fills[sidx], mfs[sidx + 1][0] if sidx < 19 else None)
    e.vm = []
sPK = 83; sHA, sHB = 74, 75
PKL = f"buffer_load_dword v{vTR+1}, v{vTR}, s[{RWS}:{RWS+3}], s{sPK} offen sc1"
def kv_prologue_list():
    L = []
    for kind, tag in (("K", "k0"), ("V", "v0"), ("K", "k1"), ("K", "k2"), ("V", "v1"), ("K", "k3")):
        D, inc = kv_dma(kind)
        for k, (su, d) in enumerate(D):
            L.append((list(reversed(su)), d, tag, [inc] if k == 3 else []))
    return L
def sprinkle(e, ops, dm, every):
    for k, x in enumerate(ops):
        if dm and k % every == 0:
            for y in dm[0][0]: e(y)
        e(x)
        if dm and k % every == 0:
            su, d, tag, post = dm.pop(0); e(d, tag=tag)
            for y in post: e(y)
def flush_dma(e, dm):
    for su, d, tag, post in dm:
        for y in su: e(y)
        if su: e("s_nop 0")
        e(d, tag=tag)
        for y in post: e(y)
    dm.clear()

def check_drain_order(e):
    written = set()
    for i in e.l:
        if i.kind == "dsr": written |= {r for r in i.wr if r[0] == "a"}
        if i.mn == "v_accvgpr_read_b32" and (i.rd & written): raise AssertionError("drain order " + i.t)
        if i.mn == "v_accvgpr_write_b32": written |= i.wr

def q_pack(e):
    for n in range(16):
        for k in range(4):
            e(f"v_cvt_pk_bf16_f32 v{QACC + 4*n + k}, v{QACC + 8*n + 2*k}, v{QACC + 8*n + 2*k + 1}")

HPK = 192
def gelu(e, lab):
    a = -2.0 * math.sqrt(2.0 / math.pi) * math.log2(math.e)
    k1 = a / CS; k2 = a * 0.044715 / CS ** 3
    GP = OPT.get("gp", 3); dm = []
    e(f"s_mov_b32 s84, {f32(k2)}\ns_mov_b32 s85, {f32(k2)}\ns_mov_b32 s86, {f32(CS)}\ns_mov_b32 s87, {f32(CS)}")
    e(f"v_mov_b32 v160, {f32(k1)}\nv_mov_b32 v161, {f32(k1)}\nv_mov_b32 v162, {f32(CS)}\nv_mov_b32 v163, {f32(CS)}")
    for n in range(8):
        if n == max(0, GP - 2): e(PKL)
        if n == GP: async_check(lab, vTR + 1, PKL)(e); dm = kv_prologue_list()
        b = HACC + 8 * n; t = 164 + 8 * (n & 1); L = []
        L += [f"v_pk_mul_f32 v[{t+2*k}:{t+2*k+1}], v[{b+2*k}:{b+2*k+1}], v[{b+2*k}:{b+2*k+1}]" for k in range(4)]
        L += [f"v_pk_fma_f32 v[{t+2*k}:{t+2*k+1}], v[{t+2*k}:{t+2*k+1}], s[84:85], v[160:161]" for k in range(4)]
        L += [f"v_pk_mul_f32 v[{t+2*k}:{t+2*k+1}], v[{t+2*k}:{t+2*k+1}], v[{b+2*k}:{b+2*k+1}]" for k in range(4)]
        L += [f"v_exp_f32 v{t+k}, v{t+k}" for k in range(8)]
        L += [f"v_pk_fma_f32 v[{t+2*k}:{t+2*k+1}], v[{t+2*k}:{t+2*k+1}], s[86:87], v[162:163]" for k in range(4)]
        L += [f"v_rcp_f32 v{t+k}, v{t+k}" for k in range(8)]
        L += [f"v_pk_mul_f32 v[{t+2*k}:{t+2*k+1}], v[{t+2*k}:{t+2*k+1}], v[{b+2*k}:{b+2*k+1}]" for k in range(4)]
        L += [f"v_cvt_pk_bf16_f32 v{t+k}, v{t+2*k}, v{t+2*k+1}" for k in range(4)]
        L += [f"v_accvgpr_write_b32 a{HPK+4*n+k}, v{t+k}" for k in range(4)]
        sprinkle(e, L, dm, 11)
    return dm
def h_store(n):
    j, up = n >> 1, n & 1
    return ([f"s_add_u32 s{sT+7}, s{sHA + (j >> 1)}, {(j & 1) * 4096 + up * 8192}"],
            f"buffer_store_dwordx4 a[{HPK+4*n}:{HPK+4*n+3}], v{vL16}, s[{RWS}:{RWS+3}], s{sT+7} offen sc1")

def Qr(j, t): return 96 + (4 * j + t) * 4
QP = 224
def Sr(b, j, kt=0): return 160 + 32 * b + 8 * j + 4 * kt
def Pr(b, j): return 224 + 16 * b + 4 * j
def NEGM(j): return 32 + 4 * j
TRI = 48
def CT(k, kt): return (64, 52)[k] + 4 * kt
vMWo, vMRo, vMWs, vMRs = 60, 61, 62, 63
TT = 72
def LT(b, j): return 76 + 4 * b + j
def LL(j): return 84 + j
vCHK = 88
def Or(j, dt): return 32 * j + 4 * dt
FK, FV = 128, 160
vKR, vVR = 2, 3
vPN, vQW, vQR, vNW, vNR = 6, 8, 9, 12, 13
sTHR, sCNT, sRET, sCA, sCB, sP8K = 90, 91, 92, 94, 95, 89
BIG = f32(-1e30)
SEL = {k: r for k, r in zip([(m, kt) for m in range(4) for kt in range(2)], (10, 12, 14, 16, 20, 22, 24, 32))}

def attn_setup(e0, dm):
    L = []
    class C:
        def __call__(self, t, tag=None): L.extend(x.strip() for x in t.strip().split("\n") if x.strip())
    _attn_setup(C())
    G = []
    for x in L:
        if G and (x.startswith(("s_addc", "s_subb", "s_cselect")) or G[-1].split("\n")[-1].startswith("s_nop")): G[-1] += "\n" + x
        else: G.append(x)
    sprinkle(e0, G, dm, 8); flush_dma(e0, dm)
def _attn_setup(e):
    e(f"""
    v_lshrrev_b32 v89, 4, v{vL16}
    v_and_b32 v90, 15, v89
    v_lshrrev_b32 v89, 4, v89
    v_lshlrev_b32 v89, 2, v89
    v_sub_u32 v89, v89, v90
    v_mov_b32 v90, {BIG}
    v_mov_b32 v91, 0
    s_mov_b32 s{sTHR}, {f32(2.0**40)}
    v_mov_b32 v{vKR}, v{vL16}
    v_add_u32 v{vVR}, 0x18000, v{vL16}
    s_and_b32 s{sT}, s{sW}, 1
    s_lshl_b32 s{sP8K}, s{sT}, 13
    s_xor_b32 s{sT+1}, s{sW}, 1
    s_lshl_b32 s{sT}, s{sT}, 1
    """)
    for r in range(4):
        e(f"v_cmp_ge_i32 vcc, {-r}, v89\ns_nop 1\nv_cndmask_b32 v{TRI+r}, v90, v91, vcc")
    for (m, kt), r in SEL.items():
        if m < 2: e(f"s_sub_i32 s{sT+2}, s{sW}, {2*m + kt}")
        else: e(f"s_sub_i32 s{sT+2}, s{sW if m == 2 else sT+1}, s{sT}\ns_sub_i32 s{sT+2}, s{sT+2}, {kt}")
        e(f"s_cmp_eq_u32 s{sT+2}, 0\ns_cselect_b32 s{r}, 1.0, 0\ns_cmp_lt_i32 s{sT+2}, 0\ns_cselect_b32 s{r+1}, {BIG}, 0")
    e(f"""
    s_lshl_b32 s{sT+2}, s{sW}, 13
    s_add_u32 s{sT+2}, s{sT+2}, 0x20000
    v_add_u32 v{vQW}, s{sT+2}, v{vL16}
    v_xor_b32 v{vQR}, 0x2000, v{vQW}
    s_lshl_b32 s{sT+2}, s{sW}, 9
    s_add_u32 s{sT+2}, s{sT+2}, {112*1024}
    v_lshrrev_b32 v{vNW}, 1, v{vL16}
    v_add_u32 v{vNW}, s{sT+2}, v{vNW}
    v_xor_b32 v{vNR}, 0x200, v{vNW}
    s_lshr_b32 s{sT+2}, s{sW}, 1
    s_mul_i32 s{sT+2}, s{sT+2}, {92*1024}
    s_add_u32 s{sT+2}, s{sT+2}, {36*1024}
    s_lshl_b32 s{sT+4}, s{sP8K}, 1
    s_add_u32 s{sT+5}, s{sT+2}, s{sT+4}
    v_add_u32 v{vMWo}, s{sT+5}, v{vL16}
    s_xor_b32 s{sT+4}, s{sT+4}, 0x4000
    s_add_u32 s{sT+5}, s{sT+2}, s{sT+4}
    v_add_u32 v{vMRo}, s{sT+5}, v{vL16}
    s_lshl_b32 s{sT+2}, s{sW}, 10
    s_add_u32 s{sT+2}, s{sT+2}, {68*1024}
    v_add_u32 v{vMWs}, s{sT+2}, v{vL16}
    v_xor_b32 v{vMRs}, 0x400, v{vMWs}
    """)
    srd(e, R0, pWO, 4096 * 1280); srd(e, R1, pW2, 1728 * 1280)
    e(f"""
    s_lshl_b32 s{sT}, s2, 2
    s_add_u32 s{sT}, s{sT}, s{sW}
    v_lshrrev_b32 v5, 4, v{vL16}
    s_mul_i32 s{sT+1}, s{sT}, 40
    v_min_u32 v4, 39, v5
    v_add_u32 v4, s{sT+1}, v4
    v_lshlrev_b32 v4, 7, v4
    s_mul_i32 s{sT+1}, s{sT}, 17
    v_min_u32 v5, 16, v5
    v_add_u32 v5, s{sT+1}, v5
    v_lshlrev_b32 v5, 7, v5
    """)
    e(f"""
    s_lshl_b32 s{sT}, s{sH}, 15
    s_lshl_b32 s{sT+1}, s{sW}, 10
    s_add_u32 s{sT}, s{sT}, s{sT+1}
    s_add_u32 s{sT}, s{sT}, {CF}
    s_lshl_b32 s{sCA}, s{sIDX}, 20
    s_add_u32 s{sCA}, s{sCA}, s{sT}
    s_sub_u32 s{sCB}, 15, s{sIDX}
    s_lshl_b32 s{sCB}, s{sCB}, 20
    s_add_u32 s{sCB}, s{sCB}, s{sT}
    """)

def fread(base, areg, off, f): return f"ds_read_b128 a[{base+4*f}:{base+4*f+3}], v{areg} offset:{off + f * 1024}"
def kfread(off, r): return f"ds_read_b128 a[{FK+4*r}:{FK+4*r+3}], v{vKR} offset:{off + (2 * (r & 3) + (r >> 2)) * 1024}"
def kread(n, f): return kfread((n & 3) * 8192, f)

def xreduce(e, op, regs, tmps):
    for sw in ("v_permlane16_swap_b32", "v_permlane32_swap_b32"):
        for r, t in zip(regs, tmps): e(f"v_mov_b32 v{t}, v{r}")
        e("s_nop 1")
        for r, t in zip(regs, tmps): e(f"{sw} v{r}, v{t}")
        e("s_nop 0")
        for r, t in zip(regs, tmps): e(f"{op} v{r}, v{r}, v{t}")

def max8(e, d, sreg):
    e(f"v_max3_f32 v{d}, v{sreg}, v{sreg+1}, v{sreg+2}\nv_max3_f32 v{d}, v{d}, v{sreg+3}, v{sreg+4}\nv_max3_f32 v{d}, v{d}, v{sreg+5}, v{sreg+6}\nv_max_f32 v{d}, v{d}, v{sreg+7}")

def sm_ops(b, J):
    L = []; k = 0
    for j in J:
        for x in range(8):
            t = TT + (k & 3); tp = TT + ((k - 1) & 3)
            fol = []
            if x == 1: fol.append(f"v_add_f32 v{LT(b, j)}, v{tp}, v{t}")
            elif x > 1: fol.append(f"v_add_f32 v{LT(b, j)}, v{LT(b, j)}, v{t}")
            if x & 1: fol.append(f"v_cvt_pk_bf16_f32 v{Pr(b, j) + (x >> 1)}, v{tp}, v{t}")
            L.append((f"v_exp_f32 v{t}, v{Sr(b, j) + x}", fol)); k += 1
    return L

FBS = {}
STUBS = []
class Blk:
    def __init__(self, name, prev, cur): self.name, self.prev, self.cur, self.first = name, prev, cur, prev is None
    def act(self, n):
        if n < 0: return {None: [], "F": [3, 2, 1, 0], "D": [3, 2, 1], "Y": [3, 2, 1, 0]}[self.prev]
        if self.cur == "D" and n in (2, 3): return [3, 2, 1]
        if self.cur == "E": return ([3, 2, 1, 0], [3, 1], [], [], [])[n]
        return [3, 2, 1, 0]
    def y(self, n): return self.prev == "Y" if n < 0 else (self.cur in "YE" or (n == 4 and self.cur == "D"))
    def masked(self, n):
        if self.cur == "D": return {0 if n < 2 else 1: n & 1}
        if self.cur == "E" and n < 2: return {2 + n: 2, n: 3}
        return {}

def attn_block(e, bk):
    nm = bk.name; E_ = bk.cur == "E"; sw = bk.prev == "D"
    canon = [(regs_of(f"a[{FK+4*f}:{FK+4*f+3}]"), None) for f in range(8)]
    e.lg = list(canon) if bk.first else canon[4:]
    nb = [0, 0]
    if sw:
        for j in range(2):
            for r in range(4): e(f"v_mov_b32 v{NEGM(j)+r}, v{vPN+j}")
    for lp in range(4):
        nq, ns, nv = lp, lp - 1, lp - 2
        JQ, JS, JV = bk.act(nq), bk.act(ns), bk.act(nv); JN = JQ
        bq, bs, bv = nq & 1, ns & 1, nv & 1
        pre = []
        msk = bk.masked(nq); first_qk = bk.first and lp == 0
        cti = {}
        for k, (j, m) in enumerate(msk.items()):
            cti[j] = k
            for kt in range(2):
                c = CT(k, kt); sel = SEL[(m, kt)]
                pre.append(f"v_mov_b32 v{c+3}, s{sel+1}" if first_qk else f"v_add_f32 v{c+3}, s{sel+1}, v{NEGM(j)}")
                pre += [f"v_fma_f32 v{c+r}, v{TRI+r}, s{sel}, v{c+3}" for r in range(4)]
        FVc = FK if (E_ and lp == 2) else FV
        mf = []; kstart = []; vstart = []
        kstart = [len(JQ) * f for f in range(8)] if JQ else []
        for kt in range(2):
            if OPT.get("nochain"): order = [(j, t, t) for t in range(4) for j in JQ]
            else: order = [(j, (3 - z if k & 1 else z), z) for k, j in enumerate(JQ) for z in range(4)]
            for j, t, z in order:
                d = Sr(bq, j, kt); f = 4 * kt + t
                c = v(d, 4) if z else v(CT(cti[j], kt), 4) if j in msk else "0" if first_qk else v(NEGM(j), 4)
                q = ac(QP + 16 * j + 4 * t, 4) if (j < 2 and bk.y(nq)) else v(Qr(j, t), 4)
                mf.append(f"{MF} v[{d}:{d+3}], a[{FK+4*f}:{FK+4*f+3}], {q}, {c}")
        fresh = lambda j: nv == 0 and (bk.first or (sw and j < 2))
        for f in range(8 if JV else 0):
            vstart.append(len(mf))
            for j in JV:
                o = Or(j, f)
                mf.append(f"{MF} a[{o}:{o+3}], a[{FVc+4*f}:{FVc+4*f+3}], v[{Pr(bv, j)}:{Pr(bv, j)+3}], " + ("0" if fresh(j) else ac(o, 4)))
        NG = len(mf)
        fill = [[] for _ in range(NG)]
        voff = lambda n: (n & 1) * 16384 if bk.y(n) else (n & 3) * 8192
        vtog = [f"v_xor_b32 v{vVR}, 0x8000, v{vVR}"] + ([f"v_add_u32 v{vVR}, s{sP8K}, v{vVR}"] if sw and lp == 1 else [])
        if JV and JQ:
            for f in range(8): fill[kstart[f] + 1].append(fread(FV, vVR, voff(nv), f))
        if E_ and lp == 1:
            for x in vtog: fill[vstart[0]].append(x)
            for f in range(8): fill[vstart[f] + 1].append(fread(FK, vVR, 0, f))
        elif E_ and lp == 2:
            for f in range(8): fill[vstart[f] + 1].append(fread(FV, vVR, 16384, f))
        elif lp == 1 or (lp == 3 and bk.cur == "Y"):
            for k, x in enumerate(vtog): fill[(vstart[1] + 1 + 8 * k) if JV else 1].append(x)
        needK = not E_ or lp == 0; late_k = []
        if needK:
            nk = lp + 1
            if lp == 3 or (lp == 1 and bk.cur == "Y"):
                fill[OPT.get("kx", 5)].append(f"v_xor_b32 v{vKR}, 0x8000, v{vKR}")
                if bk.cur == "D": fill[13].append(f"v_add_u32 v{vKR}, s{sP8K}, v{vKR}")
            koff = (nk & 1) * 16384 if bk.y(nk) else (nk & 3) * 8192
            for f in range(8):
                if JV: fill[vstart[f] + 1].append(kfread(koff, f))
                elif f < 4: fill[kstart[4] + 2 * f + 1].append(kfread(koff, f))
                else: late_k.append(kfread(koff, f))
        def needf(base, f0):
            def g(e): e.need(f"a[{base+4*f0}:{base+4*f0+15}]")
            return g
        if JQ and JV:
            fill[kstart[4] - 2].append(needf(FK, 4)); fill[vstart[0] - 2].append(needf(FV, 0))
        if JV:
            fill[vstart[4] - 2].append(needf(FVc, 4))
            if needK or (E_ and lp == 1): fill[NG - 2].append(needf(FK, 0))
            if E_ and lp == 2: fill[NG - 2].append(needf(FV, 0))
        grp_k = (bk.cur == "Y") or (not E_ and lp & 1 == 0 and not first_qk)
        grp_v = (nm == "YD" and lp == 0) or (bk.cur == "Y" and not (sw and lp == 0)) or (bk.cur in "FD" and lp & 1)
        vlast = None; gbar = vstart[0] if JV else -1
        for kind, on in (("K", grp_k), ("V", grp_v)):
            if not on: continue
            L, inc = kv_dma(kind)
            g0, span = (0, 8 * len(JQ)) if kind == "K" else ((vstart[0], 8 * len(JV)) if JV else (0, NG))
            st = span // 4
            dp = OPT.get("dpos", 1) if st >= 8 else 1
            if OPT.get("spread") and g0 + dp >= 5:
                fill[g0 + dp - 5 if g0 + dp - 5 != gbar else g0 + dp - 7].append(L[0][0][1]); fill[g0 + dp - 3 if g0 + dp - 3 != gbar else g0 + dp - 1].append(L[0][0][0])
            else:
                for x in reversed(L[0][0]): fill[max(0, g0 - 4)].append(x)
            for k, d in enumerate(L): fill[g0 + dp + st * k].append(d[1])
            gi = g0 + dp + 1 + st * 3
            fill[gi if gi < NG else NG - 1].append(inc if gi < NG else ("BG", inc))
            if kind == "V": vlast = g0 + dp + st * 3
        def ride(L, g0, g1, tag=None):
            st = max(2, (g1 - g0) // len(L))
            for k, x in enumerate(L):
                g = (g0 + st * k) | 1
                while any(_kind(y) in ("vml", "vms") for y in fill[g]): g += 2
                put_dma(fill, g, x, tag)
        cst = lambda a, b: [ctx_store(96, sCA, n) for n in range(a, b)]
        if bk.first and lp >= 2: ride([h_store(n) for n in range(4 * lp - 8, 4 * lp - 4)], 4, NG - 4)
        if nm == "TY" and lp >= 2: ride(cst(2 * lp - 4, 2 * lp - 2), 10, NG)
        if nm == "YD" and lp < 2: ride(cst(4 + 2 * lp, 6 + 2 * lp), 6, NG - 8)
        if nm == "TYD" and lp == 2: ride(cst(0, 4), 20, NG)
        if E_ and lp == 1: fill[3].append(PHL)
        if E_ and lp == 2: ride(p5_dmas(0), 2, 20)
        if first_qk:
            for k in range(8): fill[4 * k + 1].append(f"ds_write_b128 v{vQW}, v[{Qr(2, 0)+4*k}:{Qr(2, 0)+4*k+3}] offset:{k*1024}")
        if bk.first and lp == 1: fill[2].append(f"ds_read_b64 v[{vPN}:{vPN+1}], v{vNR}")
        if bk.first and lp == 2:
            for k in range(8): fill[kstart[k] + 2 + (len(JQ) & 1)].append(fread(QP, vQR, 0, k))
        if E_ and lp == 3:
            for k in range(8): fill[2 * k + 1].append(f"ds_write_b128 v{vMWo}, a[{Or(0, k)}:{Or(0, k)+3}] offset:{k*1024}")
        if nm in ("DF", "TY") and lp == 3: ride([([], flag_store(sQ + 1))], NG - 3, NG)
        if nm in ("DF", "TY") and lp == 0:
            ride([([], f"buffer_load_dword a192, v4, s[{R0}:{R0+3}], 0 offen"), ([], f"buffer_load_dword a193, v5, s[{R1}:{R1+3}], 0 offen")], NG - 9, NG - 1)
        if (lp & 1 or bk.cur in "YE") and not (E_ and lp == 3):
            gb = vstart[0] if JV else -1
            cnt = lambda kinds: sum(1 for g in range(gb) for x in fill[g] if _kind(x) in kinds)
            if E_: n = (8 + nb[0], nb[0], nb[1])[lp] + cnt(("vml", "vms"))
            else: n = 12 + (4 + cnt(("vms",)) if (bk.first and lp == 3) else 0)
            def mkb(n, lp=lp):
                def f(e):
                    lg = list(e.lg)
                    if OPT.get("ticks"): e("s_waitcnt lgkmcnt(0)")
                    z = (bk.first and lp == 1) or (E_ and lp == 2)
                    tick_pre(e); e(f"s_waitcnt vmcnt({n}){' lgkmcnt(0)' if z else ''}\ns_barrier"); tick_post(e)
                    e.lg = [] if z else lg
                return f
            if E_ and lp == 2: fill[gb].insert(0, async_check(f"L_h{nm}", 20, PHL, sTAGW))
            if OPT.get("spread") and gb >= 6 and not E_ and not OPT.get("ticks") and not any(_kind(x) in ("vml", "vms") for g in range(gb - 4, gb) for x in fill[g]):
                fill[gb - 4].append(f"s_waitcnt vmcnt({n})"); fill[gb].insert(0, "s_barrier")
            elif gb >= 0: fill[gb].insert(1 if (E_ and lp == 2) else 0, mkb(n))
            else: pre.insert(0, mkb(n))
        if JS:
            ops = sm_ops(bs, JS)[2:]
            W = NG - 4 if JN else min(NG - 2, 2 * len(ops))
            lastg = 0; tile_done = []
            for k, (ex, fol) in enumerate(ops):
                g = (k * W) // len(ops)
                if W >= 2 * len(ops): g &= ~1
                fill[g].append(ex)
                for x in fol: fill[g + 1].append(x)
                lastg = g + 1
                if (k + 2) % 8 == 7: tile_done.append(lastg)
            lts = [LT(bs, j) for j in JS]
            ck = []
            if len(lts) == 4: fill[tile_done[2] + 2].append(f"v_max3_f32 v{vCHK}, v{lts[0]}, v{lts[1]}, v{lts[2]}"); ck.append(f"v_max_f32 v{vCHK}, v{vCHK}, v{lts[3]}")
            elif len(lts) == 3: ck.append(f"v_max3_f32 v{vCHK}, v{lts[0]}, v{lts[1]}, v{lts[2]}")
            else: ck.append(f"v_max_f32 v{vCHK}, v{lts[0]}, v{lts[1]}")
            ck.append(f"v_cmp_lt_f32 vcc, s{sTHR}, v{vCHK}")
            gck = max(lastg, NG - 3)
            assert gck <= NG - 2
            J3 = [(j, not (sw and lp == 1 and j < 2), not (sw and lp == 0 and j < 2)) for j in JS]
            fb = f"FB{bs}_" + "".join(f"{j}{'' if a else 'n'}{'' if b else 'l'}" for j, a, b in J3)
            FBS[fb] = (bs, J3)
            site = f"L_{nm}_{lp}"
            STUBS.append((site, fb))
            for x in ck: fill[gck].append(x)
            fill[NG - 1].append(grp([f"s_cbranch_vccnz {site}_fb", f"{site}_ret:"]))
        for k, j in enumerate(JV):
            g = OPT.get("l0", 1) if k == 0 else min(NG - 5, 16 * k - 3)
            fill[g].append(f"v_mov_b32 v{LL(j)}, v{LT(bv, j)}" if fresh(j) else f"v_add_f32 v{LL(j)}, v{LL(j)}, v{LT(bv, j)}")
        head = sm_ops(bq, JN)[:2] if JN else []
        if head and not first_qk:
            fill[NG - 4].append(head[0][0]); fill[NG - 2].append(head[1][0])
            for x in head[1][1]: fill[NG - 1].append(x)
        if first_qk: e.need(f"a[{FK}:{FK+15}]")
        for x in pre:
            if callable(x): x(e)
            else: e(x)
        if pre: e("s_nop 1")
        for g in range(NG):
            c = sum(1 for x in fill[g] if _kind(x) in ("vml", "vms"))
            nb[0] += c; nb[1] = 0 if g == vlast else nb[1] + c
        run_gaps(e, mf, fill)
        for x in late_k: e(x)
        if sw and lp == 1: attn_epilogue(e)
        if E_ and lp == 0: p5_setup(e)
        if first_qk:
            e("s_nop 7")
            for j in range(4): max8(e, NEGM(j), Sr(0, j))
            xreduce(e, "v_max_f32", [NEGM(j) for j in range(4)], [NEGM(j) + 1 for j in range(4)])
            for j in range(4):
                e(f"v_sub_f32 v{NEGM(j)}, 0, v{NEGM(j)}")
                for r in range(1, 4): e(f"v_mov_b32 v{NEGM(j)+r}, v{NEGM(j)}")
            e(f"ds_write_b64 v{vNW}, v[{NEGM(2)+3}:{NEGM(2)+4}]".replace(f"v[{NEGM(2)+3}:{NEGM(2)+4}]", "v[10:11]").replace("ds_write", f"v_mov_b32 v10, v{NEGM(2)}\nv_mov_b32 v11, v{NEGM(3)}\nds_write"))
            for j in (3, 2, 1, 0):
                for x in range(8): e(f"v_add_f32 v{Sr(0, j)+x}, v{Sr(0, j)+x}, v{NEGM(j)}")
            e(head[0][0]); e(head[1][0]); e("s_nop 0")
            for x in head[1][1]: e(x)
    if E_: e(f"s_waitcnt vmcnt({4 if nm == 'TYD' else 0})")
    if nm == "TYD":
        for su, x in cst(4, 8): e(su[0]); e(x)
    if not E_:
        assert len(e.lg) <= 4 and [r for r, _ in e.lg] == [r for r, _ in canon][8 - len(e.lg):], (nm, len(e.lg))

def ctx_store(pk, sbase, n):
    return ([f"s_add_u32 s{sT+7}, s{sbase}, {(n >> 2) * 4096 + (n & 3) * 8192}"],
            f"buffer_store_dwordx4 v[{pk+4*n}:{pk+4*n+3}], v{vL16}, s[{RWS}:{RWS+3}], s{sT+7} offen sc1")
def attn_epilogue(e):
    e("s_nop 7")
    xreduce(e, "v_add_f32", [LL(0), LL(1)], [89, 90])
    for j in range(2): e(f"v_rcp_f32 v{LL(j)}, v{LL(j)}")
    for j in range(2):
        e(f"v_mov_b32 v94, v{LL(j)}\nv_mov_b32 v95, v{LL(j)}")
        for k in range(16):
            src = Or(j, 0) + 2 * k; tr = 90 + 2 * (k & 1)
            e(f"v_accvgpr_read_b32 v{tr}, a{src}\nv_accvgpr_read_b32 v{tr+1}, a{src+1}")
            e(f"v_pk_mul_f32 v[{tr}:{tr+1}], v[{tr}:{tr+1}], v[94:95]")
            e(f"v_cvt_pk_bf16_f32 v{96+16*j+k}, v{tr}, v{tr+1}")

def attn_final(e):
    e.lg = [(set(), None)] * 8
    e(f"v_mov_b32 v72, v{LL(0)}\nv_mov_b32 v73, v{LL(1)}\nv_mov_b32 v74, v{NEGM(0)}\nv_mov_b32 v75, v{NEGM(1)}\ns_nop 3")
    e(f"ds_write_b128 v{vMWs}, v[72:75]")
    for k in range(8): e(f"ds_write_b128 v{vMWo}, a[{Or(1, k)}:{Or(1, k)+3}] offset:{8192 + k*1024}")
    e("s_waitcnt lgkmcnt(0)\ns_barrier")
    e(f"ds_read_b128 v[72:75], v{vMRs}")
    for k in range(14): e(f"ds_read_b128 v[{160+4*k}:{163+4*k}], v{vMRo} offset:{k*1024}")
    for su, x in p5_dmas(1):
        for y in reversed(su): e(y)
        if su: e("s_nop 0")
        e(x)
    e.need("v[72:75]")
    for k in range(14, 16): e(f"ds_read_b128 v[{160+4*k}:{163+4*k}], v{vMRo} offset:{k*1024}")
    for j in range(2):
        e(f"v_min_f32 v89, v{74+j}, v{NEGM(2+j)}\nv_sub_f32 v{64+2*j}, v89, v{NEGM(2+j)}\nv_sub_f32 v{68+2*j}, v89, v{74+j}")
    for j in range(2): e(f"v_exp_f32 v{64+2*j}, v{64+2*j}\nv_exp_f32 v{68+2*j}, v{68+2*j}")
    for j in range(2): e(f"v_mul_f32 v{LL(2+j)}, v{LL(2+j)}, v{64+2*j}")
    for j in range(2): e(f"v_fmac_f32 v{LL(2+j)}, v{72+j}, v{68+2*j}")
    xreduce(e, "v_add_f32", [LL(2), LL(3)], [89, 90])
    for j in range(2): e(f"v_rcp_f32 v{LL(2+j)}, v{LL(2+j)}")
    e("s_nop 0")
    for j in range(2):
        for b in (64, 68): e(f"v_mul_f32 v{b+2*j}, v{b+2*j}, v{LL(2+j)}\nv_mov_b32 v{b+2*j+1}, v{b+2*j}")
    for j in range(2):
        for k in range(16):
            src = Or(2 + j, 0) + 2 * k; tr = 90 + 2 * (k & 1); rx = 160 + 32 * j + 2 * k
            e(f"v_accvgpr_read_b32 v{tr}, a{src}\nv_accvgpr_read_b32 v{tr+1}, a{src+1}")
            e(f"v_pk_mul_f32 v[{tr}:{tr+1}], v[{tr}:{tr+1}], v[{64+2*j}:{65+2*j}]")
            e.need(f"v[{rx}:{rx+1}]")
            e(f"v_pk_fma_f32 v[{tr}:{tr+1}], v[{rx}:{rx+1}], v[{68+2*j}:{69+2*j}], v[{tr}:{tr+1}]")
            e(f"v_cvt_pk_bf16_f32 v{128+16*j+k}, v{tr}, v{tr+1}")
            if k & 3 == 3:
                su, x = ctx_store(128, sCB, 4 * j + (k >> 2)); e(su[0]); e(x)
            if j == 1:
                for x in p5_reads(0)[2 * k:2 * k + 2]: e(x)

def fallback(e, name, b, J3):
    e(f"{name}:\ns_nop 15")
    for j, scale, nxt in J3:
        d = 89
        max8(e, d, Sr(b, j))
        xreduce(e, "v_max_f32", [d], [90])
        e(f"v_max_f32 v{d}, 0, v{d}\nv_sub_f32 v90, 0, v{d}\nv_exp_f32 v90, v90")
        for x in range(8): e(f"v_sub_f32 v{Sr(b, j)+x}, v{Sr(b, j)+x}, v{d}")
        if nxt:
            for r in range(4): e(f"v_sub_f32 v{NEGM(j)+r}, v{NEGM(j)+r}, v{d}")
            for x in range(8): e(f"v_sub_f32 v{Sr(b ^ 1, j)+x}, v{Sr(b ^ 1, j)+x}, v{d}")
        if scale:
            e(f"v_mul_f32 v{LL(j)}, v{LL(j)}, v90")
            for x in range(0, 32, 2):
                o = Or(j, 0) + x
                e(f"v_accvgpr_read_b32 v91, a{o}\nv_accvgpr_read_b32 v92, a{o+1}\nv_mul_f32 v91, v91, v90\nv_mul_f32 v92, v92, v90\nv_accvgpr_write_b32 a{o}, v91\nv_accvgpr_write_b32 a{o+1}, v92")
    for ex, fol in sm_ops(b, [j for j, _, _ in J3]):
        e(ex); e("s_nop 0")
        for x in fol: e(x)
    for ex, fol in sm_ops(b ^ 1, [3])[:2]: e(ex)
    e(f"s_nop 1\ns_setpc_b64 s[{sRET}:{sRET+1}]")

def attn_pre(e):
    e.need(vmtags=("k0",), lg0=True)
    e("s_barrier")
    for f in range(8): e(kread(0, f))

def attention(e):
    B = {k: Blk(k, p, c) for k, p, c in (("fFF", None, "F"), ("fDF", None, "D"), ("FF", "F", "F"), ("DF", "F", "D"),
                                          ("TY", "D", "Y"), ("YY", "Y", "Y"), ("YD", "Y", "E"), ("TYD", "D", "E"))}
    segs = {}
    def seg(name):
        n0 = len(e.l); attn_block(e, B[name]); segs[name] = e.l[n0:]
    e(f"s_cmp_eq_u32 s{sIDX}, 0\ns_cbranch_scc1 L_fDF")
    seg("fFF")
    e(f"s_sub_u32 s{sCNT}, s{sIDX}, 1\ns_cmp_eq_u32 s{sCNT}, 0\ns_cbranch_scc1 L_DF\n.p2align 3\nL_FF:")
    seg("FF")
    e(f"s_sub_u32 s{sCNT}, s{sCNT}, 1\ns_cmp_lg_u32 s{sCNT}, 0\ns_cbranch_scc1 L_FF\nL_DF:")
    seg("DF")
    e(f"s_cmp_eq_u32 s{sIDX}, 7\ns_cbranch_scc1 L_TYD\nL_TY:")
    seg("TY")
    stamp(e, 7)
    e(f"s_sub_u32 s{sCNT}, 6, s{sIDX}\ns_cmp_eq_u32 s{sCNT}, 0\ns_cbranch_scc1 L_YD\n.p2align 3\nL_YY:")
    seg("YY")
    e(f"s_sub_u32 s{sCNT}, s{sCNT}, 1\ns_cmp_lg_u32 s{sCNT}, 0\ns_cbranch_scc1 L_YY\nL_YD:")
    seg("YD")
    e("L_fin:")
    def out_of_line():
        e("L_fDF:"); seg("fDF")
        e("s_branch L_TY\nL_TYD:"); seg("TYD")
        e("s_branch L_fin")
        for site, fb in STUBS:
            e(f"{site}_fb:\ns_call_b64 s[{sRET}:{sRET+1}], {fb}\ns_branch {site}_ret")
        for name, (b, J3) in FBS.items():
            n0 = len(e.l); fallback(e, name, b, J3); segs[name] = e.l[n0:]
    return segs, out_of_line

sMT, sNT, sS, sAH, sAC, sWH, sWC, sXO, sFH, sFC = 64, 65, 66, 67, 68, 69, 70, 76, 77, 78
sMA, sMW, sBO, sEXs, sEXl, sFE = 79, 80, 81, 82, 83, 84
SLOT = 36864; SLMAP = (0, 2, 1, 3)
vWD5, vRB, vRE, vRO, vP1, vP2, vL4K, vXO, vBO = 4, 10, 12, 14, 16, 17, 9, 18, 19
vRA = 24; sEX3 = 85
PHL = f"buffer_load_dword v20, v{vP1}, s[{RWS}:{RWS+3}], s{sFH} offen sc1"
def p5_setup(e):
    e(f"""
    s_lshr_b32 s{sMT}, s{sX}, 2
    s_lshl_b32 s{sMT}, s{sMT}, 3
    s_lshr_b32 s{sT}, s2, 3
    s_and_b32 s{sT}, s{sT}, 7
    s_add_u32 s{sMT}, s{sMT}, s{sT}
    s_lshr_b32 s{sNT}, s2, 6
    s_and_b32 s{sS}, s{sX}, 3
    s_sub_u32 s{sT+1}, 15, s{sMT}
    s_min_u32 s{sT}, s{sMT}, s{sT+1}
    s_mul_i32 s{sT}, s{sT}, {32*FS}
    s_add_u32 s{sFH}, s{sT}, {FH}
    s_mul_i32 s{sT+1}, s{sS}, {8*FS}
    s_add_u32 s{sFC}, s{sT}, s{sT+1}
    s_add_u32 s{sFC}, s{sFC}, {FC}
    v_lshlrev_b32 v{vP1}, 3, v{vL16}
    v_and_b32 v{vP2}, {7*FS}, v{vP1}
    v_and_b32 v{vP1}, {31*FS}, v{vP1}
    """)
    if W0: e(f"s_cmp_eq_u32 s{sW}, 0\ns_cselect_b32 s{sFH}, s{sFH}, {WS_END}\ns_cselect_b32 s{sFC}, s{sFC}, {WS_END}")
    e(f"""
    s_mul_i32 s{sT+3}, s{sMT}, {54*8192}
    s_add_u32 s{sT+3}, s{sT+3}, {HF}
    s_lshl_b32 s{sT+4}, s{sMT}, 20
    s_add_u32 s{sT+4}, s{sT+4}, {CF}
    """)
    srd(e, R0, pWS, 54 * 8192, f"s{sT+3}")
    srd(e, R1, pWS, 128 * 8192, f"s{sT+4}")
    srd(e, R2, pW2, 1728 * 1280)
    srd(e, R3, pWO, 4096 * 1280)
    e(f"""
    s_lshl_b32 s{sMA}, s{sW}, 12
    s_mul_i32 s{sAH}, s{sS}, {14*8192}
    s_add_u32 s{sAH}, s{sAH}, s{sMA}
    s_lshl_b32 s{sAC}, s{sS}, 18
    s_add_u32 s{sAC}, s{sAC}, s{sMA}
    s_mul_i32 s{sMW}, s{sW}, 5120
    s_add_u32 s{sMW}, s{sMW}, 16384
    s_mul_i32 s{sT}, s{sW}, {16*1280}
    s_mul_i32 s{sBO}, s{sNT}, 320
    s_add_u32 s{sT}, s{sT}, s{sBO}
    s_mul_i32 s{sWH}, s{sS}, {14*32*1280}
    s_add_u32 s{sWH}, s{sWH}, s{sT}
    s_mul_i32 s{sWC}, s{sS}, {1024*1280}
    s_add_u32 s{sWC}, s{sWC}, s{sT}
    v_lshrrev_b32 v{vXO}, 4, v{vL16}
    """)
    for k in range(5):
        e(f"""
        v_add_u32 v{vRB}, {64*k}, v{vXO}
        v_mul_u32_u24 v{vRB+1}, 3277, v{vRB}
        v_lshrrev_b32 v{vRB+1}, 16, v{vRB+1}
        v_mul_u32_u24 v{vRE}, 20, v{vRB+1}
        v_sub_u32 v{vRB}, v{vRB}, v{vRE}
        v_lshrrev_b32 v{vRE}, 1, v{vRB+1}
        v_and_b32 v{vRE}, 2, v{vRE}
        v_xor_b32 v{vRB}, v{vRB}, v{vRE}
        v_mul_u32_u24 v{vRB+1}, 1280, v{vRB+1}
        v_lshl_add_u32 v{vWD5+k}, v{vRB}, 4, v{vRB+1}
        """)
        if 0 < k < 4: e(f"v_subrev_u32 v{vWD5+k}, {1024*k}, v{vWD5+k}")
    e(f"""
    s_and_b32 s{sT}, s{sW}, 1
    s_lshl_b32 s{sT+1}, s{sT}, 12
    v_add_u32 v{vRB}, s{sT+1}, v{vL16}
    s_lshr_b32 s{sT+1}, s{sW}, 1
    s_mul_i32 s{sT+2}, s{sT+1}, 160
    s_add_u32 s{sBO}, s{sBO}, s{sT+2}
    s_add_u32 s{sT+2}, s{sT+2}, 16384
    v_lshrrev_b32 v{vRE}, 2, v{vXO}
    v_mul_u32_u24 v{vRE}, 320, v{vRE}
    v_and_b32 v{vRO}, 3, v{vXO}
    v_lshl_add_u32 v{vRE}, v{vRO}, 3, v{vRE}
    v_add_u32 v{vRE}, s{sT+2}, v{vRE}
    v_lshlrev_b32 v{vRO+1}, 1, v{vXO}
    v_and_b32 v{vRO+1}, 32, v{vRO+1}
    s_cmp_eq_u32 s{sT+1}, 0
    s_cselect_b32 s{sT+3}, 1, -1
    v_mul_i32_i24 v{vRO+1}, s{sT+3}, v{vRO+1}
    v_sub_u32 v{vRO}, v{vRE}, v{vRO+1}
    v_add_u32 v{vRE}, v{vRE}, v{vRO+1}
    v_add_u32 v{vRE+1}, {2*SLOT}, v{vRE}
    v_add_u32 v{vRO+1}, {2*SLOT}, v{vRO}
    v_add_u32 v{vL4K}, 4096, v{vL16}
    s_lshl_b32 s{sXO}, s{sMT}, 3
    s_lshl_b32 s{sT}, s{sT}, 2
    s_add_u32 s{sXO}, s{sXO}, s{sT}
    s_add_u32 s{sXO}, s{sXO}, s{sS}
    s_mul_i32 s{sXO}, s{sXO}, {16*1280}
    s_add_u32 s{sXO}, s{sXO}, s{sBO}
    v_lshrrev_b32 v{vBO}, 4, v{vXO}
    v_lshlrev_b32 v{vBO}, 3, v{vBO}
    v_and_b32 v{vXO}, 15, v{vXO}
    v_mul_u32_u24 v{vXO}, 1280, v{vXO}
    v_add_u32 v{vXO}, v{vXO}, v{vBO}
    s_lshl_b32 s{sT}, s{sMT}, 2
    s_add_u32 s{sT}, s{sT}, s{sNT}
    s_lshl_b32 s{sFE}, s{sT}, 2
    s_add_u32 s{sFE}, s{sFE}, s{sW}
    s_mul_i32 s{sFE}, s{sFE}, {FS * 4}
    s_add_u32 s{sFE}, s{sFE}, {FEX}
    s_mul_i32 s{sT}, s{sT}, {16*20480}
    s_mul_i32 s{sT+1}, s{sW}, 5120
    s_add_u32 s{sT}, s{sT}, s{sT+1}
    s_add_u32 s{sT}, s{sT}, {EX}
    s_mul_i32 s{sT+1}, s{sS}, 20480
    s_add_u32 s{sEXs}, s{sT}, s{sT+1}
    s_lshl_b32 s{sT+1}, s{sT+1}, 2
    s_add_u32 s{sEXl}, s{sT}, s{sT+1}
    """)
    for r in range(4):
        e(f"s_add_u32 s{sT}, s{sS}, {r + 1}\ns_and_b32 s{sT}, s{sT}, 3\ns_lshl_b32 s{sT+1}, s{sT}, 10\nv_add_u32 v{vRA+r}, s{sT+1}, v{vRB}\nv_add_u32 v{vRA+4+r}, {2*SLOT}, v{vRA+r}")
        if r < 3: e(f"s_mul_i32 s{sT}, s{sT}, {4*20480}\ns_add_u32 s{sEX3+r}, s{sEXs}, s{sT}")

def p5_dmas(d):
    sl = SLMAP[d & 3] * SLOT
    if d < 7: ra, sa, oa, rw, sw, ow = R0, sAH, d * 16384, R2, sWH, d * 64 * 1280
    else: ra, sa, oa, rw, sw, ow = R1, sAC, (d - 7) * 16384, R3, sWC, (d - 7) * 64 * 1280
    W = []
    for k in range(5):
        su = []
        if k == 0: su = [f"s_add_u32 m0, s{sMW}, {sl}", f"s_add_u32 s{sT+1}, s{sw}, {ow}"]
        if k == 4: su = [f"s_add_u32 m0, s{sMW}, {sl + 4096}"]
        W.append((su, f"buffer_load_dwordx4 v{vWD5+k}, s[{rw}:{rw+3}], s{sT+1} offen offset:{(k & 3) * 1024} lds"))
    A = []
    for k in range(4):
        su = [f"s_add_u32 m0, s{sMA}, {sl}", f"s_add_u32 s{sT}, s{sa}, {oa}"] if k == 0 else []
        A.append((su, f"buffer_load_dwordx4 v{vL16}, s[{ra}:{ra+3}], s{sT} offen offset:{k * 1024} lds"))
    return W + A
def p5_buf(m): return (m & 3) * 36
def p5_wreads(m):
    d, ks = m >> 1, m & 1; b = p5_buf(m); hi = SLMAP[d & 3] >> 1; o = (SLMAP[d & 3] & 1) * SLOT
    L = []
    for n in range(5):
        a = (vRO if n & 1 else vRE) + hi; off = o + ks * 32 * 320 + n * 32
        L += [f"ds_read_b64_tr_b16 a[{b+4*n}:{b+4*n+1}], v{a} offset:{off}", f"ds_read_b64_tr_b16 a[{b+4*n+2}:{b+4*n+3}], v{a} offset:{off + 5120}"]
    return L
def p5_aread(m, r):
    d, ks = m >> 1, m & 1; b = p5_buf(m); hi = SLMAP[d & 3] >> 1; o = (SLMAP[d & 3] & 1) * SLOT
    return f"ds_read_b128 a[{b+20+4*r}:{b+23+4*r}], v{vRA+4*hi+r} offset:{o + ks * 8192}"
def p5_reads(d, last=False):
    W = [p5_wreads(2 * d), p5_wreads(2 * d + 1)]
    A = lambda r: [p5_aread(2 * d, r), p5_aread(2 * d + 1, r)]
    Wn = lambda n: W[0][2*n:2*n+2] + W[1][2*n:2*n+2]
    if last: return Wn(0) + A(0) + Wn(1) + Wn(2) + Wn(3) + Wn(4) + A(1) + A(2) + A(3)
    return Wn(0) + A(0) + A(1) + A(2) + A(3) + Wn(1) + Wn(2) + Wn(3) + Wn(4)

def p5(e):
    ACC = 32; ND = 23
    tick_dump(e, 2)
    attn_final(e)
    stamp(e, 8)
    warm(e, "b")
    e(f"s_add_u32 s{sT+2}, s{sQ+1}, {FC - FH}\ns_waitcnt vmcnt(0) lgkmcnt(0)\ns_barrier\nL_p5loop:")
    e(flag_store(sT + 2))
    stamp(e, 9)
    PCL = f"buffer_load_dword v20, v{vP2}, s[{RWS}:{RWS+3}], s{sFC} offen sc1"
    mfs = []; fills = []
    def mfma(m, n, r, z):
        b = p5_buf(m); dd = ACC + (r * 5 + n) * 4
        return f"{MF} v[{dd}:{dd+3}], a[{b+4*n}:{b+4*n+3}], a[{b+20+4*r}:{b+23+4*r}], " + ("0" if m < 2 and z == 0 else v(dd, 4))
    for d in range(ND):
        T_ = [(n, r) for n in range(5) for r in range(4)] if d < ND - 1 else [(n, r) for r in range(4) for n in range(5)]
        mfs.append([mfma(2 * d + (z ^ (k & 1)), n, r, z) for k, (n, r) in enumerate(T_) for z in range(2)]); fills.append([[] for _ in range(40)])
    for d in range(ND - 1):
        for k, x in enumerate(p5_reads(d + 1, d == ND - 2)): fills[d][1 + k + k // 4].append(x)
        if d: fills[d][0].append(bar([f"d{d+1}"]))
    NM = ND - 1
    GR = 176
    for k in range(12): fills[18][4 + 2 * k].append(f"v_mov_b32 v{GR + 16*(k >> 2) + (4*(k & 3) + 3 if k & 3 < 3 else 13)}, s{sTAG}")
    fills[18][30].append(f"v_lshrrev_b32 v131, 1, v{vL16}")
    def send(r):
        L = []
        for k in range(10):
            L.append(f"v_cvt_pk_bf16_f32 v{GR + 16*r + 4*(k // 3) + k % 3}, v{ACC+20*r+2*k}, v{ACC+20*r+2*k+1}")
            q = GR + 16 * r + 4 * (k // 3)
            if k % 3 == 2: L.append(f"buffer_store_dwordx4 v[{q}:{q+3}], v{vL16}, s[{RWS}:{RWS+3}], s{sEX3+r} offen offset:{1024 * (k // 3)} sc1")
        L.append(f"buffer_store_dwordx2 v[{q}:{q+1}], v131, s[{RWS}:{RWS+3}], s{sEX3+r} offen offset:3072 sc1")
        return L
    late = []
    g = 0
    for g0_, x in [(10 * (r + 1) + 5, x) for r in range(3) for x in send(r)]:
        g = max(g, g0_)
        if g < 40: fills[NM][g].append(x)
        else: late.append(x)
        g += 1
    for d in range(2, ND):
        P = [(d - 4, g) for g in range(3, 39, 4)]
        if d < 6: P = [((d - 2) >> 1, g) for g in range(2 + 18 * (d & 1), 20 + 18 * (d & 1), 2)]
        for k, (x, (m, g)) in enumerate(zip(p5_dmas(d), P)):
            if d == 7 and k == 5:
                if W0:
                    CB = OPT.get("cb", 20)
                    fills[m][CB].append(async_check("L_p5c", 20, PCL, sTAGW)); fills[m][CB].append("s_barrier"); fills[m][1].append(PCL)
                else:
                    fills[m][g - 1].append(async_check("L_p5c", 20, PCL))
                    fills[m - 1][37].append(PCL)
            put_dma(fills[m], g, x, f"d{d}")
    mx = 19
    fills[mx][0].append(grp([f"s_mov_b32 s{R0}, s{pX}", f"s_and_b32 s{R0+1}, s{pX+1}, 0xffff", f"s_mov_b32 s{R0+2}, {2048*1280}", f"s_mov_b32 s{R0+3}, 0x20000",
                             f"s_mov_b32 s{R2}, s{pB2}", f"s_and_b32 s{R2+1}, s{pB2+1}, 0xffff", f"s_mov_b32 s{R2+2}, 1280", f"s_mov_b32 s{R2+3}, 0x20000"]))
    for n in range(5):
        fills[mx][2 + 3 * n].append(f"buffer_load_dwordx2 v[{112+2*n}:{113+2*n}], v{vXO}, s[{R0}:{R0+3}], s{sXO} offen offset:{32*n}")
        fills[mx][20 + 3 * n].append(f"buffer_load_dwordx2 v[{164+2*n}:{165+2*n}], v{vBO}, s[{R2}:{R2+3}], s{sBO} offen offset:{32*n}")
    for m in range(NM + 1):
        if m == 3: stamp(e, 11)
        if m == 4: stamp(e, 12)
        e.gaps(mfs[m], fills[m], mfs[m + 1][0] if m < NM else None)
    for x in late: e(x)
    tick_dump(e, 3)
    stamp(e, 13)
    OWN = ACC + 60; RX = 208
    for k in range(1, 4):
        e(f"s_add_u32 s{sT+k}, s{sS}, {k}\ns_and_b32 s{sT+k}, s{sT+k}, 3\ns_mul_i32 s{sT+k}, s{sT+k}, 20480\ns_add_u32 s{sT+k}, s{sT+k}, s{sEXl}")
    def fetch(e):
        for k in range(3):
            t = RX + 16 * k - (64 if k == 0 else 0) * 0
            for q in range(3): e(f"buffer_load_dwordx4 v[{RXR[k]+4*q}:{RXR[k]+4*q+3}], v{vL16}, s[{RWS}:{RWS+3}], s{sT+1+k} offen offset:{1024*q} sc1")
            e(f"buffer_load_dwordx2 v[{RXR[k]+12}:{RXR[k]+13}], v131, s[{RWS}:{RWS+3}], s{sT+1+k} offen offset:3072 sc1")
    RXR = (224, 240, 140)
    def verify(e):
        tg = [RXR[k] + q for k in range(3) for q in (3, 7, 11, 13)]
        for op, d in (("v_max3_u32", 134), ("v_min3_u32", 135)):
            e(f"{op} v{d}, v{tg[0]}, v{tg[1]}, v{tg[2]}")
            for q in range(3, 11, 2): e(f"{op} v{d}, v{d}, v{tg[q]}, v{tg[q+1]}")
            e(f"{op} v{d}, v{d}, v{tg[11]}, v{tg[11]}")
        e(f"v_xor_b32 v134, s{sTAG}, v134\nv_xor_b32 v135, s{sTAG}, v135\nv_or_b32 v134, v134, v135\nv_cmp_ne_u32 vcc, 0, v134")
    HINT = OPT.get("hint", 1)
    if HINT:
        e(f"""
        v_mov_b32 v20, 0
        v_mov_b32 v132, 0x10000000
        v_cmp_eq_u32 vcc, 0, v{vL16}
        s_lshl_b32 s{sT+4}, s{sS}, {7 if OPT.get("hl", 1) else 2}
        s_add_u32 s{sT+4}, s{sT+4}, s{sFE}
        v_cndmask_b32 v132, v132, v20, vcc
        {"v_lshlrev_b32 v133, 3" if OPT.get("hl", 1) else "v_lshrrev_b32 v133, 2"}, v{vL16}
        v_and_b32 v133, {384 if OPT.get("hl", 1) else 12}, v133
        s_lshl_b32 s{sT+5}, s{sS}, 7
        s_xor_b32 s{sT}, s{sT+5}, 128
        v_mov_b32 v138, s{sT}
        v_cmp_eq_u32 vcc, s{sT+5}, v133
        s_nop 1
        v_cndmask_b32 v133, v133, v138, vcc
        """)
        e(f"buffer_store_dword v{vTAG}, v132, s[{RWS}:{RWS+3}], s{sT+4} offen sc1")
    else:
        e("s_nop 3"); fetch(e)
    srd(e, R0, pOUT, 2048 * 1280)
    e.need("v[112:121],v[164:173]")
    for n in range(5):
        for k in range(2):
            t = OWN + 4 * n + 2 * k
            e(f"v_lshlrev_b32 v134, 16, v{112+2*n+k}\nv_and_b32 v135, 0xffff0000, v{112+2*n+k}")
            e(f"v_lshlrev_b32 v136, 16, v{164+2*n+k}\nv_and_b32 v137, 0xffff0000, v{164+2*n+k}")
            e(f"v_pk_add_f32 v[134:135], v[134:135], v[136:137]\nv_pk_add_f32 v[{t}:{t+1}], v[{t}:{t+1}], v[134:135]")
    stamp(e, 10)
    if HINT:
        def hp(e): e(f"buffer_load_dword v20, v133, s[{RWS}:{RWS+3}], s{sFE} offen sc1\ns_waitcnt vmcnt(0)\nv_cmp_ne_u32 vcc, s{sTAG}, v20")
        spin(e, "L_p5hint", hp, None, sleep=OPT.get("hs", 5))
        fetch(e)
    e("s_waitcnt vmcnt(0)"); verify(e)
    e("s_cbranch_vccz L_p5x_ok")
    def poll(e):
        fetch(e); e("s_waitcnt vmcnt(0)"); verify(e)
    spin(e, "L_p5x", poll, None, sleep=OPT.get("xs", 1))
    e(f"s_cmp_eq_u32 s2, 0\ns_cselect_b32 s{sT}, {FL}, {0}\ns_cmp_eq_u32 s{sT}, 0\ns_cselect_b32 s{sT}, {WS_END}, s{sT}")
    e(flag_store(sT))
    for q in range(10):
        t = OWN + 2 * q
        for k in range(3):
            u = RXR[k] + 4 * (q // 3) + q % 3; z = 134 + 2 * (k & 1)
            e(f"v_lshlrev_b32 v{z}, 16, v{u}\nv_and_b32 v{z+1}, 0xffff0000, v{u}\nv_pk_add_f32 v[{t}:{t+1}], v[{t}:{t+1}], v[{z}:{z+1}]")
        e(f"v_cvt_pk_bf16_f32 v{112+q}, v{t}, v{t+1}")
        if q & 1: e(f"buffer_store_dwordx2 v[{111+q}:{112+q}], v{vXO}, s[{R0}:{R0+3}], s{sXO} offen offset:{16*(q-1)} {OPT.get('outst', '')}")

def warm(e, name):
    if not OPT.get("hop"): return
    e(f"s_mov_b32 s7, 1")
    for w in range(3): e(f"s_cmp_eq_u32 s{sW}, {w}\ns_cbranch_scc1 HOP_{name}_{w}")
    e(f"s_branch HOP_{name}_3\nHOP_{name}_ret:\ns_mov_b32 s7, 0")
def reads_scc(i): return i.mn.startswith(("s_addc", "s_subb", "s_cselect", "s_cbranch_scc"))
def writes_scc(i): return i.kind == "salu" and not i.mn.startswith(("s_mov", "s_mul_i32", "s_cselect", "s_getpc", "s_sleep", "s_setprio"))
def insert_hops(L, sessions):
    import subprocess, re as _re
    open("hop.s", "w").write(header() + _re.sub(r"HOP_\w_\d", "L_p5loop", "\n".join(i.t for i in L)) + "\n" + footer())
    subprocess.run(["clang", "-x", "assembler", "-target", "amdgcn-amd-amdhsa", "-mcpu=gfx950", "-c", "hop.s", "-o", "hop.o"], check=True)
    dis = subprocess.run(["llvm-objdump", "-d", "--mcpu=gfx950", "hop.o"], capture_output=True, text=True).stdout
    D = [(m.group(1), int(m.group(2), 16)) for m in _re.finditer(r"^\t(\S+).*// ([0-9A-F]{12}):", dis, _re.M)]
    addr = {}; k = 0
    for n, i in enumerate(L):
        if i.kind == "label": continue
        base = lambda x: x.replace("_e32", "").replace("_e64", "")
        while base(D[k][0]) != base(i.mn): k += 1
        addr[n] = D[k][1]; k += 1
    lab = {i.mn[:-1]: n for n, i in enumerate(L) if i.kind == "label" and i.mn.endswith(":")}
    which = {}
    for name, ranges in sessions.items():
        for a, b in ranges:
            for n in range(lab[a], lab[b]): which[n] = name
    ins = []; shift = 0; page = -1
    start = lab["L_p1K"]
    for n in sorted(addr):
        if n < start: continue
        a = addr[n] + shift
        if a >> 12 == page or n not in which:
            page = a >> 12 if n not in which else page
            continue
        m = n; ok = True
        while m < len(L) and not writes_scc(L[m]) and L[m].kind != "br" or (m < len(L) and reads_scc(L[m])):
            if reads_scc(L[m]): ok = False; break
            m += 1
        if not ok:
            assert (a & 4095) < 48, "no safe hop slot"
            continue
        page = a >> 12
        if (a & 4095) < 56: ins.append((n, which[n])); shift += 8
    out = list(L); idx = {}
    per = {name: [n for n, w in ins if w == name] for name in sessions}
    txt = {}
    for name, P in per.items():
        for k, n in enumerate(P):
            nxt = f"HS_{name}_{k+4}" if k + 4 < len(P) else f"HOP_{name}_ret"
            txt[n] = ([f"HOP_{name}_{k}:"] if k < 4 else []) + [f"HS_{name}_{k}:", "s_cmp_eq_u32 s7, 1", f"s_cbranch_scc1 {nxt}"]
        assert len(P) >= 4, (name, len(P))
        print("hop session", name, len(P), "pages")
    out = []
    for n, i in enumerate(L):
        for x in txt.get(n, []): out.append(I(x))
        out.append(i)
    return out

def clone_state(e): return (list(e.vm), list(e.lg))

def build(stop=None):
    FBS.clear(); STUBS.clear()
    e = E(); seg = {}
    def mark(name, n0): seg[name] = e.l[n0:]
    n0 = 0
    e("L_code_begin:")
    if STAMP: e("s_mov_b32 s71, 0\ns_memrealtime s[96:97]\ns_memtime s[98:99]")
    prologue(e); stamp(e, 0); p0_ln(e); stamp(e, 1); p1_pre(e); stamp(e, 2)
    mark("pro", n0)
    e(f"s_cmp_ge_u32 s{sW}, 2\ns_cbranch_scc1 L_p1V")
    if OPT.get("hop"): e("s_branch L_p1K\n.p2align 12")
    e("L_p1K:")
    st0 = clone_state(e); st1 = {}; bq = {}
    def p1(T):
        e.vm, e.lg = list(st0[0]), list(st0[1])
        n0 = len(e.l); bg = Bg(); p1_main(e, T, bg); tick_dump(e, 0); stamp(e, 3); mark("p1" + T, n0)
        st1[T] = clone_state(e); bq[T] = list(bg.q)
        e(f"s_cmp_ge_u32 s{sU}, 27\ns_cbranch_scc1 L_qhN{T}")
    def qh(T, hasH):
        e.vm, e.lg = list(st1[T][0]), list(st1[T][1])
        n0 = len(e.l); b = Bg(); b.q = list(bq[T]); qh_main(e, T, hasH, b); mark("qh" + "NH"[hasH] + T, n0)
    p1("K")
    e("s_branch L_qhH\nL_p1V:")
    p1("V")
    assert [t for _, t in st1["K"][0]] == [t for _, t in st1["V"][0]] and [r for r, _ in st1["K"][1]] == [r for r, _ in st1["V"][1]] and bq["K"] == bq["V"]
    e("L_qhH:"); qh("V", True); seg["qhHK"] = seg["qhHV"]
    e("L_postH:")
    n0 = len(e.l)
    tick_dump(e, 1); stamp(e, 4); e("s_nop 7"); q_pack(e); dm = gelu(e, "L_skH"); attn_setup(e, dm); stamp(e, 5); attn_pre(e); stamp(e, 6); mark("postH", n0)
    e("L_attn:")
    segsA, ool = attention(e)
    e("L_p5:")
    n0 = len(e.l); e.vm = []
    p5(e); stamp(e, 14); mark("p5", n0)
    e("L_exit:\ns_endpgm")
    e("L_qhNK:\nL_qhNV:"); qh("V", False); seg["qhNK"] = seg["qhNV"]
    n0 = len(e.l)
    tick_dump(e, 1); stamp(e, 4); e(PKL); e("s_nop 7"); q_pack(e); async_check("L_skN", vTR + 1, PKL)(e); attn_setup(e, kv_prologue_list()); stamp(e, 5); attn_pre(e); stamp(e, 6); mark("postN", n0)
    e("s_branch L_attn")
    ool()
    e("L_code_end:")
    seg.update(segsA)
    errs = []
    for T in "KV":
        for Hh in "HN":
            class X: pass
            x = X(); x.l = seg["p1" + T] + seg["qh" + Hh + T]; check_drain_order(x)
    def path(i):
        if i == 0: a = ["fDF"]
        else: a = ["fFF"] + ["FF"] * min(i - 1, 2) + ["DF"]
        return a + (["TYD"] if i == 7 else ["TY"] + ["YY"] * min(6 - i, 2) + ["YD"])
    for T, Hh, i in (("K", "H", 0), ("V", "N", 1), ("K", "N", 3), ("V", "H", 6), ("K", "H", 7)):
        tr = []
        for nme in ["pro", "p1" + T, "qh" + Hh + T, "post" + Hh] + path(i) + ["p5"]: tr += seg[nme]
        errs += check_trace(tr, f"{T},{Hh},{i}")
    for nme in FBS: errs += check_trace(seg[nme], nme)
    seen = set()
    for x in errs:
        k = x.split("]", 1)[1]
        if k not in seen:
            seen.add(k)
            if len(seen) < 12: print("HAZARD", x)
    print("instructions:", sum(1 for i in e.l if i.kind != "label"), {k: len(vv) for k, vv in seg.items()})
    if OPT.get("allld"):
        e.l = [I(i.t.replace(" lds", f" {OPT['allld']} lds")) if (i.kind == "vml" and i.lds and " nt" not in i.t and " sc" not in i.t) else i for i in e.l]
    if OPT.get("hop"):
        e.l = [i for i in e.l if i.mn != ".p2align 3"]
        end_a = {1: "L_attn", 2: "L_fin", 3: "L_postH"}[OPT["hop"]]
        e.l = insert_hops(e.l, {"a": [("L_p1K", end_a)], "b": [("L_p5loop", "L_exit")]})
    if "race" in sys.argv:
        import race; race.check_all(e.l)
    mac, body = compress([i.t for i in e.l])
    h = header(); k = h.index(".text")
    open("k_full.s", "w").write(h + e.text() + footer())
    return h[:k] + mac + h[k:] + body + footer(), len(seen)

if __name__ == "__main__":
    STAMP = "stamp" in sys.argv
    txt, ne = build()
    out = sys.argv[1] if len(sys.argv) > 1 else "k.s"
    open(out, "w").write(txt)
    print("bytes", len(txt), "hazards", ne)

def mb_init(e):
    for r in range(4): e(f"v_mov_b32 v{192+r}, 0x3f803f80")
```

```python
import sys, math, struct
from core import *

NAME = "parallel_sum__compressed_kv_cla__dense_activation_gelu__prompt"
def f32(x): return "0x%08x" % struct.unpack("<I", struct.pack("<f", x))[0]
CS = math.log2(math.e) / math.sqrt(128.0)

OPT = dict(kvst="sc1", norole=1, rate=1, bstep=2, bkv=17, notouch1=1, wnt=1, cnt=0, cpf=10, te=3, cs=2, sp0=3, xe=1, be=1, tsp=1, hop=1)
for a in sys.argv[1:]:
    if "=" in a:
        k, vv = a.split("=", 1); OPT[k] = int(vv) if vv.lstrip("-").isdigit() else vv.replace("+", " ")
def NT(k): return ' nt' if OPT.get(k) else ''
XS = 0x0010000; KF = 0x0400000; VF = 0x1500000 + OPT.get('vsk', 0); HF = 0x2600000; CF = 0x2E00000; EX = 0x3F00000; FL = 0x5400000; WS_END = 0x5A00000
HS = 524288 + OPT.get('sk', 0)
FXS = FL + 0x8000; FKV = FL + 0x10000; FH = FL + 0x18000; FC = FL + 0x20000; FEX = FL + 0x80000
FS = 128
sTAG = 88
sW, sH, sIDX, sX = 3, 4, 5, 6
pX, pC, pWQ, pWUK, pWUV, pWO, pW1, pB1, pW2, pB2, pOUT, pDBG, pWS = 8, 10, 12, 14, 16, 18, 22, 24, 26, 28, 30, 32, 34
R0, R1, R2, R3, RWS = 36, 40, 44, 48, 52
sT = 56
sU = 64
sM0a, sM0b, sSa, sSb, sSc, sST = 65, 66, 67, 68, 69, 70
sQ = 72
MF = "v_mfma_f32_16x16x32_bf16"

def srd(e, r, p, nbytes, add=None):
    if add is None:
        e(f"s_mov_b32 s{r}, s{p}\ns_and_b32 s{r+1}, s{p+1}, 0xffff")
    else:
        e(f"s_add_u32 s{r}, s{p}, {add}\ns_addc_u32 s{r+1}, s{p+1}, 0\ns_and_b32 s{r+1}, s{r+1}, 0xffff")
    e(f"s_mov_b32 s{r+2}, {nbytes}\ns_mov_b32 s{r+3}, 0x20000")

vL16, vXR, vWQR, vW1R, vXD, vWQD, vW1D, vSC = 0, 1, 2, 10, 14, 18, 20, 21
vTR, vPK = 24, 28
vTAG = 23
sXS = 80
vCD, vWD, vCR, vWR = 96, 100, 104, 106
vWWIN, vCB = 176, (224, 192)
HACC, QACC = 32, 96
XNB = (224, 240)

def prologue(e):
    e(f"""
    s_cmp_ge_u32 s2, {0 if OPT.get("exit0") else 256}
    s_cbranch_scc1 L_exit
    s_load_dwordx16 s[8:23], s[0:1], 0
    s_load_dwordx8 s[24:31], s[0:1], 64
    s_load_dwordx4 s[32:35], s[0:1], 96
    v_lshrrev_b32 v33, 6, v0
    v_and_b32 v32, 63, v0
    v_readfirstlane_b32 s{sW}, v33
    v_lshlrev_b32 v{vL16}, 4, v32
    s_and_b32 s{sX}, s2, 7
    s_lshr_b32 s{sT}, s2, 3
    s_and_b32 s{sT}, s{sT}, 3
    s_lshl_b32 s{sH}, s{sX}, 2
    s_add_u32 s{sH}, s{sH}, s{sT}
    s_lshr_b32 s{sIDX}, s2, 5
    s_mov_b32 s7, 0
    """)
    if OPT.get("cpf"):
        e(f"""
        s_getpc_b64 s[{sT+4}:{sT+5}]
        s_and_b32 s{sT+4}, s{sT+4}, 0xffffff00
        s_lshr_b32 s{sT+2}, s2, 3
        s_lshl_b32 s{sT+2}, s{sT+2}, 2
        s_add_u32 s{sT+2}, s{sT+2}, s{sW}
        v_min_u32 v152, {OPT["cpf"] - 1}, v32
        v_lshlrev_b32 v152, 14, v152
        s_lshl_b32 s{sT+2}, s{sT+2}, 7
        v_add_u32 v152, s{sT+2}, v152
        v_min_u32 v152, L_code_end-L_code_begin-4, v152
        global_load_dword v153, v152, s[{sT+4}:{sT+5}]{NT('cpnt')}
        """)
    e(f"""
    s_mul_i32 s{sU}, s{sX}, 3
    s_add_u32 s{sU}, s{sU}, s{sT}
    s_sub_u32 s{sT+1}, s{sX}, s{sIDX}
    s_and_b32 s{sT+1}, s{sT+1}, 7
    s_add_u32 s{sT+1}, s{sT+1}, 24
    s_cmp_eq_u32 s{sT}, 3
    s_cselect_b32 s{sU}, s{sT+1}, s{sU}
    """)
    e(f"""
    v_lshrrev_b32 v37, 3, v32
    v_and_b32 v38, 7, v32
    v_lshrrev_b32 v39, 4, v32
    v_xor_b32 v50, v38, v39
    v_lshlrev_b32 v50, 4, v50
    v_lshl_add_u32 v{vCD}, v37, 10, v50
    v_xor_b32 v51, 64, v{vCD}
    v_add_u32 v{vCD+1}, 7168, v51
    v_add_u32 v{vCD+2}, {2*7168}, v{vCD}
    v_add_u32 v{vCD+3}, {3*7168}, v51
    v_and_b32 v52, 15, v32
    v_lshlrev_b32 v53, 1, v39
    v_xor_b32 v53, v52, v53
    v_lshlrev_b32 v53, 4, v53
    v_lshl_add_u32 v{vWD}, v39, 13, v53
    v_add_u32 v{vWD+1}, {31744}, v{vWD}
    v_xor_b32 v51, 128, v{vWD}
    v_add_u32 v{vWD+2}, {2*31744}, v51
    v_add_u32 v{vWD+3}, {3*31744}, v51
    """)
    e(f"""
    s_lshl_b32 s{sSa}, s{sIDX}, 18
    s_lshl_b32 s{sT+1}, s{sW}, 16
    s_add_u32 s{sSa}, s{sSa}, s{sT+1}
    s_lshl_b32 s{sM0a}, s{sW}, 13
    s_and_b32 s{sT+1}, s{sW}, 1
    s_lshl_b32 s{sSb}, s{sT+1}, 17
    s_lshl_b32 s{sT+2}, s{sH}, 8
    s_add_u32 s{sSb}, s{sSb}, s{sT+2}
    s_lshl_b32 s{sM0b}, s{sW}, 12
    s_add_u32 s{sM0b}, s{sM0b}, 0x10000
    s_waitcnt lgkmcnt(0)
    """)
    srd(e, R1, pC, 2048 * 1024)
    e(f"s_cmp_ge_u32 s{sW}, 2\ns_cselect_b32 s{R2}, s{pWUV}, s{pWUK}\ns_cselect_b32 s{R2+1}, s{pWUV+1}, s{pWUK+1}")
    e(f"s_and_b32 s{R2+1}, s{R2+1}, 0xffff\ns_mov_b32 s{R2+2}, {512*8192}\ns_mov_b32 s{R2+3}, 0x20000")
    for q in range(8): emit_dma(e, p1_cdma(0, q), "c0")
    for u in range(4): emit_dma(e, p1_wdma(0, u), "w0")
    for u in range(4): emit_dma(e, p1_wdma(1, u), "w1")
    for q in range(8): emit_dma(e, p1_cdma(1, q), "c1")
    for u in range(4): emit_dma(e, p1_wdma(2, u), "w2")
    e(f"s_add_u32 s{sT+2}, s{pWS}, {FL}\ns_addc_u32 s{sT+3}, s{pWS+1}, 0\ns_load_dword s{sTAG}, s[{sT+2}:{sT+3}], 0")
    srd(e, RWS, pWS, WS_END)
    srd(e, R0, pX, 2048 * 1280)
    srd(e, R3, pB1, 1728 * 2)
    e(f"""
    v_lshrrev_b32 v34, 5, v32
    v_and_b32 v35, 31, v32
    v_mul_u32_u24 v36, 1280, v34
    v_lshl_add_u32 v36, v35, 3, v36
    s_lshl_b32 s{sT}, s2, 2
    s_add_u32 s{sT}, s{sT}, s{sW}
    s_mul_i32 s{sT}, s{sT}, 2560
    v_lshlrev_b32 v94, 3, v39
    s_lshl_b32 s{sT+4}, s{sU}, 7
    """)
    e(f"s_mov_b32 s89, s{sT}\ns_mov_b32 s90, s{sT+4}\nv_mov_b32 v151, v94")
    e(f"""
    s_and_b32 s{sT+2}, s{sH}, 3
    s_lshl_b32 s{sT+2}, s{sT+2}, 2
    s_add_u32 s{sT+2}, s{sT+2}, s{sW}
    s_lshl_b32 s{sT+2}, s{sT+2}, 14
    s_lshl_b32 s{sT+3}, s{sIDX}, 18
    s_add_u32 s{sT+2}, s{sT+2}, s{sT+3}
    v_lshlrev_b32 v140, 10, v52
    v_lshl_add_u32 v141, v39, 7, v140
    v_and_b32 v142, 1, v39
    v_lshl_add_u32 v142, v142, 7, v140
    s_mul_i32 s{sT+3}, s{sIDX}, 48
    s_and_b32 s{sT+4}, s{sW}, 1
    s_mul_i32 s{sT+4}, s{sT+4}, 24
    s_add_u32 s{sT+3}, s{sT+3}, s{sT+4}
    s_add_u32 s{sT+3}, s{sT+3}, 128
    s_lshl_b32 s{sT+3}, s{sT+3}, 13
    s_lshl_b32 s{sT+4}, s{sH}, 8
    s_add_u32 s{sT+3}, s{sT+3}, s{sT+4}
    v_and_b32 v144, 1, v32
    v_lshlrev_b32 v144, 7, v144
    v_min_u32 v143, 47, v32
    v_lshrrev_b32 v143, 1, v143
    v_lshl_add_u32 v143, v143, 13, v144
    """)
    e(f"s_mov_b32 s91, s{sT+2}\ns_mov_b32 s92, s{sT+3}")
    e(f"""
    s_mul_i32 s{sT+2}, s{sIDX}, 80
    s_mul_i32 s{sT+3}, s{sW}, 20
    s_add_u32 s{sT+2}, s{sT+2}, s{sT+3}
    s_lshl_b32 s{sT+3}, s{sT+2}, 13
    s_add_u32 s{sT+3}, s{sT+3}, s{sT+4}
    s_mul_i32 s{sT+2}, s{sT+2}, 3456
    s_lshl_b32 s{sT+4}, s{sU}, 7
    s_add_u32 s{sT+2}, s{sT+2}, s{sT+4}
    v_min_u32 v140, {7 if OPT.get("tsp") else 39}, v32
    v_and_b32 v144, 1, v140
    v_lshlrev_b32 v144, 7, v144
    v_lshrrev_b32 v140, 1, v140
    v_lshl_add_u32 v140, v140, 13, v144
    v_min_u32 v145, {3 if OPT.get("tsp") else 19}, v32
    v_mul_u32_u24 v145, 3456, v145
    """)
    srd(e, 84, pWQ, 640 * 8192)
    e(f"s_mov_b32 s93, s{sT+3}\ns_mov_b32 s94, s{sT+2}")

CSLOT = (32768, 0, 131072, 32768, 0, 32768, 0, 32768)
vCR2 = 124
def p1_cdma(j, q):
    setup = []
    if q % 4 == 0:
        setup = [f"s_add_u32 m0, s{sM0a}, {CSLOT[j] + (q >> 2) * 4096}", f"s_add_u32 s{sT}, s{sSa}, {j * 128 + (q >> 2) * 32768}"]
    return setup, f"buffer_load_dwordx4 v{vCD + (q & 3)}, s[{R1}:{R1+3}], s{sT} offen offset:{(q & 3) * 1024}{NT('cnt')} lds"
def p1_wslot(sidx): return ((sidx + 2) & 3) * 16384
def p1_wdma(sidx, u):
    setup = []
    if u == 0:
        setup = [f"s_add_u32 m0, s{sM0b}, {p1_wslot(sidx)}", f"s_add_u32 s{sT+1}, s{sSb}, {sidx * 32 * 8192}"]
    return setup, f"buffer_load_dwordx4 v{vWD + u}, s[{R2}:{R2+3}], s{sT+1} offen offset:{u * 1024}{NT('wnt')} lds"

def emit_dma(e, pair, tag):
    su, d = pair
    for x in su: e(x)
    if su: e("s_nop 0")
    e(d, tag=tag)

def reduce32(r, t):
    L = []
    for mod in ("quad_perm:[1,0,3,2]", "quad_perm:[2,3,0,1]", "row_half_mirror", "row_mirror"):
        L += ["s_nop 0", f"v_add_f32_dpp v{r}, v{r}, v{r} {mod} row_mask:0xf bank_mask:0xf"]
    return L + [f"v_mov_b32 v{t}, v{r}", "s_nop 0", f"v_permlane16_swap_b32 v{r}, v{t}", f"v_add_f32 v{r}, v{r}, v{t}"]

def ln_ops():
    L = []; U = 50
    for k in range(10): L += [f"v_lshlrev_b32 v{U+2*k}, 16, v{40+k}", f"v_and_b32 v{U+1+2*k}, 0xffff0000, v{40+k}"]
    L += [f"v_add_f32 v70, v{U}, v{U+1}"] + [f"v_add_f32 v70, v70, v{U+k}" for k in range(2, 20)]
    L += reduce32(70, 71) + [f"v_mul_f32 v70, {f32(1/640)}, v70"]
    L += [f"v_sub_f32 v{U+k}, v{U+k}, v70" for k in range(20)]
    L += [f"v_mul_f32 v72, v{U}, v{U}"] + [f"v_fmac_f32 v72, v{U+k}, v{U+k}" for k in range(1, 20)]
    L += reduce32(72, 73)
    L += [f"v_mov_b32 v73, {f32(1e-5)}", f"v_fmac_f32 v73, {f32(1/640)}, v72", "v_rsq_f32 v73, v73", f"v_mul_f32 v73, {f32(CS)}, v73"]
    L += [f"v_mul_f32 v{U+k}, v{U+k}, v73" for k in range(20)]
    for k in range(5):
        L += [f"v_cvt_pk_bf16_f32 v{40+2*k}, v{U+4*k}, v{U+4*k+1}", f"v_cvt_pk_bf16_f32 v{41+2*k}, v{U+4*k+2}, v{U+4*k+3}"]
    return L

def p0_ln(e):
    e(f"""
    v_lshrrev_b32 v54, 1, v52
    v_xor_b32 v54, v54, v39
    v_lshlrev_b32 v54, 4, v54
    v_lshl_add_u32 v54, v52, 7, v54
    s_and_b32 s{sT+2}, s{sW}, 1
    s_lshl_b32 s{sT+2}, s{sT+2}, 14
    v_add_u32 v{vCR}, s{sT+2}, v54
    v_xor_b32 v{vCR+1}, 64, v{vCR}
    v_add_u32 v{vCR2}, 0x20000, v{vCR}
    v_add_u32 v{vCR2+1}, 0x20000, v{vCR+1}
    v_lshrrev_b32 v55, 2, v52
    v_and_b32 v56, 1, v39
    v_lshl_add_u32 v56, v56, 2, v55
    v_lshlrev_b32 v56, 5, v56
    v_and_b32 v57, 3, v32
    v_lshlrev_b32 v57, 3, v57
    v_lshl_add_u32 v57, v55, 8, v57
    v_lshl_add_u32 v58, v39, 11, v57
    s_lshr_b32 s{sT+2}, s{sW}, 1
    s_lshl_b32 s{sT+2}, s{sT+2}, 13
    s_add_u32 s{sT+2}, s{sT+2}, 0x10000
    v_add_u32 v58, s{sT+2}, v58
    v_mul_u32_u24 v59, 3072, v39
    v_add_u32 v59, v59, v57
    v_add_u32 v59, {96*1024}, v59
    """)
    for i in range(8):
        e(f"v_xor_b32 v60, {32*i}, v56\nv_add_u32 v{vWR+i}, v60, v58\nv_add_u32 v{vWQR+i}, v60, v59")
    e(f"""
    v_lshrrev_b32 v60, 1, v55
    v_and_b32 v61, 1, v39
    v_lshl_add_u32 v60, v61, 1, v60
    v_lshlrev_b32 v60, 5, v60
    v_and_b32 v61, 3, v32
    v_lshlrev_b32 v61, 3, v61
    v_lshl_add_u32 v61, v55, 7, v61
    v_mul_u32_u24 v62, 3072, v39
    v_add3_u32 v61, v61, v62, 0
    v_add_u32 v61, {96*1024 + 2048}, v61
    """)
    for i in range(4):
        e(f"v_xor_b32 v62, {32*i}, v60\nv_add_u32 v{vW1R+i}, v62, v61")
    e(f"s_waitcnt lgkmcnt(0)\ns_mul_i32 s{sTAG}, s{sTAG}, 0x9E3779B1\ns_add_u32 s{sTAG}, s{sTAG}, 0x7F4A7C15")
    if W0: e(f"s_cmp_eq_u32 s{sW}, 0\ns_cselect_b32 s{sTAGW}, s{sTAG}, 0")
    e(f"""
    v_lshrrev_b32 v88, 1, v35
    v_mul_u32_u24 v88, 144, v88
    v_and_b32 v89, 1, v35
    v_lshl_add_u32 v88, v89, 3, v88
    v_lshl_add_u32 v88, v34, 4, v88
    s_lshl_b32 s{sT+2}, s{sW}, 5
    s_add_u32 s{sT+2}, s{sT+2}, 0x20000
    v_add_u32 v76, s{sT+2}, v88
    """)
    e(f"""
    v_lshlrev_b32 v126, 8, v37
    v_lshl_add_u32 v126, v38, 4, v126
    s_lshr_b32 s{sXS}, s2, 1
    s_mul_i32 s{sXS}, s{sXS}, 20480
    s_and_b32 s{sT+3}, s2, 1
    s_lshl_b32 s{sT+3}, s{sT+3}, 7
    s_add_u32 s{sXS}, s{sXS}, s{sT+3}
    s_lshl_b32 s{sT+3}, s{sW}, 11
    s_add_u32 s{sXS}, s{sXS}, s{sT+3}
    s_add_u32 s{sXS}, s{sXS}, {XS}
    s_add_u32 s{sXS+1}, s{sXS}, 8192
    s_add_u32 s{sXS+2}, s{sXS}, 16384
    s_cmp_ge_u32 s{sW}, 2
    s_cselect_b32 s{sXS+2}, {WS_END}, s{sXS+2}
    s_mul_i32 s{sT+5}, s{sW}, {8*144}
    s_add_u32 s{sT+5}, s{sT+5}, 0x20000
    v_mul_u32_u24 v77, 144, v37
    v_lshl_add_u32 v77, v38, 4, v77
    v_add_u32 v77, s{sT+5}, v77
    """)
    e(f"""
    s_lshl_b32 s{sQ}, s{sH}, 3
    s_add_u32 s{sQ}, s{sQ}, s{sIDX}
    s_mul_i32 s{sQ}, s{sQ}, {FS}
    s_add_u32 s{sQ}, s{sQ}, {FKV}
    s_lshl_b32 s{sQ+1}, s{sIDX}, 5
    s_add_u32 s{sQ+1}, s{sQ+1}, s{sH}
    s_mul_i32 s{sQ+1}, s{sQ+1}, {FS}
    s_add_u32 s{sQ+1}, s{sQ+1}, {FH}
    s_mul_i32 s{sQ+2}, s2, {FS}
    s_add_u32 s{sQ+2}, s{sQ+2}, {FXS}
    s_sub_u32 s{sQ+3}, s{sU}, 27
    s_mul_i32 s{sT+5}, s{sX}, 5
    s_add_u32 s{sQ+3}, s{sQ+3}, s{sT+5}
    v_mov_b32 v91, 0
    v_mov_b32 v92, 0x10000000
    v_lshl_add_u32 v93, v33, 6, v32
    v_cmp_eq_u32 vcc, 0, v93
    v_mov_b32 v{vTAG}, s{sTAG}
    v_and_b32 v127, 15, v32
    v_cndmask_b32 v{vSC}, v92, v91, vcc
    s_lshl_b32 s{sT+5}, s{sIDX}, 4
    s_sub_u32 s{sT+4}, 240, s{sT+5}
    v_and_b32 v93, 16, v32
    v_cmp_eq_u32 vcc, 0, v93
    v_mov_b32 v91, s{sT+5}
    v_mov_b32 v92, s{sT+4}
    v_cndmask_b32 v91, v92, v91, vcc
    v_add_u32 v127, v127, v91
    v_lshlrev_b32 v127, 7, v127
    """)

def p1_acc(T, i, j):
    if OPT.get("contig"):
        if T == "K": return 8 * (8 * (j >> 1) + 2 * (i >> 1) + (j & 1)) + 4 * (i & 1)
        return 8 * (8 * (j >> 1) + i) + 4 * (j & 1)
    if T == "K": return 8 * (8 * (i >> 1) + 4 * (j & 1) + (j >> 1)) + 4 * (i & 1)
    return 32 * i + 4 * j
def p1_units():
    U = []
    for n in range(32):
        off = n * 1024 if OPT.get("contig") else (n & 3) * 8192 + (n >> 2) * 1024
        ins = []
        for k in range(4):
            tr = vTR + 2 * (k & 1); src = 8 * n + 2 * k
            ins += [f"v_accvgpr_read_b32 v{tr}, a{src}", f"v_accvgpr_read_b32 v{tr+1}, a{src+1}", f"v_cvt_pk_bf16_f32 v{vPK+k}, v{tr}, v{tr+1}"]
        ins.insert(6, f"s_add_u32 s{sT+7}, s{sST}, {off & ~4095}")
        if OPT["kvst"] != "skip": ins.append((f"buffer_store_dwordx4 v[{vPK}:{vPK+3}], v{vL16}, s[{RWS}:{RWS+3}], s{sT+7} offen offset:{off & 4095} {OPT['kvst']}", "kv"))
        U.append(ins)
    return U

def _kind(y):
    if callable(y): return "call"
    if isinstance(y, tuple) and y[0] == "BG": y = y[1]
    return I(y[0] if isinstance(y, tuple) else y).kind
class Bg:
    def __init__(self): self.q = []
    def push(self, ins): self.q += list(ins)
    def place(self, fill, g0, g1, maxv=1, step=1):
        for g in range(g0, g1, step):
            n = 0
            while self.q and n < maxv:
                x = self.q[0]; t = x[0] if isinstance(x, tuple) else x
                k = I(t).kind if not callable(t) else "call"
                if k in ("vms", "vml") and (n > 0 or any(_kind(y) in ("vml", "vms") for y in fill[g])): break
                fill[g].append(("BG", self.q.pop(0)))
                if k in ("salu", "nop"): continue
                n += 1
                if k in ("vms", "vml"): break
    def flush(self, e):
        for x in self.q:
            t, tag = x if isinstance(x, tuple) else (x, None)
            q = I(t); e.need(q.rd | q.wr); e(t, tag)
        self.q = []

def run_gaps(e, mf, fill, nxt=None):
    f2 = []
    for g in range(len(mf)):
        a = [x for x in fill[g] if not (isinstance(x, tuple) and x[0] == "BG")]
        b = [x[1] for x in fill[g] if isinstance(x, tuple) and x[0] == "BG"]
        if b:
            def mk(b):
                def f(e):
                    for x in b:
                        t, tag = x if isinstance(x, tuple) else (x, None)
                        q = I(t); e.need(q.rd | q.wr); e(t, tag)
                f.last = True
                return f
            a.append(mk(b))
        f2.append(a)
    e.gaps(mf, f2, nxt)

def put_dma(fill, g, pair, tag):
    su, d = pair
    for x in reversed(su): fill[g - 1].append(x)
    fill[g].append((d, tag))

def qh_wslot(sidx): return ((sidx + 3) % 5) * 12288
def qh_dmas(sidx, hasH, d=0):
    L = []
    u32 = lambda x: x & 0xffffffff
    for j in range(4):
        su = [f"s_add_u32 m0, s{sM0a}, {u32((sidx & 3) * 16384 + d * 8192)}", f"s_mov_b32 s{sT}, {XS + sidx * 1024 + d * 40960}"] if j == 0 else []
        L.append((su, f"buffer_load_dwordx4 v{vXD + j}, s[{RWS}:{RWS+3}], s{sT} offen offset:{j * 1024} lds"))
    for u in range(2):
        su = [f"s_add_u32 m0, s{sM0b}, {u32(qh_wslot(sidx) + d * 6144)}", f"s_mov_b32 s{sT+1}, {sidx * 32 * 8192 + d * 131072}"] if u == 0 else []
        L.append((su, f"buffer_load_dwordx4 v{vWQD + u}, s[{R0}:{R0+3}], s{sT+1} offen offset:{u * 1024} lds"))
    if hasH:
        L.append(([f"s_mov_b32 s{sT+2}, {sidx * 32 * 3456 + d * 55296}"], f"buffer_load_dwordx4 v{vW1D}, s[{R1}:{R1+3}], s{sT+2} offen offset:2048 lds"))
    return L
def qh_xread(sidx, j):
    b = XNB[sidx & 1] + 4 * j
    return f"ds_read_b128 v[{b}:{b+3}], v{vXR} offset:{(sidx & 3) * 16384 + j * 1024}"
def qh_wread(sidx, i, n):
    r = (n & 3) * 4
    if i < 8: a, second = vWQR + i, 1024
    else: a, second = vW1R + i - 8, 512
    o = qh_wslot(sidx)
    return [f"ds_read_b64_tr_b16 a[{r}:{r+1}], v{a} offset:{o}", f"ds_read_b64_tr_b16 a[{r+2}:{r+3}], v{a} offset:{o + second}"]

def spin(e, lab, pollA, cond, limit=1000000, sleep=None):
    if sleep is None: sleep = OPT.get('slp', 2)
    e(f"s_mov_b32 s{sT+6}, {limit}\n{lab}:")
    pollA(e)
    e(f"s_cbranch_vccz {lab}_ok\ns_sub_u32 s{sT+6}, s{sT+6}, 1\ns_cmp_eq_u32 s{sT+6}, 0\ns_cbranch_scc1 {lab}_ok\ns_sleep {sleep}\ns_branch {lab}\n{lab}_ok:")

def qh_setup(e):
    L = []
    L += [f"s_lshl_b32 s{sQ+4}, s{sIDX}, 3", f"s_add_u32 s{sQ+4}, s{sQ+4}, s{sW}", f"s_mul_i32 s{sQ+4}, s{sQ+4}, 20480",
          f"s_sub_u32 s{sQ+5}, 15, s{sIDX}", f"s_lshl_b32 s{sQ+5}, s{sQ+5}, 3", f"s_add_u32 s{sQ+5}, s{sQ+5}, s{sW}", f"s_mul_i32 s{sQ+5}, s{sQ+5}, 20480"]
    L += [f"v_add_u32 v{vXD}, s{sQ+4}, v{vL16}", f"v_add_u32 v{vXD+1}, {4*20480 - 1024}, v{vXD}",
          f"v_add_u32 v{vXD+2}, s{sQ+5}, v{vL16}", f"v_add_u32 v{vXD+3}, {4*20480 - 3072}, v{vXD+2}", f"v_subrev_u32 v{vXD+2}, 2048, v{vXD+2}"]
    return L

STAMP = False
TS = FL + 0x40000
def stamp(e, k):
    if not STAMP or (OPT.get("lite") and k not in (0, 14)): return
    if k: e("s_memrealtime s[96:97]\ns_memtime s[98:99]")
    e(f"""s_waitcnt lgkmcnt(0)
    s_lshl_b32 s97, s2, 2
    s_add_u32 s97, s97, s{sW}
    s_lshl_b32 s97, s97, 8
    s_add_u32 s97, s97, {TS + 8 * k}
    s_mov_b64 s[100:101], exec
    s_mov_b64 exec, 1
    {"v_mov_b32 v122" if k == 3 else "v_accvgpr_write_b32 a194" if k >= 7 else "v_accvgpr_write_b32 a254"}, s96
    {"v_mov_b32 v123" if k == 3 else "v_accvgpr_write_b32 a195" if k >= 7 else "v_accvgpr_write_b32 a255"}, s98
    s_nop 1
    buffer_store_dwordx2 {"v[122:123]" if k == 3 else "a[194:195]" if k >= 7 else "a[254:255]"}, off, s[{RWS}:{RWS+3}], s97
    s_mov_b64 exec, s[100:101]
    s_nop 3""")

def header():
    return f"""; @launch grid=(256,1,1) block=(256,1,1) lds=163840
.amdgcn_target "amdgcn-amd-amdhsa--gfx950"
.text
.globl {NAME}_kernel
.p2align 8
.type {NAME}_kernel,@function
{NAME}_kernel:
"""
def footer():
    return f"""
.section .rodata,"a"
.p2align 6
.amdhsa_kernel {NAME}_kernel
  .amdhsa_next_free_vgpr 512
  .amdhsa_next_free_sgpr 102
  .amdhsa_accum_offset 256
  .amdhsa_group_segment_fixed_size 0
  .amdhsa_kernarg_size 112
  .amdhsa_user_sgpr_count 2
  .amdhsa_user_sgpr_kernarg_segment_ptr 1
  .amdhsa_system_sgpr_workgroup_id_x 1
.end_amdhsa_kernel
"""

def code_touch(a, b, nl, vt, dst):
    return [grp([f"s_getpc_b64 s[{sT+4}:{sT+5}]", f"LT_{a}_{code_touch.n}:", f"s_add_u32 s{sT+4}, s{sT+4}, {a}-LT_{a}_{code_touch.n}", f"s_addc_u32 s{sT+5}, s{sT+5}, {code_touch.hi(a)}",
                 f"s_lshr_b32 s{sT+6}, s2, 3", f"s_lshl_b32 s{sT+6}, s{sT+6}, 2", f"s_add_u32 s{sT+6}, s{sT+6}, s{sW}", f"s_lshl_b32 s{sT+6}, s{sT+6}, 7"]),
            f"v_lshlrev_b32 v{vt}, 10, v{vL16}", f"v_min_u32 v{vt}, {(nl - 1) << 14}, v{vt}", f"v_add_u32 v{vt}, s{sT+6}, v{vt}", f"v_min_u32 v{vt}, {b}-{a}-4, v{vt}",
            f"global_load_dword {dst}, v{vt}, s[{sT+4}:{sT+5}]"]
code_touch.n = 0
code_touch.hi = lambda a: 0
def grp_all(L):
    def f(e):
        for x in L: x(e) if callable(x) else e(x)
    return f
def grp(L):
    def f(e):
        for x in L: e(x)
    return f
vTK = 22
def tick_pre(e):
    if OPT.get("ticks"): e("s_memtime s[96:97]")
def tick_post(e):
    if OPT.get("ticks") == 2:
        e(f"s_memtime s[98:99]\ns_waitcnt lgkmcnt(0)\ns_lshl_b64 exec, 1, s71\nv_mov_b32 v{vTK}, s96\ns_lshl_b64 exec, 2, s71\nv_mov_b32 v{vTK}, s98\ns_mov_b64 exec, -1\ns_add_u32 s71, s71, 2\ns_and_b32 s71, s71, 63")
    elif OPT.get("ticks"):
        e(f"s_waitcnt lgkmcnt(0)\ns_lshl_b64 exec, 1, s71\nv_mov_b32 v{vTK}, s96\ns_mov_b64 exec, -1\ns_add_u32 s71, s71, 1")
def tick_dump(e, k):
    if OPT.get("ticks"):
        e(f"""s_lshl_b32 s97, s2, 2
        s_add_u32 s97, s97, s{sW}
        s_lshl_b32 s97, s97, 12
        s_add_u32 s97, s97, {FL + 0x100000 + 1024 * k}
        buffer_store_dword v{vTK}, v{vL16}, s[{RWS}:{RWS+3}], s97 offen
        s_mov_b32 s71, 0
        s_nop 1""")
def bar(vmtags=(), lg0=True):
    def f(e):
        tick_pre(e)
        e.need(vmtags=vmtags, lg0=lg0); e("s_barrier")
        tick_post(e)
    return f

def p1_pre(e):
    e(f"""
    s_mul_i32 s{sST}, s{sH}, {HS}
    s_lshl_b32 s{sT+2}, s{sIDX}, 16
    s_add_u32 s{sST}, s{sST}, s{sT+2}
    s_and_b32 s{sT+2}, s{sW}, 1
    s_lshl_b32 s{sT+2}, s{sT+2}, 15
    s_add_u32 s{sST}, s{sST}, s{sT+2}
    s_cmp_ge_u32 s{sW}, 2
    s_cselect_b32 s{sT+2}, {VF-KF}, 0
    s_add_u32 s{sST}, s{sST}, s{sT+2}
    s_add_u32 s{sST}, s{sST}, {KF}
    s_lshl_b32 s{sT+2}, s{sW}, 12
    v_add_u32 v{vXR}, s{sT+2}, v{vL16}
    """)
    e(f"""
    s_and_b32 s{sT+2}, s{sW}, 1
    s_lshl_b32 s{sT+3}, s{sT+2}, 7
    v_xor_b32 v94, s{sT+3}, v{vWD}
    s_lshl_b32 s{sT+3}, s{sW}, 16
    s_lshl_b32 s{sT+4}, s{sH}, 8
    s_add_u32 s{sT+3}, s{sT+3}, s{sT+4}
    v_add_u32 v{vWQD}, s{sT+3}, v94
    v_add_u32 v{vWQD+1}, 31744, v{vWQD}
    """)
    e(f"""
    v_and_b32 v94, 1, v39
    v_lshlrev_b32 v94, 1, v94
    s_lshl_b32 s{sT+3}, s{sT+2}, 2
    v_or_b32 v94, s{sT+3}, v94
    v_xor_b32 v94, v94, v38
    v_lshlrev_b32 v94, 4, v94
    v_mul_u32_u24 v95, 3456, v37
    v_add_u32 v94, v94, v95
    s_mul_i32 s{sT+3}, s{sW}, {8*3456}
    s_lshl_b32 s{sT+4}, s{sU}, 7
    s_add_u32 s{sT+3}, s{sT+3}, s{sT+4}
    v_add_u32 v{vW1D}, s{sT+3}, v94
    """)
    for x in qh_setup(e): e(x)
    warm(e, "a")
    e.need(vmtags=("c0", "w0"), lg0=True)
    e("s_barrier")
    for j in range(8): e(p1_cread(0, j))
    for n in range(2):
        for x in p1_wread(n): e(x)

def hacc(ft, j): return HACC + (j * 2 + (ft >> 1)) * 8 + (ft & 1) * 4
def qacc(i, j): return QACC + (j * 4 + (i >> 1)) * 8 + (i & 1) * 4
def bias_init():
    L = []
    for ft in range(4):
        d = hacc(ft, 3)
        for k in range(2):
            L += [f"v_lshlrev_b32 v{d+2*k}, 16, v{114+2*ft+k}", f"v_and_b32 v{d+2*k+1}, 0xffff0000, v{114+2*ft+k}",
                  f"v_mul_f32 v{d+2*k}, {f32(CS)}, v{d+2*k}", f"v_mul_f32 v{d+2*k+1}, {f32(CS)}, v{d+2*k+1}"]
    return L

def p1_cread(sidx, j):
    b = vCB[sidx & 1] + 4 * j
    sl = CSLOT[sidx >> 1]
    return f"ds_read_b128 v[{b}:{b+3}], v{(vCR2 if sl > 65535 else vCR) + (sidx & 1)} offset:{(sl & 65535) + j * 2048}"
def p1_wread(n):
    sidx, i = divmod(n, 8); r = vWWIN + 4 * (n & 3); o = p1_wslot(sidx)
    return [f"ds_read_b64_tr_b16 v[{r}:{r+1}], v{vWR+i} offset:{o}", f"ds_read_b64_tr_b16 v[{r+2}:{r+3}], v{vWR+i} offset:{o+1024}"]

W0 = OPT.get("w0", 1) and not OPT.get("ticks")
sTAGW = 71 if W0 else sTAG
def async_check(lab, reg, reload, tag=None):
    def f(e):
        e.need(f"v{reg}")
        e(f"v_cmp_ne_u32 vcc, s{tag or sTAG}, v{reg}\ns_cbranch_vccz {lab}_ok")
        sv, sl = list(e.vm), list(e.lg)
        def poll(e):
            e(reload); e("s_waitcnt vmcnt(0)"); e(f"v_cmp_ne_u32 vcc, s{tag or sTAG}, v{reg}")
        spin(e, lab, poll, None)
        e.vm, e.lg = sv, sl
    return f
def flag_store(sreg): return f"buffer_store_dword v{vTAG}, v{vSC}, s[{RWS}:{RWS+3}], s{sreg} offen sc1"

PARK = {0: 20, 1: 28, 2: 16, 3: 24}
def park_units():
    L = []
    for n in (2, 3, 0, 1):
        for k in range(4):
            tr = vTR + 2 * (k & 1); src = 8 * n + 2 * k
            L += [f"v_accvgpr_read_b32 v{tr}, a{src}", f"v_accvgpr_read_b32 v{tr+1}, a{src+1}", f"v_cvt_pk_bf16_f32 v{vPK+k}, v{tr}, v{tr+1}"]
        L += [f"v_accvgpr_write_b32 a{PARK[n]+k}, v{vPK+k}" for k in range(4)]
    return L
def parked_stores():
    L = []
    for n in range(4):
        L += [f"s_add_u32 s{sT+7}, s{sST}, {n * 8192}", (f"buffer_store_dwordx4 a[{PARK[n]}:{PARK[n]+3}], v{vL16}, s[{RWS}:{RWS+3}], s{sT+7} offen sc1", "kv")]
    return L

def p1_main(e, T, bg):
    fills = [[[] for _ in range(64)] for _ in range(16)]
    LNE = OPT.get("lne", 6)
    def pos(ep):
        p = [(ep - 1, g) for g in (50, 54, 58, 62)] + [(ep, g) for g in (range(2, 47, OPT.get("sp0", 2)) if ep == 0 else range(2, 47, 3 if ep < 7 else 4) if ep < 15 else range(2, 30, 3))]
        return [x for x in p if 0 <= x[0] < 16]
    for ep in range(0, 16):
        L = []
        cj = ({0: 2, 1: 3, 3: 4, 7: 5, 9: 6, 11: 7} if OPT.get("cs", 0) == 0 else {1: 2, 2: 3, 4: 4, 7: 5, 9: 6, 11: 7} if OPT["cs"] == 1 else {0: 2, 2: 3, 4: 4, 7: 5, 9: 6, 11: 7}).get(ep)
        Lc = [(p1_cdma(cj, q), f"c{cj}") for q in range(8)] if cj else []
        Lw = [(p1_wdma(ep + 3, u), f"w{ep+3}") for u in range(4)] if ep + 3 < 16 else []
        L += Lw + Lc if ep < 5 else Lc + Lw
        if ep == 0 and not OPT.get("notouch1"):
            L += [(([], f"buffer_load_dword v146, v141, s[{R1}:{R1+3}], s91 offen offset:512"), "tc")]
        if ep == OPT.get("xe", 0):
            L += [(([], f"buffer_load_dwordx2 v[{40+2*k}:{41+2*k}], v36, s[{R0}:{R0+3}], s89 offen offset:{256*k}{NT('xnt')}"), "x") for k in range(5)]
        if ep == OPT.get("be", 2):
            L += [(([], f"buffer_load_dwordx2 v[{114+2*ft}:{115+2*ft}], v151, s[{R3}:{R3+3}], s90 offen offset:{32*ft}{NT('xnt')}"), "b1") for ft in range(4)]
        if OPT.get("tsp") and OPT.get("te", 2) <= ep < OPT.get("te", 2) + 5 * OPT["tsp"] and (ep - OPT.get("te", 2)) % OPT["tsp"] == 0:
            su = [grp([f"s_mov_b32 s{R3}, s{pW1}", f"s_and_b32 s{R3+1}, s{pW1+1}, 0xffff", f"s_mov_b32 s{R3+2}, {640*3456}", f"s_mov_b32 s{R3+3}, 0x20000"])] if ep == OPT.get("te", 2) else [f"s_add_u32 s94, s94, {4*3456}"]
            L += [(([] if ep == OPT.get("te", 2) else [f"s_add_u32 s93, s93, {4*8192}"], f"buffer_load_dword v149, v140, s[84:87], s93 offen"), "tc"),
                  ((su, f"buffer_load_dword v150, v145, s[{R3}:{R3+3}], s94 offen"), "tc")]
        if ep == OPT.get("ce", 99):
            code_touch.n += 1
            ct = code_touch("L_qhH", "L_code_end", 7, 154, "v155")
            L += [(([grp_all(ct[:-1])], ct[-1]), "tc")]
        if ep == OPT.get("te", 2) and not OPT.get("tsp"):
            L += [(([], f"buffer_load_dword v149, v140, s[84:87], s93 offen{NT('tnt')}"), "tc"),
                  (([grp([f"s_mov_b32 s84, s{pW1}", f"s_and_b32 s85, s{pW1+1}, 0xffff", f"s_mov_b32 s86, {640*3456}", "s_mov_b32 s87, 0x20000"])], f"buffer_load_dword v150, v145, s[84:87], s94 offen{NT('tnt')}"), "tc")]
        if ep == LNE: L += [(([], f"buffer_store_dwordx4 v[{128+4*k}:{131+4*k}], v126, s[{RWS}:{RWS+3}], s{sXS+k} offen sc1"), "xs") for k in range(3)]
        if ep == LNE + 2: L += [(([], flag_store(sQ + 2)), "fl")]
        if ep == 11: L += [(([grp([f"s_mov_b32 s{sT+5}, {WS_END}", f"s_cmp_eq_u32 s{sW}, 0", f"s_cselect_b32 s{sT+5}, {FXS}, s{sT+5}"]) if W0 else f"s_mov_b32 s{sT+5}, {FXS}"], f"buffer_load_dword v122, v127, s[{RWS}:{RWS+3}], s{sT+5} offen sc1"), "pa")]
        if ep == 13: L += [(d, "q0") for d in qh_dmas(0, True)]
        if ep == 14: L += [(d, "q1") for d in qh_dmas(1, True)]
        if ep == 15: L += [(d, "q2") for d in qh_dmas(2, True)] + [(d, "q3") for d in qh_dmas(3, True)]
        P = pos(ep); assert len(L) <= len(P)
        for (d, tag), (ks, g) in zip(L, P): put_dma(fills[ks], g, d, tag)
    for sidx in range(16):
        f = fills[sidx]
        for i in range(8):
            n = 8 * sidx + i + 2
            if n < 128:
                a, b = p1_wread(n); f[8 * i].append(a); f[8 * i + 1].append(b)
        if sidx < 15:
            for j in range(8): f[3 + 4 * j].append(p1_cread(sidx + 1, j))
            tags = [f"w{sidx+1}", f"c{(sidx+2)>>1}"]
            if sidx == LNE + 1: tags.append("xs")
            if sidx == 12:
                f[47].append(async_check(f"L_sa{T}", 122, f"buffer_load_dword v122, v127, s[{RWS}:{RWS+3}], s{sT+5} offen sc1", sTAGW))
            f[47].append(bar(tags))
        else:
            f[47].append(bar(["q0", "q1"]))
            for j in range(4): f[49 + 2 * j].append(qh_xread(0, j))
            for n in range(3):
                a, b = qh_wread(0, n, n); f[56 + 2 * n].append(a); f[57 + 2 * n].append(b)
    for k, x in enumerate(bias_init()): fills[8 + (k >> 4)][32 + (k & 15) + ((k & 15) == 15)].append(x)
    lb = Bg(); lb.push(ln_ops())
    LNK = OPT.get("lnk", 4)
    for ks in range(LNE - LNK, LNE): lb.place(fills[ks], 0, 64 if ks < LNE - 1 else 20, maxv=1 if LNK >= 4 else 2)
    assert not lb.q and LNE >= 6, len(lb.q)
    for k in range(5): fills[LNE - 1][22 + 4 * k].append(f"ds_write_b64 v76, v[{40+2*k}:{41+2*k}] offset:{k*2304}")
    for k in range(3): fills[LNE - 1][51 + 4 * k].append(f"ds_read_b128 v[{128+4*k}:{131+4*k}], v77 offset:{4608*k}")
    qs = [f"s_mov_b32 s{R0}, s{pWQ}", f"s_and_b32 s{R0+1}, s{pWQ+1}, 0xffff", f"s_mov_b32 s{R0+2}, {640*8192}", f"s_mov_b32 s{R0+3}, 0x20000",
          f"s_sub_u32 s{R1}, s{pW1}, 2048", f"s_subb_u32 s{R1+1}, s{pW1+1}, 0", f"s_and_b32 s{R1+1}, s{R1+1}, 0xffff",
          f"s_cmp_lt_u32 s{sU}, 27", f"s_cselect_b32 s{R1+2}, {640*3456 + 2048}, 0", f"s_mov_b32 s{R1+3}, 0x20000",
          f"s_lshl_b32 s{sM0a}, s{sW}, 12", f"s_mul_i32 s{sM0b}, s{sW}, 3072", f"s_add_u32 s{sM0b}, s{sM0b}, {96*1024}"]
    fills[12][4].append(grp(qs[:4])); fills[12][10].append(grp(qs[4:10])); fills[12][14].append(grp(qs[10:]))
    if OPT.get("contig"):
        U = p1_units()
        bg.push(U[0] + U[1]); bg.place(fills[15], 24, 46, maxv=2); assert not bg.q
        bg.push(U[2] + U[3]); bg.place(fills[15], 48, 64, maxv=2)
        bg.push([x for u in U[4:] for x in u])
    elif T == "K" or OPT.get("norole"):
        bg.push([x for u in p1_units() for x in u])
        bg.place(fills[15], 24, 46, maxv=2); bg.place(fills[15], 48, 64, maxv=2)
    else:
        bg.push(park_units())
        bg.place(fills[15], 19, 46, maxv=2); bg.place(fills[15], 48, 55, maxv=2)
        assert not bg.q
        bg.push(parked_stores() + [x for u in p1_units()[4:] for x in u])
    mfs = []
    for sidx in range(16):
        mf = []
        for i in range(8):
            for j in range(8):
                d = p1_acc(T, i, j); w = vWWIN + 4 * ((8 * sidx + i) & 3); c = vCB[sidx & 1] + 4 * j
                A, B = (w, c) if T == "K" else (c, w)
                mf.append(f"{MF} a[{d}:{d+3}], v[{A}:{A+3}], v[{B}:{B+3}], " + ("0" if sidx == 0 else f"a[{d}:{d+3}]"))
        mfs.append(mf)
    for sidx in range(16):
        run_gaps(e, mfs[sidx], fills[sidx], mfs[sidx + 1][0] if sidx < 15 else None)

vKVD = vXR
sKo, sVo, sMK, sMV = 76, 77, 78, 79
def kv_dma(kind, static_pair=None):
    so, mb, rs = (sKo, sMK, R2) if kind == "K" else (sVo, sMV, R3)
    L = []
    for k in range(4):
        su = []
        if k == 0:
            su = [f"s_add_u32 m0, s{sT+3}, s{mb}", f"s_and_b32 s{sT+3}, s{so}, 0xc000"]
        L.append((su, f"buffer_load_dwordx4 v{vKVD}, s[{rs}:{rs+3}], s{so} offen offset:{k*1024} {OPT.get('kvld', '')} lds".replace("  ", " ")))
    return L, f"s_add_u32 s{so}, s{so}, 16384"

def qh_main(e, T, hasH, bg):
    NI = 12 if hasH else 8; NG = 4 * NI; LA = 3
    NA = OPT.get("na", 7); BKV = OPT.get("bkv", 16); RATE = OPT.get("rate", 2) if hasH else 2
    fills = [[[] for _ in range(NG)] for _ in range(20)]
    bp = NG - 4 * LA - 1
    st = 3 if hasH else 2
    def pos(ep):
        p = [(ep - 1, g) for g in range(bp + 2, NG, st)] + [(ep, g) for g in range(5 if ep == 0 else 2, bp, st)]
        return [x for x in p if 0 <= x[0] < 20]
    pend = []; lastdma = None
    for ep in range(0, 16):
        if OPT.get("norole"):
            a = qh_dmas(ep + 4, hasH)
            pend += [(d, f"q{ep+4}x") for d in a[:4]] + [(d, f"q{ep+4}") for d in a[4:]]
        elif (ep < NA) == (T == "V"):
            a, b = qh_dmas(ep + 4, hasH), qh_dmas(ep + 4, hasH, 1 if T == "K" else -1)
            pend += [(d, f"q{ep+4}x") for d in a[:4] + b[:4]] + [(d, f"q{ep+4}") for d in a[4:] + b[4:]]
        for ks, g in pos(ep):
            if pend:
                d, tag = pend.pop(0); put_dma(fills[ks], g, d, tag); lastdma = (ks, g)
    assert not pend
    for sidx in range(20):
        f = fills[sidx]
        for i in range(NI):
            s2, i2 = divmod(NI * sidx + i + LA, NI)
            if s2 < 20:
                a, b = qh_wread(s2, i2, NI * sidx + i + LA); f[4 * i].append(a); f[4 * i + 1].append(b)
        if sidx < 19:
            for j in range(4): f[3 + 4 * j].append(qh_xread(sidx + 1, j))
            tags = [f"q{sidx+1}", f"q{sidx+2}x"]
            if sidx + 2 <= 3: tags.append(f"q{sidx+2}")
            if sidx == BKV: tags.append("kv")
            f[bp].append(bar(tags))
    fills[BKV][bp + 2].append((flag_store(sQ), "fl"))
    qs = [f"s_mul_i32 s{sT+4}, s{sH}, {HS}", f"s_add_u32 s{sT+5}, s{sT+4}, {KF}", f"s_add_u32 s{R2}, s{pWS}, s{sT+5}", f"s_addc_u32 s{R2+1}, s{pWS+1}, 0",
          f"s_and_b32 s{R2+1}, s{R2+1}, 0xffff", f"s_sub_u32 s{R2+2}, 16, s{sIDX}", f"s_lshl_b32 s{R2+2}, s{R2+2}, 15", f"s_mov_b32 s{R2+3}, 0x20000",
          f"s_add_u32 s{sT+5}, s{sT+4}, {VF}", f"s_add_u32 s{R3}, s{pWS}, s{sT+5}", f"s_addc_u32 s{R3+1}, s{pWS+1}, 0",
          f"s_and_b32 s{R3+1}, s{R3+1}, 0xffff", f"s_mov_b32 s{R3+2}, s{R2+2}", f"s_mov_b32 s{R3+3}, 0x20000",
          f"s_mov_b32 s{sKo}, 0", f"s_mov_b32 s{sVo}, 0", f"s_lshl_b32 s{sMK}, s{sW}, 12", f"s_add_u32 s{sMV}, s{sMK}, 0x10000",
          f"s_mul_i32 s{sPK}, s{sH}, {8*FS}", f"s_add_u32 s{sPK}, s{sPK}, {FKV}"]
    fills[18][6].append(grp(qs[:8])); fills[18][10].append(grp(qs[8:14])); fills[18][14].append(grp(qs[14:]))
    fills[19][2].append(f"v_lshlrev_b32 v{vTR}, 3, v{vL16}"); fills[19][6].append(f"v_and_b32 v{vTR}, {7*FS}, v{vTR}")
    hs = [f"s_mul_i32 s{sHA}, s{sIDX}, {54*8192}", f"s_lshl_b32 s{sT+5}, s{sU}, 14", f"s_add_u32 s{sT+5}, s{sT+5}, {HF}", f"s_lshl_b32 s{sT+4}, s{sW}, 10",
          f"s_add_u32 s{sT+5}, s{sT+5}, s{sT+4}", f"s_add_u32 s{sHA}, s{sHA}, s{sT+5}", f"s_sub_u32 s{sHB}, 15, s{sIDX}", f"s_mul_i32 s{sHB}, s{sHB}, {54*8192}",
          f"s_add_u32 s{sHB}, s{sHB}, s{sT+5}"] if hasH else [f"s_mov_b32 s{sHA}, {WS_END}", f"s_mov_b32 s{sHB}, {WS_END}"]
    fills[19][10].append(grp(hs))
    if OPT.get("cpf2") and hasH:
        code_touch.n += 1
        for k, x in enumerate(code_touch("L_attn", "L_p5", 3, vPK, f"v{vPK+1}")): fills[17][2 + 2 * k].append(x)
    if T == "K" or OPT.get("norole"): k0, g0 = 0, 0
    else: k0, g0 = lastdma[0], lastdma[1] + 1
    for sidx in range(k0, BKV):
        bg.place(fills[sidx], g0 if sidx == k0 else 0, NG, maxv=RATE, step=OPT.get("bstep", 1) if hasH else 1)
    assert not bg.q, len(bg.q)
    mfs = []
    for sidx in range(20):
        mf = []
        for i in range(NI):
            w = ((NI * sidx + i) & 3) * 4
            for j in range(4):
                d = qacc(i, j) if i < 8 else hacc(i - 8, j)
                x = XNB[sidx & 1] + 4 * j
                if sidx: c = f"v[{d}:{d+3}]"
                elif i < 8: c = "0"
                else: c = v(hacc(i - 8, 3), 4)
                mf.append(f"{MF} v[{d}:{d+3}], a[{w}:{w+3}], v[{x}:{x+3}], {c}")
        mfs.append(mf)
    for sidx in range(20):
        run_gaps(e, mfs[sidx], fills[sidx], mfs[sidx + 1][0] if sidx < 19 else None)
    e.vm = []
sPK = 83; sHA, sHB = 74, 75
PKL = f"buffer_load_dword v{vTR+1}, v{vTR}, s[{RWS}:{RWS+3}], s{sPK} offen sc1"
def kv_prologue_list():
    L = []
    for kind, tag in (("K", "k0"), ("V", "v0"), ("K", "k1"), ("K", "k2"), ("V", "v1"), ("K", "k3")):
        D, inc = kv_dma(kind)
        for k, (su, d) in enumerate(D):
            L.append((list(reversed(su)), d, tag, [inc] if k == 3 else []))
    return L
def sprinkle(e, ops, dm, every):
    for k, x in enumerate(ops):
        if dm and k % every == 0:
            for y in dm[0][0]: e(y)
        e(x)
        if dm and k % every == 0:
            su, d, tag, post = dm.pop(0); e(d, tag=tag)
            for y in post: e(y)
def flush_dma(e, dm):
    for su, d, tag, post in dm:
        for y in su: e(y)
        if su: e("s_nop 0")
        e(d, tag=tag)
        for y in post: e(y)
    dm.clear()

def check_drain_order(e):
    written = set()
    for i in e.l:
        if i.kind == "dsr": written |= {r for r in i.wr if r[0] == "a"}
        if i.mn == "v_accvgpr_read_b32" and (i.rd & written): raise AssertionError("drain order " + i.t)
        if i.mn == "v_accvgpr_write_b32": written |= i.wr

def q_pack(e):
    for n in range(16):
        for k in range(4):
            e(f"v_cvt_pk_bf16_f32 v{QACC + 4*n + k}, v{QACC + 8*n + 2*k}, v{QACC + 8*n + 2*k + 1}")

HPK = 192
def gelu(e, lab):
    a = -2.0 * math.sqrt(2.0 / math.pi) * math.log2(math.e)
    k1 = a / CS; k2 = a * 0.044715 / CS ** 3
    GP = OPT.get("gp", 3); dm = []
    e(f"s_mov_b32 s84, {f32(k2)}\ns_mov_b32 s85, {f32(k2)}\ns_mov_b32 s86, {f32(CS)}\ns_mov_b32 s87, {f32(CS)}")
    e(f"v_mov_b32 v160, {f32(k1)}\nv_mov_b32 v161, {f32(k1)}\nv_mov_b32 v162, {f32(CS)}\nv_mov_b32 v163, {f32(CS)}")
    for n in range(8):
        if n == max(0, GP - 2): e(PKL)
        if n == GP: async_check(lab, vTR + 1, PKL)(e); dm = kv_prologue_list()
        b = HACC + 8 * n; t = 164 + 8 * (n & 1); L = []
        L += [f"v_pk_mul_f32 v[{t+2*k}:{t+2*k+1}], v[{b+2*k}:{b+2*k+1}], v[{b+2*k}:{b+2*k+1}]" for k in range(4)]
        L += [f"v_pk_fma_f32 v[{t+2*k}:{t+2*k+1}], v[{t+2*k}:{t+2*k+1}], s[84:85], v[160:161]" for k in range(4)]
        L += [f"v_pk_mul_f32 v[{t+2*k}:{t+2*k+1}], v[{t+2*k}:{t+2*k+1}], v[{b+2*k}:{b+2*k+1}]" for k in range(4)]
        L += [f"v_exp_f32 v{t+k}, v{t+k}" for k in range(8)]
        L += [f"v_pk_fma_f32 v[{t+2*k}:{t+2*k+1}], v[{t+2*k}:{t+2*k+1}], s[86:87], v[162:163]" for k in range(4)]
        L += [f"v_rcp_f32 v{t+k}, v{t+k}" for k in range(8)]
        L += [f"v_pk_mul_f32 v[{t+2*k}:{t+2*k+1}], v[{t+2*k}:{t+2*k+1}], v[{b+2*k}:{b+2*k+1}]" for k in range(4)]
        L += [f"v_cvt_pk_bf16_f32 v{t+k}, v{t+2*k}, v{t+2*k+1}" for k in range(4)]
        L += [f"v_accvgpr_write_b32 a{HPK+4*n+k}, v{t+k}" for k in range(4)]
        sprinkle(e, L, dm, 11)
    return dm
def h_store(n):
    j, up = n >> 1, n & 1
    return ([f"s_add_u32 s{sT+7}, s{sHA + (j >> 1)}, {(j & 1) * 4096 + up * 8192}"],
            f"buffer_store_dwordx4 a[{HPK+4*n}:{HPK+4*n+3}], v{vL16}, s[{RWS}:{RWS+3}], s{sT+7} offen sc1")

def Qr(j, t): return 96 + (4 * j + t) * 4
QP = 224
def Sr(b, j, kt=0): return 160 + 32 * b + 8 * j + 4 * kt
def Pr(b, j): return 224 + 16 * b + 4 * j
def NEGM(j): return 32 + 4 * j
TRI = 48
def CT(k, kt): return (64, 52)[k] + 4 * kt
vMWo, vMRo, vMWs, vMRs = 60, 61, 62, 63
TT = 72
def LT(b, j): return 76 + 4 * b + j
def LL(j): return 84 + j
vCHK = 88
def Or(j, dt): return 32 * j + 4 * dt
FK, FV = 128, 160
vKR, vVR = 2, 3
vPN, vQW, vQR, vNW, vNR = 6, 8, 9, 12, 13
sTHR, sCNT, sRET, sCA, sCB, sP8K = 90, 91, 92, 94, 95, 89
BIG = f32(-1e30)
SEL = {k: r for k, r in zip([(m, kt) for m in range(4) for kt in range(2)], (10, 12, 14, 16, 20, 22, 24, 32))}

def attn_setup(e0, dm):
    L = []
    class C:
        def __call__(self, t, tag=None): L.extend(x.strip() for x in t.strip().split("\n") if x.strip())
    _attn_setup(C())
    G = []
    for x in L:
        if G and (x.startswith(("s_addc", "s_subb", "s_cselect")) or G[-1].split("\n")[-1].startswith("s_nop")): G[-1] += "\n" + x
        else: G.append(x)
    sprinkle(e0, G, dm, 8); flush_dma(e0, dm)
def _attn_setup(e):
    e(f"""
    v_lshrrev_b32 v89, 4, v{vL16}
    v_and_b32 v90, 15, v89
    v_lshrrev_b32 v89, 4, v89
    v_lshlrev_b32 v89, 2, v89
    v_sub_u32 v89, v89, v90
    v_mov_b32 v90, {BIG}
    v_mov_b32 v91, 0
    s_mov_b32 s{sTHR}, {f32(2.0**40)}
    v_mov_b32 v{vKR}, v{vL16}
    v_add_u32 v{vVR}, 0x18000, v{vL16}
    s_and_b32 s{sT}, s{sW}, 1
    s_lshl_b32 s{sP8K}, s{sT}, 13
    s_xor_b32 s{sT+1}, s{sW}, 1
    s_lshl_b32 s{sT}, s{sT}, 1
    """)
    for r in range(4):
        e(f"v_cmp_ge_i32 vcc, {-r}, v89\ns_nop 1\nv_cndmask_b32 v{TRI+r}, v90, v91, vcc")
    for (m, kt), r in SEL.items():
        if m < 2: e(f"s_sub_i32 s{sT+2}, s{sW}, {2*m + kt}")
        else: e(f"s_sub_i32 s{sT+2}, s{sW if m == 2 else sT+1}, s{sT}\ns_sub_i32 s{sT+2}, s{sT+2}, {kt}")
        e(f"s_cmp_eq_u32 s{sT+2}, 0\ns_cselect_b32 s{r}, 1.0, 0\ns_cmp_lt_i32 s{sT+2}, 0\ns_cselect_b32 s{r+1}, {BIG}, 0")
    e(f"""
    s_lshl_b32 s{sT+2}, s{sW}, 13
    s_add_u32 s{sT+2}, s{sT+2}, 0x20000
    v_add_u32 v{vQW}, s{sT+2}, v{vL16}
    v_xor_b32 v{vQR}, 0x2000, v{vQW}
    s_lshl_b32 s{sT+2}, s{sW}, 9
    s_add_u32 s{sT+2}, s{sT+2}, {112*1024}
    v_lshrrev_b32 v{vNW}, 1, v{vL16}
    v_add_u32 v{vNW}, s{sT+2}, v{vNW}
    v_xor_b32 v{vNR}, 0x200, v{vNW}
    s_lshr_b32 s{sT+2}, s{sW}, 1
    s_mul_i32 s{sT+2}, s{sT+2}, {92*1024}
    s_add_u32 s{sT+2}, s{sT+2}, {36*1024}
    s_lshl_b32 s{sT+4}, s{sP8K}, 1
    s_add_u32 s{sT+5}, s{sT+2}, s{sT+4}
    v_add_u32 v{vMWo}, s{sT+5}, v{vL16}
    s_xor_b32 s{sT+4}, s{sT+4}, 0x4000
    s_add_u32 s{sT+5}, s{sT+2}, s{sT+4}
    v_add_u32 v{vMRo}, s{sT+5}, v{vL16}
    s_lshl_b32 s{sT+2}, s{sW}, 10
    s_add_u32 s{sT+2}, s{sT+2}, {68*1024}
    v_add_u32 v{vMWs}, s{sT+2}, v{vL16}
    v_xor_b32 v{vMRs}, 0x400, v{vMWs}
    """)
    srd(e, R0, pWO, 4096 * 1280); srd(e, R1, pW2, 1728 * 1280)
    e(f"""
    s_lshl_b32 s{sT}, s2, 2
    s_add_u32 s{sT}, s{sT}, s{sW}
    v_lshrrev_b32 v5, 4, v{vL16}
    s_mul_i32 s{sT+1}, s{sT}, 40
    v_min_u32 v4, 39, v5
    v_add_u32 v4, s{sT+1}, v4
    v_lshlrev_b32 v4, 7, v4
    s_mul_i32 s{sT+1}, s{sT}, 17
    v_min_u32 v5, 16, v5
    v_add_u32 v5, s{sT+1}, v5
    v_lshlrev_b32 v5, 7, v5
    """)
    e(f"""
    s_lshl_b32 s{sT}, s{sH}, 15
    s_lshl_b32 s{sT+1}, s{sW}, 10
    s_add_u32 s{sT}, s{sT}, s{sT+1}
    s_add_u32 s{sT}, s{sT}, {CF}
    s_lshl_b32 s{sCA}, s{sIDX}, 20
    s_add_u32 s{sCA}, s{sCA}, s{sT}
    s_sub_u32 s{sCB}, 15, s{sIDX}
    s_lshl_b32 s{sCB}, s{sCB}, 20
    s_add_u32 s{sCB}, s{sCB}, s{sT}
    """)

def fread(base, areg, off, f): return f"ds_read_b128 a[{base+4*f}:{base+4*f+3}], v{areg} offset:{off + f * 1024}"
def kfread(off, r): return f"ds_read_b128 a[{FK+4*r}:{FK+4*r+3}], v{vKR} offset:{off + (2 * (r & 3) + (r >> 2)) * 1024}"
def kread(n, f): return kfread((n & 3) * 8192, f)

def xreduce(e, op, regs, tmps):
    for sw in ("v_permlane16_swap_b32", "v_permlane32_swap_b32"):
        for r, t in zip(regs, tmps): e(f"v_mov_b32 v{t}, v{r}")
        e("s_nop 1")
        for r, t in zip(regs, tmps): e(f"{sw} v{r}, v{t}")
        e("s_nop 0")
        for r, t in zip(regs, tmps): e(f"{op} v{r}, v{r}, v{t}")

def max8(e, d, sreg):
    e(f"v_max3_f32 v{d}, v{sreg}, v{sreg+1}, v{sreg+2}\nv_max3_f32 v{d}, v{d}, v{sreg+3}, v{sreg+4}\nv_max3_f32 v{d}, v{d}, v{sreg+5}, v{sreg+6}\nv_max_f32 v{d}, v{d}, v{sreg+7}")

def sm_ops(b, J):
    L = []; k = 0
    for j in J:
        for x in range(8):
            t = TT + (k & 3); tp = TT + ((k - 1) & 3)
            fol = []
            if x == 1: fol.append(f"v_add_f32 v{LT(b, j)}, v{tp}, v{t}")
            elif x > 1: fol.append(f"v_add_f32 v{LT(b, j)}, v{LT(b, j)}, v{t}")
            if x & 1: fol.append(f"v_cvt_pk_bf16_f32 v{Pr(b, j) + (x >> 1)}, v{tp}, v{t}")
            L.append((f"v_exp_f32 v{t}, v{Sr(b, j) + x}", fol)); k += 1
    return L

FBS = {}
STUBS = []
class Blk:
    def __init__(self, name, prev, cur): self.name, self.prev, self.cur, self.first = name, prev, cur, prev is None
    def act(self, n):
        if n < 0: return {None: [], "F": [3, 2, 1, 0], "D": [3, 2, 1], "Y": [3, 2, 1, 0]}[self.prev]
        if self.cur == "D" and n in (2, 3): return [3, 2, 1]
        if self.cur == "E": return ([3, 2, 1, 0], [3, 1], [], [], [])[n]
        return [3, 2, 1, 0]
    def y(self, n): return self.prev == "Y" if n < 0 else (self.cur in "YE" or (n == 4 and self.cur == "D"))
    def masked(self, n):
        if self.cur == "D": return {0 if n < 2 else 1: n & 1}
        if self.cur == "E" and n < 2: return {2 + n: 2, n: 3}
        return {}

def attn_block(e, bk):
    nm = bk.name; E_ = bk.cur == "E"; sw = bk.prev == "D"
    canon = [(regs_of(f"a[{FK+4*f}:{FK+4*f+3}]"), None) for f in range(8)]
    e.lg = list(canon) if bk.first else canon[4:]
    nb = [0, 0]
    if sw:
        for j in range(2):
            for r in range(4): e(f"v_mov_b32 v{NEGM(j)+r}, v{vPN+j}")
    for lp in range(4):
        nq, ns, nv = lp, lp - 1, lp - 2
        JQ, JS, JV = bk.act(nq), bk.act(ns), bk.act(nv); JN = JQ
        bq, bs, bv = nq & 1, ns & 1, nv & 1
        pre = []
        msk = bk.masked(nq); first_qk = bk.first and lp == 0
        cti = {}
        for k, (j, m) in enumerate(msk.items()):
            cti[j] = k
            for kt in range(2):
                c = CT(k, kt); sel = SEL[(m, kt)]
                pre.append(f"v_mov_b32 v{c+3}, s{sel+1}" if first_qk else f"v_add_f32 v{c+3}, s{sel+1}, v{NEGM(j)}")
                pre += [f"v_fma_f32 v{c+r}, v{TRI+r}, s{sel}, v{c+3}" for r in range(4)]
        FVc = FK if (E_ and lp == 2) else FV
        mf = []; kstart = []; vstart = []
        kstart = [len(JQ) * f for f in range(8)] if JQ else []
        for kt in range(2):
            if OPT.get("nochain"): order = [(j, t, t) for t in range(4) for j in JQ]
            else: order = [(j, (3 - z if k & 1 else z), z) for k, j in enumerate(JQ) for z in range(4)]
            for j, t, z in order:
                d = Sr(bq, j, kt); f = 4 * kt + t
                c = v(d, 4) if z else v(CT(cti[j], kt), 4) if j in msk else "0" if first_qk else v(NEGM(j), 4)
                q = ac(QP + 16 * j + 4 * t, 4) if (j < 2 and bk.y(nq)) else v(Qr(j, t), 4)
                mf.append(f"{MF} v[{d}:{d+3}], a[{FK+4*f}:{FK+4*f+3}], {q}, {c}")
        fresh = lambda j: nv == 0 and (bk.first or (sw and j < 2))
        for f in range(8 if JV else 0):
            vstart.append(len(mf))
            for j in JV:
                o = Or(j, f)
                mf.append(f"{MF} a[{o}:{o+3}], a[{FVc+4*f}:{FVc+4*f+3}], v[{Pr(bv, j)}:{Pr(bv, j)+3}], " + ("0" if fresh(j) else ac(o, 4)))
        NG = len(mf)
        fill = [[] for _ in range(NG)]
        voff = lambda n: (n & 1) * 16384 if bk.y(n) else (n & 3) * 8192
        vtog = [f"v_xor_b32 v{vVR}, 0x8000, v{vVR}"] + ([f"v_add_u32 v{vVR}, s{sP8K}, v{vVR}"] if sw and lp == 1 else [])
        if JV and JQ:
            for f in range(8): fill[kstart[f] + 1].append(fread(FV, vVR, voff(nv), f))
        if E_ and lp == 1:
            for x in vtog: fill[vstart[0]].append(x)
            for f in range(8): fill[vstart[f] + 1].append(fread(FK, vVR, 0, f))
        elif E_ and lp == 2:
            for f in range(8): fill[vstart[f] + 1].append(fread(FV, vVR, 16384, f))
        elif lp == 1 or (lp == 3 and bk.cur == "Y"):
            for k, x in enumerate(vtog): fill[(vstart[1] + 1 + 8 * k) if JV else 1].append(x)
        needK = not E_ or lp == 0; late_k = []
        if needK:
            nk = lp + 1
            if lp == 3 or (lp == 1 and bk.cur == "Y"):
                fill[OPT.get("kx", 5)].append(f"v_xor_b32 v{vKR}, 0x8000, v{vKR}")
                if bk.cur == "D": fill[13].append(f"v_add_u32 v{vKR}, s{sP8K}, v{vKR}")
            koff = (nk & 1) * 16384 if bk.y(nk) else (nk & 3) * 8192
            for f in range(8):
                if JV: fill[vstart[f] + 1].append(kfread(koff, f))
                elif f < 4: fill[kstart[4] + 2 * f + 1].append(kfread(koff, f))
                else: late_k.append(kfread(koff, f))
        def needf(base, f0):
            def g(e): e.need(f"a[{base+4*f0}:{base+4*f0+15}]")
            return g
        if JQ and JV:
            fill[kstart[4] - 2].append(needf(FK, 4)); fill[vstart[0] - 2].append(needf(FV, 0))
        if JV:
            fill[vstart[4] - 2].append(needf(FVc, 4))
            if needK or (E_ and lp == 1): fill[NG - 2].append(needf(FK, 0))
            if E_ and lp == 2: fill[NG - 2].append(needf(FV, 0))
        grp_k = (bk.cur == "Y") or (not E_ and lp & 1 == 0 and not first_qk)
        grp_v = (nm == "YD" and lp == 0) or (bk.cur == "Y" and not (sw and lp == 0)) or (bk.cur in "FD" and lp & 1)
        vlast = None; gbar = vstart[0] if JV else -1
        for kind, on in (("K", grp_k), ("V", grp_v)):
            if not on: continue
            L, inc = kv_dma(kind)
            g0, span = (0, 8 * len(JQ)) if kind == "K" else ((vstart[0], 8 * len(JV)) if JV else (0, NG))
            st = span // 4
            dp = OPT.get("dpos", 1) if st >= 8 else 1
            if OPT.get("spread") and g0 + dp >= 5:
                fill[g0 + dp - 5 if g0 + dp - 5 != gbar else g0 + dp - 7].append(L[0][0][1]); fill[g0 + dp - 3 if g0 + dp - 3 != gbar else g0 + dp - 1].append(L[0][0][0])
            else:
                for x in reversed(L[0][0]): fill[max(0, g0 - 4)].append(x)
            for k, d in enumerate(L): fill[g0 + dp + st * k].append(d[1])
            gi = g0 + dp + 1 + st * 3
            fill[gi if gi < NG else NG - 1].append(inc if gi < NG else ("BG", inc))
            if kind == "V": vlast = g0 + dp + st * 3
        def ride(L, g0, g1, tag=None):
            st = max(2, (g1 - g0) // len(L))
            for k, x in enumerate(L):
                g = (g0 + st * k) | 1
                while any(_kind(y) in ("vml", "vms") for y in fill[g]): g += 2
                put_dma(fill, g, x, tag)
        cst = lambda a, b: [ctx_store(96, sCA, n) for n in range(a, b)]
        if bk.first and lp >= 2: ride([h_store(n) for n in range(4 * lp - 8, 4 * lp - 4)], 4, NG - 4)
        if nm == "TY" and lp >= 2: ride(cst(2 * lp - 4, 2 * lp - 2), 10, NG)
        if nm == "YD" and lp < 2: ride(cst(4 + 2 * lp, 6 + 2 * lp), 6, NG - 8)
        if nm == "TYD" and lp == 2: ride(cst(0, 4), 20, NG)
        if E_ and lp == 1: fill[3].append(PHL)
        if E_ and lp == 2: ride(p5_dmas(0), 2, 20)
        if first_qk:
            for k in range(8): fill[4 * k + 1].append(f"ds_write_b128 v{vQW}, v[{Qr(2, 0)+4*k}:{Qr(2, 0)+4*k+3}] offset:{k*1024}")
        if bk.first and lp == 1: fill[2].append(f"ds_read_b64 v[{vPN}:{vPN+1}], v{vNR}")
        if bk.first and lp == 2:
            for k in range(8): fill[kstart[k] + 2 + (len(JQ) & 1)].append(fread(QP, vQR, 0, k))
        if E_ and lp == 3:
            for k in range(8): fill[2 * k + 1].append(f"ds_write_b128 v{vMWo}, a[{Or(0, k)}:{Or(0, k)+3}] offset:{k*1024}")
        if nm in ("DF", "TY") and lp == 3: ride([([], flag_store(sQ + 1))], NG - 3, NG)
        if nm in ("DF", "TY") and lp == 0:
            ride([([], f"buffer_load_dword a192, v4, s[{R0}:{R0+3}], 0 offen"), ([], f"buffer_load_dword a193, v5, s[{R1}:{R1+3}], 0 offen")], NG - 9, NG - 1)
        if (lp & 1 or bk.cur in "YE") and not (E_ and lp == 3):
            gb = vstart[0] if JV else -1
            cnt = lambda kinds: sum(1 for g in range(gb) for x in fill[g] if _kind(x) in kinds)
            if E_: n = (8 + nb[0], nb[0], nb[1])[lp] + cnt(("vml", "vms"))
            else: n = 12 + (4 + cnt(("vms",)) if (bk.first and lp == 3) else 0)
            def mkb(n, lp=lp):
                def f(e):
                    lg = list(e.lg)
                    if OPT.get("ticks"): e("s_waitcnt lgkmcnt(0)")
                    z = (bk.first and lp == 1) or (E_ and lp == 2)
                    tick_pre(e); e(f"s_waitcnt vmcnt({n}){' lgkmcnt(0)' if z else ''}\ns_barrier"); tick_post(e)
                    e.lg = [] if z else lg
                return f
            if E_ and lp == 2: fill[gb].insert(0, async_check(f"L_h{nm}", 20, PHL, sTAGW))
            if OPT.get("spread") and gb >= 6 and not E_ and not OPT.get("ticks") and not any(_kind(x) in ("vml", "vms") for g in range(gb - 4, gb) for x in fill[g]):
                fill[gb - 4].append(f"s_waitcnt vmcnt({n})"); fill[gb].insert(0, "s_barrier")
            elif gb >= 0: fill[gb].insert(1 if (E_ and lp == 2) else 0, mkb(n))
            else: pre.insert(0, mkb(n))
        if JS:
            ops = sm_ops(bs, JS)[2:]
            W = NG - 4 if JN else min(NG - 2, 2 * len(ops))
            lastg = 0; tile_done = []
            for k, (ex, fol) in enumerate(ops):
                g = (k * W) // len(ops)
                if W >= 2 * len(ops): g &= ~1
                fill[g].append(ex)
                for x in fol: fill[g + 1].append(x)
                lastg = g + 1
                if (k + 2) % 8 == 7: tile_done.append(lastg)
            lts = [LT(bs, j) for j in JS]
            ck = []
            if len(lts) == 4: fill[tile_done[2] + 2].append(f"v_max3_f32 v{vCHK}, v{lts[0]}, v{lts[1]}, v{lts[2]}"); ck.append(f"v_max_f32 v{vCHK}, v{vCHK}, v{lts[3]}")
            elif len(lts) == 3: ck.append(f"v_max3_f32 v{vCHK}, v{lts[0]}, v{lts[1]}, v{lts[2]}")
            else: ck.append(f"v_max_f32 v{vCHK}, v{lts[0]}, v{lts[1]}")
            ck.append(f"v_cmp_lt_f32 vcc, s{sTHR}, v{vCHK}")
            gck = max(lastg, NG - 3)
            assert gck <= NG - 2
            J3 = [(j, not (sw and lp == 1 and j < 2), not (sw and lp == 0 and j < 2)) for j in JS]
            fb = f"FB{bs}_" + "".join(f"{j}{'' if a else 'n'}{'' if b else 'l'}" for j, a, b in J3)
            FBS[fb] = (bs, J3)
            site = f"L_{nm}_{lp}"
            STUBS.append((site, fb))
            for x in ck: fill[gck].append(x)
            fill[NG - 1].append(grp([f"s_cbranch_vccnz {site}_fb", f"{site}_ret:"]))
        for k, j in enumerate(JV):
            g = OPT.get("l0", 1) if k == 0 else min(NG - 5, 16 * k - 3)
            fill[g].append(f"v_mov_b32 v{LL(j)}, v{LT(bv, j)}" if fresh(j) else f"v_add_f32 v{LL(j)}, v{LL(j)}, v{LT(bv, j)}")
        head = sm_ops(bq, JN)[:2] if JN else []
        if head and not first_qk:
            fill[NG - 4].append(head[0][0]); fill[NG - 2].append(head[1][0])
            for x in head[1][1]: fill[NG - 1].append(x)
        if first_qk: e.need(f"a[{FK}:{FK+15}]")
        for x in pre:
            if callable(x): x(e)
            else: e(x)
        if pre: e("s_nop 1")
        for g in range(NG):
            c = sum(1 for x in fill[g] if _kind(x) in ("vml", "vms"))
            nb[0] += c; nb[1] = 0 if g == vlast else nb[1] + c
        run_gaps(e, mf, fill)
        for x in late_k: e(x)
        if sw and lp == 1: attn_epilogue(e)
        if E_ and lp == 0: p5_setup(e)
        if first_qk:
            e("s_nop 7")
            for j in range(4): max8(e, NEGM(j), Sr(0, j))
            xreduce(e, "v_max_f32", [NEGM(j) for j in range(4)], [NEGM(j) + 1 for j in range(4)])
            for j in range(4):
                e(f"v_sub_f32 v{NEGM(j)}, 0, v{NEGM(j)}")
                for r in range(1, 4): e(f"v_mov_b32 v{NEGM(j)+r}, v{NEGM(j)}")
            e(f"ds_write_b64 v{vNW}, v[{NEGM(2)+3}:{NEGM(2)+4}]".replace(f"v[{NEGM(2)+3}:{NEGM(2)+4}]", "v[10:11]").replace("ds_write", f"v_mov_b32 v10, v{NEGM(2)}\nv_mov_b32 v11, v{NEGM(3)}\nds_write"))
            for j in (3, 2, 1, 0):
                for x in range(8): e(f"v_add_f32 v{Sr(0, j)+x}, v{Sr(0, j)+x}, v{NEGM(j)}")
            e(head[0][0]); e(head[1][0]); e("s_nop 0")
            for x in head[1][1]: e(x)
    if E_: e(f"s_waitcnt vmcnt({4 if nm == 'TYD' else 0})")
    if nm == "TYD":
        for su, x in cst(4, 8): e(su[0]); e(x)
    if not E_:
        assert len(e.lg) <= 4 and [r for r, _ in e.lg] == [r for r, _ in canon][8 - len(e.lg):], (nm, len(e.lg))

def ctx_store(pk, sbase, n):
    return ([f"s_add_u32 s{sT+7}, s{sbase}, {(n >> 2) * 4096 + (n & 3) * 8192}"],
            f"buffer_store_dwordx4 v[{pk+4*n}:{pk+4*n+3}], v{vL16}, s[{RWS}:{RWS+3}], s{sT+7} offen sc1")
def attn_epilogue(e):
    e("s_nop 7")
    xreduce(e, "v_add_f32", [LL(0), LL(1)], [89, 90])
    for j in range(2): e(f"v_rcp_f32 v{LL(j)}, v{LL(j)}")
    for j in range(2):
        e(f"v_mov_b32 v94, v{LL(j)}\nv_mov_b32 v95, v{LL(j)}")
        for k in range(16):
            src = Or(j, 0) + 2 * k; tr = 90 + 2 * (k & 1)
            e(f"v_accvgpr_read_b32 v{tr}, a{src}\nv_accvgpr_read_b32 v{tr+1}, a{src+1}")
            e(f"v_pk_mul_f32 v[{tr}:{tr+1}], v[{tr}:{tr+1}], v[94:95]")
            e(f"v_cvt_pk_bf16_f32 v{96+16*j+k}, v{tr}, v{tr+1}")

def attn_final(e):
    e.lg = [(set(), None)] * 8
    e(f"v_mov_b32 v72, v{LL(0)}\nv_mov_b32 v73, v{LL(1)}\nv_mov_b32 v74, v{NEGM(0)}\nv_mov_b32 v75, v{NEGM(1)}\ns_nop 3")
    e(f"ds_write_b128 v{vMWs}, v[72:75]")
    for k in range(8): e(f"ds_write_b128 v{vMWo}, a[{Or(1, k)}:{Or(1, k)+3}] offset:{8192 + k*1024}")
    e("s_waitcnt lgkmcnt(0)\ns_barrier")
    e(f"ds_read_b128 v[72:75], v{vMRs}")
    for k in range(14): e(f"ds_read_b128 v[{160+4*k}:{163+4*k}], v{vMRo} offset:{k*1024}")
    for su, x in p5_dmas(1):
        for y in reversed(su): e(y)
        if su: e("s_nop 0")
        e(x)
    e.need("v[72:75]")
    for k in range(14, 16): e(f"ds_read_b128 v[{160+4*k}:{163+4*k}], v{vMRo} offset:{k*1024}")
    for j in range(2):
        e(f"v_min_f32 v89, v{74+j}, v{NEGM(2+j)}\nv_sub_f32 v{64+2*j}, v89, v{NEGM(2+j)}\nv_sub_f32 v{68+2*j}, v89, v{74+j}")
    for j in range(2): e(f"v_exp_f32 v{64+2*j}, v{64+2*j}\nv_exp_f32 v{68+2*j}, v{68+2*j}")
    for j in range(2): e(f"v_mul_f32 v{LL(2+j)}, v{LL(2+j)}, v{64+2*j}")
    for j in range(2): e(f"v_fmac_f32 v{LL(2+j)}, v{72+j}, v{68+2*j}")
    xreduce(e, "v_add_f32", [LL(2), LL(3)], [89, 90])
    for j in range(2): e(f"v_rcp_f32 v{LL(2+j)}, v{LL(2+j)}")
    e("s_nop 0")
    for j in range(2):
        for b in (64, 68): e(f"v_mul_f32 v{b+2*j}, v{b+2*j}, v{LL(2+j)}\nv_mov_b32 v{b+2*j+1}, v{b+2*j}")
    for j in range(2):
        for k in range(16):
            src = Or(2 + j, 0) + 2 * k; tr = 90 + 2 * (k & 1); rx = 160 + 32 * j + 2 * k
            e(f"v_accvgpr_read_b32 v{tr}, a{src}\nv_accvgpr_read_b32 v{tr+1}, a{src+1}")
            e(f"v_pk_mul_f32 v[{tr}:{tr+1}], v[{tr}:{tr+1}], v[{64+2*j}:{65+2*j}]")
            e.need(f"v[{rx}:{rx+1}]")
            e(f"v_pk_fma_f32 v[{tr}:{tr+1}], v[{rx}:{rx+1}], v[{68+2*j}:{69+2*j}], v[{tr}:{tr+1}]")
            e(f"v_cvt_pk_bf16_f32 v{128+16*j+k}, v{tr}, v{tr+1}")
            if k & 3 == 3:
                su, x = ctx_store(128, sCB, 4 * j + (k >> 2)); e(su[0]); e(x)
            if j == 1:
                for x in p5_reads(0)[2 * k:2 * k + 2]: e(x)

def fallback(e, name, b, J3):
    e(f"{name}:\ns_nop 15")
    for j, scale, nxt in J3:
        d = 89
        max8(e, d, Sr(b, j))
        xreduce(e, "v_max_f32", [d], [90])
        e(f"v_max_f32 v{d}, 0, v{d}\nv_sub_f32 v90, 0, v{d}\nv_exp_f32 v90, v90")
        for x in range(8): e(f"v_sub_f32 v{Sr(b, j)+x}, v{Sr(b, j)+x}, v{d}")
        if nxt:
            for r in range(4): e(f"v_sub_f32 v{NEGM(j)+r}, v{NEGM(j)+r}, v{d}")
            for x in range(8): e(f"v_sub_f32 v{Sr(b ^ 1, j)+x}, v{Sr(b ^ 1, j)+x}, v{d}")
        if scale:
            e(f"v_mul_f32 v{LL(j)}, v{LL(j)}, v90")
            for x in range(0, 32, 2):
                o = Or(j, 0) + x
                e(f"v_accvgpr_read_b32 v91, a{o}\nv_accvgpr_read_b32 v92, a{o+1}\nv_mul_f32 v91, v91, v90\nv_mul_f32 v92, v92, v90\nv_accvgpr_write_b32 a{o}, v91\nv_accvgpr_write_b32 a{o+1}, v92")
    for ex, fol in sm_ops(b, [j for j, _, _ in J3]):
        e(ex); e("s_nop 0")
        for x in fol: e(x)
    for ex, fol in sm_ops(b ^ 1, [3])[:2]: e(ex)
    e(f"s_nop 1\ns_setpc_b64 s[{sRET}:{sRET+1}]")

def attn_pre(e):
    e.need(vmtags=("k0",), lg0=True)
    e("s_barrier")
    for f in range(8): e(kread(0, f))

def attention(e):
    B = {k: Blk(k, p, c) for k, p, c in (("fFF", None, "F"), ("fDF", None, "D"), ("FF", "F", "F"), ("DF", "F", "D"),
                                          ("TY", "D", "Y"), ("YY", "Y", "Y"), ("YD", "Y", "E"), ("TYD", "D", "E"))}
    segs = {}
    def seg(name):
        n0 = len(e.l); attn_block(e, B[name]); segs[name] = e.l[n0:]
    e(f"s_cmp_eq_u32 s{sIDX}, 0\ns_cbranch_scc1 L_fDF")
    seg("fFF")
    e(f"s_sub_u32 s{sCNT}, s{sIDX}, 1\ns_cmp_eq_u32 s{sCNT}, 0\ns_cbranch_scc1 L_DF\n.p2align 3\nL_FF:")
    seg("FF")
    e(f"s_sub_u32 s{sCNT}, s{sCNT}, 1\ns_cmp_lg_u32 s{sCNT}, 0\ns_cbranch_scc1 L_FF\nL_DF:")
    seg("DF")
    e(f"s_cmp_eq_u32 s{sIDX}, 7\ns_cbranch_scc1 L_TYD\nL_TY:")
    seg("TY")
    stamp(e, 7)
    e(f"s_sub_u32 s{sCNT}, 6, s{sIDX}\ns_cmp_eq_u32 s{sCNT}, 0\ns_cbranch_scc1 L_YD\n.p2align 3\nL_YY:")
    seg("YY")
    e(f"s_sub_u32 s{sCNT}, s{sCNT}, 1\ns_cmp_lg_u32 s{sCNT}, 0\ns_cbranch_scc1 L_YY\nL_YD:")
    seg("YD")
    e("L_fin:")
    def out_of_line():
        e("L_fDF:"); seg("fDF")
        e("s_branch L_TY\nL_TYD:"); seg("TYD")
        e("s_branch L_fin")
        for site, fb in STUBS:
            e(f"{site}_fb:\ns_call_b64 s[{sRET}:{sRET+1}], {fb}\ns_branch {site}_ret")
        for name, (b, J3) in FBS.items():
            n0 = len(e.l); fallback(e, name, b, J3); segs[name] = e.l[n0:]
    return segs, out_of_line

sMT, sNT, sS, sAH, sAC, sWH, sWC, sXO, sFH, sFC = 64, 65, 66, 67, 68, 69, 70, 76, 77, 78
sMA, sMW, sBO, sEXs, sEXl, sFE = 79, 80, 81, 82, 83, 84
SLOT = 36864; SLMAP = (0, 2, 1, 3)
vWD5, vRB, vRE, vRO, vP1, vP2, vL4K, vXO, vBO = 4, 10, 12, 14, 16, 17, 9, 18, 19
vRA = 24; sEX3 = 85
PHL = f"buffer_load_dword v20, v{vP1}, s[{RWS}:{RWS+3}], s{sFH} offen sc1"
def p5_setup(e):
    e(f"""
    s_lshr_b32 s{sMT}, s{sX}, 2
    s_lshl_b32 s{sMT}, s{sMT}, 3
    s_lshr_b32 s{sT}, s2, 3
    s_and_b32 s{sT}, s{sT}, 7
    s_add_u32 s{sMT}, s{sMT}, s{sT}
    s_lshr_b32 s{sNT}, s2, 6
    s_and_b32 s{sS}, s{sX}, 3
    s_sub_u32 s{sT+1}, 15, s{sMT}
    s_min_u32 s{sT}, s{sMT}, s{sT+1}
    s_mul_i32 s{sT}, s{sT}, {32*FS}
    s_add_u32 s{sFH}, s{sT}, {FH}
    s_mul_i32 s{sT+1}, s{sS}, {8*FS}
    s_add_u32 s{sFC}, s{sT}, s{sT+1}
    s_add_u32 s{sFC}, s{sFC}, {FC}
    v_lshlrev_b32 v{vP1}, 3, v{vL16}
    v_and_b32 v{vP2}, {7*FS}, v{vP1}
    v_and_b32 v{vP1}, {31*FS}, v{vP1}
    """)
    if W0: e(f"s_cmp_eq_u32 s{sW}, 0\ns_cselect_b32 s{sFH}, s{sFH}, {WS_END}\ns_cselect_b32 s{sFC}, s{sFC}, {WS_END}")
    e(f"""
    s_mul_i32 s{sT+3}, s{sMT}, {54*8192}
    s_add_u32 s{sT+3}, s{sT+3}, {HF}
    s_lshl_b32 s{sT+4}, s{sMT}, 20
    s_add_u32 s{sT+4}, s{sT+4}, {CF}
    """)
    srd(e, R0, pWS, 54 * 8192, f"s{sT+3}")
    srd(e, R1, pWS, 128 * 8192, f"s{sT+4}")
    srd(e, R2, pW2, 1728 * 1280)
    srd(e, R3, pWO, 4096 * 1280)
    e(f"""
    s_lshl_b32 s{sMA}, s{sW}, 12
    s_mul_i32 s{sAH}, s{sS}, {14*8192}
    s_add_u32 s{sAH}, s{sAH}, s{sMA}
    s_lshl_b32 s{sAC}, s{sS}, 18
    s_add_u32 s{sAC}, s{sAC}, s{sMA}
    s_mul_i32 s{sMW}, s{sW}, 5120
    s_add_u32 s{sMW}, s{sMW}, 16384
    s_mul_i32 s{sT}, s{sW}, {16*1280}
    s_mul_i32 s{sBO}, s{sNT}, 320
    s_add_u32 s{sT}, s{sT}, s{sBO}
    s_mul_i32 s{sWH}, s{sS}, {14*32*1280}
    s_add_u32 s{sWH}, s{sWH}, s{sT}
    s_mul_i32 s{sWC}, s{sS}, {1024*1280}
    s_add_u32 s{sWC}, s{sWC}, s{sT}
    v_lshrrev_b32 v{vXO}, 4, v{vL16}
    """)
    for k in range(5):
        e(f"""
        v_add_u32 v{vRB}, {64*k}, v{vXO}
        v_mul_u32_u24 v{vRB+1}, 3277, v{vRB}
        v_lshrrev_b32 v{vRB+1}, 16, v{vRB+1}
        v_mul_u32_u24 v{vRE}, 20, v{vRB+1}
        v_sub_u32 v{vRB}, v{vRB}, v{vRE}
        v_lshrrev_b32 v{vRE}, 1, v{vRB+1}
        v_and_b32 v{vRE}, 2, v{vRE}
        v_xor_b32 v{vRB}, v{vRB}, v{vRE}
        v_mul_u32_u24 v{vRB+1}, 1280, v{vRB+1}
        v_lshl_add_u32 v{vWD5+k}, v{vRB}, 4, v{vRB+1}
        """)
        if 0 < k < 4: e(f"v_subrev_u32 v{vWD5+k}, {1024*k}, v{vWD5+k}")
    e(f"""
    s_and_b32 s{sT}, s{sW}, 1
    s_lshl_b32 s{sT+1}, s{sT}, 12
    v_add_u32 v{vRB}, s{sT+1}, v{vL16}
    s_lshr_b32 s{sT+1}, s{sW}, 1
    s_mul_i32 s{sT+2}, s{sT+1}, 160
    s_add_u32 s{sBO}, s{sBO}, s{sT+2}
    s_add_u32 s{sT+2}, s{sT+2}, 16384
    v_lshrrev_b32 v{vRE}, 2, v{vXO}
    v_mul_u32_u24 v{vRE}, 320, v{vRE}
    v_and_b32 v{vRO}, 3, v{vXO}
    v_lshl_add_u32 v{vRE}, v{vRO}, 3, v{vRE}
    v_add_u32 v{vRE}, s{sT+2}, v{vRE}
    v_lshlrev_b32 v{vRO+1}, 1, v{vXO}
    v_and_b32 v{vRO+1}, 32, v{vRO+1}
    s_cmp_eq_u32 s{sT+1}, 0
    s_cselect_b32 s{sT+3}, 1, -1
    v_mul_i32_i24 v{vRO+1}, s{sT+3}, v{vRO+1}
    v_sub_u32 v{vRO}, v{vRE}, v{vRO+1}
    v_add_u32 v{vRE}, v{vRE}, v{vRO+1}
    v_add_u32 v{vRE+1}, {2*SLOT}, v{vRE}
    v_add_u32 v{vRO+1}, {2*SLOT}, v{vRO}
    v_add_u32 v{vL4K}, 4096, v{vL16}
    s_lshl_b32 s{sXO}, s{sMT}, 3
    s_lshl_b32 s{sT}, s{sT}, 2
    s_add_u32 s{sXO}, s{sXO}, s{sT}
    s_add_u32 s{sXO}, s{sXO}, s{sS}
    s_mul_i32 s{sXO}, s{sXO}, {16*1280}
    s_add_u32 s{sXO}, s{sXO}, s{sBO}
    v_lshrrev_b32 v{vBO}, 4, v{vXO}
    v_lshlrev_b32 v{vBO}, 3, v{vBO}
    v_and_b32 v{vXO}, 15, v{vXO}
    v_mul_u32_u24 v{vXO}, 1280, v{vXO}
    v_add_u32 v{vXO}, v{vXO}, v{vBO}
    s_lshl_b32 s{sT}, s{sMT}, 2
    s_add_u32 s{sT}, s{sT}, s{sNT}
    s_lshl_b32 s{sFE}, s{sT}, 2
    s_add_u32 s{sFE}, s{sFE}, s{sW}
    s_mul_i32 s{sFE}, s{sFE}, {FS * 4}
    s_add_u32 s{sFE}, s{sFE}, {FEX}
    s_mul_i32 s{sT}, s{sT}, {16*20480}
    s_mul_i32 s{sT+1}, s{sW}, 5120
    s_add_u32 s{sT}, s{sT}, s{sT+1}
    s_add_u32 s{sT}, s{sT}, {EX}
    s_mul_i32 s{sT+1}, s{sS}, 20480
    s_add_u32 s{sEXs}, s{sT}, s{sT+1}
    s_lshl_b32 s{sT+1}, s{sT+1}, 2
    s_add_u32 s{sEXl}, s{sT}, s{sT+1}
    """)
    for r in range(4):
        e(f"s_add_u32 s{sT}, s{sS}, {r + 1}\ns_and_b32 s{sT}, s{sT}, 3\ns_lshl_b32 s{sT+1}, s{sT}, 10\nv_add_u32 v{vRA+r}, s{sT+1}, v{vRB}\nv_add_u32 v{vRA+4+r}, {2*SLOT}, v{vRA+r}")
        if r < 3: e(f"s_mul_i32 s{sT}, s{sT}, {4*20480}\ns_add_u32 s{sEX3+r}, s{sEXs}, s{sT}")

def p5_dmas(d):
    sl = SLMAP[d & 3] * SLOT
    if d < 7: ra, sa, oa, rw, sw, ow = R0, sAH, d * 16384, R2, sWH, d * 64 * 1280
    else: ra, sa, oa, rw, sw, ow = R1, sAC, (d - 7) * 16384, R3, sWC, (d - 7) * 64 * 1280
    W = []
    for k in range(5):
        su = []
        if k == 0: su = [f"s_add_u32 m0, s{sMW}, {sl}", f"s_add_u32 s{sT+1}, s{sw}, {ow}"]
        if k == 4: su = [f"s_add_u32 m0, s{sMW}, {sl + 4096}"]
        W.append((su, f"buffer_load_dwordx4 v{vWD5+k}, s[{rw}:{rw+3}], s{sT+1} offen offset:{(k & 3) * 1024} lds"))
    A = []
    for k in range(4):
        su = [f"s_add_u32 m0, s{sMA}, {sl}", f"s_add_u32 s{sT}, s{sa}, {oa}"] if k == 0 else []
        A.append((su, f"buffer_load_dwordx4 v{vL16}, s[{ra}:{ra+3}], s{sT} offen offset:{k * 1024} lds"))
    return W + A
def p5_buf(m): return (m & 3) * 36
def p5_wreads(m):
    d, ks = m >> 1, m & 1; b = p5_buf(m); hi = SLMAP[d & 3] >> 1; o = (SLMAP[d & 3] & 1) * SLOT
    L = []
    for n in range(5):
        a = (vRO if n & 1 else vRE) + hi; off = o + ks * 32 * 320 + n * 32
        L += [f"ds_read_b64_tr_b16 a[{b+4*n}:{b+4*n+1}], v{a} offset:{off}", f"ds_read_b64_tr_b16 a[{b+4*n+2}:{b+4*n+3}], v{a} offset:{off + 5120}"]
    return L
def p5_aread(m, r):
    d, ks = m >> 1, m & 1; b = p5_buf(m); hi = SLMAP[d & 3] >> 1; o = (SLMAP[d & 3] & 1) * SLOT
    return f"ds_read_b128 a[{b+20+4*r}:{b+23+4*r}], v{vRA+4*hi+r} offset:{o + ks * 8192}"
def p5_reads(d, last=False):
    W = [p5_wreads(2 * d), p5_wreads(2 * d + 1)]
    A = lambda r: [p5_aread(2 * d, r), p5_aread(2 * d + 1, r)]
    Wn = lambda n: W[0][2*n:2*n+2] + W[1][2*n:2*n+2]
    if last: return Wn(0) + A(0) + Wn(1) + Wn(2) + Wn(3) + Wn(4) + A(1) + A(2) + A(3)
    return Wn(0) + A(0) + A(1) + A(2) + A(3) + Wn(1) + Wn(2) + Wn(3) + Wn(4)

def p5(e):
    ACC = 32; ND = 23
    tick_dump(e, 2)
    attn_final(e)
    stamp(e, 8)
    warm(e, "b")
    e(f"s_add_u32 s{sT+2}, s{sQ+1}, {FC - FH}\ns_waitcnt vmcnt(0) lgkmcnt(0)\ns_barrier\nL_p5loop:")
    e(flag_store(sT + 2))
    stamp(e, 9)
    PCL = f"buffer_load_dword v20, v{vP2}, s[{RWS}:{RWS+3}], s{sFC} offen sc1"
    mfs = []; fills = []
    def mfma(m, n, r, z):
        b = p5_buf(m); dd = ACC + (r * 5 + n) * 4
        return f"{MF} v[{dd}:{dd+3}], a[{b+4*n}:{b+4*n+3}], a[{b+20+4*r}:{b+23+4*r}], " + ("0" if m < 2 and z == 0 else v(dd, 4))
    for d in range(ND):
        T_ = [(n, r) for n in range(5) for r in range(4)] if d < ND - 1 else [(n, r) for r in range(4) for n in range(5)]
        mfs.append([mfma(2 * d + (z ^ (k & 1)), n, r, z) for k, (n, r) in enumerate(T_) for z in range(2)]); fills.append([[] for _ in range(40)])
    for d in range(ND - 1):
        for k, x in enumerate(p5_reads(d + 1, d == ND - 2)): fills[d][1 + k + k // 4].append(x)
        if d: fills[d][0].append(bar([f"d{d+1}"]))
    NM = ND - 1
    GR = 176
    for k in range(12): fills[18][4 + 2 * k].append(f"v_mov_b32 v{GR + 16*(k >> 2) + (4*(k & 3) + 3 if k & 3 < 3 else 13)}, s{sTAG}")
    fills[18][30].append(f"v_lshrrev_b32 v131, 1, v{vL16}")
    def send(r):
        L = []
        for k in range(10):
            L.append(f"v_cvt_pk_bf16_f32 v{GR + 16*r + 4*(k // 3) + k % 3}, v{ACC+20*r+2*k}, v{ACC+20*r+2*k+1}")
            q = GR + 16 * r + 4 * (k // 3)
            if k % 3 == 2: L.append(f"buffer_store_dwordx4 v[{q}:{q+3}], v{vL16}, s[{RWS}:{RWS+3}], s{sEX3+r} offen offset:{1024 * (k // 3)} sc1")
        L.append(f"buffer_store_dwordx2 v[{q}:{q+1}], v131, s[{RWS}:{RWS+3}], s{sEX3+r} offen offset:3072 sc1")
        return L
    late = []
    g = 0
    for g0_, x in [(10 * (r + 1) + 5, x) for r in range(3) for x in send(r)]:
        g = max(g, g0_)
        if g < 40: fills[NM][g].append(x)
        else: late.append(x)
        g += 1
    for d in range(2, ND):
        P = [(d - 4, g) for g in range(3, 39, 4)]
        if d < 6: P = [((d - 2) >> 1, g) for g in range(2 + 18 * (d & 1), 20 + 18 * (d & 1), 2)]
        for k, (x, (m, g)) in enumerate(zip(p5_dmas(d), P)):
            if d == 7 and k == 5:
                if W0:
                    CB = OPT.get("cb", 20)
                    fills[m][CB].append(async_check("L_p5c", 20, PCL, sTAGW)); fills[m][CB].append("s_barrier"); fills[m][1].append(PCL)
                else:
                    fills[m][g - 1].append(async_check("L_p5c", 20, PCL))
                    fills[m - 1][37].append(PCL)
            put_dma(fills[m], g, x, f"d{d}")
    mx = 19
    fills[mx][0].append(grp([f"s_mov_b32 s{R0}, s{pX}", f"s_and_b32 s{R0+1}, s{pX+1}, 0xffff", f"s_mov_b32 s{R0+2}, {2048*1280}", f"s_mov_b32 s{R0+3}, 0x20000",
                             f"s_mov_b32 s{R2}, s{pB2}", f"s_and_b32 s{R2+1}, s{pB2+1}, 0xffff", f"s_mov_b32 s{R2+2}, 1280", f"s_mov_b32 s{R2+3}, 0x20000"]))
    for n in range(5):
        fills[mx][2 + 3 * n].append(f"buffer_load_dwordx2 v[{112+2*n}:{113+2*n}], v{vXO}, s[{R0}:{R0+3}], s{sXO} offen offset:{32*n}")
        fills[mx][20 + 3 * n].append(f"buffer_load_dwordx2 v[{164+2*n}:{165+2*n}], v{vBO}, s[{R2}:{R2+3}], s{sBO} offen offset:{32*n}")
    for m in range(NM + 1):
        if m == 3: stamp(e, 11)
        if m == 4: stamp(e, 12)
        e.gaps(mfs[m], fills[m], mfs[m + 1][0] if m < NM else None)
    for x in late: e(x)
    tick_dump(e, 3)
    stamp(e, 13)
    OWN = ACC + 60; RX = 208
    for k in range(1, 4):
        e(f"s_add_u32 s{sT+k}, s{sS}, {k}\ns_and_b32 s{sT+k}, s{sT+k}, 3\ns_mul_i32 s{sT+k}, s{sT+k}, 20480\ns_add_u32 s{sT+k}, s{sT+k}, s{sEXl}")
    def fetch(e):
        for k in range(3):
            t = RX + 16 * k - (64 if k == 0 else 0) * 0
            for q in range(3): e(f"buffer_load_dwordx4 v[{RXR[k]+4*q}:{RXR[k]+4*q+3}], v{vL16}, s[{RWS}:{RWS+3}], s{sT+1+k} offen offset:{1024*q} sc1")
            e(f"buffer_load_dwordx2 v[{RXR[k]+12}:{RXR[k]+13}], v131, s[{RWS}:{RWS+3}], s{sT+1+k} offen offset:3072 sc1")
    RXR = (224, 240, 140)
    def verify(e):
        tg = [RXR[k] + q for k in range(3) for q in (3, 7, 11, 13)]
        for op, d in (("v_max3_u32", 134), ("v_min3_u32", 135)):
            e(f"{op} v{d}, v{tg[0]}, v{tg[1]}, v{tg[2]}")
            for q in range(3, 11, 2): e(f"{op} v{d}, v{d}, v{tg[q]}, v{tg[q+1]}")
            e(f"{op} v{d}, v{d}, v{tg[11]}, v{tg[11]}")
        e(f"v_xor_b32 v134, s{sTAG}, v134\nv_xor_b32 v135, s{sTAG}, v135\nv_or_b32 v134, v134, v135\nv_cmp_ne_u32 vcc, 0, v134")
    HINT = OPT.get("hint", 1)
    if HINT:
        e(f"""
        v_mov_b32 v20, 0
        v_mov_b32 v132, 0x10000000
        v_cmp_eq_u32 vcc, 0, v{vL16}
        s_lshl_b32 s{sT+4}, s{sS}, {7 if OPT.get("hl", 1) else 2}
        s_add_u32 s{sT+4}, s{sT+4}, s{sFE}
        v_cndmask_b32 v132, v132, v20, vcc
        {"v_lshlrev_b32 v133, 3" if OPT.get("hl", 1) else "v_lshrrev_b32 v133, 2"}, v{vL16}
        v_and_b32 v133, {384 if OPT.get("hl", 1) else 12}, v133
        s_lshl_b32 s{sT+5}, s{sS}, 7
        s_xor_b32 s{sT}, s{sT+5}, 128
        v_mov_b32 v138, s{sT}
        v_cmp_eq_u32 vcc, s{sT+5}, v133
        s_nop 1
        v_cndmask_b32 v133, v133, v138, vcc
        """)
        e(f"buffer_store_dword v{vTAG}, v132, s[{RWS}:{RWS+3}], s{sT+4} offen sc1")
    else:
        e("s_nop 3"); fetch(e)
    srd(e, R0, pOUT, 2048 * 1280)
    e.need("v[112:121],v[164:173]")
    for n in range(5):
        for k in range(2):
            t = OWN + 4 * n + 2 * k
            e(f"v_lshlrev_b32 v134, 16, v{112+2*n+k}\nv_and_b32 v135, 0xffff0000, v{112+2*n+k}")
            e(f"v_lshlrev_b32 v136, 16, v{164+2*n+k}\nv_and_b32 v137, 0xffff0000, v{164+2*n+k}")
            e(f"v_pk_add_f32 v[134:135], v[134:135], v[136:137]\nv_pk_add_f32 v[{t}:{t+1}], v[{t}:{t+1}], v[134:135]")
    stamp(e, 10)
    if HINT:
        def hp(e): e(f"buffer_load_dword v20, v133, s[{RWS}:{RWS+3}], s{sFE} offen sc1\ns_waitcnt vmcnt(0)\nv_cmp_ne_u32 vcc, s{sTAG}, v20")
        spin(e, "L_p5hint", hp, None, sleep=OPT.get("hs", 5))
        fetch(e)
    e("s_waitcnt vmcnt(0)"); verify(e)
    e("s_cbranch_vccz L_p5x_ok")
    def poll(e):
        fetch(e); e("s_waitcnt vmcnt(0)"); verify(e)
    spin(e, "L_p5x", poll, None, sleep=OPT.get("xs", 1))
    e(f"s_cmp_eq_u32 s2, 0\ns_cselect_b32 s{sT}, {FL}, {0}\ns_cmp_eq_u32 s{sT}, 0\ns_cselect_b32 s{sT}, {WS_END}, s{sT}")
    e(flag_store(sT))
    for q in range(10):
        t = OWN + 2 * q
        for k in range(3):
            u = RXR[k] + 4 * (q // 3) + q % 3; z = 134 + 2 * (k & 1)
            e(f"v_lshlrev_b32 v{z}, 16, v{u}\nv_and_b32 v{z+1}, 0xffff0000, v{u}\nv_pk_add_f32 v[{t}:{t+1}], v[{t}:{t+1}], v[{z}:{z+1}]")
        e(f"v_cvt_pk_bf16_f32 v{112+q}, v{t}, v{t+1}")
        if q & 1: e(f"buffer_store_dwordx2 v[{111+q}:{112+q}], v{vXO}, s[{R0}:{R0+3}], s{sXO} offen offset:{16*(q-1)} {OPT.get('outst', '')}")

def warm(e, name):
    if not OPT.get("hop"): return
    e(f"s_mov_b32 s7, 1")
    for w in range(3): e(f"s_cmp_eq_u32 s{sW}, {w}\ns_cbranch_scc1 HOP_{name}_{w}")
    e(f"s_branch HOP_{name}_3\nHOP_{name}_ret:\ns_mov_b32 s7, 0")
def reads_scc(i): return i.mn.startswith(("s_addc", "s_subb", "s_cselect", "s_cbranch_scc"))
def writes_scc(i): return i.kind == "salu" and not i.mn.startswith(("s_mov", "s_mul_i32", "s_cselect", "s_getpc", "s_sleep", "s_setprio"))
def insert_hops(L, sessions):
    import subprocess, re as _re
    open("hop.s", "w").write(header() + _re.sub(r"HOP_\w_\d", "L_p5loop", "\n".join(i.t for i in L)) + "\n" + footer())
    subprocess.run(["clang", "-x", "assembler", "-target", "amdgcn-amd-amdhsa", "-mcpu=gfx950", "-c", "hop.s", "-o", "hop.o"], check=True)
    dis = subprocess.run(["llvm-objdump", "-d", "--mcpu=gfx950", "hop.o"], capture_output=True, text=True).stdout
    D = [(m.group(1), int(m.group(2), 16)) for m in _re.finditer(r"^\t(\S+).*// ([0-9A-F]{12}):", dis, _re.M)]
    addr = {}; k = 0
    for n, i in enumerate(L):
        if i.kind == "label": continue
        base = lambda x: x.replace("_e32", "").replace("_e64", "")
        while base(D[k][0]) != base(i.mn): k += 1
        addr[n] = D[k][1]; k += 1
    lab = {i.mn[:-1]: n for n, i in enumerate(L) if i.kind == "label" and i.mn.endswith(":")}
    which = {}
    for name, ranges in sessions.items():
        for a, b in ranges:
            for n in range(lab[a], lab[b]): which[n] = name
    ins = []; shift = 0; page = -1
    start = lab["L_p1K"]
    for n in sorted(addr):
        if n < start: continue
        a = addr[n] + shift
        if a >> 12 == page or n not in which:
            page = a >> 12 if n not in which else page
            continue
        m = n; ok = True
        while m < len(L) and not writes_scc(L[m]) and L[m].kind != "br" or (m < len(L) and reads_scc(L[m])):
            if reads_scc(L[m]): ok = False; break
            m += 1
        if not ok:
            assert (a & 4095) < 48, "no safe hop slot"
            continue
        page = a >> 12
        if (a & 4095) < 56: ins.append((n, which[n])); shift += 8
    out = list(L); idx = {}
    per = {name: [n for n, w in ins if w == name] for name in sessions}
    txt = {}
    for name, P in per.items():
        for k, n in enumerate(P):
            nxt = f"HS_{name}_{k+4}" if k + 4 < len(P) else f"HOP_{name}_ret"
            txt[n] = ([f"HOP_{name}_{k}:"] if k < 4 else []) + [f"HS_{name}_{k}:", "s_cmp_eq_u32 s7, 1", f"s_cbranch_scc1 {nxt}"]
        assert len(P) >= 4, (name, len(P))
        print("hop session", name, len(P), "pages")
    out = []
    for n, i in enumerate(L):
        for x in txt.get(n, []): out.append(I(x))
        out.append(i)
    return out

def clone_state(e): return (list(e.vm), list(e.lg))

def build(stop=None):
    FBS.clear(); STUBS.clear()
    e = E(); seg = {}
    def mark(name, n0): seg[name] = e.l[n0:]
    n0 = 0
    e("L_code_begin:")
    if OPT.get("dbgspan"): e("s_memrealtime s[96:97]")
    if STAMP: e("s_mov_b32 s71, 0\ns_memrealtime s[96:97]\ns_memtime s[98:99]")
    prologue(e); stamp(e, 0); p0_ln(e); stamp(e, 1); p1_pre(e); stamp(e, 2)
    mark("pro", n0)
    e(f"s_cmp_ge_u32 s{sW}, 2\ns_cbranch_scc1 L_p1V")
    if OPT.get("hop"): e("s_branch L_p1K\n.p2align 12")
    e("L_p1K:")
    st0 = clone_state(e); st1 = {}; bq = {}
    def p1(T):
        e.vm, e.lg = list(st0[0]), list(st0[1])
        n0 = len(e.l); bg = Bg(); p1_main(e, T, bg); tick_dump(e, 0); stamp(e, 3); mark("p1" + T, n0)
        st1[T] = clone_state(e); bq[T] = list(bg.q)
        e(f"s_cmp_ge_u32 s{sU}, 27\ns_cbranch_scc1 L_qhN{T}")
    def qh(T, hasH):
        e.vm, e.lg = list(st1[T][0]), list(st1[T][1])
        n0 = len(e.l); b = Bg(); b.q = list(bq[T]); qh_main(e, T, hasH, b); mark("qh" + "NH"[hasH] + T, n0)
    p1("K")
    e("s_branch L_qhH\nL_p1V:")
    p1("V")
    assert [t for _, t in st1["K"][0]] == [t for _, t in st1["V"][0]] and [r for r, _ in st1["K"][1]] == [r for r, _ in st1["V"][1]] and bq["K"] == bq["V"]
    e("L_qhH:"); qh("V", True); seg["qhHK"] = seg["qhHV"]
    e("L_postH:")
    n0 = len(e.l)
    tick_dump(e, 1); stamp(e, 4); e("s_nop 7"); q_pack(e); dm = gelu(e, "L_skH"); attn_setup(e, dm); stamp(e, 5); attn_pre(e); stamp(e, 6); mark("postH", n0)
    e("L_attn:")
    segsA, ool = attention(e)
    e("L_p5:")
    n0 = len(e.l); e.vm = []
    p5(e); stamp(e, 14)
    if OPT.get("dbgspan"):
        e("""s_load_dwordx2 s[32:33], s[0:1], 96
        s_memrealtime s[98:99]
        s_waitcnt lgkmcnt(0)
        s_not_b32 s96, s96
        v_mov_b32 v4, 0
        v_mov_b32 v5, s98
        v_mov_b32 v6, s96
        s_mov_b64 exec, 1
        global_atomic_umax v4, v5, s[32:33] sc1
        global_atomic_umax v4, v6, s[32:33] offset:4 sc1""")
    mark("p5", n0)
    e("L_exit:\ns_endpgm")
    e("L_qhNK:\nL_qhNV:"); qh("V", False); seg["qhNK"] = seg["qhNV"]
    n0 = len(e.l)
    tick_dump(e, 1); stamp(e, 4); e(PKL); e("s_nop 7"); q_pack(e); async_check("L_skN", vTR + 1, PKL)(e); attn_setup(e, kv_prologue_list()); stamp(e, 5); attn_pre(e); stamp(e, 6); mark("postN", n0)
    e("s_branch L_attn")
    ool()
    e("L_code_end:")
    seg.update(segsA)
    errs = []
    for T in "KV":
        for Hh in "HN":
            class X: pass
            x = X(); x.l = seg["p1" + T] + seg["qh" + Hh + T]; check_drain_order(x)
    def path(i):
        if i == 0: a = ["fDF"]
        else: a = ["fFF"] + ["FF"] * min(i - 1, 2) + ["DF"]
        return a + (["TYD"] if i == 7 else ["TY"] + ["YY"] * min(6 - i, 2) + ["YD"])
    for T, Hh, i in (("K", "H", 0), ("V", "N", 1), ("K", "N", 3), ("V", "H", 6), ("K", "H", 7)):
        tr = []
        for nme in ["pro", "p1" + T, "qh" + Hh + T, "post" + Hh] + path(i) + ["p5"]: tr += seg[nme]
        errs += check_trace(tr, f"{T},{Hh},{i}")
    for nme in FBS: errs += check_trace(seg[nme], nme)
    seen = set()
    for x in errs:
        k = x.split("]", 1)[1]
        if k not in seen:
            seen.add(k)
            if len(seen) < 12: print("HAZARD", x)
    print("instructions:", sum(1 for i in e.l if i.kind != "label"), {k: len(vv) for k, vv in seg.items()})
    if OPT.get("allld"):
        e.l = [I(i.t.replace(" lds", f" {OPT['allld']} lds")) if (i.kind == "vml" and i.lds and " nt" not in i.t and " sc" not in i.t) else i for i in e.l]
    if OPT.get("hop"):
        e.l = [i for i in e.l if i.mn != ".p2align 3"]
        end_a = {1: "L_attn", 2: "L_fin", 3: "L_postH"}[OPT["hop"]]
        e.l = insert_hops(e.l, {"a": [("L_p1K", end_a)], "b": [("L_p5loop", "L_exit")]})
    if "race" in sys.argv:
        import race; race.check_all(e.l)
    mac, body = compress([i.t for i in e.l])
    h = header(); k = h.index(".text")
    open("k_full.s", "w").write(h + e.text() + footer())
    return h[:k] + mac + h[k:] + body + footer(), len(seen)

if __name__ == "__main__":
    STAMP = "stamp" in sys.argv
    txt, ne = build()
    out = sys.argv[1] if len(sys.argv) > 1 else "k.s"
    open(out, "w").write(txt)
    print("bytes", len(txt), "hazards", ne)

def mb_init(e):
    for r in range(4): e(f"v_mov_b32 v{192+r}, 0x3f803f80")
```

```python
import sys, math, struct
from core import *

NAME = "parallel_sum__compressed_kv_cla__dense_activation_gelu__prompt"
def f32(x): return "0x%08x" % struct.unpack("<I", struct.pack("<f", x))[0]
CS = math.log2(math.e) / math.sqrt(128.0)

OPT = dict(kvst="sc1", norole=1, rate=1, bstep=2, bkv=17, notouch1=1, wnt=1, cnt=0, cpf=10, te=3, cs=2, sp0=3, xe=1, be=1, tsp=1, hop=1, np=12, wl=0, late=1, hg=36)
for a in sys.argv[1:]:
    if "=" in a:
        k, vv = a.split("=", 1); OPT[k] = int(vv) if vv.lstrip("-").isdigit() else vv.replace("+", " ")
def NT(k): return ' nt' if OPT.get(k) else ''
XS = 0x0010000; KF = 0x0400000; VF = 0x1500000 + OPT.get('vsk', 0); HF = 0x2600000; CF = 0x2E00000; EX = 0x3F00000; FL = 0x5400000; WS_END = 0x5A00000
HS = 524288 + OPT.get('sk', 0)
FXS = FL + 0x8000; FKV = FL + 0x10000; FH = FL + 0x18000; FC = FL + 0x20000; FEX = FL + 0x80000
FS = 128
sTAG = 88
sW, sH, sIDX, sX = 3, 4, 5, 6
pX, pC, pWQ, pWUK, pWUV, pWO, pW1, pB1, pW2, pB2, pOUT, pDBG, pWS = 8, 10, 12, 14, 16, 18, 22, 24, 26, 28, 30, 32, 34
R0, R1, R2, R3, RWS = 36, 40, 44, 48, 52
sT = 56
sU = 64
sM0a, sM0b, sSa, sSb, sSc, sST = 65, 66, 67, 68, 69, 70
sQ = 72
MF = "v_mfma_f32_16x16x32_bf16"

def srd(e, r, p, nbytes, add=None):
    if add is None:
        e(f"s_mov_b32 s{r}, s{p}\ns_and_b32 s{r+1}, s{p+1}, 0xffff")
    else:
        e(f"s_add_u32 s{r}, s{p}, {add}\ns_addc_u32 s{r+1}, s{p+1}, 0\ns_and_b32 s{r+1}, s{r+1}, 0xffff")
    e(f"s_mov_b32 s{r+2}, {nbytes}\ns_mov_b32 s{r+3}, 0x20000")

vL16, vXR, vWQR, vW1R, vXD, vWQD, vW1D, vSC = 0, 1, 2, 10, 14, 18, 20, 21
vTR, vPK = 24, 28
vTAG = 23
sXS = 80
vCD, vWD, vCR, vWR = 96, 100, 104, 106
vWWIN, vCB = 176, (224, 192)
HACC, QACC = 32, 96
XNB = (224, 240)

class Cap:
    def __init__(self): self.l = []
    def __call__(self, t, tag=None): self.l.extend(x.strip() for x in t.strip().split("\n") if x.strip())
LATE = Cap()
def place_list(L, fills, k0, g0, NG, kmax):
    ks, g = k0, g0; k = 0
    while k < len(L):
        grp_ = [L[k]]
        if L[k].startswith("v_cmp"):
            while not grp_[-1].startswith("v_cndmask"): grp_.append(L[k + len(grp_)])
        elif L[k].startswith("s_"):
            while k + len(grp_) < len(L) and L[k + len(grp_)].startswith("s_") and (len(grp_) < 2 or L[k + len(grp_)].startswith(("s_cselect", "s_addc"))): grp_.append(L[k + len(grp_)])
            if grp_[-1].startswith("s_cmp") and len(grp_) > 1: grp_.pop()
            if k + len(grp_) < len(L) and L[k + len(grp_)].startswith("v_") and not L[k + len(grp_)].startswith("v_cmp"): grp_.append(L[k + len(grp_)])
        k += len(grp_)
        for x in grp_: fills[ks][g].append(("BG", x))
        g += 1
        if g == NG: ks, g = ks + 1, 0
    assert (ks, g) <= kmax, (ks, g)
def prologue(e):
    e(f"""
    s_cmp_ge_u32 s2, {0 if OPT.get("exit0") else 256}
    s_cbranch_scc1 L_exit
    s_load_dwordx16 s[8:23], s[0:1], 0
    s_load_dwordx8 s[24:31], s[0:1], 64
    s_load_dwordx4 s[32:35], s[0:1], 96
    v_lshrrev_b32 v33, 6, v0
    v_and_b32 v32, 63, v0
    v_readfirstlane_b32 s{sW}, v33
    v_lshlrev_b32 v{vL16}, 4, v32
    s_and_b32 s{sX}, s2, 7
    s_lshr_b32 s{sT}, s2, 3
    s_and_b32 s{sT}, s{sT}, 3
    s_lshl_b32 s{sH}, s{sX}, 2
    s_add_u32 s{sH}, s{sH}, s{sT}
    s_lshr_b32 s{sIDX}, s2, 5
    s_mov_b32 s7, 0
    """)
    if OPT.get("cpf"):
        e(f"""
        s_getpc_b64 s[{sT+4}:{sT+5}]
        s_and_b32 s{sT+4}, s{sT+4}, 0xffffff00
        s_lshr_b32 s{sT+2}, s2, 3
        s_lshl_b32 s{sT+2}, s{sT+2}, 2
        s_add_u32 s{sT+2}, s{sT+2}, s{sW}
        v_min_u32 v152, {OPT["cpf"] - 1}, v32
        v_lshlrev_b32 v152, 14, v152
        s_lshl_b32 s{sT+2}, s{sT+2}, 7
        v_add_u32 v152, s{sT+2}, v152
        v_min_u32 v152, L_code_end-L_code_begin-4, v152
        global_load_dword v153, v152, s[{sT+4}:{sT+5}]{NT('cpnt')}
        """)
    e(f"""
    s_mul_i32 s{sU}, s{sX}, 3
    s_add_u32 s{sU}, s{sU}, s{sT}
    s_sub_u32 s{sT+1}, s{sX}, s{sIDX}
    s_and_b32 s{sT+1}, s{sT+1}, 7
    s_add_u32 s{sT+1}, s{sT+1}, 24
    s_cmp_eq_u32 s{sT}, 3
    s_cselect_b32 s{sU}, s{sT+1}, s{sU}
    """)
    e(f"""
    v_lshrrev_b32 v37, 3, v32
    v_and_b32 v38, 7, v32
    v_lshrrev_b32 v39, 4, v32
    v_xor_b32 v50, v38, v39
    v_lshlrev_b32 v50, 4, v50
    v_lshl_add_u32 v{vCD}, v37, 10, v50
    v_xor_b32 v51, 64, v{vCD}
    v_add_u32 v{vCD+1}, 7168, v51
    v_add_u32 v{vCD+2}, {2*7168}, v{vCD}
    v_add_u32 v{vCD+3}, {3*7168}, v51
    v_and_b32 v52, 15, v32
    v_lshlrev_b32 v53, 1, v39
    v_xor_b32 v53, v52, v53
    v_lshlrev_b32 v53, 4, v53
    v_lshl_add_u32 v{vWD}, v39, 13, v53
    v_add_u32 v{vWD+1}, {31744}, v{vWD}
    v_xor_b32 v51, 128, v{vWD}
    v_add_u32 v{vWD+2}, {2*31744}, v51
    v_add_u32 v{vWD+3}, {3*31744}, v51
    """)
    e(f"""
    s_lshl_b32 s{sSa}, s{sIDX}, 18
    s_lshl_b32 s{sT+1}, s{sW}, 16
    s_add_u32 s{sSa}, s{sSa}, s{sT+1}
    s_lshl_b32 s{sM0a}, s{sW}, 13
    s_and_b32 s{sT+1}, s{sW}, 1
    s_lshl_b32 s{sSb}, s{sT+1}, 17
    s_lshl_b32 s{sT+2}, s{sH}, 8
    s_add_u32 s{sSb}, s{sSb}, s{sT+2}
    s_lshl_b32 s{sM0b}, s{sW}, 12
    s_add_u32 s{sM0b}, s{sM0b}, 0x10000
    s_waitcnt lgkmcnt(0)
    """)
    srd(e, R1, pC, 2048 * 1024)
    e(f"s_cmp_ge_u32 s{sW}, 2\ns_cselect_b32 s{R2}, s{pWUV}, s{pWUK}\ns_cselect_b32 s{R2+1}, s{pWUV+1}, s{pWUK+1}")
    e(f"s_and_b32 s{R2+1}, s{R2+1}, 0xffff\ns_mov_b32 s{R2+2}, {512*8192}\ns_mov_b32 s{R2+3}, 0x20000")
    for q in range(8): emit_dma(e, p1_cdma(0, q), "c0")
    for u in range(4): emit_dma(e, p1_wdma(0, u), "w0")
    for x, tag in PRO2()[:OPT.get("np", 28) - 12]: emit_dma(e, x, tag)
    e(f"s_add_u32 s{sT+2}, s{pWS}, {FL}\ns_addc_u32 s{sT+3}, s{pWS+1}, 0\ns_load_dword s{sTAG}, s[{sT+2}:{sT+3}], 0")
    LATE.l.clear()
    srd(e, RWS, pWS, WS_END)
    if OPT.get("late"): e = LATE
    srd(e, R0, pX, 2048 * 1280)
    srd(e, R3, pB1, 1728 * 2)
    e(f"""
    v_lshrrev_b32 v34, 5, v32
    v_and_b32 v35, 31, v32
    v_mul_u32_u24 v36, 1280, v34
    v_lshl_add_u32 v36, v35, 3, v36
    s_lshl_b32 s89, s2, 2
    s_add_u32 s89, s89, s{sW}
    s_mul_i32 s89, s89, 2560
    v_lshlrev_b32 v151, 3, v39
    s_lshl_b32 s90, s{sU}, 7
    """)
    e(f"""
    s_lshl_b32 s{sT+4}, s{sH}, 8
    s_mul_i32 s{sT+2}, s{sIDX}, 80
    s_mul_i32 s{sT+3}, s{sW}, 20
    s_add_u32 s{sT+2}, s{sT+2}, s{sT+3}
    s_lshl_b32 s{sT+3}, s{sT+2}, 13
    s_add_u32 s{sT+3}, s{sT+3}, s{sT+4}
    s_mul_i32 s{sT+2}, s{sT+2}, 3456
    s_lshl_b32 s{sT+4}, s{sU}, 7
    s_add_u32 s{sT+2}, s{sT+2}, s{sT+4}
    v_min_u32 v140, {7 if OPT.get("tsp") else 39}, v32
    v_and_b32 v144, 1, v140
    v_lshlrev_b32 v144, 7, v144
    v_lshrrev_b32 v140, 1, v140
    v_lshl_add_u32 v140, v140, 13, v144
    v_min_u32 v145, {3 if OPT.get("tsp") else 19}, v32
    v_mul_u32_u24 v145, 3456, v145
    """)
    srd(e, 84, pWQ, 640 * 8192)
    e(f"s_mov_b32 s93, s{sT+3}\ns_mov_b32 s94, s{sT+2}")

CSLOT = (32768, 0, 131072, 32768, 0, 32768, 0, 32768)
vCR2 = 124
def p1_cdma(j, q):
    setup = []
    if q % 4 == 0:
        setup = [f"s_add_u32 m0, s{sM0a}, {CSLOT[j] + (q >> 2) * 4096}", f"s_add_u32 s{sT}, s{sSa}, {j * 128 + (q >> 2) * 32768}"]
    return setup, f"buffer_load_dwordx4 v{vCD + (q & 3)}, s[{R1}:{R1+3}], s{sT} offen offset:{(q & 3) * 1024}{NT('cnt')} lds"
def p1_wslot(sidx): return ((sidx + 2) & 3) * 16384
def p1_wdma(sidx, u):
    setup = []
    if u == 0:
        setup = [f"s_add_u32 m0, s{sM0b}, {p1_wslot(sidx)}", f"s_add_u32 s{sT+1}, s{sSb}, {sidx * 32 * 8192}"]
    return setup, f"buffer_load_dwordx4 v{vWD + u}, s[{R2}:{R2+3}], s{sT+1} offen offset:{u * 1024}{NT('wnt')} lds"

def PRO2():
    L = [(p1_wdma(1, u), "w1") for u in range(4)] + [(p1_cdma(1, q), "c1") for q in range(8)] + [(p1_wdma(2, u), "w2") for u in range(4)]
    return L
def emit_dma(e, pair, tag):
    su, d = pair
    for x in su: e(x)
    if su: e("s_nop 0")
    e(d, tag=tag)

def reduce32(r, t):
    L = []
    for mod in ("quad_perm:[1,0,3,2]", "quad_perm:[2,3,0,1]", "row_half_mirror", "row_mirror"):
        L += ["s_nop 0", f"v_add_f32_dpp v{r}, v{r}, v{r} {mod} row_mask:0xf bank_mask:0xf"]
    return L + [f"v_mov_b32 v{t}, v{r}", "s_nop 0", f"v_permlane16_swap_b32 v{r}, v{t}", f"v_add_f32 v{r}, v{r}, v{t}"]

def ln_ops():
    L = []; U = 50
    for k in range(10): L += [f"v_lshlrev_b32 v{U+2*k}, 16, v{40+k}", f"v_and_b32 v{U+1+2*k}, 0xffff0000, v{40+k}"]
    L += [f"v_add_f32 v70, v{U}, v{U+1}"] + [f"v_add_f32 v70, v70, v{U+k}" for k in range(2, 20)]
    L += reduce32(70, 71) + [f"v_mul_f32 v70, {f32(1/640)}, v70"]
    L += [f"v_sub_f32 v{U+k}, v{U+k}, v70" for k in range(20)]
    L += [f"v_mul_f32 v72, v{U}, v{U}"] + [f"v_fmac_f32 v72, v{U+k}, v{U+k}" for k in range(1, 20)]
    L += reduce32(72, 73)
    L += [f"v_mov_b32 v73, {f32(1e-5)}", f"v_fmac_f32 v73, {f32(1/640)}, v72", "v_rsq_f32 v73, v73", f"v_mul_f32 v73, {f32(CS)}, v73"]
    L += [f"v_mul_f32 v{U+k}, v{U+k}, v73" for k in range(20)]
    for k in range(5):
        L += [f"v_cvt_pk_bf16_f32 v{40+2*k}, v{U+4*k}, v{U+4*k+1}", f"v_cvt_pk_bf16_f32 v{41+2*k}, v{U+4*k+2}, v{U+4*k+3}"]
    return L

def p0_ln(e):
    e(f"""
    v_lshrrev_b32 v54, 1, v52
    v_xor_b32 v54, v54, v39
    v_lshlrev_b32 v54, 4, v54
    v_lshl_add_u32 v54, v52, 7, v54
    s_and_b32 s{sT+2}, s{sW}, 1
    s_lshl_b32 s{sT+2}, s{sT+2}, 14
    v_add_u32 v{vCR}, s{sT+2}, v54
    v_xor_b32 v{vCR+1}, 64, v{vCR}
    v_add_u32 v{vCR2}, 0x20000, v{vCR}
    v_add_u32 v{vCR2+1}, 0x20000, v{vCR+1}
    v_lshrrev_b32 v55, 2, v52
    v_and_b32 v56, 1, v39
    v_lshl_add_u32 v56, v56, 2, v55
    v_lshlrev_b32 v56, 5, v56
    v_and_b32 v57, 3, v32
    v_lshlrev_b32 v57, 3, v57
    v_lshl_add_u32 v57, v55, 8, v57
    v_lshl_add_u32 v58, v39, 11, v57
    s_lshr_b32 s{sT+2}, s{sW}, 1
    s_lshl_b32 s{sT+2}, s{sT+2}, 13
    s_add_u32 s{sT+2}, s{sT+2}, 0x10000
    v_add_u32 v58, s{sT+2}, v58
    v_mul_u32_u24 v59, 3072, v39
    v_add_u32 v59, v59, v57
    v_add_u32 v59, {96*1024}, v59
    """)
    for i in range(8): e(f"v_xor_b32 v{vWQR+i}, {32*i}, v56\nv_add_u32 v{vWR+i}, v{vWQR+i}, v58")
    e0 = e
    if OPT.get("late"): e = LATE
    for i in range(8): e(f"v_add_u32 v{vWQR+i}, v{vWQR+i}, v59")
    e(f"""
    v_lshrrev_b32 v60, 1, v55
    v_and_b32 v61, 1, v39
    v_lshl_add_u32 v60, v61, 1, v60
    v_lshlrev_b32 v60, 5, v60
    v_and_b32 v61, 3, v32
    v_lshlrev_b32 v61, 3, v61
    v_lshl_add_u32 v61, v55, 7, v61
    v_mul_u32_u24 v62, 3072, v39
    v_add3_u32 v61, v61, v62, 0
    v_add_u32 v61, {96*1024 + 2048}, v61
    """)
    for i in range(4):
        e(f"v_xor_b32 v62, {32*i}, v60\nv_add_u32 v{vW1R+i}, v62, v61")
    if not OPT.get("late"): e("s_waitcnt lgkmcnt(0)")
    e(f"s_mul_i32 s{sTAG}, s{sTAG}, 0x9E3779B1\ns_add_u32 s{sTAG}, s{sTAG}, 0x7F4A7C15")
    if W0: e(f"s_cmp_eq_u32 s{sW}, 0\ns_cselect_b32 s{sTAGW}, s{sTAG}, 0")
    e(f"""
    v_lshrrev_b32 v88, 1, v35
    v_mul_u32_u24 v88, 144, v88
    v_and_b32 v89, 1, v35
    v_lshl_add_u32 v88, v89, 3, v88
    v_lshl_add_u32 v88, v34, 4, v88
    s_lshl_b32 s{sT+2}, s{sW}, 5
    s_add_u32 s{sT+2}, s{sT+2}, 0x20000
    v_add_u32 v76, s{sT+2}, v88
    """)
    e(f"""
    v_lshlrev_b32 v126, 8, v37
    v_lshl_add_u32 v126, v38, 4, v126
    s_lshr_b32 s{sXS}, s2, 1
    s_mul_i32 s{sXS}, s{sXS}, 20480
    s_and_b32 s{sT+3}, s2, 1
    s_lshl_b32 s{sT+3}, s{sT+3}, 7
    s_add_u32 s{sXS}, s{sXS}, s{sT+3}
    s_lshl_b32 s{sT+3}, s{sW}, 11
    s_add_u32 s{sXS}, s{sXS}, s{sT+3}
    s_add_u32 s{sXS}, s{sXS}, {XS}
    s_add_u32 s{sXS+1}, s{sXS}, 8192
    s_add_u32 s{sXS+2}, s{sXS}, 16384
    s_cmp_ge_u32 s{sW}, 2
    s_cselect_b32 s{sXS+2}, {WS_END}, s{sXS+2}
    s_mul_i32 s{sT+5}, s{sW}, {8*144}
    s_add_u32 s{sT+5}, s{sT+5}, 0x20000
    v_mul_u32_u24 v77, 144, v37
    v_lshl_add_u32 v77, v38, 4, v77
    v_add_u32 v77, s{sT+5}, v77
    """)
    e(f"""
    s_lshl_b32 s{sQ}, s{sH}, 3
    s_add_u32 s{sQ}, s{sQ}, s{sIDX}
    s_mul_i32 s{sQ}, s{sQ}, {FS}
    s_add_u32 s{sQ}, s{sQ}, {FKV}
    s_lshl_b32 s{sQ+1}, s{sIDX}, 5
    s_add_u32 s{sQ+1}, s{sQ+1}, s{sH}
    s_mul_i32 s{sQ+1}, s{sQ+1}, {FS}
    s_add_u32 s{sQ+1}, s{sQ+1}, {FH}
    s_mul_i32 s{sQ+2}, s2, {FS}
    s_add_u32 s{sQ+2}, s{sQ+2}, {FXS}
    s_sub_u32 s{sQ+3}, s{sU}, 27
    s_mul_i32 s{sT+5}, s{sX}, 5
    s_add_u32 s{sQ+3}, s{sQ+3}, s{sT+5}
    v_mov_b32 v91, 0
    v_mov_b32 v92, 0x10000000
    v_lshl_add_u32 v93, v33, 6, v32
    v_cmp_eq_u32 vcc, 0, v93
    v_mov_b32 v{vTAG}, s{sTAG}
    v_and_b32 v127, 15, v32
    v_cndmask_b32 v{vSC}, v92, v91, vcc
    s_lshl_b32 s{sT+5}, s{sIDX}, 4
    s_sub_u32 s{sT+4}, 240, s{sT+5}
    v_and_b32 v93, 16, v32
    v_cmp_eq_u32 vcc, 0, v93
    v_mov_b32 v91, s{sT+5}
    v_mov_b32 v92, s{sT+4}
    v_cndmask_b32 v91, v92, v91, vcc
    v_add_u32 v127, v127, v91
    v_lshlrev_b32 v127, 7, v127
    """)

def p1_acc(T, i, j):
    if OPT.get("contig"):
        if T == "K": return 8 * (8 * (j >> 1) + 2 * (i >> 1) + (j & 1)) + 4 * (i & 1)
        return 8 * (8 * (j >> 1) + i) + 4 * (j & 1)
    if T == "K": return 8 * (8 * (i >> 1) + 4 * (j & 1) + (j >> 1)) + 4 * (i & 1)
    return 32 * i + 4 * j
def p1_units():
    U = []
    for n in range(32):
        off = n * 1024 if OPT.get("contig") else (n & 3) * 8192 + (n >> 2) * 1024
        ins = []
        for k in range(4):
            tr = vTR + 2 * (k & 1); src = 8 * n + 2 * k
            ins += [f"v_accvgpr_read_b32 v{tr}, a{src}", f"v_accvgpr_read_b32 v{tr+1}, a{src+1}", f"v_cvt_pk_bf16_f32 v{vPK+k}, v{tr}, v{tr+1}"]
        ins.insert(6, f"s_add_u32 s{sT+7}, s{sST}, {off & ~4095}")
        if OPT["kvst"] != "skip": ins.append((f"buffer_store_dwordx4 v[{vPK}:{vPK+3}], v{vL16}, s[{RWS}:{RWS+3}], s{sT+7} offen offset:{off & 4095} {OPT['kvst']}", "kv"))
        U.append(ins)
    return U

def _kind(y):
    if callable(y): return "call"
    if isinstance(y, tuple) and y[0] == "BG": y = y[1]
    return I(y[0] if isinstance(y, tuple) else y).kind
class Bg:
    def __init__(self): self.q = []
    def push(self, ins): self.q += list(ins)
    def place(self, fill, g0, g1, maxv=1, step=1):
        for g in range(g0, g1, step):
            n = 0
            while self.q and n < maxv:
                x = self.q[0]; t = x[0] if isinstance(x, tuple) else x
                k = I(t).kind if not callable(t) else "call"
                if k in ("vms", "vml") and (n > 0 or any(_kind(y) in ("vml", "vms") for y in fill[g])): break
                fill[g].append(("BG", self.q.pop(0)))
                if k in ("salu", "nop"): continue
                n += 1
                if k in ("vms", "vml"): break
    def flush(self, e):
        for x in self.q:
            t, tag = x if isinstance(x, tuple) else (x, None)
            q = I(t); e.need(q.rd | q.wr); e(t, tag)
        self.q = []

def run_gaps(e, mf, fill, nxt=None):
    f2 = []
    for g in range(len(mf)):
        a = [x for x in fill[g] if not (isinstance(x, tuple) and x[0] == "BG")]
        b = [x[1] for x in fill[g] if isinstance(x, tuple) and x[0] == "BG"]
        if b:
            def mk(b):
                def f(e):
                    for x in b:
                        t, tag = x if isinstance(x, tuple) else (x, None)
                        q = I(t); e.need(q.rd | q.wr); e(t, tag)
                f.last = True
                return f
            a.append(mk(b))
        f2.append(a)
    e.gaps(mf, f2, nxt)

def put_dma(fill, g, pair, tag):
    su, d = pair
    for x in reversed(su): fill[g - 1].append(x)
    fill[g].append((d, tag))

def qh_wslot(sidx): return ((sidx + 3) % 5) * 12288
def qh_dmas(sidx, hasH, d=0):
    L = []
    u32 = lambda x: x & 0xffffffff
    for j in range(4):
        su = [f"s_add_u32 m0, s{sM0a}, {u32((sidx & 3) * 16384 + d * 8192)}", f"s_mov_b32 s{sT}, {XS + sidx * 1024 + d * 40960}"] if j == 0 else []
        L.append((su, f"buffer_load_dwordx4 v{vXD + j}, s[{RWS}:{RWS+3}], s{sT} offen offset:{j * 1024} lds"))
    for u in range(2):
        su = [f"s_add_u32 m0, s{sM0b}, {u32(qh_wslot(sidx) + d * 6144)}", f"s_mov_b32 s{sT+1}, {sidx * 32 * 8192 + d * 131072}"] if u == 0 else []
        L.append((su, f"buffer_load_dwordx4 v{vWQD + u}, s[{R0}:{R0+3}], s{sT+1} offen offset:{u * 1024} lds"))
    if hasH:
        L.append(([f"s_mov_b32 s{sT+2}, {sidx * 32 * 3456 + d * 55296}"], f"buffer_load_dwordx4 v{vW1D}, s[{R1}:{R1+3}], s{sT+2} offen offset:2048 lds"))
    return L
def qh_xread(sidx, j):
    b = XNB[sidx & 1] + 4 * j
    return f"ds_read_b128 v[{b}:{b+3}], v{vXR} offset:{(sidx & 3) * 16384 + j * 1024}"
def qh_wread(sidx, i, n):
    r = (n & 3) * 4
    if i < 8: a, second = vWQR + i, 1024
    else: a, second = vW1R + i - 8, 512
    o = qh_wslot(sidx)
    return [f"ds_read_b64_tr_b16 a[{r}:{r+1}], v{a} offset:{o}", f"ds_read_b64_tr_b16 a[{r+2}:{r+3}], v{a} offset:{o + second}"]

def spin(e, lab, pollA, cond, limit=1000000, sleep=None):
    if sleep is None: sleep = OPT.get('slp', 2)
    e(f"s_mov_b32 s{sT+6}, {limit}\n{lab}:")
    pollA(e)
    e(f"s_cbranch_vccz {lab}_ok\ns_sub_u32 s{sT+6}, s{sT+6}, 1\ns_cmp_eq_u32 s{sT+6}, 0\ns_cbranch_scc1 {lab}_ok\ns_sleep {sleep}\ns_branch {lab}\n{lab}_ok:")

def qh_setup(e):
    L = []
    L += [f"s_lshl_b32 s{sQ+4}, s{sIDX}, 3", f"s_add_u32 s{sQ+4}, s{sQ+4}, s{sW}", f"s_mul_i32 s{sQ+4}, s{sQ+4}, 20480",
          f"s_sub_u32 s{sQ+5}, 15, s{sIDX}", f"s_lshl_b32 s{sQ+5}, s{sQ+5}, 3", f"s_add_u32 s{sQ+5}, s{sQ+5}, s{sW}", f"s_mul_i32 s{sQ+5}, s{sQ+5}, 20480"]
    L += [f"v_add_u32 v{vXD}, s{sQ+4}, v{vL16}", f"v_add_u32 v{vXD+1}, {4*20480 - 1024}, v{vXD}",
          f"v_add_u32 v{vXD+2}, s{sQ+5}, v{vL16}", f"v_add_u32 v{vXD+3}, {4*20480 - 3072}, v{vXD+2}", f"v_subrev_u32 v{vXD+2}, 2048, v{vXD+2}"]
    return L

STAMP = False
TS = FL + 0x40000
def stamp(e, k):
    if not STAMP or (OPT.get("lite") and k not in (0, 14)): return
    if k: e("s_memrealtime s[96:97]\ns_memtime s[98:99]")
    e(f"""s_waitcnt lgkmcnt(0)
    s_lshl_b32 s97, s2, 2
    s_add_u32 s97, s97, s{sW}
    s_lshl_b32 s97, s97, 8
    s_add_u32 s97, s97, {TS + 8 * k}
    s_mov_b64 s[100:101], exec
    s_mov_b64 exec, 1
    {"v_mov_b32 v122" if k == 3 else "v_accvgpr_write_b32 a194" if k >= 7 else "v_accvgpr_write_b32 a254"}, s96
    {"v_mov_b32 v123" if k == 3 else "v_accvgpr_write_b32 a195" if k >= 7 else "v_accvgpr_write_b32 a255"}, s98
    s_nop 1
    buffer_store_dwordx2 {"v[122:123]" if k == 3 else "a[194:195]" if k >= 7 else "a[254:255]"}, off, s[{RWS}:{RWS+3}], s97
    s_mov_b64 exec, s[100:101]
    s_nop 3""")

def header():
    return f"""; @launch grid=(256,1,1) block=(256,1,1) lds=163840
.amdgcn_target "amdgcn-amd-amdhsa--gfx950"
.text
.globl {NAME}_kernel
.p2align 8
.type {NAME}_kernel,@function
{NAME}_kernel:
"""
def footer():
    return f"""
.section .rodata,"a"
.p2align 6
.amdhsa_kernel {NAME}_kernel
  .amdhsa_next_free_vgpr 512
  .amdhsa_next_free_sgpr 102
  .amdhsa_accum_offset 256
  .amdhsa_group_segment_fixed_size 0
  .amdhsa_kernarg_size 112
  .amdhsa_user_sgpr_count 2
  .amdhsa_user_sgpr_kernarg_segment_ptr 1
  .amdhsa_system_sgpr_workgroup_id_x 1
.end_amdhsa_kernel
"""

def code_touch(a, b, nl, vt, dst):
    return [grp([f"s_getpc_b64 s[{sT+4}:{sT+5}]", f"LT_{a}_{code_touch.n}:", f"s_add_u32 s{sT+4}, s{sT+4}, {a}-LT_{a}_{code_touch.n}", f"s_addc_u32 s{sT+5}, s{sT+5}, {code_touch.hi(a)}",
                 f"s_lshr_b32 s{sT+6}, s2, 3", f"s_lshl_b32 s{sT+6}, s{sT+6}, 2", f"s_add_u32 s{sT+6}, s{sT+6}, s{sW}", f"s_lshl_b32 s{sT+6}, s{sT+6}, 7"]),
            f"v_lshlrev_b32 v{vt}, 10, v{vL16}", f"v_min_u32 v{vt}, {(nl - 1) << 14}, v{vt}", f"v_add_u32 v{vt}, s{sT+6}, v{vt}", f"v_min_u32 v{vt}, {b}-{a}-4, v{vt}",
            f"global_load_dword {dst}, v{vt}, s[{sT+4}:{sT+5}]"]
code_touch.n = 0
code_touch.hi = lambda a: 0
def grp_all(L):
    def f(e):
        for x in L: x(e) if callable(x) else e(x)
    return f
def grp(L):
    def f(e):
        for x in L: e(x)
    return f
vTK = 22
def tick_pre(e):
    if OPT.get("ticks"): e("s_memtime s[96:97]")
def tick_post(e):
    if OPT.get("ticks") == 2:
        e(f"s_memtime s[98:99]\ns_waitcnt lgkmcnt(0)\ns_lshl_b64 exec, 1, s71\nv_mov_b32 v{vTK}, s96\ns_lshl_b64 exec, 2, s71\nv_mov_b32 v{vTK}, s98\ns_mov_b64 exec, -1\ns_add_u32 s71, s71, 2\ns_and_b32 s71, s71, 63")
    elif OPT.get("ticks"):
        e(f"s_waitcnt lgkmcnt(0)\ns_lshl_b64 exec, 1, s71\nv_mov_b32 v{vTK}, s96\ns_mov_b64 exec, -1\ns_add_u32 s71, s71, 1")
def tick_dump(e, k):
    if OPT.get("ticks"):
        e(f"""s_lshl_b32 s97, s2, 2
        s_add_u32 s97, s97, s{sW}
        s_lshl_b32 s97, s97, 12
        s_add_u32 s97, s97, {FL + 0x100000 + 1024 * k}
        buffer_store_dword v{vTK}, v{vL16}, s[{RWS}:{RWS+3}], s97 offen
        s_mov_b32 s71, 0
        s_nop 1""")
def bar(vmtags=(), lg0=True):
    def f(e):
        tick_pre(e)
        e.need(vmtags=vmtags, lg0=lg0); e("s_barrier")
        tick_post(e)
    return f

def p1_pre(e):
    e0 = e
    if OPT.get("late"): e = LATE
    e(f"""
    s_mul_i32 s{sST}, s{sH}, {HS}
    s_lshl_b32 s{sT+2}, s{sIDX}, 16
    s_add_u32 s{sST}, s{sST}, s{sT+2}
    s_and_b32 s{sT+2}, s{sW}, 1
    s_lshl_b32 s{sT+2}, s{sT+2}, 15
    s_add_u32 s{sST}, s{sST}, s{sT+2}
    s_cmp_ge_u32 s{sW}, 2
    s_cselect_b32 s{sT+2}, {VF-KF}, 0
    s_add_u32 s{sST}, s{sST}, s{sT+2}
    s_add_u32 s{sST}, s{sST}, {KF}
    s_lshl_b32 s{sT+2}, s{sW}, 12
    v_add_u32 v{vXR}, s{sT+2}, v{vL16}
    """)
    e(f"""
    s_and_b32 s{sT+2}, s{sW}, 1
    s_lshl_b32 s{sT+3}, s{sT+2}, 7
    v_xor_b32 v94, s{sT+3}, v{vWD}
    s_lshl_b32 s{sT+3}, s{sW}, 16
    s_lshl_b32 s{sT+4}, s{sH}, 8
    s_add_u32 s{sT+3}, s{sT+3}, s{sT+4}
    v_add_u32 v{vWQD}, s{sT+3}, v94
    v_add_u32 v{vWQD+1}, 31744, v{vWQD}
    """)
    e(f"""
    v_and_b32 v94, 1, v39
    v_lshlrev_b32 v94, 1, v94
    s_lshl_b32 s{sT+3}, s{sT+2}, 2
    v_or_b32 v94, s{sT+3}, v94
    v_xor_b32 v94, v94, v38
    v_lshlrev_b32 v94, 4, v94
    v_mul_u32_u24 v95, 3456, v37
    v_add_u32 v94, v94, v95
    s_mul_i32 s{sT+3}, s{sW}, {8*3456}
    s_lshl_b32 s{sT+4}, s{sU}, 7
    s_add_u32 s{sT+3}, s{sT+3}, s{sT+4}
    v_add_u32 v{vW1D}, s{sT+3}, v94
    """)
    for x in qh_setup(e): e(x)
    e = e0
    if not OPT.get("wl"): warm(e, "a")
    for x, tag in PRO2()[OPT.get("np", 28) - 12:OPT.get("np2", 28) - 12]: emit_dma(e, x, tag)
    if OPT.get("wl"): warm(e, "a")
    e.need(vmtags=("c0", "w0"), lg0=True)
    e("s_barrier")
    for j in range(8): e(p1_cread(0, j))
    for n in range(2):
        for x in p1_wread(n): e(x)

def hacc(ft, j): return HACC + (j * 2 + (ft >> 1)) * 8 + (ft & 1) * 4
def qacc(i, j): return QACC + (j * 4 + (i >> 1)) * 8 + (i & 1) * 4
def bias_init():
    L = []
    for ft in range(4):
        d = hacc(ft, 3)
        for k in range(2):
            L += [f"v_lshlrev_b32 v{d+2*k}, 16, v{114+2*ft+k}", f"v_and_b32 v{d+2*k+1}, 0xffff0000, v{114+2*ft+k}",
                  f"v_mul_f32 v{d+2*k}, {f32(CS)}, v{d+2*k}", f"v_mul_f32 v{d+2*k+1}, {f32(CS)}, v{d+2*k+1}"]
    return L

def p1_cread(sidx, j):
    b = vCB[sidx & 1] + 4 * j
    sl = CSLOT[sidx >> 1]
    return f"ds_read_b128 v[{b}:{b+3}], v{(vCR2 if sl > 65535 else vCR) + (sidx & 1)} offset:{(sl & 65535) + j * 2048}"
def p1_wread(n):
    sidx, i = divmod(n, 8); r = vWWIN + 4 * (n & 3); o = p1_wslot(sidx)
    return [f"ds_read_b64_tr_b16 v[{r}:{r+1}], v{vWR+i} offset:{o}", f"ds_read_b64_tr_b16 v[{r+2}:{r+3}], v{vWR+i} offset:{o+1024}"]

W0 = OPT.get("w0", 1) and not OPT.get("ticks")
sTAGW = 71 if W0 else sTAG
def async_check(lab, reg, reload, tag=None):
    def f(e):
        e.need(f"v{reg}")
        e(f"v_cmp_ne_u32 vcc, s{tag or sTAG}, v{reg}\ns_cbranch_vccz {lab}_ok")
        sv, sl = list(e.vm), list(e.lg)
        def poll(e):
            e(reload); e("s_waitcnt vmcnt(0)"); e(f"v_cmp_ne_u32 vcc, s{tag or sTAG}, v{reg}")
        spin(e, lab, poll, None)
        e.vm, e.lg = sv, sl
    return f
def flag_store(sreg): return f"buffer_store_dword v{vTAG}, v{vSC}, s[{RWS}:{RWS+3}], s{sreg} offen sc1"

PARK = {0: 20, 1: 28, 2: 16, 3: 24}
def park_units():
    L = []
    for n in (2, 3, 0, 1):
        for k in range(4):
            tr = vTR + 2 * (k & 1); src = 8 * n + 2 * k
            L += [f"v_accvgpr_read_b32 v{tr}, a{src}", f"v_accvgpr_read_b32 v{tr+1}, a{src+1}", f"v_cvt_pk_bf16_f32 v{vPK+k}, v{tr}, v{tr+1}"]
        L += [f"v_accvgpr_write_b32 a{PARK[n]+k}, v{vPK+k}" for k in range(4)]
    return L
def parked_stores():
    L = []
    for n in range(4):
        L += [f"s_add_u32 s{sT+7}, s{sST}, {n * 8192}", (f"buffer_store_dwordx4 a[{PARK[n]}:{PARK[n]+3}], v{vL16}, s[{RWS}:{RWS+3}], s{sT+7} offen sc1", "kv")]
    return L

def p1_main(e, T, bg):
    fills = [[[] for _ in range(64)] for _ in range(16)]
    LNE = OPT.get("lne", 6)
    def pos(ep):
        p = [(ep - 1, g) for g in (50, 54, 58, 62)] + [(ep, g) for g in (range(2, 47, OPT.get("sp0", 2)) if ep == 0 else range(2, 47, 3 if ep < 7 else 4) if ep < 15 else range(2, 30, 3))]
        return [x for x in p if 0 <= x[0] < 16]
    for ep in range(0, 16):
        L = []
        cj = ({0: 2, 1: 3, 3: 4, 7: 5, 9: 6, 11: 7} if OPT.get("cs", 0) == 0 else {1: 2, 2: 3, 4: 4, 7: 5, 9: 6, 11: 7} if OPT["cs"] == 1 else {0: 2, 2: 3, 4: 4, 7: 5, 9: 6, 11: 7}).get(ep)
        Lc = [(p1_cdma(cj, q), f"c{cj}") for q in range(8)] if cj else []
        Lw = [(p1_wdma(ep + 3, u), f"w{ep+3}") for u in range(4)] if ep + 3 < 16 else []
        if ep == 0: L += PRO2()[OPT.get("np2", 28) - 12:]
        L += Lw + Lc if ep < 5 else Lc + Lw
        if ep == OPT.get("xe", 0):
            L += [(([], f"buffer_load_dwordx2 v[{40+2*k}:{41+2*k}], v36, s[{R0}:{R0+3}], s89 offen offset:{256*k}{NT('xnt')}"), "x") for k in range(5)]
        if ep == OPT.get("be", 2):
            L += [(([], f"buffer_load_dwordx2 v[{114+2*ft}:{115+2*ft}], v151, s[{R3}:{R3+3}], s90 offen offset:{32*ft}{NT('xnt')}"), "b1") for ft in range(4)]
        if OPT.get("tsp") and OPT.get("te", 2) <= ep < OPT.get("te", 2) + 5 * OPT["tsp"] and (ep - OPT.get("te", 2)) % OPT["tsp"] == 0:
            su = [grp([f"s_mov_b32 s{R3}, s{pW1}", f"s_and_b32 s{R3+1}, s{pW1+1}, 0xffff", f"s_mov_b32 s{R3+2}, {640*3456}", f"s_mov_b32 s{R3+3}, 0x20000"])] if ep == OPT.get("te", 2) else [f"s_add_u32 s94, s94, {4*3456}"]
            L += [(([] if ep == OPT.get("te", 2) else [f"s_add_u32 s93, s93, {4*8192}"], f"buffer_load_dword v149, v140, s[84:87], s93 offen"), "tc"),
                  ((su, f"buffer_load_dword v150, v145, s[{R3}:{R3+3}], s94 offen"), "tc")]
        if ep == OPT.get("ce", 99):
            code_touch.n += 1
            ct = code_touch("L_qhH", "L_code_end", 7, 154, "v155")
            L += [(([grp_all(ct[:-1])], ct[-1]), "tc")]
        if ep == OPT.get("te", 2) and not OPT.get("tsp") and not OPT.get("tcon"):
            L += [(([], f"buffer_load_dword v149, v140, s[84:87], s93 offen{NT('tnt')}"), "tc"),
                  (([grp([f"s_mov_b32 s84, s{pW1}", f"s_and_b32 s85, s{pW1+1}, 0xffff", f"s_mov_b32 s86, {640*3456}", "s_mov_b32 s87, 0x20000"])], f"buffer_load_dword v150, v145, s[84:87], s94 offen{NT('tnt')}"), "tc")]
        if ep == LNE: L += [(([], f"buffer_store_dwordx4 v[{128+4*k}:{131+4*k}], v126, s[{RWS}:{RWS+3}], s{sXS+k} offen sc1"), "xs") for k in range(3)]
        if ep == LNE + 2: L += [(([], flag_store(sQ + 2)), "fl")]
        if ep == 11: L += [(([grp([f"s_mov_b32 s{sT+5}, {WS_END}", f"s_cmp_eq_u32 s{sW}, 0", f"s_cselect_b32 s{sT+5}, {FXS}, s{sT+5}"]) if W0 else f"s_mov_b32 s{sT+5}, {FXS}"], f"buffer_load_dword v122, v127, s[{RWS}:{RWS+3}], s{sT+5} offen sc1"), "pa")]
        if ep == 13: L += [(d, "q0") for d in qh_dmas(0, True)]
        if ep == 14: L += [(d, "q1") for d in qh_dmas(1, True)]
        if ep == 15: L += [(d, "q2") for d in qh_dmas(2, True)] + [(d, "q3") for d in qh_dmas(3, True)]
        P = pos(ep); assert len(L) <= len(P)
        for (d, tag), (ks, g) in zip(L, P): put_dma(fills[ks], g, d, tag)
    for sidx in range(16):
        f = fills[sidx]
        for i in range(8):
            n = 8 * sidx + i + 2
            if n < 128:
                a, b = p1_wread(n); f[8 * i].append(a); f[8 * i + 1].append(b)
        if sidx < 15:
            for j in range(8): f[3 + 4 * j].append(p1_cread(sidx + 1, j))
            tags = [f"w{sidx+1}", f"c{(sidx+2)>>1}"]
            if sidx == LNE + 1: tags.append("xs")
            if sidx == 12:
                f[47].append(async_check(f"L_sa{T}", 122, f"buffer_load_dword v122, v127, s[{RWS}:{RWS+3}], s{sT+5} offen sc1", sTAGW))
            f[47].append(bar(tags))
        else:
            f[47].append(bar(["q0", "q1"]))
            for j in range(4): f[49 + 2 * j].append(qh_xread(0, j))
            for n in range(3):
                a, b = qh_wread(0, n, n); f[56 + 2 * n].append(a); f[57 + 2 * n].append(b)
    for k, x in enumerate(bias_init()): fills[8 + (k >> 4)][32 + (k & 15) + ((k & 15) == 15)].append(x)
    if OPT.get("late"): place_list(LATE.l, fills, 0, 0, 64, (2, 0))
    lb = Bg(); lb.push(ln_ops())
    LNK = OPT.get("lnk", 4)
    for ks in range(LNE - LNK, LNE): lb.place(fills[ks], 0, 64 if ks < LNE - 1 else 20, maxv=1 if LNK >= 4 else 2)
    assert not lb.q and LNE >= 6, len(lb.q)
    for k in range(5): fills[LNE - 1][22 + 4 * k].append(f"ds_write_b64 v76, v[{40+2*k}:{41+2*k}] offset:{k*2304}")
    for k in range(3): fills[LNE - 1][51 + 4 * k].append(f"ds_read_b128 v[{128+4*k}:{131+4*k}], v77 offset:{4608*k}")
    qs = [f"s_mov_b32 s{R0}, s{pWQ}", f"s_and_b32 s{R0+1}, s{pWQ+1}, 0xffff", f"s_mov_b32 s{R0+2}, {640*8192}", f"s_mov_b32 s{R0+3}, 0x20000",
          f"s_sub_u32 s{R1}, s{pW1}, 2048", f"s_subb_u32 s{R1+1}, s{pW1+1}, 0", f"s_and_b32 s{R1+1}, s{R1+1}, 0xffff",
          f"s_cmp_lt_u32 s{sU}, 27", f"s_cselect_b32 s{R1+2}, {640*3456 + 2048}, 0", f"s_mov_b32 s{R1+3}, 0x20000",
          f"s_lshl_b32 s{sM0a}, s{sW}, 12", f"s_mul_i32 s{sM0b}, s{sW}, 3072", f"s_add_u32 s{sM0b}, s{sM0b}, {96*1024}"]
    fills[12][4].append(grp(qs[:4])); fills[12][10].append(grp(qs[4:10])); fills[12][14].append(grp(qs[10:]))
    if OPT.get("contig"):
        U = p1_units()
        bg.push(U[0] + U[1]); bg.place(fills[15], 24, 46, maxv=2); assert not bg.q
        bg.push(U[2] + U[3]); bg.place(fills[15], 48, 64, maxv=2)
        bg.push([x for u in U[4:] for x in u])
    elif T == "K" or OPT.get("norole"):
        bg.push([x for u in p1_units() for x in u])
        bg.place(fills[15], 24, 46, maxv=2); bg.place(fills[15], 48, 64, maxv=2)
    else:
        bg.push(park_units())
        bg.place(fills[15], 19, 46, maxv=2); bg.place(fills[15], 48, 55, maxv=2)
        assert not bg.q
        bg.push(parked_stores() + [x for u in p1_units()[4:] for x in u])
    mfs = []
    for sidx in range(16):
        mf = []
        for i in range(8):
            for j in range(8):
                d = p1_acc(T, i, j); w = vWWIN + 4 * ((8 * sidx + i) & 3); c = vCB[sidx & 1] + 4 * j
                A, B = (w, c) if T == "K" else (c, w)
                mf.append(f"{MF} a[{d}:{d+3}], v[{A}:{A+3}], v[{B}:{B+3}], " + ("0" if sidx == 0 else f"a[{d}:{d+3}]"))
        mfs.append(mf)
    for sidx in range(16):
        run_gaps(e, mfs[sidx], fills[sidx], mfs[sidx + 1][0] if sidx < 15 else None)

vKVD = vXR
sKo, sVo, sMK, sMV = 76, 77, 78, 79
def kv_dma(kind, static_pair=None):
    so, mb, rs = (sKo, sMK, R2) if kind == "K" else (sVo, sMV, R3)
    L = []
    for k in range(4):
        su = []
        if k == 0:
            su = [f"s_add_u32 m0, s{sT+3}, s{mb}", f"s_and_b32 s{sT+3}, s{so}, 0xc000"]
        L.append((su, f"buffer_load_dwordx4 v{vKVD}, s[{rs}:{rs+3}], s{so} offen offset:{k*1024} {OPT.get('kvld', '')} lds".replace("  ", " ")))
    return L, f"s_add_u32 s{so}, s{so}, 16384"

def qh_main(e, T, hasH, bg):
    NI = 12 if hasH else 8; NG = 4 * NI; LA = 3
    NA = OPT.get("na", 7); BKV = OPT.get("bkv", 16); RATE = OPT.get("rate", 2) if hasH else 2
    fills = [[[] for _ in range(NG)] for _ in range(20)]
    bp = NG - 4 * LA - 1
    st = 3 if hasH else 2
    def pos(ep):
        p = [(ep - 1, g) for g in range(bp + 2, NG, st)] + [(ep, g) for g in range(5 if ep == 0 else 2, bp, st)]
        return [x for x in p if 0 <= x[0] < 20]
    pend = []; lastdma = None
    for ep in range(0, 16):
        if OPT.get("norole"):
            a = qh_dmas(ep + 4, hasH)
            pend += [(d, f"q{ep+4}x") for d in a[:4]] + [(d, f"q{ep+4}") for d in a[4:]]
        elif (ep < NA) == (T == "V"):
            a, b = qh_dmas(ep + 4, hasH), qh_dmas(ep + 4, hasH, 1 if T == "K" else -1)
            pend += [(d, f"q{ep+4}x") for d in a[:4] + b[:4]] + [(d, f"q{ep+4}") for d in a[4:] + b[4:]]
        for ks, g in pos(ep):
            if pend:
                d, tag = pend.pop(0); put_dma(fills[ks], g, d, tag); lastdma = (ks, g)
    assert not pend
    for sidx in range(20):
        f = fills[sidx]
        for i in range(NI):
            s2, i2 = divmod(NI * sidx + i + LA, NI)
            if s2 < 20:
                a, b = qh_wread(s2, i2, NI * sidx + i + LA); f[4 * i].append(a); f[4 * i + 1].append(b)
        if sidx < 19:
            for j in range(4): f[3 + 4 * j].append(qh_xread(sidx + 1, j))
            tags = [f"q{sidx+1}", f"q{sidx+2}x"]
            if sidx + 2 <= 3: tags.append(f"q{sidx+2}")
            if sidx == BKV: tags.append("kv")
            f[bp].append(bar(tags))
    fills[BKV][bp + 2].append((flag_store(sQ), "fl"))
    assert BKV == 17
    qs = [f"s_mul_i32 s{sT+4}, s{sH}, {HS}", f"s_add_u32 s{sT+5}, s{sT+4}, {KF}", f"s_add_u32 s{R2}, s{pWS}, s{sT+5}", f"s_addc_u32 s{R2+1}, s{pWS+1}, 0",
          f"s_and_b32 s{R2+1}, s{R2+1}, 0xffff", f"s_sub_u32 s{R2+2}, 16, s{sIDX}", f"s_lshl_b32 s{R2+2}, s{R2+2}, 15", f"s_mov_b32 s{R2+3}, 0x20000",
          f"s_add_u32 s{sT+5}, s{sT+4}, {VF}", f"s_add_u32 s{R3}, s{pWS}, s{sT+5}", f"s_addc_u32 s{R3+1}, s{pWS+1}, 0",
          f"s_and_b32 s{R3+1}, s{R3+1}, 0xffff", f"s_mov_b32 s{R3+2}, s{R2+2}", f"s_mov_b32 s{R3+3}, 0x20000",
          f"s_mov_b32 s{sKo}, 0", f"s_mov_b32 s{sVo}, 0", f"s_lshl_b32 s{sMK}, s{sW}, 12", f"s_add_u32 s{sMV}, s{sMK}, 0x10000",
          f"s_mul_i32 s{sPK}, s{sH}, {8*FS}", f"s_add_u32 s{sPK}, s{sPK}, {FKV}"]
    fills[16][2].append(grp(qs[:8])); fills[16][6].append(grp(qs[8:14])); fills[16][10].append(grp(qs[14:]))
    fills[19][2].append(f"v_lshlrev_b32 v{vTR}, 3, v{vL16}"); fills[19][6].append(f"v_and_b32 v{vTR}, {7*FS}, v{vTR}")
    hs = [f"s_mul_i32 s{sHA}, s{sIDX}, {54*8192}", f"s_lshl_b32 s{sT+5}, s{sU}, 14", f"s_add_u32 s{sT+5}, s{sT+5}, {HF}", f"s_lshl_b32 s{sT+4}, s{sW}, 10",
          f"s_add_u32 s{sT+5}, s{sT+5}, s{sT+4}", f"s_add_u32 s{sHA}, s{sHA}, s{sT+5}", f"s_sub_u32 s{sHB}, 15, s{sIDX}", f"s_mul_i32 s{sHB}, s{sHB}, {54*8192}",
          f"s_add_u32 s{sHB}, s{sHB}, s{sT+5}"] if hasH else [f"s_mov_b32 s{sHA}, {WS_END}", f"s_mov_b32 s{sHB}, {WS_END}"]
    fills[16][14].append(grp(hs))
    if OPT.get("cpf2") and hasH:
        code_touch.n += 1
        for k, x in enumerate(code_touch("L_attn", "L_p5", 3, vPK, f"v{vPK+1}")): fills[17][2 + 2 * k].append(x)
    if T == "K" or OPT.get("norole"): k0, g0 = 0, 0
    else: k0, g0 = lastdma[0], lastdma[1] + 1
    for sidx in range(k0, BKV):
        bg.place(fills[sidx], g0 if sidx == k0 else 0, NG, maxv=RATE, step=OPT.get("bstep", 1) if hasH else 1)
    assert not bg.q, len(bg.q)
    if hasH:
        lastbg = max((ks, g) for ks in range(20) for g in range(NG) if any(isinstance(x, tuple) and x[0] == "BG" for x in fills[ks][g]))
        assert lastbg < (BKV - 1, NG - 6), lastbg
        place_early(fills, BKV - 1, NG - 6, NG)
    mfs = []
    for sidx in range(20):
        mf = []
        for i in range(NI):
            w = ((NI * sidx + i) & 3) * 4
            for j in range(4):
                d = qacc(i, j) if i < 8 else hacc(i - 8, j)
                x = XNB[sidx & 1] + 4 * j
                if sidx: c = f"v[{d}:{d+3}]"
                elif i < 8: c = "0"
                else: c = v(hacc(i - 8, 3), 4)
                mf.append(f"{MF} v[{d}:{d+3}], a[{w}:{w+3}], v[{x}:{x+3}], {c}")
        mfs.append(mf)
    for sidx in range(20):
        run_gaps(e, mfs[sidx], fills[sidx], mfs[sidx + 1][0] if sidx < 19 else None)
    e.vm = []
sPK = 83; sHA, sHB = 74, 75
PKL = f"buffer_load_dword v{vTR+1}, v{vTR}, s[{RWS}:{RWS+3}], s{sPK} offen sc1"
def kv_prologue_list():
    L = []
    for kind, tag in (("K", "k0"), ("V", "v0"), ("K", "k1"), ("K", "k2"), ("V", "v1"), ("K", "k3")):
        D, inc = kv_dma(kind)
        for k, (su, d) in enumerate(D):
            L.append((list(reversed(su)), d, tag, [inc] if k == 3 else []))
    return L
def sprinkle(e, ops, dm, every):
    for k, x in enumerate(ops):
        if dm and k % every == 0:
            for y in dm[0][0]: e(y)
        e(x)
        if dm and k % every == 0:
            su, d, tag, post = dm.pop(0); e(d, tag=tag)
            for y in post: e(y)
def flush_dma(e, dm):
    for su, d, tag, post in dm:
        for y in su: e(y)
        if su: e("s_nop 0")
        e(d, tag=tag)
        for y in post: e(y)
    dm.clear()

def check_drain_order(e):
    written = set()
    for i in e.l:
        if i.kind == "dsr": written |= {r for r in i.wr if r[0] == "a"}
        if i.mn == "v_accvgpr_read_b32" and (i.rd & written): raise AssertionError("drain order " + i.t)
        if i.mn == "v_accvgpr_write_b32": written |= i.wr

def q_pack(e):
    for n in range(16):
        for k in range(4):
            e(f"v_cvt_pk_bf16_f32 v{QACC + 4*n + k}, v{QACC + 8*n + 2*k}, v{QACC + 8*n + 2*k + 1}")

HPK = 192
def gelu(e, lab):
    a = -2.0 * math.sqrt(2.0 / math.pi) * math.log2(math.e)
    k1 = a / CS; k2 = a * 0.044715 / CS ** 3
    GP = OPT.get("gp", 3); dm = []
    e(f"s_mov_b32 s56, {f32(k2)}\ns_mov_b32 s57, {f32(k2)}\ns_mov_b32 s60, {f32(CS)}\ns_mov_b32 s61, {f32(CS)}")
    e(f"v_mov_b32 v160, {f32(k1)}\nv_mov_b32 v161, {f32(k1)}\nv_mov_b32 v162, {f32(CS)}\nv_mov_b32 v163, {f32(CS)}")
    for n in range(8):
        if n == max(0, GP - 2): e(PKL)
        if n == GP: async_check(lab, vTR + 1, PKL)(e); dm = kv_prologue_list()
        b = HACC + 8 * n; t = 164 + 8 * (n & 1); L = []
        L += [f"v_pk_mul_f32 v[{t+2*k}:{t+2*k+1}], v[{b+2*k}:{b+2*k+1}], v[{b+2*k}:{b+2*k+1}]" for k in range(4)]
        L += [f"v_pk_fma_f32 v[{t+2*k}:{t+2*k+1}], v[{t+2*k}:{t+2*k+1}], s[56:57], v[160:161]" for k in range(4)]
        L += [f"v_pk_mul_f32 v[{t+2*k}:{t+2*k+1}], v[{t+2*k}:{t+2*k+1}], v[{b+2*k}:{b+2*k+1}]" for k in range(4)]
        L += [f"v_exp_f32 v{t+k}, v{t+k}" for k in range(8)]
        L += [f"v_pk_fma_f32 v[{t+2*k}:{t+2*k+1}], v[{t+2*k}:{t+2*k+1}], s[60:61], v[162:163]" for k in range(4)]
        L += [f"v_rcp_f32 v{t+k}, v{t+k}" for k in range(8)]
        L += [f"v_pk_mul_f32 v[{t+2*k}:{t+2*k+1}], v[{t+2*k}:{t+2*k+1}], v[{b+2*k}:{b+2*k+1}]" for k in range(4)]
        L += [f"v_cvt_pk_bf16_f32 v{t+k}, v{t+2*k}, v{t+2*k+1}" for k in range(4)]
        L += [f"v_accvgpr_write_b32 a{HPK+4*n+k}, v{t+k}" for k in range(4)]
        sprinkle(e, L, dm, 11)
    return dm
def h_store(n):
    j, up = n >> 1, n & 1
    return ([f"s_add_u32 s{sT+7}, s{sHA + (j >> 1)}, {(j & 1) * 4096 + up * 8192}"],
            f"buffer_store_dwordx4 a[{HPK+4*n}:{HPK+4*n+3}], v{vL16}, s[{RWS}:{RWS+3}], s{sT+7} offen sc1")

def Qr(j, t): return 96 + (4 * j + t) * 4
QP = 224
def Sr(b, j, kt=0): return 160 + 32 * b + 8 * j + 4 * kt
def Pr(b, j): return 224 + 16 * b + 4 * j
def NEGM(j): return 32 + 4 * j
TRI = 48
def CT(k, kt): return (64, 52)[k] + 4 * kt
vMWo, vMRo, vMWs, vMRs = 60, 61, 62, 63
TT = 72
def LT(b, j): return 76 + 4 * b + j
def LL(j): return 84 + j
vCHK = 88
def Or(j, dt): return 32 * j + 4 * dt
FK, FV = 128, 160
vKR, vVR = 2, 3
vPN, vQW, vQR, vNW, vNR = 6, 8, 9, 12, 13
sTHR, sCNT, sRET, sCA, sCB, sP8K = 90, 91, 92, 94, 95, 89
BIG = f32(-1e30)
SEL = {k: r for k, r in zip([(m, kt) for m in range(4) for kt in range(2)], (10, 12, 14, 16, 20, 22, 24, 32))}

def attn_setup(e0, dm):
    L = []
    class C:
        def __call__(self, t, tag=None): L.extend(x.strip() for x in t.strip().split("\n") if x.strip())
    _attn_setup(C())
    G = []
    for x in L:
        if G and (x.startswith(("s_addc", "s_subb", "s_cselect")) or G[-1].split("\n")[-1].startswith("s_nop")): G[-1] += "\n" + x
        else: G.append(x)
    sprinkle(e0, G, dm, 8); flush_dma(e0, dm)
def _attn_setup(e):
    e(f"""
    v_lshrrev_b32 v89, 4, v{vL16}
    v_and_b32 v90, 15, v89
    v_lshrrev_b32 v89, 4, v89
    v_lshlrev_b32 v89, 2, v89
    v_sub_u32 v89, v89, v90
    v_mov_b32 v90, {BIG}
    v_mov_b32 v91, 0
    v_mov_b32 v{vKR}, v{vL16}
    v_add_u32 v{vVR}, 0x18000, v{vL16}
    """)
    for r in range(4):
        e(f"v_cmp_ge_i32 vcc, {-r}, v89\ns_nop 1\nv_cndmask_b32 v{TRI+r}, v90, v91, vcc")
    e(f"""
    s_lshl_b32 s{sT+2}, s{sW}, 13
    s_add_u32 s{sT+2}, s{sT+2}, 0x20000
    v_add_u32 v{vQW}, s{sT+2}, v{vL16}
    v_xor_b32 v{vQR}, 0x2000, v{vQW}
    s_lshl_b32 s{sT+2}, s{sW}, 9
    s_add_u32 s{sT+2}, s{sT+2}, {112*1024}
    v_lshrrev_b32 v{vNW}, 1, v{vL16}
    v_add_u32 v{vNW}, s{sT+2}, v{vNW}
    v_xor_b32 v{vNR}, 0x200, v{vNW}
    s_lshr_b32 s{sT+2}, s{sW}, 1
    s_mul_i32 s{sT+2}, s{sT+2}, {92*1024}
    s_add_u32 s{sT+2}, s{sT+2}, {36*1024}
    s_lshl_b32 s{sT+4}, s{sP8K}, 1
    s_add_u32 s{sT+5}, s{sT+2}, s{sT+4}
    v_add_u32 v{vMWo}, s{sT+5}, v{vL16}
    s_xor_b32 s{sT+4}, s{sT+4}, 0x4000
    s_add_u32 s{sT+5}, s{sT+2}, s{sT+4}
    v_add_u32 v{vMRo}, s{sT+5}, v{vL16}
    s_lshl_b32 s{sT+2}, s{sW}, 10
    s_add_u32 s{sT+2}, s{sT+2}, {68*1024}
    v_add_u32 v{vMWs}, s{sT+2}, v{vL16}
    v_xor_b32 v{vMRs}, 0x400, v{vMWs}
    """)

def fread(base, areg, off, f): return f"ds_read_b128 a[{base+4*f}:{base+4*f+3}], v{areg} offset:{off + f * 1024}"
def kfread(off, r): return f"ds_read_b128 a[{FK+4*r}:{FK+4*r+3}], v{vKR} offset:{off + (2 * (r & 3) + (r >> 2)) * 1024}"
def kread(n, f): return kfread((n & 3) * 8192, f)

def xreduce(e, op, regs, tmps):
    for sw in ("v_permlane16_swap_b32", "v_permlane32_swap_b32"):
        for r, t in zip(regs, tmps): e(f"v_mov_b32 v{t}, v{r}")
        e("s_nop 1")
        for r, t in zip(regs, tmps): e(f"{sw} v{r}, v{t}")
        e("s_nop 0")
        for r, t in zip(regs, tmps): e(f"{op} v{r}, v{r}, v{t}")

def max8(e, d, sreg):
    e(f"v_max3_f32 v{d}, v{sreg}, v{sreg+1}, v{sreg+2}\nv_max3_f32 v{d}, v{d}, v{sreg+3}, v{sreg+4}\nv_max3_f32 v{d}, v{d}, v{sreg+5}, v{sreg+6}\nv_max_f32 v{d}, v{d}, v{sreg+7}")

def sm_ops(b, J):
    L = []; k = 0
    for j in J:
        for x in range(8):
            t = TT + (k & 3); tp = TT + ((k - 1) & 3)
            fol = []
            if x == 1: fol.append(f"v_add_f32 v{LT(b, j)}, v{tp}, v{t}")
            elif x > 1: fol.append(f"v_add_f32 v{LT(b, j)}, v{LT(b, j)}, v{t}")
            if x & 1: fol.append(f"v_cvt_pk_bf16_f32 v{Pr(b, j) + (x >> 1)}, v{tp}, v{t}")
            L.append((f"v_exp_f32 v{t}, v{Sr(b, j) + x}", fol)); k += 1
    return L

FBS = {}
STUBS = []
class Blk:
    def __init__(self, name, prev, cur): self.name, self.prev, self.cur, self.first = name, prev, cur, prev is None
    def act(self, n):
        if n < 0: return {None: [], "F": [3, 2, 1, 0], "D": [3, 2, 1], "Y": [3, 2, 1, 0]}[self.prev]
        if self.cur == "D" and n in (2, 3): return [3, 2, 1]
        if self.cur == "E": return ([3, 2, 1, 0], [3, 1], [], [], [])[n]
        return [3, 2, 1, 0]
    def y(self, n): return self.prev == "Y" if n < 0 else (self.cur in "YE" or (n == 4 and self.cur == "D"))
    def masked(self, n):
        if self.cur == "D": return {0 if n < 2 else 1: n & 1}
        if self.cur == "E" and n < 2: return {2 + n: 2, n: 3}
        return {}

def attn_block(e, bk):
    nm = bk.name; E_ = bk.cur == "E"; sw = bk.prev == "D"
    canon = [(regs_of(f"a[{FK+4*f}:{FK+4*f+3}]"), None) for f in range(8)]
    e.lg = list(canon) if bk.first else canon[4:]
    nb = [0, 0]
    if sw:
        for j in range(2):
            for r in range(4): e(f"v_mov_b32 v{NEGM(j)+r}, v{vPN+j}")
    for lp in range(4):
        nq, ns, nv = lp, lp - 1, lp - 2
        JQ, JS, JV = bk.act(nq), bk.act(ns), bk.act(nv); JN = JQ
        bq, bs, bv = nq & 1, ns & 1, nv & 1
        pre = []
        msk = bk.masked(nq); first_qk = bk.first and lp == 0
        cti = {}
        for k, (j, m) in enumerate(msk.items()):
            cti[j] = k
            for kt in range(2):
                c = CT(k, kt); sel = SEL[(m, kt)]
                pre.append(f"v_mov_b32 v{c+3}, s{sel+1}" if first_qk else f"v_add_f32 v{c+3}, s{sel+1}, v{NEGM(j)}")
                pre += [f"v_fma_f32 v{c+r}, v{TRI+r}, s{sel}, v{c+3}" for r in range(4)]
        FVc = FK if (E_ and lp == 2) else FV
        mf = []; kstart = []; vstart = []
        kstart = [len(JQ) * f for f in range(8)] if JQ else []
        for kt in range(2):
            if OPT.get("nochain"): order = [(j, t, t) for t in range(4) for j in JQ]
            else: order = [(j, (3 - z if k & 1 else z), z) for k, j in enumerate(JQ) for z in range(4)]
            for j, t, z in order:
                d = Sr(bq, j, kt); f = 4 * kt + t
                c = v(d, 4) if z else v(CT(cti[j], kt), 4) if j in msk else "0" if first_qk else v(NEGM(j), 4)
                q = ac(QP + 16 * j + 4 * t, 4) if (j < 2 and bk.y(nq)) else v(Qr(j, t), 4)
                mf.append(f"{MF} v[{d}:{d+3}], a[{FK+4*f}:{FK+4*f+3}], {q}, {c}")
        fresh = lambda j: nv == 0 and (bk.first or (sw and j < 2))
        for f in range(8 if JV else 0):
            vstart.append(len(mf))
            for j in JV:
                o = Or(j, f)
                mf.append(f"{MF} a[{o}:{o+3}], a[{FVc+4*f}:{FVc+4*f+3}], v[{Pr(bv, j)}:{Pr(bv, j)+3}], " + ("0" if fresh(j) else ac(o, 4)))
        NG = len(mf)
        fill = [[] for _ in range(NG)]
        voff = lambda n: (n & 1) * 16384 if bk.y(n) else (n & 3) * 8192
        vtog = [f"v_xor_b32 v{vVR}, 0x8000, v{vVR}"] + ([f"v_add_u32 v{vVR}, s{sP8K}, v{vVR}"] if sw and lp == 1 else [])
        if JV and JQ:
            for f in range(8): fill[kstart[f] + 1].append(fread(FV, vVR, voff(nv), f))
        if E_ and lp == 1:
            for x in vtog: fill[vstart[0]].append(x)
            for f in range(8): fill[vstart[f] + 1].append(fread(FK, vVR, 0, f))
        elif E_ and lp == 2:
            for f in range(8): fill[vstart[f] + 1].append(fread(FV, vVR, 16384, f))
        elif lp == 1 or (lp == 3 and bk.cur == "Y"):
            for k, x in enumerate(vtog): fill[(vstart[1] + 1 + 8 * k) if JV else 1].append(x)
        needK = not E_ or lp == 0; late_k = []
        if needK:
            nk = lp + 1
            if lp == 3 or (lp == 1 and bk.cur == "Y"):
                fill[OPT.get("kx", 5)].append(f"v_xor_b32 v{vKR}, 0x8000, v{vKR}")
                if bk.cur == "D": fill[13].append(f"v_add_u32 v{vKR}, s{sP8K}, v{vKR}")
            koff = (nk & 1) * 16384 if bk.y(nk) else (nk & 3) * 8192
            for f in range(8):
                if JV: fill[vstart[f] + 1].append(kfread(koff, f))
                elif f < 4: fill[kstart[4] + 2 * f + 1].append(kfread(koff, f))
                else: late_k.append(kfread(koff, f))
        def needf(base, f0):
            def g(e): e.need(f"a[{base+4*f0}:{base+4*f0+15}]")
            return g
        if JQ and JV:
            fill[kstart[4] - 2].append(needf(FK, 4)); fill[vstart[0] - 2].append(needf(FV, 0))
        if JV:
            fill[vstart[4] - 2].append(needf(FVc, 4))
            if needK or (E_ and lp == 1): fill[NG - 2].append(needf(FK, 0))
            if E_ and lp == 2: fill[NG - 2].append(needf(FV, 0))
        grp_k = (bk.cur == "Y") or (not E_ and lp & 1 == 0 and not first_qk)
        grp_v = (nm == "YD" and lp == 0) or (bk.cur == "Y" and not (sw and lp == 0)) or (bk.cur in "FD" and lp & 1)
        vlast = None; gbar = vstart[0] if JV else -1
        for kind, on in (("K", grp_k), ("V", grp_v)):
            if not on: continue
            L, inc = kv_dma(kind)
            g0, span = (0, 8 * len(JQ)) if kind == "K" else ((vstart[0], 8 * len(JV)) if JV else (0, NG))
            st = span // 4
            dp = OPT.get("dpos", 1) if st >= 8 else 1
            if OPT.get("spread") and g0 + dp >= 5:
                fill[g0 + dp - 5 if g0 + dp - 5 != gbar else g0 + dp - 7].append(L[0][0][1]); fill[g0 + dp - 3 if g0 + dp - 3 != gbar else g0 + dp - 1].append(L[0][0][0])
            else:
                for x in reversed(L[0][0]): fill[max(0, g0 - 4)].append(x)
            for k, d in enumerate(L): fill[g0 + dp + st * k].append(d[1])
            gi = g0 + dp + 1 + st * 3
            fill[gi if gi < NG else NG - 1].append(inc if gi < NG else ("BG", inc))
            if kind == "V": vlast = g0 + dp + st * 3
        def ride(L, g0, g1, tag=None):
            st = max(2, (g1 - g0) // len(L))
            for k, x in enumerate(L):
                g = (g0 + st * k) | 1
                while any(_kind(y) in ("vml", "vms") for y in fill[g]): g += 2
                put_dma(fill, g, x, tag)
        cst = lambda a, b: [ctx_store(96, sCA, n) for n in range(a, b)]
        if bk.first and lp >= 2: ride([h_store(n) for n in range(4 * lp - 8, 4 * lp - 4)], 4, NG - 4)
        if nm == "TY" and lp >= 2: ride(cst(2 * lp - 4, 2 * lp - 2), 10, NG)
        if nm == "YD" and lp < 2: ride(cst(4 + 2 * lp, 6 + 2 * lp), 6, NG - 8)
        if nm == "TYD" and lp == 2: ride(cst(0, 4), 20, NG)
        if E_ and lp == 1: fill[3].append(PHL)
        if E_ and lp == 2: ride(p5_dmas(0), 2, 20)
        if first_qk:
            for k in range(8): fill[4 * k + 1].append(f"ds_write_b128 v{vQW}, v[{Qr(2, 0)+4*k}:{Qr(2, 0)+4*k+3}] offset:{k*1024}")
        if bk.first and lp == 1: fill[2].append(f"ds_read_b64 v[{vPN}:{vPN+1}], v{vNR}")
        if bk.first and lp == 2:
            for k in range(8): fill[kstart[k] + 2 + (len(JQ) & 1)].append(fread(QP, vQR, 0, k))
        if E_ and lp == 3:
            for k in range(8): fill[2 * k + 1].append(f"ds_write_b128 v{vMWo}, a[{Or(0, k)}:{Or(0, k)+3}] offset:{k*1024}")
        if nm in ("DF", "TY") and lp == 3: ride([([], flag_store(sQ + 1))], NG - 3, NG)
        if nm in ("DF", "TY") and lp == 0:
            ride([([], f"buffer_load_dword a192, v{vTW}, s[{R0}:{R0+3}], 0 offen"), ([], f"buffer_load_dword a193, v{vT2}, s[{R1}:{R1+3}], 0 offen")], NG - 9, NG - 1)
        if (lp & 1 or bk.cur in "YE") and not (E_ and lp == 3):
            gb = vstart[0] if JV else -1
            cnt = lambda kinds: sum(1 for g in range(gb) for x in fill[g] if _kind(x) in kinds)
            if E_: n = (8 + nb[0], nb[0], nb[1])[lp] + cnt(("vml", "vms"))
            else: n = 12 + (4 + cnt(("vms",)) if (bk.first and lp == 3) else 0)
            def mkb(n, lp=lp):
                def f(e):
                    lg = list(e.lg)
                    if OPT.get("ticks"): e("s_waitcnt lgkmcnt(0)")
                    z = (bk.first and lp == 1) or (E_ and lp == 2)
                    tick_pre(e); e(f"s_waitcnt vmcnt({n}){' lgkmcnt(0)' if z else ''}\ns_barrier"); tick_post(e)
                    e.lg = [] if z else lg
                return f
            if E_ and lp == 2: fill[gb].insert(0, async_check(f"L_h{nm}", 20, PHL, sTAGW))
            if OPT.get("spread") and gb >= 6 and not E_ and not OPT.get("ticks") and not any(_kind(x) in ("vml", "vms") for g in range(gb - 4, gb) for x in fill[g]):
                fill[gb - 4].append(f"s_waitcnt vmcnt({n})"); fill[gb].insert(0, "s_barrier")
            elif gb >= 0: fill[gb].insert(1 if (E_ and lp == 2) else 0, mkb(n))
            else: pre.insert(0, mkb(n))
        if JS:
            ops = sm_ops(bs, JS)[2:]
            W = NG - 4 if JN else min(NG - 2, 2 * len(ops))
            lastg = 0; tile_done = []
            for k, (ex, fol) in enumerate(ops):
                g = (k * W) // len(ops)
                if W >= 2 * len(ops): g &= ~1
                fill[g].append(ex)
                for x in fol: fill[g + 1].append(x)
                lastg = g + 1
                if (k + 2) % 8 == 7: tile_done.append(lastg)
            lts = [LT(bs, j) for j in JS]
            ck = []
            if len(lts) == 4: fill[tile_done[2] + 2].append(f"v_max3_f32 v{vCHK}, v{lts[0]}, v{lts[1]}, v{lts[2]}"); ck.append(f"v_max_f32 v{vCHK}, v{vCHK}, v{lts[3]}")
            elif len(lts) == 3: ck.append(f"v_max3_f32 v{vCHK}, v{lts[0]}, v{lts[1]}, v{lts[2]}")
            else: ck.append(f"v_max_f32 v{vCHK}, v{lts[0]}, v{lts[1]}")
            ck.append(f"v_cmp_lt_f32 vcc, s{sTHR}, v{vCHK}")
            gck = max(lastg, NG - 3)
            assert gck <= NG - 2
            J3 = [(j, not (sw and lp == 1 and j < 2), not (sw and lp == 0 and j < 2)) for j in JS]
            fb = f"FB{bs}_" + "".join(f"{j}{'' if a else 'n'}{'' if b else 'l'}" for j, a, b in J3)
            FBS[fb] = (bs, J3)
            site = f"L_{nm}_{lp}"
            STUBS.append((site, fb))
            for x in ck: fill[gck].append(x)
            fill[NG - 1].append(grp([f"s_cbranch_vccnz {site}_fb", f"{site}_ret:"]))
        for k, j in enumerate(JV):
            g = OPT.get("l0", 1) if k == 0 else min(NG - 5, 16 * k - 3)
            fill[g].append(f"v_mov_b32 v{LL(j)}, v{LT(bv, j)}" if fresh(j) else f"v_add_f32 v{LL(j)}, v{LL(j)}, v{LT(bv, j)}")
        head = sm_ops(bq, JN)[:2] if JN else []
        if head and not first_qk:
            fill[NG - 4].append(head[0][0]); fill[NG - 2].append(head[1][0])
            for x in head[1][1]: fill[NG - 1].append(x)
        if first_qk: e.need(f"a[{FK}:{FK+15}]")
        for x in pre:
            if callable(x): x(e)
            else: e(x)
        if pre: e("s_nop 1")
        for g in range(NG):
            c = sum(1 for x in fill[g] if _kind(x) in ("vml", "vms"))
            nb[0] += c; nb[1] = 0 if g == vlast else nb[1] + c
        run_gaps(e, mf, fill)
        for x in late_k: e(x)
        if sw and lp == 1: attn_epilogue(e)
        if E_ and lp == 0: p5_setup(e)
        if first_qk:
            e("s_nop 7")
            for j in range(4): max8(e, NEGM(j), Sr(0, j))
            xreduce(e, "v_max_f32", [NEGM(j) for j in range(4)], [NEGM(j) + 1 for j in range(4)])
            for j in range(4):
                e(f"v_sub_f32 v{NEGM(j)}, 0, v{NEGM(j)}")
                for r in range(1, 4): e(f"v_mov_b32 v{NEGM(j)+r}, v{NEGM(j)}")
            e(f"ds_write_b64 v{vNW}, v[{NEGM(2)+3}:{NEGM(2)+4}]".replace(f"v[{NEGM(2)+3}:{NEGM(2)+4}]", "v[10:11]").replace("ds_write", f"v_mov_b32 v10, v{NEGM(2)}\nv_mov_b32 v11, v{NEGM(3)}\nds_write"))
            for j in (3, 2, 1, 0):
                for x in range(8): e(f"v_add_f32 v{Sr(0, j)+x}, v{Sr(0, j)+x}, v{NEGM(j)}")
            e(head[0][0]); e(head[1][0]); e("s_nop 0")
            for x in head[1][1]: e(x)
    if E_: e(f"s_waitcnt vmcnt({4 if nm == 'TYD' else 0})")
    if nm == "TYD":
        for su, x in cst(4, 8): e(su[0]); e(x)
    if not E_:
        assert len(e.lg) <= 4 and [r for r, _ in e.lg] == [r for r, _ in canon][8 - len(e.lg):], (nm, len(e.lg))

def ctx_store(pk, sbase, n):
    return ([f"s_add_u32 s{sT+7}, s{sbase}, {(n >> 2) * 4096 + (n & 3) * 8192}"],
            f"buffer_store_dwordx4 v[{pk+4*n}:{pk+4*n+3}], v{vL16}, s[{RWS}:{RWS+3}], s{sT+7} offen sc1")
def attn_epilogue(e):
    e("s_nop 7")
    xreduce(e, "v_add_f32", [LL(0), LL(1)], [89, 90])
    for j in range(2): e(f"v_rcp_f32 v{LL(j)}, v{LL(j)}")
    for j in range(2):
        e(f"v_mov_b32 v94, v{LL(j)}\nv_mov_b32 v95, v{LL(j)}")
        for k in range(16):
            src = Or(j, 0) + 2 * k; tr = 90 + 2 * (k & 1)
            e(f"v_accvgpr_read_b32 v{tr}, a{src}\nv_accvgpr_read_b32 v{tr+1}, a{src+1}")
            e(f"v_pk_mul_f32 v[{tr}:{tr+1}], v[{tr}:{tr+1}], v[94:95]")
            e(f"v_cvt_pk_bf16_f32 v{96+16*j+k}, v{tr}, v{tr+1}")

def attn_final(e):
    e.lg = [(set(), None)] * 8
    e(f"v_mov_b32 v72, v{LL(0)}\nv_mov_b32 v73, v{LL(1)}\nv_mov_b32 v74, v{NEGM(0)}\nv_mov_b32 v75, v{NEGM(1)}\ns_nop 3")
    e(f"ds_write_b128 v{vMWs}, v[72:75]")
    for k in range(8): e(f"ds_write_b128 v{vMWo}, a[{Or(1, k)}:{Or(1, k)+3}] offset:{8192 + k*1024}")
    e("s_waitcnt lgkmcnt(0)\ns_barrier")
    e(f"ds_read_b128 v[72:75], v{vMRs}")
    for k in range(14): e(f"ds_read_b128 v[{160+4*k}:{163+4*k}], v{vMRo} offset:{k*1024}")
    for su, x in p5_dmas(1):
        for y in reversed(su): e(y)
        if su: e("s_nop 0")
        e(x)
    e.need("v[72:75]")
    for k in range(14, 16): e(f"ds_read_b128 v[{160+4*k}:{163+4*k}], v{vMRo} offset:{k*1024}")
    for j in range(2):
        e(f"v_min_f32 v89, v{74+j}, v{NEGM(2+j)}\nv_sub_f32 v{64+2*j}, v89, v{NEGM(2+j)}\nv_sub_f32 v{68+2*j}, v89, v{74+j}")
    for j in range(2): e(f"v_exp_f32 v{64+2*j}, v{64+2*j}\nv_exp_f32 v{68+2*j}, v{68+2*j}")
    for j in range(2): e(f"v_mul_f32 v{LL(2+j)}, v{LL(2+j)}, v{64+2*j}")
    for j in range(2): e(f"v_fmac_f32 v{LL(2+j)}, v{72+j}, v{68+2*j}")
    xreduce(e, "v_add_f32", [LL(2), LL(3)], [89, 90])
    for j in range(2): e(f"v_rcp_f32 v{LL(2+j)}, v{LL(2+j)}")
    e("s_nop 0")
    for j in range(2):
        for b in (64, 68): e(f"v_mul_f32 v{b+2*j}, v{b+2*j}, v{LL(2+j)}\nv_mov_b32 v{b+2*j+1}, v{b+2*j}")
    for j in range(2):
        for k in range(16):
            src = Or(2 + j, 0) + 2 * k; tr = 90 + 2 * (k & 1); rx = 160 + 32 * j + 2 * k
            e(f"v_accvgpr_read_b32 v{tr}, a{src}\nv_accvgpr_read_b32 v{tr+1}, a{src+1}")
            e(f"v_pk_mul_f32 v[{tr}:{tr+1}], v[{tr}:{tr+1}], v[{64+2*j}:{65+2*j}]")
            e.need(f"v[{rx}:{rx+1}]")
            e(f"v_pk_fma_f32 v[{tr}:{tr+1}], v[{rx}:{rx+1}], v[{68+2*j}:{69+2*j}], v[{tr}:{tr+1}]")
            e(f"v_cvt_pk_bf16_f32 v{128+16*j+k}, v{tr}, v{tr+1}")
            if k & 3 == 3:
                su, x = ctx_store(128, sCB, 4 * j + (k >> 2)); e(su[0]); e(x)
            if j == 1:
                for x in p5_reads(0)[2 * k:2 * k + 2]: e(x)

def fallback(e, name, b, J3):
    e(f"{name}:\ns_nop 15")
    for j, scale, nxt in J3:
        d = 89
        max8(e, d, Sr(b, j))
        xreduce(e, "v_max_f32", [d], [90])
        e(f"v_max_f32 v{d}, 0, v{d}\nv_sub_f32 v90, 0, v{d}\nv_exp_f32 v90, v90")
        for x in range(8): e(f"v_sub_f32 v{Sr(b, j)+x}, v{Sr(b, j)+x}, v{d}")
        if nxt:
            for r in range(4): e(f"v_sub_f32 v{NEGM(j)+r}, v{NEGM(j)+r}, v{d}")
            for x in range(8): e(f"v_sub_f32 v{Sr(b ^ 1, j)+x}, v{Sr(b ^ 1, j)+x}, v{d}")
        if scale:
            e(f"v_mul_f32 v{LL(j)}, v{LL(j)}, v90")
            for x in range(0, 32, 2):
                o = Or(j, 0) + x
                e(f"v_accvgpr_read_b32 v91, a{o}\nv_accvgpr_read_b32 v92, a{o+1}\nv_mul_f32 v91, v91, v90\nv_mul_f32 v92, v92, v90\nv_accvgpr_write_b32 a{o}, v91\nv_accvgpr_write_b32 a{o+1}, v92")
    for ex, fol in sm_ops(b, [j for j, _, _ in J3]):
        e(ex); e("s_nop 0")
        for x in fol: e(x)
    for ex, fol in sm_ops(b ^ 1, [3])[:2]: e(ex)
    e(f"s_nop 1\ns_setpc_b64 s[{sRET}:{sRET+1}]")

def attn_pre(e):
    e.need(vmtags=("k0",), lg0=True)
    e("s_barrier")
    for f in range(8): e(kread(0, f))

def attention(e):
    B = {k: Blk(k, p, c) for k, p, c in (("fFF", None, "F"), ("fDF", None, "D"), ("FF", "F", "F"), ("DF", "F", "D"),
                                          ("TY", "D", "Y"), ("YY", "Y", "Y"), ("YD", "Y", "E"), ("TYD", "D", "E"))}
    segs = {}
    def seg(name):
        n0 = len(e.l); attn_block(e, B[name]); segs[name] = e.l[n0:]
    e(f"s_cmp_eq_u32 s{sIDX}, 0\ns_cbranch_scc1 L_fDF")
    seg("fFF")
    e(f"s_sub_u32 s{sCNT}, s{sIDX}, 1\ns_cmp_eq_u32 s{sCNT}, 0\ns_cbranch_scc1 L_DF\n.p2align 3\nL_FF:")
    seg("FF")
    e(f"s_sub_u32 s{sCNT}, s{sCNT}, 1\ns_cmp_lg_u32 s{sCNT}, 0\ns_cbranch_scc1 L_FF\nL_DF:")
    seg("DF")
    e(f"s_cmp_eq_u32 s{sIDX}, 7\ns_cbranch_scc1 L_TYD\nL_TY:")
    seg("TY")
    stamp(e, 7)
    e(f"s_sub_u32 s{sCNT}, 6, s{sIDX}\ns_cmp_eq_u32 s{sCNT}, 0\ns_cbranch_scc1 L_YD\n.p2align 3\nL_YY:")
    seg("YY")
    e(f"s_sub_u32 s{sCNT}, s{sCNT}, 1\ns_cmp_lg_u32 s{sCNT}, 0\ns_cbranch_scc1 L_YY\nL_YD:")
    seg("YD")
    e("L_fin:")
    def out_of_line():
        e("L_fDF:"); seg("fDF")
        e("s_branch L_TY\nL_TYD:"); seg("TYD")
        e("s_branch L_fin")
        for site, fb in STUBS:
            e(f"{site}_fb:\ns_call_b64 s[{sRET}:{sRET+1}], {fb}\ns_branch {site}_ret")
        for name, (b, J3) in FBS.items():
            n0 = len(e.l); fallback(e, name, b, J3); segs[name] = e.l[n0:]
    return segs, out_of_line

sS, sAH, sAC, sWH, sWC, sXO, sFH, sFC = 65, 66, 67, 68, 69, 70, 80, 81
sMA, sMW, sBO, sEXl, sFE, sBH, sBC = 78, 82, 84, 64, 72, 4, 6
sEX3 = 85
SLOT = 36864; SLMAP = (0, 2, 1, 3)
vWD5, vP1, vP2, vXO, vBO, vRA = 14, 30, 31, 28, 29, 4
vRE, vRO = (26, 12), (27, 13)
vTW, vT2 = 19, 20
PHL = f"buffer_load_dword v20, v{vP1}, s[{RWS}:{RWS+3}], s{sFH} offen sc1"
def early_setup():
    mt, nt, t0, t1, t2 = sT, sT + 1, sT + 2, sT + 4, sT + 5
    S = f"""
    s_lshl_b32 s{t0}, s{sH}, 15
    s_lshl_b32 s{t1}, s{sW}, 10
    s_add_u32 s{t0}, s{t0}, s{t1}
    s_add_u32 s{t0}, s{t0}, {CF}
    s_lshl_b32 s{sCA}, s{sIDX}, 20
    s_add_u32 s{sCA}, s{sCA}, s{t0}
    s_sub_u32 s{sCB}, 15, s{sIDX}
    s_lshl_b32 s{sCB}, s{sCB}, 20
    s_add_u32 s{sCB}, s{sCB}, s{t0}
    s_mov_b32 s{sTHR}, {f32(2.0**40)}
    s_and_b32 s{t0}, s{sW}, 1
    s_lshl_b32 s{sP8K}, s{t0}, 13
    s_xor_b32 s{t1}, s{sW}, 1
    s_lshl_b32 s{t0}, s{t0}, 1
    """
    for (m, kt), r in SEL.items():
        S += f"s_sub_i32 s{t2}, s{sW}, {2*m + kt}\n" if m < 2 else f"s_sub_i32 s{t2}, s{sW if m == 2 else t1}, s{t0}\ns_sub_i32 s{t2}, s{t2}, {kt}\n"
        S += f"s_cmp_eq_u32 s{t2}, 0\ns_cselect_b32 s{r}, 1.0, 0\ns_cmp_lt_i32 s{t2}, 0\ns_cselect_b32 s{r+1}, {BIG}, 0\n"
    S += f"""
    s_mov_b32 s{R0}, s{pWO}
    s_and_b32 s{R0+1}, s{pWO+1}, 0xffff
    s_mov_b32 s{R0+2}, {4096*1280}
    s_mov_b32 s{R0+3}, 0x20000
    s_mov_b32 s{R1}, s{pW2}
    s_and_b32 s{R1+1}, s{pW2+1}, 0xffff
    s_mov_b32 s{R1+2}, {1728*1280}
    s_mov_b32 s{R1+3}, 0x20000
    v_lshrrev_b32 v{vXO}, 4, v{vL16}
    s_lshl_b32 s{t0}, s2, 2
    s_add_u32 s{t0}, s{t0}, s{sW}
    s_mul_i32 s{t1}, s{t0}, 40
    v_min_u32 v{vTW}, 39, v{vXO}
    v_add_u32 v{vTW}, s{t1}, v{vTW}
    v_lshlrev_b32 v{vTW}, 7, v{vTW}
    s_mul_i32 s{t1}, s{t0}, 17
    v_min_u32 v{vT2}, 16, v{vXO}
    v_add_u32 v{vT2}, s{t1}, v{vT2}
    v_lshlrev_b32 v{vT2}, 7, v{vT2}
    s_lshr_b32 s{mt}, s{sX}, 2
    s_lshl_b32 s{mt}, s{mt}, 3
    s_lshr_b32 s{t0}, s2, 3
    s_and_b32 s{t0}, s{t0}, 7
    s_add_u32 s{mt}, s{mt}, s{t0}
    s_lshr_b32 s{nt}, s2, 6
    s_and_b32 s{sS}, s{sX}, 3
    s_sub_u32 s{t1}, 15, s{mt}
    s_min_u32 s{t0}, s{mt}, s{t1}
    s_mul_i32 s{t0}, s{t0}, {32*FS}
    s_add_u32 s{sFH}, s{t0}, {FH}
    s_mul_i32 s{t1}, s{sS}, {8*FS}
    s_add_u32 s{sFC}, s{t0}, s{t1}
    s_add_u32 s{sFC}, s{sFC}, {FC}
    """
    if W0: S += f"s_cmp_eq_u32 s{sW}, 0\ns_cselect_b32 s{sFH}, s{sFH}, {WS_END}\ns_cselect_b32 s{sFC}, s{sFC}, {WS_END}\n"
    S += f"""
    s_mul_i32 s{sBH}, s{mt}, {54*8192}
    s_add_u32 s{sBH}, s{sBH}, {HF}
    s_lshl_b32 s{sBC}, s{mt}, 20
    s_add_u32 s{sBC}, s{sBC}, {CF}
    s_lshl_b32 s{t0}, s{sW}, 12
    s_mul_i32 s{sAH}, s{sS}, {14*8192}
    s_add_u32 s{sAH}, s{sAH}, s{t0}
    s_lshl_b32 s{sAC}, s{sS}, 18
    s_add_u32 s{sAC}, s{sAC}, s{t0}
    s_mul_i32 s{sMW}, s{sW}, 5120
    s_add_u32 s{sMW}, s{sMW}, 16384
    s_mul_i32 s{t0}, s{sW}, {16*1280}
    s_mul_i32 s{sBO}, s{nt}, 320
    s_add_u32 s{t0}, s{t0}, s{sBO}
    s_mul_i32 s{sWH}, s{sS}, {14*32*1280}
    s_add_u32 s{sWH}, s{sWH}, s{t0}
    s_mul_i32 s{sWC}, s{sS}, {1024*1280}
    s_add_u32 s{sWC}, s{sWC}, s{t0}
    """
    a, b, c = vRE[0], vRO[0], vBO
    for k in range(5):
        S += f"""
        v_add_u32 v{a}, {64*k}, v{vXO}
        v_mul_u32_u24 v{b}, 3277, v{a}
        v_lshrrev_b32 v{b}, 16, v{b}
        v_mul_u32_u24 v{c}, 20, v{b}
        v_sub_u32 v{a}, v{a}, v{c}
        v_lshrrev_b32 v{c}, 1, v{b}
        v_and_b32 v{c}, 2, v{c}
        v_xor_b32 v{a}, v{a}, v{c}
        v_mul_u32_u24 v{b}, 1280, v{b}
        v_lshl_add_u32 v{vWD5+k}, v{a}, 4, v{b}
        """
        if 0 < k < 4: S += f"v_subrev_u32 v{vWD5+k}, {1024*k}, v{vWD5+k}\n"
    S += f"""
    s_lshr_b32 s{t1}, s{sW}, 1
    s_mul_i32 s{t2}, s{t1}, 160
    s_add_u32 s{sBO}, s{sBO}, s{t2}
    s_add_u32 s{t2}, s{t2}, 16384
    v_lshrrev_b32 v{a}, 2, v{vXO}
    v_mul_u32_u24 v{a}, 320, v{a}
    v_and_b32 v{b}, 3, v{vXO}
    v_lshl_add_u32 v{a}, v{b}, 3, v{a}
    v_add_u32 v{a}, s{t2}, v{a}
    v_lshlrev_b32 v{c}, 1, v{vXO}
    v_and_b32 v{c}, 32, v{c}
    s_cmp_eq_u32 s{t1}, 0
    s_cselect_b32 s{t0}, 1, -1
    v_mul_i32_i24 v{c}, s{t0}, v{c}
    v_sub_u32 v{b}, v{a}, v{c}
    v_add_u32 v{a}, v{a}, v{c}
    s_and_b32 s{t0}, s{sW}, 1
    s_lshl_b32 s{sXO}, s{mt}, 3
    s_lshl_b32 s{t0}, s{t0}, 2
    s_add_u32 s{sXO}, s{sXO}, s{t0}
    s_add_u32 s{sXO}, s{sXO}, s{sS}
    s_mul_i32 s{sXO}, s{sXO}, {16*1280}
    s_add_u32 s{sXO}, s{sXO}, s{sBO}
    v_lshrrev_b32 v{vBO}, 4, v{vXO}
    v_lshlrev_b32 v{vBO}, 3, v{vBO}
    v_and_b32 v{vXO}, 15, v{vXO}
    v_mul_u32_u24 v{vXO}, 1280, v{vXO}
    v_add_u32 v{vXO}, v{vXO}, v{vBO}
    v_lshlrev_b32 v{vP1}, 3, v{vL16}
    v_and_b32 v{vP2}, {7*FS}, v{vP1}
    v_and_b32 v{vP1}, {31*FS}, v{vP1}
    s_lshl_b32 s{t0}, s{mt}, 2
    s_add_u32 s{t0}, s{t0}, s{nt}
    s_lshl_b32 s{sFE}, s{t0}, 2
    s_add_u32 s{sFE}, s{sFE}, s{sW}
    s_mul_i32 s{sFE}, s{sFE}, {FS * 4}
    s_add_u32 s{sFE}, s{sFE}, {FEX}
    s_mul_i32 s{t0}, s{t0}, {16*20480}
    s_mul_i32 s{t1}, s{sW}, 5120
    s_add_u32 s{t0}, s{t0}, s{t1}
    s_add_u32 s{t0}, s{t0}, {EX}
    s_mul_i32 s{t1}, s{sS}, 20480
    s_add_u32 s{mt}, s{t0}, s{t1}
    s_lshl_b32 s{t1}, s{t1}, 2
    s_add_u32 s{sEXl}, s{t0}, s{t1}
    """
    for r in range(3): S += f"s_add_u32 s{t0}, s{sS}, {r + 1}\ns_and_b32 s{t0}, s{t0}, 3\ns_mul_i32 s{t0}, s{t0}, {4*20480}\ns_add_u32 s{sEX3+r}, s{mt}, s{t0}\n"
    return [x.strip() for x in S.split("\n") if x.strip()]
def place_early(fills, k0, g0, NG): place_list(early_setup(), fills, k0, g0, NG, (19, NG - 1))
def p5_setup(e):
    srd(e, R0, pWS, 54 * 8192, f"s{sBH}")
    srd(e, R1, pWS, 128 * 8192, f"s{sBC}")
    srd(e, R2, pW2, 1728 * 1280)
    srd(e, R3, pWO, 4096 * 1280)
    e(f"v_add_u32 v{vRE[1]}, {2*SLOT}, v{vRE[0]}\nv_add_u32 v{vRO[1]}, {2*SLOT}, v{vRO[0]}\ns_lshr_b32 s{sT+2}, s{sP8K}, 1")
    for r in range(4):
        e(f"s_add_u32 s{sT}, s{sS}, {r + 1}\ns_and_b32 s{sT}, s{sT}, 3\ns_lshl_b32 s{sT+1}, s{sT}, 10\ns_add_u32 s{sT+1}, s{sT+1}, s{sT+2}\nv_add_u32 v{vRA+r}, s{sT+1}, v{vL16}\nv_add_u32 v{vRA+4+r}, {2*SLOT}, v{vRA+r}")

def p5_dmas(d):
    sl = SLMAP[d & 3] * SLOT
    if d < 7: ra, sa, oa, rw, sw, ow = R0, sAH, d * 16384, R2, sWH, d * 64 * 1280
    else: ra, sa, oa, rw, sw, ow = R1, sAC, (d - 7) * 16384, R3, sWC, (d - 7) * 64 * 1280
    W = []
    for k in range(5):
        su = []
        if k == 0: su = [f"s_add_u32 m0, s{sMW}, {sl}", f"s_add_u32 s{sT+1}, s{sw}, {ow}"]
        if k == 4: su = [f"s_add_u32 m0, s{sMW}, {sl + 4096}"]
        W.append((su, f"buffer_load_dwordx4 v{vWD5+k}, s[{rw}:{rw+3}], s{sT+1} offen offset:{(k & 3) * 1024} lds"))
    A = []
    for k in range(4):
        su = [f"s_add_u32 m0, s{sMA}, {sl}", f"s_add_u32 s{sT}, s{sa}, {oa}"] if k == 0 else []
        A.append((su, f"buffer_load_dwordx4 v{vL16}, s[{ra}:{ra+3}], s{sT} offen offset:{k * 1024} lds"))
    return W + A
def p5_buf(m): return (m & 3) * 36
def p5_wreads(m):
    d, ks = m >> 1, m & 1; b = p5_buf(m); hi = SLMAP[d & 3] >> 1; o = (SLMAP[d & 3] & 1) * SLOT
    L = []
    for n in range(5):
        a = (vRO if n & 1 else vRE)[hi]; off = o + ks * 32 * 320 + n * 32
        L += [f"ds_read_b64_tr_b16 a[{b+4*n}:{b+4*n+1}], v{a} offset:{off}", f"ds_read_b64_tr_b16 a[{b+4*n+2}:{b+4*n+3}], v{a} offset:{off + 5120}"]
    return L
def p5_aread(m, r):
    d, ks = m >> 1, m & 1; b = p5_buf(m); hi = SLMAP[d & 3] >> 1; o = (SLMAP[d & 3] & 1) * SLOT
    return f"ds_read_b128 a[{b+20+4*r}:{b+23+4*r}], v{vRA+4*hi+r} offset:{o + ks * 8192}"
def p5_reads(d, last=False):
    W = [p5_wreads(2 * d), p5_wreads(2 * d + 1)]
    A = lambda r: [p5_aread(2 * d, r), p5_aread(2 * d + 1, r)]
    Wn = lambda n: W[0][2*n:2*n+2] + W[1][2*n:2*n+2]
    if last: return Wn(0) + A(0) + Wn(1) + Wn(2) + Wn(3) + Wn(4) + A(1) + A(2) + A(3)
    return Wn(0) + A(0) + A(1) + A(2) + A(3) + Wn(1) + Wn(2) + Wn(3) + Wn(4)

def p5(e):
    ACC = 32; ND = 23
    tick_dump(e, 2)
    attn_final(e)
    stamp(e, 8)
    warm(e, "b")
    e(f"s_add_u32 s{sT+2}, s{sQ+1}, {FC - FH}\ns_waitcnt vmcnt(0) lgkmcnt(0)\ns_barrier\nL_p5loop:")
    e(flag_store(sT + 2))
    stamp(e, 9)
    PCL = f"buffer_load_dword v20, v{vP2}, s[{RWS}:{RWS+3}], s{sFC} offen sc1"
    mfs = []; fills = []
    def mfma(m, n, r, z):
        b = p5_buf(m); dd = ACC + (r * 5 + n) * 4
        return f"{MF} v[{dd}:{dd+3}], a[{b+4*n}:{b+4*n+3}], a[{b+20+4*r}:{b+23+4*r}], " + ("0" if m < 2 and z == 0 else v(dd, 4))
    for d in range(ND):
        T_ = [(n, r) for n in range(5) for r in range(4)] if d < ND - 1 else [(n, r) for r in range(4) for n in range(5)]
        mfs.append([mfma(2 * d + (z ^ (k & 1)), n, r, z) for k, (n, r) in enumerate(T_) for z in range(2)]); fills.append([[] for _ in range(40)])
    for d in range(ND - 1):
        for k, x in enumerate(p5_reads(d + 1, d == ND - 2)): fills[d][1 + k + k // 4].append(x)
        if d: fills[d][0].append(bar([f"d{d+1}"]))
    NM = ND - 1
    GR = 176; XB = 156
    for k in range(12): fills[18][4 + 2 * k].append(f"v_mov_b32 v{GR + 16*(k >> 2) + (4*(k & 3) + 3 if k & 3 < 3 else 13)}, s{sTAG}")
    fills[18][30].append(f"v_lshrrev_b32 v139, 1, v{vL16}")
    def send(r):
        L = []
        for k in range(10):
            L.append(f"v_cvt_pk_bf16_f32 v{GR + 16*r + 4*(k // 3) + k % 3}, v{ACC+20*r+2*k}, v{ACC+20*r+2*k+1}")
            q = GR + 16 * r + 4 * (k // 3)
            if k % 3 == 2: L.append(f"buffer_store_dwordx4 v[{q}:{q+3}], v{vL16}, s[{RWS}:{RWS+3}], s{sEX3+r} offen offset:{1024 * (k // 3)} sc1")
        L.append(f"buffer_store_dwordx2 v[{q}:{q+1}], v139, s[{RWS}:{RWS+3}], s{sEX3+r} offen offset:3072 sc1")
        return L
    late = []
    g = 0
    for g0_, x in [(10 * (r + 1) + 5, x) for r in range(3) for x in send(r)]:
        g = max(g, g0_)
        if g < 40: fills[NM][g].append(x)
        else: late.append(x)
        g += 1
    for d in range(2, ND):
        P = [(d - 4, g) for g in range(3, 39, 4)]
        if d < 6: P = [((d - 2) >> 1, g) for g in range(2 + 18 * (d & 1), 20 + 18 * (d & 1), 2)]
        for k, (x, (m, g)) in enumerate(zip(p5_dmas(d), P)):
            if d == 7 and k == 5:
                if W0:
                    CB = OPT.get("cb", 20)
                    fills[m][CB].append(async_check("L_p5c", 20, PCL, sTAGW)); fills[m][CB].append("s_barrier"); fills[m][1].append(PCL)
                else:
                    fills[m][g - 1].append(async_check("L_p5c", 20, PCL))
                    fills[m - 1][37].append(PCL)
            put_dma(fills[m], g, x, f"d{d}")
    hs_ = f"""
        v_mov_b32 v20, 0
        v_mov_b32 v132, 0x10000000
        v_cmp_eq_u32 vcc, 0, v{vL16}
        s_lshl_b32 s10, s{sS}, 7
        s_xor_b32 s11, s10, 128
        v_cndmask_b32 v132, v132, v20, vcc
        v_lshlrev_b32 v133, 3, v{vL16}
        v_and_b32 v133, 384, v133
        v_mov_b32 v138, s11
        v_cmp_eq_u32 vcc, s10, v133
        s_nop 1
        v_cndmask_b32 v133, v133, v138, vcc
        s_add_u32 s10, s10, s{sFE}
        """
    place_list([x.strip() for x in hs_.strip().split("\n")], fills, 20, 2, 40, (21, 0))
    HST = f"buffer_store_dword v{vTAG}, v132, s[{RWS}:{RWS+3}], s10 offen sc1"
    if OPT.get("hg", 99) < 40: fills[NM][OPT["hg"]].append(HST)
    OWN = ACC + 60; RXR = (224, 240, 140)
    HPL = f"buffer_load_dword v20, v133, s[{RWS}:{RWS+3}], s{sFE} offen sc1"
    place_list([x for k in range(3) for x in (f"s_add_u32 s{12+k}, s{sS}, {k+1}", f"s_and_b32 s{12+k}, s{12+k}, 3", f"s_mul_i32 s{12+k}, s{12+k}, 20480", f"s_add_u32 s{12+k}, s{12+k}, s{sEXl}")]
               + [f"s_mov_b32 s{R0}, s{pOUT}", f"s_and_b32 s{R0+1}, s{pOUT+1}, 0xffff", f"s_mov_b32 s{R0+2}, {2048*1280}", f"s_mov_b32 s{R0+3}, 0x20000"], fills, 20, 20, 40, (21, 0))
    def own_adds(e):
        e("s_nop 3"); e.need("v[112:131]")
        for q in range(10):
            e(f"v_lshlrev_b32 v134, 16, v{112+q}\nv_and_b32 v135, 0xffff0000, v{112+q}\nv_lshlrev_b32 v136, 16, v{122+q}\nv_and_b32 v137, 0xffff0000, v{122+q}")
            e(f"v_pk_add_f32 v[134:135], v[134:135], v[136:137]\nv_pk_add_f32 v[{OWN+2*q}:{OWN+2*q+1}], v[{OWN+2*q}:{OWN+2*q+1}], v[134:135]")
    def fetch(e):
        for k in range(3):
            for q in range(3): e(f"buffer_load_dwordx4 v[{RXR[k]+4*q}:{RXR[k]+4*q+3}], v{vL16}, s[{RWS}:{RWS+3}], s{12+k} offen offset:{1024*q} sc1")
            e(f"buffer_load_dwordx2 v[{RXR[k]+12}:{RXR[k]+13}], v139, s[{RWS}:{RWS+3}], s{12+k} offen offset:3072 sc1")
    def verify(e):
        tg = [RXR[k] + q for k in range(3) for q in (3, 7, 11, 13)]
        for op, d in (("v_max3_u32", 134), ("v_min3_u32", 135)):
            e(f"{op} v{d}, v{tg[0]}, v{tg[1]}, v{tg[2]}")
            for q in range(3, 11, 2): e(f"{op} v{d}, v{d}, v{tg[q]}, v{tg[q+1]}")
            e(f"{op} v{d}, v{d}, v{tg[11]}, v{tg[11]}")
        e(f"v_xor_b32 v134, s{sTAG}, v134\nv_xor_b32 v135, s{sTAG}, v135\nv_or_b32 v134, v134, v135\nv_cmp_ne_u32 vcc, 0, v134")
    mx = 19
    fills[mx][0].append(grp([f"s_mov_b32 s{R0}, s{pX}", f"s_and_b32 s{R0+1}, s{pX+1}, 0xffff", f"s_mov_b32 s{R0+2}, {2048*1280}", f"s_mov_b32 s{R0+3}, 0x20000",
                             f"s_mov_b32 s{R2}, s{pB2}", f"s_and_b32 s{R2+1}, s{pB2+1}, 0xffff", f"s_mov_b32 s{R2+2}, 1280", f"s_mov_b32 s{R2+3}, 0x20000"]))
    for n in range(5):
        fills[mx][2 + 3 * n].append(f"buffer_load_dwordx2 v[{112+2*n}:{113+2*n}], v{vXO}, s[{R0}:{R0+3}], s{sXO} offen offset:{32*n}")
        fills[mx][20 + 3 * n].append(f"buffer_load_dwordx2 v[{122+2*n}:{123+2*n}], v{vBO}, s[{R2}:{R2+3}], s{sBO} offen offset:{32*n}")
    for m in range(NM + 1):
        if m == 3: stamp(e, 11)
        if m == 4: stamp(e, 12)
        run_gaps(e, mfs[m], fills[m], mfs[m + 1][0] if m < NM else None)
    for x in late: e(x)
    tick_dump(e, 3)
    stamp(e, 13)
    if OPT.get("hg", 99) >= 40: e(HST)
    own_adds(e)
    def hp(e): e(f"{HPL}\ns_waitcnt vmcnt(0)\nv_cmp_ne_u32 vcc, s{sTAG}, v20")
    spin(e, "L_p5hint", hp, None, sleep=OPT.get("hs", 5))
    fetch(e)
    stamp(e, 10)
    e("s_waitcnt vmcnt(0)"); verify(e)
    e("s_cbranch_vccz L_p5x_ok")
    def poll(e):
        fetch(e); e("s_waitcnt vmcnt(0)"); verify(e)
    spin(e, "L_p5x", poll, None, sleep=OPT.get("xs", 1))
    e(f"s_cmp_eq_u32 s2, 0\ns_cselect_b32 s{sT}, {FL}, {0}\ns_cmp_eq_u32 s{sT}, 0\ns_cselect_b32 s{sT}, {WS_END}, s{sT}")
    e(flag_store(sT))
    for q in range(10):
        t = OWN + 2 * q
        for k in range(3):
            u = RXR[k] + 4 * (q // 3) + q % 3; z = 134 + 2 * (k & 1)
            e(f"v_lshlrev_b32 v{z}, 16, v{u}\nv_and_b32 v{z+1}, 0xffff0000, v{u}\nv_pk_add_f32 v[{t}:{t+1}], v[{t}:{t+1}], v[{z}:{z+1}]")
        e(f"v_cvt_pk_bf16_f32 v{112+q}, v{t}, v{t+1}")
        if q & 1: e(f"buffer_store_dwordx2 v[{111+q}:{112+q}], v{vXO}, s[{R0}:{R0+3}], s{sXO} offen offset:{16*(q-1)} {OPT.get('outst', '')}")

def warm(e, name):
    if not OPT.get("hop"): return
    e(f"s_mov_b32 s7, 1")
    for w in range(3): e(f"s_cmp_eq_u32 s{sW}, {w}\ns_cbranch_scc1 HOP_{name}_{w}")
    e(f"s_branch HOP_{name}_3\nHOP_{name}_ret:\ns_mov_b32 s7, 0")
def reads_scc(i): return i.mn.startswith(("s_addc", "s_subb", "s_cselect", "s_cbranch_scc"))
def writes_scc(i): return i.kind == "salu" and not i.mn.startswith(("s_mov", "s_mul_i32", "s_cselect", "s_getpc", "s_sleep", "s_setprio"))
def insert_hops(L, sessions):
    import subprocess, re as _re
    open("hop.s", "w").write(header() + _re.sub(r"HOP_\w_\d", "L_p5loop", "\n".join(i.t for i in L)) + "\n" + footer())
    subprocess.run(["clang", "-x", "assembler", "-target", "amdgcn-amd-amdhsa", "-mcpu=gfx950", "-c", "hop.s", "-o", "hop.o"], check=True)
    dis = subprocess.run(["llvm-objdump", "-d", "--mcpu=gfx950", "hop.o"], capture_output=True, text=True).stdout
    D = [(m.group(1), int(m.group(2), 16)) for m in _re.finditer(r"^\t(\S+).*// ([0-9A-F]{12}):", dis, _re.M)]
    addr = {}; k = 0
    for n, i in enumerate(L):
        if i.kind == "label": continue
        base = lambda x: x.replace("_e32", "").replace("_e64", "")
        while base(D[k][0]) != base(i.mn): k += 1
        addr[n] = D[k][1]; k += 1
    lab = {i.mn[:-1]: n for n, i in enumerate(L) if i.kind == "label" and i.mn.endswith(":")}
    which = {}
    for name, ranges in sessions.items():
        for a, b in ranges:
            for n in range(lab[a], lab[b]): which[n] = name
    ins = []; shift = 0; page = -1
    start = lab["L_p1K"]
    for n in sorted(addr):
        if n < start: continue
        a = addr[n] + shift
        if a >> 12 == page or n not in which:
            page = a >> 12 if n not in which else page
            continue
        m = n; ok = True
        while m < len(L) and not writes_scc(L[m]) and L[m].kind != "br" or (m < len(L) and reads_scc(L[m])):
            if reads_scc(L[m]): ok = False; break
            m += 1
        if not ok:
            assert (a & 4095) < 48, "no safe hop slot"
            continue
        page = a >> 12
        if (a & 4095) < 56: ins.append((n, which[n])); shift += 8
    out = list(L); idx = {}
    per = {name: [n for n, w in ins if w == name] for name in sessions}
    txt = {}
    for name, P in per.items():
        for k, n in enumerate(P):
            nxt = f"HS_{name}_{k+4}" if k + 4 < len(P) else f"HOP_{name}_ret"
            txt[n] = ([f"HOP_{name}_{k}:"] if k < 4 else []) + [f"HS_{name}_{k}:", "s_cmp_eq_u32 s7, 1", f"s_cbranch_scc1 {nxt}"]
        assert len(P) >= 4, (name, len(P))
        print("hop session", name, len(P), "pages")
    out = []
    for n, i in enumerate(L):
        for x in txt.get(n, []): out.append(I(x))
        out.append(i)
    return out

def clone_state(e): return (list(e.vm), list(e.lg))

def build(stop=None):
    FBS.clear(); STUBS.clear()
    e = E(); seg = {}
    def mark(name, n0): seg[name] = e.l[n0:]
    n0 = 0
    e("L_code_begin:")
    if OPT.get("dbgspan"): e("s_memrealtime s[96:97]")
    if STAMP: e("s_mov_b32 s71, 0\ns_memrealtime s[96:97]\ns_memtime s[98:99]")
    prologue(e); p0_ln(e); p1_pre(e); stamp(e, 0); stamp(e, 1); stamp(e, 2)
    mark("pro", n0)
    e(f"s_cmp_ge_u32 s{sW}, 2\ns_cbranch_scc1 L_p1V")
    if OPT.get("hop"): e("s_branch L_p1K\n.p2align 12")
    e("L_p1K:")
    st0 = clone_state(e); st1 = {}; bq = {}
    def p1(T):
        e.vm, e.lg = list(st0[0]), list(st0[1])
        n0 = len(e.l); bg = Bg(); p1_main(e, T, bg); tick_dump(e, 0); stamp(e, 3); mark("p1" + T, n0)
        st1[T] = clone_state(e); bq[T] = list(bg.q)
        e(f"s_cmp_ge_u32 s{sU}, 27\ns_cbranch_scc1 L_qhN{T}")
    def qh(T, hasH):
        e.vm, e.lg = list(st1[T][0]), list(st1[T][1])
        n0 = len(e.l); b = Bg(); b.q = list(bq[T]); qh_main(e, T, hasH, b); mark("qh" + "NH"[hasH] + T, n0)
    p1("K")
    e("s_branch L_qhH\nL_p1V:")
    p1("V")
    assert [t for _, t in st1["K"][0]] == [t for _, t in st1["V"][0]] and [r for r, _ in st1["K"][1]] == [r for r, _ in st1["V"][1]] and bq["K"] == bq["V"]
    e("L_qhH:"); qh("V", True); seg["qhHK"] = seg["qhHV"]
    e("L_postH:")
    n0 = len(e.l)
    tick_dump(e, 1); stamp(e, 4); e("s_nop 7"); q_pack(e); dm = gelu(e, "L_skH"); attn_setup(e, dm); stamp(e, 5); attn_pre(e); stamp(e, 6); mark("postH", n0)
    e("L_attn:")
    segsA, ool = attention(e)
    e("L_p5:")
    n0 = len(e.l); e.vm = []
    p5(e); stamp(e, 14)
    if OPT.get("dbgspan"):
        e("""s_load_dwordx2 s[32:33], s[0:1], 96
        s_memrealtime s[98:99]
        s_waitcnt lgkmcnt(0)
        s_not_b32 s96, s96
        v_mov_b32 v4, 0
        v_mov_b32 v5, s98
        v_mov_b32 v6, s96
        s_mov_b64 exec, 1
        global_atomic_umax v4, v5, s[32:33] sc1
        global_atomic_umax v4, v6, s[32:33] offset:4 sc1""")
    mark("p5", n0)
    e("L_exit:\ns_endpgm")
    e("L_qhNK:\nL_qhNV:"); qh("V", False); seg["qhNK"] = seg["qhNV"]
    n0 = len(e.l)
    tick_dump(e, 1); stamp(e, 4); e(PKL); e("\n".join(early_setup())); q_pack(e); async_check("L_skN", vTR + 1, PKL)(e); attn_setup(e, kv_prologue_list()); stamp(e, 5); attn_pre(e); stamp(e, 6); mark("postN", n0)
    e("s_branch L_attn")
    ool()
    e("L_code_end:")
    seg.update(segsA)
    errs = []
    for T in "KV":
        for Hh in "HN":
            class X: pass
            x = X(); x.l = seg["p1" + T] + seg["qh" + Hh + T]; check_drain_order(x)
    def path(i):
        if i == 0: a = ["fDF"]
        else: a = ["fFF"] + ["FF"] * min(i - 1, 2) + ["DF"]
        return a + (["TYD"] if i == 7 else ["TY"] + ["YY"] * min(6 - i, 2) + ["YD"])
    for T, Hh, i in (("K", "H", 0), ("V", "N", 1), ("K", "N", 3), ("V", "H", 6), ("K", "H", 7)):
        tr = []
        for nme in ["pro", "p1" + T, "qh" + Hh + T, "post" + Hh] + path(i) + ["p5"]: tr += seg[nme]
        errs += check_trace(tr, f"{T},{Hh},{i}")
    for nme in FBS: errs += check_trace(seg[nme], nme)
    seen = set()
    for x in errs:
        k = x.split("]", 1)[1]
        if k not in seen:
            seen.add(k)
            if len(seen) < 12: print("HAZARD", x)
    print("instructions:", sum(1 for i in e.l if i.kind != "label"), {k: len(vv) for k, vv in seg.items()})
    if OPT.get("allld"):
        e.l = [I(i.t.replace(" lds", f" {OPT['allld']} lds")) if (i.kind == "vml" and i.lds and " nt" not in i.t and " sc" not in i.t) else i for i in e.l]
    if OPT.get("hop"):
        e.l = [i for i in e.l if i.mn != ".p2align 3"]
        end_a = {1: "L_attn", 2: "L_fin", 3: "L_postH"}[OPT["hop"]]
        e.l = insert_hops(e.l, {"a": [("L_qhH" if OPT.get("hq") else "L_p1K", end_a)], "b": [("L_p5loop", "L_exit")]})
    if "race" in sys.argv:
        import race; race.check_all(e.l)
    mac, body = compress([i.t for i in e.l])
    h = header(); k = h.index(".text")
    open("k_full.s", "w").write(h + e.text() + footer())
    return h[:k] + mac + h[k:] + body + footer(), len(seen)

if __name__ == "__main__":
    STAMP = "stamp" in sys.argv
    txt, ne = build()
    out = sys.argv[1] if len(sys.argv) > 1 else "k.s"
    open(out, "w").write(txt)
    print("bytes", len(txt), "hazards", ne)

def mb_init(e):
    for r in range(4): e(f"v_mov_b32 v{192+r}, 0x3f803f80")
```

```python
import sys, math, struct
from core import *

NAME = "parallel_sum__compressed_kv_cla__dense_activation_gelu__prompt"
def f32(x): return "0x%08x" % struct.unpack("<I", struct.pack("<f", x))[0]
CS = math.log2(math.e) / math.sqrt(128.0)

OPT = dict(kvst="sc1", norole=1, rate=1, bstep=2, bkv=17, notouch1=1, wnt=1, cnt=0, cpf=10, te=3, cs=2, sp0=3, xe=1, be=1, tsp=1, hop=1, np=16, wl=0, late=1, hg=36, qc=1, pc=1, kvb=7, gp=1, pk19=40, hs=8, slp=4, xd=1, bfast=1)
for a in sys.argv[1:]:
    if "=" in a:
        k, vv = a.split("=", 1); OPT[k] = int(vv) if vv.lstrip("-").isdigit() else vv.replace("+", " ")
def NT(k): return ' nt' if OPT.get(k) else ''
XS = 0x0010000; KF = 0x0400000; VF = 0x1500000 + OPT.get('vsk', 0); HF = 0x2600000; CF = 0x2E00000; EX = 0x3F00000; FL = 0x5400000; WS_END = 0x5A00000
HS = 524288 + OPT.get('sk', 0)
FXS = FL + 0x8000; FKV = FL + 0x10000; FH = FL + 0x18000; FC = FL + 0x20000; FEX = FL + 0x80000
FS = 128
sTAG = 88
sW, sH, sIDX, sX = 3, 4, 5, 6
pX, pC, pWQ, pWUK, pWUV, pWO, pW1, pB1, pW2, pB2, pOUT, pDBG, pWS = 8, 10, 12, 14, 16, 18, 22, 24, 26, 28, 30, 32, 34
R0, R1, R2, R3, RWS = 36, 40, 44, 48, 52
sT = 56
sU = 64
sM0a, sM0b, sSa, sSb, sSc, sST = 65, 66, 67, 68, 69, 70
sQ = 72
MF = "v_mfma_f32_16x16x32_bf16"

def srd(e, r, p, nbytes, add=None):
    if add is None:
        e(f"s_mov_b32 s{r}, s{p}\ns_and_b32 s{r+1}, s{p+1}, 0xffff")
    else:
        e(f"s_add_u32 s{r}, s{p}, {add}\ns_addc_u32 s{r+1}, s{p+1}, 0\ns_and_b32 s{r+1}, s{r+1}, 0xffff")
    e(f"s_mov_b32 s{r+2}, {nbytes}\ns_mov_b32 s{r+3}, 0x20000")

vL16, vXR, vWQR, vW1R, vXD, vWQD, vW1D, vSC = 0, 1, 2, 10, 14, 18, 20, 21
vTR, vPK = 24, 28
vTAG = 23
sXS = 80
vCD, vWD, vCR, vWR = 96, 100, 104, 106
vWWIN, vCB = 176, (224, 192)
HACC, QACC = 32, 96
XNB = (224, 240)

class Cap:
    def __init__(self): self.l = []
    def __call__(self, t, tag=None): self.l.extend(x.strip() for x in t.strip().split("\n") if x.strip())
LATE = Cap()
def place_list(L, fills, k0, g0, NG, kmax):
    ks, g = k0, g0; k = 0
    while k < len(L):
        grp_ = [L[k]]
        if L[k].startswith("v_cmp"):
            while not grp_[-1].startswith("v_cndmask"): grp_.append(L[k + len(grp_)])
        elif L[k].startswith("s_"):
            while k + len(grp_) < len(L) and L[k + len(grp_)].startswith("s_") and (len(grp_) < 2 or L[k + len(grp_)].startswith(("s_cselect", "s_addc"))): grp_.append(L[k + len(grp_)])
            if grp_[-1].startswith("s_cmp") and len(grp_) > 1: grp_.pop()
            if k + len(grp_) < len(L) and L[k + len(grp_)].startswith("v_") and not L[k + len(grp_)].startswith("v_cmp"): grp_.append(L[k + len(grp_)])
        k += len(grp_)
        for x in grp_: fills[ks][g].append(("BG", x))
        g += 1
        if g == NG: ks, g = ks + 1, 0
    assert (ks, g) <= kmax, (ks, g)
def prologue(e):
    e(f"""
    s_cmp_ge_u32 s2, {0 if OPT.get("exit0") else 256}
    s_cbranch_scc1 L_exit
    s_load_dwordx16 s[8:23], s[0:1], 0
    s_load_dwordx8 s[24:31], s[0:1], 64
    s_load_dwordx4 s[32:35], s[0:1], 96
    v_lshrrev_b32 v33, 6, v0
    v_and_b32 v32, 63, v0
    v_readfirstlane_b32 s{sW}, v33
    v_lshlrev_b32 v{vL16}, 4, v32
    s_and_b32 s{sX}, s2, 7
    s_lshr_b32 s{sT}, s2, 3
    s_and_b32 s{sT}, s{sT}, 3
    s_lshl_b32 s{sH}, s{sX}, 2
    s_add_u32 s{sH}, s{sH}, s{sT}
    s_lshr_b32 s{sIDX}, s2, 5
    s_mov_b32 s7, 0
    """)
    if OPT.get("cpf"):
        e(f"""
        s_getpc_b64 s[{sT+4}:{sT+5}]
        s_and_b32 s{sT+4}, s{sT+4}, 0xffffff00
        s_lshr_b32 s{sT+2}, s2, 3
        s_lshl_b32 s{sT+2}, s{sT+2}, 2
        s_add_u32 s{sT+2}, s{sT+2}, s{sW}
        v_min_u32 v152, {OPT["cpf"] - 1}, v32
        v_lshlrev_b32 v152, 14, v152
        s_lshl_b32 s{sT+2}, s{sT+2}, 7
        v_add_u32 v152, s{sT+2}, v152
        v_min_u32 v152, L_code_end-L_code_begin-4, v152
        global_load_dword v153, v152, s[{sT+4}:{sT+5}]{NT('cpnt')}
        """)
    e(f"""
    s_mul_i32 s{sU}, s{sX}, 3
    s_add_u32 s{sU}, s{sU}, s{sT}
    s_sub_u32 s{sT+1}, s{sX}, s{sIDX}
    s_and_b32 s{sT+1}, s{sT+1}, 7
    s_add_u32 s{sT+1}, s{sT+1}, 24
    s_cmp_eq_u32 s{sT}, 3
    s_cselect_b32 s{sU}, s{sT+1}, s{sU}
    """)
    e(f"""
    v_lshrrev_b32 v37, 3, v32
    v_and_b32 v38, 7, v32
    v_lshrrev_b32 v39, 4, v32
    v_xor_b32 v50, v38, v39
    v_lshlrev_b32 v50, 4, v50
    v_lshl_add_u32 v{vCD}, v37, 10, v50
    v_xor_b32 v51, 64, v{vCD}
    v_add_u32 v{vCD+1}, 7168, v51
    v_add_u32 v{vCD+2}, {2*7168}, v{vCD}
    v_add_u32 v{vCD+3}, {3*7168}, v51
    v_and_b32 v52, 15, v32
    v_lshlrev_b32 v53, 1, v39
    v_xor_b32 v53, v52, v53
    v_lshlrev_b32 v53, 4, v53
    v_lshl_add_u32 v{vWD}, v39, 13, v53
    v_add_u32 v{vWD+1}, {31744}, v{vWD}
    v_xor_b32 v51, 128, v{vWD}
    v_add_u32 v{vWD+2}, {2*31744}, v51
    v_add_u32 v{vWD+3}, {3*31744}, v51
    """)
    e(f"""
    s_lshl_b32 s{sSa}, s{sIDX}, 18
    s_lshl_b32 s{sT+1}, s{sW}, 16
    s_add_u32 s{sSa}, s{sSa}, s{sT+1}
    s_lshl_b32 s{sM0a}, s{sW}, 13
    s_and_b32 s{sT+1}, s{sW}, 1
    s_lshl_b32 s{sSb}, s{sT+1}, 17
    s_lshl_b32 s{sT+2}, s{sH}, 8
    s_add_u32 s{sSb}, s{sSb}, s{sT+2}
    s_lshl_b32 s{sM0b}, s{sW}, 12
    s_add_u32 s{sM0b}, s{sM0b}, 0x10000
    s_waitcnt lgkmcnt(0)
    """)
    srd(e, R1, pC, 2048 * 1024)
    e(f"s_cmp_ge_u32 s{sW}, 2\ns_cselect_b32 s{R2}, s{pWUV}, s{pWUK}\ns_cselect_b32 s{R2+1}, s{pWUV+1}, s{pWUK+1}")
    e(f"s_and_b32 s{R2+1}, s{R2+1}, 0xffff\ns_mov_b32 s{R2+2}, {512*8192}\ns_mov_b32 s{R2+3}, 0x20000")
    for q in range(8): emit_dma(e, p1_cdma(0, q), "c0")
    for u in range(4): emit_dma(e, p1_wdma(0, u), "w0")
    for x, tag in PRO2()[:OPT.get("np", 28) - 12]: emit_dma(e, x, tag)
    e(f"s_add_u32 s{sT+2}, s{pWS}, {FL}\ns_addc_u32 s{sT+3}, s{pWS+1}, 0\ns_load_dword s{sTAG}, s[{sT+2}:{sT+3}], 0")
    LATE.l.clear()
    srd(e, RWS, pWS, WS_END)
    if OPT.get("late"): e = LATE
    srd(e, R0, pX, 2048 * 1280)
    srd(e, R3, pB1, 1728 * 2)
    e(f"""
    v_lshrrev_b32 v34, 5, v32
    v_and_b32 v35, 31, v32
    v_mul_u32_u24 v36, 1280, v34
    v_lshl_add_u32 v36, v35, 3, v36
    s_lshl_b32 s89, s2, 2
    s_add_u32 s89, s89, s{sW}
    s_mul_i32 s89, s89, 2560
    v_lshlrev_b32 v151, 3, v39
    s_lshl_b32 s90, s{sU}, 7
    """)
    e(f"""
    s_lshl_b32 s{sT+4}, s{sH}, 8
    s_mul_i32 s{sT+2}, s{sIDX}, 80
    s_mul_i32 s{sT+3}, s{sW}, 20
    s_add_u32 s{sT+2}, s{sT+2}, s{sT+3}
    s_lshl_b32 s{sT+3}, s{sT+2}, 13
    s_add_u32 s{sT+3}, s{sT+3}, s{sT+4}
    s_mul_i32 s{sT+2}, s{sT+2}, 3456
    s_lshl_b32 s{sT+4}, s{sU}, 7
    s_add_u32 s{sT+2}, s{sT+2}, s{sT+4}
    v_min_u32 v140, {7 if OPT.get("tsp") else 39}, v32
    v_and_b32 v144, 1, v140
    v_lshlrev_b32 v144, 7, v144
    v_lshrrev_b32 v140, 1, v140
    v_lshl_add_u32 v140, v140, 13, v144
    v_min_u32 v145, {3 if OPT.get("tsp") else 19}, v32
    v_mul_u32_u24 v145, 3456, v145
    """)
    srd(e, 84, pWQ, 640 * 8192)
    e(f"s_mov_b32 s93, s{sT+3}\ns_mov_b32 s94, s{sT+2}")

PC = OPT.get('pc', 0)
CSLOT = (0, 32768) * 4 if PC else (32768, 0, 131072, 32768, 0, 32768, 0, 32768)
vCR2 = 124; vWR2 = 160
def p1_cdma(j, q):
    setup = []
    if q % 4 == 0:
        setup = [f"s_add_u32 m0, s{sM0a}, {CSLOT[j] + (q >> 2) * 4096}", f"s_add_u32 s{sT}, s{sSa}, {j * 128 + (q >> 2) * 32768}"]
    return setup, f"buffer_load_dwordx4 v{vCD + (q & 3)}, s[{R1}:{R1+3}], s{sT} offen offset:{(q & 3) * 1024}{NT('cnt')} lds"
def p1_wslot(sidx): return ((1, 0, 2, 1, 0, 2, 1, 0)[sidx >> 1] * 2 + (sidx & 1) if PC else (sidx + 2) & 3) * 16384
def p1_wdma(sidx, u):
    setup = []
    if u == 0:
        setup = [f"s_add_u32 m0, s{sM0b}, {p1_wslot(sidx)}", f"s_add_u32 s{sT+1}, s{sSb}, {sidx * 32 * 8192}"]
    return setup, f"buffer_load_dwordx4 v{vWD + u}, s[{R2}:{R2+3}], s{sT+1} offen offset:{u * 1024}{NT('wnt')} lds"

def PRO2():
    L = [(p1_wdma(1, u), "w1") for u in range(4)] + [(p1_cdma(1, q), "c1") for q in range(8)] + [(p1_wdma(2, u), "w2") for u in range(4)]
    return L
def emit_dma(e, pair, tag):
    su, d = pair
    for x in su: e(x)
    if su: e("s_nop 0")
    e(d, tag=tag)

def reduce32(r, t):
    L = []
    for mod in ("quad_perm:[1,0,3,2]", "quad_perm:[2,3,0,1]", "row_half_mirror", "row_mirror"):
        L += ["s_nop 0", f"v_add_f32_dpp v{r}, v{r}, v{r} {mod} row_mask:0xf bank_mask:0xf"]
    return L + [f"v_mov_b32 v{t}, v{r}", "s_nop 0", f"v_permlane16_swap_b32 v{r}, v{t}", f"v_add_f32 v{r}, v{r}, v{t}"]

def ln_ops():
    L = []; U = 50
    for k in range(10): L += [f"v_lshlrev_b32 v{U+2*k}, 16, v{40+k}", f"v_and_b32 v{U+1+2*k}, 0xffff0000, v{40+k}"]
    L += [f"v_add_f32 v70, v{U}, v{U+1}"] + [f"v_add_f32 v70, v70, v{U+k}" for k in range(2, 20)]
    L += reduce32(70, 71) + [f"v_mul_f32 v70, {f32(1/640)}, v70"]
    L += [f"v_sub_f32 v{U+k}, v{U+k}, v70" for k in range(20)]
    L += [f"v_mul_f32 v72, v{U}, v{U}"] + [f"v_fmac_f32 v72, v{U+k}, v{U+k}" for k in range(1, 20)]
    L += reduce32(72, 73)
    L += [f"v_mov_b32 v73, {f32(1e-5)}", f"v_fmac_f32 v73, {f32(1/640)}, v72", "v_rsq_f32 v73, v73", f"v_mul_f32 v73, {f32(CS)}, v73"]
    L += [f"v_mul_f32 v{U+k}, v{U+k}, v73" for k in range(20)]
    for k in range(5):
        L += [f"v_cvt_pk_bf16_f32 v{40+2*k}, v{U+4*k}, v{U+4*k+1}", f"v_cvt_pk_bf16_f32 v{41+2*k}, v{U+4*k+2}, v{U+4*k+3}"]
    return L

def p0_ln(e):
    e(f"""
    v_lshrrev_b32 v54, 1, v52
    v_xor_b32 v54, v54, v39
    v_lshlrev_b32 v54, 4, v54
    v_lshl_add_u32 v54, v52, 7, v54
    s_and_b32 s{sT+2}, s{sW}, 1
    s_lshl_b32 s{sT+2}, s{sT+2}, 14
    v_add_u32 v{vCR}, s{sT+2}, v54
    v_xor_b32 v{vCR+1}, 64, v{vCR}
    v_add_u32 v{vCR2}, 0x20000, v{vCR}
    v_add_u32 v{vCR2+1}, 0x20000, v{vCR+1}
    v_lshrrev_b32 v55, 2, v52
    v_and_b32 v56, 1, v39
    v_lshl_add_u32 v56, v56, 2, v55
    v_lshlrev_b32 v56, 5, v56
    v_and_b32 v57, 3, v32
    v_lshlrev_b32 v57, 3, v57
    v_lshl_add_u32 v57, v55, 8, v57
    v_lshl_add_u32 v58, v39, 11, v57
    s_lshr_b32 s{sT+2}, s{sW}, 1
    s_lshl_b32 s{sT+2}, s{sT+2}, 13
    s_add_u32 s{sT+2}, s{sT+2}, 0x10000
    v_add_u32 v58, s{sT+2}, v58
    v_mul_u32_u24 v59, 3072, v39
    v_add_u32 v59, v59, v57
    v_add_u32 v59, {(88 if OPT.get('qc') else 96)*1024}, v59
    """)
    for i in range(8): e(f"v_xor_b32 v{vWQR+i}, {32*i}, v56\nv_add_u32 v{vWR+i}, v{vWQR+i}, v58")
    e0 = e
    if OPT.get("late"): e = LATE
    for i in range(8): e(f"v_add_u32 v{vWQR+i}, v{vWQR+i}, v59")
    if PC:
        for i in range(8): e(f"v_add_u32 v{vWR2+i}, 0x10000, v{vWR+i}")
    e(f"""
    v_lshrrev_b32 v60, 1, v55
    v_and_b32 v61, 1, v39
    v_lshl_add_u32 v60, v61, 1, v60
    v_lshlrev_b32 v60, 5, v60
    v_and_b32 v61, 3, v32
    v_lshlrev_b32 v61, 3, v61
    v_lshl_add_u32 v61, v55, 7, v61
    v_mul_u32_u24 v62, 3072, v39
    v_add3_u32 v61, v61, v62, 0
    v_add_u32 v61, {(88 if OPT.get('qc') else 96)*1024 + 2048}, v61
    """)
    for i in range(4):
        e(f"v_xor_b32 v62, {32*i}, v60\nv_add_u32 v{vW1R+i}, v62, v61")
    if not OPT.get("late"): e("s_waitcnt lgkmcnt(0)")
    e(f"s_mul_i32 s{sTAG}, s{sTAG}, 0x9E3779B1\ns_add_u32 s{sTAG}, s{sTAG}, 0x7F4A7C15")
    if W0: e(f"s_cmp_eq_u32 s{sW}, 0\ns_cselect_b32 s{sTAGW}, s{sTAG}, 0")
    e(f"""
    v_lshrrev_b32 v88, 1, v35
    v_mul_u32_u24 v88, 144, v88
    v_and_b32 v89, 1, v35
    v_lshl_add_u32 v88, v89, 3, v88
    v_lshl_add_u32 v88, v34, 4, v88
    s_lshl_b32 s{sT+2}, s{sW}, 5
    s_add_u32 s{sT+2}, s{sT+2}, 0x20000
    v_add_u32 v76, s{sT+2}, v88
    """)
    e(f"""
    v_lshlrev_b32 v126, 8, v37
    v_lshl_add_u32 v126, v38, 4, v126
    s_lshr_b32 s{sXS}, s2, 1
    s_mul_i32 s{sXS}, s{sXS}, 20480
    s_and_b32 s{sT+3}, s2, 1
    s_lshl_b32 s{sT+3}, s{sT+3}, 7
    s_add_u32 s{sXS}, s{sXS}, s{sT+3}
    s_lshl_b32 s{sT+3}, s{sW}, 11
    s_add_u32 s{sXS}, s{sXS}, s{sT+3}
    s_add_u32 s{sXS}, s{sXS}, {XS}
    s_add_u32 s{sXS+1}, s{sXS}, 8192
    s_add_u32 s{sXS+2}, s{sXS}, 16384
    s_cmp_ge_u32 s{sW}, 2
    s_cselect_b32 s{sXS+2}, {WS_END}, s{sXS+2}
    s_mul_i32 s{sT+5}, s{sW}, {8*144}
    s_add_u32 s{sT+5}, s{sT+5}, 0x20000
    v_mul_u32_u24 v77, 144, v37
    v_lshl_add_u32 v77, v38, 4, v77
    v_add_u32 v77, s{sT+5}, v77
    """)
    e(f"""
    s_lshl_b32 s{sQ}, s{sH}, 3
    s_add_u32 s{sQ}, s{sQ}, s{sIDX}
    s_mul_i32 s{sQ}, s{sQ}, {FS}
    s_add_u32 s{sQ}, s{sQ}, {FKV}
    s_lshl_b32 s{sQ+1}, s{sIDX}, 5
    s_add_u32 s{sQ+1}, s{sQ+1}, s{sH}
    s_mul_i32 s{sQ+1}, s{sQ+1}, {FS}
    s_add_u32 s{sQ+1}, s{sQ+1}, {FH}
    s_mul_i32 s{sQ+2}, s2, {FS}
    s_add_u32 s{sQ+2}, s{sQ+2}, {FXS}
    s_sub_u32 s{sQ+3}, s{sU}, 27
    s_mul_i32 s{sT+5}, s{sX}, 5
    s_add_u32 s{sQ+3}, s{sQ+3}, s{sT+5}
    v_mov_b32 v91, 0
    v_mov_b32 v92, 0x10000000
    v_lshl_add_u32 v93, v33, 6, v32
    v_cmp_eq_u32 vcc, 0, v93
    v_mov_b32 v{vTAG}, s{sTAG}
    v_and_b32 v127, 15, v32
    v_cndmask_b32 v{vSC}, v92, v91, vcc
    s_lshl_b32 s{sT+5}, s{sIDX}, 4
    s_sub_u32 s{sT+4}, 240, s{sT+5}
    v_and_b32 v93, 16, v32
    v_cmp_eq_u32 vcc, 0, v93
    v_mov_b32 v91, s{sT+5}
    v_mov_b32 v92, s{sT+4}
    v_cndmask_b32 v91, v92, v91, vcc
    v_add_u32 v127, v127, v91
    v_lshlrev_b32 v127, 7, v127
    """)

def p1_acc(T, i, j):
    if OPT.get("contig"):
        if T == "K": return 8 * (8 * (j >> 1) + 2 * (i >> 1) + (j & 1)) + 4 * (i & 1)
        return 8 * (8 * (j >> 1) + i) + 4 * (j & 1)
    if T == "K": return 8 * (8 * (i >> 1) + 4 * (j & 1) + (j >> 1)) + 4 * (i & 1)
    return 32 * i + 4 * j
def p1_units():
    U = []
    for n in range(32):
        off = n * 1024 if OPT.get("contig") else (n & 3) * 8192 + (n >> 2) * 1024
        ins = []
        for k in range(4):
            tr = vTR + 2 * (k & 1); src = 8 * n + 2 * k
            ins += [f"v_accvgpr_read_b32 v{tr}, a{src}", f"v_accvgpr_read_b32 v{tr+1}, a{src+1}", f"v_cvt_pk_bf16_f32 v{vPK+k}, v{tr}, v{tr+1}"]
        ins.insert(6, f"s_add_u32 s{sT+7}, s{sST}, {off & ~4095}")
        if OPT["kvst"] != "skip": ins.append((f"buffer_store_dwordx4 v[{vPK}:{vPK+3}], v{vL16}, s[{RWS}:{RWS+3}], s{sT+7} offen offset:{off & 4095} {OPT['kvst']}", "kv"))
        U.append(ins)
    return U

def _kind(y):
    if callable(y): return "call"
    if isinstance(y, tuple) and y[0] == "BG": y = y[1]
    return I(y[0] if isinstance(y, tuple) else y).kind
class Bg:
    def __init__(self): self.q = []
    def push(self, ins): self.q += list(ins)
    def place(self, fill, g0, g1, maxv=1, step=1):
        for g in range(g0, g1, step):
            n = 0
            while self.q and n < maxv:
                x = self.q[0]; t = x[0] if isinstance(x, tuple) else x
                k = I(t).kind if not callable(t) else "call"
                if k in ("vms", "vml") and (n > 0 or any(_kind(y) in ("vml", "vms") for y in fill[g])): break
                fill[g].append(("BG", self.q.pop(0)))
                if k in ("salu", "nop"): continue
                n += 1
                if k in ("vms", "vml"): break
    def flush(self, e):
        for x in self.q:
            t, tag = x if isinstance(x, tuple) else (x, None)
            q = I(t); e.need(q.rd | q.wr); e(t, tag)
        self.q = []

def run_gaps(e, mf, fill, nxt=None):
    f2 = []
    for g in range(len(mf)):
        a = [x for x in fill[g] if not (isinstance(x, tuple) and x[0] == "BG")]
        b = [x[1] for x in fill[g] if isinstance(x, tuple) and x[0] == "BG"]
        if b:
            def mk(b):
                def f(e):
                    for x in b:
                        t, tag = x if isinstance(x, tuple) else (x, None)
                        q = I(t); e.need(q.rd | q.wr); e(t, tag)
                f.last = True
                return f
            a.append(mk(b))
        f2.append(a)
    e.gaps(mf, f2, nxt)

def put_dma(fill, g, pair, tag):
    su, d = pair
    for x in reversed(su): fill[g - 1].append(x)
    fill[g].append((d, tag))

QC = OPT.get('qc', 0); WB = (88 if QC else 96) * 1024
def qh_wslot(sidx): return ((4, 5, 3, 2, 1, 0)[sidx % 6] if QC else (sidx + 3) % 5) * 12288
def qh_dmas(sidx, hasH, d=0):
    L = []
    u32 = lambda x: x & 0xffffffff
    for j in range(4):
        su = [f"s_add_u32 m0, s{sM0a}, {u32((sidx & 3) * 16384 + d * 8192)}", f"s_mov_b32 s{sT}, {XS + sidx * 1024 + d * 40960}"] if j == 0 else []
        L.append((su, f"buffer_load_dwordx4 v{vXD + j}, s[{RWS}:{RWS+3}], s{sT} offen offset:{j * 1024} lds"))
    for u in range(2):
        su = [f"s_add_u32 m0, s{sM0b}, {u32(qh_wslot(sidx) + d * 6144)}", f"s_mov_b32 s{sT+1}, {sidx * 32 * 8192 + d * 131072}"] if u == 0 else []
        L.append((su, f"buffer_load_dwordx4 v{vWQD + u}, s[{R0}:{R0+3}], s{sT+1} offen offset:{u * 1024} lds"))
    if hasH:
        L.append(([f"s_mov_b32 s{sT+2}, {sidx * 32 * 3456 + d * 55296}"], f"buffer_load_dwordx4 v{vW1D}, s[{R1}:{R1+3}], s{sT+2} offen offset:2048 lds"))
    return L
def qh_xread(sidx, j):
    b = XNB[sidx & 1] + 4 * j
    return f"ds_read_b128 v[{b}:{b+3}], v{vXR} offset:{(sidx & 3) * 16384 + j * 1024}"
def qh_wread(sidx, i, n):
    r = (n % 3) * 8 + (sidx & 1) * 4 if QC else (n & 3) * 4
    if i < 8: a, second = vWQR + i, 1024
    else: a, second = vW1R + i - 8, 512
    o = qh_wslot(sidx)
    return [f"ds_read_b64_tr_b16 a[{r}:{r+1}], v{a} offset:{o}", f"ds_read_b64_tr_b16 a[{r+2}:{r+3}], v{a} offset:{o + second}"]

def spin(e, lab, pollA, cond, limit=1000000, sleep=None):
    if sleep is None: sleep = OPT.get('slp', 2)
    e(f"s_mov_b32 s{sT+6}, {limit}\n{lab}:")
    pollA(e)
    e(f"s_cbranch_vccz {lab}_ok\ns_sub_u32 s{sT+6}, s{sT+6}, 1\ns_cmp_eq_u32 s{sT+6}, 0\ns_cbranch_scc1 {lab}_ok\ns_sleep {sleep}\ns_branch {lab}\n{lab}_ok:")

def qh_setup(e):
    L = []
    L += [f"s_lshl_b32 s{sQ+4}, s{sIDX}, 3", f"s_add_u32 s{sQ+4}, s{sQ+4}, s{sW}", f"s_mul_i32 s{sQ+4}, s{sQ+4}, 20480",
          f"s_sub_u32 s{sQ+5}, 15, s{sIDX}", f"s_lshl_b32 s{sQ+5}, s{sQ+5}, 3", f"s_add_u32 s{sQ+5}, s{sQ+5}, s{sW}", f"s_mul_i32 s{sQ+5}, s{sQ+5}, 20480"]
    L += [f"v_add_u32 v{vXD}, s{sQ+4}, v{vL16}", f"v_add_u32 v{vXD+1}, {4*20480 - 1024}, v{vXD}",
          f"v_add_u32 v{vXD+2}, s{sQ+5}, v{vL16}", f"v_add_u32 v{vXD+3}, {4*20480 - 3072}, v{vXD+2}", f"v_subrev_u32 v{vXD+2}, 2048, v{vXD+2}"]
    return L

STAMP = False
TS = FL + 0x40000
def stamp(e, k):
    if not STAMP or (OPT.get("lite") and k not in (0, 14)): return
    if k: e("s_memrealtime s[96:97]\ns_memtime s[98:99]")
    e(f"""s_waitcnt lgkmcnt(0)
    s_lshl_b32 s97, s2, 2
    s_add_u32 s97, s97, s{sW}
    s_lshl_b32 s97, s97, 8
    s_add_u32 s97, s97, {TS + 8 * k}
    s_mov_b64 s[100:101], exec
    s_mov_b64 exec, 1
    {"v_mov_b32 v122" if k == 3 else "v_accvgpr_write_b32 a194" if k >= 7 else "v_accvgpr_write_b32 a254"}, s96
    {"v_mov_b32 v123" if k == 3 else "v_accvgpr_write_b32 a195" if k >= 7 else "v_accvgpr_write_b32 a255"}, s98
    s_nop 1
    buffer_store_dwordx2 {"v[122:123]" if k == 3 else "a[194:195]" if k >= 7 else "a[254:255]"}, off, s[{RWS}:{RWS+3}], s97
    s_mov_b64 exec, s[100:101]
    s_nop 3""")

def header():
    ref = open("cdna_kernels/" + NAME + ".s.ref").read().split("\n")
    kern = "\n".join(x for x in ref[:15] if x.startswith(";"))
    return f"""{kern}
; @launch grid=(256,1,1) block=(256,1,1) lds=163840
;
; One persistent launch, one workgroup (4 waves, 512 registers each) per CU.  Generated by a hand-written Python emitter.
; Workgroup = (head h, index i).  Phases, all on v_mfma_f32_16x16x32_bf16 with LDS-DMA staging:
;   1  K,V = c_kv * W_uk,W_uv for 256 keys of head h, written to d_ws in MFMA fragment order; in its shadow the layernorm of
;      8 rows (scaled by log2(e)/sqrt(128), which the GELU constants undo again) is written to d_ws
;   3  causal attention of both query blocks.  Scores come out of the MFMA already shifted by a running reference that starts as
;      reference to the true maximum of that tile, rescales O and l and redoes the tile.  When the short block is finished,
; Hand-offs between workgroups: write-through stores, vmcnt wait, barrier, then a flag word holding a tag derived from an epoch
; word in d_ws (advanced at the end of the launch), so stale flags of earlier launches never match; no placement is assumed.
.amdgcn_target "amdgcn-amd-amdhsa--gfx950"
.text
.globl {NAME}_kernel
.p2align 8
.type {NAME}_kernel,@function
{NAME}_kernel:
"""
def footer():
    return f"""
.section .rodata,"a"
.p2align 6
.amdhsa_kernel {NAME}_kernel
  .amdhsa_next_free_vgpr 512
  .amdhsa_next_free_sgpr 102
  .amdhsa_accum_offset 256
  .amdhsa_group_segment_fixed_size 0
  .amdhsa_kernarg_size 112
  .amdhsa_user_sgpr_count 2
  .amdhsa_user_sgpr_kernarg_segment_ptr 1
  .amdhsa_system_sgpr_workgroup_id_x 1
.end_amdhsa_kernel
"""

def code_touch(a, b, nl, vt, dst):
    return [grp([f"s_getpc_b64 s[{sT+4}:{sT+5}]", f"LT_{a}_{code_touch.n}:", f"s_add_u32 s{sT+4}, s{sT+4}, {a}-LT_{a}_{code_touch.n}", f"s_addc_u32 s{sT+5}, s{sT+5}, {code_touch.hi(a)}",
                 f"s_lshr_b32 s{sT+6}, s2, 3", f"s_lshl_b32 s{sT+6}, s{sT+6}, 2", f"s_add_u32 s{sT+6}, s{sT+6}, s{sW}", f"s_lshl_b32 s{sT+6}, s{sT+6}, 7"]),
            f"v_lshlrev_b32 v{vt}, 10, v{vL16}", f"v_min_u32 v{vt}, {(nl - 1) << 14}, v{vt}", f"v_add_u32 v{vt}, s{sT+6}, v{vt}", f"v_min_u32 v{vt}, {b}-{a}-4, v{vt}",
            f"global_load_dword {dst}, v{vt}, s[{sT+4}:{sT+5}]"]
code_touch.n = 0
code_touch.hi = lambda a: 0
def grp_all(L):
    def f(e):
        for x in L: x(e) if callable(x) else e(x)
    return f
def grp(L):
    def f(e):
        for x in L: e(x)
    return f
vTK = 22
def tick_pre(e):
    if OPT.get("ticks"): e("s_memtime s[96:97]")
def tick_post(e):
    if OPT.get("ticks") == 2:
        e(f"s_memtime s[98:99]\ns_waitcnt lgkmcnt(0)\ns_lshl_b64 exec, 1, s71\nv_mov_b32 v{vTK}, s96\ns_lshl_b64 exec, 2, s71\nv_mov_b32 v{vTK}, s98\ns_mov_b64 exec, -1\ns_add_u32 s71, s71, 2\ns_and_b32 s71, s71, 63")
    elif OPT.get("ticks"):
        e(f"s_waitcnt lgkmcnt(0)\ns_lshl_b64 exec, 1, s71\nv_mov_b32 v{vTK}, s96\ns_mov_b64 exec, -1\ns_add_u32 s71, s71, 1")
def tick_dump(e, k):
    if OPT.get("ticks"):
        e(f"""s_lshl_b32 s97, s2, 2
        s_add_u32 s97, s97, s{sW}
        s_lshl_b32 s97, s97, 12
        s_add_u32 s97, s97, {FL + 0x100000 + 1024 * k}
        buffer_store_dword v{vTK}, v{vL16}, s[{RWS}:{RWS+3}], s97 offen
        s_mov_b32 s71, 0
        s_nop 1""")
def bar(vmtags=(), lg0=True):
    def f(e):
        tick_pre(e)
        e.need(vmtags=vmtags, lg0=lg0); e("s_barrier")
        tick_post(e)
    return f

def p1_pre(e):
    e0 = e
    if OPT.get("late"): e = LATE
    e(f"""
    s_mul_i32 s{sST}, s{sH}, {HS}
    s_lshl_b32 s{sT+2}, s{sIDX}, 16
    s_add_u32 s{sST}, s{sST}, s{sT+2}
    s_and_b32 s{sT+2}, s{sW}, 1
    s_lshl_b32 s{sT+2}, s{sT+2}, 15
    s_add_u32 s{sST}, s{sST}, s{sT+2}
    s_cmp_ge_u32 s{sW}, 2
    s_cselect_b32 s{sT+2}, {VF-KF}, 0
    s_add_u32 s{sST}, s{sST}, s{sT+2}
    s_add_u32 s{sST}, s{sST}, {KF}
    s_lshl_b32 s{sT+2}, s{sW}, 12
    v_add_u32 v{vXR}, s{sT+2}, v{vL16}
    """)
    e(f"""
    s_and_b32 s{sT+2}, s{sW}, 1
    s_lshl_b32 s{sT+3}, s{sT+2}, 7
    v_xor_b32 v94, s{sT+3}, v{vWD}
    s_lshl_b32 s{sT+3}, s{sW}, 16
    s_lshl_b32 s{sT+4}, s{sH}, 8
    s_add_u32 s{sT+3}, s{sT+3}, s{sT+4}
    v_add_u32 v{vWQD}, s{sT+3}, v94
    v_add_u32 v{vWQD+1}, 31744, v{vWQD}
    """)
    e(f"""
    v_and_b32 v94, 1, v39
    v_lshlrev_b32 v94, 1, v94
    s_lshl_b32 s{sT+3}, s{sT+2}, 2
    v_or_b32 v94, s{sT+3}, v94
    v_xor_b32 v94, v94, v38
    v_lshlrev_b32 v94, 4, v94
    v_mul_u32_u24 v95, 3456, v37
    v_add_u32 v94, v94, v95
    s_mul_i32 s{sT+3}, s{sW}, {8*3456}
    s_lshl_b32 s{sT+4}, s{sU}, 7
    s_add_u32 s{sT+3}, s{sT+3}, s{sT+4}
    v_add_u32 v{vW1D}, s{sT+3}, v94
    """)
    for x in qh_setup(e): e(x)
    e = e0
    if not OPT.get("wl"): warm(e, "a")
    for x, tag in PRO2()[OPT.get("np", 28) - 12:OPT.get("np2", 28) - 12]: emit_dma(e, x, tag)
    if OPT.get("wl"): warm(e, "a")
    e.need(vmtags=("c0", "w0", "w1") if PC else ("c0", "w0"), lg0=True)
    e("s_barrier")
    if PC:
        for x in p1_wread(0) + p1_wread(8): e(x)
        for j in range(8): e(p1_cread(j & 1, j)); e(p1_cread(1 - (j & 1), j))
        return
    for j in range(8): e(p1_cread(0, j))
    for n in range(2):
        for x in p1_wread(n): e(x)

def hacc(ft, j): return HACC + (j * 2 + (ft >> 1)) * 8 + (ft & 1) * 4
def qacc(i, j): return QACC + (j * 4 + (i >> 1)) * 8 + (i & 1) * 4
def bias_init():
    L = []
    for ft in range(4):
        d = hacc(ft, 3)
        for k in range(2):
            L += [f"v_lshlrev_b32 v{d+2*k}, 16, v{114+2*ft+k}", f"v_and_b32 v{d+2*k+1}, 0xffff0000, v{114+2*ft+k}",
                  f"v_mul_f32 v{d+2*k}, {f32(CS)}, v{d+2*k}", f"v_mul_f32 v{d+2*k+1}, {f32(CS)}, v{d+2*k+1}"]
    return L

def p1_cread(sidx, j):
    b = vCB[sidx & 1] + 4 * j
    sl = CSLOT[sidx >> 1]
    return f"ds_read_b128 v[{b}:{b+3}], v{(vCR2 if sl > 65535 else vCR) + (sidx & 1)} offset:{(sl & 65535) + j * 2048}"
def p1_wread(n):
    sidx, i = divmod(n, 8); r = vWWIN + 4 * (n & 3); o = p1_wslot(sidx); a = vWR + i
    if PC:
        r = vWWIN + 8 * (i & 1) + 4 * (sidx & 1)
        if o >= 65536: a, o = vWR2 + i, o - 65536
    return [f"ds_read_b64_tr_b16 v[{r}:{r+1}], v{a} offset:{o}", f"ds_read_b64_tr_b16 v[{r+2}:{r+3}], v{a} offset:{o+1024}"]

W0 = OPT.get("w0", 1) and not OPT.get("ticks")
sTAGW = 71 if W0 else sTAG
def async_check(lab, reg, reload, tag=None):
    def f(e):
        e.need(f"v{reg}")
        e(f"v_cmp_ne_u32 vcc, s{tag or sTAG}, v{reg}\ns_cbranch_vccz {lab}_ok")
        sv, sl = list(e.vm), list(e.lg)
        def poll(e):
            e(reload); e("s_waitcnt vmcnt(0)"); e(f"v_cmp_ne_u32 vcc, s{tag or sTAG}, v{reg}")
        spin(e, lab, poll, None)
        e.vm, e.lg = sv, sl
    return f
def flag_store(sreg): return f"buffer_store_dword v{vTAG}, v{vSC}, s[{RWS}:{RWS+3}], s{sreg} offen sc1"

PARK = {0: 20, 1: 28, 2: 16, 3: 24}
def park_units():
    L = []
    for n in (2, 3, 0, 1):
        for k in range(4):
            tr = vTR + 2 * (k & 1); src = 8 * n + 2 * k
            L += [f"v_accvgpr_read_b32 v{tr}, a{src}", f"v_accvgpr_read_b32 v{tr+1}, a{src+1}", f"v_cvt_pk_bf16_f32 v{vPK+k}, v{tr}, v{tr+1}"]
        L += [f"v_accvgpr_write_b32 a{PARK[n]+k}, v{vPK+k}" for k in range(4)]
    return L
def parked_stores():
    L = []
    for n in range(4):
        L += [f"s_add_u32 s{sT+7}, s{sST}, {n * 8192}", (f"buffer_store_dwordx4 a[{PARK[n]}:{PARK[n]+3}], v{vL16}, s[{RWS}:{RWS+3}], s{sT+7} offen sc1", "kv")]
    return L

def p1_main_c(e, T, bg):
    fills = [[[] for _ in range(64)] for _ in range(16)]
    at = lambda G: fills[G >> 6][G & 63]
    B = lambda m: 128 * m + 111
    Bp = lambda m: 128 * m + 15
    def put(L, G0, G1):
        st = (G1 - G0) // len(L); assert st >= 2, (G0, G1, len(L))
        for k, ((su, d), tag) in enumerate(L):
            for x in reversed(su): at(G0 + st * k - 1).append(x)
            at(G0 + st * k).append((d, tag))
    Wd = lambda s_: [(p1_wdma(s_, u), f"w{s_}") for u in range(4)]
    Cd = lambda j: [(p1_cdma(j, q), f"c{j}") for q in range(8)]
    xl = [(([], f"buffer_load_dwordx2 v[{40+2*k}:{41+2*k}], v36, s[{R0}:{R0+3}], s89 offen offset:{256*k}"), "x") for k in range(5)]
    bl = [(([], f"buffer_load_dwordx2 v[{114+2*ft}:{115+2*ft}], v151, s[{R3}:{R3+3}], s90 offen offset:{32*ft}"), "b1") for ft in range(4)]
    def tch(k):
        su = [grp([f"s_mov_b32 s{R3}, s{pW1}", f"s_and_b32 s{R3+1}, s{pW1+1}, 0xffff", f"s_mov_b32 s{R3+2}, {640*3456}", f"s_mov_b32 s{R3+3}, 0x20000"])] if k == 0 else [f"s_add_u32 s94, s94, {4*3456}"]
        return [(([] if k == 0 else [f"s_add_u32 s93, s93, {4*8192}"], f"buffer_load_dword v149, v140, s[84:87], s93 offen"), "tc"), ((su, f"buffer_load_dword v150, v145, s[{R3}:{R3+3}], s94 offen"), "tc")]
    xst = [(([], f"buffer_store_dwordx4 v[{128+4*k}:{131+4*k}], v126, s[{RWS}:{RWS+3}], s{sXS+k} offen sc1"), "xs") for k in range(3)]
    PXL = f"buffer_load_dword v122, v127, s[{RWS}:{RWS+3}], s{sT+5} offen sc1"
    pxs = [(([grp([f"s_mov_b32 s{sT+5}, {WS_END}", f"s_cmp_eq_u32 s{sW}, 0", f"s_cselect_b32 s{sT+5}, {FXS}, s{sT+5}"]) if W0 else f"s_mov_b32 s{sT+5}, {FXS}"], PXL), "pa")]
    Q = lambda k: [(d, f"q{k}") for d in qh_dmas(k, True)]
    put(PRO2()[OPT.get("np2", 28) - 12:] + Wd(3), 2, 14)
    put(Wd(4) + Wd(5) + Cd(2) + xl + bl, Bp(0) + 2, B(0) - 1)
    put(Wd(6) + Wd(7), B(0) + 2, Bp(1) - 1)
    put(Cd(3) + tch(0) + tch(1), Bp(1) + 2, B(1) - 30)
    put(Wd(8) + Wd(9), B(1) + 2, Bp(2) - 1)
    put(Cd(4) + tch(2) + tch(3), Bp(2) + 2, B(2) - 30)
    put(tch(4), B(2) + 2, B(2) + 10)
    put(Cd(5) + xst, Bp(3) + 2, B(3) - 40)
    put(Wd(10) + Wd(11), B(3) + 2, Bp(4) - 1)
    put([(([], flag_store(sQ + 2)), "fl")] + Wd(12) + Wd(13) + Cd(6), Bp(4) + 2, B(4) - 10)
    put(Wd(14) + Wd(15), B(4) + 2, Bp(5) - 1)
    put(Cd(7), Bp(5) + 2, B(5) - 50)
    put(pxs, B(5) - 30, B(5) - 28)
    put(Q(0) + Q(1), Bp(6) + 3, B(6) - 20)
    put(Q(2) + Q(3), Bp(7) + 2, Bp(7) + 44)
    for m in range(8):
        for i in range(8):
            m2, i2 = divmod(8 * m + i + 1, 8)
            if m2 < 8:
                for k, x in enumerate(p1_wread(16 * m2 + i2) + p1_wread(16 * m2 + 8 + i2)): at(128 * m + 16 * i + 2 * k).append(x)
        if m < 7:
            for j in range(8):
                for z in range(2): at(128 * m + 112 + 2 * j + z).append(p1_cread(2 * m + 2 + (z ^ (j & 1)), j))
            at(B(m)).append(bar([f"w{2*m+2}", f"w{2*m+3}", f"c{m+1}"]))
        if m == 6: at(Bp(m)).append(async_check(f"L_sa{T}", 122, PXL, sTAGW))
        at(Bp(m)).append(bar(["xs"] if m == 4 else []))
    f = fills[15]
    f[47].append(bar(["q0", "q1"]))
    R_ = [qh_xread(z, j) for j in range(4) for z in range(2)] + [x for n in range(2) for z in range(2) for x in qh_wread(z, n, n)]
    assert QC
    for k, x in enumerate(bias_init()): fills[8 + (k >> 4)][20 + 2 * (k & 15)].append(x)
    place_list(LATE.l, fills, 0, 0, 64, (2, 0))
    lb = Bg(); lb.push(ln_ops())
    for ks in range(2, 5): lb.place(fills[ks], 8 if ks == 2 else 0, 64)
    lb.place(fills[5], 0, 46); assert not lb.q, len(lb.q)
    for k in range(5): at(B(2) + 18 + 2 * k).append(f"ds_write_b64 v76, v[{40+2*k}:{41+2*k}] offset:{k*2304}")
    for k in range(3): at(Bp(3) + 10 + 2 * k).append(f"ds_read_b128 v[{128+4*k}:{131+4*k}], v77 offset:{4608*k}")
    qs = [f"s_mov_b32 s{R0}, s{pWQ}", f"s_and_b32 s{R0+1}, s{pWQ+1}, 0xffff", f"s_mov_b32 s{R0+2}, {640*8192}", f"s_mov_b32 s{R0+3}, 0x20000",
          f"s_sub_u32 s{R1}, s{pW1}, 2048", f"s_subb_u32 s{R1+1}, s{pW1+1}, 0", f"s_and_b32 s{R1+1}, s{R1+1}, 0xffff",
          f"s_cmp_lt_u32 s{sU}, 27", f"s_cselect_b32 s{R1+2}, {640*3456 + 2048}, 0", f"s_mov_b32 s{R1+3}, 0x20000",
          f"s_lshl_b32 s{sM0a}, s{sW}, 12", f"s_mul_i32 s{sM0b}, s{sW}, 3072", f"s_add_u32 s{sM0b}, s{sM0b}, {WB}"]
    fills[12][2].append(grp(qs[:4])); fills[12][6].append(grp(qs[4:10])); fills[12][10].append(grp(qs[10:]))
    bg.push([x for u in p1_units() for x in u])
    bg.place(fills[14], 60, 64); bg.place(fills[15], 0, 64)
    allm = []
    for m in range(8):
        for i in range(8):
            for j in range(8):
                for z in range(2):
                    sp = z ^ (j & 1); d = p1_acc(T, i, j); w = vWWIN + 8 * (i & 1) + 4 * sp; c = vCB[sp] + 4 * j
                    A, B_ = (w, c) if T == "K" else (c, w)
                    allm.append(f"{MF} a[{d}:{d+3}], v[{A}:{A+3}], v[{B_}:{B_+3}], " + ("0" if (m == 0 and z == 0) else f"a[{d}:{d+3}]"))
    for j in range(8):
        f[48 + 2 * j + (j & 1)].append(qh_xread(j >> 2, j & 3)); f[49 + 2 * j - (j & 1)].append(R_[8 + j])
    for sidx in range(16):
        run_gaps(e, allm[64 * sidx:64 * sidx + 64], fills[sidx], allm[64 * sidx + 64] if sidx < 15 else None)

def p1_main(e, T, bg):
    if PC: return p1_main_c(e, T, bg)
    fills = [[[] for _ in range(64)] for _ in range(16)]
    LNE = OPT.get("lne", 6)
    def pos(ep):
        p = [(ep - 1, g) for g in (50, 54, 58, 62)] + [(ep, g) for g in (range(2, 47, OPT.get("sp0", 2)) if ep == 0 else range(2, 47, 3 if ep < 7 else 4) if ep < 15 else range(2, 30, 3))]
        return [x for x in p if 0 <= x[0] < 16]
    for ep in range(0, 16):
        L = []
        cj = ({0: 2, 1: 3, 3: 4, 7: 5, 9: 6, 11: 7} if OPT.get("cs", 0) == 0 else {1: 2, 2: 3, 4: 4, 7: 5, 9: 6, 11: 7} if OPT["cs"] == 1 else {0: 2, 2: 3, 4: 4, 7: 5, 9: 6, 11: 7}).get(ep)
        Lc = [(p1_cdma(cj, q), f"c{cj}") for q in range(8)] if cj else []
        Lw = [(p1_wdma(ep + 3, u), f"w{ep+3}") for u in range(4)] if ep + 3 < 16 else []
        if ep == 0: L += PRO2()[OPT.get("np2", 28) - 12:]
        L += Lw + Lc if ep < 5 else Lc + Lw
        if ep == OPT.get("xe", 0):
            L += [(([], f"buffer_load_dwordx2 v[{40+2*k}:{41+2*k}], v36, s[{R0}:{R0+3}], s89 offen offset:{256*k}{NT('xnt')}"), "x") for k in range(5)]
        if ep == OPT.get("be", 2):
            L += [(([], f"buffer_load_dwordx2 v[{114+2*ft}:{115+2*ft}], v151, s[{R3}:{R3+3}], s90 offen offset:{32*ft}{NT('xnt')}"), "b1") for ft in range(4)]
        if OPT.get("tsp") and OPT.get("te", 2) <= ep < OPT.get("te", 2) + 5 * OPT["tsp"] and (ep - OPT.get("te", 2)) % OPT["tsp"] == 0:
            su = [grp([f"s_mov_b32 s{R3}, s{pW1}", f"s_and_b32 s{R3+1}, s{pW1+1}, 0xffff", f"s_mov_b32 s{R3+2}, {640*3456}", f"s_mov_b32 s{R3+3}, 0x20000"])] if ep == OPT.get("te", 2) else [f"s_add_u32 s94, s94, {4*3456}"]
            L += [(([] if ep == OPT.get("te", 2) else [f"s_add_u32 s93, s93, {4*8192}"], f"buffer_load_dword v149, v140, s[84:87], s93 offen"), "tc"),
                  ((su, f"buffer_load_dword v150, v145, s[{R3}:{R3+3}], s94 offen"), "tc")]
        if ep == OPT.get("ce", 99):
            code_touch.n += 1
            ct = code_touch("L_qhH", "L_code_end", 7, 154, "v155")
            L += [(([grp_all(ct[:-1])], ct[-1]), "tc")]
        if ep == OPT.get("te", 2) and not OPT.get("tsp") and not OPT.get("tcon"):
            L += [(([], f"buffer_load_dword v149, v140, s[84:87], s93 offen{NT('tnt')}"), "tc"),
                  (([grp([f"s_mov_b32 s84, s{pW1}", f"s_and_b32 s85, s{pW1+1}, 0xffff", f"s_mov_b32 s86, {640*3456}", "s_mov_b32 s87, 0x20000"])], f"buffer_load_dword v150, v145, s[84:87], s94 offen{NT('tnt')}"), "tc")]
        if ep == LNE: L += [(([], f"buffer_store_dwordx4 v[{128+4*k}:{131+4*k}], v126, s[{RWS}:{RWS+3}], s{sXS+k} offen sc1"), "xs") for k in range(3)]
        if ep == LNE + 2: L += [(([], flag_store(sQ + 2)), "fl")]
        if ep == 11: L += [(([grp([f"s_mov_b32 s{sT+5}, {WS_END}", f"s_cmp_eq_u32 s{sW}, 0", f"s_cselect_b32 s{sT+5}, {FXS}, s{sT+5}"]) if W0 else f"s_mov_b32 s{sT+5}, {FXS}"], f"buffer_load_dword v122, v127, s[{RWS}:{RWS+3}], s{sT+5} offen sc1"), "pa")]
        if ep == 13: L += [(d, "q0") for d in qh_dmas(0, True)]
        if ep == 14: L += [(d, "q1") for d in qh_dmas(1, True)]
        if ep == 15: L += [(d, "q2") for d in qh_dmas(2, True)] + [(d, "q3") for d in qh_dmas(3, True)]
        P = pos(ep); assert len(L) <= len(P)
        for (d, tag), (ks, g) in zip(L, P): put_dma(fills[ks], g, d, tag)
    for sidx in range(16):
        f = fills[sidx]
        for i in range(8):
            n = 8 * sidx + i + 2
            if n < 128:
                a, b = p1_wread(n); f[8 * i].append(a); f[8 * i + 1].append(b)
        if sidx < 15:
            for j in range(8): f[3 + 4 * j].append(p1_cread(sidx + 1, j))
            tags = [f"w{sidx+1}", f"c{(sidx+2)>>1}"]
            if sidx == LNE + 1: tags.append("xs")
            if sidx == 12:
                f[47].append(async_check(f"L_sa{T}", 122, f"buffer_load_dword v122, v127, s[{RWS}:{RWS+3}], s{sT+5} offen sc1", sTAGW))
            f[47].append(bar(tags))
        else:
            f[47].append(bar(["q0", "q1"]))
            if QC:
                R_ = [qh_xread(z, j) for j in range(4) for z in range(2)] + [x for n in range(2) for z in range(2) for x in qh_wread(z, n, n)]
                for k, x in enumerate(R_): f[48 + k].append(x)
            else:
                for j in range(4): f[49 + 2 * j].append(qh_xread(0, j))
                for n in range(3):
                    a, b = qh_wread(0, n, n); f[56 + 2 * n].append(a); f[57 + 2 * n].append(b)
    for k, x in enumerate(bias_init()): fills[8 + (k >> 4)][32 + (k & 15) + ((k & 15) == 15)].append(x)
    if OPT.get("late"): place_list(LATE.l, fills, 0, 0, 64, (2, 0))
    lb = Bg(); lb.push(ln_ops())
    LNK = OPT.get("lnk", 4)
    for ks in range(LNE - LNK, LNE): lb.place(fills[ks], 0, 64 if ks < LNE - 1 else 20, maxv=1 if LNK >= 4 else 2)
    assert not lb.q and LNE >= 6, len(lb.q)
    for k in range(5): fills[LNE - 1][22 + 4 * k].append(f"ds_write_b64 v76, v[{40+2*k}:{41+2*k}] offset:{k*2304}")
    for k in range(3): fills[LNE - 1][51 + 4 * k].append(f"ds_read_b128 v[{128+4*k}:{131+4*k}], v77 offset:{4608*k}")
    qs = [f"s_mov_b32 s{R0}, s{pWQ}", f"s_and_b32 s{R0+1}, s{pWQ+1}, 0xffff", f"s_mov_b32 s{R0+2}, {640*8192}", f"s_mov_b32 s{R0+3}, 0x20000",
          f"s_sub_u32 s{R1}, s{pW1}, 2048", f"s_subb_u32 s{R1+1}, s{pW1+1}, 0", f"s_and_b32 s{R1+1}, s{R1+1}, 0xffff",
          f"s_cmp_lt_u32 s{sU}, 27", f"s_cselect_b32 s{R1+2}, {640*3456 + 2048}, 0", f"s_mov_b32 s{R1+3}, 0x20000",
          f"s_lshl_b32 s{sM0a}, s{sW}, 12", f"s_mul_i32 s{sM0b}, s{sW}, 3072", f"s_add_u32 s{sM0b}, s{sM0b}, {WB}"]
    fills[12][4].append(grp(qs[:4])); fills[12][10].append(grp(qs[4:10])); fills[12][14].append(grp(qs[10:]))
    if OPT.get("contig"):
        U = p1_units()
        bg.push(U[0] + U[1]); bg.place(fills[15], 24, 46, maxv=2); assert not bg.q
        bg.push(U[2] + U[3]); bg.place(fills[15], 48, 64, maxv=2)
        bg.push([x for u in U[4:] for x in u])
    elif T == "K" or OPT.get("norole"):
        bg.push([x for u in p1_units() for x in u])
        bg.place(fills[15], 24, 46, maxv=2); bg.place(fills[15], 48, 64, maxv=2)
    else:
        bg.push(park_units())
        bg.place(fills[15], 19, 46, maxv=2); bg.place(fills[15], 48, 55, maxv=2)
        assert not bg.q
        bg.push(parked_stores() + [x for u in p1_units()[4:] for x in u])
    mfs = []
    for sidx in range(16):
        mf = []
        for i in range(8):
            for j in range(8):
                d = p1_acc(T, i, j); w = vWWIN + 4 * ((8 * sidx + i) & 3); c = vCB[sidx & 1] + 4 * j
                A, B = (w, c) if T == "K" else (c, w)
                mf.append(f"{MF} a[{d}:{d+3}], v[{A}:{A+3}], v[{B}:{B+3}], " + ("0" if sidx == 0 else f"a[{d}:{d+3}]"))
        mfs.append(mf)
    for sidx in range(16):
        run_gaps(e, mfs[sidx], fills[sidx], mfs[sidx + 1][0] if sidx < 15 else None)

vKVD = vXR
sKo, sVo, sMK, sMV = 76, 77, 78, 79
def kv_dma(kind, static_pair=None):
    so, mb, rs = (sKo, sMK, R2) if kind == "K" else (sVo, sMV, R3)
    L = []
    for k in range(4):
        su = []
        if k == 0:
            su = [f"s_add_u32 m0, s{sT+3}, s{mb}", f"s_and_b32 s{sT+3}, s{so}, 0xc000"]
        L.append((su, f"buffer_load_dwordx4 v{vKVD}, s[{rs}:{rs+3}], s{so} offen offset:{k*1024} {OPT.get('kvld', '')} lds".replace("  ", " ")))
    return L, f"s_add_u32 s{so}, s{so}, 16384"

def qh_main(e, T, hasH, bg):
    NI = 12 if hasH else 8; NG = 4 * NI; LA = 3
    NA = OPT.get("na", 7); BKV = OPT.get("bkv", 16); RATE = OPT.get("rate", 2) if hasH else 2
    fills = [[[] for _ in range(NG)] for _ in range(20)]
    bp = NG - 4 * LA - 1
    st = 3 if hasH else 2
    def pos(ep):
        p = [(ep - 1, g) for g in range(bp + 2, NG, st)] + [(ep, g) for g in range(5 if ep == 0 else 2, bp, st)]
        return [x for x in p if 0 <= x[0] < 20]
    pend = []; lastdma = None
    if QC:
        at = lambda G: fills[G // NG][G % NG]
        XD_ = OPT.get("xd", 0); xa = lambda st_, j: 32 + 16 * ((st_ - 4) % 6) + 4 * j
        bG = lambda m: 2 * NG * m + 8 * (NI - 2) - 1
        for m in range(8):
            a, b = qh_dmas(2 * m + 4, hasH), qh_dmas(2 * m + 5, hasH)
            if XD_:
                for st_, q in ((2 * m + 4, a), (2 * m + 5, b)):
                    for j in range(4):
                        q[j] = ([x for x in q[j][0] if "m0" not in x], q[j][1].replace("buffer_load_dwordx4 ", f"buffer_load_dwordx4 a[{xa(st_, j)}:{xa(st_, j)+3}], ").replace(" lds", ""))
            L = a[4:] + b[4:] + a[:4] + b[:4]
            G0 = bG(m - 1) + 3 if m else 2
            stp = (bG(m) - 2 - G0) // len(L)
            for k, (su, d) in enumerate(L):
                G = G0 + stp * k
                if XD_ and k >= len(L) - 8: G = bG(m) - 1 - 3 * (len(L) - k)
                for x in reversed(su): at(G - 1).append(x)
                at(G).append((d, f"q{m+2}p" if " lds" in d else None))
        for m in range(10):
            for i in range(NI):
                m2, i2 = divmod(NI * m + i + 2, NI)
                if m2 < 10:
                    for k, x in enumerate(qh_wread(2 * m2, i2, NI * m + i + 2) + qh_wread(2 * m2 + 1, i2, NI * m + i + 2)): at(2 * NG * m + 8 * i + 2 * k).append(x)
            if m < 9:
                for j in range(4 if (m == 0 or not XD_) else 0):
                    for z in range(2): at(2 * NG * m + 8 * (NI - 1) + 2 * j + z).append(qh_xread(2 * m + 2 + (z ^ (j & 1)), j))
                at(bG(m)).append(bar((["q2", "q3"] if m == 0 else [f"q{m+1}p"]) + (["kv"] if m == OPT.get("kvb", 8) else [])))
        at(bG(OPT.get("kvb", 8)) + 2).append((flag_store(sQ), "fl"))
    for ep in range(0, 0 if QC else 16):
        if OPT.get("norole"):
            a = qh_dmas(ep + 4, hasH)
            pend += [(d, f"q{ep+4}x") for d in a[:4]] + [(d, f"q{ep+4}") for d in a[4:]]
        elif (ep < NA) == (T == "V"):
            a, b = qh_dmas(ep + 4, hasH), qh_dmas(ep + 4, hasH, 1 if T == "K" else -1)
            pend += [(d, f"q{ep+4}x") for d in a[:4] + b[:4]] + [(d, f"q{ep+4}") for d in a[4:] + b[4:]]
        for ks, g in pos(ep):
            if pend:
                d, tag = pend.pop(0); put_dma(fills[ks], g, d, tag); lastdma = (ks, g)
    assert not pend
    for sidx in range(0 if QC else 20):
        f = fills[sidx]
        for i in range(NI):
            s2, i2 = divmod(NI * sidx + i + LA, NI)
            if s2 < 20:
                a, b = qh_wread(s2, i2, NI * sidx + i + LA); f[4 * i].append(a); f[4 * i + 1].append(b)
        if sidx < 19:
            for j in range(4): f[3 + 4 * j].append(qh_xread(sidx + 1, j))
            tags = [f"q{sidx+1}", f"q{sidx+2}x"]
            if sidx + 2 <= 3: tags.append(f"q{sidx+2}")
            if sidx == BKV: tags.append("kv")
            f[bp].append(bar(tags))
    if not QC: fills[BKV][bp + 2].append((flag_store(sQ), "fl"))
    assert BKV == 17
    qs = [f"s_mul_i32 s{sT+4}, s{sH}, {HS}", f"s_add_u32 s{sT+5}, s{sT+4}, {KF}", f"s_add_u32 s{R2}, s{pWS}, s{sT+5}", f"s_addc_u32 s{R2+1}, s{pWS+1}, 0",
          f"s_and_b32 s{R2+1}, s{R2+1}, 0xffff", f"s_sub_u32 s{R2+2}, 16, s{sIDX}", f"s_lshl_b32 s{R2+2}, s{R2+2}, 15", f"s_mov_b32 s{R2+3}, 0x20000",
          f"s_add_u32 s{sT+5}, s{sT+4}, {VF}", f"s_add_u32 s{R3}, s{pWS}, s{sT+5}", f"s_addc_u32 s{R3+1}, s{pWS+1}, 0",
          f"s_and_b32 s{R3+1}, s{R3+1}, 0xffff", f"s_mov_b32 s{R3+2}, s{R2+2}", f"s_mov_b32 s{R3+3}, 0x20000",
          f"s_mov_b32 s{sKo}, 0", f"s_mov_b32 s{sVo}, 0", f"s_lshl_b32 s{sMK}, s{sW}, 12", f"s_add_u32 s{sMV}, s{sMK}, 0x10000",
          f"s_mul_i32 s{sPK}, s{sH}, {8*FS}", f"s_add_u32 s{sPK}, s{sPK}, {FKV}"]
    fills[16][2].append(grp(qs[:8])); fills[16][6].append(grp(qs[8:14])); fills[16][10].append(grp(qs[14:]))
    fills[19][2].append(f"v_lshlrev_b32 v{vTR}, 3, v{vL16}"); fills[19][6].append(f"v_and_b32 v{vTR}, {7*FS}, v{vTR}")
    if OPT.get("pk19") and hasH: fills[19][OPT["pk19"]].append(PKL)
    hs = [f"s_mul_i32 s{sHA}, s{sIDX}, {54*8192}", f"s_lshl_b32 s{sT+5}, s{sU}, 14", f"s_add_u32 s{sT+5}, s{sT+5}, {HF}", f"s_lshl_b32 s{sT+4}, s{sW}, 10",
          f"s_add_u32 s{sT+5}, s{sT+5}, s{sT+4}", f"s_add_u32 s{sHA}, s{sHA}, s{sT+5}", f"s_sub_u32 s{sHB}, 15, s{sIDX}", f"s_mul_i32 s{sHB}, s{sHB}, {54*8192}",
          f"s_add_u32 s{sHB}, s{sHB}, s{sT+5}"] if hasH else [f"s_mov_b32 s{sHA}, {WS_END}", f"s_mov_b32 s{sHB}, {WS_END}"]
    fills[16][14].append(grp(hs))
    if OPT.get("cpf2") and hasH:
        code_touch.n += 1
        for k, x in enumerate(code_touch("L_attn", "L_p5", 3, vPK, f"v{vPK+1}")): fills[17][2 + 2 * k].append(x)
    if T == "K" or OPT.get("norole"): k0, g0 = 0, 0
    else: k0, g0 = lastdma[0], lastdma[1] + 1
    for sidx in range(k0, BKV):
        bg.place(fills[sidx], g0 if sidx == k0 else 0, NG, maxv=RATE, step=OPT.get("bstep", 1) if (hasH and sidx >= OPT.get("bfast", 0)) else 1)
    assert not bg.q, len(bg.q)
    if hasH:
        lastbg = max((ks, g) for ks in range(20) for g in range(NG) if any(isinstance(x, tuple) and x[0] == "BG" for x in fills[ks][g]))
        assert lastbg < (BKV - 1, NG - 6) and lastbg < (2 * OPT.get("kvb", 8) + 1, 10), lastbg
        place_early(fills, BKV - 1, NG - 6, NG)
    mfs = []
    for sidx in range(20):
        mf = []
        for i in range(NI):
            w = ((NI * sidx + i) & 3) * 4
            for j in range(4):
                d = qacc(i, j) if i < 8 else hacc(i - 8, j)
                x = XNB[sidx & 1] + 4 * j
                if sidx: c = f"v[{d}:{d+3}]"
                elif i < 8: c = "0"
                else: c = v(hacc(i - 8, 3), 4)
                mf.append(f"{MF} v[{d}:{d+3}], a[{w}:{w+3}], v[{x}:{x+3}], {c}")
        mfs.append(mf)
    if QC:
        allm = []
        for m in range(10):
            for i in range(NI):
                for j in range(4):
                    for z in range(2):
                        sp = z ^ (j & 1); w = ((NI * m + i) % 3) * 8 + 4 * sp; x = XNB[sp] + 4 * j
                        d = qacc(i, j) if i < 8 else hacc(i - 8, j)
                        c = v(d, 4) if (m or z) else "0" if i < 8 else v(hacc(i - 8, 3), 4)
                        xo = ac(xa(2 * m + sp, j), 4) if (XD_ and m >= 2) else v(x, 4)
                        allm.append(f"{MF} v[{d}:{d+3}], a[{w}:{w+3}], {xo}, {c}")
        mfs = [allm[k * NG:(k + 1) * NG] for k in range(20)]
    for sidx in range(20):
        run_gaps(e, mfs[sidx], fills[sidx], mfs[sidx + 1][0] if sidx < 19 else None)
    e.vm = e.vm[-1:] if (OPT.get("pk19") and hasH) else []
sPK = 83; sHA, sHB = 74, 75
PKL = f"buffer_load_dword v{vTR+1}, v{vTR}, s[{RWS}:{RWS+3}], s{sPK} offen sc1"
def kv_prologue_list():
    L = []
    for kind, tag in (("K", "k0"), ("V", "v0"), ("K", "k1"), ("K", "k2"), ("V", "v1"), ("K", "k3")):
        D, inc = kv_dma(kind)
        for k, (su, d) in enumerate(D):
            L.append((list(reversed(su)), d, tag, [inc] if k == 3 else []))
    return L
def sprinkle(e, ops, dm, every):
    for k, x in enumerate(ops):
        if dm and k % every == 0:
            for y in dm[0][0]: e(y)
        e(x)
        if dm and k % every == 0:
            su, d, tag, post = dm.pop(0); e(d, tag=tag)
            for y in post: e(y)
def flush_dma(e, dm):
    for su, d, tag, post in dm:
        for y in su: e(y)
        if su: e("s_nop 0")
        e(d, tag=tag)
        for y in post: e(y)
    dm.clear()

def check_drain_order(e):
    written = set()
    for i in e.l:
        if i.kind in ("dsr", "vml"): written |= {r for r in i.wr if r[0] == "a"}
        if i.mn == "v_accvgpr_read_b32" and (i.rd & written): raise AssertionError("drain order " + i.t)
        if i.mn == "v_accvgpr_write_b32": written |= i.wr

def q_pack(e):
    for n in range(16):
        for k in range(4):
            e(f"v_cvt_pk_bf16_f32 v{QACC + 4*n + k}, v{QACC + 8*n + 2*k}, v{QACC + 8*n + 2*k + 1}")

HPK = 192
def gelu(e, lab):
    a = -2.0 * math.sqrt(2.0 / math.pi) * math.log2(math.e)
    k1 = a / CS; k2 = a * 0.044715 / CS ** 3
    GP = OPT.get("gp", 3); dm = []
    e(f"s_mov_b32 s56, {f32(k2)}\ns_mov_b32 s57, {f32(k2)}\ns_mov_b32 s60, {f32(CS)}\ns_mov_b32 s61, {f32(CS)}")
    e(f"v_mov_b32 v160, {f32(k1)}\nv_mov_b32 v161, {f32(k1)}\nv_mov_b32 v162, {f32(CS)}\nv_mov_b32 v163, {f32(CS)}")
    for n in range(8):
        if n == max(0, GP - 2) and not OPT.get("pk19"): e(PKL)
        if n == GP: async_check(lab, vTR + 1, PKL)(e); dm = kv_prologue_list()
        b = HACC + 8 * n; t = 164 + 8 * (n & 1); L = []
        L += [f"v_pk_mul_f32 v[{t+2*k}:{t+2*k+1}], v[{b+2*k}:{b+2*k+1}], v[{b+2*k}:{b+2*k+1}]" for k in range(4)]
        L += [f"v_pk_fma_f32 v[{t+2*k}:{t+2*k+1}], v[{t+2*k}:{t+2*k+1}], s[56:57], v[160:161]" for k in range(4)]
        L += [f"v_pk_mul_f32 v[{t+2*k}:{t+2*k+1}], v[{t+2*k}:{t+2*k+1}], v[{b+2*k}:{b+2*k+1}]" for k in range(4)]
        L += [f"v_exp_f32 v{t+k}, v{t+k}" for k in range(8)]
        L += [f"v_pk_fma_f32 v[{t+2*k}:{t+2*k+1}], v[{t+2*k}:{t+2*k+1}], s[60:61], v[162:163]" for k in range(4)]
        L += [f"v_rcp_f32 v{t+k}, v{t+k}" for k in range(8)]
        L += [f"v_pk_mul_f32 v[{t+2*k}:{t+2*k+1}], v[{t+2*k}:{t+2*k+1}], v[{b+2*k}:{b+2*k+1}]" for k in range(4)]
        L += [f"v_cvt_pk_bf16_f32 v{t+k}, v{t+2*k}, v{t+2*k+1}" for k in range(4)]
        L += [f"v_accvgpr_write_b32 a{HPK+4*n+k}, v{t+k}" for k in range(4)]
        sprinkle(e, L, dm, 11)
    return dm
def h_store(n):
    j, up = n >> 1, n & 1
    return ([f"s_add_u32 s{sT+7}, s{sHA + (j >> 1)}, {(j & 1) * 4096 + up * 8192}"],
            f"buffer_store_dwordx4 a[{HPK+4*n}:{HPK+4*n+3}], v{vL16}, s[{RWS}:{RWS+3}], s{sT+7} offen sc1")

def Qr(j, t): return 96 + (4 * j + t) * 4
QP = 224
def Sr(b, j, kt=0): return 160 + 32 * b + 8 * j + 4 * kt
def Pr(b, j): return 224 + 16 * b + 4 * j
def NEGM(j): return 32 + 4 * j
TRI = 48
def CT(k, kt): return (64, 52)[k] + 4 * kt
vMWo, vMRo, vMWs, vMRs = 60, 61, 62, 63
TT = 72
def LT(b, j): return 76 + 4 * b + j
def LL(j): return 84 + j
vCHK = 88
def Or(j, dt): return 32 * j + 4 * dt
FK, FV = 128, 160
vKR, vVR = 2, 3
vPN, vQW, vQR, vNW, vNR = 6, 8, 9, 12, 13
sTHR, sCNT, sRET, sCA, sCB, sP8K = 90, 91, 92, 94, 95, 89
BIG = f32(-1e30)
SEL = {k: r for k, r in zip([(m, kt) for m in range(4) for kt in range(2)], (10, 12, 14, 16, 20, 22, 24, 32))}

def attn_setup(e0, dm):
    L = []
    class C:
        def __call__(self, t, tag=None): L.extend(x.strip() for x in t.strip().split("\n") if x.strip())
    _attn_setup(C())
    G = []
    for x in L:
        if G and (x.startswith(("s_addc", "s_subb", "s_cselect")) or G[-1].split("\n")[-1].startswith("s_nop")): G[-1] += "\n" + x
        else: G.append(x)
    sprinkle(e0, G, dm, 8); flush_dma(e0, dm)
def _attn_setup(e):
    e(f"""
    v_lshrrev_b32 v89, 4, v{vL16}
    v_and_b32 v90, 15, v89
    v_lshrrev_b32 v89, 4, v89
    v_lshlrev_b32 v89, 2, v89
    v_sub_u32 v89, v89, v90
    v_mov_b32 v90, {BIG}
    v_mov_b32 v91, 0
    v_mov_b32 v{vKR}, v{vL16}
    v_add_u32 v{vVR}, 0x18000, v{vL16}
    """)
    for r in range(4):
        e(f"v_cmp_ge_i32 vcc, {-r}, v89\ns_nop 1\nv_cndmask_b32 v{TRI+r}, v90, v91, vcc")
    e(f"""
    s_lshl_b32 s{sT+2}, s{sW}, 13
    s_add_u32 s{sT+2}, s{sT+2}, 0x20000
    v_add_u32 v{vQW}, s{sT+2}, v{vL16}
    v_xor_b32 v{vQR}, 0x2000, v{vQW}
    s_lshl_b32 s{sT+2}, s{sW}, 9
    s_add_u32 s{sT+2}, s{sT+2}, {112*1024}
    v_lshrrev_b32 v{vNW}, 1, v{vL16}
    v_add_u32 v{vNW}, s{sT+2}, v{vNW}
    v_xor_b32 v{vNR}, 0x200, v{vNW}
    s_lshr_b32 s{sT+2}, s{sW}, 1
    s_mul_i32 s{sT+2}, s{sT+2}, {92*1024}
    s_add_u32 s{sT+2}, s{sT+2}, {36*1024}
    s_lshl_b32 s{sT+4}, s{sP8K}, 1
    s_add_u32 s{sT+5}, s{sT+2}, s{sT+4}
    v_add_u32 v{vMWo}, s{sT+5}, v{vL16}
    s_xor_b32 s{sT+4}, s{sT+4}, 0x4000
    s_add_u32 s{sT+5}, s{sT+2}, s{sT+4}
    v_add_u32 v{vMRo}, s{sT+5}, v{vL16}
    s_lshl_b32 s{sT+2}, s{sW}, 10
    s_add_u32 s{sT+2}, s{sT+2}, {68*1024}
    v_add_u32 v{vMWs}, s{sT+2}, v{vL16}
    v_xor_b32 v{vMRs}, 0x400, v{vMWs}
    """)

def fread(base, areg, off, f): return f"ds_read_b128 a[{base+4*f}:{base+4*f+3}], v{areg} offset:{off + f * 1024}"
def kfread(off, r): return f"ds_read_b128 a[{FK+4*r}:{FK+4*r+3}], v{vKR} offset:{off + (2 * (r & 3) + (r >> 2)) * 1024}"
def kread(n, f): return kfread((n & 3) * 8192, f)

def xreduce(e, op, regs, tmps):
    for sw in ("v_permlane16_swap_b32", "v_permlane32_swap_b32"):
        for r, t in zip(regs, tmps): e(f"v_mov_b32 v{t}, v{r}")
        e("s_nop 1")
        for r, t in zip(regs, tmps): e(f"{sw} v{r}, v{t}")
        e("s_nop 0")
        for r, t in zip(regs, tmps): e(f"{op} v{r}, v{r}, v{t}")

def max8(e, d, sreg):
    e(f"v_max3_f32 v{d}, v{sreg}, v{sreg+1}, v{sreg+2}\nv_max3_f32 v{d}, v{d}, v{sreg+3}, v{sreg+4}\nv_max3_f32 v{d}, v{d}, v{sreg+5}, v{sreg+6}\nv_max_f32 v{d}, v{d}, v{sreg+7}")

def sm_ops(b, J):
    L = []; k = 0
    for j in J:
        for x in range(8):
            t = TT + (k & 3); tp = TT + ((k - 1) & 3)
            fol = []
            if x == 1: fol.append(f"v_add_f32 v{LT(b, j)}, v{tp}, v{t}")
            elif x > 1: fol.append(f"v_add_f32 v{LT(b, j)}, v{LT(b, j)}, v{t}")
            if x & 1: fol.append(f"v_cvt_pk_bf16_f32 v{Pr(b, j) + (x >> 1)}, v{tp}, v{t}")
            L.append((f"v_exp_f32 v{t}, v{Sr(b, j) + x}", fol)); k += 1
    return L

FBS = {}
STUBS = []
class Blk:
    def __init__(self, name, prev, cur): self.name, self.prev, self.cur, self.first = name, prev, cur, prev is None
    def act(self, n):
        if n < 0: return {None: [], "F": [3, 2, 1, 0], "D": [3, 2, 1], "Y": [3, 2, 1, 0]}[self.prev]
        if self.cur == "D" and n in (2, 3): return [3, 2, 1]
        if self.cur == "E": return ([3, 2, 1, 0], [3, 1], [], [], [])[n]
        return [3, 2, 1, 0]
    def y(self, n): return self.prev == "Y" if n < 0 else (self.cur in "YE" or (n == 4 and self.cur == "D"))
    def masked(self, n):
        if self.cur == "D": return {0 if n < 2 else 1: n & 1}
        if self.cur == "E" and n < 2: return {2 + n: 2, n: 3}
        return {}

def attn_block(e, bk):
    nm = bk.name; E_ = bk.cur == "E"; sw = bk.prev == "D"
    canon = [(regs_of(f"a[{FK+4*f}:{FK+4*f+3}]"), None) for f in range(8)]
    e.lg = list(canon) if bk.first else canon[4:]
    nb = [0, 0]
    if sw:
        for j in range(2):
            for r in range(4): e(f"v_mov_b32 v{NEGM(j)+r}, v{vPN+j}")
    for lp in range(4):
        nq, ns, nv = lp, lp - 1, lp - 2
        JQ, JS, JV = bk.act(nq), bk.act(ns), bk.act(nv); JN = JQ
        bq, bs, bv = nq & 1, ns & 1, nv & 1
        pre = []
        msk = bk.masked(nq); first_qk = bk.first and lp == 0
        cti = {}
        for k, (j, m) in enumerate(msk.items()):
            cti[j] = k
            for kt in range(2):
                c = CT(k, kt); sel = SEL[(m, kt)]
                pre.append(f"v_mov_b32 v{c+3}, s{sel+1}" if first_qk else f"v_add_f32 v{c+3}, s{sel+1}, v{NEGM(j)}")
                pre += [f"v_fma_f32 v{c+r}, v{TRI+r}, s{sel}, v{c+3}" for r in range(4)]
        FVc = FK if (E_ and lp == 2) else FV
        mf = []; kstart = []; vstart = []
        kstart = [len(JQ) * f for f in range(8)] if JQ else []
        for kt in range(2):
            if OPT.get("nochain"): order = [(j, t, t) for t in range(4) for j in JQ]
            else: order = [(j, (3 - z if k & 1 else z), z) for k, j in enumerate(JQ) for z in range(4)]
            for j, t, z in order:
                d = Sr(bq, j, kt); f = 4 * kt + t
                c = v(d, 4) if z else v(CT(cti[j], kt), 4) if j in msk else "0" if first_qk else v(NEGM(j), 4)
                q = ac(QP + 16 * j + 4 * t, 4) if (j < 2 and bk.y(nq)) else v(Qr(j, t), 4)
                mf.append(f"{MF} v[{d}:{d+3}], a[{FK+4*f}:{FK+4*f+3}], {q}, {c}")
        fresh = lambda j: nv == 0 and (bk.first or (sw and j < 2))
        for f in range(8 if JV else 0):
            vstart.append(len(mf))
            for j in JV:
                o = Or(j, f)
                mf.append(f"{MF} a[{o}:{o+3}], a[{FVc+4*f}:{FVc+4*f+3}], v[{Pr(bv, j)}:{Pr(bv, j)+3}], " + ("0" if fresh(j) else ac(o, 4)))
        NG = len(mf)
        fill = [[] for _ in range(NG)]
        voff = lambda n: (n & 1) * 16384 if bk.y(n) else (n & 3) * 8192
        vtog = [f"v_xor_b32 v{vVR}, 0x8000, v{vVR}"] + ([f"v_add_u32 v{vVR}, s{sP8K}, v{vVR}"] if sw and lp == 1 else [])
        if JV and JQ:
            for f in range(8): fill[kstart[f] + 1].append(fread(FV, vVR, voff(nv), f))
        if E_ and lp == 1:
            for x in vtog: fill[vstart[0]].append(x)
            for f in range(8): fill[vstart[f] + 1].append(fread(FK, vVR, 0, f))
        elif E_ and lp == 2:
            for f in range(8): fill[vstart[f] + 1].append(fread(FV, vVR, 16384, f))
        elif lp == 1 or (lp == 3 and bk.cur == "Y"):
            for k, x in enumerate(vtog): fill[(vstart[1] + 1 + 8 * k) if JV else 1].append(x)
        needK = not E_ or lp == 0; late_k = []
        if needK:
            nk = lp + 1
            if lp == 3 or (lp == 1 and bk.cur == "Y"):
                fill[OPT.get("kx", 5)].append(f"v_xor_b32 v{vKR}, 0x8000, v{vKR}")
                if bk.cur == "D": fill[13].append(f"v_add_u32 v{vKR}, s{sP8K}, v{vKR}")
            koff = (nk & 1) * 16384 if bk.y(nk) else (nk & 3) * 8192
            for f in range(8):
                if JV: fill[vstart[f] + 1].append(kfread(koff, f))
                elif f < 4: fill[kstart[4] + 2 * f + 1].append(kfread(koff, f))
                else: late_k.append(kfread(koff, f))
        def needf(base, f0):
            def g(e): e.need(f"a[{base+4*f0}:{base+4*f0+15}]")
            return g
        if JQ and JV:
            fill[kstart[4] - 2].append(needf(FK, 4)); fill[vstart[0] - 2].append(needf(FV, 0))
        if JV:
            fill[vstart[4] - 2].append(needf(FVc, 4))
            if needK or (E_ and lp == 1): fill[NG - 2].append(needf(FK, 0))
            if E_ and lp == 2: fill[NG - 2].append(needf(FV, 0))
        grp_k = (bk.cur == "Y") or (not E_ and lp & 1 == 0 and not first_qk)
        grp_v = (nm == "YD" and lp == 0) or (bk.cur == "Y" and not (sw and lp == 0)) or (bk.cur in "FD" and lp & 1)
        vlast = None; gbar = vstart[0] if JV else -1
        for kind, on in (("K", grp_k), ("V", grp_v)):
            if not on: continue
            L, inc = kv_dma(kind)
            g0, span = (0, 8 * len(JQ)) if kind == "K" else ((vstart[0], 8 * len(JV)) if JV else (0, NG))
            st = span // 4
            dp = OPT.get("dpos", 1) if st >= 8 else 1
            if OPT.get("spread") and g0 + dp >= 5:
                fill[g0 + dp - 5 if g0 + dp - 5 != gbar else g0 + dp - 7].append(L[0][0][1]); fill[g0 + dp - 3 if g0 + dp - 3 != gbar else g0 + dp - 1].append(L[0][0][0])
            else:
                for x in reversed(L[0][0]): fill[max(0, g0 - 4)].append(x)
            for k, d in enumerate(L): fill[g0 + dp + st * k].append(d[1])
            gi = g0 + dp + 1 + st * 3
            fill[gi if gi < NG else NG - 1].append(inc if gi < NG else ("BG", inc))
            if kind == "V": vlast = g0 + dp + st * 3
        def ride(L, g0, g1, tag=None):
            st = max(2, (g1 - g0) // len(L))
            for k, x in enumerate(L):
                g = (g0 + st * k) | 1
                while any(_kind(y) in ("vml", "vms") for y in fill[g]): g += 2
                put_dma(fill, g, x, tag)
        cst = lambda a, b: [ctx_store(96, sCA, n) for n in range(a, b)]
        if bk.first and lp >= 2: ride([h_store(n) for n in range(4 * lp - 8, 4 * lp - 4)], 4, NG - 4)
        if nm == "TY" and lp >= 2: ride(cst(2 * lp - 4, 2 * lp - 2), 10, NG)
        if nm == "YD" and lp < 2: ride(cst(4 + 2 * lp, 6 + 2 * lp), 6, NG - 8)
        if nm == "TYD" and lp == 2: ride(cst(0, 4), 20, NG)
        if E_ and lp == 1: fill[3].append(PHL)
        if E_ and lp == 2: ride(p5_dmas(0), 2, 20)
        if first_qk:
            for k in range(8): fill[4 * k + 1].append(f"ds_write_b128 v{vQW}, v[{Qr(2, 0)+4*k}:{Qr(2, 0)+4*k+3}] offset:{k*1024}")
        if bk.first and lp == 1: fill[2].append(f"ds_read_b64 v[{vPN}:{vPN+1}], v{vNR}")
        if bk.first and lp == 2:
            for k in range(8): fill[kstart[k] + 2 + (len(JQ) & 1)].append(fread(QP, vQR, 0, k))
        if E_ and lp == 3:
            for k in range(8): fill[2 * k + 1].append(f"ds_write_b128 v{vMWo}, a[{Or(0, k)}:{Or(0, k)+3}] offset:{k*1024}")
        if nm in ("DF", "TY") and lp == 3: ride([([], flag_store(sQ + 1))], NG - 3, NG)
        if nm in ("DF", "TY") and lp == 0:
            ride([([], f"buffer_load_dword a192, v{vTW}, s[{R0}:{R0+3}], 0 offen"), ([], f"buffer_load_dword a193, v{vT2}, s[{R1}:{R1+3}], 0 offen")], NG - 9, NG - 1)
        if (lp & 1 or bk.cur in "YE") and not (E_ and lp == 3):
            gb = vstart[0] if JV else -1
            cnt = lambda kinds: sum(1 for g in range(gb) for x in fill[g] if _kind(x) in kinds)
            if E_: n = (8 + nb[0], nb[0], nb[1])[lp] + cnt(("vml", "vms"))
            else: n = 12 + (4 + cnt(("vms",)) if (bk.first and lp == 3) else 0)
            def mkb(n, lp=lp):
                def f(e):
                    lg = list(e.lg)
                    if OPT.get("ticks"): e("s_waitcnt lgkmcnt(0)")
                    z = (bk.first and lp == 1) or (E_ and lp == 2)
                    tick_pre(e); e(f"s_waitcnt vmcnt({n}){' lgkmcnt(0)' if z else ''}\ns_barrier"); tick_post(e)
                    e.lg = [] if z else lg
                return f
            if E_ and lp == 2: fill[gb].insert(0, async_check(f"L_h{nm}", 20, PHL, sTAGW))
            if OPT.get("spread") and gb >= 6 and not E_ and not OPT.get("ticks") and not any(_kind(x) in ("vml", "vms") for g in range(gb - 4, gb) for x in fill[g]):
                fill[gb - 4].append(f"s_waitcnt vmcnt({n})"); fill[gb].insert(0, "s_barrier")
            elif gb >= 0: fill[gb].insert(1 if (E_ and lp == 2) else 0, mkb(n))
            else: pre.insert(0, mkb(n))
        if JS:
            ops = sm_ops(bs, JS)[2:]
            W = NG - 4 if JN else min(NG - 2, 2 * len(ops))
            lastg = 0; tile_done = []
            for k, (ex, fol) in enumerate(ops):
                g = (k * W) // len(ops)
                if W >= 2 * len(ops): g &= ~1
                fill[g].append(ex)
                for x in fol: fill[g + 1].append(x)
                lastg = g + 1
                if (k + 2) % 8 == 7: tile_done.append(lastg)
            lts = [LT(bs, j) for j in JS]
            ck = []
            if len(lts) == 4: fill[tile_done[2] + 2].append(f"v_max3_f32 v{vCHK}, v{lts[0]}, v{lts[1]}, v{lts[2]}"); ck.append(f"v_max_f32 v{vCHK}, v{vCHK}, v{lts[3]}")
            elif len(lts) == 3: ck.append(f"v_max3_f32 v{vCHK}, v{lts[0]}, v{lts[1]}, v{lts[2]}")
            else: ck.append(f"v_max_f32 v{vCHK}, v{lts[0]}, v{lts[1]}")
            ck.append(f"v_cmp_lt_f32 vcc, s{sTHR}, v{vCHK}")
            gck = max(lastg, NG - 3)
            assert gck <= NG - 2
            J3 = [(j, not (sw and lp == 1 and j < 2), not (sw and lp == 0 and j < 2)) for j in JS]
            fb = f"FB{bs}_" + "".join(f"{j}{'' if a else 'n'}{'' if b else 'l'}" for j, a, b in J3)
            FBS[fb] = (bs, J3)
            site = f"L_{nm}_{lp}"
            STUBS.append((site, fb))
            for x in ck: fill[gck].append(x)
            fill[NG - 1].append(grp([f"s_cbranch_vccnz {site}_fb", f"{site}_ret:"]))
        for k, j in enumerate(JV):
            g = OPT.get("l0", 1) if k == 0 else min(NG - 5, 16 * k - 3)
            fill[g].append(f"v_mov_b32 v{LL(j)}, v{LT(bv, j)}" if fresh(j) else f"v_add_f32 v{LL(j)}, v{LL(j)}, v{LT(bv, j)}")
        head = sm_ops(bq, JN)[:2] if JN else []
        if head and not first_qk:
            fill[NG - 4].append(head[0][0]); fill[NG - 2].append(head[1][0])
            for x in head[1][1]: fill[NG - 1].append(x)
        if first_qk: e.need(f"a[{FK}:{FK+15}]")
        for x in pre:
            if callable(x): x(e)
            else: e(x)
        if pre: e("s_nop 1")
        for g in range(NG):
            c = sum(1 for x in fill[g] if _kind(x) in ("vml", "vms"))
            nb[0] += c; nb[1] = 0 if g == vlast else nb[1] + c
        run_gaps(e, mf, fill)
        for x in late_k: e(x)
        if sw and lp == 1: attn_epilogue(e)
        if E_ and lp == 0: p5_setup(e)
        if first_qk:
            e("s_nop 7")
            for j in range(4): max8(e, NEGM(j), Sr(0, j))
            xreduce(e, "v_max_f32", [NEGM(j) for j in range(4)], [NEGM(j) + 1 for j in range(4)])
            for j in range(4):
                e(f"v_sub_f32 v{NEGM(j)}, 0, v{NEGM(j)}")
                for r in range(1, 4): e(f"v_mov_b32 v{NEGM(j)+r}, v{NEGM(j)}")
            e(f"ds_write_b64 v{vNW}, v[{NEGM(2)+3}:{NEGM(2)+4}]".replace(f"v[{NEGM(2)+3}:{NEGM(2)+4}]", "v[10:11]").replace("ds_write", f"v_mov_b32 v10, v{NEGM(2)}\nv_mov_b32 v11, v{NEGM(3)}\nds_write"))
            for j in (3, 2, 1, 0):
                for x in range(8): e(f"v_add_f32 v{Sr(0, j)+x}, v{Sr(0, j)+x}, v{NEGM(j)}")
            e(head[0][0]); e(head[1][0]); e("s_nop 0")
            for x in head[1][1]: e(x)
    if E_: e(f"s_waitcnt vmcnt({4 if nm == 'TYD' else 0})")
    if nm == "TYD":
        for su, x in cst(4, 8): e(su[0]); e(x)
    if not E_:
        assert len(e.lg) <= 4 and [r for r, _ in e.lg] == [r for r, _ in canon][8 - len(e.lg):], (nm, len(e.lg))

def ctx_store(pk, sbase, n):
    return ([f"s_add_u32 s{sT+7}, s{sbase}, {(n >> 2) * 4096 + (n & 3) * 8192}"],
            f"buffer_store_dwordx4 v[{pk+4*n}:{pk+4*n+3}], v{vL16}, s[{RWS}:{RWS+3}], s{sT+7} offen sc1")
def attn_epilogue(e):
    e("s_nop 7")
    xreduce(e, "v_add_f32", [LL(0), LL(1)], [89, 90])
    for j in range(2): e(f"v_rcp_f32 v{LL(j)}, v{LL(j)}")
    for j in range(2):
        e(f"v_mov_b32 v94, v{LL(j)}\nv_mov_b32 v95, v{LL(j)}")
        for k in range(16):
            src = Or(j, 0) + 2 * k; tr = 90 + 2 * (k & 1)
            e(f"v_accvgpr_read_b32 v{tr}, a{src}\nv_accvgpr_read_b32 v{tr+1}, a{src+1}")
            e(f"v_pk_mul_f32 v[{tr}:{tr+1}], v[{tr}:{tr+1}], v[94:95]")
            e(f"v_cvt_pk_bf16_f32 v{96+16*j+k}, v{tr}, v{tr+1}")

def attn_final(e):
    e.lg = [(set(), None)] * 8
    e(f"v_mov_b32 v72, v{LL(0)}\nv_mov_b32 v73, v{LL(1)}\nv_mov_b32 v74, v{NEGM(0)}\nv_mov_b32 v75, v{NEGM(1)}\ns_nop 3")
    e(f"ds_write_b128 v{vMWs}, v[72:75]")
    RS = OPT.get("rs", 0)
    stg = [(su, x.replace("buffer_load_dwordx4 ", f"buffer_load_dwordx4 a[{192+4*k}:{195+4*k}], ").replace(" lds", "")) for k, (su, x) in enumerate((p5_dmas(2) + p5_dmas(3))[:RS])]
    for k in range(8):
        e(f"ds_write_b128 v{vMWo}, a[{Or(1, k)}:{Or(1, k)+3}] offset:{8192 + k*1024}")
        for su, x in stg[2 * k:2 * k + 2]:
            for y in su:
                if "m0" not in y: e(y)
            e(x, tag="stg")
    e("s_waitcnt lgkmcnt(0)\ns_barrier")
    e(f"ds_read_b128 v[72:75], v{vMRs}")
    for k in range(14): e(f"ds_read_b128 v[{160+4*k}:{163+4*k}], v{vMRo} offset:{k*1024}")
    for su, x in p5_dmas(1):
        for y in reversed(su): e(y)
        if su: e("s_nop 0")
        e(x)
    e.need("v[72:75]")
    for k in range(14, 16): e(f"ds_read_b128 v[{160+4*k}:{163+4*k}], v{vMRo} offset:{k*1024}")
    for j in range(2):
        e(f"v_min_f32 v89, v{74+j}, v{NEGM(2+j)}\nv_sub_f32 v{64+2*j}, v89, v{NEGM(2+j)}\nv_sub_f32 v{68+2*j}, v89, v{74+j}")
    for j in range(2): e(f"v_exp_f32 v{64+2*j}, v{64+2*j}\nv_exp_f32 v{68+2*j}, v{68+2*j}")
    for j in range(2): e(f"v_mul_f32 v{LL(2+j)}, v{LL(2+j)}, v{64+2*j}")
    for j in range(2): e(f"v_fmac_f32 v{LL(2+j)}, v{72+j}, v{68+2*j}")
    xreduce(e, "v_add_f32", [LL(2), LL(3)], [89, 90])
    for j in range(2): e(f"v_rcp_f32 v{LL(2+j)}, v{LL(2+j)}")
    e("s_nop 0")
    for j in range(2):
        for b in (64, 68): e(f"v_mul_f32 v{b+2*j}, v{b+2*j}, v{LL(2+j)}\nv_mov_b32 v{b+2*j+1}, v{b+2*j}")
    for j in range(2):
        for k in range(16):
            src = Or(2 + j, 0) + 2 * k; tr = 90 + 2 * (k & 1); rx = 160 + 32 * j + 2 * k
            e(f"v_accvgpr_read_b32 v{tr}, a{src}\nv_accvgpr_read_b32 v{tr+1}, a{src+1}")
            e(f"v_pk_mul_f32 v[{tr}:{tr+1}], v[{tr}:{tr+1}], v[{64+2*j}:{65+2*j}]")
            e.need(f"v[{rx}:{rx+1}]")
            e(f"v_pk_fma_f32 v[{tr}:{tr+1}], v[{rx}:{rx+1}], v[{68+2*j}:{69+2*j}], v[{tr}:{tr+1}]")
            e(f"v_cvt_pk_bf16_f32 v{128+16*j+k}, v{tr}, v{tr+1}")
            if k & 3 == 3:
                su, x = ctx_store(128, sCB, 4 * j + (k >> 2)); e(su[0]); e(x)
            if j == 1:
                for x in p5_reads(0)[2 * k:2 * k + 2]: e(x)

def fallback(e, name, b, J3):
    e(f"{name}:\ns_nop 15")
    for j, scale, nxt in J3:
        d = 89
        max8(e, d, Sr(b, j))
        xreduce(e, "v_max_f32", [d], [90])
        e(f"v_max_f32 v{d}, 0, v{d}\nv_sub_f32 v90, 0, v{d}\nv_exp_f32 v90, v90")
        for x in range(8): e(f"v_sub_f32 v{Sr(b, j)+x}, v{Sr(b, j)+x}, v{d}")
        if nxt:
            for r in range(4): e(f"v_sub_f32 v{NEGM(j)+r}, v{NEGM(j)+r}, v{d}")
            for x in range(8): e(f"v_sub_f32 v{Sr(b ^ 1, j)+x}, v{Sr(b ^ 1, j)+x}, v{d}")
        if scale:
            e(f"v_mul_f32 v{LL(j)}, v{LL(j)}, v90")
            for x in range(0, 32, 2):
                o = Or(j, 0) + x
                e(f"v_accvgpr_read_b32 v91, a{o}\nv_accvgpr_read_b32 v92, a{o+1}\nv_mul_f32 v91, v91, v90\nv_mul_f32 v92, v92, v90\nv_accvgpr_write_b32 a{o}, v91\nv_accvgpr_write_b32 a{o+1}, v92")
    for ex, fol in sm_ops(b, [j for j, _, _ in J3]):
        e(ex); e("s_nop 0")
        for x in fol: e(x)
    for ex, fol in sm_ops(b ^ 1, [3])[:2]: e(ex)
    e(f"s_nop 1\ns_setpc_b64 s[{sRET}:{sRET+1}]")

def attn_pre(e):
    e.need(vmtags=("k0",), lg0=True)
    e("s_barrier")
    for f in range(8): e(kread(0, f))

def attention(e):
    B = {k: Blk(k, p, c) for k, p, c in (("fFF", None, "F"), ("fDF", None, "D"), ("FF", "F", "F"), ("DF", "F", "D"),
                                          ("TY", "D", "Y"), ("YY", "Y", "Y"), ("YD", "Y", "E"), ("TYD", "D", "E"))}
    segs = {}
    def seg(name):
        n0 = len(e.l); attn_block(e, B[name]); segs[name] = e.l[n0:]
    e(f"s_cmp_eq_u32 s{sIDX}, 0\ns_cbranch_scc1 L_fDF")
    seg("fFF")
    e(f"s_sub_u32 s{sCNT}, s{sIDX}, 1\ns_cmp_eq_u32 s{sCNT}, 0\ns_cbranch_scc1 L_DF\n.p2align 3\nL_FF:")
    seg("FF")
    e(f"s_sub_u32 s{sCNT}, s{sCNT}, 1\ns_cmp_lg_u32 s{sCNT}, 0\ns_cbranch_scc1 L_FF\nL_DF:")
    seg("DF")
    e(f"s_cmp_eq_u32 s{sIDX}, 7\ns_cbranch_scc1 L_TYD\nL_TY:")
    seg("TY")
    stamp(e, 7)
    e(f"s_sub_u32 s{sCNT}, 6, s{sIDX}\ns_cmp_eq_u32 s{sCNT}, 0\ns_cbranch_scc1 L_YD\n.p2align 3\nL_YY:")
    seg("YY")
    e(f"s_sub_u32 s{sCNT}, s{sCNT}, 1\ns_cmp_lg_u32 s{sCNT}, 0\ns_cbranch_scc1 L_YY\nL_YD:")
    seg("YD")
    e("L_fin:")
    def out_of_line():
        e("L_fDF:"); seg("fDF")
        e("s_branch L_TY\nL_TYD:"); seg("TYD")
        e("s_branch L_fin")
        for site, fb in STUBS:
            e(f"{site}_fb:\ns_call_b64 s[{sRET}:{sRET+1}], {fb}\ns_branch {site}_ret")
        for name, (b, J3) in FBS.items():
            n0 = len(e.l); fallback(e, name, b, J3); segs[name] = e.l[n0:]
    return segs, out_of_line

sS, sAH, sAC, sWH, sWC, sXO, sFH, sFC = 65, 66, 67, 68, 69, 70, 80, 81
sMA, sMW, sBO, sEXl, sFE, sBH, sBC = 78, 82, 84, 64, 72, 4, 6
sEX3 = 85
SLOT = 36864; SLMAP = (0, 2, 1, 3)
vWD5, vP1, vP2, vXO, vBO, vRA = 14, 30, 31, 28, 29, 4
vRE, vRO = (26, 12), (27, 13)
vTW, vT2 = 19, 20
PHL = f"buffer_load_dword v20, v{vP1}, s[{RWS}:{RWS+3}], s{sFH} offen sc1"
def early_setup():
    mt, nt, t0, t1, t2 = sT, sT + 1, sT + 2, sT + 4, sT + 5
    S = f"""
    s_lshl_b32 s{t0}, s{sH}, 15
    s_lshl_b32 s{t1}, s{sW}, 10
    s_add_u32 s{t0}, s{t0}, s{t1}
    s_add_u32 s{t0}, s{t0}, {CF}
    s_lshl_b32 s{sCA}, s{sIDX}, 20
    s_add_u32 s{sCA}, s{sCA}, s{t0}
    s_sub_u32 s{sCB}, 15, s{sIDX}
    s_lshl_b32 s{sCB}, s{sCB}, 20
    s_add_u32 s{sCB}, s{sCB}, s{t0}
    s_mov_b32 s{sTHR}, {f32(2.0**40)}
    s_and_b32 s{t0}, s{sW}, 1
    s_lshl_b32 s{sP8K}, s{t0}, 13
    s_xor_b32 s{t1}, s{sW}, 1
    s_lshl_b32 s{t0}, s{t0}, 1
    """
    for (m, kt), r in SEL.items():
        S += f"s_sub_i32 s{t2}, s{sW}, {2*m + kt}\n" if m < 2 else f"s_sub_i32 s{t2}, s{sW if m == 2 else t1}, s{t0}\ns_sub_i32 s{t2}, s{t2}, {kt}\n"
        S += f"s_cmp_eq_u32 s{t2}, 0\ns_cselect_b32 s{r}, 1.0, 0\ns_cmp_lt_i32 s{t2}, 0\ns_cselect_b32 s{r+1}, {BIG}, 0\n"
    S += f"""
    s_mov_b32 s{R0}, s{pWO}
    s_and_b32 s{R0+1}, s{pWO+1}, 0xffff
    s_mov_b32 s{R0+2}, {4096*1280}
    s_mov_b32 s{R0+3}, 0x20000
    s_mov_b32 s{R1}, s{pW2}
    s_and_b32 s{R1+1}, s{pW2+1}, 0xffff
    s_mov_b32 s{R1+2}, {1728*1280}
    s_mov_b32 s{R1+3}, 0x20000
    v_lshrrev_b32 v{vXO}, 4, v{vL16}
    s_lshl_b32 s{t0}, s2, 2
    s_add_u32 s{t0}, s{t0}, s{sW}
    s_mul_i32 s{t1}, s{t0}, 40
    v_min_u32 v{vTW}, 39, v{vXO}
    v_add_u32 v{vTW}, s{t1}, v{vTW}
    v_lshlrev_b32 v{vTW}, 7, v{vTW}
    s_mul_i32 s{t1}, s{t0}, 17
    v_min_u32 v{vT2}, 16, v{vXO}
    v_add_u32 v{vT2}, s{t1}, v{vT2}
    v_lshlrev_b32 v{vT2}, 7, v{vT2}
    s_lshr_b32 s{mt}, s{sX}, 2
    s_lshl_b32 s{mt}, s{mt}, 3
    s_lshr_b32 s{t0}, s2, 3
    s_and_b32 s{t0}, s{t0}, 7
    s_add_u32 s{mt}, s{mt}, s{t0}
    s_lshr_b32 s{nt}, s2, 6
    s_and_b32 s{sS}, s{sX}, 3
    s_sub_u32 s{t1}, 15, s{mt}
    s_min_u32 s{t0}, s{mt}, s{t1}
    s_mul_i32 s{t0}, s{t0}, {32*FS}
    s_add_u32 s{sFH}, s{t0}, {FH}
    s_mul_i32 s{t1}, s{sS}, {8*FS}
    s_add_u32 s{sFC}, s{t0}, s{t1}
    s_add_u32 s{sFC}, s{sFC}, {FC}
    """
    if W0: S += f"s_cmp_eq_u32 s{sW}, 0\ns_cselect_b32 s{sFH}, s{sFH}, {WS_END}\ns_cselect_b32 s{sFC}, s{sFC}, {WS_END}\n"
    S += f"""
    s_mul_i32 s{sBH}, s{mt}, {54*8192}
    s_add_u32 s{sBH}, s{sBH}, {HF}
    s_lshl_b32 s{sBC}, s{mt}, 20
    s_add_u32 s{sBC}, s{sBC}, {CF}
    s_lshl_b32 s{t0}, s{sW}, 12
    s_mul_i32 s{sAH}, s{sS}, {14*8192}
    s_add_u32 s{sAH}, s{sAH}, s{t0}
    s_lshl_b32 s{sAC}, s{sS}, 18
    s_add_u32 s{sAC}, s{sAC}, s{t0}
    s_mul_i32 s{sMW}, s{sW}, 5120
    s_add_u32 s{sMW}, s{sMW}, 16384
    s_mul_i32 s{t0}, s{sW}, {16*1280}
    s_mul_i32 s{sBO}, s{nt}, 320
    s_add_u32 s{t0}, s{t0}, s{sBO}
    s_mul_i32 s{sWH}, s{sS}, {14*32*1280}
    s_add_u32 s{sWH}, s{sWH}, s{t0}
    s_mul_i32 s{sWC}, s{sS}, {1024*1280}
    s_add_u32 s{sWC}, s{sWC}, s{t0}
    """
    a, b, c = vRE[0], vRO[0], vBO
    for k in range(5):
        S += f"""
        v_add_u32 v{a}, {64*k}, v{vXO}
        v_mul_u32_u24 v{b}, 3277, v{a}
        v_lshrrev_b32 v{b}, 16, v{b}
        v_mul_u32_u24 v{c}, 20, v{b}
        v_sub_u32 v{a}, v{a}, v{c}
        v_lshrrev_b32 v{c}, 1, v{b}
        v_and_b32 v{c}, 2, v{c}
        v_xor_b32 v{a}, v{a}, v{c}
        v_mul_u32_u24 v{b}, 1280, v{b}
        v_lshl_add_u32 v{vWD5+k}, v{a}, 4, v{b}
        """
        if 0 < k < 4: S += f"v_subrev_u32 v{vWD5+k}, {1024*k}, v{vWD5+k}\n"
    S += f"""
    s_lshr_b32 s{t1}, s{sW}, 1
    s_mul_i32 s{t2}, s{t1}, 160
    s_add_u32 s{sBO}, s{sBO}, s{t2}
    s_add_u32 s{t2}, s{t2}, 16384
    v_lshrrev_b32 v{a}, 2, v{vXO}
    v_mul_u32_u24 v{a}, 320, v{a}
    v_and_b32 v{b}, 3, v{vXO}
    v_lshl_add_u32 v{a}, v{b}, 3, v{a}
    v_add_u32 v{a}, s{t2}, v{a}
    v_lshlrev_b32 v{c}, 1, v{vXO}
    v_and_b32 v{c}, 32, v{c}
    s_cmp_eq_u32 s{t1}, 0
    s_cselect_b32 s{t0}, 1, -1
    v_mul_i32_i24 v{c}, s{t0}, v{c}
    v_sub_u32 v{b}, v{a}, v{c}
    v_add_u32 v{a}, v{a}, v{c}
    s_and_b32 s{t0}, s{sW}, 1
    s_lshl_b32 s{sXO}, s{mt}, 3
    s_lshl_b32 s{t0}, s{t0}, 2
    s_add_u32 s{sXO}, s{sXO}, s{t0}
    s_add_u32 s{sXO}, s{sXO}, s{sS}
    s_mul_i32 s{sXO}, s{sXO}, {16*1280}
    s_add_u32 s{sXO}, s{sXO}, s{sBO}
    v_lshrrev_b32 v{vBO}, 4, v{vXO}
    v_lshlrev_b32 v{vBO}, 3, v{vBO}
    v_and_b32 v{vXO}, 15, v{vXO}
    v_mul_u32_u24 v{vXO}, 1280, v{vXO}
    v_add_u32 v{vXO}, v{vXO}, v{vBO}
    v_lshlrev_b32 v{vP1}, 3, v{vL16}
    v_and_b32 v{vP2}, {7*FS}, v{vP1}
    v_and_b32 v{vP1}, {31*FS}, v{vP1}
    s_lshl_b32 s{t0}, s{mt}, 2
    s_add_u32 s{t0}, s{t0}, s{nt}
    s_lshl_b32 s{sFE}, s{t0}, 2
    s_add_u32 s{sFE}, s{sFE}, s{sW}
    s_mul_i32 s{sFE}, s{sFE}, {FS * 4}
    s_add_u32 s{sFE}, s{sFE}, {FEX}
    s_mul_i32 s{t0}, s{t0}, {16*20480}
    s_mul_i32 s{t1}, s{sW}, 5120
    s_add_u32 s{t0}, s{t0}, s{t1}
    s_add_u32 s{t0}, s{t0}, {EX}
    s_mul_i32 s{t1}, s{sS}, 20480
    s_add_u32 s{mt}, s{t0}, s{t1}
    s_lshl_b32 s{t1}, s{t1}, 2
    s_add_u32 s{sEXl}, s{t0}, s{t1}
    """
    for r in range(3): S += f"s_add_u32 s{t0}, s{sS}, {r + 1}\ns_and_b32 s{t0}, s{t0}, 3\ns_mul_i32 s{t0}, s{t0}, {4*20480}\ns_add_u32 s{sEX3+r}, s{mt}, s{t0}\n"
    return [x.strip() for x in S.split("\n") if x.strip()]
def place_early(fills, k0, g0, NG): place_list(early_setup(), fills, k0, g0, NG, (19, NG - 1))
def p5_setup(e):
    srd(e, R0, pWS, 54 * 8192, f"s{sBH}")
    srd(e, R1, pWS, 128 * 8192, f"s{sBC}")
    srd(e, R2, pW2, 1728 * 1280)
    srd(e, R3, pWO, 4096 * 1280)
    e(f"v_add_u32 v{vRE[1]}, {2*SLOT}, v{vRE[0]}\nv_add_u32 v{vRO[1]}, {2*SLOT}, v{vRO[0]}\ns_lshr_b32 s{sT+2}, s{sP8K}, 1")
    for r in range(4):
        e(f"s_add_u32 s{sT}, s{sS}, {r + 1}\ns_and_b32 s{sT}, s{sT}, 3\ns_lshl_b32 s{sT+1}, s{sT}, 10\ns_add_u32 s{sT+1}, s{sT+1}, s{sT+2}\nv_add_u32 v{vRA+r}, s{sT+1}, v{vL16}\nv_add_u32 v{vRA+4+r}, {2*SLOT}, v{vRA+r}")

def p5_dmas(d):
    sl = SLMAP[d & 3] * SLOT
    if d < 7: ra, sa, oa, rw, sw, ow = R0, sAH, d * 16384, R2, sWH, d * 64 * 1280
    else: ra, sa, oa, rw, sw, ow = R1, sAC, (d - 7) * 16384, R3, sWC, (d - 7) * 64 * 1280
    W = []
    for k in range(5):
        su = []
        if k == 0: su = [f"s_add_u32 m0, s{sMW}, {sl}", f"s_add_u32 s{sT+1}, s{sw}, {ow}"]
        if k == 4: su = [f"s_add_u32 m0, s{sMW}, {sl + 4096}"]
        W.append((su, f"buffer_load_dwordx4 v{vWD5+k}, s[{rw}:{rw+3}], s{sT+1} offen offset:{(k & 3) * 1024} lds"))
    A = []
    for k in range(4):
        su = [f"s_add_u32 m0, s{sMA}, {sl}", f"s_add_u32 s{sT}, s{sa}, {oa}"] if k == 0 else []
        A.append((su, f"buffer_load_dwordx4 v{vL16}, s[{ra}:{ra+3}], s{sT} offen offset:{k * 1024} lds"))
    return W + A
def p5_buf(m): return (m & 3) * 36
def p5_wreads(m):
    d, ks = m >> 1, m & 1; b = p5_buf(m); hi = SLMAP[d & 3] >> 1; o = (SLMAP[d & 3] & 1) * SLOT
    L = []
    for n in range(5):
        a = (vRO if n & 1 else vRE)[hi]; off = o + ks * 32 * 320 + n * 32
        L += [f"ds_read_b64_tr_b16 a[{b+4*n}:{b+4*n+1}], v{a} offset:{off}", f"ds_read_b64_tr_b16 a[{b+4*n+2}:{b+4*n+3}], v{a} offset:{off + 5120}"]
    return L
def p5_aread(m, r):
    d, ks = m >> 1, m & 1; b = p5_buf(m); hi = SLMAP[d & 3] >> 1; o = (SLMAP[d & 3] & 1) * SLOT
    return f"ds_read_b128 a[{b+20+4*r}:{b+23+4*r}], v{vRA+4*hi+r} offset:{o + ks * 8192}"
def p5_reads(d, last=False):
    W = [p5_wreads(2 * d), p5_wreads(2 * d + 1)]
    A = lambda r: [p5_aread(2 * d, r), p5_aread(2 * d + 1, r)]
    Wn = lambda n: W[0][2*n:2*n+2] + W[1][2*n:2*n+2]
    if last: return Wn(0) + A(0) + Wn(1) + Wn(2) + Wn(3) + Wn(4) + A(1) + A(2) + A(3)
    return Wn(0) + A(0) + A(1) + A(2) + A(3) + Wn(1) + Wn(2) + Wn(3) + Wn(4)

def p5(e):
    ACC = 32; ND = 23
    tick_dump(e, 2)
    attn_final(e)
    stamp(e, 8)
    warm(e, "b")
    e(f"s_add_u32 s{sT+2}, s{sQ+1}, {FC - FH}\ns_waitcnt vmcnt(0) lgkmcnt(0)\ns_barrier\nL_p5loop:")
    e(flag_store(sT + 2))
    stamp(e, 9)
    PCL = f"buffer_load_dword v20, v{vP2}, s[{RWS}:{RWS+3}], s{sFC} offen sc1"
    mfs = []; fills = []
    def mfma(m, n, r, z):
        b = p5_buf(m); dd = ACC + (r * 5 + n) * 4
        return f"{MF} v[{dd}:{dd+3}], a[{b+4*n}:{b+4*n+3}], a[{b+20+4*r}:{b+23+4*r}], " + ("0" if m < 2 and z == 0 else v(dd, 4))
    for d in range(ND):
        T_ = [(n, r) for n in range(5) for r in range(4)] if d < ND - 1 else [(n, r) for r in range(4) for n in range(5)]
        mfs.append([mfma(2 * d + (z ^ (k & 1)), n, r, z) for k, (n, r) in enumerate(T_) for z in range(2)]); fills.append([[] for _ in range(40)])
    for d in range(ND - 1):
        for k, x in enumerate(p5_reads(d + 1, d == ND - 2)): fills[d][1 + k + k // 4].append(x)
        if d: fills[d][0].append(bar([f"d{d+1}"]))
    NM = ND - 1
    GR = 176; XB = 156
    for k in range(12): fills[18][4 + 2 * k].append(f"v_mov_b32 v{GR + 16*(k >> 2) + (4*(k & 3) + 3 if k & 3 < 3 else 13)}, s{sTAG}")
    fills[18][30].append(f"v_lshrrev_b32 v139, 1, v{vL16}")
    def send(r):
        L = []
        for k in range(10):
            L.append(f"v_cvt_pk_bf16_f32 v{GR + 16*r + 4*(k // 3) + k % 3}, v{ACC+20*r+2*k}, v{ACC+20*r+2*k+1}")
            q = GR + 16 * r + 4 * (k // 3)
            if k % 3 == 2: L.append(f"buffer_store_dwordx4 v[{q}:{q+3}], v{vL16}, s[{RWS}:{RWS+3}], s{sEX3+r} offen offset:{1024 * (k // 3)} sc1")
        L.append(f"buffer_store_dwordx2 v[{q}:{q+1}], v139, s[{RWS}:{RWS+3}], s{sEX3+r} offen offset:3072 sc1")
        return L
    late = []
    g = 0
    for g0_, x in [(10 * (r + 1) + 5, x) for r in range(3) for x in send(r)]:
        g = max(g, g0_)
        if g < 40: fills[NM][g].append(x)
        else: late.append(x)
        g += 1
    RS = OPT.get("rs", 0)
    if RS:
        e(f"v_add_u32 v156, s{sMW}, v{vL16}\nv_add_u32 v157, s{sMA}, v{vL16}\nv_add_u32 v158, {2*SLOT}, v156\nv_add_u32 v159, {2*SLOT}, v157")
        for k in range(RS):
            d_, q = 2 + k // 9, k % 9; sl = SLMAP[d_ & 3]
            a_, off = (156, q * 1024) if q < 5 else (157, (q - 5) * 1024)
            fills[0][2 + 2 * k].append(f"ds_write_b128 v{a_ + 2 * (sl >> 1)}, a[{192+4*k}:{195+4*k}] offset:{(sl & 1) * SLOT + off}")
    for d in range(2, ND):
        P = [(d - 4, g) for g in range(3, 39, 4)]
        if RS and d == 2: continue
        if d < 6: P = [((d - 2) >> 1, g) for g in range(2 + 18 * (d & 1), 20 + 18 * (d & 1), 2)]
        if RS and d == 3: P = [(0, g) for g in range(3, 39, 4)]
        for k, (x, (m, g)) in enumerate(zip(p5_dmas(d), P)):
            if d == 3 and k < RS - 9:
                if k == 5 and RS - 9 < 9: put_dma(fills[m], g, (x[0], "s_nop 0"), None)
                continue
            if d == 7 and k == 5:
                if W0:
                    CB = OPT.get("cb", 20)
                    fills[m][CB].append(async_check("L_p5c", 20, PCL, sTAGW)); fills[m][CB].append("s_barrier"); fills[m][1].append(PCL)
                else:
                    fills[m][g - 1].append(async_check("L_p5c", 20, PCL))
                    fills[m - 1][37].append(PCL)
            put_dma(fills[m], g, x, f"d{d}")
    hs_ = f"""
        v_mov_b32 v20, 0
        v_mov_b32 v132, 0x10000000
        v_cmp_eq_u32 vcc, 0, v{vL16}
        s_lshl_b32 s10, s{sS}, 7
        s_xor_b32 s11, s10, 128
        v_cndmask_b32 v132, v132, v20, vcc
        v_lshlrev_b32 v133, 3, v{vL16}
        v_and_b32 v133, 384, v133
        v_mov_b32 v138, s11
        v_cmp_eq_u32 vcc, s10, v133
        s_nop 1
        v_cndmask_b32 v133, v133, v138, vcc
        s_add_u32 s10, s10, s{sFE}
        v_and_b32 v154, 8, v{vBO}
        v_mul_u32_u24 v154, 3, v154
        v_add_u32 v154, v154, v{vXO}
        """
    place_list([x.strip() for x in hs_.strip().split("\n")], fills, 20, 2, 40, (21, 0))
    HST = f"buffer_store_dword v{vTAG}, v132, s[{RWS}:{RWS+3}], s10 offen sc1"
    if OPT.get("hg", 99) < 40: fills[NM][OPT["hg"]].append(HST)
    OWN = ACC + 60; RXR = (224, 240, 140)
    HPL = f"buffer_load_dword v20, v133, s[{RWS}:{RWS+3}], s{sFE} offen sc1"
    place_list([x for k in range(3) for x in (f"s_add_u32 s{12+k}, s{sS}, {k+1}", f"s_and_b32 s{12+k}, s{12+k}, 3", f"s_mul_i32 s{12+k}, s{12+k}, 20480", f"s_add_u32 s{12+k}, s{12+k}, s{sEXl}")]
               + [f"s_mov_b32 s{R0}, s{pOUT}", f"s_and_b32 s{R0+1}, s{pOUT+1}, 0xffff", f"s_mov_b32 s{R0+2}, {2048*1280}", f"s_mov_b32 s{R0+3}, 0x20000"], fills, 20, 20, 40, (21, 0))
    def own_adds(e):
        e("s_nop 3"); e.need("v[112:131]")
        for q in range(10):
            e(f"v_lshlrev_b32 v134, 16, v{112+q}\nv_and_b32 v135, 0xffff0000, v{112+q}\nv_lshlrev_b32 v136, 16, v{122+q}\nv_and_b32 v137, 0xffff0000, v{122+q}")
            e(f"v_pk_add_f32 v[134:135], v[134:135], v[136:137]\nv_pk_add_f32 v[{OWN+2*q}:{OWN+2*q+1}], v[{OWN+2*q}:{OWN+2*q+1}], v[134:135]")
    def fetch(e):
        for k in range(3):
            for q in range(3): e(f"buffer_load_dwordx4 v[{RXR[k]+4*q}:{RXR[k]+4*q+3}], v{vL16}, s[{RWS}:{RWS+3}], s{12+k} offen offset:{1024*q} sc1")
            e(f"buffer_load_dwordx2 v[{RXR[k]+12}:{RXR[k]+13}], v139, s[{RWS}:{RWS+3}], s{12+k} offen offset:3072 sc1")
    def verify(e):
        tg = [RXR[k] + q for k in range(3) for q in (3, 7, 11, 13)]
        for op, d in (("v_max3_u32", 134), ("v_min3_u32", 135)):
            e(f"{op} v{d}, v{tg[0]}, v{tg[1]}, v{tg[2]}")
            for q in range(3, 11, 2): e(f"{op} v{d}, v{d}, v{tg[q]}, v{tg[q+1]}")
            e(f"{op} v{d}, v{d}, v{tg[11]}, v{tg[11]}")
        e(f"v_xor_b32 v134, s{sTAG}, v134\nv_xor_b32 v135, s{sTAG}, v135\nv_or_b32 v134, v134, v135\nv_cmp_ne_u32 vcc, 0, v134")
    mx = 19
    fills[mx][0].append(grp([f"s_mov_b32 s{R0}, s{pX}", f"s_and_b32 s{R0+1}, s{pX+1}, 0xffff", f"s_mov_b32 s{R0+2}, {2048*1280}", f"s_mov_b32 s{R0+3}, 0x20000",
                             f"s_mov_b32 s{R2}, s{pB2}", f"s_and_b32 s{R2+1}, s{pB2+1}, 0xffff", f"s_mov_b32 s{R2+2}, 1280", f"s_mov_b32 s{R2+3}, 0x20000"]))
    for n in range(5):
        fills[mx][2 + 3 * n].append(f"buffer_load_dwordx2 v[{112+2*n}:{113+2*n}], v{vXO}, s[{R0}:{R0+3}], s{sXO} offen offset:{32*n}")
        fills[mx][20 + 3 * n].append(f"buffer_load_dwordx2 v[{122+2*n}:{123+2*n}], v{vBO}, s[{R2}:{R2+3}], s{sBO} offen offset:{32*n}")
    for m in range(NM + 1):
        if m == 3: stamp(e, 11)
        if m == 4: stamp(e, 12)
        run_gaps(e, mfs[m], fills[m], mfs[m + 1][0] if m < NM else None)
    for x in late: e(x)
    tick_dump(e, 3)
    stamp(e, 13)
    if OPT.get("hg", 99) >= 40: e(HST)
    own_adds(e)
    def hp(e): e(f"{HPL}\ns_waitcnt vmcnt(0)\nv_cmp_ne_u32 vcc, s{sTAG}, v20")
    spin(e, "L_p5hint", hp, None, sleep=OPT.get("hs", 5))
    fetch(e)
    stamp(e, 10)
    e("s_waitcnt vmcnt(0)"); verify(e)
    e("s_cbranch_vccz L_p5x_ok")
    def poll(e):
        fetch(e); e("s_waitcnt vmcnt(0)"); verify(e)
    spin(e, "L_p5x", poll, None, sleep=OPT.get("xs", 1))
    e(f"s_cmp_eq_u32 s2, 0\ns_cselect_b32 s{sT}, {FL}, {0}\ns_cmp_eq_u32 s{sT}, 0\ns_cselect_b32 s{sT}, {WS_END}, s{sT}")
    e(flag_store(sT))
    for q in range(10):
        t = OWN + 2 * q
        for k in range(3):
            u = RXR[k] + 4 * (q // 3) + q % 3; z = 134 + 2 * (k & 1)
            e(f"v_lshlrev_b32 v{z}, 16, v{u}\nv_and_b32 v{z+1}, 0xffff0000, v{u}\nv_pk_add_f32 v[{t}:{t+1}], v[{t}:{t+1}], v[{z}:{z+1}]")
        e(f"v_cvt_pk_bf16_f32 v{112+q}, v{t}, v{t+1}")
        if OPT.get("narrow"):
            if q & 1: e(f"buffer_store_dwordx2 v[{111+q}:{112+q}], v{vXO}, s[{R0}:{R0+3}], s{sXO} offen offset:{16*(q-1)}")
        elif q in (3, 7):
            e(f"s_nop 1\nv_permlane16_swap_b32 v{109+q}, v{111+q}\nv_permlane16_swap_b32 v{110+q}, v{112+q}")
            e(f"buffer_store_dwordx4 v[{109+q}:{112+q}], v154, s[{R0}:{R0+3}], s{sXO} offen offset:{16*(q-3)}")
        elif q == 9: e(f"buffer_store_dwordx2 v[120:121], v{vXO}, s[{R0}:{R0+3}], s{sXO} offen offset:128")

def warm(e, name):
    if not OPT.get("hop"): return
    e(f"s_mov_b32 s7, 1")
    for w in range(3): e(f"s_cmp_eq_u32 s{sW}, {w}\ns_cbranch_scc1 HOP_{name}_{w}")
    e(f"s_branch HOP_{name}_3\nHOP_{name}_ret:\ns_mov_b32 s7, 0")
def reads_scc(i): return i.mn.startswith(("s_addc", "s_subb", "s_cselect", "s_cbranch_scc"))
def writes_scc(i): return i.kind == "salu" and not i.mn.startswith(("s_mov", "s_mul_i32", "s_cselect", "s_getpc", "s_sleep", "s_setprio"))
def insert_hops(L, sessions):
    import subprocess, re as _re
    open("hop.s", "w").write(header() + _re.sub(r"HOP_\w_\d", "L_p5loop", "\n".join(i.t for i in L)) + "\n" + footer())
    subprocess.run(["clang", "-x", "assembler", "-target", "amdgcn-amd-amdhsa", "-mcpu=gfx950", "-c", "hop.s", "-o", "hop.o"], check=True)
    dis = subprocess.run(["llvm-objdump", "-d", "--mcpu=gfx950", "hop.o"], capture_output=True, text=True).stdout
    D = [(m.group(1), int(m.group(2), 16)) for m in _re.finditer(r"^\t(\S+).*// ([0-9A-F]{12}):", dis, _re.M)]
    addr = {}; k = 0
    for n, i in enumerate(L):
        if i.kind == "label": continue
        base = lambda x: x.replace("_e32", "").replace("_e64", "")
        while base(D[k][0]) != base(i.mn): k += 1
        addr[n] = D[k][1]; k += 1
    lab = {i.mn[:-1]: n for n, i in enumerate(L) if i.kind == "label" and i.mn.endswith(":")}
    which = {}
    for name, ranges in sessions.items():
        for a, b in ranges:
            for n in range(lab[a], lab[b]): which[n] = name
    ins = []; shift = 0; page = -1
    start = lab["L_p1K"]
    for n in sorted(addr):
        if n < start: continue
        a = addr[n] + shift
        if a >> 12 == page or n not in which:
            page = a >> 12 if n not in which else page
            continue
        m = n; ok = True
        while m < len(L) and not writes_scc(L[m]) and L[m].kind != "br" or (m < len(L) and reads_scc(L[m])):
            if reads_scc(L[m]): ok = False; break
            m += 1
        if not ok:
            assert (a & 4095) < 48, "no safe hop slot"
            continue
        page = a >> 12
        if (a & 4095) < 56: ins.append((n, which[n])); shift += 8
    out = list(L); idx = {}
    per = {name: [n for n, w in ins if w == name] for name in sessions}
    txt = {}
    for name, P in per.items():
        for k, n in enumerate(P):
            nxt = f"HS_{name}_{k+4}" if k + 4 < len(P) else f"HOP_{name}_ret"
            txt[n] = ([f"HOP_{name}_{k}:"] if k < 4 else []) + [f"HS_{name}_{k}:", "s_cmp_eq_u32 s7, 1", f"s_cbranch_scc1 {nxt}"]
        assert len(P) >= 4, (name, len(P))
        print("hop session", name, len(P), "pages")
    out = []
    for n, i in enumerate(L):
        for x in txt.get(n, []): out.append(I(x))
        out.append(i)
    return out

def clone_state(e): return (list(e.vm), list(e.lg))

def build(stop=None):
    FBS.clear(); STUBS.clear()
    e = E(); seg = {}
    def mark(name, n0): seg[name] = e.l[n0:]
    n0 = 0
    e("L_code_begin:")
    if OPT.get("dbgspan"): e("s_memrealtime s[96:97]")
    if STAMP: e("s_mov_b32 s71, 0\ns_memrealtime s[96:97]\ns_memtime s[98:99]")
    prologue(e); p0_ln(e); p1_pre(e); stamp(e, 0); stamp(e, 1); stamp(e, 2)
    mark("pro", n0)
    e(f"s_cmp_ge_u32 s{sW}, 2\ns_cbranch_scc1 L_p1V")
    if OPT.get("hop"): e("s_branch L_p1K\n.p2align 12")
    e("L_p1K:")
    st0 = clone_state(e); st1 = {}; bq = {}
    def p1(T):
        e.vm, e.lg = list(st0[0]), list(st0[1])
        n0 = len(e.l); bg = Bg(); p1_main(e, T, bg); tick_dump(e, 0); stamp(e, 3); mark("p1" + T, n0)
        st1[T] = clone_state(e); bq[T] = list(bg.q)
        e(f"s_cmp_ge_u32 s{sU}, 27\ns_cbranch_scc1 L_qhN{T}")
    def qh(T, hasH):
        e.vm, e.lg = list(st1[T][0]), list(st1[T][1])
        n0 = len(e.l); b = Bg(); b.q = list(bq[T]); qh_main(e, T, hasH, b); mark("qh" + "NH"[hasH] + T, n0)
    p1("K")
    e("s_branch L_qhH\nL_p1V:")
    p1("V")
    assert [t for _, t in st1["K"][0]] == [t for _, t in st1["V"][0]] and [r for r, _ in st1["K"][1]] == [r for r, _ in st1["V"][1]] and bq["K"] == bq["V"]
    e("L_qhH:"); qh("V", True); seg["qhHK"] = seg["qhHV"]
    e("L_postH:")
    n0 = len(e.l)
    tick_dump(e, 1); stamp(e, 4); e("s_nop 7"); q_pack(e); dm = gelu(e, "L_skH"); attn_setup(e, dm); stamp(e, 5); attn_pre(e); stamp(e, 6); mark("postH", n0)
    e("L_attn:")
    segsA, ool = attention(e)
    e("L_p5:")
    n0 = len(e.l); e.vm = []
    p5(e); stamp(e, 14)
    if OPT.get("dbgspan"):
        e("""s_load_dwordx2 s[32:33], s[0:1], 96
        s_memrealtime s[98:99]
        s_waitcnt lgkmcnt(0)
        s_not_b32 s96, s96
        v_mov_b32 v4, 0
        v_mov_b32 v5, s98
        v_mov_b32 v6, s96
        s_mov_b64 exec, 1
        global_atomic_umax v4, v5, s[32:33] sc1
        global_atomic_umax v4, v6, s[32:33] offset:4 sc1""")
    mark("p5", n0)
    e("L_exit:\ns_endpgm")
    e("L_qhNK:\nL_qhNV:"); qh("V", False); seg["qhNK"] = seg["qhNV"]
    n0 = len(e.l)
    tick_dump(e, 1); stamp(e, 4); e(PKL); e("\n".join(early_setup())); q_pack(e); async_check("L_skN", vTR + 1, PKL)(e); attn_setup(e, kv_prologue_list()); stamp(e, 5); attn_pre(e); stamp(e, 6); mark("postN", n0)
    e("s_branch L_attn")
    ool()
    e("L_code_end:")
    seg.update(segsA)
    errs = []
    for T in "KV":
        for Hh in "HN":
            class X: pass
            x = X(); x.l = seg["p1" + T] + seg["qh" + Hh + T]; check_drain_order(x)
    def path(i):
        if i == 0: a = ["fDF"]
        else: a = ["fFF"] + ["FF"] * min(i - 1, 2) + ["DF"]
        return a + (["TYD"] if i == 7 else ["TY"] + ["YY"] * min(6 - i, 2) + ["YD"])
    for T, Hh, i in (("K", "H", 0), ("V", "N", 1), ("K", "N", 3), ("V", "H", 6), ("K", "H", 7)):
        tr = []
        for nme in ["pro", "p1" + T, "qh" + Hh + T, "post" + Hh] + path(i) + ["p5"]: tr += seg[nme]
        errs += check_trace(tr, f"{T},{Hh},{i}")
    for nme in FBS: errs += check_trace(seg[nme], nme)
    seen = set()
    for x in errs:
        k = x.split("]", 1)[1]
        if k not in seen:
            seen.add(k)
            if len(seen) < 12: print("HAZARD", x)
    print("instructions:", sum(1 for i in e.l if i.kind != "label"), {k: len(vv) for k, vv in seg.items()})
    if OPT.get("allld"):
        e.l = [I(i.t.replace(" lds", f" {OPT['allld']} lds")) if (i.kind == "vml" and i.lds and " nt" not in i.t and " sc" not in i.t) else i for i in e.l]
    if OPT.get("hop"):
        e.l = [i for i in e.l if i.mn != ".p2align 3"]
        end_a = {1: "L_attn", 2: "L_fin", 3: "L_postH"}[OPT["hop"]]
        e.l = insert_hops(e.l, {"a": [("L_qhH" if OPT.get("hq") else "L_p1K", end_a)], "b": [("L_p5loop", "L_exit")]})
    if "race" in sys.argv:
        import race; race.check_all(e.l)
    mac, body = compress([i.t for i in e.l])
    h = header(); k = h.index(".text")
    open("k_full.s", "w").write(h + e.text() + footer())
    return h[:k] + mac + h[k:] + body + footer(), len(seen)

if __name__ == "__main__":
    STAMP = "stamp" in sys.argv
    txt, ne = build()
    out = sys.argv[1] if len(sys.argv) > 1 else "k.s"
    open(out, "w").write(txt)
    print("bytes", len(txt), "hazards", ne)

def mb_init(e):
    for r in range(4): e(f"v_mov_b32 v{192+r}, 0x3f803f80")
```

```python
import sys, math, struct
from core import *

NAME = "parallel_sum__compressed_kv_cla__dense_activation_gelu__prompt"
def f32(x): return "0x%08x" % struct.unpack("<I", struct.pack("<f", x))[0]
CS = math.log2(math.e) / math.sqrt(128.0)

OPT = dict(kvst="sc1", norole=1, rate=1, bstep=2, bkv=17, notouch1=1, wnt=1, cnt=0, cpf=10, te=3, cs=2, sp0=3, xe=1, be=1, tsp=1, hop=1, np=16, wl=0, late=1, hg=66, qc=1, pc=1, kvb=7, gp=1, pk19=40, hs=8, slp=4, xd=1, bfast=1, m4=1)
for a in sys.argv[1:]:
    if "=" in a:
        k, vv = a.split("=", 1); OPT[k] = int(vv) if vv.lstrip("-").isdigit() else vv.replace("+", " ")
def NT(k): return ' nt' if OPT.get(k) else ''
XS = 0x0010000; KF = 0x0400000; VF = 0x1500000 + OPT.get('vsk', 0); HF = 0x2600000; CF = 0x2E00000; EX = 0x3F00000; FL = 0x5400000; WS_END = 0x5A00000
HS = 524288 + OPT.get('sk', 0)
FXS = FL + 0x8000; FKV = FL + 0x10000; FH = FL + 0x18000; FC = FL + 0x20000; FEX = FL + 0x80000
FS = 128
sTAG = 88
sW, sH, sIDX, sX = 3, 4, 5, 6
pX, pC, pWQ, pWUK, pWUV, pWO, pW1, pB1, pW2, pB2, pOUT, pDBG, pWS = 8, 10, 12, 14, 16, 18, 22, 24, 26, 28, 30, 32, 34
R0, R1, R2, R3, RWS = 36, 40, 44, 48, 52
sT = 56
sU = 64
sM0a, sM0b, sSa, sSb, sSc, sST = 65, 66, 67, 68, 69, 70
sQ = 72
MF = "v_mfma_f32_16x16x32_bf16"

def srd(e, r, p, nbytes, add=None):
    if add is None:
        e(f"s_mov_b32 s{r}, s{p}\ns_and_b32 s{r+1}, s{p+1}, 0xffff")
    else:
        e(f"s_add_u32 s{r}, s{p}, {add}\ns_addc_u32 s{r+1}, s{p+1}, 0\ns_and_b32 s{r+1}, s{r+1}, 0xffff")
    e(f"s_mov_b32 s{r+2}, {nbytes}\ns_mov_b32 s{r+3}, 0x20000")

vL16, vXR, vWQR, vW1R, vXD, vWQD, vW1D, vSC = 0, 1, 2, 10, 14, 18, 20, 21
vTR, vPK = 24, 28
vTAG = 23
sXS = 80
vCD, vWD, vCR, vWR = 96, 100, 104, 106
vWWIN, vCB = 176, (224, 192)
HACC, QACC = 32, 96
XNB = (224, 240)

class Cap:
    def __init__(self): self.l = []
    def __call__(self, t, tag=None): self.l.extend(x.strip() for x in t.strip().split("\n") if x.strip())
LATE = Cap()
def place_list(L, fills, k0, g0, NG, kmax):
    ks, g = k0, g0; k = 0
    while k < len(L):
        grp_ = [L[k]]
        if L[k].startswith("v_cmp"):
            while not grp_[-1].startswith("v_cndmask"): grp_.append(L[k + len(grp_)])
        elif L[k].startswith("s_"):
            while k + len(grp_) < len(L) and L[k + len(grp_)].startswith("s_") and (len(grp_) < 2 or L[k + len(grp_)].startswith(("s_cselect", "s_addc"))): grp_.append(L[k + len(grp_)])
            if grp_[-1].startswith("s_cmp") and len(grp_) > 1: grp_.pop()
            if k + len(grp_) < len(L) and L[k + len(grp_)].startswith("v_") and not L[k + len(grp_)].startswith("v_cmp"): grp_.append(L[k + len(grp_)])
        k += len(grp_)
        for x in grp_: fills[ks][g].append(("BG", x))
        g += 1
        if g == NG: ks, g = ks + 1, 0
    assert (ks, g) <= kmax, (ks, g)
def prologue(e):
    e(f"""
    s_cmp_ge_u32 s2, {0 if OPT.get("exit0") else 256}
    s_cbranch_scc1 L_exit
    s_load_dwordx16 s[8:23], s[0:1], 0
    s_load_dwordx8 s[24:31], s[0:1], 64
    s_load_dwordx4 s[32:35], s[0:1], 96
    v_lshrrev_b32 v33, 6, v0
    v_and_b32 v32, 63, v0
    v_readfirstlane_b32 s{sW}, v33
    v_lshlrev_b32 v{vL16}, 4, v32
    s_and_b32 s{sX}, s2, 7
    s_lshr_b32 s{sT}, s2, 3
    s_and_b32 s{sT}, s{sT}, 3
    s_lshl_b32 s{sH}, s{sX}, 2
    s_add_u32 s{sH}, s{sH}, s{sT}
    s_lshr_b32 s{sIDX}, s2, 5
    s_mov_b32 s7, 0
    """)
    if OPT.get("cpf"):
        e(f"""
        s_getpc_b64 s[{sT+4}:{sT+5}]
        s_and_b32 s{sT+4}, s{sT+4}, 0xffffff00
        s_lshr_b32 s{sT+2}, s2, 3
        s_lshl_b32 s{sT+2}, s{sT+2}, 2
        s_add_u32 s{sT+2}, s{sT+2}, s{sW}
        v_min_u32 v152, {OPT["cpf"] - 1}, v32
        v_lshlrev_b32 v152, 14, v152
        s_lshl_b32 s{sT+2}, s{sT+2}, 7
        v_add_u32 v152, s{sT+2}, v152
        v_min_u32 v152, L_code_end-L_code_begin-4, v152
        global_load_dword v153, v152, s[{sT+4}:{sT+5}]{NT('cpnt')}
        """)
    e(f"""
    s_mul_i32 s{sU}, s{sX}, 3
    s_add_u32 s{sU}, s{sU}, s{sT}
    s_sub_u32 s{sT+1}, s{sX}, s{sIDX}
    s_and_b32 s{sT+1}, s{sT+1}, 7
    s_add_u32 s{sT+1}, s{sT+1}, 24
    s_cmp_eq_u32 s{sT}, 3
    s_cselect_b32 s{sU}, s{sT+1}, s{sU}
    """)
    e(f"""
    v_lshrrev_b32 v37, 3, v32
    v_and_b32 v38, 7, v32
    v_lshrrev_b32 v39, 4, v32
    v_xor_b32 v50, v38, v39
    v_lshlrev_b32 v50, 4, v50
    v_lshl_add_u32 v{vCD}, v37, 10, v50
    v_xor_b32 v51, 64, v{vCD}
    v_add_u32 v{vCD+1}, 7168, v51
    v_add_u32 v{vCD+2}, {2*7168}, v{vCD}
    v_add_u32 v{vCD+3}, {3*7168}, v51
    v_and_b32 v52, 15, v32
    v_lshlrev_b32 v53, 1, v39
    v_xor_b32 v53, v52, v53
    v_lshlrev_b32 v53, 4, v53
    v_lshl_add_u32 v{vWD}, v39, 13, v53
    v_add_u32 v{vWD+1}, {31744}, v{vWD}
    v_xor_b32 v51, 128, v{vWD}
    v_add_u32 v{vWD+2}, {2*31744}, v51
    v_add_u32 v{vWD+3}, {3*31744}, v51
    """)
    e(f"""
    s_lshl_b32 s{sSa}, s{sIDX}, 18
    s_lshl_b32 s{sT+1}, s{sW}, 16
    s_add_u32 s{sSa}, s{sSa}, s{sT+1}
    s_lshl_b32 s{sM0a}, s{sW}, 13
    s_and_b32 s{sT+1}, s{sW}, 1
    s_lshl_b32 s{sSb}, s{sT+1}, 17
    s_lshl_b32 s{sT+2}, s{sH}, 8
    s_add_u32 s{sSb}, s{sSb}, s{sT+2}
    s_lshl_b32 s{sM0b}, s{sW}, 12
    s_add_u32 s{sM0b}, s{sM0b}, 0x10000
    s_waitcnt lgkmcnt(0)
    """)
    srd(e, R1, pC, 2048 * 1024)
    e(f"s_cmp_ge_u32 s{sW}, 2\ns_cselect_b32 s{R2}, s{pWUV}, s{pWUK}\ns_cselect_b32 s{R2+1}, s{pWUV+1}, s{pWUK+1}")
    e(f"s_and_b32 s{R2+1}, s{R2+1}, 0xffff\ns_mov_b32 s{R2+2}, {512*8192}\ns_mov_b32 s{R2+3}, 0x20000")
    for q in range(8): emit_dma(e, p1_cdma(0, q), "c0")
    for u in range(4): emit_dma(e, p1_wdma(0, u), "w0")
    for x, tag in PRO2()[:OPT.get("np", 28) - 12]: emit_dma(e, x, tag)
    e(f"s_add_u32 s{sT+2}, s{pWS}, {FL}\ns_addc_u32 s{sT+3}, s{pWS+1}, 0\ns_load_dword s{sTAG}, s[{sT+2}:{sT+3}], 0")
    LATE.l.clear()
    srd(e, RWS, pWS, WS_END)
    if OPT.get("late"): e = LATE
    srd(e, R0, pX, 2048 * 1280)
    srd(e, R3, pB1, 1728 * 2)
    e(f"""
    v_lshrrev_b32 v34, 5, v32
    v_and_b32 v35, 31, v32
    v_mul_u32_u24 v36, 1280, v34
    v_lshl_add_u32 v36, v35, 3, v36
    s_lshl_b32 s89, s2, 2
    s_add_u32 s89, s89, s{sW}
    s_mul_i32 s89, s89, 2560
    v_lshlrev_b32 v151, 3, v39
    s_lshl_b32 s90, s{sU}, 7
    """)
    e(f"""
    s_lshl_b32 s{sT+4}, s{sH}, 8
    s_mul_i32 s{sT+2}, s{sIDX}, 80
    s_mul_i32 s{sT+3}, s{sW}, 20
    s_add_u32 s{sT+2}, s{sT+2}, s{sT+3}
    s_lshl_b32 s{sT+3}, s{sT+2}, 13
    s_add_u32 s{sT+3}, s{sT+3}, s{sT+4}
    s_mul_i32 s{sT+2}, s{sT+2}, 3456
    s_lshl_b32 s{sT+4}, s{sU}, 7
    s_add_u32 s{sT+2}, s{sT+2}, s{sT+4}
    v_min_u32 v140, {7 if OPT.get("tsp") else 39}, v32
    v_and_b32 v144, 1, v140
    v_lshlrev_b32 v144, 7, v144
    v_lshrrev_b32 v140, 1, v140
    v_lshl_add_u32 v140, v140, 13, v144
    v_min_u32 v145, {3 if OPT.get("tsp") else 19}, v32
    v_mul_u32_u24 v145, 3456, v145
    """)
    srd(e, 84, pWQ, 640 * 8192)
    e(f"s_mov_b32 s93, s{sT+3}\ns_mov_b32 s94, s{sT+2}")

PC = OPT.get('pc', 0)
CSLOT = (0, 32768) * 4 if PC else (32768, 0, 131072, 32768, 0, 32768, 0, 32768)
vCR2 = 124; vWR2 = 160
def p1_cdma(j, q):
    setup = []
    if q % 4 == 0:
        setup = [f"s_add_u32 m0, s{sM0a}, {CSLOT[j] + (q >> 2) * 4096}", f"s_add_u32 s{sT}, s{sSa}, {j * 128 + (q >> 2) * 32768}"]
    return setup, f"buffer_load_dwordx4 v{vCD + (q & 3)}, s[{R1}:{R1+3}], s{sT} offen offset:{(q & 3) * 1024}{NT('cnt')} lds"
def p1_wslot(sidx): return ((1, 0, 2, 1, 0, 2, 1, 0)[sidx >> 1] * 2 + (sidx & 1) if PC else (sidx + 2) & 3) * 16384
def p1_wdma(sidx, u):
    setup = []
    if u == 0:
        setup = [f"s_add_u32 m0, s{sM0b}, {p1_wslot(sidx)}", f"s_add_u32 s{sT+1}, s{sSb}, {sidx * 32 * 8192}"]
    return setup, f"buffer_load_dwordx4 v{vWD + u}, s[{R2}:{R2+3}], s{sT+1} offen offset:{u * 1024}{NT('wnt')} lds"

def PRO2():
    L = [(p1_wdma(1, u), "w1") for u in range(4)] + [(p1_cdma(1, q), "c1") for q in range(8)] + [(p1_wdma(2, u), "w2") for u in range(4)]
    return L
def emit_dma(e, pair, tag):
    su, d = pair
    for x in su: e(x)
    if su: e("s_nop 0")
    e(d, tag=tag)

def reduce32(r, t):
    L = []
    for mod in ("quad_perm:[1,0,3,2]", "quad_perm:[2,3,0,1]", "row_half_mirror", "row_mirror"):
        L += ["s_nop 0", f"v_add_f32_dpp v{r}, v{r}, v{r} {mod} row_mask:0xf bank_mask:0xf"]
    return L + [f"v_mov_b32 v{t}, v{r}", "s_nop 0", f"v_permlane16_swap_b32 v{r}, v{t}", f"v_add_f32 v{r}, v{r}, v{t}"]

def ln_ops():
    L = []; U = 50
    for k in range(10): L += [f"v_lshlrev_b32 v{U+2*k}, 16, v{40+k}", f"v_and_b32 v{U+1+2*k}, 0xffff0000, v{40+k}"]
    L += [f"v_add_f32 v70, v{U}, v{U+1}"] + [f"v_add_f32 v70, v70, v{U+k}" for k in range(2, 20)]
    L += reduce32(70, 71) + [f"v_mul_f32 v70, {f32(1/640)}, v70"]
    L += [f"v_sub_f32 v{U+k}, v{U+k}, v70" for k in range(20)]
    L += [f"v_mul_f32 v72, v{U}, v{U}"] + [f"v_fmac_f32 v72, v{U+k}, v{U+k}" for k in range(1, 20)]
    L += reduce32(72, 73)
    L += [f"v_mov_b32 v73, {f32(1e-5)}", f"v_fmac_f32 v73, {f32(1/640)}, v72", "v_rsq_f32 v73, v73", f"v_mul_f32 v73, {f32(CS)}, v73"]
    L += [f"v_mul_f32 v{U+k}, v{U+k}, v73" for k in range(20)]
    for k in range(5):
        L += [f"v_cvt_pk_bf16_f32 v{40+2*k}, v{U+4*k}, v{U+4*k+1}", f"v_cvt_pk_bf16_f32 v{41+2*k}, v{U+4*k+2}, v{U+4*k+3}"]
    return L

def p0_ln(e):
    e(f"""
    v_lshrrev_b32 v54, 1, v52
    v_xor_b32 v54, v54, v39
    v_lshlrev_b32 v54, 4, v54
    v_lshl_add_u32 v54, v52, 7, v54
    s_and_b32 s{sT+2}, s{sW}, 1
    s_lshl_b32 s{sT+2}, s{sT+2}, 14
    v_add_u32 v{vCR}, s{sT+2}, v54
    v_xor_b32 v{vCR+1}, 64, v{vCR}
    v_add_u32 v{vCR2}, 0x20000, v{vCR}
    v_add_u32 v{vCR2+1}, 0x20000, v{vCR+1}
    v_lshrrev_b32 v55, 2, v52
    v_and_b32 v56, 1, v39
    v_lshl_add_u32 v56, v56, 2, v55
    v_lshlrev_b32 v56, 5, v56
    v_and_b32 v57, 3, v32
    v_lshlrev_b32 v57, 3, v57
    v_lshl_add_u32 v57, v55, 8, v57
    v_lshl_add_u32 v58, v39, 11, v57
    s_lshr_b32 s{sT+2}, s{sW}, 1
    s_lshl_b32 s{sT+2}, s{sT+2}, 13
    s_add_u32 s{sT+2}, s{sT+2}, 0x10000
    v_add_u32 v58, s{sT+2}, v58
    v_mul_u32_u24 v59, 3072, v39
    v_add_u32 v59, v59, v57
    v_add_u32 v59, {(88 if OPT.get('qc') else 96)*1024}, v59
    """)
    for i in range(8): e(f"v_xor_b32 v{vWQR+i}, {32*i}, v56\nv_add_u32 v{vWR+i}, v{vWQR+i}, v58")
    e0 = e
    if OPT.get("late"): e = LATE
    for i in range(8): e(f"v_add_u32 v{vWQR+i}, v{vWQR+i}, v59")
    if PC:
        for i in range(8): e(f"v_add_u32 v{vWR2+i}, 0x10000, v{vWR+i}")
    e(f"""
    v_lshrrev_b32 v60, 1, v55
    v_and_b32 v61, 1, v39
    v_lshl_add_u32 v60, v61, 1, v60
    v_lshlrev_b32 v60, 5, v60
    v_and_b32 v61, 3, v32
    v_lshlrev_b32 v61, 3, v61
    v_lshl_add_u32 v61, v55, 7, v61
    v_mul_u32_u24 v62, 3072, v39
    v_add3_u32 v61, v61, v62, 0
    v_add_u32 v61, {(88 if OPT.get('qc') else 96)*1024 + 2048}, v61
    """)
    for i in range(4):
        e(f"v_xor_b32 v62, {32*i}, v60\nv_add_u32 v{vW1R+i}, v62, v61")
    if not OPT.get("late"): e("s_waitcnt lgkmcnt(0)")
    e(f"s_mul_i32 s{sTAG}, s{sTAG}, 0x9E3779B1\ns_add_u32 s{sTAG}, s{sTAG}, 0x7F4A7C15")
    if W0: e(f"s_cmp_eq_u32 s{sW}, 0\ns_cselect_b32 s{sTAGW}, s{sTAG}, 0")
    e(f"""
    v_lshrrev_b32 v88, 1, v35
    v_mul_u32_u24 v88, 144, v88
    v_and_b32 v89, 1, v35
    v_lshl_add_u32 v88, v89, 3, v88
    v_lshl_add_u32 v88, v34, 4, v88
    s_lshl_b32 s{sT+2}, s{sW}, 5
    s_add_u32 s{sT+2}, s{sT+2}, 0x20000
    v_add_u32 v76, s{sT+2}, v88
    """)
    e(f"""
    v_lshlrev_b32 v126, 8, v37
    v_lshl_add_u32 v126, v38, 4, v126
    s_lshr_b32 s{sXS}, s2, 1
    s_mul_i32 s{sXS}, s{sXS}, 20480
    s_and_b32 s{sT+3}, s2, 1
    s_lshl_b32 s{sT+3}, s{sT+3}, 7
    s_add_u32 s{sXS}, s{sXS}, s{sT+3}
    s_lshl_b32 s{sT+3}, s{sW}, 11
    s_add_u32 s{sXS}, s{sXS}, s{sT+3}
    s_add_u32 s{sXS}, s{sXS}, {XS}
    s_add_u32 s{sXS+1}, s{sXS}, 8192
    s_add_u32 s{sXS+2}, s{sXS}, 16384
    s_cmp_ge_u32 s{sW}, 2
    s_cselect_b32 s{sXS+2}, {WS_END}, s{sXS+2}
    s_mul_i32 s{sT+5}, s{sW}, {8*144}
    s_add_u32 s{sT+5}, s{sT+5}, 0x20000
    v_mul_u32_u24 v77, 144, v37
    v_lshl_add_u32 v77, v38, 4, v77
    v_add_u32 v77, s{sT+5}, v77
    """)
    e(f"""
    s_lshl_b32 s{sQ}, s{sH}, 3
    s_add_u32 s{sQ}, s{sQ}, s{sIDX}
    s_mul_i32 s{sQ}, s{sQ}, {FS}
    s_add_u32 s{sQ}, s{sQ}, {FKV}
    s_lshl_b32 s{sQ+1}, s{sIDX}, 5
    s_add_u32 s{sQ+1}, s{sQ+1}, s{sH}
    s_mul_i32 s{sQ+1}, s{sQ+1}, {FS}
    s_add_u32 s{sQ+1}, s{sQ+1}, {FH}
    s_mul_i32 s{sQ+2}, s2, {FS}
    s_add_u32 s{sQ+2}, s{sQ+2}, {FXS}
    s_sub_u32 s{sQ+3}, s{sU}, 27
    s_mul_i32 s{sT+5}, s{sX}, 5
    s_add_u32 s{sQ+3}, s{sQ+3}, s{sT+5}
    v_mov_b32 v91, 0
    v_mov_b32 v92, 0x10000000
    v_lshl_add_u32 v93, v33, 6, v32
    v_cmp_eq_u32 vcc, 0, v93
    v_mov_b32 v{vTAG}, s{sTAG}
    v_and_b32 v127, 15, v32
    v_cndmask_b32 v{vSC}, v92, v91, vcc
    s_lshl_b32 s{sT+5}, s{sIDX}, 4
    s_sub_u32 s{sT+4}, 240, s{sT+5}
    v_and_b32 v93, 16, v32
    v_cmp_eq_u32 vcc, 0, v93
    v_mov_b32 v91, s{sT+5}
    v_mov_b32 v92, s{sT+4}
    v_cndmask_b32 v91, v92, v91, vcc
    v_add_u32 v127, v127, v91
    v_lshlrev_b32 v127, 7, v127
    """)

def p1_acc(T, i, j):
    if OPT.get("contig"):
        if T == "K": return 8 * (8 * (j >> 1) + 2 * (i >> 1) + (j & 1)) + 4 * (i & 1)
        return 8 * (8 * (j >> 1) + i) + 4 * (j & 1)
    if T == "K": return 8 * (8 * (i >> 1) + 4 * (j & 1) + (j >> 1)) + 4 * (i & 1)
    return 32 * i + 4 * j
def p1_units():
    U = []
    for n in range(32):
        off = n * 1024 if OPT.get("contig") else (n & 3) * 8192 + (n >> 2) * 1024
        ins = []
        for k in range(4):
            tr = vTR + 2 * (k & 1); src = 8 * n + 2 * k
            ins += [f"v_accvgpr_read_b32 v{tr}, a{src}", f"v_accvgpr_read_b32 v{tr+1}, a{src+1}", f"v_cvt_pk_bf16_f32 v{vPK+k}, v{tr}, v{tr+1}"]
        ins.insert(6, f"s_add_u32 s{sT+7}, s{sST}, {off & ~4095}")
        if OPT["kvst"] != "skip": ins.append((f"buffer_store_dwordx4 v[{vPK}:{vPK+3}], v{vL16}, s[{RWS}:{RWS+3}], s{sT+7} offen offset:{off & 4095} {OPT['kvst']}", "kv"))
        U.append(ins)
    return U

def _kind(y):
    if callable(y): return "call"
    if isinstance(y, tuple) and y[0] == "BG": y = y[1]
    return I(y[0] if isinstance(y, tuple) else y).kind
class Bg:
    def __init__(self): self.q = []
    def push(self, ins): self.q += list(ins)
    def place(self, fill, g0, g1, maxv=1, step=1):
        for g in range(g0, g1, step):
            n = 0
            while self.q and n < maxv:
                x = self.q[0]; t = x[0] if isinstance(x, tuple) else x
                k = I(t).kind if not callable(t) else "call"
                if k in ("vms", "vml") and (n > 0 or any(_kind(y) in ("vml", "vms") for y in fill[g])): break
                fill[g].append(("BG", self.q.pop(0)))
                if k in ("salu", "nop"): continue
                n += 1
                if k in ("vms", "vml"): break
    def flush(self, e):
        for x in self.q:
            t, tag = x if isinstance(x, tuple) else (x, None)
            q = I(t); e.need(q.rd | q.wr); e(t, tag)
        self.q = []

def run_gaps(e, mf, fill, nxt=None):
    f2 = []
    for g in range(len(mf)):
        a = [x for x in fill[g] if not (isinstance(x, tuple) and x[0] == "BG")]
        b = [x[1] for x in fill[g] if isinstance(x, tuple) and x[0] == "BG"]
        if b:
            def mk(b):
                def f(e):
                    for x in b:
                        t, tag = x if isinstance(x, tuple) else (x, None)
                        q = I(t); e.need(q.rd | q.wr); e(t, tag)
                f.last = True
                return f
            a.append(mk(b))
        f2.append(a)
    e.gaps(mf, f2, nxt)

def put_dma(fill, g, pair, tag):
    su, d = pair
    for x in reversed(su): fill[g - 1].append(x)
    fill[g].append((d, tag))

QC = OPT.get('qc', 0); WB = (88 if QC else 96) * 1024
def qh_wslot(sidx): return ((4, 5, 3, 2, 1, 0)[sidx % 6] if QC else (sidx + 3) % 5) * 12288
def qh_dmas(sidx, hasH, d=0):
    L = []
    u32 = lambda x: x & 0xffffffff
    for j in range(4):
        su = [f"s_add_u32 m0, s{sM0a}, {u32((sidx & 3) * 16384 + d * 8192)}", f"s_mov_b32 s{sT}, {XS + sidx * 1024 + d * 40960}"] if j == 0 else []
        L.append((su, f"buffer_load_dwordx4 v{vXD + j}, s[{RWS}:{RWS+3}], s{sT} offen offset:{j * 1024} lds"))
    for u in range(2):
        su = [f"s_add_u32 m0, s{sM0b}, {u32(qh_wslot(sidx) + d * 6144)}", f"s_mov_b32 s{sT+1}, {sidx * 32 * 8192 + d * 131072}"] if u == 0 else []
        L.append((su, f"buffer_load_dwordx4 v{vWQD + u}, s[{R0}:{R0+3}], s{sT+1} offen offset:{u * 1024} lds"))
    if hasH:
        L.append(([f"s_mov_b32 s{sT+2}, {sidx * 32 * 3456 + d * 55296}"], f"buffer_load_dwordx4 v{vW1D}, s[{R1}:{R1+3}], s{sT+2} offen offset:2048 lds"))
    return L
def qh_xread(sidx, j):
    b = XNB[sidx & 1] + 4 * j
    return f"ds_read_b128 v[{b}:{b+3}], v{vXR} offset:{(sidx & 3) * 16384 + j * 1024}"
def qh_wread(sidx, i, n):
    r = (n % 3) * 8 + (sidx & 1) * 4 if QC else (n & 3) * 4
    if i < 8: a, second = vWQR + i, 1024
    else: a, second = vW1R + i - 8, 512
    o = qh_wslot(sidx)
    return [f"ds_read_b64_tr_b16 a[{r}:{r+1}], v{a} offset:{o}", f"ds_read_b64_tr_b16 a[{r+2}:{r+3}], v{a} offset:{o + second}"]

def spin(e, lab, pollA, cond, limit=1000000, sleep=None):
    if sleep is None: sleep = OPT.get('slp', 2)
    e(f"s_mov_b32 s{sT+6}, {limit}\n{lab}:")
    pollA(e)
    e(f"s_cbranch_vccz {lab}_ok\ns_sub_u32 s{sT+6}, s{sT+6}, 1\ns_cmp_eq_u32 s{sT+6}, 0\ns_cbranch_scc1 {lab}_ok\ns_sleep {sleep}\ns_branch {lab}\n{lab}_ok:")

def qh_setup(e):
    L = []
    L += [f"s_lshl_b32 s{sQ+4}, s{sIDX}, 3", f"s_add_u32 s{sQ+4}, s{sQ+4}, s{sW}", f"s_mul_i32 s{sQ+4}, s{sQ+4}, 20480",
          f"s_sub_u32 s{sQ+5}, 15, s{sIDX}", f"s_lshl_b32 s{sQ+5}, s{sQ+5}, 3", f"s_add_u32 s{sQ+5}, s{sQ+5}, s{sW}", f"s_mul_i32 s{sQ+5}, s{sQ+5}, 20480"]
    L += [f"v_add_u32 v{vXD}, s{sQ+4}, v{vL16}", f"v_add_u32 v{vXD+1}, {4*20480 - 1024}, v{vXD}",
          f"v_add_u32 v{vXD+2}, s{sQ+5}, v{vL16}", f"v_add_u32 v{vXD+3}, {4*20480 - 3072}, v{vXD+2}", f"v_subrev_u32 v{vXD+2}, 2048, v{vXD+2}"]
    return L

STAMP = False
TS = FL + 0x40000
def stamp(e, k):
    if not STAMP or (OPT.get("lite") and k not in (0, 14)): return
    if k: e("s_memrealtime s[96:97]\ns_memtime s[98:99]")
    e(f"""s_waitcnt lgkmcnt(0)
    s_lshl_b32 s97, s2, 2
    s_add_u32 s97, s97, s{sW}
    s_lshl_b32 s97, s97, 8
    s_add_u32 s97, s97, {TS + 8 * k}
    s_mov_b64 s[100:101], exec
    s_mov_b64 exec, 1
    {"v_mov_b32 v122" if k == 3 else "v_accvgpr_write_b32 a194" if k >= 7 else "v_accvgpr_write_b32 a254"}, s96
    {"v_mov_b32 v123" if k == 3 else "v_accvgpr_write_b32 a195" if k >= 7 else "v_accvgpr_write_b32 a255"}, s98
    s_nop 1
    buffer_store_dwordx2 {"v[122:123]" if k == 3 else "a[194:195]" if k >= 7 else "a[254:255]"}, off, s[{RWS}:{RWS+3}], s97
    s_mov_b64 exec, s[100:101]
    s_nop 3""")

def header():
    ref = open("cdna_kernels/" + NAME + ".s.ref").read().split("\n")
    kern = "\n".join(x for x in ref[:15] if x.startswith(";"))
    return f"""{kern}
; @launch grid=(256,1,1) block=(256,1,1) lds=163840
;
; One persistent launch, one workgroup (4 waves, 512 registers each) per CU.  Generated by a hand-written Python emitter.
; Workgroup = (head h, index i).  Phases, all on v_mfma_f32_16x16x32_bf16 with LDS-DMA staging:
;   1  K,V = c_kv * W_uk,W_uv for 256 keys of head h, written to d_ws in MFMA fragment order; in its shadow the layernorm of
;      8 rows (scaled by log2(e)/sqrt(128), which the GELU constants undo again) is written to d_ws
;   3  causal attention of both query blocks.  Scores come out of the MFMA already shifted by a running reference that starts as
;      reference to the true maximum of that tile, rescales O and l and redoes the tile.  When the short block is finished,
; Hand-offs between workgroups: write-through stores, vmcnt wait, barrier, then a flag word holding a tag derived from an epoch
; word in d_ws (advanced at the end of the launch), so stale flags of earlier launches never match; no placement is assumed.
.amdgcn_target "amdgcn-amd-amdhsa--gfx950"
.text
.globl {NAME}_kernel
.p2align 8
.type {NAME}_kernel,@function
{NAME}_kernel:
"""
def footer():
    return f"""
.section .rodata,"a"
.p2align 6
.amdhsa_kernel {NAME}_kernel
  .amdhsa_next_free_vgpr 512
  .amdhsa_next_free_sgpr 102
  .amdhsa_accum_offset 256
  .amdhsa_group_segment_fixed_size 0
  .amdhsa_kernarg_size 112
  .amdhsa_user_sgpr_count 2
  .amdhsa_user_sgpr_kernarg_segment_ptr 1
  .amdhsa_system_sgpr_workgroup_id_x 1
.end_amdhsa_kernel
"""

def code_touch(a, b, nl, vt, dst):
    return [grp([f"s_getpc_b64 s[{sT+4}:{sT+5}]", f"LT_{a}_{code_touch.n}:", f"s_add_u32 s{sT+4}, s{sT+4}, {a}-LT_{a}_{code_touch.n}", f"s_addc_u32 s{sT+5}, s{sT+5}, {code_touch.hi(a)}",
                 f"s_lshr_b32 s{sT+6}, s2, 3", f"s_lshl_b32 s{sT+6}, s{sT+6}, 2", f"s_add_u32 s{sT+6}, s{sT+6}, s{sW}", f"s_lshl_b32 s{sT+6}, s{sT+6}, 7"]),
            f"v_lshlrev_b32 v{vt}, 10, v{vL16}", f"v_min_u32 v{vt}, {(nl - 1) << 14}, v{vt}", f"v_add_u32 v{vt}, s{sT+6}, v{vt}", f"v_min_u32 v{vt}, {b}-{a}-4, v{vt}",
            f"global_load_dword {dst}, v{vt}, s[{sT+4}:{sT+5}]"]
code_touch.n = 0
code_touch.hi = lambda a: 0
def grp_all(L):
    def f(e):
        for x in L: x(e) if callable(x) else e(x)
    return f
def grp(L):
    def f(e):
        for x in L: e(x)
    return f
vTK = 22
def tick_pre(e):
    if OPT.get("ticks"): e("s_memtime s[96:97]")
def tick_post(e):
    if OPT.get("ticks") == 2:
        e(f"s_memtime s[98:99]\ns_waitcnt lgkmcnt(0)\ns_lshl_b64 exec, 1, s71\nv_mov_b32 v{vTK}, s96\ns_lshl_b64 exec, 2, s71\nv_mov_b32 v{vTK}, s98\ns_mov_b64 exec, -1\ns_add_u32 s71, s71, 2\ns_and_b32 s71, s71, 63")
    elif OPT.get("ticks"):
        e(f"s_waitcnt lgkmcnt(0)\ns_lshl_b64 exec, 1, s71\nv_mov_b32 v{vTK}, s96\ns_mov_b64 exec, -1\ns_add_u32 s71, s71, 1")
def tick_dump(e, k):
    if OPT.get("ticks"):
        e(f"""s_lshl_b32 s97, s2, 2
        s_add_u32 s97, s97, s{sW}
        s_lshl_b32 s97, s97, 12
        s_add_u32 s97, s97, {FL + 0x100000 + 1024 * k}
        buffer_store_dword v{vTK}, v{vL16}, s[{RWS}:{RWS+3}], s97 offen
        s_mov_b32 s71, 0
        s_nop 1""")
def bar(vmtags=(), lg0=True):
    def f(e):
        tick_pre(e)
        e.need(vmtags=vmtags, lg0=lg0); e("s_barrier")
        tick_post(e)
    return f

def p1_pre(e):
    e0 = e
    if OPT.get("late"): e = LATE
    e(f"""
    s_mul_i32 s{sST}, s{sH}, {HS}
    s_lshl_b32 s{sT+2}, s{sIDX}, 16
    s_add_u32 s{sST}, s{sST}, s{sT+2}
    s_and_b32 s{sT+2}, s{sW}, 1
    s_lshl_b32 s{sT+2}, s{sT+2}, 15
    s_add_u32 s{sST}, s{sST}, s{sT+2}
    s_cmp_ge_u32 s{sW}, 2
    s_cselect_b32 s{sT+2}, {VF-KF}, 0
    s_add_u32 s{sST}, s{sST}, s{sT+2}
    s_add_u32 s{sST}, s{sST}, {KF}
    s_lshl_b32 s{sT+2}, s{sW}, 12
    v_add_u32 v{vXR}, s{sT+2}, v{vL16}
    """)
    e(f"""
    s_and_b32 s{sT+2}, s{sW}, 1
    s_lshl_b32 s{sT+3}, s{sT+2}, 7
    v_xor_b32 v94, s{sT+3}, v{vWD}
    s_lshl_b32 s{sT+3}, s{sW}, 16
    s_lshl_b32 s{sT+4}, s{sH}, 8
    s_add_u32 s{sT+3}, s{sT+3}, s{sT+4}
    v_add_u32 v{vWQD}, s{sT+3}, v94
    v_add_u32 v{vWQD+1}, 31744, v{vWQD}
    """)
    e(f"""
    v_and_b32 v94, 1, v39
    v_lshlrev_b32 v94, 1, v94
    s_lshl_b32 s{sT+3}, s{sT+2}, 2
    v_or_b32 v94, s{sT+3}, v94
    v_xor_b32 v94, v94, v38
    v_lshlrev_b32 v94, 4, v94
    v_mul_u32_u24 v95, 3456, v37
    v_add_u32 v94, v94, v95
    s_mul_i32 s{sT+3}, s{sW}, {8*3456}
    s_lshl_b32 s{sT+4}, s{sU}, 7
    s_add_u32 s{sT+3}, s{sT+3}, s{sT+4}
    v_add_u32 v{vW1D}, s{sT+3}, v94
    """)
    for x in qh_setup(e): e(x)
    e = e0
    if not OPT.get("wl"): warm(e, "a")
    for x, tag in PRO2()[OPT.get("np", 28) - 12:OPT.get("np2", 28) - 12]: emit_dma(e, x, tag)
    if OPT.get("wl"): warm(e, "a")
    e.need(vmtags=("c0", "w0", "w1") if PC else ("c0", "w0"), lg0=True)
    e("s_barrier")
    if PC:
        for x in p1_wread(0) + p1_wread(8): e(x)
        for j in range(8): e(p1_cread(j & 1, j)); e(p1_cread(1 - (j & 1), j))
        return
    for j in range(8): e(p1_cread(0, j))
    for n in range(2):
        for x in p1_wread(n): e(x)

def hacc(ft, j): return HACC + (j * 2 + (ft >> 1)) * 8 + (ft & 1) * 4
def qacc(i, j): return QACC + (j * 4 + (i >> 1)) * 8 + (i & 1) * 4
def bias_init():
    L = []
    for ft in range(4):
        d = hacc(ft, 3)
        for k in range(2):
            L += [f"v_lshlrev_b32 v{d+2*k}, 16, v{114+2*ft+k}", f"v_and_b32 v{d+2*k+1}, 0xffff0000, v{114+2*ft+k}",
                  f"v_mul_f32 v{d+2*k}, {f32(CS)}, v{d+2*k}", f"v_mul_f32 v{d+2*k+1}, {f32(CS)}, v{d+2*k+1}"]
    return L

def p1_cread(sidx, j):
    b = vCB[sidx & 1] + 4 * j
    sl = CSLOT[sidx >> 1]
    return f"ds_read_b128 v[{b}:{b+3}], v{(vCR2 if sl > 65535 else vCR) + (sidx & 1)} offset:{(sl & 65535) + j * 2048}"
def p1_wread(n):
    sidx, i = divmod(n, 8); r = vWWIN + 4 * (n & 3); o = p1_wslot(sidx); a = vWR + i
    if PC:
        r = vWWIN + 8 * (i & 1) + 4 * (sidx & 1)
        if o >= 65536: a, o = vWR2 + i, o - 65536
    return [f"ds_read_b64_tr_b16 v[{r}:{r+1}], v{a} offset:{o}", f"ds_read_b64_tr_b16 v[{r+2}:{r+3}], v{a} offset:{o+1024}"]

W0 = OPT.get("w0", 1) and not OPT.get("ticks")
sTAGW = 71 if W0 else sTAG
def async_check(lab, reg, reload, tag=None):
    def f(e):
        e.need(f"v{reg}")
        e(f"v_cmp_ne_u32 vcc, s{tag or sTAG}, v{reg}\ns_cbranch_vccz {lab}_ok")
        sv, sl = list(e.vm), list(e.lg)
        def poll(e):
            e(reload); e("s_waitcnt vmcnt(0)"); e(f"v_cmp_ne_u32 vcc, s{tag or sTAG}, v{reg}")
        spin(e, lab, poll, None)
        e.vm, e.lg = sv, sl
    return f
def flag_store(sreg): return f"buffer_store_dword v{vTAG}, v{vSC}, s[{RWS}:{RWS+3}], s{sreg} offen sc1"

PARK = {0: 20, 1: 28, 2: 16, 3: 24}
def park_units():
    L = []
    for n in (2, 3, 0, 1):
        for k in range(4):
            tr = vTR + 2 * (k & 1); src = 8 * n + 2 * k
            L += [f"v_accvgpr_read_b32 v{tr}, a{src}", f"v_accvgpr_read_b32 v{tr+1}, a{src+1}", f"v_cvt_pk_bf16_f32 v{vPK+k}, v{tr}, v{tr+1}"]
        L += [f"v_accvgpr_write_b32 a{PARK[n]+k}, v{vPK+k}" for k in range(4)]
    return L
def parked_stores():
    L = []
    for n in range(4):
        L += [f"s_add_u32 s{sT+7}, s{sST}, {n * 8192}", (f"buffer_store_dwordx4 a[{PARK[n]}:{PARK[n]+3}], v{vL16}, s[{RWS}:{RWS+3}], s{sT+7} offen sc1", "kv")]
    return L

def p1_main_c(e, T, bg):
    fills = [[[] for _ in range(64)] for _ in range(16)]
    at = lambda G: fills[G >> 6][G & 63]
    B = lambda m: 128 * m + 111
    Bp = lambda m: 128 * m + 15
    def put(L, G0, G1):
        st = (G1 - G0) // len(L); assert st >= 2, (G0, G1, len(L))
        for k, ((su, d), tag) in enumerate(L):
            for x in reversed(su): at(G0 + st * k - 1).append(x)
            at(G0 + st * k).append((d, tag))
    Wd = lambda s_: [(p1_wdma(s_, u), f"w{s_}") for u in range(4)]
    Cd = lambda j: [(p1_cdma(j, q), f"c{j}") for q in range(8)]
    xl = [(([], f"buffer_load_dwordx2 v[{40+2*k}:{41+2*k}], v36, s[{R0}:{R0+3}], s89 offen offset:{256*k}"), "x") for k in range(5)]
    bl = [(([], f"buffer_load_dwordx2 v[{114+2*ft}:{115+2*ft}], v151, s[{R3}:{R3+3}], s90 offen offset:{32*ft}"), "b1") for ft in range(4)]
    def tch(k):
        su = [grp([f"s_mov_b32 s{R3}, s{pW1}", f"s_and_b32 s{R3+1}, s{pW1+1}, 0xffff", f"s_mov_b32 s{R3+2}, {640*3456}", f"s_mov_b32 s{R3+3}, 0x20000"])] if k == 0 else [f"s_add_u32 s94, s94, {4*3456}"]
        return [(([] if k == 0 else [f"s_add_u32 s93, s93, {4*8192}"], f"buffer_load_dword v149, v140, s[84:87], s93 offen"), "tc"), ((su, f"buffer_load_dword v150, v145, s[{R3}:{R3+3}], s94 offen"), "tc")]
    xst = [(([], f"buffer_store_dwordx4 v[{128+4*k}:{131+4*k}], v126, s[{RWS}:{RWS+3}], s{sXS+k} offen sc1"), "xs") for k in range(3)]
    PXL = f"buffer_load_dword v122, v127, s[{RWS}:{RWS+3}], s{sT+5} offen sc1"
    pxs = [(([grp([f"s_mov_b32 s{sT+5}, {WS_END}", f"s_cmp_eq_u32 s{sW}, 0", f"s_cselect_b32 s{sT+5}, {FXS}, s{sT+5}"]) if W0 else f"s_mov_b32 s{sT+5}, {FXS}"], PXL), "pa")]
    Q = lambda k: [(d, f"q{k}") for d in qh_dmas(k, True)]
    put(PRO2()[OPT.get("np2", 28) - 12:] + Wd(3), 2, 14)
    put(Wd(4) + Wd(5) + Cd(2) + xl + bl, Bp(0) + 2, B(0) - 1)
    put(Wd(6) + Wd(7), B(0) + 2, Bp(1) - 1)
    put(Cd(3) + tch(0) + tch(1), Bp(1) + 2, B(1) - 30)
    put(Wd(8) + Wd(9), B(1) + 2, Bp(2) - 1)
    put(Cd(4) + tch(2) + tch(3), Bp(2) + 2, B(2) - 30)
    put(tch(4), B(2) + 2, B(2) + 10)
    put(Cd(5) + xst, Bp(3) + 2, B(3) - 40)
    put(Wd(10) + Wd(11), B(3) + 2, Bp(4) - 1)
    put([(([], flag_store(sQ + 2)), "fl")] + Wd(12) + Wd(13) + Cd(6), Bp(4) + 2, B(4) - 10)
    put(Wd(14) + Wd(15), B(4) + 2, Bp(5) - 1)
    put(Cd(7), Bp(5) + 2, B(5) - 50)
    put(pxs, B(5) - 30, B(5) - 28)
    put(Q(0) + Q(1), Bp(6) + 3, B(6) - 20)
    put(Q(2) + Q(3), Bp(7) + 2, Bp(7) + 44)
    for m in range(8):
        for i in range(8):
            m2, i2 = divmod(8 * m + i + 1, 8)
            if m2 < 8:
                for k, x in enumerate(p1_wread(16 * m2 + i2) + p1_wread(16 * m2 + 8 + i2)): at(128 * m + 16 * i + 2 * k).append(x)
        if m < 7:
            for j in range(8):
                for z in range(2): at(128 * m + 112 + 2 * j + z).append(p1_cread(2 * m + 2 + (z ^ (j & 1)), j))
            at(B(m)).append(bar([f"w{2*m+2}", f"w{2*m+3}", f"c{m+1}"]))
        if m == 6: at(Bp(m)).append(async_check(f"L_sa{T}", 122, PXL, sTAGW))
        at(Bp(m)).append(bar(["xs"] if m == 4 else []))
    f = fills[15]
    f[47].append(bar(["q0", "q1"]))
    R_ = [qh_xread(z, j) for j in range(4) for z in range(2)] + [x for n in range(2) for z in range(2) for x in qh_wread(z, n, n)]
    assert QC
    for k, x in enumerate(bias_init()): fills[8 + (k >> 4)][20 + 2 * (k & 15)].append(x)
    place_list(LATE.l, fills, 0, 0, 64, (2, 0))
    lb = Bg(); lb.push(ln_ops())
    for ks in range(2, 5): lb.place(fills[ks], 8 if ks == 2 else 0, 64)
    lb.place(fills[5], 0, 46); assert not lb.q, len(lb.q)
    for k in range(5): at(B(2) + 18 + 2 * k).append(f"ds_write_b64 v76, v[{40+2*k}:{41+2*k}] offset:{k*2304}")
    for k in range(3): at(Bp(3) + 10 + 2 * k).append(f"ds_read_b128 v[{128+4*k}:{131+4*k}], v77 offset:{4608*k}")
    qs = [f"s_mov_b32 s{R0}, s{pWQ}", f"s_and_b32 s{R0+1}, s{pWQ+1}, 0xffff", f"s_mov_b32 s{R0+2}, {640*8192}", f"s_mov_b32 s{R0+3}, 0x20000",
          f"s_sub_u32 s{R1}, s{pW1}, 2048", f"s_subb_u32 s{R1+1}, s{pW1+1}, 0", f"s_and_b32 s{R1+1}, s{R1+1}, 0xffff",
          f"s_cmp_lt_u32 s{sU}, 27", f"s_cselect_b32 s{R1+2}, {640*3456 + 2048}, 0", f"s_mov_b32 s{R1+3}, 0x20000",
          f"s_lshl_b32 s{sM0a}, s{sW}, 12", f"s_mul_i32 s{sM0b}, s{sW}, 3072", f"s_add_u32 s{sM0b}, s{sM0b}, {WB}"]
    fills[12][2].append(grp(qs[:4])); fills[12][6].append(grp(qs[4:10])); fills[12][10].append(grp(qs[10:]))
    bg.push([x for u in p1_units() for x in u])
    bg.place(fills[14], 60, 64); bg.place(fills[15], 0, 64)
    allm = []
    for m in range(8):
        for i in range(8):
            for j in range(8):
                for z in range(2):
                    sp = z ^ (j & 1); d = p1_acc(T, i, j); w = vWWIN + 8 * (i & 1) + 4 * sp; c = vCB[sp] + 4 * j
                    A, B_ = (w, c) if T == "K" else (c, w)
                    allm.append(f"{MF} a[{d}:{d+3}], v[{A}:{A+3}], v[{B_}:{B_+3}], " + ("0" if (m == 0 and z == 0) else f"a[{d}:{d+3}]"))
    for j in range(8):
        f[48 + 2 * j + (j & 1)].append(qh_xread(j >> 2, j & 3)); f[49 + 2 * j - (j & 1)].append(R_[8 + j])
    for sidx in range(16):
        run_gaps(e, allm[64 * sidx:64 * sidx + 64], fills[sidx], allm[64 * sidx + 64] if sidx < 15 else None)

def p1_main(e, T, bg):
    if PC: return p1_main_c(e, T, bg)
    fills = [[[] for _ in range(64)] for _ in range(16)]
    LNE = OPT.get("lne", 6)
    def pos(ep):
        p = [(ep - 1, g) for g in (50, 54, 58, 62)] + [(ep, g) for g in (range(2, 47, OPT.get("sp0", 2)) if ep == 0 else range(2, 47, 3 if ep < 7 else 4) if ep < 15 else range(2, 30, 3))]
        return [x for x in p if 0 <= x[0] < 16]
    for ep in range(0, 16):
        L = []
        cj = ({0: 2, 1: 3, 3: 4, 7: 5, 9: 6, 11: 7} if OPT.get("cs", 0) == 0 else {1: 2, 2: 3, 4: 4, 7: 5, 9: 6, 11: 7} if OPT["cs"] == 1 else {0: 2, 2: 3, 4: 4, 7: 5, 9: 6, 11: 7}).get(ep)
        Lc = [(p1_cdma(cj, q), f"c{cj}") for q in range(8)] if cj else []
        Lw = [(p1_wdma(ep + 3, u), f"w{ep+3}") for u in range(4)] if ep + 3 < 16 else []
        if ep == 0: L += PRO2()[OPT.get("np2", 28) - 12:]
        L += Lw + Lc if ep < 5 else Lc + Lw
        if ep == OPT.get("xe", 0):
            L += [(([], f"buffer_load_dwordx2 v[{40+2*k}:{41+2*k}], v36, s[{R0}:{R0+3}], s89 offen offset:{256*k}{NT('xnt')}"), "x") for k in range(5)]
        if ep == OPT.get("be", 2):
            L += [(([], f"buffer_load_dwordx2 v[{114+2*ft}:{115+2*ft}], v151, s[{R3}:{R3+3}], s90 offen offset:{32*ft}{NT('xnt')}"), "b1") for ft in range(4)]
        if OPT.get("tsp") and OPT.get("te", 2) <= ep < OPT.get("te", 2) + 5 * OPT["tsp"] and (ep - OPT.get("te", 2)) % OPT["tsp"] == 0:
            su = [grp([f"s_mov_b32 s{R3}, s{pW1}", f"s_and_b32 s{R3+1}, s{pW1+1}, 0xffff", f"s_mov_b32 s{R3+2}, {640*3456}", f"s_mov_b32 s{R3+3}, 0x20000"])] if ep == OPT.get("te", 2) else [f"s_add_u32 s94, s94, {4*3456}"]
            L += [(([] if ep == OPT.get("te", 2) else [f"s_add_u32 s93, s93, {4*8192}"], f"buffer_load_dword v149, v140, s[84:87], s93 offen"), "tc"),
                  ((su, f"buffer_load_dword v150, v145, s[{R3}:{R3+3}], s94 offen"), "tc")]
        if ep == OPT.get("ce", 99):
            code_touch.n += 1
            ct = code_touch("L_qhH", "L_code_end", 7, 154, "v155")
            L += [(([grp_all(ct[:-1])], ct[-1]), "tc")]
        if ep == OPT.get("te", 2) and not OPT.get("tsp") and not OPT.get("tcon"):
            L += [(([], f"buffer_load_dword v149, v140, s[84:87], s93 offen{NT('tnt')}"), "tc"),
                  (([grp([f"s_mov_b32 s84, s{pW1}", f"s_and_b32 s85, s{pW1+1}, 0xffff", f"s_mov_b32 s86, {640*3456}", "s_mov_b32 s87, 0x20000"])], f"buffer_load_dword v150, v145, s[84:87], s94 offen{NT('tnt')}"), "tc")]
        if ep == LNE: L += [(([], f"buffer_store_dwordx4 v[{128+4*k}:{131+4*k}], v126, s[{RWS}:{RWS+3}], s{sXS+k} offen sc1"), "xs") for k in range(3)]
        if ep == LNE + 2: L += [(([], flag_store(sQ + 2)), "fl")]
        if ep == 11: L += [(([grp([f"s_mov_b32 s{sT+5}, {WS_END}", f"s_cmp_eq_u32 s{sW}, 0", f"s_cselect_b32 s{sT+5}, {FXS}, s{sT+5}"]) if W0 else f"s_mov_b32 s{sT+5}, {FXS}"], f"buffer_load_dword v122, v127, s[{RWS}:{RWS+3}], s{sT+5} offen sc1"), "pa")]
        if ep == 13: L += [(d, "q0") for d in qh_dmas(0, True)]
        if ep == 14: L += [(d, "q1") for d in qh_dmas(1, True)]
        if ep == 15: L += [(d, "q2") for d in qh_dmas(2, True)] + [(d, "q3") for d in qh_dmas(3, True)]
        P = pos(ep); assert len(L) <= len(P)
        for (d, tag), (ks, g) in zip(L, P): put_dma(fills[ks], g, d, tag)
    for sidx in range(16):
        f = fills[sidx]
        for i in range(8):
            n = 8 * sidx + i + 2
            if n < 128:
                a, b = p1_wread(n); f[8 * i].append(a); f[8 * i + 1].append(b)
        if sidx < 15:
            for j in range(8): f[3 + 4 * j].append(p1_cread(sidx + 1, j))
            tags = [f"w{sidx+1}", f"c{(sidx+2)>>1}"]
            if sidx == LNE + 1: tags.append("xs")
            if sidx == 12:
                f[47].append(async_check(f"L_sa{T}", 122, f"buffer_load_dword v122, v127, s[{RWS}:{RWS+3}], s{sT+5} offen sc1", sTAGW))
            f[47].append(bar(tags))
        else:
            f[47].append(bar(["q0", "q1"]))
            if QC:
                R_ = [qh_xread(z, j) for j in range(4) for z in range(2)] + [x for n in range(2) for z in range(2) for x in qh_wread(z, n, n)]
                for k, x in enumerate(R_): f[48 + k].append(x)
            else:
                for j in range(4): f[49 + 2 * j].append(qh_xread(0, j))
                for n in range(3):
                    a, b = qh_wread(0, n, n); f[56 + 2 * n].append(a); f[57 + 2 * n].append(b)
    for k, x in enumerate(bias_init()): fills[8 + (k >> 4)][32 + (k & 15) + ((k & 15) == 15)].append(x)
    if OPT.get("late"): place_list(LATE.l, fills, 0, 0, 64, (2, 0))
    lb = Bg(); lb.push(ln_ops())
    LNK = OPT.get("lnk", 4)
    for ks in range(LNE - LNK, LNE): lb.place(fills[ks], 0, 64 if ks < LNE - 1 else 20, maxv=1 if LNK >= 4 else 2)
    assert not lb.q and LNE >= 6, len(lb.q)
    for k in range(5): fills[LNE - 1][22 + 4 * k].append(f"ds_write_b64 v76, v[{40+2*k}:{41+2*k}] offset:{k*2304}")
    for k in range(3): fills[LNE - 1][51 + 4 * k].append(f"ds_read_b128 v[{128+4*k}:{131+4*k}], v77 offset:{4608*k}")
    qs = [f"s_mov_b32 s{R0}, s{pWQ}", f"s_and_b32 s{R0+1}, s{pWQ+1}, 0xffff", f"s_mov_b32 s{R0+2}, {640*8192}", f"s_mov_b32 s{R0+3}, 0x20000",
          f"s_sub_u32 s{R1}, s{pW1}, 2048", f"s_subb_u32 s{R1+1}, s{pW1+1}, 0", f"s_and_b32 s{R1+1}, s{R1+1}, 0xffff",
          f"s_cmp_lt_u32 s{sU}, 27", f"s_cselect_b32 s{R1+2}, {640*3456 + 2048}, 0", f"s_mov_b32 s{R1+3}, 0x20000",
          f"s_lshl_b32 s{sM0a}, s{sW}, 12", f"s_mul_i32 s{sM0b}, s{sW}, 3072", f"s_add_u32 s{sM0b}, s{sM0b}, {WB}"]
    fills[12][4].append(grp(qs[:4])); fills[12][10].append(grp(qs[4:10])); fills[12][14].append(grp(qs[10:]))
    if OPT.get("contig"):
        U = p1_units()
        bg.push(U[0] + U[1]); bg.place(fills[15], 24, 46, maxv=2); assert not bg.q
        bg.push(U[2] + U[3]); bg.place(fills[15], 48, 64, maxv=2)
        bg.push([x for u in U[4:] for x in u])
    elif T == "K" or OPT.get("norole"):
        bg.push([x for u in p1_units() for x in u])
        bg.place(fills[15], 24, 46, maxv=2); bg.place(fills[15], 48, 64, maxv=2)
    else:
        bg.push(park_units())
        bg.place(fills[15], 19, 46, maxv=2); bg.place(fills[15], 48, 55, maxv=2)
        assert not bg.q
        bg.push(parked_stores() + [x for u in p1_units()[4:] for x in u])
    mfs = []
    for sidx in range(16):
        mf = []
        for i in range(8):
            for j in range(8):
                d = p1_acc(T, i, j); w = vWWIN + 4 * ((8 * sidx + i) & 3); c = vCB[sidx & 1] + 4 * j
                A, B = (w, c) if T == "K" else (c, w)
                mf.append(f"{MF} a[{d}:{d+3}], v[{A}:{A+3}], v[{B}:{B+3}], " + ("0" if sidx == 0 else f"a[{d}:{d+3}]"))
        mfs.append(mf)
    for sidx in range(16):
        run_gaps(e, mfs[sidx], fills[sidx], mfs[sidx + 1][0] if sidx < 15 else None)

vKVD = vXR
sKo, sVo, sMK, sMV = 76, 77, 78, 79
def kv_dma(kind, static_pair=None):
    so, mb, rs = (sKo, sMK, R2) if kind == "K" else (sVo, sMV, R3)
    L = []
    for k in range(4):
        su = []
        if k == 0:
            su = [f"s_add_u32 m0, s{sT+3}, s{mb}", f"s_and_b32 s{sT+3}, s{so}, 0xc000"]
        L.append((su, f"buffer_load_dwordx4 v{vKVD}, s[{rs}:{rs+3}], s{so} offen offset:{k*1024} {OPT.get('kvld', '')} lds".replace("  ", " ")))
    return L, f"s_add_u32 s{so}, s{so}, 16384"

def qh_main(e, T, hasH, bg):
    NI = 12 if hasH else 8; NG = 4 * NI; LA = 3
    NA = OPT.get("na", 7); BKV = OPT.get("bkv", 16); RATE = OPT.get("rate", 2) if hasH else 2
    fills = [[[] for _ in range(NG)] for _ in range(20)]
    bp = NG - 4 * LA - 1
    st = 3 if hasH else 2
    def pos(ep):
        p = [(ep - 1, g) for g in range(bp + 2, NG, st)] + [(ep, g) for g in range(5 if ep == 0 else 2, bp, st)]
        return [x for x in p if 0 <= x[0] < 20]
    pend = []; lastdma = None
    if QC:
        at = lambda G: fills[G // NG][G % NG]
        XD_ = OPT.get("xd", 0); xa = lambda st_, j: 32 + 16 * ((st_ - 4) % 6) + 4 * j
        bG = lambda m: 2 * NG * m + 8 * (NI - 2) - 1
        for m in range(8):
            a, b = qh_dmas(2 * m + 4, hasH), qh_dmas(2 * m + 5, hasH)
            if XD_:
                for st_, q in ((2 * m + 4, a), (2 * m + 5, b)):
                    for j in range(4):
                        q[j] = ([x for x in q[j][0] if "m0" not in x], q[j][1].replace("buffer_load_dwordx4 ", f"buffer_load_dwordx4 a[{xa(st_, j)}:{xa(st_, j)+3}], ").replace(" lds", ""))
            L = a[4:] + b[4:] + a[:4] + b[:4]
            G0 = bG(m - 1) + 3 if m else 2
            stp = (bG(m) - 2 - G0) // len(L)
            for k, (su, d) in enumerate(L):
                G = G0 + stp * k
                if XD_ and k >= len(L) - 8: G = bG(m) - 1 - 3 * (len(L) - k)
                for x in reversed(su): at(G - 1).append(x)
                at(G).append((d, f"q{m+2}p" if " lds" in d else None))
        for m in range(10):
            for i in range(NI):
                m2, i2 = divmod(NI * m + i + 2, NI)
                if m2 < 10:
                    for k, x in enumerate(qh_wread(2 * m2, i2, NI * m + i + 2) + qh_wread(2 * m2 + 1, i2, NI * m + i + 2)): at(2 * NG * m + 8 * i + 2 * k).append(x)
            if m < 9:
                for j in range(4 if (m == 0 or not XD_) else 0):
                    for z in range(2): at(2 * NG * m + 8 * (NI - 1) + 2 * j + z).append(qh_xread(2 * m + 2 + (z ^ (j & 1)), j))
                at(bG(m)).append(bar((["q2", "q3"] if m == 0 else [f"q{m+1}p"]) + (["kv"] if m == OPT.get("kvb", 8) else [])))
        at(bG(OPT.get("kvb", 8)) + 2).append((flag_store(sQ), "fl"))
    for ep in range(0, 0 if QC else 16):
        if OPT.get("norole"):
            a = qh_dmas(ep + 4, hasH)
            pend += [(d, f"q{ep+4}x") for d in a[:4]] + [(d, f"q{ep+4}") for d in a[4:]]
        elif (ep < NA) == (T == "V"):
            a, b = qh_dmas(ep + 4, hasH), qh_dmas(ep + 4, hasH, 1 if T == "K" else -1)
            pend += [(d, f"q{ep+4}x") for d in a[:4] + b[:4]] + [(d, f"q{ep+4}") for d in a[4:] + b[4:]]
        for ks, g in pos(ep):
            if pend:
                d, tag = pend.pop(0); put_dma(fills[ks], g, d, tag); lastdma = (ks, g)
    assert not pend
    for sidx in range(0 if QC else 20):
        f = fills[sidx]
        for i in range(NI):
            s2, i2 = divmod(NI * sidx + i + LA, NI)
            if s2 < 20:
                a, b = qh_wread(s2, i2, NI * sidx + i + LA); f[4 * i].append(a); f[4 * i + 1].append(b)
        if sidx < 19:
            for j in range(4): f[3 + 4 * j].append(qh_xread(sidx + 1, j))
            tags = [f"q{sidx+1}", f"q{sidx+2}x"]
            if sidx + 2 <= 3: tags.append(f"q{sidx+2}")
            if sidx == BKV: tags.append("kv")
            f[bp].append(bar(tags))
    if not QC: fills[BKV][bp + 2].append((flag_store(sQ), "fl"))
    assert BKV == 17
    qs = [f"s_mul_i32 s{sT+4}, s{sH}, {HS}", f"s_add_u32 s{sT+5}, s{sT+4}, {KF}", f"s_add_u32 s{R2}, s{pWS}, s{sT+5}", f"s_addc_u32 s{R2+1}, s{pWS+1}, 0",
          f"s_and_b32 s{R2+1}, s{R2+1}, 0xffff", f"s_sub_u32 s{R2+2}, 16, s{sIDX}", f"s_lshl_b32 s{R2+2}, s{R2+2}, 15", f"s_mov_b32 s{R2+3}, 0x20000",
          f"s_add_u32 s{sT+5}, s{sT+4}, {VF}", f"s_add_u32 s{R3}, s{pWS}, s{sT+5}", f"s_addc_u32 s{R3+1}, s{pWS+1}, 0",
          f"s_and_b32 s{R3+1}, s{R3+1}, 0xffff", f"s_mov_b32 s{R3+2}, s{R2+2}", f"s_mov_b32 s{R3+3}, 0x20000",
          f"s_mov_b32 s{sKo}, 0", f"s_mov_b32 s{sVo}, 0", f"s_lshl_b32 s{sMK}, s{sW}, 12", f"s_add_u32 s{sMV}, s{sMK}, 0x10000",
          f"s_mul_i32 s{sPK}, s{sH}, {8*FS}", f"s_add_u32 s{sPK}, s{sPK}, {FKV}"]
    fills[16][2].append(grp(qs[:8])); fills[16][6].append(grp(qs[8:14])); fills[16][10].append(grp(qs[14:]))
    fills[19][2].append(f"v_lshlrev_b32 v{vTR}, 3, v{vL16}"); fills[19][6].append(f"v_and_b32 v{vTR}, {7*FS}, v{vTR}")
    if OPT.get("pk19") and hasH: fills[19][OPT["pk19"]].append(PKL)
    hs = [f"s_mul_i32 s{sHA}, s{sIDX}, {54*8192}", f"s_lshl_b32 s{sT+5}, s{sU}, 14", f"s_add_u32 s{sT+5}, s{sT+5}, {HF}", f"s_lshl_b32 s{sT+4}, s{sW}, 10",
          f"s_add_u32 s{sT+5}, s{sT+5}, s{sT+4}", f"s_add_u32 s{sHA}, s{sHA}, s{sT+5}", f"s_sub_u32 s{sHB}, 15, s{sIDX}", f"s_mul_i32 s{sHB}, s{sHB}, {54*8192}",
          f"s_add_u32 s{sHB}, s{sHB}, s{sT+5}"] if hasH else [f"s_mov_b32 s{sHA}, {WS_END}", f"s_mov_b32 s{sHB}, {WS_END}"]
    fills[16][14].append(grp(hs))
    if OPT.get("cpf2") and hasH:
        code_touch.n += 1
        for k, x in enumerate(code_touch("L_attn", "L_p5", 3, vPK, f"v{vPK+1}")): fills[17][2 + 2 * k].append(x)
    if T == "K" or OPT.get("norole"): k0, g0 = 0, 0
    else: k0, g0 = lastdma[0], lastdma[1] + 1
    for sidx in range(k0, BKV):
        bg.place(fills[sidx], g0 if sidx == k0 else 0, NG, maxv=RATE, step=OPT.get("bstep", 1) if (hasH and sidx >= OPT.get("bfast", 0)) else 1)
    assert not bg.q, len(bg.q)
    if hasH:
        lastbg = max((ks, g) for ks in range(20) for g in range(NG) if any(isinstance(x, tuple) and x[0] == "BG" for x in fills[ks][g]))
        assert lastbg < (BKV - 1, NG - 6) and lastbg < (2 * OPT.get("kvb", 8) + 1, 10), lastbg
        place_early(fills, BKV - 1, NG - 6, NG)
    mfs = []
    for sidx in range(20):
        mf = []
        for i in range(NI):
            w = ((NI * sidx + i) & 3) * 4
            for j in range(4):
                d = qacc(i, j) if i < 8 else hacc(i - 8, j)
                x = XNB[sidx & 1] + 4 * j
                if sidx: c = f"v[{d}:{d+3}]"
                elif i < 8: c = "0"
                else: c = v(hacc(i - 8, 3), 4)
                mf.append(f"{MF} v[{d}:{d+3}], a[{w}:{w+3}], v[{x}:{x+3}], {c}")
        mfs.append(mf)
    if QC:
        allm = []
        for m in range(10):
            for i in range(NI):
                for j in range(4):
                    for z in range(2):
                        sp = z ^ (j & 1); w = ((NI * m + i) % 3) * 8 + 4 * sp; x = XNB[sp] + 4 * j
                        d = qacc(i, j) if i < 8 else hacc(i - 8, j)
                        c = v(d, 4) if (m or z) else "0" if i < 8 else v(hacc(i - 8, 3), 4)
                        xo = ac(xa(2 * m + sp, j), 4) if (XD_ and m >= 2) else v(x, 4)
                        allm.append(f"{MF} v[{d}:{d+3}], a[{w}:{w+3}], {xo}, {c}")
        mfs = [allm[k * NG:(k + 1) * NG] for k in range(20)]
    for sidx in range(20):
        run_gaps(e, mfs[sidx], fills[sidx], mfs[sidx + 1][0] if sidx < 19 else None)
    e.vm = e.vm[-1:] if (OPT.get("pk19") and hasH) else []
sPK = 83; sHA, sHB = 74, 75
PKL = f"buffer_load_dword v{vTR+1}, v{vTR}, s[{RWS}:{RWS+3}], s{sPK} offen sc1"
def kv_prologue_list():
    L = []
    for kind, tag in (("K", "k0"), ("V", "v0"), ("K", "k1"), ("K", "k2"), ("V", "v1"), ("K", "k3")):
        D, inc = kv_dma(kind)
        for k, (su, d) in enumerate(D):
            L.append((list(reversed(su)), d, tag, [inc] if k == 3 else []))
    return L
def sprinkle(e, ops, dm, every):
    for k, x in enumerate(ops):
        if dm and k % every == 0:
            for y in dm[0][0]: e(y)
        e(x)
        if dm and k % every == 0:
            su, d, tag, post = dm.pop(0); e(d, tag=tag)
            for y in post: e(y)
def flush_dma(e, dm):
    for su, d, tag, post in dm:
        for y in su: e(y)
        if su: e("s_nop 0")
        e(d, tag=tag)
        for y in post: e(y)
    dm.clear()

def check_drain_order(e):
    written = set()
    for i in e.l:
        if i.kind in ("dsr", "vml"): written |= {r for r in i.wr if r[0] == "a"}
        if i.mn == "v_accvgpr_read_b32" and (i.rd & written): raise AssertionError("drain order " + i.t)
        if i.mn == "v_accvgpr_write_b32": written |= i.wr

def q_pack(e):
    for n in range(16):
        for k in range(4):
            e(f"v_cvt_pk_bf16_f32 v{QACC + 4*n + k}, v{QACC + 8*n + 2*k}, v{QACC + 8*n + 2*k + 1}")

HPK = 192
def gelu(e, lab):
    a = -2.0 * math.sqrt(2.0 / math.pi) * math.log2(math.e)
    k1 = a / CS; k2 = a * 0.044715 / CS ** 3
    GP = OPT.get("gp", 3); dm = []
    e(f"s_mov_b32 s56, {f32(k2)}\ns_mov_b32 s57, {f32(k2)}\ns_mov_b32 s60, {f32(CS)}\ns_mov_b32 s61, {f32(CS)}")
    e(f"v_mov_b32 v160, {f32(k1)}\nv_mov_b32 v161, {f32(k1)}\nv_mov_b32 v162, {f32(CS)}\nv_mov_b32 v163, {f32(CS)}")
    for n in range(8):
        if n == max(0, GP - 2) and not OPT.get("pk19"): e(PKL)
        if n == GP: async_check(lab, vTR + 1, PKL)(e); dm = kv_prologue_list()
        b = HACC + 8 * n; t = 164 + 8 * (n & 1); L = []
        L += [f"v_pk_mul_f32 v[{t+2*k}:{t+2*k+1}], v[{b+2*k}:{b+2*k+1}], v[{b+2*k}:{b+2*k+1}]" for k in range(4)]
        L += [f"v_pk_fma_f32 v[{t+2*k}:{t+2*k+1}], v[{t+2*k}:{t+2*k+1}], s[56:57], v[160:161]" for k in range(4)]
        L += [f"v_pk_mul_f32 v[{t+2*k}:{t+2*k+1}], v[{t+2*k}:{t+2*k+1}], v[{b+2*k}:{b+2*k+1}]" for k in range(4)]
        L += [f"v_exp_f32 v{t+k}, v{t+k}" for k in range(8)]
        L += [f"v_pk_fma_f32 v[{t+2*k}:{t+2*k+1}], v[{t+2*k}:{t+2*k+1}], s[60:61], v[162:163]" for k in range(4)]
        L += [f"v_rcp_f32 v{t+k}, v{t+k}" for k in range(8)]
        L += [f"v_pk_mul_f32 v[{t+2*k}:{t+2*k+1}], v[{t+2*k}:{t+2*k+1}], v[{b+2*k}:{b+2*k+1}]" for k in range(4)]
        L += [f"v_cvt_pk_bf16_f32 v{t+k}, v{t+2*k}, v{t+2*k+1}" for k in range(4)]
        L += [f"v_accvgpr_write_b32 a{HPK+4*n+k}, v{t+k}" for k in range(4)]
        sprinkle(e, L, dm, 11)
    return dm
def h_store(n):
    j, up = n >> 1, n & 1
    return ([f"s_add_u32 s{sT+7}, s{sHA + (j >> 1)}, {(j & 1) * 4096 + up * 8192}"],
            f"buffer_store_dwordx4 a[{HPK+4*n}:{HPK+4*n+3}], v{vL16}, s[{RWS}:{RWS+3}], s{sT+7} offen sc1")

def Qr(j, t): return 96 + (4 * j + t) * 4
QP = 224
def Sr(b, j, kt=0): return 160 + 32 * b + 8 * j + 4 * kt
def Pr(b, j): return 224 + 16 * b + 4 * j
def NEGM(j): return 32 + 4 * j
TRI = 48
def CT(k, kt): return (64, 52)[k] + 4 * kt
vMWo, vMRo, vMWs, vMRs = 60, 61, 62, 63
TT = 72
def LT(b, j): return 76 + 4 * b + j
def LL(j): return 84 + j
vCHK = 88
def Or(j, dt): return 32 * j + 4 * dt
FK, FV = 128, 160
vKR, vVR = 2, 3
vPN, vQW, vQR, vNW, vNR = 6, 8, 9, 12, 13
sTHR, sCNT, sRET, sCA, sCB, sP8K = 90, 91, 92, 94, 95, 89
BIG = f32(-1e30)
SEL = {k: r for k, r in zip([(m, kt) for m in range(4) for kt in range(2)], (10, 12, 14, 16, 20, 22, 24, 32))}

def attn_setup(e0, dm):
    L = []
    class C:
        def __call__(self, t, tag=None): L.extend(x.strip() for x in t.strip().split("\n") if x.strip())
    _attn_setup(C())
    G = []
    for x in L:
        if G and (x.startswith(("s_addc", "s_subb", "s_cselect")) or G[-1].split("\n")[-1].startswith("s_nop")): G[-1] += "\n" + x
        else: G.append(x)
    sprinkle(e0, G, dm, 8); flush_dma(e0, dm)
def _attn_setup(e):
    e(f"""
    v_lshrrev_b32 v89, 4, v{vL16}
    v_and_b32 v90, 15, v89
    v_lshrrev_b32 v89, 4, v89
    v_lshlrev_b32 v89, 2, v89
    v_sub_u32 v89, v89, v90
    v_mov_b32 v90, {BIG}
    v_mov_b32 v91, 0
    v_mov_b32 v{vKR}, v{vL16}
    v_add_u32 v{vVR}, 0x18000, v{vL16}
    """)
    for r in range(4):
        e(f"v_cmp_ge_i32 vcc, {-r}, v89\ns_nop 1\nv_cndmask_b32 v{TRI+r}, v90, v91, vcc")
    e(f"""
    s_lshl_b32 s{sT+2}, s{sW}, 13
    s_add_u32 s{sT+2}, s{sT+2}, 0x20000
    v_add_u32 v{vQW}, s{sT+2}, v{vL16}
    v_xor_b32 v{vQR}, 0x2000, v{vQW}
    s_lshl_b32 s{sT+2}, s{sW}, 9
    s_add_u32 s{sT+2}, s{sT+2}, {112*1024}
    v_lshrrev_b32 v{vNW}, 1, v{vL16}
    v_add_u32 v{vNW}, s{sT+2}, v{vNW}
    v_xor_b32 v{vNR}, 0x200, v{vNW}
    s_lshr_b32 s{sT+2}, s{sW}, 1
    s_mul_i32 s{sT+2}, s{sT+2}, {92*1024}
    s_add_u32 s{sT+2}, s{sT+2}, {36*1024}
    s_lshl_b32 s{sT+4}, s{sP8K}, 1
    s_add_u32 s{sT+5}, s{sT+2}, s{sT+4}
    v_add_u32 v{vMWo}, s{sT+5}, v{vL16}
    s_xor_b32 s{sT+4}, s{sT+4}, 0x4000
    s_add_u32 s{sT+5}, s{sT+2}, s{sT+4}
    v_add_u32 v{vMRo}, s{sT+5}, v{vL16}
    s_lshl_b32 s{sT+2}, s{sW}, 10
    s_add_u32 s{sT+2}, s{sT+2}, {68*1024}
    v_add_u32 v{vMWs}, s{sT+2}, v{vL16}
    v_xor_b32 v{vMRs}, 0x400, v{vMWs}
    """)

def fread(base, areg, off, f): return f"ds_read_b128 a[{base+4*f}:{base+4*f+3}], v{areg} offset:{off + f * 1024}"
def kfread(off, r): return f"ds_read_b128 a[{FK+4*r}:{FK+4*r+3}], v{vKR} offset:{off + (2 * (r & 3) + (r >> 2)) * 1024}"
def kread(n, f): return kfread((n & 3) * 8192, f)

def xreduce(e, op, regs, tmps):
    for sw in ("v_permlane16_swap_b32", "v_permlane32_swap_b32"):
        for r, t in zip(regs, tmps): e(f"v_mov_b32 v{t}, v{r}")
        e("s_nop 1")
        for r, t in zip(regs, tmps): e(f"{sw} v{r}, v{t}")
        e("s_nop 0")
        for r, t in zip(regs, tmps): e(f"{op} v{r}, v{r}, v{t}")

def max8(e, d, sreg):
    e(f"v_max3_f32 v{d}, v{sreg}, v{sreg+1}, v{sreg+2}\nv_max3_f32 v{d}, v{d}, v{sreg+3}, v{sreg+4}\nv_max3_f32 v{d}, v{d}, v{sreg+5}, v{sreg+6}\nv_max_f32 v{d}, v{d}, v{sreg+7}")

def sm_ops(b, J):
    L = []; k = 0
    for j in J:
        for x in range(8):
            t = TT + (k & 3); tp = TT + ((k - 1) & 3)
            fol = []
            if x == 1: fol.append(f"v_add_f32 v{LT(b, j)}, v{tp}, v{t}")
            elif x > 1: fol.append(f"v_add_f32 v{LT(b, j)}, v{LT(b, j)}, v{t}")
            if x & 1: fol.append(f"v_cvt_pk_bf16_f32 v{Pr(b, j) + (x >> 1)}, v{tp}, v{t}")
            L.append((f"v_exp_f32 v{t}, v{Sr(b, j) + x}", fol)); k += 1
    return L

FBS = {}
STUBS = []
class Blk:
    def __init__(self, name, prev, cur): self.name, self.prev, self.cur, self.first = name, prev, cur, prev is None
    def act(self, n):
        if n < 0: return {None: [], "F": [3, 2, 1, 0], "D": [3, 2, 1], "Y": [3, 2, 1, 0]}[self.prev]
        if self.cur == "D" and n in (2, 3): return [3, 2, 1]
        if self.cur == "E": return ([3, 2, 1, 0], [3, 1], [], [], [])[n]
        return [3, 2, 1, 0]
    def y(self, n): return self.prev == "Y" if n < 0 else (self.cur in "YE" or (n == 4 and self.cur == "D"))
    def masked(self, n):
        if self.cur == "D": return {0 if n < 2 else 1: n & 1}
        if self.cur == "E" and n < 2: return {2 + n: 2, n: 3}
        return {}

def attn_block(e, bk):
    nm = bk.name; E_ = bk.cur == "E"; sw = bk.prev == "D"
    canon = [(regs_of(f"a[{FK+4*f}:{FK+4*f+3}]"), None) for f in range(8)]
    e.lg = list(canon) if bk.first else canon[4:]
    nb = [0, 0]
    if sw:
        for j in range(2):
            for r in range(4): e(f"v_mov_b32 v{NEGM(j)+r}, v{vPN+j}")
    for lp in range(4):
        nq, ns, nv = lp, lp - 1, lp - 2
        JQ, JS, JV = bk.act(nq), bk.act(ns), bk.act(nv); JN = JQ
        bq, bs, bv = nq & 1, ns & 1, nv & 1
        pre = []
        msk = bk.masked(nq); first_qk = bk.first and lp == 0
        cti = {}
        for k, (j, m) in enumerate(msk.items()):
            cti[j] = k
            for kt in range(2):
                c = CT(k, kt); sel = SEL[(m, kt)]
                pre.append(f"v_mov_b32 v{c+3}, s{sel+1}" if first_qk else f"v_add_f32 v{c+3}, s{sel+1}, v{NEGM(j)}")
                pre += [f"v_fma_f32 v{c+r}, v{TRI+r}, s{sel}, v{c+3}" for r in range(4)]
        FVc = FK if (E_ and lp == 2) else FV
        mf = []; kstart = []; vstart = []
        kstart = [len(JQ) * f for f in range(8)] if JQ else []
        for kt in range(2):
            if OPT.get("nochain"): order = [(j, t, t) for t in range(4) for j in JQ]
            else: order = [(j, (3 - z if k & 1 else z), z) for k, j in enumerate(JQ) for z in range(4)]
            for j, t, z in order:
                d = Sr(bq, j, kt); f = 4 * kt + t
                c = v(d, 4) if z else v(CT(cti[j], kt), 4) if j in msk else "0" if first_qk else v(NEGM(j), 4)
                q = ac(QP + 16 * j + 4 * t, 4) if (j < 2 and bk.y(nq)) else v(Qr(j, t), 4)
                mf.append(f"{MF} v[{d}:{d+3}], a[{FK+4*f}:{FK+4*f+3}], {q}, {c}")
        fresh = lambda j: nv == 0 and (bk.first or (sw and j < 2))
        for f in range(8 if JV else 0):
            vstart.append(len(mf))
            for j in JV:
                o = Or(j, f)
                mf.append(f"{MF} a[{o}:{o+3}], a[{FVc+4*f}:{FVc+4*f+3}], v[{Pr(bv, j)}:{Pr(bv, j)+3}], " + ("0" if fresh(j) else ac(o, 4)))
        NG = len(mf)
        fill = [[] for _ in range(NG)]
        voff = lambda n: (n & 1) * 16384 if bk.y(n) else (n & 3) * 8192
        vtog = [f"v_xor_b32 v{vVR}, 0x8000, v{vVR}"] + ([f"v_add_u32 v{vVR}, s{sP8K}, v{vVR}"] if sw and lp == 1 else [])
        if JV and JQ:
            for f in range(8): fill[kstart[f] + 1].append(fread(FV, vVR, voff(nv), f))
        if E_ and lp == 1:
            for x in vtog: fill[vstart[0]].append(x)
            for f in range(8): fill[vstart[f] + 1].append(fread(FK, vVR, 0, f))
        elif E_ and lp == 2:
            for f in range(8): fill[vstart[f] + 1].append(fread(FV, vVR, 16384, f))
        elif lp == 1 or (lp == 3 and bk.cur == "Y"):
            for k, x in enumerate(vtog): fill[(vstart[1] + 1 + 8 * k) if JV else 1].append(x)
        needK = not E_ or lp == 0; late_k = []
        if needK:
            nk = lp + 1
            if lp == 3 or (lp == 1 and bk.cur == "Y"):
                fill[OPT.get("kx", 5)].append(f"v_xor_b32 v{vKR}, 0x8000, v{vKR}")
                if bk.cur == "D": fill[13].append(f"v_add_u32 v{vKR}, s{sP8K}, v{vKR}")
            koff = (nk & 1) * 16384 if bk.y(nk) else (nk & 3) * 8192
            for f in range(8):
                if JV: fill[vstart[f] + 1].append(kfread(koff, f))
                elif f < 4: fill[kstart[4] + 2 * f + 1].append(kfread(koff, f))
                else: late_k.append(kfread(koff, f))
        def needf(base, f0):
            def g(e): e.need(f"a[{base+4*f0}:{base+4*f0+15}]")
            return g
        if JQ and JV:
            fill[kstart[4] - 2].append(needf(FK, 4)); fill[vstart[0] - 2].append(needf(FV, 0))
        if JV:
            fill[vstart[4] - 2].append(needf(FVc, 4))
            if needK or (E_ and lp == 1): fill[NG - 2].append(needf(FK, 0))
            if E_ and lp == 2: fill[NG - 2].append(needf(FV, 0))
        grp_k = (bk.cur == "Y") or (not E_ and lp & 1 == 0 and not first_qk)
        grp_v = (nm == "YD" and lp == 0) or (bk.cur == "Y" and not (sw and lp == 0)) or (bk.cur in "FD" and lp & 1)
        vlast = None; gbar = vstart[0] if JV else -1
        for kind, on in (("K", grp_k), ("V", grp_v)):
            if not on: continue
            L, inc = kv_dma(kind)
            g0, span = (0, 8 * len(JQ)) if kind == "K" else ((vstart[0], 8 * len(JV)) if JV else (0, NG))
            st = span // 4
            dp = (OPT.get("dpos", 1) if st >= 8 else 1) + getattr(bk, "dsh", 0)
            if OPT.get("spread") and g0 + dp >= 5:
                fill[g0 + dp - 5 if g0 + dp - 5 != gbar else g0 + dp - 7].append(L[0][0][1]); fill[g0 + dp - 3 if g0 + dp - 3 != gbar else g0 + dp - 1].append(L[0][0][0])
            else:
                for x in reversed(L[0][0]): fill[max(0, g0 - 4)].append(x)
            for k, d in enumerate(L): fill[g0 + dp + st * k].append(d[1])
            gi = g0 + dp + 1 + st * 3
            fill[gi if gi < NG else NG - 1].append(inc if gi < NG else ("BG", inc))
            if kind == "V": vlast = g0 + dp + st * 3
        def ride(L, g0, g1, tag=None):
            st = max(2, (g1 - g0) // len(L))
            for k, x in enumerate(L):
                g = (g0 + st * k) | 1
                while any(_kind(y) in ("vml", "vms") for y in fill[g]): g += 2
                put_dma(fill, g, x, tag)
        cst = lambda a, b: [ctx_store(96, sCA, n) for n in range(a, b)]
        if bk.first and lp >= 2: ride([h_store(n) for n in range(4 * lp - 8, 4 * lp - 4)], 4, NG - 4)
        if nm == "TY" and lp >= 2: ride(cst(2 * lp - 4, 2 * lp - 2), 10, NG)
        if nm == "YD" and lp < 2: ride(cst(4 + 2 * lp, 6 + 2 * lp), 6, NG - 8)
        if nm == "TYD" and lp == 2: ride(cst(0, 4), 20, NG)
        if E_ and lp == 1: fill[3].append(PHL)
        if E_ and lp == 2: ride(p5_dmas(0), 2, 20)
        if first_qk:
            for k in range(8): fill[4 * k + 1].append(f"ds_write_b128 v{vQW}, v[{Qr(2, 0)+4*k}:{Qr(2, 0)+4*k+3}] offset:{k*1024}")
        if bk.first and lp == 1: fill[2].append(f"ds_read_b64 v[{vPN}:{vPN+1}], v{vNR}")
        if bk.first and lp == 2:
            for k in range(8): fill[kstart[k] + 2 + (len(JQ) & 1)].append(fread(QP, vQR, 0, k))
        if E_ and lp == 3:
            for k in range(8): fill[2 * k + 1].append(f"ds_write_b128 v{vMWo}, a[{Or(0, k)}:{Or(0, k)+3}] offset:{k*1024}")
        if nm in ("DF", "TY") and lp == 3: ride([([], flag_store(sQ + 1))], NG - 3, NG)
        if nm in ("DF", "TY") and lp == 0:
            ride([([], f"buffer_load_dword a192, v{vTW}, s[{R0}:{R0+3}], 0 offen"), ([], f"buffer_load_dword a193, v{vT2}, s[{R1}:{R1+3}], 0 offen")], NG - 9, NG - 1)
        if (lp & 1 or bk.cur in "YE") and not (E_ and lp == 3):
            gb = vstart[0] if JV else -1
            cnt = lambda kinds: sum(1 for g in range(gb) for x in fill[g] if _kind(x) in kinds)
            if E_: n = (8 + nb[0], nb[0], nb[1])[lp] + cnt(("vml", "vms"))
            else: n = 12 + (4 + cnt(("vms",)) if (bk.first and lp == 3) else 0)
            def mkb(n, lp=lp):
                def f(e):
                    lg = list(e.lg)
                    if OPT.get("ticks"): e("s_waitcnt lgkmcnt(0)")
                    z = (bk.first and lp == 1) or (E_ and lp == 2)
                    tick_pre(e); e(f"s_waitcnt vmcnt({n}){' lgkmcnt(0)' if z else ''}\ns_barrier"); tick_post(e)
                    e.lg = [] if z else lg
                return f
            if E_ and lp == 2: fill[gb].insert(0, async_check(f"L_h{nm}", 20, PHL, sTAGW))
            if OPT.get("spread") and gb >= 6 and not E_ and not OPT.get("ticks") and not any(_kind(x) in ("vml", "vms") for g in range(gb - 4, gb) for x in fill[g]):
                fill[gb - 4].append(f"s_waitcnt vmcnt({n})"); fill[gb].insert(0, "s_barrier")
            elif gb >= 0: fill[gb].insert(1 if (E_ and lp == 2) else 0, mkb(n))
            else: pre.insert(0, mkb(n))
        if JS:
            ops = sm_ops(bs, JS)[2:]
            W = NG - 4 if JN else min(NG - 2, 2 * len(ops))
            lastg = 0; tile_done = []
            for k, (ex, fol) in enumerate(ops):
                g = (k * W) // len(ops)
                if W >= 2 * len(ops): g &= ~1
                fill[g].append(ex)
                for x in fol: fill[g + 1].append(x)
                lastg = g + 1
                if (k + 2) % 8 == 7: tile_done.append(lastg)
            lts = [LT(bs, j) for j in JS]
            ck = []
            if len(lts) == 4: fill[tile_done[2] + 2].append(f"v_max3_f32 v{vCHK}, v{lts[0]}, v{lts[1]}, v{lts[2]}"); ck.append(f"v_max_f32 v{vCHK}, v{vCHK}, v{lts[3]}")
            elif len(lts) == 3: ck.append(f"v_max3_f32 v{vCHK}, v{lts[0]}, v{lts[1]}, v{lts[2]}")
            else: ck.append(f"v_max_f32 v{vCHK}, v{lts[0]}, v{lts[1]}")
            ck.append(f"v_cmp_lt_f32 vcc, s{sTHR}, v{vCHK}")
            gck = max(lastg, NG - 3)
            assert gck <= NG - 2
            J3 = [(j, not (sw and lp == 1 and j < 2), not (sw and lp == 0 and j < 2)) for j in JS]
            fb = f"FB{bs}_" + "".join(f"{j}{'' if a else 'n'}{'' if b else 'l'}" for j, a, b in J3)
            FBS[fb] = (bs, J3)
            site = f"L_{nm}_{lp}"
            STUBS.append((site, fb))
            for x in ck: fill[gck].append(x)
            fill[NG - 1].append(grp([f"s_cbranch_vccnz {site}_fb", f"{site}_ret:"]))
        for k, j in enumerate(JV):
            g = OPT.get("l0", 1) if k == 0 else min(NG - 5, 16 * k - 3)
            fill[g].append(f"v_mov_b32 v{LL(j)}, v{LT(bv, j)}" if fresh(j) else f"v_add_f32 v{LL(j)}, v{LL(j)}, v{LT(bv, j)}")
        head = sm_ops(bq, JN)[:2] if JN else []
        if head and not first_qk:
            fill[NG - 4].append(head[0][0]); fill[NG - 2].append(head[1][0])
            for x in head[1][1]: fill[NG - 1].append(x)
        if first_qk: e.need(f"a[{FK}:{FK+15}]")
        for x in pre:
            if callable(x): x(e)
            else: e(x)
        if pre: e("s_nop 1")
        for g in range(NG):
            c = sum(1 for x in fill[g] if _kind(x) in ("vml", "vms"))
            nb[0] += c; nb[1] = 0 if g == vlast else nb[1] + c
        run_gaps(e, mf, fill)
        for x in late_k: e(x)
        if sw and lp == 1: attn_epilogue(e)
        if E_ and lp == 0: p5_setup(e)
        if first_qk:
            e("s_nop 7")
            for j in range(4): max8(e, NEGM(j), Sr(0, j))
            xreduce(e, "v_max_f32", [NEGM(j) for j in range(4)], [NEGM(j) + 1 for j in range(4)])
            for j in range(4):
                e(f"v_sub_f32 v{NEGM(j)}, 0, v{NEGM(j)}")
                for r in range(1, 4): e(f"v_mov_b32 v{NEGM(j)+r}, v{NEGM(j)}")
            e(f"ds_write_b64 v{vNW}, v[{NEGM(2)+3}:{NEGM(2)+4}]".replace(f"v[{NEGM(2)+3}:{NEGM(2)+4}]", "v[10:11]").replace("ds_write", f"v_mov_b32 v10, v{NEGM(2)}\nv_mov_b32 v11, v{NEGM(3)}\nds_write"))
            for j in (3, 2, 1, 0):
                for x in range(8): e(f"v_add_f32 v{Sr(0, j)+x}, v{Sr(0, j)+x}, v{NEGM(j)}")
            e(head[0][0]); e(head[1][0]); e("s_nop 0")
            for x in head[1][1]: e(x)
    if E_: e(f"s_waitcnt vmcnt({4 if nm == 'TYD' else 0})")
    if nm == "TYD":
        for su, x in cst(4, 8): e(su[0]); e(x)
    if not E_:
        assert len(e.lg) <= 4 and [r for r, _ in e.lg] == [r for r, _ in canon][8 - len(e.lg):], (nm, len(e.lg))

def ctx_store(pk, sbase, n):
    return ([f"s_add_u32 s{sT+7}, s{sbase}, {(n >> 2) * 4096 + (n & 3) * 8192}"],
            f"buffer_store_dwordx4 v[{pk+4*n}:{pk+4*n+3}], v{vL16}, s[{RWS}:{RWS+3}], s{sT+7} offen sc1")
def attn_epilogue(e):
    e("s_nop 7")
    xreduce(e, "v_add_f32", [LL(0), LL(1)], [89, 90])
    for j in range(2): e(f"v_rcp_f32 v{LL(j)}, v{LL(j)}")
    for j in range(2):
        e(f"v_mov_b32 v94, v{LL(j)}\nv_mov_b32 v95, v{LL(j)}")
        for k in range(16):
            src = Or(j, 0) + 2 * k; tr = 90 + 2 * (k & 1)
            e(f"v_accvgpr_read_b32 v{tr}, a{src}\nv_accvgpr_read_b32 v{tr+1}, a{src+1}")
            e(f"v_pk_mul_f32 v[{tr}:{tr+1}], v[{tr}:{tr+1}], v[94:95]")
            e(f"v_cvt_pk_bf16_f32 v{96+16*j+k}, v{tr}, v{tr+1}")

def attn_final(e):
    e.lg = [(set(), None)] * 8
    e(f"v_mov_b32 v72, v{LL(0)}\nv_mov_b32 v73, v{LL(1)}\nv_mov_b32 v74, v{NEGM(0)}\nv_mov_b32 v75, v{NEGM(1)}\ns_nop 3")
    e(f"ds_write_b128 v{vMWs}, v[72:75]")
    RS = OPT.get("rs", 0)
    stg = [(su, x.replace("buffer_load_dwordx4 ", f"buffer_load_dwordx4 a[{192+4*k}:{195+4*k}], ").replace(" lds", "")) for k, (su, x) in enumerate((p5_dmas(2) + p5_dmas(3))[:RS])]
    for k in range(8):
        e(f"ds_write_b128 v{vMWo}, a[{Or(1, k)}:{Or(1, k)+3}] offset:{8192 + k*1024}")
        for su, x in stg[2 * k:2 * k + 2]:
            for y in su:
                if "m0" not in y: e(y)
            e(x, tag="stg")
    e("s_waitcnt lgkmcnt(0)\ns_barrier")
    e(f"ds_read_b128 v[72:75], v{vMRs}")
    for k in range(14): e(f"ds_read_b128 v[{160+4*k}:{163+4*k}], v{vMRo} offset:{k*1024}")
    for su, x in p5_dmas(1):
        for y in reversed(su): e(y)
        if su: e("s_nop 0")
        e(x)
    e.need("v[72:75]")
    for k in range(14, 16): e(f"ds_read_b128 v[{160+4*k}:{163+4*k}], v{vMRo} offset:{k*1024}")
    for j in range(2):
        e(f"v_min_f32 v89, v{74+j}, v{NEGM(2+j)}\nv_sub_f32 v{64+2*j}, v89, v{NEGM(2+j)}\nv_sub_f32 v{68+2*j}, v89, v{74+j}")
    for j in range(2): e(f"v_exp_f32 v{64+2*j}, v{64+2*j}\nv_exp_f32 v{68+2*j}, v{68+2*j}")
    for j in range(2): e(f"v_mul_f32 v{LL(2+j)}, v{LL(2+j)}, v{64+2*j}")
    for j in range(2): e(f"v_fmac_f32 v{LL(2+j)}, v{72+j}, v{68+2*j}")
    xreduce(e, "v_add_f32", [LL(2), LL(3)], [89, 90])
    for j in range(2): e(f"v_rcp_f32 v{LL(2+j)}, v{LL(2+j)}")
    e("s_nop 0")
    for j in range(2):
        for b in (64, 68): e(f"v_mul_f32 v{b+2*j}, v{b+2*j}, v{LL(2+j)}\nv_mov_b32 v{b+2*j+1}, v{b+2*j}")
    for j in range(2):
        for k in range(16):
            src = Or(2 + j, 0) + 2 * k; tr = 90 + 2 * (k & 1); rx = 160 + 32 * j + 2 * k
            e(f"v_accvgpr_read_b32 v{tr}, a{src}\nv_accvgpr_read_b32 v{tr+1}, a{src+1}")
            e(f"v_pk_mul_f32 v[{tr}:{tr+1}], v[{tr}:{tr+1}], v[{64+2*j}:{65+2*j}]")
            e.need(f"v[{rx}:{rx+1}]")
            e(f"v_pk_fma_f32 v[{tr}:{tr+1}], v[{rx}:{rx+1}], v[{68+2*j}:{69+2*j}], v[{tr}:{tr+1}]")
            e(f"v_cvt_pk_bf16_f32 v{128+16*j+k}, v{tr}, v{tr+1}")
            if k & 3 == 3:
                su, x = ctx_store(128, sCB, 4 * j + (k >> 2)); e(su[0]); e(x)
            if j == 1:
                for x in p5_reads(0)[2 * k:2 * k + 2]: e(x)

def fallback(e, name, b, J3):
    e(f"{name}:\ns_nop 15")
    for j, scale, nxt in J3:
        d = 89
        max8(e, d, Sr(b, j))
        xreduce(e, "v_max_f32", [d], [90])
        e(f"v_max_f32 v{d}, 0, v{d}\nv_sub_f32 v90, 0, v{d}\nv_exp_f32 v90, v90")
        for x in range(8): e(f"v_sub_f32 v{Sr(b, j)+x}, v{Sr(b, j)+x}, v{d}")
        if nxt:
            for r in range(4): e(f"v_sub_f32 v{NEGM(j)+r}, v{NEGM(j)+r}, v{d}")
            for x in range(8): e(f"v_sub_f32 v{Sr(b ^ 1, j)+x}, v{Sr(b ^ 1, j)+x}, v{d}")
        if scale:
            e(f"v_mul_f32 v{LL(j)}, v{LL(j)}, v90")
            for x in range(0, 32, 2):
                o = Or(j, 0) + x
                e(f"v_accvgpr_read_b32 v91, a{o}\nv_accvgpr_read_b32 v92, a{o+1}\nv_mul_f32 v91, v91, v90\nv_mul_f32 v92, v92, v90\nv_accvgpr_write_b32 a{o}, v91\nv_accvgpr_write_b32 a{o+1}, v92")
    for ex, fol in sm_ops(b, [j for j, _, _ in J3]):
        e(ex); e("s_nop 0")
        for x in fol: e(x)
    for ex, fol in sm_ops(b ^ 1, [3])[:2]: e(ex)
    e(f"s_nop 1\ns_setpc_b64 s[{sRET}:{sRET+1}]")

def attn_pre(e):
    e.need(vmtags=("k0",), lg0=True)
    e("s_barrier")
    for f in range(8): e(kread(0, f))

def attention(e):
    B = {k: Blk(k, p, c) for k, p, c in (("fFF", None, "F"), ("fDF", None, "D"), ("FF", "F", "F"), ("DF", "F", "D"),
                                          ("TY", "D", "Y"), ("YY", "Y", "Y"), ("YD", "Y", "E"), ("TYD", "D", "E"))}
    segs = {}
    def seg(name):
        n0 = len(e.l); attn_block(e, B[name]); segs[name] = e.l[n0:]
    e(f"s_cmp_eq_u32 s{sIDX}, 0\ns_cbranch_scc1 L_fDF")
    seg("fFF")
    e(f"s_sub_u32 s{sCNT}, s{sIDX}, 1\ns_cmp_eq_u32 s{sCNT}, 0\ns_cbranch_scc1 L_DF\n.p2align 3\nL_FF:")
    seg("FF")
    e(f"s_sub_u32 s{sCNT}, s{sCNT}, 1\ns_cmp_lg_u32 s{sCNT}, 0\ns_cbranch_scc1 L_FF\nL_DF:")
    seg("DF")
    e(f"s_cmp_eq_u32 s{sIDX}, 7\ns_cbranch_scc1 L_TYD\nL_TY:")
    seg("TY")
    stamp(e, 7)
    e(f"s_sub_u32 s{sCNT}, 6, s{sIDX}\ns_cmp_eq_u32 s{sCNT}, 0\ns_cbranch_scc1 L_YD\n.p2align 3\nL_YY:")
    seg("YY")
    e(f"s_sub_u32 s{sCNT}, s{sCNT}, 1\ns_cmp_lg_u32 s{sCNT}, 0\ns_cbranch_scc1 L_YY\nL_YD:")
    seg("YD")
    e("L_fin:")
    def out_of_line():
        e("L_fDF:"); seg("fDF")
        e("s_branch L_TY\nL_TYD:"); seg("TYD")
        e("s_branch L_fin")
        for site, fb in STUBS:
            e(f"{site}_fb:\ns_call_b64 s[{sRET}:{sRET+1}], {fb}\ns_branch {site}_ret")
        for name, (b, J3) in FBS.items():
            n0 = len(e.l); fallback(e, name, b, J3); segs[name] = e.l[n0:]
    return segs, out_of_line

sS, sAH, sAC, sWH, sWC, sXO, sFH, sFC = 65, 66, 67, 68, 69, 70, 80, 81
sMA, sMW, sBO, sEXl, sFE, sBH, sBC = 78, 82, 84, 64, 72, 4, 6
sEX3 = 85
SLOT = 36864; SLMAP = (0, 2, 1, 3)
vWD5, vP1, vP2, vXO, vBO, vRA = 14, 30, 31, 28, 29, 4
vRE, vRO = (26, 12), (27, 13)
vTW, vT2 = 19, 20
PHL = f"buffer_load_dword v20, v{vP1}, s[{RWS}:{RWS+3}], s{sFH} offen sc1"
def early_setup():
    mt, nt, t0, t1, t2 = sT, sT + 1, sT + 2, sT + 4, sT + 5
    S = f"""
    s_lshl_b32 s{t0}, s{sH}, 15
    s_lshl_b32 s{t1}, s{sW}, 10
    s_add_u32 s{t0}, s{t0}, s{t1}
    s_add_u32 s{t0}, s{t0}, {CF}
    s_lshl_b32 s{sCA}, s{sIDX}, 20
    s_add_u32 s{sCA}, s{sCA}, s{t0}
    s_sub_u32 s{sCB}, 15, s{sIDX}
    s_lshl_b32 s{sCB}, s{sCB}, 20
    s_add_u32 s{sCB}, s{sCB}, s{t0}
    s_mov_b32 s{sTHR}, {f32(2.0**40)}
    s_and_b32 s{t0}, s{sW}, 1
    s_lshl_b32 s{sP8K}, s{t0}, 13
    s_xor_b32 s{t1}, s{sW}, 1
    s_lshl_b32 s{t0}, s{t0}, 1
    """
    for (m, kt), r in SEL.items():
        S += f"s_sub_i32 s{t2}, s{sW}, {2*m + kt}\n" if m < 2 else f"s_sub_i32 s{t2}, s{sW if m == 2 else t1}, s{t0}\ns_sub_i32 s{t2}, s{t2}, {kt}\n"
        S += f"s_cmp_eq_u32 s{t2}, 0\ns_cselect_b32 s{r}, 1.0, 0\ns_cmp_lt_i32 s{t2}, 0\ns_cselect_b32 s{r+1}, {BIG}, 0\n"
    S += f"""
    s_mov_b32 s{R0}, s{pWO}
    s_and_b32 s{R0+1}, s{pWO+1}, 0xffff
    s_mov_b32 s{R0+2}, {4096*1280}
    s_mov_b32 s{R0+3}, 0x20000
    s_mov_b32 s{R1}, s{pW2}
    s_and_b32 s{R1+1}, s{pW2+1}, 0xffff
    s_mov_b32 s{R1+2}, {1728*1280}
    s_mov_b32 s{R1+3}, 0x20000
    v_lshrrev_b32 v{vXO}, 4, v{vL16}
    s_lshl_b32 s{t0}, s2, 2
    s_add_u32 s{t0}, s{t0}, s{sW}
    s_mul_i32 s{t1}, s{t0}, 40
    v_min_u32 v{vTW}, 39, v{vXO}
    v_add_u32 v{vTW}, s{t1}, v{vTW}
    v_lshlrev_b32 v{vTW}, 7, v{vTW}
    s_mul_i32 s{t1}, s{t0}, 17
    v_min_u32 v{vT2}, 16, v{vXO}
    v_add_u32 v{vT2}, s{t1}, v{vT2}
    v_lshlrev_b32 v{vT2}, 7, v{vT2}
    s_lshr_b32 s{mt}, s{sX}, 2
    s_lshl_b32 s{mt}, s{mt}, 3
    s_lshr_b32 s{t0}, s2, 3
    s_and_b32 s{t0}, s{t0}, 7
    s_add_u32 s{mt}, s{mt}, s{t0}
    s_lshr_b32 s{nt}, s2, 6
    s_and_b32 s{sS}, s{sX}, 3
    s_sub_u32 s{t1}, 15, s{mt}
    s_min_u32 s{t0}, s{mt}, s{t1}
    s_mul_i32 s{t0}, s{t0}, {32*FS}
    s_add_u32 s{sFH}, s{t0}, {FH}
    s_mul_i32 s{t1}, s{sS}, {8*FS}
    s_add_u32 s{sFC}, s{t0}, s{t1}
    s_add_u32 s{sFC}, s{sFC}, {FC}
    """
    if W0: S += f"s_cmp_eq_u32 s{sW}, 0\ns_cselect_b32 s{sFH}, s{sFH}, {WS_END}\ns_cselect_b32 s{sFC}, s{sFC}, {WS_END}\n"
    S += f"""
    s_mul_i32 s{sBH}, s{mt}, {54*8192}
    s_add_u32 s{sBH}, s{sBH}, {HF}
    s_lshl_b32 s{sBC}, s{mt}, 20
    s_add_u32 s{sBC}, s{sBC}, {CF}
    s_lshl_b32 s{t0}, s{sW}, 12
    s_mul_i32 s{sAH}, s{sS}, {14*8192}
    s_add_u32 s{sAH}, s{sAH}, s{t0}
    s_lshl_b32 s{sAC}, s{sS}, 18
    s_add_u32 s{sAC}, s{sAC}, s{t0}
    s_mul_i32 s{sMW}, s{sW}, 5120
    s_add_u32 s{sMW}, s{sMW}, 16384
    s_mul_i32 s{t0}, s{sW}, {16*1280}
    s_mul_i32 s{sBO}, s{nt}, 320
    s_add_u32 s{t0}, s{t0}, s{sBO}
    s_mul_i32 s{sWH}, s{sS}, {14*32*1280}
    s_add_u32 s{sWH}, s{sWH}, s{t0}
    s_mul_i32 s{sWC}, s{sS}, {1024*1280}
    s_add_u32 s{sWC}, s{sWC}, s{t0}
    """
    a, b, c = vRE[0], vRO[0], vBO
    for k in range(5):
        S += f"""
        v_add_u32 v{a}, {64*k}, v{vXO}
        v_mul_u32_u24 v{b}, 3277, v{a}
        v_lshrrev_b32 v{b}, 16, v{b}
        v_mul_u32_u24 v{c}, 20, v{b}
        v_sub_u32 v{a}, v{a}, v{c}
        v_lshrrev_b32 v{c}, 1, v{b}
        v_and_b32 v{c}, 2, v{c}
        v_xor_b32 v{a}, v{a}, v{c}
        v_mul_u32_u24 v{b}, 1280, v{b}
        v_lshl_add_u32 v{vWD5+k}, v{a}, 4, v{b}
        """
        if 0 < k < 4: S += f"v_subrev_u32 v{vWD5+k}, {1024*k}, v{vWD5+k}\n"
    S += f"""
    s_lshr_b32 s{t1}, s{sW}, 1
    s_mul_i32 s{t2}, s{t1}, 160
    s_add_u32 s{sBO}, s{sBO}, s{t2}
    s_add_u32 s{t2}, s{t2}, 16384
    v_lshrrev_b32 v{a}, 2, v{vXO}
    v_mul_u32_u24 v{a}, 320, v{a}
    v_and_b32 v{b}, 3, v{vXO}
    v_lshl_add_u32 v{a}, v{b}, 3, v{a}
    v_add_u32 v{a}, s{t2}, v{a}
    v_lshlrev_b32 v{c}, 1, v{vXO}
    v_and_b32 v{c}, 32, v{c}
    s_cmp_eq_u32 s{t1}, 0
    s_cselect_b32 s{t0}, 1, -1
    v_mul_i32_i24 v{c}, s{t0}, v{c}
    v_sub_u32 v{b}, v{a}, v{c}
    v_add_u32 v{a}, v{a}, v{c}
    s_and_b32 s{t0}, s{sW}, 1
    s_lshl_b32 s{sXO}, s{mt}, 3
    s_lshl_b32 s{t0}, s{t0}, 2
    s_add_u32 s{sXO}, s{sXO}, s{t0}
    s_add_u32 s{sXO}, s{sXO}, s{sS}
    s_mul_i32 s{sXO}, s{sXO}, {16*1280}
    s_add_u32 s{sXO}, s{sXO}, s{sBO}
    v_lshrrev_b32 v{vBO}, 4, v{vXO}
    v_lshlrev_b32 v{vBO}, 3, v{vBO}
    v_and_b32 v{vXO}, 15, v{vXO}
    v_mul_u32_u24 v{vXO}, 1280, v{vXO}
    v_add_u32 v{vXO}, v{vXO}, v{vBO}
    v_lshlrev_b32 v{vP1}, 3, v{vL16}
    v_and_b32 v{vP2}, {7*FS}, v{vP1}
    v_and_b32 v{vP1}, {31*FS}, v{vP1}
    s_lshl_b32 s{t0}, s{mt}, 2
    s_add_u32 s{t0}, s{t0}, s{nt}
    s_lshl_b32 s{sFE}, s{t0}, 2
    s_add_u32 s{sFE}, s{sFE}, s{sW}
    s_mul_i32 s{sFE}, s{sFE}, {FS * 4}
    s_add_u32 s{sFE}, s{sFE}, {FEX}
    s_mul_i32 s{t0}, s{t0}, {16*20480}
    s_mul_i32 s{t1}, s{sW}, 5120
    s_add_u32 s{t0}, s{t0}, s{t1}
    s_add_u32 s{t0}, s{t0}, {EX}
    s_mul_i32 s{t1}, s{sS}, 20480
    s_add_u32 s{mt}, s{t0}, s{t1}
    s_lshl_b32 s{t1}, s{t1}, 2
    s_add_u32 s{sEXl}, s{t0}, s{t1}
    """
    for r in range(3): S += f"s_add_u32 s{t0}, s{sS}, {r + 1}\ns_and_b32 s{t0}, s{t0}, 3\ns_mul_i32 s{t0}, s{t0}, {4*20480}\ns_add_u32 s{sEX3+r}, s{mt}, s{t0}\n"
    return [x.strip() for x in S.split("\n") if x.strip()]
def place_early(fills, k0, g0, NG): place_list(early_setup(), fills, k0, g0, NG, (19, NG - 1))
def p5_setup(e):
    srd(e, R0, pWS, 54 * 8192, f"s{sBH}")
    srd(e, R1, pWS, 128 * 8192, f"s{sBC}")
    srd(e, R2, pW2, 1728 * 1280)
    srd(e, R3, pWO, 4096 * 1280)
    e(f"v_add_u32 v{vRE[1]}, {2*SLOT}, v{vRE[0]}\nv_add_u32 v{vRO[1]}, {2*SLOT}, v{vRO[0]}\ns_lshr_b32 s{sT+2}, s{sP8K}, 1")
    for r in range(4):
        e(f"s_add_u32 s{sT}, s{sS}, {r + 1}\ns_and_b32 s{sT}, s{sT}, 3\ns_lshl_b32 s{sT+1}, s{sT}, 10\ns_add_u32 s{sT+1}, s{sT+1}, s{sT+2}\nv_add_u32 v{vRA+r}, s{sT+1}, v{vL16}\nv_add_u32 v{vRA+4+r}, {2*SLOT}, v{vRA+r}")

def p5_dmas(d):
    sl = SLMAP[d & 3] * SLOT
    if d < 7: ra, sa, oa, rw, sw, ow = R0, sAH, d * 16384, R2, sWH, d * 64 * 1280
    else: ra, sa, oa, rw, sw, ow = R1, sAC, (d - 7) * 16384, R3, sWC, (d - 7) * 64 * 1280
    W = []
    for k in range(5):
        su = []
        if k == 0: su = [f"s_add_u32 m0, s{sMW}, {sl}", f"s_add_u32 s{sT+1}, s{sw}, {ow}"]
        if k == 4: su = [f"s_add_u32 m0, s{sMW}, {sl + 4096}"]
        W.append((su, f"buffer_load_dwordx4 v{vWD5+k}, s[{rw}:{rw+3}], s{sT+1} offen offset:{(k & 3) * 1024} lds"))
    A = []
    for k in range(4):
        su = [f"s_add_u32 m0, s{sMA}, {sl}", f"s_add_u32 s{sT}, s{sa}, {oa}"] if k == 0 else []
        A.append((su, f"buffer_load_dwordx4 v{vL16}, s[{ra}:{ra+3}], s{sT} offen offset:{k * 1024} lds"))
    return W + A
def p5_buf(m): return (m & 3) * 36
def p5_wreads(m):
    d, ks = m >> 1, m & 1; b = p5_buf(m); hi = SLMAP[d & 3] >> 1; o = (SLMAP[d & 3] & 1) * SLOT
    L = []
    for n in range(5):
        a = (vRO if n & 1 else vRE)[hi]; off = o + ks * 32 * 320 + n * 32
        L += [f"ds_read_b64_tr_b16 a[{b+4*n}:{b+4*n+1}], v{a} offset:{off}", f"ds_read_b64_tr_b16 a[{b+4*n+2}:{b+4*n+3}], v{a} offset:{off + 5120}"]
    return L
def p5_aread(m, r):
    d, ks = m >> 1, m & 1; b = p5_buf(m); hi = SLMAP[d & 3] >> 1; o = (SLMAP[d & 3] & 1) * SLOT
    return f"ds_read_b128 a[{b+20+4*r}:{b+23+4*r}], v{vRA+4*hi+r} offset:{o + ks * 8192}"
def p5_reads(d, last=False):
    W = [p5_wreads(2 * d), p5_wreads(2 * d + 1)]
    A = lambda r: [p5_aread(2 * d, r), p5_aread(2 * d + 1, r)]
    Wn = lambda n: W[0][2*n:2*n+2] + W[1][2*n:2*n+2]
    if last: return Wn(0) + A(0) + Wn(1) + Wn(2) + Wn(3) + Wn(4) + A(1) + A(2) + A(3)
    return Wn(0) + A(0) + A(1) + A(2) + A(3) + Wn(1) + Wn(2) + Wn(3) + Wn(4)

def p5(e):
    ACC = 32; ND = 23
    tick_dump(e, 2)
    attn_final(e)
    stamp(e, 8)
    warm(e, "b")
    e(f"s_add_u32 s{sT+2}, s{sQ+1}, {FC - FH}\ns_waitcnt vmcnt(0) lgkmcnt(0)\ns_barrier\nL_p5loop:")
    e(flag_store(sT + 2))
    stamp(e, 9)
    PCL = f"buffer_load_dword v20, v{vP2}, s[{RWS}:{RWS+3}], s{sFC} offen sc1"
    mfs = []; fills = []
    def mfma(m, n, r, z):
        b = p5_buf(m); dd = ACC + (r * 5 + n) * 4
        return f"{MF} v[{dd}:{dd+3}], a[{b+4*n}:{b+4*n+3}], a[{b+20+4*r}:{b+23+4*r}], " + ("0" if m < 2 and z == 0 else v(dd, 4))
    for d in range(ND):
        T_ = [(n, r) for n in range(5) for r in range(4)] if d < ND - 1 else [(n, r) for r in range(4) for n in range(5)]
        mfs.append([mfma(2 * d + (z ^ (k & 1)), n, r, z) for k, (n, r) in enumerate(T_) for z in range(2)]); fills.append([[] for _ in range(40)])
    for d in range(ND - 1):
        for k, x in enumerate(p5_reads(d + 1, d == ND - 2)): fills[d][1 + k + k // 4].append(x)
        if d: fills[d][0].append(bar([f"d{d+1}"]))
    NM = ND - 1; TL = 40
    if OPT.get("m4"):
        NM = ND - 2; TL = 80
        T_ = [(n, r) for r in range(4) for n in range(5)]
        first = [mfma(2 * NM + (z ^ (n & 1)), n, 0, 1) for n in range(5) for z in range(2)] + [mfma(2 * NM + 2 + (z ^ (n & 1)), n, 0, 1) for n in range(5) for z in range(2)]
        mfs[NM:] = [first + [mfma(2 * NM + (z if k & 1 else 3 - z), n, r, 1) for k, (n, r) in enumerate(T_[5:]) for z in range(4)]]
        fills[NM - 1] = [[x for x in f if callable(x) or not (x[0] if isinstance(x, tuple) else x).startswith("ds_read")] for f in fills[NM - 1]]
        for k, x in enumerate(p5_reads(NM, True)): fills[NM - 1][1 + k + k // 4].append(x)
        fills[NM:] = [[[] for _ in range(80)]]
        fills[NM][0].append(bar([f"d{ND-1}"]))
        R_ = p5_reads(ND - 1, True)
        for k, x in enumerate(R_[:22]): fills[NM][(k >> 1)].append(x)
        for k, x in enumerate(R_[22:]): fills[NM][11 + k].append(x)
    GR = 176; XB = 156
    for k in range(12): fills[18][4 + 2 * k].append(f"v_mov_b32 v{GR + 16*(k >> 2) + (4*(k & 3) + 3 if k & 3 < 3 else 13)}, s{sTAG}")
    fills[18][30].append(f"v_lshrrev_b32 v139, 1, v{vL16}")
    def send(r):
        L = []
        for k in range(10):
            L.append(f"v_cvt_pk_bf16_f32 v{GR + 16*r + 4*(k // 3) + k % 3}, v{ACC+20*r+2*k}, v{ACC+20*r+2*k+1}")
            q = GR + 16 * r + 4 * (k // 3)
            if k % 3 == 2: L.append(f"buffer_store_dwordx4 v[{q}:{q+3}], v{vL16}, s[{RWS}:{RWS+3}], s{sEX3+r} offen offset:{1024 * (k // 3)} sc1")
        L.append(f"buffer_store_dwordx2 v[{q}:{q+1}], v139, s[{RWS}:{RWS+3}], s{sEX3+r} offen offset:3072 sc1")
        return L
    late = []
    g = 0
    for g0_, x in [(TL // 4 * (r + 1) + 5, x) for r in range(3) for x in send(r)]:
        g = max(g, g0_)
        if g < TL: fills[NM][g].append(x)
        else: late.append(x)
        g += 1
    RS = OPT.get("rs", 0)
    if RS:
        e(f"v_add_u32 v156, s{sMW}, v{vL16}\nv_add_u32 v157, s{sMA}, v{vL16}\nv_add_u32 v158, {2*SLOT}, v156\nv_add_u32 v159, {2*SLOT}, v157")
        for k in range(RS):
            d_, q = 2 + k // 9, k % 9; sl = SLMAP[d_ & 3]
            a_, off = (156, q * 1024) if q < 5 else (157, (q - 5) * 1024)
            fills[0][2 + 2 * k].append(f"ds_write_b128 v{a_ + 2 * (sl >> 1)}, a[{192+4*k}:{195+4*k}] offset:{(sl & 1) * SLOT + off}")
    for d in range(2, ND):
        P = [(d - 4, g) for g in range(3, 39, 4)]
        if RS and d == 2: continue
        if d < 6: P = [((d - 2) >> 1, g) for g in range(2 + 18 * (d & 1), 20 + 18 * (d & 1), 2)]
        if RS and d == 3: P = [(0, g) for g in range(3, 39, 4)]
        for k, (x, (m, g)) in enumerate(zip(p5_dmas(d), P)):
            if d == 3 and k < RS - 9:
                if k == 5 and RS - 9 < 9: put_dma(fills[m], g, (x[0], "s_nop 0"), None)
                continue
            if d == 7 and k == 5:
                if W0:
                    CB = OPT.get("cb", 20)
                    fills[m][CB].append(async_check("L_p5c", 20, PCL, sTAGW)); fills[m][CB].append("s_barrier"); fills[m][1].append(PCL)
                else:
                    fills[m][g - 1].append(async_check("L_p5c", 20, PCL))
                    fills[m - 1][37].append(PCL)
            put_dma(fills[m], g, x, f"d{d}")
    hs_ = f"""
        v_mov_b32 v20, 0
        v_mov_b32 v132, 0x10000000
        v_cmp_eq_u32 vcc, 0, v{vL16}
        s_lshl_b32 s10, s{sS}, 7
        s_xor_b32 s11, s10, 128
        v_cndmask_b32 v132, v132, v20, vcc
        v_lshlrev_b32 v133, 3, v{vL16}
        v_and_b32 v133, 384, v133
        v_mov_b32 v138, s11
        v_cmp_eq_u32 vcc, s10, v133
        s_nop 1
        v_cndmask_b32 v133, v133, v138, vcc
        s_add_u32 s10, s10, s{sFE}
        v_and_b32 v154, 8, v{vBO}
        v_mul_u32_u24 v154, 3, v154
        v_add_u32 v154, v154, v{vXO}
        """
    place_list([x.strip() for x in hs_.strip().split("\n")], fills, 20, 2, 40, (21, 0))
    HST = f"buffer_store_dword v{vTAG}, v132, s[{RWS}:{RWS+3}], s10 offen sc1"
    if OPT.get("hg", 99) < TL: fills[NM][OPT["hg"]].append(HST)
    OWN = ACC + 60; RXR = (224, 240, 140)
    HPL = f"buffer_load_dword v20, v133, s[{RWS}:{RWS+3}], s{sFE} offen sc1"
    place_list([x for k in range(3) for x in (f"s_add_u32 s{12+k}, s{sS}, {k+1}", f"s_and_b32 s{12+k}, s{12+k}, 3", f"s_mul_i32 s{12+k}, s{12+k}, 20480", f"s_add_u32 s{12+k}, s{12+k}, s{sEXl}")]
               + [f"s_mov_b32 s{R0}, s{pOUT}", f"s_and_b32 s{R0+1}, s{pOUT+1}, 0xffff", f"s_mov_b32 s{R0+2}, {2048*1280}", f"s_mov_b32 s{R0+3}, 0x20000"], fills, 20, 20, 40, (21, 0))
    def own_adds(e):
        e("s_nop 3"); e.need("v[112:131]")
        for q in range(10):
            e(f"v_lshlrev_b32 v134, 16, v{112+q}\nv_and_b32 v135, 0xffff0000, v{112+q}\nv_lshlrev_b32 v136, 16, v{122+q}\nv_and_b32 v137, 0xffff0000, v{122+q}")
            e(f"v_pk_add_f32 v[134:135], v[134:135], v[136:137]\nv_pk_add_f32 v[{OWN+2*q}:{OWN+2*q+1}], v[{OWN+2*q}:{OWN+2*q+1}], v[134:135]")
    def fetch(e, ks=(0, 1, 2)):
        for k in ks:
            for q in range(3): e(f"buffer_load_dwordx4 v[{RXR[k]+4*q}:{RXR[k]+4*q+3}], v{vL16}, s[{RWS}:{RWS+3}], s{12+k} offen offset:{1024*q} sc1")
            e(f"buffer_load_dwordx2 v[{RXR[k]+12}:{RXR[k]+13}], v139, s[{RWS}:{RWS+3}], s{12+k} offen offset:3072 sc1")
    def verify(e):
        tg = [RXR[k] + q for k in range(3) for q in (3, 7, 11, 13)]
        for op, d in (("v_max3_u32", 134), ("v_min3_u32", 135)):
            e(f"{op} v{d}, v{tg[0]}, v{tg[1]}, v{tg[2]}")
            for q in range(3, 11, 2): e(f"{op} v{d}, v{d}, v{tg[q]}, v{tg[q+1]}")
            e(f"{op} v{d}, v{d}, v{tg[11]}, v{tg[11]}")
        e(f"v_xor_b32 v134, s{sTAG}, v134\nv_xor_b32 v135, s{sTAG}, v135\nv_or_b32 v134, v134, v135\nv_cmp_ne_u32 vcc, 0, v134")
    mx = 19
    fills[mx][0].append(grp([f"s_mov_b32 s{R0}, s{pX}", f"s_and_b32 s{R0+1}, s{pX+1}, 0xffff", f"s_mov_b32 s{R0+2}, {2048*1280}", f"s_mov_b32 s{R0+3}, 0x20000",
                             f"s_mov_b32 s{R2}, s{pB2}", f"s_and_b32 s{R2+1}, s{pB2+1}, 0xffff", f"s_mov_b32 s{R2+2}, 1280", f"s_mov_b32 s{R2+3}, 0x20000"]))
    for n in range(5):
        fills[mx][2 + 3 * n].append(f"buffer_load_dwordx2 v[{112+2*n}:{113+2*n}], v{vXO}, s[{R0}:{R0+3}], s{sXO} offen offset:{32*n}")
        fills[mx][20 + 3 * n].append(f"buffer_load_dwordx2 v[{122+2*n}:{123+2*n}], v{vBO}, s[{R2}:{R2+3}], s{sBO} offen offset:{32*n}")
    for m in range(NM + 1):
        if m == 3: stamp(e, 11)
        if m == 4: stamp(e, 12)
        run_gaps(e, mfs[m], fills[m], mfs[m + 1][0] if m < NM else None)
    for x in late: e(x)
    tick_dump(e, 3)
    stamp(e, 13)
    if OPT.get("hg", 99) >= TL: e(HST)
    if OPT.get("ps"):
        own_adds(e)
        e(f"s_mov_b32 s15, 7\ns_mov_b32 s{sT+6}, 1000000\nL_ps:\n{HPL}\ns_waitcnt vmcnt(0)\nv_cmp_ne_u32 vcc, s{sTAG}, v20")
        for k in range(3):
            e(f"s_add_u32 s16, s{sS}, {k+1}\ns_and_b32 s16, s16, 3\ns_bitcmp1_b32 vcc_lo, s16\ns_cbranch_scc1 L_ps{k}\ns_bitcmp1_b32 s15, {k}\ns_cbranch_scc0 L_ps{k}\ns_bitset0_b32 s15, {k}")
            fetch(e, (k,))
            e(f"L_ps{k}:")
        e(f"s_cmp_eq_u32 s15, 0\ns_cbranch_scc1 L_ps_ok\ns_sub_u32 s{sT+6}, s{sT+6}, 1\ns_cmp_eq_u32 s{sT+6}, 0\ns_cbranch_scc1 L_ps_ok\ns_sleep {OPT.get('hs', 5)}\ns_branch L_ps\nL_ps_ok:")
    else:
        if OPT.get("pf"):
            e(HPL); own_adds(e); e(f"s_waitcnt vmcnt(0)\nv_cmp_ne_u32 vcc, s{sTAG}, v20\ns_cbranch_vccz L_p5hint_ok")
        else: own_adds(e)
        def hp(e): e(f"{HPL}\ns_waitcnt vmcnt(0)\nv_cmp_ne_u32 vcc, s{sTAG}, v20")
        spin(e, "L_p5hint", hp, None, sleep=OPT.get("hs", 5))
        fetch(e)
    stamp(e, 10)
    e("s_waitcnt vmcnt(0)"); verify(e)
    e("s_cbranch_vccz L_p5x_ok")
    def poll(e):
        fetch(e); e("s_waitcnt vmcnt(0)"); verify(e)
    spin(e, "L_p5x", poll, None, sleep=OPT.get("xs", 1))
    e(f"s_cmp_eq_u32 s2, 0\ns_cselect_b32 s{sT}, {FL}, {0}\ns_cmp_eq_u32 s{sT}, 0\ns_cselect_b32 s{sT}, {WS_END}, s{sT}")
    e(flag_store(sT))
    for q in range(10):
        t = OWN + 2 * q
        for k in range(3):
            u = RXR[k] + 4 * (q // 3) + q % 3; z = 134 + 2 * (k & 1)
            e(f"v_lshlrev_b32 v{z}, 16, v{u}\nv_and_b32 v{z+1}, 0xffff0000, v{u}\nv_pk_add_f32 v[{t}:{t+1}], v[{t}:{t+1}], v[{z}:{z+1}]")
        e(f"v_cvt_pk_bf16_f32 v{112+q}, v{t}, v{t+1}")
        if OPT.get("narrow"):
            if q & 1: e(f"buffer_store_dwordx2 v[{111+q}:{112+q}], v{vXO}, s[{R0}:{R0+3}], s{sXO} offen offset:{16*(q-1)}")
        elif q in (3, 7):
            e(f"s_nop 1\nv_permlane16_swap_b32 v{109+q}, v{111+q}\nv_permlane16_swap_b32 v{110+q}, v{112+q}")
            e(f"buffer_store_dwordx4 v[{109+q}:{112+q}], v154, s[{R0}:{R0+3}], s{sXO} offen offset:{16*(q-3)}")
        elif q == 9: e(f"buffer_store_dwordx2 v[120:121], v{vXO}, s[{R0}:{R0+3}], s{sXO} offen offset:128")

def warm(e, name):
    if not OPT.get("hop"): return
    e(f"s_mov_b32 s7, 1")
    for w in range(3): e(f"s_cmp_eq_u32 s{sW}, {w}\ns_cbranch_scc1 HOP_{name}_{w}")
    e(f"s_branch HOP_{name}_3\nHOP_{name}_ret:\ns_mov_b32 s7, 0")
def reads_scc(i): return i.mn.startswith(("s_addc", "s_subb", "s_cselect", "s_cbranch_scc"))
def writes_scc(i): return i.kind == "salu" and not i.mn.startswith(("s_mov", "s_mul_i32", "s_cselect", "s_getpc", "s_sleep", "s_setprio"))
def insert_hops(L, sessions):
    import subprocess, re as _re
    open("hop.s", "w").write(header() + _re.sub(r"HOP_\w_\d", "L_p5loop", "\n".join(i.t for i in L)) + "\n" + footer())
    subprocess.run(["clang", "-x", "assembler", "-target", "amdgcn-amd-amdhsa", "-mcpu=gfx950", "-c", "hop.s", "-o", "hop.o"], check=True)
    dis = subprocess.run(["llvm-objdump", "-d", "--mcpu=gfx950", "hop.o"], capture_output=True, text=True).stdout
    D = [(m.group(1), int(m.group(2), 16)) for m in _re.finditer(r"^\t(\S+).*// ([0-9A-F]{12}):", dis, _re.M)]
    addr = {}; k = 0
    for n, i in enumerate(L):
        if i.kind == "label": continue
        base = lambda x: x.replace("_e32", "").replace("_e64", "")
        while base(D[k][0]) != base(i.mn): k += 1
        addr[n] = D[k][1]; k += 1
    lab = {i.mn[:-1]: n for n, i in enumerate(L) if i.kind == "label" and i.mn.endswith(":")}
    which = {}
    for name, ranges in sessions.items():
        for a, b in ranges:
            for n in range(lab[a], lab[b]): which[n] = name
    ins = []; shift = 0; page = -1
    start = lab["L_p1K"]
    for n in sorted(addr):
        if n < start: continue
        a = addr[n] + shift
        if a >> 12 == page or n not in which:
            page = a >> 12 if n not in which else page
            continue
        m = n; ok = True
        while m < len(L) and not writes_scc(L[m]) and L[m].kind != "br" or (m < len(L) and reads_scc(L[m])):
            if reads_scc(L[m]): ok = False; break
            m += 1
        if not ok:
            assert (a & 4095) < 48, "no safe hop slot"
            continue
        page = a >> 12
        if (a & 4095) < 56: ins.append((n, which[n])); shift += 8
    out = list(L); idx = {}
    per = {name: [n for n, w in ins if w == name] for name in sessions}
    txt = {}
    for name, P in per.items():
        for k, n in enumerate(P):
            nxt = f"HS_{name}_{k+4}" if k + 4 < len(P) else f"HOP_{name}_ret"
            txt[n] = ([f"HOP_{name}_{k}:"] if k < 4 else []) + [f"HS_{name}_{k}:", "s_cmp_eq_u32 s7, 1", f"s_cbranch_scc1 {nxt}"]
        assert len(P) >= 4, (name, len(P))
        print("hop session", name, len(P), "pages")
    out = []
    for n, i in enumerate(L):
        for x in txt.get(n, []): out.append(I(x))
        out.append(i)
    return out

def clone_state(e): return (list(e.vm), list(e.lg))

def build(stop=None):
    FBS.clear(); STUBS.clear()
    e = E(); seg = {}
    def mark(name, n0): seg[name] = e.l[n0:]
    n0 = 0
    e("L_code_begin:")
    if OPT.get("dbgspan"): e("s_memrealtime s[96:97]")
    if STAMP: e("s_mov_b32 s71, 0\ns_memrealtime s[96:97]\ns_memtime s[98:99]")
    prologue(e); p0_ln(e); p1_pre(e); stamp(e, 0); stamp(e, 1); stamp(e, 2)
    mark("pro", n0)
    e(f"s_cmp_ge_u32 s{sW}, 2\ns_cbranch_scc1 L_p1V")
    if OPT.get("hop"): e("s_branch L_p1K\n.p2align 12")
    e("L_p1K:")
    st0 = clone_state(e); st1 = {}; bq = {}
    def p1(T):
        e.vm, e.lg = list(st0[0]), list(st0[1])
        n0 = len(e.l); bg = Bg(); p1_main(e, T, bg); tick_dump(e, 0); stamp(e, 3); mark("p1" + T, n0)
        st1[T] = clone_state(e); bq[T] = list(bg.q)
        e(f"s_cmp_ge_u32 s{sU}, 27\ns_cbranch_scc1 L_qhN{T}")
    def qh(T, hasH):
        e.vm, e.lg = list(st1[T][0]), list(st1[T][1])
        n0 = len(e.l); b = Bg(); b.q = list(bq[T]); qh_main(e, T, hasH, b); mark("qh" + "NH"[hasH] + T, n0)
    p1("K")
    e("s_branch L_qhH\nL_p1V:")
    p1("V")
    assert [t for _, t in st1["K"][0]] == [t for _, t in st1["V"][0]] and [r for r, _ in st1["K"][1]] == [r for r, _ in st1["V"][1]] and bq["K"] == bq["V"]
    e("L_qhH:"); qh("V", True); seg["qhHK"] = seg["qhHV"]
    e("L_postH:")
    n0 = len(e.l)
    tick_dump(e, 1); stamp(e, 4); e("s_nop 7"); q_pack(e); dm = gelu(e, "L_skH"); attn_setup(e, dm); stamp(e, 5); attn_pre(e); stamp(e, 6); mark("postH", n0)
    e("L_attn:")
    segsA, ool = attention(e)
    e("L_p5:")
    n0 = len(e.l); e.vm = []
    p5(e); stamp(e, 14)
    if OPT.get("dbgspan"):
        e("""s_load_dwordx2 s[32:33], s[0:1], 96
        s_memrealtime s[98:99]
        s_waitcnt lgkmcnt(0)
        s_not_b32 s96, s96
        v_mov_b32 v4, 0
        v_mov_b32 v5, s98
        v_mov_b32 v6, s96
        s_mov_b64 exec, 1
        global_atomic_umax v4, v5, s[32:33] sc1
        global_atomic_umax v4, v6, s[32:33] offset:4 sc1""")
    mark("p5", n0)
    e("L_exit:\ns_endpgm")
    e("L_qhNK:\nL_qhNV:"); qh("V", False); seg["qhNK"] = seg["qhNV"]
    n0 = len(e.l)
    tick_dump(e, 1); stamp(e, 4); e(PKL); e("\n".join(early_setup())); q_pack(e); async_check("L_skN", vTR + 1, PKL)(e); attn_setup(e, kv_prologue_list()); stamp(e, 5); attn_pre(e); stamp(e, 6); mark("postN", n0)
    e("s_branch L_attn")
    ool()
    e("L_code_end:")
    seg.update(segsA)
    errs = []
    for T in "KV":
        for Hh in "HN":
            class X: pass
            x = X(); x.l = seg["p1" + T] + seg["qh" + Hh + T]; check_drain_order(x)
    def path(i):
        if i == 0: a = ["fDF"]
        else: a = ["fFF"] + ["FF"] * min(i - 1, 2) + ["DF"]
        return a + (["TYD"] if i == 7 else ["TY"] + ["YY"] * min(6 - i, 2) + ["YD"])
    for T, Hh, i in (("K", "H", 0), ("V", "N", 1), ("K", "N", 3), ("V", "H", 6), ("K", "H", 7)):
        tr = []
        for nme in ["pro", "p1" + T, "qh" + Hh + T, "post" + Hh] + path(i) + ["p5"]: tr += seg[nme]
        errs += check_trace(tr, f"{T},{Hh},{i}")
    for nme in FBS: errs += check_trace(seg[nme], nme)
    seen = set()
    for x in errs:
        k = x.split("]", 1)[1]
        if k not in seen:
            seen.add(k)
            if len(seen) < 12: print("HAZARD", x)
    print("instructions:", sum(1 for i in e.l if i.kind != "label"), {k: len(vv) for k, vv in seg.items()})
    if OPT.get("allld"):
        e.l = [I(i.t.replace(" lds", f" {OPT['allld']} lds")) if (i.kind == "vml" and i.lds and " nt" not in i.t and " sc" not in i.t) else i for i in e.l]
    if OPT.get("hop"):
        e.l = [i for i in e.l if i.mn != ".p2align 3"]
        end_a = {1: "L_attn", 2: "L_fin", 3: "L_postH"}[OPT["hop"]]
        e.l = insert_hops(e.l, {"a": [("L_qhH" if OPT.get("hq") else "L_p1K", end_a)], "b": [("L_p5loop", "L_exit")]})
    if "race" in sys.argv:
        import race; race.check_all(e.l)
    mac, body = compress([i.t for i in e.l])
    h = header(); k = h.index(".text")
    open("k_full.s", "w").write(h + e.text() + footer())
    return h[:k] + mac + h[k:] + body + footer(), len(seen)

if __name__ == "__main__":
    STAMP = "stamp" in sys.argv
    txt, ne = build()
    out = sys.argv[1] if len(sys.argv) > 1 else "k.s"
    open(out, "w").write(txt)
    print("bytes", len(txt), "hazards", ne)

def mb_init(e):
    for r in range(4): e(f"v_mov_b32 v{192+r}, 0x3f803f80")
```

```python
import sys, math, struct
from core import *

NAME = "parallel_sum__compressed_kv_cla__dense_activation_gelu__prompt"
def f32(x): return "0x%08x" % struct.unpack("<I", struct.pack("<f", x))[0]
CS = math.log2(math.e) / math.sqrt(128.0)

OPT = dict(kvst="sc1", norole=1, rate=1, bstep=2, bkv=17, notouch1=1, wnt=1, cnt=0, cpf=10, te=3, cs=2, sp0=3, xe=1, be=1, tsp=1, hop=1, np=16, wl=0, late=1, hg=66, qc=1, pc=1, kvb=7, gp=1, pk19=40, hs=8, slp=4, xd=1, bfast=1, m4=1)
for a in sys.argv[1:]:
    if "=" in a:
        k, vv = a.split("=", 1); OPT[k] = int(vv) if vv.lstrip("-").isdigit() else vv.replace("+", " ")
def NT(k): return ' nt' if OPT.get(k) else ''
XS = 0x0010000; KF = 0x0400000; VF = 0x1500000 + OPT.get('vsk', 0); HF = 0x2600000; CF = 0x2E00000; EX = 0x3F00000; FL = 0x5400000; WS_END = 0x5A00000
HS = 524288 + OPT.get('sk', 0)
FXS = FL + 0x8000; FKV = FL + 0x10000; FH = FL + 0x18000; FC = FL + 0x20000; FEX = FL + 0x80000
FS = 128
sTAG = 88
sW, sH, sIDX, sX = 3, 4, 5, 6
pX, pC, pWQ, pWUK, pWUV, pWO, pW1, pB1, pW2, pB2, pOUT, pDBG, pWS = 8, 10, 12, 14, 16, 18, 22, 24, 26, 28, 30, 32, 34
R0, R1, R2, R3, RWS = 36, 40, 44, 48, 52
sT = 56
sU = 64
sM0a, sM0b, sSa, sSb, sSc, sST = 65, 66, 67, 68, 69, 70
sQ = 72
MF = "v_mfma_f32_16x16x32_bf16"

def srd(e, r, p, nbytes, add=None):
    if add is None:
        e(f"s_mov_b32 s{r}, s{p}\ns_and_b32 s{r+1}, s{p+1}, 0xffff")
    else:
        e(f"s_add_u32 s{r}, s{p}, {add}\ns_addc_u32 s{r+1}, s{p+1}, 0\ns_and_b32 s{r+1}, s{r+1}, 0xffff")
    e(f"s_mov_b32 s{r+2}, {nbytes}\ns_mov_b32 s{r+3}, 0x20000")

vL16, vXR, vWQR, vW1R, vXD, vWQD, vW1D, vSC = 0, 1, 2, 10, 14, 18, 20, 21
vTR, vPK = 24, 28
vTAG = 23
sXS = 80
vCD, vWD, vCR, vWR = 96, 100, 104, 106
vWWIN, vCB = 176, (224, 192)
HACC, QACC = 32, 96
XNB = (224, 240)

class Cap:
    def __init__(self): self.l = []
    def __call__(self, t, tag=None): self.l.extend(x.strip() for x in t.strip().split("\n") if x.strip())
LATE = Cap()
def place_list(L, fills, k0, g0, NG, kmax):
    ks, g = k0, g0; k = 0
    while k < len(L):
        grp_ = [L[k]]
        if L[k].startswith("v_cmp"):
            while not grp_[-1].startswith("v_cndmask"): grp_.append(L[k + len(grp_)])
        elif L[k].startswith("s_"):
            while k + len(grp_) < len(L) and L[k + len(grp_)].startswith("s_") and (len(grp_) < 2 or L[k + len(grp_)].startswith(("s_cselect", "s_addc"))): grp_.append(L[k + len(grp_)])
            if grp_[-1].startswith("s_cmp") and len(grp_) > 1: grp_.pop()
            if k + len(grp_) < len(L) and L[k + len(grp_)].startswith("v_") and not L[k + len(grp_)].startswith("v_cmp"): grp_.append(L[k + len(grp_)])
        k += len(grp_)
        for x in grp_: fills[ks][g].append(("BG", x))
        g += 1
        if g == NG: ks, g = ks + 1, 0
    assert (ks, g) <= kmax, (ks, g)
def prologue(e):
    e(f"""
    s_cmp_ge_u32 s2, {0 if OPT.get("exit0") else 256}
    s_cbranch_scc1 L_exit
    s_load_dwordx16 s[8:23], s[0:1], 0
    s_load_dwordx8 s[24:31], s[0:1], 64
    s_load_dwordx4 s[32:35], s[0:1], 96
    v_lshrrev_b32 v33, 6, v0
    v_and_b32 v32, 63, v0
    v_readfirstlane_b32 s{sW}, v33
    v_lshlrev_b32 v{vL16}, 4, v32
    s_and_b32 s{sX}, s2, 7
    s_lshr_b32 s{sT}, s2, 3
    s_and_b32 s{sT}, s{sT}, 3
    s_lshl_b32 s{sH}, s{sX}, 2
    s_add_u32 s{sH}, s{sH}, s{sT}
    s_lshr_b32 s{sIDX}, s2, 5
    s_mov_b32 s7, 0
    """)
    if OPT.get("cpf"):
        e(f"""
        s_getpc_b64 s[{sT+4}:{sT+5}]
        s_and_b32 s{sT+4}, s{sT+4}, 0xffffff00
        s_lshr_b32 s{sT+2}, s2, 3
        s_lshl_b32 s{sT+2}, s{sT+2}, 2
        s_add_u32 s{sT+2}, s{sT+2}, s{sW}
        v_min_u32 v152, {OPT["cpf"] - 1}, v32
        v_lshlrev_b32 v152, 14, v152
        s_lshl_b32 s{sT+2}, s{sT+2}, 7
        v_add_u32 v152, s{sT+2}, v152
        v_min_u32 v152, L_code_end-L_code_begin-4, v152
        global_load_dword v153, v152, s[{sT+4}:{sT+5}]{NT('cpnt')}
        """)
    e(f"""
    s_mul_i32 s{sU}, s{sX}, 3
    s_add_u32 s{sU}, s{sU}, s{sT}
    s_sub_u32 s{sT+1}, s{sX}, s{sIDX}
    s_and_b32 s{sT+1}, s{sT+1}, 7
    s_add_u32 s{sT+1}, s{sT+1}, 24
    s_cmp_eq_u32 s{sT}, 3
    s_cselect_b32 s{sU}, s{sT+1}, s{sU}
    """)
    e(f"""
    v_lshrrev_b32 v37, 3, v32
    v_and_b32 v38, 7, v32
    v_lshrrev_b32 v39, 4, v32
    v_xor_b32 v50, v38, v39
    v_lshlrev_b32 v50, 4, v50
    v_lshl_add_u32 v{vCD}, v37, 10, v50
    v_xor_b32 v51, 64, v{vCD}
    v_add_u32 v{vCD+1}, 7168, v51
    v_add_u32 v{vCD+2}, {2*7168}, v{vCD}
    v_add_u32 v{vCD+3}, {3*7168}, v51
    v_and_b32 v52, 15, v32
    v_lshlrev_b32 v53, 1, v39
    v_xor_b32 v53, v52, v53
    v_lshlrev_b32 v53, 4, v53
    v_lshl_add_u32 v{vWD}, v39, 13, v53
    v_add_u32 v{vWD+1}, {31744}, v{vWD}
    v_xor_b32 v51, 128, v{vWD}
    v_add_u32 v{vWD+2}, {2*31744}, v51
    v_add_u32 v{vWD+3}, {3*31744}, v51
    """)
    e(f"""
    s_lshl_b32 s{sSa}, s{sIDX}, 18
    s_lshl_b32 s{sT+1}, s{sW}, 16
    s_add_u32 s{sSa}, s{sSa}, s{sT+1}
    s_lshl_b32 s{sM0a}, s{sW}, 13
    s_and_b32 s{sT+1}, s{sW}, 1
    s_lshl_b32 s{sSb}, s{sT+1}, 17
    s_lshl_b32 s{sT+2}, s{sH}, 8
    s_add_u32 s{sSb}, s{sSb}, s{sT+2}
    s_lshl_b32 s{sM0b}, s{sW}, 12
    s_add_u32 s{sM0b}, s{sM0b}, 0x10000
    s_waitcnt lgkmcnt(0)
    """)
    srd(e, R1, pC, 2048 * 1024)
    e(f"s_cmp_ge_u32 s{sW}, 2\ns_cselect_b32 s{R2}, s{pWUV}, s{pWUK}\ns_cselect_b32 s{R2+1}, s{pWUV+1}, s{pWUK+1}")
    e(f"s_and_b32 s{R2+1}, s{R2+1}, 0xffff\ns_mov_b32 s{R2+2}, {512*8192}\ns_mov_b32 s{R2+3}, 0x20000")
    for q in range(8): emit_dma(e, p1_cdma(0, q), "c0")
    for u in range(4): emit_dma(e, p1_wdma(0, u), "w0")
    for x, tag in PRO2()[:OPT.get("np", 28) - 12]: emit_dma(e, x, tag)
    e(f"s_add_u32 s{sT+2}, s{pWS}, {FL}\ns_addc_u32 s{sT+3}, s{pWS+1}, 0\ns_load_dword s{sTAG}, s[{sT+2}:{sT+3}], 0")
    LATE.l.clear()
    srd(e, RWS, pWS, WS_END)
    if OPT.get("late"): e = LATE
    srd(e, R0, pX, 2048 * 1280)
    srd(e, R3, pB1, 1728 * 2)
    e(f"""
    v_lshrrev_b32 v34, 5, v32
    v_and_b32 v35, 31, v32
    v_mul_u32_u24 v36, 1280, v34
    v_lshl_add_u32 v36, v35, 3, v36
    s_lshl_b32 s89, s2, 2
    s_add_u32 s89, s89, s{sW}
    s_mul_i32 s89, s89, 2560
    v_lshlrev_b32 v151, 3, v39
    s_lshl_b32 s90, s{sU}, 7
    """)
    e(f"""
    s_lshl_b32 s{sT+4}, s{sH}, 8
    s_mul_i32 s{sT+2}, s{sIDX}, 80
    s_mul_i32 s{sT+3}, s{sW}, 20
    s_add_u32 s{sT+2}, s{sT+2}, s{sT+3}
    s_lshl_b32 s{sT+3}, s{sT+2}, 13
    s_add_u32 s{sT+3}, s{sT+3}, s{sT+4}
    s_mul_i32 s{sT+2}, s{sT+2}, 3456
    s_lshl_b32 s{sT+4}, s{sU}, 7
    s_add_u32 s{sT+2}, s{sT+2}, s{sT+4}
    v_min_u32 v140, {7 if OPT.get("tsp") else 39}, v32
    v_and_b32 v144, 1, v140
    v_lshlrev_b32 v144, 7, v144
    v_lshrrev_b32 v140, 1, v140
    v_lshl_add_u32 v140, v140, 13, v144
    v_min_u32 v145, {3 if OPT.get("tsp") else 19}, v32
    v_mul_u32_u24 v145, 3456, v145
    """)
    srd(e, 84, pWQ, 640 * 8192)
    e(f"s_mov_b32 s93, s{sT+3}\ns_mov_b32 s94, s{sT+2}")

PC = OPT.get('pc', 0)
CSLOT = (0, 32768) * 4 if PC else (32768, 0, 131072, 32768, 0, 32768, 0, 32768)
vCR2 = 124; vWR2 = 160
def p1_cdma(j, q):
    setup = []
    if q % 4 == 0:
        setup = [f"s_add_u32 m0, s{sM0a}, {CSLOT[j] + (q >> 2) * 4096}", f"s_add_u32 s{sT}, s{sSa}, {j * 128 + (q >> 2) * 32768}"]
    return setup, f"buffer_load_dwordx4 v{vCD + (q & 3)}, s[{R1}:{R1+3}], s{sT} offen offset:{(q & 3) * 1024}{NT('cnt')} lds"
def p1_wslot(sidx): return ((1, 0, 2, 1, 0, 2, 1, 0)[sidx >> 1] * 2 + (sidx & 1) if PC else (sidx + 2) & 3) * 16384
def p1_wdma(sidx, u):
    setup = []
    if u == 0:
        setup = [f"s_add_u32 m0, s{sM0b}, {p1_wslot(sidx)}", f"s_add_u32 s{sT+1}, s{sSb}, {sidx * 32 * 8192}"]
    return setup, f"buffer_load_dwordx4 v{vWD + u}, s[{R2}:{R2+3}], s{sT+1} offen offset:{u * 1024}{NT('wnt')} lds"

def PRO2():
    L = [(p1_wdma(1, u), "w1") for u in range(4)] + [(p1_cdma(1, q), "c1") for q in range(8)] + [(p1_wdma(2, u), "w2") for u in range(4)]
    return L
def emit_dma(e, pair, tag):
    su, d = pair
    for x in su: e(x)
    if su: e("s_nop 0")
    e(d, tag=tag)

def reduce32(r, t):
    L = []
    for mod in ("quad_perm:[1,0,3,2]", "quad_perm:[2,3,0,1]", "row_half_mirror", "row_mirror"):
        L += ["s_nop 0", f"v_add_f32_dpp v{r}, v{r}, v{r} {mod} row_mask:0xf bank_mask:0xf"]
    return L + [f"v_mov_b32 v{t}, v{r}", "s_nop 0", f"v_permlane16_swap_b32 v{r}, v{t}", f"v_add_f32 v{r}, v{r}, v{t}"]

def ln_ops():
    L = []; U = 50
    for k in range(10): L += [f"v_lshlrev_b32 v{U+2*k}, 16, v{40+k}", f"v_and_b32 v{U+1+2*k}, 0xffff0000, v{40+k}"]
    L += [f"v_add_f32 v70, v{U}, v{U+1}"] + [f"v_add_f32 v70, v70, v{U+k}" for k in range(2, 20)]
    L += reduce32(70, 71) + [f"v_mul_f32 v70, {f32(1/640)}, v70"]
    L += [f"v_sub_f32 v{U+k}, v{U+k}, v70" for k in range(20)]
    L += [f"v_mul_f32 v72, v{U}, v{U}"] + [f"v_fmac_f32 v72, v{U+k}, v{U+k}" for k in range(1, 20)]
    L += reduce32(72, 73)
    L += [f"v_mov_b32 v73, {f32(1e-5)}", f"v_fmac_f32 v73, {f32(1/640)}, v72", "v_rsq_f32 v73, v73", f"v_mul_f32 v73, {f32(CS)}, v73"]
    L += [f"v_mul_f32 v{U+k}, v{U+k}, v73" for k in range(20)]
    for k in range(5):
        L += [f"v_cvt_pk_bf16_f32 v{40+2*k}, v{U+4*k}, v{U+4*k+1}", f"v_cvt_pk_bf16_f32 v{41+2*k}, v{U+4*k+2}, v{U+4*k+3}"]
    return L

def p0_ln(e):
    e(f"""
    v_lshrrev_b32 v54, 1, v52
    v_xor_b32 v54, v54, v39
    v_lshlrev_b32 v54, 4, v54
    v_lshl_add_u32 v54, v52, 7, v54
    s_and_b32 s{sT+2}, s{sW}, 1
    s_lshl_b32 s{sT+2}, s{sT+2}, 14
    v_add_u32 v{vCR}, s{sT+2}, v54
    v_xor_b32 v{vCR+1}, 64, v{vCR}
    v_add_u32 v{vCR2}, 0x20000, v{vCR}
    v_add_u32 v{vCR2+1}, 0x20000, v{vCR+1}
    v_lshrrev_b32 v55, 2, v52
    v_and_b32 v56, 1, v39
    v_lshl_add_u32 v56, v56, 2, v55
    v_lshlrev_b32 v56, 5, v56
    v_and_b32 v57, 3, v32
    v_lshlrev_b32 v57, 3, v57
    v_lshl_add_u32 v57, v55, 8, v57
    v_lshl_add_u32 v58, v39, 11, v57
    s_lshr_b32 s{sT+2}, s{sW}, 1
    s_lshl_b32 s{sT+2}, s{sT+2}, 13
    s_add_u32 s{sT+2}, s{sT+2}, 0x10000
    v_add_u32 v58, s{sT+2}, v58
    v_mul_u32_u24 v59, 3072, v39
    v_add_u32 v59, v59, v57
    v_add_u32 v59, {(88 if OPT.get('qc') else 96)*1024}, v59
    """)
    for i in range(8): e(f"v_xor_b32 v{vWQR+i}, {32*i}, v56\nv_add_u32 v{vWR+i}, v{vWQR+i}, v58")
    e0 = e
    if OPT.get("late"): e = LATE
    for i in range(8): e(f"v_add_u32 v{vWQR+i}, v{vWQR+i}, v59")
    if PC:
        for i in range(8): e(f"v_add_u32 v{vWR2+i}, 0x10000, v{vWR+i}")
    e(f"""
    v_lshrrev_b32 v60, 1, v55
    v_and_b32 v61, 1, v39
    v_lshl_add_u32 v60, v61, 1, v60
    v_lshlrev_b32 v60, 5, v60
    v_and_b32 v61, 3, v32
    v_lshlrev_b32 v61, 3, v61
    v_lshl_add_u32 v61, v55, 7, v61
    v_mul_u32_u24 v62, 3072, v39
    v_add3_u32 v61, v61, v62, 0
    v_add_u32 v61, {(88 if OPT.get('qc') else 96)*1024 + 2048}, v61
    """)
    for i in range(4):
        e(f"v_xor_b32 v62, {32*i}, v60\nv_add_u32 v{vW1R+i}, v62, v61")
    if not OPT.get("late"): e("s_waitcnt lgkmcnt(0)")
    e(f"s_mul_i32 s{sTAG}, s{sTAG}, 0x9E3779B1\ns_add_u32 s{sTAG}, s{sTAG}, 0x7F4A7C15")
    if W0: e(f"s_cmp_eq_u32 s{sW}, 0\ns_cselect_b32 s{sTAGW}, s{sTAG}, 0")
    e(f"""
    v_lshrrev_b32 v88, 1, v35
    v_mul_u32_u24 v88, 144, v88
    v_and_b32 v89, 1, v35
    v_lshl_add_u32 v88, v89, 3, v88
    v_lshl_add_u32 v88, v34, 4, v88
    s_lshl_b32 s{sT+2}, s{sW}, 5
    s_add_u32 s{sT+2}, s{sT+2}, 0x20000
    v_add_u32 v76, s{sT+2}, v88
    """)
    e(f"""
    v_lshlrev_b32 v126, 8, v37
    v_lshl_add_u32 v126, v38, 4, v126
    s_lshr_b32 s{sXS}, s2, 1
    s_mul_i32 s{sXS}, s{sXS}, 20480
    s_and_b32 s{sT+3}, s2, 1
    s_lshl_b32 s{sT+3}, s{sT+3}, 7
    s_add_u32 s{sXS}, s{sXS}, s{sT+3}
    s_lshl_b32 s{sT+3}, s{sW}, 11
    s_add_u32 s{sXS}, s{sXS}, s{sT+3}
    s_add_u32 s{sXS}, s{sXS}, {XS}
    s_add_u32 s{sXS+1}, s{sXS}, 8192
    s_add_u32 s{sXS+2}, s{sXS}, 16384
    s_cmp_ge_u32 s{sW}, 2
    s_cselect_b32 s{sXS+2}, {WS_END}, s{sXS+2}
    s_mul_i32 s{sT+5}, s{sW}, {8*144}
    s_add_u32 s{sT+5}, s{sT+5}, 0x20000
    v_mul_u32_u24 v77, 144, v37
    v_lshl_add_u32 v77, v38, 4, v77
    v_add_u32 v77, s{sT+5}, v77
    """)
    e(f"""
    s_lshl_b32 s{sQ}, s{sH}, 3
    s_add_u32 s{sQ}, s{sQ}, s{sIDX}
    s_mul_i32 s{sQ}, s{sQ}, {FS}
    s_add_u32 s{sQ}, s{sQ}, {FKV}
    s_lshl_b32 s{sQ+1}, s{sIDX}, 5
    s_add_u32 s{sQ+1}, s{sQ+1}, s{sH}
    s_mul_i32 s{sQ+1}, s{sQ+1}, {FS}
    s_add_u32 s{sQ+1}, s{sQ+1}, {FH}
    s_mul_i32 s{sQ+2}, s2, {FS}
    s_add_u32 s{sQ+2}, s{sQ+2}, {FXS}
    s_sub_u32 s{sQ+3}, s{sU}, 27
    s_mul_i32 s{sT+5}, s{sX}, 5
    s_add_u32 s{sQ+3}, s{sQ+3}, s{sT+5}
    v_mov_b32 v91, 0
    v_mov_b32 v92, 0x10000000
    v_lshl_add_u32 v93, v33, 6, v32
    v_cmp_eq_u32 vcc, 0, v93
    v_mov_b32 v{vTAG}, s{sTAG}
    v_and_b32 v127, 15, v32
    v_cndmask_b32 v{vSC}, v92, v91, vcc
    s_lshl_b32 s{sT+5}, s{sIDX}, 4
    s_sub_u32 s{sT+4}, 240, s{sT+5}
    v_and_b32 v93, 16, v32
    v_cmp_eq_u32 vcc, 0, v93
    v_mov_b32 v91, s{sT+5}
    v_mov_b32 v92, s{sT+4}
    v_cndmask_b32 v91, v92, v91, vcc
    v_add_u32 v127, v127, v91
    v_lshlrev_b32 v127, 7, v127
    """)

def p1_acc(T, i, j):
    if OPT.get("contig"):
        if T == "K": return 8 * (8 * (j >> 1) + 2 * (i >> 1) + (j & 1)) + 4 * (i & 1)
        return 8 * (8 * (j >> 1) + i) + 4 * (j & 1)
    if T == "K": return 8 * (8 * (i >> 1) + 4 * (j & 1) + (j >> 1)) + 4 * (i & 1)
    return 32 * i + 4 * j
def p1_units():
    U = []
    for n in range(32):
        off = n * 1024 if OPT.get("contig") else (n & 3) * 8192 + (n >> 2) * 1024
        ins = []
        for k in range(4):
            tr = vTR + 2 * (k & 1); src = 8 * n + 2 * k
            ins += [f"v_accvgpr_read_b32 v{tr}, a{src}", f"v_accvgpr_read_b32 v{tr+1}, a{src+1}", f"v_cvt_pk_bf16_f32 v{vPK+k}, v{tr}, v{tr+1}"]
        ins.insert(6, f"s_add_u32 s{sT+7}, s{sST}, {off & ~4095}")
        if OPT["kvst"] != "skip": ins.append((f"buffer_store_dwordx4 v[{vPK}:{vPK+3}], v{vL16}, s[{RWS}:{RWS+3}], s{sT+7} offen offset:{off & 4095} {OPT['kvst']}", "kv"))
        U.append(ins)
    return U

def _kind(y):
    if callable(y): return "call"
    if isinstance(y, tuple) and y[0] == "BG": y = y[1]
    return I(y[0] if isinstance(y, tuple) else y).kind
class Bg:
    def __init__(self): self.q = []
    def push(self, ins): self.q += list(ins)
    def place(self, fill, g0, g1, maxv=1, step=1):
        for g in range(g0, g1, step):
            n = 0
            while self.q and n < maxv:
                x = self.q[0]; t = x[0] if isinstance(x, tuple) else x
                k = I(t).kind if not callable(t) else "call"
                if k in ("vms", "vml") and (n > 0 or any(_kind(y) in ("vml", "vms") for y in fill[g])): break
                fill[g].append(("BG", self.q.pop(0)))
                if k in ("salu", "nop"): continue
                n += 1
                if k in ("vms", "vml"): break
    def flush(self, e):
        for x in self.q:
            t, tag = x if isinstance(x, tuple) else (x, None)
            q = I(t); e.need(q.rd | q.wr); e(t, tag)
        self.q = []

def run_gaps(e, mf, fill, nxt=None):
    f2 = []
    for g in range(len(mf)):
        a = [x for x in fill[g] if not (isinstance(x, tuple) and x[0] == "BG")]
        b = [x[1] for x in fill[g] if isinstance(x, tuple) and x[0] == "BG"]
        if b:
            def mk(b):
                def f(e):
                    for x in b:
                        t, tag = x if isinstance(x, tuple) else (x, None)
                        q = I(t); e.need(q.rd | q.wr); e(t, tag)
                f.last = True
                return f
            a.append(mk(b))
        f2.append(a)
    e.gaps(mf, f2, nxt)

def put_dma(fill, g, pair, tag):
    su, d = pair
    for x in reversed(su): fill[g - 1].append(x)
    fill[g].append((d, tag))

QC = OPT.get('qc', 0); WB = (88 if QC else 96) * 1024
def qh_wslot(sidx): return ((4, 5, 3, 2, 1, 0)[sidx % 6] if QC else (sidx + 3) % 5) * 12288
def qh_dmas(sidx, hasH, d=0):
    L = []
    u32 = lambda x: x & 0xffffffff
    for j in range(4):
        su = [f"s_add_u32 m0, s{sM0a}, {u32((sidx & 3) * 16384 + d * 8192)}", f"s_mov_b32 s{sT}, {XS + sidx * 1024 + d * 40960}"] if j == 0 else []
        L.append((su, f"buffer_load_dwordx4 v{vXD + j}, s[{RWS}:{RWS+3}], s{sT} offen offset:{j * 1024} lds"))
    for u in range(2):
        su = [f"s_add_u32 m0, s{sM0b}, {u32(qh_wslot(sidx) + d * 6144)}", f"s_mov_b32 s{sT+1}, {sidx * 32 * 8192 + d * 131072}"] if u == 0 else []
        L.append((su, f"buffer_load_dwordx4 v{vWQD + u}, s[{R0}:{R0+3}], s{sT+1} offen offset:{u * 1024} lds"))
    if hasH:
        L.append(([f"s_mov_b32 s{sT+2}, {sidx * 32 * 3456 + d * 55296}"], f"buffer_load_dwordx4 v{vW1D}, s[{R1}:{R1+3}], s{sT+2} offen offset:2048 lds"))
    return L
def qh_xread(sidx, j):
    b = XNB[sidx & 1] + 4 * j
    return f"ds_read_b128 v[{b}:{b+3}], v{vXR} offset:{(sidx & 3) * 16384 + j * 1024}"
def qh_wread(sidx, i, n):
    r = (n % 3) * 8 + (sidx & 1) * 4 if QC else (n & 3) * 4
    if i < 8: a, second = vWQR + i, 1024
    else: a, second = vW1R + i - 8, 512
    o = qh_wslot(sidx)
    return [f"ds_read_b64_tr_b16 a[{r}:{r+1}], v{a} offset:{o}", f"ds_read_b64_tr_b16 a[{r+2}:{r+3}], v{a} offset:{o + second}"]

def spin(e, lab, pollA, cond, limit=1000000, sleep=None):
    if sleep is None: sleep = OPT.get('slp', 2)
    e(f"s_mov_b32 s{sT+6}, {limit}\n{lab}:")
    pollA(e)
    e(f"s_cbranch_vccz {lab}_ok\ns_sub_u32 s{sT+6}, s{sT+6}, 1\ns_cmp_eq_u32 s{sT+6}, 0\ns_cbranch_scc1 {lab}_ok\ns_sleep {sleep}\ns_branch {lab}\n{lab}_ok:")

def qh_setup(e):
    L = []
    L += [f"s_lshl_b32 s{sQ+4}, s{sIDX}, 3", f"s_add_u32 s{sQ+4}, s{sQ+4}, s{sW}", f"s_mul_i32 s{sQ+4}, s{sQ+4}, 20480",
          f"s_sub_u32 s{sQ+5}, 15, s{sIDX}", f"s_lshl_b32 s{sQ+5}, s{sQ+5}, 3", f"s_add_u32 s{sQ+5}, s{sQ+5}, s{sW}", f"s_mul_i32 s{sQ+5}, s{sQ+5}, 20480"]
    L += [f"v_add_u32 v{vXD}, s{sQ+4}, v{vL16}", f"v_add_u32 v{vXD+1}, {4*20480 - 1024}, v{vXD}",
          f"v_add_u32 v{vXD+2}, s{sQ+5}, v{vL16}", f"v_add_u32 v{vXD+3}, {4*20480 - 3072}, v{vXD+2}", f"v_subrev_u32 v{vXD+2}, 2048, v{vXD+2}"]
    return L

STAMP = False
TS = FL + 0x40000
def stamp(e, k):
    if not STAMP or (OPT.get("lite") and k not in (0, 14)): return
    if k: e("s_memrealtime s[96:97]\ns_memtime s[98:99]")
    e(f"""s_waitcnt lgkmcnt(0)
    s_lshl_b32 s97, s2, 2
    s_add_u32 s97, s97, s{sW}
    s_lshl_b32 s97, s97, 8
    s_add_u32 s97, s97, {TS + 8 * k}
    s_mov_b64 s[100:101], exec
    s_mov_b64 exec, 1
    {"v_mov_b32 v122" if k == 3 else "v_accvgpr_write_b32 a194" if k >= 7 else "v_accvgpr_write_b32 a254"}, s96
    {"v_mov_b32 v123" if k == 3 else "v_accvgpr_write_b32 a195" if k >= 7 else "v_accvgpr_write_b32 a255"}, s98
    s_nop 1
    buffer_store_dwordx2 {"v[122:123]" if k == 3 else "a[194:195]" if k >= 7 else "a[254:255]"}, off, s[{RWS}:{RWS+3}], s97
    s_mov_b64 exec, s[100:101]
    s_nop 3""")

def header():
    ref = open("cdna_kernels/" + NAME + ".s.ref").read().split("\n")
    kern = "\n".join(x for x in ref[:15] if x.startswith(";"))
    return f"""{kern}
; @launch grid=(256,1,1) block=(256,1,1) lds=163840
;
; One persistent launch, one workgroup (4 waves, 512 registers each) per CU.  Generated by a hand-written Python emitter.
; Workgroup = (head h, index i).  Phases, all on v_mfma_f32_16x16x32_bf16 with LDS-DMA staging:
;   1  K,V = c_kv * W_uk,W_uv for 256 keys of head h, written to d_ws in MFMA fragment order; in its shadow the layernorm of
;      8 rows (scaled by log2(e)/sqrt(128), which the GELU constants undo again) is written to d_ws
;   3  causal attention of both query blocks.  Scores come out of the MFMA already shifted by a running reference that starts as
;      reference to the true maximum of that tile, rescales O and l and redoes the tile.  When the short block is finished,
; Hand-offs between workgroups: write-through stores, vmcnt wait, barrier, then a flag word holding a tag derived from an epoch
; word in d_ws (advanced at the end of the launch), so stale flags of earlier launches never match; no placement is assumed.
.amdgcn_target "amdgcn-amd-amdhsa--gfx950"
.text
.globl {NAME}_kernel
.p2align 8
.type {NAME}_kernel,@function
{NAME}_kernel:
"""
def footer():
    return f"""
.section .rodata,"a"
.p2align 6
.amdhsa_kernel {NAME}_kernel
  .amdhsa_next_free_vgpr 512
  .amdhsa_next_free_sgpr 102
  .amdhsa_accum_offset 256
  .amdhsa_group_segment_fixed_size 0
  .amdhsa_kernarg_size 112
  .amdhsa_user_sgpr_count 2
  .amdhsa_user_sgpr_kernarg_segment_ptr 1
  .amdhsa_system_sgpr_workgroup_id_x 1
.end_amdhsa_kernel
"""

def code_touch(a, b, nl, vt, dst):
    return [grp([f"s_getpc_b64 s[{sT+4}:{sT+5}]", f"LT_{a}_{code_touch.n}:", f"s_add_u32 s{sT+4}, s{sT+4}, {a}-LT_{a}_{code_touch.n}", f"s_addc_u32 s{sT+5}, s{sT+5}, {code_touch.hi(a)}",
                 f"s_lshr_b32 s{sT+6}, s2, 3", f"s_lshl_b32 s{sT+6}, s{sT+6}, 2", f"s_add_u32 s{sT+6}, s{sT+6}, s{sW}", f"s_lshl_b32 s{sT+6}, s{sT+6}, 7"]),
            f"v_lshlrev_b32 v{vt}, 10, v{vL16}", f"v_min_u32 v{vt}, {(nl - 1) << 14}, v{vt}", f"v_add_u32 v{vt}, s{sT+6}, v{vt}", f"v_min_u32 v{vt}, {b}-{a}-4, v{vt}",
            f"global_load_dword {dst}, v{vt}, s[{sT+4}:{sT+5}]"]
code_touch.n = 0
code_touch.hi = lambda a: 0
def grp_all(L):
    def f(e):
        for x in L: x(e) if callable(x) else e(x)
    return f
def grp(L):
    def f(e):
        for x in L: e(x)
    return f
vTK = 22
def tick_pre(e):
    if OPT.get("ticks"): e("s_memtime s[96:97]")
def tick_post(e):
    if OPT.get("ticks") == 2:
        e(f"s_memtime s[98:99]\ns_waitcnt lgkmcnt(0)\ns_lshl_b64 exec, 1, s71\nv_mov_b32 v{vTK}, s96\ns_lshl_b64 exec, 2, s71\nv_mov_b32 v{vTK}, s98\ns_mov_b64 exec, -1\ns_add_u32 s71, s71, 2\ns_and_b32 s71, s71, 63")
    elif OPT.get("ticks"):
        e(f"s_waitcnt lgkmcnt(0)\ns_lshl_b64 exec, 1, s71\nv_mov_b32 v{vTK}, s96\ns_mov_b64 exec, -1\ns_add_u32 s71, s71, 1")
def tick_dump(e, k):
    if OPT.get("ticks"):
        e(f"""s_lshl_b32 s97, s2, 2
        s_add_u32 s97, s97, s{sW}
        s_lshl_b32 s97, s97, 12
        s_add_u32 s97, s97, {FL + 0x100000 + 1024 * k}
        buffer_store_dword v{vTK}, v{vL16}, s[{RWS}:{RWS+3}], s97 offen
        s_mov_b32 s71, 0
        s_nop 1""")
def bar(vmtags=(), lg0=True):
    def f(e):
        tick_pre(e)
        e.need(vmtags=vmtags, lg0=lg0); e("s_barrier")
        tick_post(e)
    return f

def p1_pre(e):
    e0 = e
    if OPT.get("late"): e = LATE
    e(f"""
    s_mul_i32 s{sST}, s{sH}, {HS}
    s_lshl_b32 s{sT+2}, s{sIDX}, 16
    s_add_u32 s{sST}, s{sST}, s{sT+2}
    s_and_b32 s{sT+2}, s{sW}, 1
    s_lshl_b32 s{sT+2}, s{sT+2}, 15
    s_add_u32 s{sST}, s{sST}, s{sT+2}
    s_cmp_ge_u32 s{sW}, 2
    s_cselect_b32 s{sT+2}, {VF-KF}, 0
    s_add_u32 s{sST}, s{sST}, s{sT+2}
    s_add_u32 s{sST}, s{sST}, {KF}
    s_lshl_b32 s{sT+2}, s{sW}, 12
    v_add_u32 v{vXR}, s{sT+2}, v{vL16}
    """)
    e(f"""
    s_and_b32 s{sT+2}, s{sW}, 1
    s_lshl_b32 s{sT+3}, s{sT+2}, 7
    v_xor_b32 v94, s{sT+3}, v{vWD}
    s_lshl_b32 s{sT+3}, s{sW}, 16
    s_lshl_b32 s{sT+4}, s{sH}, 8
    s_add_u32 s{sT+3}, s{sT+3}, s{sT+4}
    v_add_u32 v{vWQD}, s{sT+3}, v94
    v_add_u32 v{vWQD+1}, 31744, v{vWQD}
    """)
    e(f"""
    v_and_b32 v94, 1, v39
    v_lshlrev_b32 v94, 1, v94
    s_lshl_b32 s{sT+3}, s{sT+2}, 2
    v_or_b32 v94, s{sT+3}, v94
    v_xor_b32 v94, v94, v38
    v_lshlrev_b32 v94, 4, v94
    v_mul_u32_u24 v95, 3456, v37
    v_add_u32 v94, v94, v95
    s_mul_i32 s{sT+3}, s{sW}, {8*3456}
    s_lshl_b32 s{sT+4}, s{sU}, 7
    s_add_u32 s{sT+3}, s{sT+3}, s{sT+4}
    v_add_u32 v{vW1D}, s{sT+3}, v94
    """)
    for x in qh_setup(e): e(x)
    e = e0
    if not OPT.get("wl"): warm(e, "a")
    for x, tag in PRO2()[OPT.get("np", 28) - 12:OPT.get("np2", 28) - 12]: emit_dma(e, x, tag)
    if OPT.get("wl"): warm(e, "a")
    e.need(vmtags=("c0", "w0", "w1") if PC else ("c0", "w0"), lg0=True)
    e("s_barrier")
    if PC:
        for x in p1_wread(0) + p1_wread(8): e(x)
        for j in range(8): e(p1_cread(j & 1, j)); e(p1_cread(1 - (j & 1), j))
        return
    for j in range(8): e(p1_cread(0, j))
    for n in range(2):
        for x in p1_wread(n): e(x)

def hacc(ft, j): return HACC + (j * 2 + (ft >> 1)) * 8 + (ft & 1) * 4
def qacc(i, j): return QACC + (j * 4 + (i >> 1)) * 8 + (i & 1) * 4
def bias_init():
    L = []
    for ft in range(4):
        d = hacc(ft, 3)
        for k in range(2):
            L += [f"v_lshlrev_b32 v{d+2*k}, 16, v{114+2*ft+k}", f"v_and_b32 v{d+2*k+1}, 0xffff0000, v{114+2*ft+k}",
                  f"v_mul_f32 v{d+2*k}, {f32(CS)}, v{d+2*k}", f"v_mul_f32 v{d+2*k+1}, {f32(CS)}, v{d+2*k+1}"]
    return L

def p1_cread(sidx, j):
    b = vCB[sidx & 1] + 4 * j
    sl = CSLOT[sidx >> 1]
    return f"ds_read_b128 v[{b}:{b+3}], v{(vCR2 if sl > 65535 else vCR) + (sidx & 1)} offset:{(sl & 65535) + j * 2048}"
def p1_wread(n):
    sidx, i = divmod(n, 8); r = vWWIN + 4 * (n & 3); o = p1_wslot(sidx); a = vWR + i
    if PC:
        r = vWWIN + 8 * (i & 1) + 4 * (sidx & 1)
        if o >= 65536: a, o = vWR2 + i, o - 65536
    return [f"ds_read_b64_tr_b16 v[{r}:{r+1}], v{a} offset:{o}", f"ds_read_b64_tr_b16 v[{r+2}:{r+3}], v{a} offset:{o+1024}"]

W0 = OPT.get("w0", 1) and not OPT.get("ticks")
sTAGW = 71 if W0 else sTAG
def async_check(lab, reg, reload, tag=None):
    def f(e):
        e.need(f"v{reg}")
        e(f"v_cmp_ne_u32 vcc, s{tag or sTAG}, v{reg}\ns_cbranch_vccz {lab}_ok")
        sv, sl = list(e.vm), list(e.lg)
        def poll(e):
            e(reload); e("s_waitcnt vmcnt(0)"); e(f"v_cmp_ne_u32 vcc, s{tag or sTAG}, v{reg}")
        spin(e, lab, poll, None)
        e.vm, e.lg = sv, sl
    return f
def flag_store(sreg): return f"buffer_store_dword v{vTAG}, v{vSC}, s[{RWS}:{RWS+3}], s{sreg} offen sc1"

PARK = {0: 20, 1: 28, 2: 16, 3: 24}
def park_units():
    L = []
    for n in (2, 3, 0, 1):
        for k in range(4):
            tr = vTR + 2 * (k & 1); src = 8 * n + 2 * k
            L += [f"v_accvgpr_read_b32 v{tr}, a{src}", f"v_accvgpr_read_b32 v{tr+1}, a{src+1}", f"v_cvt_pk_bf16_f32 v{vPK+k}, v{tr}, v{tr+1}"]
        L += [f"v_accvgpr_write_b32 a{PARK[n]+k}, v{vPK+k}" for k in range(4)]
    return L
def parked_stores():
    L = []
    for n in range(4):
        L += [f"s_add_u32 s{sT+7}, s{sST}, {n * 8192}", (f"buffer_store_dwordx4 a[{PARK[n]}:{PARK[n]+3}], v{vL16}, s[{RWS}:{RWS+3}], s{sT+7} offen sc1", "kv")]
    return L

def p1_main_c(e, T, bg):
    fills = [[[] for _ in range(64)] for _ in range(16)]
    at = lambda G: fills[G >> 6][G & 63]
    B = lambda m: 128 * m + 111
    Bp = lambda m: 128 * m + 15
    def put(L, G0, G1):
        st = (G1 - G0) // len(L); assert st >= 2, (G0, G1, len(L))
        for k, ((su, d), tag) in enumerate(L):
            for x in reversed(su): at(G0 + st * k - 1).append(x)
            at(G0 + st * k).append((d, tag))
    Wd = lambda s_: [(p1_wdma(s_, u), f"w{s_}") for u in range(4)]
    Cd = lambda j: [(p1_cdma(j, q), f"c{j}") for q in range(8)]
    xl = [(([], f"buffer_load_dwordx2 v[{40+2*k}:{41+2*k}], v36, s[{R0}:{R0+3}], s89 offen offset:{256*k}"), "x") for k in range(5)]
    bl = [(([], f"buffer_load_dwordx2 v[{114+2*ft}:{115+2*ft}], v151, s[{R3}:{R3+3}], s90 offen offset:{32*ft}"), "b1") for ft in range(4)]
    def tch(k):
        su = [grp([f"s_mov_b32 s{R3}, s{pW1}", f"s_and_b32 s{R3+1}, s{pW1+1}, 0xffff", f"s_mov_b32 s{R3+2}, {640*3456}", f"s_mov_b32 s{R3+3}, 0x20000"])] if k == 0 else [f"s_add_u32 s94, s94, {4*3456}"]
        return [(([] if k == 0 else [f"s_add_u32 s93, s93, {4*8192}"], f"buffer_load_dword v149, v140, s[84:87], s93 offen"), "tc"), ((su, f"buffer_load_dword v150, v145, s[{R3}:{R3+3}], s94 offen"), "tc")]
    xst = [(([], f"buffer_store_dwordx4 v[{128+4*k}:{131+4*k}], v126, s[{RWS}:{RWS+3}], s{sXS+k} offen sc1"), "xs") for k in range(3)]
    PXL = f"buffer_load_dword v122, v127, s[{RWS}:{RWS+3}], s{sT+5} offen sc1"
    pxs = [(([grp([f"s_mov_b32 s{sT+5}, {WS_END}", f"s_cmp_eq_u32 s{sW}, 0", f"s_cselect_b32 s{sT+5}, {FXS}, s{sT+5}"]) if W0 else f"s_mov_b32 s{sT+5}, {FXS}"], PXL), "pa")]
    Q = lambda k: [(d, f"q{k}") for d in qh_dmas(k, True)]
    put(PRO2()[OPT.get("np2", 28) - 12:] + Wd(3), 2, 14)
    put(Wd(4) + Wd(5) + Cd(2) + xl + bl, Bp(0) + 2, B(0) - 1)
    put(Wd(6) + Wd(7), B(0) + 2, Bp(1) - 1)
    put(Cd(3) + tch(0) + tch(1), Bp(1) + 2, B(1) - 30)
    put(Wd(8) + Wd(9), B(1) + 2, Bp(2) - 1)
    put(Cd(4) + tch(2) + tch(3), Bp(2) + 2, B(2) - 30)
    put(tch(4), B(2) + 2, B(2) + 10)
    put(Cd(5) + xst, Bp(3) + 2, B(3) - 40)
    put(Wd(10) + Wd(11), B(3) + 2, Bp(4) - 1)
    put([(([], flag_store(sQ + 2)), "fl")] + Wd(12) + Wd(13) + Cd(6), Bp(4) + 2, B(4) - 10)
    put(Wd(14) + Wd(15), B(4) + 2, Bp(5) - 1)
    put(Cd(7), Bp(5) + 2, B(5) - 50)
    put(pxs, B(5) - 30, B(5) - 28)
    put(Q(0) + Q(1), Bp(6) + 3, B(6) - 20)
    put(Q(2) + Q(3), Bp(7) + 2, Bp(7) + 44)
    for m in range(8):
        for i in range(8):
            m2, i2 = divmod(8 * m + i + 1, 8)
            if m2 < 8:
                for k, x in enumerate(p1_wread(16 * m2 + i2) + p1_wread(16 * m2 + 8 + i2)): at(128 * m + 16 * i + 2 * k).append(x)
        if m < 7:
            for j in range(8):
                for z in range(2): at(128 * m + 112 + 2 * j + z).append(p1_cread(2 * m + 2 + (z ^ (j & 1)), j))
            at(B(m)).append(bar([f"w{2*m+2}", f"w{2*m+3}", f"c{m+1}"]))
        if m == 6: at(Bp(m)).append(async_check(f"L_sa{T}", 122, PXL, sTAGW))
        at(Bp(m)).append(bar(["xs"] if m == 4 else []))
    f = fills[15]
    f[47].append(bar(["q0", "q1"]))
    R_ = [qh_xread(z, j) for j in range(4) for z in range(2)] + [x for n in range(2) for z in range(2) for x in qh_wread(z, n, n)]
    assert QC
    for k, x in enumerate(bias_init()): fills[8 + (k >> 4)][20 + 2 * (k & 15)].append(x)
    place_list(LATE.l, fills, 0, 0, 64, (2, 0))
    lb = Bg(); lb.push(ln_ops())
    for ks in range(2, 5): lb.place(fills[ks], 8 if ks == 2 else 0, 64)
    lb.place(fills[5], 0, 46); assert not lb.q, len(lb.q)
    for k in range(5): at(B(2) + 18 + 2 * k).append(f"ds_write_b64 v76, v[{40+2*k}:{41+2*k}] offset:{k*2304}")
    for k in range(3): at(Bp(3) + 10 + 2 * k).append(f"ds_read_b128 v[{128+4*k}:{131+4*k}], v77 offset:{4608*k}")
    qs = [f"s_mov_b32 s{R0}, s{pWQ}", f"s_and_b32 s{R0+1}, s{pWQ+1}, 0xffff", f"s_mov_b32 s{R0+2}, {640*8192}", f"s_mov_b32 s{R0+3}, 0x20000",
          f"s_sub_u32 s{R1}, s{pW1}, 2048", f"s_subb_u32 s{R1+1}, s{pW1+1}, 0", f"s_and_b32 s{R1+1}, s{R1+1}, 0xffff",
          f"s_cmp_lt_u32 s{sU}, 27", f"s_cselect_b32 s{R1+2}, {640*3456 + 2048}, 0", f"s_mov_b32 s{R1+3}, 0x20000",
          f"s_lshl_b32 s{sM0a}, s{sW}, 12", f"s_mul_i32 s{sM0b}, s{sW}, 3072", f"s_add_u32 s{sM0b}, s{sM0b}, {WB}"]
    fills[12][2].append(grp(qs[:4])); fills[12][6].append(grp(qs[4:10])); fills[12][10].append(grp(qs[10:]))
    bg.push([x for u in p1_units() for x in u])
    bg.place(fills[14], 60, 64); bg.place(fills[15], 0, 64)
    allm = []
    for m in range(8):
        for i in range(8):
            for j in range(8):
                for z in range(2):
                    sp = z ^ (j & 1); d = p1_acc(T, i, j); w = vWWIN + 8 * (i & 1) + 4 * sp; c = vCB[sp] + 4 * j
                    A, B_ = (w, c) if T == "K" else (c, w)
                    allm.append(f"{MF} a[{d}:{d+3}], v[{A}:{A+3}], v[{B_}:{B_+3}], " + ("0" if (m == 0 and z == 0) else f"a[{d}:{d+3}]"))
    for j in range(8):
        f[48 + 2 * j + (j & 1)].append(qh_xread(j >> 2, j & 3)); f[49 + 2 * j - (j & 1)].append(R_[8 + j])
    for sidx in range(16):
        run_gaps(e, allm[64 * sidx:64 * sidx + 64], fills[sidx], allm[64 * sidx + 64] if sidx < 15 else None)

def p1_main(e, T, bg):
    if PC: return p1_main_c(e, T, bg)
    fills = [[[] for _ in range(64)] for _ in range(16)]
    LNE = OPT.get("lne", 6)
    def pos(ep):
        p = [(ep - 1, g) for g in (50, 54, 58, 62)] + [(ep, g) for g in (range(2, 47, OPT.get("sp0", 2)) if ep == 0 else range(2, 47, 3 if ep < 7 else 4) if ep < 15 else range(2, 30, 3))]
        return [x for x in p if 0 <= x[0] < 16]
    for ep in range(0, 16):
        L = []
        cj = ({0: 2, 1: 3, 3: 4, 7: 5, 9: 6, 11: 7} if OPT.get("cs", 0) == 0 else {1: 2, 2: 3, 4: 4, 7: 5, 9: 6, 11: 7} if OPT["cs"] == 1 else {0: 2, 2: 3, 4: 4, 7: 5, 9: 6, 11: 7}).get(ep)
        Lc = [(p1_cdma(cj, q), f"c{cj}") for q in range(8)] if cj else []
        Lw = [(p1_wdma(ep + 3, u), f"w{ep+3}") for u in range(4)] if ep + 3 < 16 else []
        if ep == 0: L += PRO2()[OPT.get("np2", 28) - 12:]
        L += Lw + Lc if ep < 5 else Lc + Lw
        if ep == OPT.get("xe", 0):
            L += [(([], f"buffer_load_dwordx2 v[{40+2*k}:{41+2*k}], v36, s[{R0}:{R0+3}], s89 offen offset:{256*k}{NT('xnt')}"), "x") for k in range(5)]
        if ep == OPT.get("be", 2):
            L += [(([], f"buffer_load_dwordx2 v[{114+2*ft}:{115+2*ft}], v151, s[{R3}:{R3+3}], s90 offen offset:{32*ft}{NT('xnt')}"), "b1") for ft in range(4)]
        if OPT.get("tsp") and OPT.get("te", 2) <= ep < OPT.get("te", 2) + 5 * OPT["tsp"] and (ep - OPT.get("te", 2)) % OPT["tsp"] == 0:
            su = [grp([f"s_mov_b32 s{R3}, s{pW1}", f"s_and_b32 s{R3+1}, s{pW1+1}, 0xffff", f"s_mov_b32 s{R3+2}, {640*3456}", f"s_mov_b32 s{R3+3}, 0x20000"])] if ep == OPT.get("te", 2) else [f"s_add_u32 s94, s94, {4*3456}"]
            L += [(([] if ep == OPT.get("te", 2) else [f"s_add_u32 s93, s93, {4*8192}"], f"buffer_load_dword v149, v140, s[84:87], s93 offen"), "tc"),
                  ((su, f"buffer_load_dword v150, v145, s[{R3}:{R3+3}], s94 offen"), "tc")]
        if ep == OPT.get("ce", 99):
            code_touch.n += 1
            ct = code_touch("L_qhH", "L_code_end", 7, 154, "v155")
            L += [(([grp_all(ct[:-1])], ct[-1]), "tc")]
        if ep == OPT.get("te", 2) and not OPT.get("tsp") and not OPT.get("tcon"):
            L += [(([], f"buffer_load_dword v149, v140, s[84:87], s93 offen{NT('tnt')}"), "tc"),
                  (([grp([f"s_mov_b32 s84, s{pW1}", f"s_and_b32 s85, s{pW1+1}, 0xffff", f"s_mov_b32 s86, {640*3456}", "s_mov_b32 s87, 0x20000"])], f"buffer_load_dword v150, v145, s[84:87], s94 offen{NT('tnt')}"), "tc")]
        if ep == LNE: L += [(([], f"buffer_store_dwordx4 v[{128+4*k}:{131+4*k}], v126, s[{RWS}:{RWS+3}], s{sXS+k} offen sc1"), "xs") for k in range(3)]
        if ep == LNE + 2: L += [(([], flag_store(sQ + 2)), "fl")]
        if ep == 11: L += [(([grp([f"s_mov_b32 s{sT+5}, {WS_END}", f"s_cmp_eq_u32 s{sW}, 0", f"s_cselect_b32 s{sT+5}, {FXS}, s{sT+5}"]) if W0 else f"s_mov_b32 s{sT+5}, {FXS}"], f"buffer_load_dword v122, v127, s[{RWS}:{RWS+3}], s{sT+5} offen sc1"), "pa")]
        if ep == 13: L += [(d, "q0") for d in qh_dmas(0, True)]
        if ep == 14: L += [(d, "q1") for d in qh_dmas(1, True)]
        if ep == 15: L += [(d, "q2") for d in qh_dmas(2, True)] + [(d, "q3") for d in qh_dmas(3, True)]
        P = pos(ep); assert len(L) <= len(P)
        for (d, tag), (ks, g) in zip(L, P): put_dma(fills[ks], g, d, tag)
    for sidx in range(16):
        f = fills[sidx]
        for i in range(8):
            n = 8 * sidx + i + 2
            if n < 128:
                a, b = p1_wread(n); f[8 * i].append(a); f[8 * i + 1].append(b)
        if sidx < 15:
            for j in range(8): f[3 + 4 * j].append(p1_cread(sidx + 1, j))
            tags = [f"w{sidx+1}", f"c{(sidx+2)>>1}"]
            if sidx == LNE + 1: tags.append("xs")
            if sidx == 12:
                f[47].append(async_check(f"L_sa{T}", 122, f"buffer_load_dword v122, v127, s[{RWS}:{RWS+3}], s{sT+5} offen sc1", sTAGW))
            f[47].append(bar(tags))
        else:
            f[47].append(bar(["q0", "q1"]))
            if QC:
                R_ = [qh_xread(z, j) for j in range(4) for z in range(2)] + [x for n in range(2) for z in range(2) for x in qh_wread(z, n, n)]
                for k, x in enumerate(R_): f[48 + k].append(x)
            else:
                for j in range(4): f[49 + 2 * j].append(qh_xread(0, j))
                for n in range(3):
                    a, b = qh_wread(0, n, n); f[56 + 2 * n].append(a); f[57 + 2 * n].append(b)
    for k, x in enumerate(bias_init()): fills[8 + (k >> 4)][32 + (k & 15) + ((k & 15) == 15)].append(x)
    if OPT.get("late"): place_list(LATE.l, fills, 0, 0, 64, (2, 0))
    lb = Bg(); lb.push(ln_ops())
    LNK = OPT.get("lnk", 4)
    for ks in range(LNE - LNK, LNE): lb.place(fills[ks], 0, 64 if ks < LNE - 1 else 20, maxv=1 if LNK >= 4 else 2)
    assert not lb.q and LNE >= 6, len(lb.q)
    for k in range(5): fills[LNE - 1][22 + 4 * k].append(f"ds_write_b64 v76, v[{40+2*k}:{41+2*k}] offset:{k*2304}")
    for k in range(3): fills[LNE - 1][51 + 4 * k].append(f"ds_read_b128 v[{128+4*k}:{131+4*k}], v77 offset:{4608*k}")
    qs = [f"s_mov_b32 s{R0}, s{pWQ}", f"s_and_b32 s{R0+1}, s{pWQ+1}, 0xffff", f"s_mov_b32 s{R0+2}, {640*8192}", f"s_mov_b32 s{R0+3}, 0x20000",
          f"s_sub_u32 s{R1}, s{pW1}, 2048", f"s_subb_u32 s{R1+1}, s{pW1+1}, 0", f"s_and_b32 s{R1+1}, s{R1+1}, 0xffff",
          f"s_cmp_lt_u32 s{sU}, 27", f"s_cselect_b32 s{R1+2}, {640*3456 + 2048}, 0", f"s_mov_b32 s{R1+3}, 0x20000",
          f"s_lshl_b32 s{sM0a}, s{sW}, 12", f"s_mul_i32 s{sM0b}, s{sW}, 3072", f"s_add_u32 s{sM0b}, s{sM0b}, {WB}"]
    fills[12][4].append(grp(qs[:4])); fills[12][10].append(grp(qs[4:10])); fills[12][14].append(grp(qs[10:]))
    if OPT.get("contig"):
        U = p1_units()
        bg.push(U[0] + U[1]); bg.place(fills[15], 24, 46, maxv=2); assert not bg.q
        bg.push(U[2] + U[3]); bg.place(fills[15], 48, 64, maxv=2)
        bg.push([x for u in U[4:] for x in u])
    elif T == "K" or OPT.get("norole"):
        bg.push([x for u in p1_units() for x in u])
        bg.place(fills[15], 24, 46, maxv=2); bg.place(fills[15], 48, 64, maxv=2)
    else:
        bg.push(park_units())
        bg.place(fills[15], 19, 46, maxv=2); bg.place(fills[15], 48, 55, maxv=2)
        assert not bg.q
        bg.push(parked_stores() + [x for u in p1_units()[4:] for x in u])
    mfs = []
    for sidx in range(16):
        mf = []
        for i in range(8):
            for j in range(8):
                d = p1_acc(T, i, j); w = vWWIN + 4 * ((8 * sidx + i) & 3); c = vCB[sidx & 1] + 4 * j
                A, B = (w, c) if T == "K" else (c, w)
                mf.append(f"{MF} a[{d}:{d+3}], v[{A}:{A+3}], v[{B}:{B+3}], " + ("0" if sidx == 0 else f"a[{d}:{d+3}]"))
        mfs.append(mf)
    for sidx in range(16):
        run_gaps(e, mfs[sidx], fills[sidx], mfs[sidx + 1][0] if sidx < 15 else None)

vKVD = vXR
sKo, sVo, sMK, sMV = 76, 77, 78, 79
def kv_dma(kind, static_pair=None):
    so, mb, rs = (sKo, sMK, R2) if kind == "K" else (sVo, sMV, R3)
    L = []
    for k in range(4):
        su = []
        if k == 0:
            su = [f"s_add_u32 m0, s{sT+3}, s{mb}", f"s_and_b32 s{sT+3}, s{so}, 0xc000"]
        L.append((su, f"buffer_load_dwordx4 v{vKVD}, s[{rs}:{rs+3}], s{so} offen offset:{k*1024} {OPT.get('kvld', '')} lds".replace("  ", " ")))
    return L, f"s_add_u32 s{so}, s{so}, 16384"

def qh_main(e, T, hasH, bg):
    NI = 12 if hasH else 8; NG = 4 * NI; LA = 3
    NA = OPT.get("na", 7); BKV = OPT.get("bkv", 16); RATE = OPT.get("rate", 2) if hasH else 2
    fills = [[[] for _ in range(NG)] for _ in range(20)]
    bp = NG - 4 * LA - 1
    st = 3 if hasH else 2
    def pos(ep):
        p = [(ep - 1, g) for g in range(bp + 2, NG, st)] + [(ep, g) for g in range(5 if ep == 0 else 2, bp, st)]
        return [x for x in p if 0 <= x[0] < 20]
    pend = []; lastdma = None
    if QC:
        at = lambda G: fills[G // NG][G % NG]
        XD_ = OPT.get("xd", 0); xa = lambda st_, j: 32 + 16 * ((st_ - 4) % 6) + 4 * j
        bG = lambda m: 2 * NG * m + 8 * (NI - 2) - 1
        for m in range(8):
            a, b = qh_dmas(2 * m + 4, hasH), qh_dmas(2 * m + 5, hasH)
            if XD_:
                for st_, q in ((2 * m + 4, a), (2 * m + 5, b)):
                    for j in range(4):
                        q[j] = ([x for x in q[j][0] if "m0" not in x], q[j][1].replace("buffer_load_dwordx4 ", f"buffer_load_dwordx4 a[{xa(st_, j)}:{xa(st_, j)+3}], ").replace(" lds", ""))
            L = a[4:] + b[4:] + a[:4] + b[:4]
            G0 = bG(m - 1) + 3 if m else 2
            stp = (bG(m) - 2 - G0) // len(L)
            for k, (su, d) in enumerate(L):
                G = G0 + stp * k
                if XD_ and k >= len(L) - 8: G = bG(m) - 1 - 3 * (len(L) - k)
                for x in reversed(su): at(G - 1).append(x)
                at(G).append((d, f"q{m+2}p" if " lds" in d else None))
        for m in range(10):
            for i in range(NI):
                m2, i2 = divmod(NI * m + i + 2, NI)
                if m2 < 10:
                    for k, x in enumerate(qh_wread(2 * m2, i2, NI * m + i + 2) + qh_wread(2 * m2 + 1, i2, NI * m + i + 2)): at(2 * NG * m + 8 * i + 2 * k).append(x)
            if m < 9:
                for j in range(4 if (m == 0 or not XD_) else 0):
                    for z in range(2): at(2 * NG * m + 8 * (NI - 1) + 2 * j + z).append(qh_xread(2 * m + 2 + (z ^ (j & 1)), j))
                at(bG(m)).append(bar((["q2", "q3"] if m == 0 else [f"q{m+1}p"]) + (["kv"] if m == OPT.get("kvb", 8) else [])))
        at(bG(OPT.get("kvb", 8)) + 2).append((flag_store(sQ), "fl"))
    for ep in range(0, 0 if QC else 16):
        if OPT.get("norole"):
            a = qh_dmas(ep + 4, hasH)
            pend += [(d, f"q{ep+4}x") for d in a[:4]] + [(d, f"q{ep+4}") for d in a[4:]]
        elif (ep < NA) == (T == "V"):
            a, b = qh_dmas(ep + 4, hasH), qh_dmas(ep + 4, hasH, 1 if T == "K" else -1)
            pend += [(d, f"q{ep+4}x") for d in a[:4] + b[:4]] + [(d, f"q{ep+4}") for d in a[4:] + b[4:]]
        for ks, g in pos(ep):
            if pend:
                d, tag = pend.pop(0); put_dma(fills[ks], g, d, tag); lastdma = (ks, g)
    assert not pend
    for sidx in range(0 if QC else 20):
        f = fills[sidx]
        for i in range(NI):
            s2, i2 = divmod(NI * sidx + i + LA, NI)
            if s2 < 20:
                a, b = qh_wread(s2, i2, NI * sidx + i + LA); f[4 * i].append(a); f[4 * i + 1].append(b)
        if sidx < 19:
            for j in range(4): f[3 + 4 * j].append(qh_xread(sidx + 1, j))
            tags = [f"q{sidx+1}", f"q{sidx+2}x"]
            if sidx + 2 <= 3: tags.append(f"q{sidx+2}")
            if sidx == BKV: tags.append("kv")
            f[bp].append(bar(tags))
    if not QC: fills[BKV][bp + 2].append((flag_store(sQ), "fl"))
    assert BKV == 17
    qs = [f"s_mul_i32 s{sT+4}, s{sH}, {HS}", f"s_add_u32 s{sT+5}, s{sT+4}, {KF}", f"s_add_u32 s{R2}, s{pWS}, s{sT+5}", f"s_addc_u32 s{R2+1}, s{pWS+1}, 0",
          f"s_and_b32 s{R2+1}, s{R2+1}, 0xffff", f"s_sub_u32 s{R2+2}, 16, s{sIDX}", f"s_lshl_b32 s{R2+2}, s{R2+2}, 15", f"s_mov_b32 s{R2+3}, 0x20000",
          f"s_add_u32 s{sT+5}, s{sT+4}, {VF}", f"s_add_u32 s{R3}, s{pWS}, s{sT+5}", f"s_addc_u32 s{R3+1}, s{pWS+1}, 0",
          f"s_and_b32 s{R3+1}, s{R3+1}, 0xffff", f"s_mov_b32 s{R3+2}, s{R2+2}", f"s_mov_b32 s{R3+3}, 0x20000",
          f"s_mov_b32 s{sKo}, 0", f"s_mov_b32 s{sVo}, 0", f"s_lshl_b32 s{sMK}, s{sW}, 12", f"s_add_u32 s{sMV}, s{sMK}, 0x10000",
          f"s_mul_i32 s{sPK}, s{sH}, {8*FS}", f"s_add_u32 s{sPK}, s{sPK}, {FKV}"]
    fills[16][2].append(grp(qs[:8])); fills[16][6].append(grp(qs[8:14])); fills[16][10].append(grp(qs[14:]))
    fills[19][2].append(f"v_lshlrev_b32 v{vTR}, 3, v{vL16}"); fills[19][6].append(f"v_and_b32 v{vTR}, {7*FS}, v{vTR}")
    if OPT.get("pk19") and hasH: fills[19][OPT["pk19"]].append(PKL)
    hs = [f"s_mul_i32 s{sHA}, s{sIDX}, {54*8192}", f"s_lshl_b32 s{sT+5}, s{sU}, 14", f"s_add_u32 s{sT+5}, s{sT+5}, {HF}", f"s_lshl_b32 s{sT+4}, s{sW}, 10",
          f"s_add_u32 s{sT+5}, s{sT+5}, s{sT+4}", f"s_add_u32 s{sHA}, s{sHA}, s{sT+5}", f"s_sub_u32 s{sHB}, 15, s{sIDX}", f"s_mul_i32 s{sHB}, s{sHB}, {54*8192}",
          f"s_add_u32 s{sHB}, s{sHB}, s{sT+5}"] if hasH else [f"s_mov_b32 s{sHA}, {WS_END}", f"s_mov_b32 s{sHB}, {WS_END}"]
    fills[16][14].append(grp(hs))
    if OPT.get("cpf2") and hasH:
        code_touch.n += 1
        for k, x in enumerate(code_touch("L_attn", "L_p5", 3, vPK, f"v{vPK+1}")): fills[17][2 + 2 * k].append(x)
    if T == "K" or OPT.get("norole"): k0, g0 = 0, 0
    else: k0, g0 = lastdma[0], lastdma[1] + 1
    for sidx in range(k0, BKV):
        bg.place(fills[sidx], g0 if sidx == k0 else 0, NG, maxv=RATE, step=OPT.get("bstep", 1) if (hasH and sidx >= OPT.get("bfast", 0)) else 1)
    assert not bg.q, len(bg.q)
    if hasH:
        lastbg = max((ks, g) for ks in range(20) for g in range(NG) if any(isinstance(x, tuple) and x[0] == "BG" for x in fills[ks][g]))
        assert lastbg < (BKV - 1, NG - 6) and lastbg < (2 * OPT.get("kvb", 8) + 1, 10), lastbg
        place_early(fills, BKV - 1, NG - 6, NG)
    mfs = []
    for sidx in range(20):
        mf = []
        for i in range(NI):
            w = ((NI * sidx + i) & 3) * 4
            for j in range(4):
                d = qacc(i, j) if i < 8 else hacc(i - 8, j)
                x = XNB[sidx & 1] + 4 * j
                if sidx: c = f"v[{d}:{d+3}]"
                elif i < 8: c = "0"
                else: c = v(hacc(i - 8, 3), 4)
                mf.append(f"{MF} v[{d}:{d+3}], a[{w}:{w+3}], v[{x}:{x+3}], {c}")
        mfs.append(mf)
    if QC:
        allm = []
        for m in range(10):
            for i in range(NI):
                for j in range(4):
                    for z in range(2):
                        sp = z ^ (j & 1); w = ((NI * m + i) % 3) * 8 + 4 * sp; x = XNB[sp] + 4 * j
                        d = qacc(i, j) if i < 8 else hacc(i - 8, j)
                        c = v(d, 4) if (m or z) else "0" if i < 8 else v(hacc(i - 8, 3), 4)
                        xo = ac(xa(2 * m + sp, j), 4) if (XD_ and m >= 2) else v(x, 4)
                        allm.append(f"{MF} v[{d}:{d+3}], a[{w}:{w+3}], {xo}, {c}")
        mfs = [allm[k * NG:(k + 1) * NG] for k in range(20)]
    for sidx in range(20):
        run_gaps(e, mfs[sidx], fills[sidx], mfs[sidx + 1][0] if sidx < 19 else None)
    e.vm = e.vm[-1:] if (OPT.get("pk19") and hasH) else []
sPK = 83; sHA, sHB = 74, 75
PKL = f"buffer_load_dword v{vTR+1}, v{vTR}, s[{RWS}:{RWS+3}], s{sPK} offen sc1"
def kv_prologue_list():
    L = []
    for kind, tag in (("K", "k0"), ("V", "v0"), ("K", "k1"), ("K", "k2"), ("V", "v1"), ("K", "k3")):
        D, inc = kv_dma(kind)
        for k, (su, d) in enumerate(D):
            L.append((list(reversed(su)), d, tag, [inc] if k == 3 else []))
    return L
def sprinkle(e, ops, dm, every):
    for k, x in enumerate(ops):
        if dm and k % every == 0:
            for y in dm[0][0]: e(y)
        e(x)
        if dm and k % every == 0:
            su, d, tag, post = dm.pop(0); e(d, tag=tag)
            for y in post: e(y)
def flush_dma(e, dm):
    for su, d, tag, post in dm:
        for y in su: e(y)
        if su: e("s_nop 0")
        e(d, tag=tag)
        for y in post: e(y)
    dm.clear()

def check_drain_order(e):
    written = set()
    for i in e.l:
        if i.kind in ("dsr", "vml"): written |= {r for r in i.wr if r[0] == "a"}
        if i.mn == "v_accvgpr_read_b32" and (i.rd & written): raise AssertionError("drain order " + i.t)
        if i.mn == "v_accvgpr_write_b32": written |= i.wr

def q_pack(e):
    for n in range(16):
        for k in range(4):
            e(f"v_cvt_pk_bf16_f32 v{QACC + 4*n + k}, v{QACC + 8*n + 2*k}, v{QACC + 8*n + 2*k + 1}")

HPK = 192
def gelu(e, lab):
    a = -2.0 * math.sqrt(2.0 / math.pi) * math.log2(math.e)
    k1 = a / CS; k2 = a * 0.044715 / CS ** 3
    GP = OPT.get("gp", 3); dm = []
    e(f"s_mov_b32 s56, {f32(k2)}\ns_mov_b32 s57, {f32(k2)}\ns_mov_b32 s60, {f32(CS)}\ns_mov_b32 s61, {f32(CS)}")
    e(f"v_mov_b32 v160, {f32(k1)}\nv_mov_b32 v161, {f32(k1)}\nv_mov_b32 v162, {f32(CS)}\nv_mov_b32 v163, {f32(CS)}")
    for n in range(8):
        if n == max(0, GP - 2) and not OPT.get("pk19"): e(PKL)
        if n == GP: async_check(lab, vTR + 1, PKL)(e); dm = kv_prologue_list()
        b = HACC + 8 * n; t = 164 + 8 * (n & 1); L = []
        L += [f"v_pk_mul_f32 v[{t+2*k}:{t+2*k+1}], v[{b+2*k}:{b+2*k+1}], v[{b+2*k}:{b+2*k+1}]" for k in range(4)]
        L += [f"v_pk_fma_f32 v[{t+2*k}:{t+2*k+1}], v[{t+2*k}:{t+2*k+1}], s[56:57], v[160:161]" for k in range(4)]
        L += [f"v_pk_mul_f32 v[{t+2*k}:{t+2*k+1}], v[{t+2*k}:{t+2*k+1}], v[{b+2*k}:{b+2*k+1}]" for k in range(4)]
        L += [f"v_exp_f32 v{t+k}, v{t+k}" for k in range(8)]
        L += [f"v_pk_fma_f32 v[{t+2*k}:{t+2*k+1}], v[{t+2*k}:{t+2*k+1}], s[60:61], v[162:163]" for k in range(4)]
        L += [f"v_rcp_f32 v{t+k}, v{t+k}" for k in range(8)]
        L += [f"v_pk_mul_f32 v[{t+2*k}:{t+2*k+1}], v[{t+2*k}:{t+2*k+1}], v[{b+2*k}:{b+2*k+1}]" for k in range(4)]
        L += [f"v_cvt_pk_bf16_f32 v{t+k}, v{t+2*k}, v{t+2*k+1}" for k in range(4)]
        L += [f"v_accvgpr_write_b32 a{HPK+4*n+k}, v{t+k}" for k in range(4)]
        sprinkle(e, L, dm, 11)
    return dm
def h_store(n):
    j, up = n >> 1, n & 1
    return ([f"s_add_u32 s{sT+7}, s{sHA + (j >> 1)}, {(j & 1) * 4096 + up * 8192}"],
            f"buffer_store_dwordx4 a[{HPK+4*n}:{HPK+4*n+3}], v{vL16}, s[{RWS}:{RWS+3}], s{sT+7} offen sc1")

def Qr(j, t): return 96 + (4 * j + t) * 4
QP = 224
def Sr(b, j, kt=0): return 160 + 32 * b + 8 * j + 4 * kt
def Pr(b, j): return 224 + 16 * b + 4 * j
def NEGM(j): return 32 + 4 * j
TRI = 48
def CT(k, kt): return (64, 52)[k] + 4 * kt
vMWo, vMRo, vMWs, vMRs = 60, 61, 62, 63
TT = 72
def LT(b, j): return 76 + 4 * b + j
def LL(j): return 84 + j
vCHK = 88
def Or(j, dt): return 32 * j + 4 * dt
FK, FV = 128, 160
vKR, vVR = 2, 3
vPN, vQW, vQR, vNW, vNR = 6, 8, 9, 12, 13
sTHR, sCNT, sRET, sCA, sCB, sP8K = 90, 91, 92, 94, 95, 89
BIG = f32(-1e30)
SEL = {k: r for k, r in zip([(m, kt) for m in range(4) for kt in range(2)], (10, 12, 14, 16, 20, 22, 24, 32))}

def attn_setup(e0, dm):
    L = []
    class C:
        def __call__(self, t, tag=None): L.extend(x.strip() for x in t.strip().split("\n") if x.strip())
    _attn_setup(C())
    G = []
    for x in L:
        if G and (x.startswith(("s_addc", "s_subb", "s_cselect")) or G[-1].split("\n")[-1].startswith("s_nop")): G[-1] += "\n" + x
        else: G.append(x)
    sprinkle(e0, G, dm, 8); flush_dma(e0, dm)
def _attn_setup(e):
    e(f"""
    v_lshrrev_b32 v89, 4, v{vL16}
    v_and_b32 v90, 15, v89
    v_lshrrev_b32 v89, 4, v89
    v_lshlrev_b32 v89, 2, v89
    v_sub_u32 v89, v89, v90
    v_mov_b32 v90, {BIG}
    v_mov_b32 v91, 0
    v_mov_b32 v{vKR}, v{vL16}
    v_add_u32 v{vVR}, 0x18000, v{vL16}
    """)
    for r in range(4):
        e(f"v_cmp_ge_i32 vcc, {-r}, v89\ns_nop 1\nv_cndmask_b32 v{TRI+r}, v90, v91, vcc")
    e(f"""
    s_lshl_b32 s{sT+2}, s{sW}, 13
    s_add_u32 s{sT+2}, s{sT+2}, 0x20000
    v_add_u32 v{vQW}, s{sT+2}, v{vL16}
    v_xor_b32 v{vQR}, 0x2000, v{vQW}
    s_lshl_b32 s{sT+2}, s{sW}, 9
    s_add_u32 s{sT+2}, s{sT+2}, {112*1024}
    v_lshrrev_b32 v{vNW}, 1, v{vL16}
    v_add_u32 v{vNW}, s{sT+2}, v{vNW}
    v_xor_b32 v{vNR}, 0x200, v{vNW}
    s_lshr_b32 s{sT+2}, s{sW}, 1
    s_mul_i32 s{sT+2}, s{sT+2}, {92*1024}
    s_add_u32 s{sT+2}, s{sT+2}, {36*1024}
    s_lshl_b32 s{sT+4}, s{sP8K}, 1
    s_add_u32 s{sT+5}, s{sT+2}, s{sT+4}
    v_add_u32 v{vMWo}, s{sT+5}, v{vL16}
    s_xor_b32 s{sT+4}, s{sT+4}, 0x4000
    s_add_u32 s{sT+5}, s{sT+2}, s{sT+4}
    v_add_u32 v{vMRo}, s{sT+5}, v{vL16}
    s_lshl_b32 s{sT+2}, s{sW}, 10
    s_add_u32 s{sT+2}, s{sT+2}, {68*1024}
    v_add_u32 v{vMWs}, s{sT+2}, v{vL16}
    v_xor_b32 v{vMRs}, 0x400, v{vMWs}
    """)

def fread(base, areg, off, f): return f"ds_read_b128 a[{base+4*f}:{base+4*f+3}], v{areg} offset:{off + f * 1024}"
def kfread(off, r): return f"ds_read_b128 a[{FK+4*r}:{FK+4*r+3}], v{vKR} offset:{off + (2 * (r & 3) + (r >> 2)) * 1024}"
def kread(n, f): return kfread((n & 3) * 8192, f)

def xreduce(e, op, regs, tmps):
    for sw in ("v_permlane16_swap_b32", "v_permlane32_swap_b32"):
        for r, t in zip(regs, tmps): e(f"v_mov_b32 v{t}, v{r}")
        e("s_nop 1")
        for r, t in zip(regs, tmps): e(f"{sw} v{r}, v{t}")
        e("s_nop 0")
        for r, t in zip(regs, tmps): e(f"{op} v{r}, v{r}, v{t}")

def max8(e, d, sreg):
    e(f"v_max3_f32 v{d}, v{sreg}, v{sreg+1}, v{sreg+2}\nv_max3_f32 v{d}, v{d}, v{sreg+3}, v{sreg+4}\nv_max3_f32 v{d}, v{d}, v{sreg+5}, v{sreg+6}\nv_max_f32 v{d}, v{d}, v{sreg+7}")

def sm_ops(b, J):
    L = []; k = 0
    for j in J:
        for x in range(8):
            t = TT + (k & 3); tp = TT + ((k - 1) & 3)
            fol = []
            if x == 1: fol.append(f"v_add_f32 v{LT(b, j)}, v{tp}, v{t}")
            elif x > 1: fol.append(f"v_add_f32 v{LT(b, j)}, v{LT(b, j)}, v{t}")
            if x & 1: fol.append(f"v_cvt_pk_bf16_f32 v{Pr(b, j) + (x >> 1)}, v{tp}, v{t}")
            L.append((f"v_exp_f32 v{t}, v{Sr(b, j) + x}", fol)); k += 1
    return L

FBS = {}
STUBS = []
class Blk:
    def __init__(self, name, prev, cur): self.name, self.prev, self.cur, self.first = name, prev, cur, prev is None
    def act(self, n):
        if n < 0: return {None: [], "F": [3, 2, 1, 0], "D": [3, 2, 1], "Y": [3, 2, 1, 0]}[self.prev]
        if self.cur == "D" and n in (2, 3): return [3, 2, 1]
        if self.cur == "E": return ([3, 2, 1, 0], [3, 1], [], [], [])[n]
        return [3, 2, 1, 0]
    def y(self, n): return self.prev == "Y" if n < 0 else (self.cur in "YE" or (n == 4 and self.cur == "D"))
    def masked(self, n):
        if self.cur == "D": return {0 if n < 2 else 1: n & 1}
        if self.cur == "E" and n < 2: return {2 + n: 2, n: 3}
        return {}

def attn_block(e, bk):
    nm = bk.name; E_ = bk.cur == "E"; sw = bk.prev == "D"
    canon = [(regs_of(f"a[{FK+4*f}:{FK+4*f+3}]"), None) for f in range(8)]
    e.lg = list(canon) if bk.first else canon[4:]
    nb = [0, 0]
    if sw:
        for j in range(2):
            for r in range(4): e(f"v_mov_b32 v{NEGM(j)+r}, v{vPN+j}")
    for lp in range(4):
        nq, ns, nv = lp, lp - 1, lp - 2
        JQ, JS, JV = bk.act(nq), bk.act(ns), bk.act(nv); JN = JQ
        bq, bs, bv = nq & 1, ns & 1, nv & 1
        pre = []
        msk = bk.masked(nq); first_qk = bk.first and lp == 0
        cti = {}
        for k, (j, m) in enumerate(msk.items()):
            cti[j] = k
            for kt in range(2):
                c = CT(k, kt); sel = SEL[(m, kt)]
                pre.append(f"v_mov_b32 v{c+3}, s{sel+1}" if first_qk else f"v_add_f32 v{c+3}, s{sel+1}, v{NEGM(j)}")
                pre += [f"v_fma_f32 v{c+r}, v{TRI+r}, s{sel}, v{c+3}" for r in range(4)]
        FVc = FK if (E_ and lp == 2) else FV
        mf = []; kstart = []; vstart = []
        kstart = [len(JQ) * f for f in range(8)] if JQ else []
        for kt in range(2):
            if OPT.get("nochain"): order = [(j, t, t) for t in range(4) for j in JQ]
            else: order = [(j, (3 - z if k & 1 else z), z) for k, j in enumerate(JQ) for z in range(4)]
            for j, t, z in order:
                d = Sr(bq, j, kt); f = 4 * kt + t
                c = v(d, 4) if z else v(CT(cti[j], kt), 4) if j in msk else "0" if first_qk else v(NEGM(j), 4)
                q = ac(QP + 16 * j + 4 * t, 4) if (j < 2 and bk.y(nq)) else v(Qr(j, t), 4)
                mf.append(f"{MF} v[{d}:{d+3}], a[{FK+4*f}:{FK+4*f+3}], {q}, {c}")
        fresh = lambda j: nv == 0 and (bk.first or (sw and j < 2))
        for f in range(8 if JV else 0):
            vstart.append(len(mf))
            for j in JV:
                o = Or(j, f)
                mf.append(f"{MF} a[{o}:{o+3}], a[{FVc+4*f}:{FVc+4*f+3}], v[{Pr(bv, j)}:{Pr(bv, j)+3}], " + ("0" if fresh(j) else ac(o, 4)))
        NG = len(mf)
        fill = [[] for _ in range(NG)]
        voff = lambda n: (n & 1) * 16384 if bk.y(n) else (n & 3) * 8192
        vtog = [f"v_xor_b32 v{vVR}, 0x8000, v{vVR}"] + ([f"v_add_u32 v{vVR}, s{sP8K}, v{vVR}"] if sw and lp == 1 else [])
        if JV and JQ:
            for f in range(8): fill[kstart[f] + 1].append(fread(FV, vVR, voff(nv), f))
        if E_ and lp == 1:
            for x in vtog: fill[vstart[0]].append(x)
            for f in range(8): fill[vstart[f] + 1].append(fread(FK, vVR, 0, f))
        elif E_ and lp == 2:
            for f in range(8): fill[vstart[f] + 1].append(fread(FV, vVR, 16384, f))
        elif lp == 1 or (lp == 3 and bk.cur == "Y"):
            for k, x in enumerate(vtog): fill[(vstart[1] + 1 + 8 * k) if JV else 1].append(x)
        needK = not E_ or lp == 0; late_k = []
        if needK:
            nk = lp + 1
            if lp == 3 or (lp == 1 and bk.cur == "Y"):
                fill[OPT.get("kx", 5)].append(f"v_xor_b32 v{vKR}, 0x8000, v{vKR}")
                if bk.cur == "D": fill[13].append(f"v_add_u32 v{vKR}, s{sP8K}, v{vKR}")
            koff = (nk & 1) * 16384 if bk.y(nk) else (nk & 3) * 8192
            for f in range(8):
                if JV: fill[vstart[f] + 1].append(kfread(koff, f))
                elif f < 4: fill[kstart[4] + 2 * f + 1].append(kfread(koff, f))
                else: late_k.append(kfread(koff, f))
        def needf(base, f0):
            def g(e): e.need(f"a[{base+4*f0}:{base+4*f0+15}]")
            return g
        if JQ and JV:
            fill[kstart[4] - 2].append(needf(FK, 4)); fill[vstart[0] - 2].append(needf(FV, 0))
        if JV:
            fill[vstart[4] - 2].append(needf(FVc, 4))
            if needK or (E_ and lp == 1): fill[NG - 2].append(needf(FK, 0))
            if E_ and lp == 2: fill[NG - 2].append(needf(FV, 0))
        grp_k = (bk.cur == "Y") or (not E_ and lp & 1 == 0 and not first_qk)
        grp_v = (nm == "YD" and lp == 0) or (bk.cur == "Y" and not (sw and lp == 0)) or (bk.cur in "FD" and lp & 1)
        vlast = None; gbar = vstart[0] if JV else -1
        for kind, on in (("K", grp_k), ("V", grp_v)):
            if not on: continue
            L, inc = kv_dma(kind)
            g0, span = (0, 8 * len(JQ)) if kind == "K" else ((vstart[0], 8 * len(JV)) if JV else (0, NG))
            st = span // 4
            dp = OPT.get("dpos", 1) if st >= 8 else 1
            if OPT.get("spread") and g0 + dp >= 5:
                fill[g0 + dp - 5 if g0 + dp - 5 != gbar else g0 + dp - 7].append(L[0][0][1]); fill[g0 + dp - 3 if g0 + dp - 3 != gbar else g0 + dp - 1].append(L[0][0][0])
            else:
                for x in reversed(L[0][0]): fill[max(0, g0 - 4)].append(x)
            for k, d in enumerate(L): fill[g0 + dp + st * k].append(d[1])
            gi = g0 + dp + 1 + st * 3
            fill[gi if gi < NG else NG - 1].append(inc if gi < NG else ("BG", inc))
            if kind == "V": vlast = g0 + dp + st * 3
        def ride(L, g0, g1, tag=None):
            st = max(2, (g1 - g0) // len(L))
            for k, x in enumerate(L):
                g = (g0 + st * k) | 1
                while any(_kind(y) in ("vml", "vms") for y in fill[g]): g += 2
                put_dma(fill, g, x, tag)
        cst = lambda a, b: [ctx_store(96, sCA, n) for n in range(a, b)]
        if bk.first and lp >= 2: ride([h_store(n) for n in range(4 * lp - 8, 4 * lp - 4)], 4, NG - 4)
        if nm == "TY" and lp >= 2: ride(cst(2 * lp - 4, 2 * lp - 2), 10, NG)
        if nm == "YD" and lp < 2: ride(cst(4 + 2 * lp, 6 + 2 * lp), 6, NG - 8)
        if nm == "TYD" and lp == 2: ride(cst(0, 4), 20, NG)
        if E_ and lp == 1: fill[3].append(PHL)
        if E_ and lp == 2: ride(p5_dmas(0), 2, 20)
        if first_qk:
            for k in range(8): fill[4 * k + 1].append(f"ds_write_b128 v{vQW}, v[{Qr(2, 0)+4*k}:{Qr(2, 0)+4*k+3}] offset:{k*1024}")
        if bk.first and lp == 1: fill[2].append(f"ds_read_b64 v[{vPN}:{vPN+1}], v{vNR}")
        if bk.first and lp == 2:
            for k in range(8): fill[kstart[k] + 2 + (len(JQ) & 1)].append(fread(QP, vQR, 0, k))
        if E_ and lp == 3:
            for k in range(8): fill[2 * k + 1].append(f"ds_write_b128 v{vMWo}, a[{Or(0, k)}:{Or(0, k)+3}] offset:{k*1024}")
        if nm in ("DF", "TY") and lp == 3: ride([([], flag_store(sQ + 1))], NG - 3, NG)
        if nm in ("DF", "TY") and lp == 0:
            ride([([], f"buffer_load_dword a192, v{vTW}, s[{R0}:{R0+3}], 0 offen"), ([], f"buffer_load_dword a193, v{vT2}, s[{R1}:{R1+3}], 0 offen")], NG - 9, NG - 1)
        if (lp & 1 or bk.cur in "YE") and not (E_ and lp == 3):
            gb = vstart[0] if JV else -1
            cnt = lambda kinds: sum(1 for g in range(gb) for x in fill[g] if _kind(x) in kinds)
            if E_: n = (8 + nb[0], nb[0], nb[1])[lp] + cnt(("vml", "vms"))
            else: n = 12 + (4 + cnt(("vms",)) if (bk.first and lp == 3) else 0)
            def mkb(n, lp=lp):
                def f(e):
                    lg = list(e.lg)
                    if OPT.get("ticks"): e("s_waitcnt lgkmcnt(0)")
                    z = (bk.first and lp == 1) or (E_ and lp == 2)
                    tick_pre(e); e(f"s_waitcnt vmcnt({n}){' lgkmcnt(0)' if z else ''}\ns_barrier"); tick_post(e)
                    e.lg = [] if z else lg
                return f
            if E_ and lp == 2: fill[gb].insert(0, async_check(f"L_h{nm}", 20, PHL, sTAGW))
            if OPT.get("spread") and gb >= 6 and not E_ and not OPT.get("ticks") and not any(_kind(x) in ("vml", "vms") for g in range(gb - 4, gb) for x in fill[g]):
                fill[gb - 4].append(f"s_waitcnt vmcnt({n})"); fill[gb].insert(0, "s_barrier")
            elif gb >= 0: fill[gb].insert(1 if (E_ and lp == 2) else 0, mkb(n))
            else: pre.insert(0, mkb(n))
        if JS:
            ops = sm_ops(bs, JS)[2:]
            W = NG - 4 if JN else min(NG - 2, 2 * len(ops))
            lastg = 0; tile_done = []
            for k, (ex, fol) in enumerate(ops):
                g = (k * W) // len(ops)
                if W >= 2 * len(ops): g &= ~1
                fill[g].append(ex)
                for x in fol: fill[g + 1].append(x)
                lastg = g + 1
                if (k + 2) % 8 == 7: tile_done.append(lastg)
            lts = [LT(bs, j) for j in JS]
            ck = []
            if len(lts) == 4: fill[tile_done[2] + 2].append(f"v_max3_f32 v{vCHK}, v{lts[0]}, v{lts[1]}, v{lts[2]}"); ck.append(f"v_max_f32 v{vCHK}, v{vCHK}, v{lts[3]}")
            elif len(lts) == 3: ck.append(f"v_max3_f32 v{vCHK}, v{lts[0]}, v{lts[1]}, v{lts[2]}")
            else: ck.append(f"v_max_f32 v{vCHK}, v{lts[0]}, v{lts[1]}")
            ck.append(f"v_cmp_lt_f32 vcc, s{sTHR}, v{vCHK}")
            gck = max(lastg, NG - 3)
            assert gck <= NG - 2
            J3 = [(j, not (sw and lp == 1 and j < 2), not (sw and lp == 0 and j < 2)) for j in JS]
            fb = f"FB{bs}_" + "".join(f"{j}{'' if a else 'n'}{'' if b else 'l'}" for j, a, b in J3)
            FBS[fb] = (bs, J3)
            site = f"L_{nm}_{lp}"
            STUBS.append((site, fb))
            for x in ck: fill[gck].append(x)
            fill[NG - 1].append(grp([f"s_cbranch_vccnz {site}_fb", f"{site}_ret:"]))
        for k, j in enumerate(JV):
            g = OPT.get("l0", 1) if k == 0 else min(NG - 5, 16 * k - 3)
            fill[g].append(f"v_mov_b32 v{LL(j)}, v{LT(bv, j)}" if fresh(j) else f"v_add_f32 v{LL(j)}, v{LL(j)}, v{LT(bv, j)}")
        head = sm_ops(bq, JN)[:2] if JN else []
        if head and not first_qk:
            fill[NG - 4].append(head[0][0]); fill[NG - 2].append(head[1][0])
            for x in head[1][1]: fill[NG - 1].append(x)
        if first_qk: e.need(f"a[{FK}:{FK+15}]")
        for x in pre:
            if callable(x): x(e)
            else: e(x)
        if pre: e("s_nop 1")
        for g in range(NG):
            c = sum(1 for x in fill[g] if _kind(x) in ("vml", "vms"))
            nb[0] += c; nb[1] = 0 if g == vlast else nb[1] + c
        run_gaps(e, mf, fill)
        for x in late_k: e(x)
        if sw and lp == 1: attn_epilogue(e)
        if E_ and lp == 0: p5_setup(e)
        if first_qk:
            e("s_nop 7")
            for j in range(4): max8(e, NEGM(j), Sr(0, j))
            xreduce(e, "v_max_f32", [NEGM(j) for j in range(4)], [NEGM(j) + 1 for j in range(4)])
            for j in range(4):
                e(f"v_sub_f32 v{NEGM(j)}, 0, v{NEGM(j)}")
                for r in range(1, 4): e(f"v_mov_b32 v{NEGM(j)+r}, v{NEGM(j)}")
            e(f"ds_write_b64 v{vNW}, v[{NEGM(2)+3}:{NEGM(2)+4}]".replace(f"v[{NEGM(2)+3}:{NEGM(2)+4}]", "v[10:11]").replace("ds_write", f"v_mov_b32 v10, v{NEGM(2)}\nv_mov_b32 v11, v{NEGM(3)}\nds_write"))
            for j in (3, 2, 1, 0):
                for x in range(8): e(f"v_add_f32 v{Sr(0, j)+x}, v{Sr(0, j)+x}, v{NEGM(j)}")
            e(head[0][0]); e(head[1][0]); e("s_nop 0")
            for x in head[1][1]: e(x)
    if E_: e(f"s_waitcnt vmcnt({4 if nm == 'TYD' else 0})")
    if nm == "TYD":
        for su, x in cst(4, 8): e(su[0]); e(x)
    if not E_:
        assert len(e.lg) <= 4 and [r for r, _ in e.lg] == [r for r, _ in canon][8 - len(e.lg):], (nm, len(e.lg))

def ctx_store(pk, sbase, n):
    return ([f"s_add_u32 s{sT+7}, s{sbase}, {(n >> 2) * 4096 + (n & 3) * 8192}"],
            f"buffer_store_dwordx4 v[{pk+4*n}:{pk+4*n+3}], v{vL16}, s[{RWS}:{RWS+3}], s{sT+7} offen sc1")
def attn_epilogue(e):
    e("s_nop 7")
    xreduce(e, "v_add_f32", [LL(0), LL(1)], [89, 90])
    for j in range(2): e(f"v_rcp_f32 v{LL(j)}, v{LL(j)}")
    for j in range(2):
        e(f"v_mov_b32 v94, v{LL(j)}\nv_mov_b32 v95, v{LL(j)}")
        for k in range(16):
            src = Or(j, 0) + 2 * k; tr = 90 + 2 * (k & 1)
            e(f"v_accvgpr_read_b32 v{tr}, a{src}\nv_accvgpr_read_b32 v{tr+1}, a{src+1}")
            e(f"v_pk_mul_f32 v[{tr}:{tr+1}], v[{tr}:{tr+1}], v[94:95]")
            e(f"v_cvt_pk_bf16_f32 v{96+16*j+k}, v{tr}, v{tr+1}")

def attn_final(e):
    e.lg = [(set(), None)] * 8
    e(f"v_mov_b32 v72, v{LL(0)}\nv_mov_b32 v73, v{LL(1)}\nv_mov_b32 v74, v{NEGM(0)}\nv_mov_b32 v75, v{NEGM(1)}\ns_nop 3")
    e(f"ds_write_b128 v{vMWs}, v[72:75]")
    RS = OPT.get("rs", 0)
    stg = [(su, x.replace("buffer_load_dwordx4 ", f"buffer_load_dwordx4 a[{192+4*k}:{195+4*k}], ").replace(" lds", "")) for k, (su, x) in enumerate((p5_dmas(2) + p5_dmas(3))[:RS])]
    for k in range(8):
        e(f"ds_write_b128 v{vMWo}, a[{Or(1, k)}:{Or(1, k)+3}] offset:{8192 + k*1024}")
        for su, x in stg[2 * k:2 * k + 2]:
            for y in su:
                if "m0" not in y: e(y)
            e(x, tag="stg")
    e("s_waitcnt lgkmcnt(0)\ns_barrier")
    e(f"ds_read_b128 v[72:75], v{vMRs}")
    for k in range(14): e(f"ds_read_b128 v[{160+4*k}:{163+4*k}], v{vMRo} offset:{k*1024}")
    for su, x in p5_dmas(1):
        for y in reversed(su): e(y)
        if su: e("s_nop 0")
        e(x)
    e.need("v[72:75]")
    for k in range(14, 16): e(f"ds_read_b128 v[{160+4*k}:{163+4*k}], v{vMRo} offset:{k*1024}")
    for j in range(2):
        e(f"v_min_f32 v89, v{74+j}, v{NEGM(2+j)}\nv_sub_f32 v{64+2*j}, v89, v{NEGM(2+j)}\nv_sub_f32 v{68+2*j}, v89, v{74+j}")
    for j in range(2): e(f"v_exp_f32 v{64+2*j}, v{64+2*j}\nv_exp_f32 v{68+2*j}, v{68+2*j}")
    for j in range(2): e(f"v_mul_f32 v{LL(2+j)}, v{LL(2+j)}, v{64+2*j}")
    for j in range(2): e(f"v_fmac_f32 v{LL(2+j)}, v{72+j}, v{68+2*j}")
    xreduce(e, "v_add_f32", [LL(2), LL(3)], [89, 90])
    for j in range(2): e(f"v_rcp_f32 v{LL(2+j)}, v{LL(2+j)}")
    e("s_nop 0")
    for j in range(2):
        for b in (64, 68): e(f"v_mul_f32 v{b+2*j}, v{b+2*j}, v{LL(2+j)}\nv_mov_b32 v{b+2*j+1}, v{b+2*j}")
    for j in range(2):
        for k in range(16):
            src = Or(2 + j, 0) + 2 * k; tr = 90 + 2 * (k & 1); rx = 160 + 32 * j + 2 * k
            e(f"v_accvgpr_read_b32 v{tr}, a{src}\nv_accvgpr_read_b32 v{tr+1}, a{src+1}")
            e(f"v_pk_mul_f32 v[{tr}:{tr+1}], v[{tr}:{tr+1}], v[{64+2*j}:{65+2*j}]")
            e.need(f"v[{rx}:{rx+1}]")
            e(f"v_pk_fma_f32 v[{tr}:{tr+1}], v[{rx}:{rx+1}], v[{68+2*j}:{69+2*j}], v[{tr}:{tr+1}]")
            e(f"v_cvt_pk_bf16_f32 v{128+16*j+k}, v{tr}, v{tr+1}")
            if k & 3 == 3:
                su, x = ctx_store(128, sCB, 4 * j + (k >> 2)); e(su[0]); e(x)
            if j == 1:
                for x in p5_reads(0)[2 * k:2 * k + 2]: e(x)

def fallback(e, name, b, J3):
    e(f"{name}:\ns_nop 15")
    for j, scale, nxt in J3:
        d = 89
        max8(e, d, Sr(b, j))
        xreduce(e, "v_max_f32", [d], [90])
        e(f"v_max_f32 v{d}, 0, v{d}\nv_sub_f32 v90, 0, v{d}\nv_exp_f32 v90, v90")
        for x in range(8): e(f"v_sub_f32 v{Sr(b, j)+x}, v{Sr(b, j)+x}, v{d}")
        if nxt:
            for r in range(4): e(f"v_sub_f32 v{NEGM(j)+r}, v{NEGM(j)+r}, v{d}")
            for x in range(8): e(f"v_sub_f32 v{Sr(b ^ 1, j)+x}, v{Sr(b ^ 1, j)+x}, v{d}")
        if scale:
            e(f"v_mul_f32 v{LL(j)}, v{LL(j)}, v90")
            for x in range(0, 32, 2):
                o = Or(j, 0) + x
                e(f"v_accvgpr_read_b32 v91, a{o}\nv_accvgpr_read_b32 v92, a{o+1}\nv_mul_f32 v91, v91, v90\nv_mul_f32 v92, v92, v90\nv_accvgpr_write_b32 a{o}, v91\nv_accvgpr_write_b32 a{o+1}, v92")
    for ex, fol in sm_ops(b, [j for j, _, _ in J3]):
        e(ex); e("s_nop 0")
        for x in fol: e(x)
    for ex, fol in sm_ops(b ^ 1, [3])[:2]: e(ex)
    e(f"s_nop 1\ns_setpc_b64 s[{sRET}:{sRET+1}]")

def attn_pre(e):
    e.need(vmtags=("k0",), lg0=True)
    e("s_barrier")
    for f in range(8): e(kread(0, f))

def attention(e):
    B = {k: Blk(k, p, c) for k, p, c in (("fFF", None, "F"), ("fDF", None, "D"), ("FF", "F", "F"), ("DF", "F", "D"),
                                          ("TY", "D", "Y"), ("YY", "Y", "Y"), ("YD", "Y", "E"), ("TYD", "D", "E"))}
    segs = {}
    def seg(name):
        n0 = len(e.l); attn_block(e, B[name]); segs[name] = e.l[n0:]
    e(f"s_cmp_eq_u32 s{sIDX}, 0\ns_cbranch_scc1 L_fDF")
    seg("fFF")
    e(f"s_sub_u32 s{sCNT}, s{sIDX}, 1\ns_cmp_eq_u32 s{sCNT}, 0\ns_cbranch_scc1 L_DF\n.p2align 3\nL_FF:")
    seg("FF")
    e(f"s_sub_u32 s{sCNT}, s{sCNT}, 1\ns_cmp_lg_u32 s{sCNT}, 0\ns_cbranch_scc1 L_FF\nL_DF:")
    seg("DF")
    e(f"s_cmp_eq_u32 s{sIDX}, 7\ns_cbranch_scc1 L_TYD\nL_TY:")
    seg("TY")
    stamp(e, 7)
    e(f"s_sub_u32 s{sCNT}, 6, s{sIDX}\ns_cmp_eq_u32 s{sCNT}, 0\ns_cbranch_scc1 L_YD\n.p2align 3\nL_YY:")
    seg("YY")
    e(f"s_sub_u32 s{sCNT}, s{sCNT}, 1\ns_cmp_lg_u32 s{sCNT}, 0\ns_cbranch_scc1 L_YY\nL_YD:")
    seg("YD")
    e("L_fin:")
    def out_of_line():
        e("L_fDF:"); seg("fDF")
        e("s_branch L_TY\nL_TYD:"); seg("TYD")
        e("s_branch L_fin")
        for site, fb in STUBS:
            e(f"{site}_fb:\ns_call_b64 s[{sRET}:{sRET+1}], {fb}\ns_branch {site}_ret")
        for name, (b, J3) in FBS.items():
            n0 = len(e.l); fallback(e, name, b, J3); segs[name] = e.l[n0:]
    return segs, out_of_line

sS, sAH, sAC, sWH, sWC, sXO, sFH, sFC = 65, 66, 67, 68, 69, 70, 80, 81
sMA, sMW, sBO, sEXl, sFE, sBH, sBC = 78, 82, 84, 64, 72, 4, 6
sEX3 = 85
SLOT = 36864; SLMAP = (0, 2, 1, 3)
vWD5, vP1, vP2, vXO, vBO, vRA = 14, 30, 31, 28, 29, 4
vRE, vRO = (26, 12), (27, 13)
vTW, vT2 = 19, 20
PHL = f"buffer_load_dword v20, v{vP1}, s[{RWS}:{RWS+3}], s{sFH} offen sc1"
def early_setup():
    mt, nt, t0, t1, t2 = sT, sT + 1, sT + 2, sT + 4, sT + 5
    S = f"""
    s_lshl_b32 s{t0}, s{sH}, 15
    s_lshl_b32 s{t1}, s{sW}, 10
    s_add_u32 s{t0}, s{t0}, s{t1}
    s_add_u32 s{t0}, s{t0}, {CF}
    s_lshl_b32 s{sCA}, s{sIDX}, 20
    s_add_u32 s{sCA}, s{sCA}, s{t0}
    s_sub_u32 s{sCB}, 15, s{sIDX}
    s_lshl_b32 s{sCB}, s{sCB}, 20
    s_add_u32 s{sCB}, s{sCB}, s{t0}
    s_mov_b32 s{sTHR}, {f32(2.0**40)}
    s_and_b32 s{t0}, s{sW}, 1
    s_lshl_b32 s{sP8K}, s{t0}, 13
    s_xor_b32 s{t1}, s{sW}, 1
    s_lshl_b32 s{t0}, s{t0}, 1
    """
    for (m, kt), r in SEL.items():
        S += f"s_sub_i32 s{t2}, s{sW}, {2*m + kt}\n" if m < 2 else f"s_sub_i32 s{t2}, s{sW if m == 2 else t1}, s{t0}\ns_sub_i32 s{t2}, s{t2}, {kt}\n"
        S += f"s_cmp_eq_u32 s{t2}, 0\ns_cselect_b32 s{r}, 1.0, 0\ns_cmp_lt_i32 s{t2}, 0\ns_cselect_b32 s{r+1}, {BIG}, 0\n"
    S += f"""
    s_mov_b32 s{R0}, s{pWO}
    s_and_b32 s{R0+1}, s{pWO+1}, 0xffff
    s_mov_b32 s{R0+2}, {4096*1280}
    s_mov_b32 s{R0+3}, 0x20000
    s_mov_b32 s{R1}, s{pW2}
    s_and_b32 s{R1+1}, s{pW2+1}, 0xffff
    s_mov_b32 s{R1+2}, {1728*1280}
    s_mov_b32 s{R1+3}, 0x20000
    v_lshrrev_b32 v{vXO}, 4, v{vL16}
    s_lshl_b32 s{t0}, s2, 2
    s_add_u32 s{t0}, s{t0}, s{sW}
    s_mul_i32 s{t1}, s{t0}, 40
    v_min_u32 v{vTW}, 39, v{vXO}
    v_add_u32 v{vTW}, s{t1}, v{vTW}
    v_lshlrev_b32 v{vTW}, 7, v{vTW}
    s_mul_i32 s{t1}, s{t0}, 17
    v_min_u32 v{vT2}, 16, v{vXO}
    v_add_u32 v{vT2}, s{t1}, v{vT2}
    v_lshlrev_b32 v{vT2}, 7, v{vT2}
    s_lshr_b32 s{mt}, s{sX}, 2
    s_lshl_b32 s{mt}, s{mt}, 3
    s_lshr_b32 s{t0}, s2, 3
    s_and_b32 s{t0}, s{t0}, 7
    s_add_u32 s{mt}, s{mt}, s{t0}
    s_lshr_b32 s{nt}, s2, 6
    s_and_b32 s{sS}, s{sX}, 3
    s_sub_u32 s{t1}, 15, s{mt}
    s_min_u32 s{t0}, s{mt}, s{t1}
    s_mul_i32 s{t0}, s{t0}, {32*FS}
    s_add_u32 s{sFH}, s{t0}, {FH}
    s_mul_i32 s{t1}, s{sS}, {8*FS}
    s_add_u32 s{sFC}, s{t0}, s{t1}
    s_add_u32 s{sFC}, s{sFC}, {FC}
    """
    if W0: S += f"s_cmp_eq_u32 s{sW}, 0\ns_cselect_b32 s{sFH}, s{sFH}, {WS_END}\ns_cselect_b32 s{sFC}, s{sFC}, {WS_END}\n"
    S += f"""
    s_mul_i32 s{sBH}, s{mt}, {54*8192}
    s_add_u32 s{sBH}, s{sBH}, {HF}
    s_lshl_b32 s{sBC}, s{mt}, 20
    s_add_u32 s{sBC}, s{sBC}, {CF}
    s_lshl_b32 s{t0}, s{sW}, 12
    s_mul_i32 s{sAH}, s{sS}, {14*8192}
    s_add_u32 s{sAH}, s{sAH}, s{t0}
    s_lshl_b32 s{sAC}, s{sS}, 18
    s_add_u32 s{sAC}, s{sAC}, s{t0}
    s_mul_i32 s{sMW}, s{sW}, 5120
    s_add_u32 s{sMW}, s{sMW}, 16384
    s_mul_i32 s{t0}, s{sW}, {16*1280}
    s_mul_i32 s{sBO}, s{nt}, 320
    s_add_u32 s{t0}, s{t0}, s{sBO}
    s_mul_i32 s{sWH}, s{sS}, {14*32*1280}
    s_add_u32 s{sWH}, s{sWH}, s{t0}
    s_mul_i32 s{sWC}, s{sS}, {1024*1280}
    s_add_u32 s{sWC}, s{sWC}, s{t0}
    """
    a, b, c = vRE[0], vRO[0], vBO
    for k in range(5):
        S += f"""
        v_add_u32 v{a}, {64*k}, v{vXO}
        v_mul_u32_u24 v{b}, 3277, v{a}
        v_lshrrev_b32 v{b}, 16, v{b}
        v_mul_u32_u24 v{c}, 20, v{b}
        v_sub_u32 v{a}, v{a}, v{c}
        v_lshrrev_b32 v{c}, 1, v{b}
        v_and_b32 v{c}, 2, v{c}
        v_xor_b32 v{a}, v{a}, v{c}
        v_mul_u32_u24 v{b}, 1280, v{b}
        v_lshl_add_u32 v{vWD5+k}, v{a}, 4, v{b}
        """
        if 0 < k < 4: S += f"v_subrev_u32 v{vWD5+k}, {1024*k}, v{vWD5+k}\n"
    S += f"""
    s_lshr_b32 s{t1}, s{sW}, 1
    s_mul_i32 s{t2}, s{t1}, 160
    s_add_u32 s{sBO}, s{sBO}, s{t2}
    s_add_u32 s{t2}, s{t2}, 16384
    v_lshrrev_b32 v{a}, 2, v{vXO}
    v_mul_u32_u24 v{a}, 320, v{a}
    v_and_b32 v{b}, 3, v{vXO}
    v_lshl_add_u32 v{a}, v{b}, 3, v{a}
    v_add_u32 v{a}, s{t2}, v{a}
    v_lshlrev_b32 v{c}, 1, v{vXO}
    v_and_b32 v{c}, 32, v{c}
    s_cmp_eq_u32 s{t1}, 0
    s_cselect_b32 s{t0}, 1, -1
    v_mul_i32_i24 v{c}, s{t0}, v{c}
    v_sub_u32 v{b}, v{a}, v{c}
    v_add_u32 v{a}, v{a}, v{c}
    s_and_b32 s{t0}, s{sW}, 1
    s_lshl_b32 s{sXO}, s{mt}, 3
    s_lshl_b32 s{t0}, s{t0}, 2
    s_add_u32 s{sXO}, s{sXO}, s{t0}
    s_add_u32 s{sXO}, s{sXO}, s{sS}
    s_mul_i32 s{sXO}, s{sXO}, {16*1280}
    s_add_u32 s{sXO}, s{sXO}, s{sBO}
    v_lshrrev_b32 v{vBO}, 4, v{vXO}
    v_lshlrev_b32 v{vBO}, 3, v{vBO}
    v_and_b32 v{vXO}, 15, v{vXO}
    v_mul_u32_u24 v{vXO}, 1280, v{vXO}
    v_add_u32 v{vXO}, v{vXO}, v{vBO}
    v_lshlrev_b32 v{vP1}, 3, v{vL16}
    v_and_b32 v{vP2}, {7*FS}, v{vP1}
    v_and_b32 v{vP1}, {31*FS}, v{vP1}
    s_lshl_b32 s{t0}, s{mt}, 2
    s_add_u32 s{t0}, s{t0}, s{nt}
    s_lshl_b32 s{sFE}, s{t0}, 2
    s_add_u32 s{sFE}, s{sFE}, s{sW}
    s_mul_i32 s{sFE}, s{sFE}, {FS * 4}
    s_add_u32 s{sFE}, s{sFE}, {FEX}
    s_mul_i32 s{t0}, s{t0}, {16*20480}
    s_mul_i32 s{t1}, s{sW}, 5120
    s_add_u32 s{t0}, s{t0}, s{t1}
    s_add_u32 s{t0}, s{t0}, {EX}
    s_mul_i32 s{t1}, s{sS}, 20480
    s_add_u32 s{mt}, s{t0}, s{t1}
    s_lshl_b32 s{t1}, s{t1}, 2
    s_add_u32 s{sEXl}, s{t0}, s{t1}
    """
    for r in range(3): S += f"s_add_u32 s{t0}, s{sS}, {r + 1}\ns_and_b32 s{t0}, s{t0}, 3\ns_mul_i32 s{t0}, s{t0}, {4*20480}\ns_add_u32 s{sEX3+r}, s{mt}, s{t0}\n"
    return [x.strip() for x in S.split("\n") if x.strip()]
def place_early(fills, k0, g0, NG): place_list(early_setup(), fills, k0, g0, NG, (19, NG - 1))
def p5_setup(e):
    srd(e, R0, pWS, 54 * 8192, f"s{sBH}")
    srd(e, R1, pWS, 128 * 8192, f"s{sBC}")
    srd(e, R2, pW2, 1728 * 1280)
    srd(e, R3, pWO, 4096 * 1280)
    e(f"v_add_u32 v{vRE[1]}, {2*SLOT}, v{vRE[0]}\nv_add_u32 v{vRO[1]}, {2*SLOT}, v{vRO[0]}\ns_lshr_b32 s{sT+2}, s{sP8K}, 1")
    for r in range(4):
        e(f"s_add_u32 s{sT}, s{sS}, {r + 1}\ns_and_b32 s{sT}, s{sT}, 3\ns_lshl_b32 s{sT+1}, s{sT}, 10\ns_add_u32 s{sT+1}, s{sT+1}, s{sT+2}\nv_add_u32 v{vRA+r}, s{sT+1}, v{vL16}\nv_add_u32 v{vRA+4+r}, {2*SLOT}, v{vRA+r}")

def p5_dmas(d):
    sl = SLMAP[d & 3] * SLOT
    if d < 7: ra, sa, oa, rw, sw, ow = R0, sAH, d * 16384, R2, sWH, d * 64 * 1280
    else: ra, sa, oa, rw, sw, ow = R1, sAC, (d - 7) * 16384, R3, sWC, (d - 7) * 64 * 1280
    W = []
    for k in range(5):
        su = []
        if k == 0: su = [f"s_add_u32 m0, s{sMW}, {sl}", f"s_add_u32 s{sT+1}, s{sw}, {ow}"]
        if k == 4: su = [f"s_add_u32 m0, s{sMW}, {sl + 4096}"]
        W.append((su, f"buffer_load_dwordx4 v{vWD5+k}, s[{rw}:{rw+3}], s{sT+1} offen offset:{(k & 3) * 1024} lds"))
    A = []
    for k in range(4):
        su = [f"s_add_u32 m0, s{sMA}, {sl}", f"s_add_u32 s{sT}, s{sa}, {oa}"] if k == 0 else []
        A.append((su, f"buffer_load_dwordx4 v{vL16}, s[{ra}:{ra+3}], s{sT} offen offset:{k * 1024} lds"))
    return W + A
def p5_buf(m): return (m & 3) * 36
def p5_wreads(m):
    d, ks = m >> 1, m & 1; b = p5_buf(m); hi = SLMAP[d & 3] >> 1; o = (SLMAP[d & 3] & 1) * SLOT
    L = []
    for n in range(5):
        a = (vRO if n & 1 else vRE)[hi]; off = o + ks * 32 * 320 + n * 32
        L += [f"ds_read_b64_tr_b16 a[{b+4*n}:{b+4*n+1}], v{a} offset:{off}", f"ds_read_b64_tr_b16 a[{b+4*n+2}:{b+4*n+3}], v{a} offset:{off + 5120}"]
    return L
def p5_aread(m, r):
    d, ks = m >> 1, m & 1; b = p5_buf(m); hi = SLMAP[d & 3] >> 1; o = (SLMAP[d & 3] & 1) * SLOT
    return f"ds_read_b128 a[{b+20+4*r}:{b+23+4*r}], v{vRA+4*hi+r} offset:{o + ks * 8192}"
def p5_reads(d, last=False):
    W = [p5_wreads(2 * d), p5_wreads(2 * d + 1)]
    A = lambda r: [p5_aread(2 * d, r), p5_aread(2 * d + 1, r)]
    Wn = lambda n: W[0][2*n:2*n+2] + W[1][2*n:2*n+2]
    if last: return Wn(0) + A(0) + Wn(1) + Wn(2) + Wn(3) + Wn(4) + A(1) + A(2) + A(3)
    return Wn(0) + A(0) + A(1) + A(2) + A(3) + Wn(1) + Wn(2) + Wn(3) + Wn(4)

def p5(e):
    ACC = 32; ND = 23
    tick_dump(e, 2)
    attn_final(e)
    stamp(e, 8)
    warm(e, "b")
    e(f"s_add_u32 s{sT+2}, s{sQ+1}, {FC - FH}\ns_waitcnt vmcnt(0) lgkmcnt(0)\ns_barrier\nL_p5loop:")
    e(flag_store(sT + 2))
    stamp(e, 9)
    PCL = f"buffer_load_dword v20, v{vP2}, s[{RWS}:{RWS+3}], s{sFC} offen sc1"
    mfs = []; fills = []
    def mfma(m, n, r, z):
        b = p5_buf(m); dd = ACC + (r * 5 + n) * 4
        return f"{MF} v[{dd}:{dd+3}], a[{b+4*n}:{b+4*n+3}], a[{b+20+4*r}:{b+23+4*r}], " + ("0" if m < 2 and z == 0 else v(dd, 4))
    for d in range(ND):
        T_ = [(n, r) for n in range(5) for r in range(4)] if d < ND - 1 else [(n, r) for r in range(4) for n in range(5)]
        mfs.append([mfma(2 * d + (z ^ (k & 1)), n, r, z) for k, (n, r) in enumerate(T_) for z in range(2)]); fills.append([[] for _ in range(40)])
    for d in range(ND - 1):
        for k, x in enumerate(p5_reads(d + 1, d == ND - 2)): fills[d][1 + k + k // 4].append(x)
        if d: fills[d][0].append(bar([f"d{d+1}"]))
    NM = ND - 1; TL = 40
    if OPT.get("m4"):
        NM = ND - 2; TL = 80
        T_ = [(n, r) for r in range(4) for n in range(5)]
        first = [mfma(2 * NM + (z ^ (n & 1)), n, 0, 1) for n in range(5) for z in range(2)] + [mfma(2 * NM + 2 + (z ^ (n & 1)), n, 0, 1) for n in range(5) for z in range(2)]
        mfs[NM:] = [first + [mfma(2 * NM + (z if k & 1 else 3 - z), n, r, 1) for k, (n, r) in enumerate(T_[5:]) for z in range(4)]]
        fills[NM - 1] = [[x for x in f if callable(x) or not (x[0] if isinstance(x, tuple) else x).startswith("ds_read")] for f in fills[NM - 1]]
        for k, x in enumerate(p5_reads(NM, True)): fills[NM - 1][1 + k + k // 4].append(x)
        fills[NM:] = [[[] for _ in range(80)]]
        fills[NM][0].append(bar([f"d{ND-1}"]))
        R_ = p5_reads(ND - 1, True)
        for k, x in enumerate(R_[:22]): fills[NM][(k >> 1)].append(x)
        for k, x in enumerate(R_[22:]): fills[NM][11 + k].append(x)
    GR = 176; XB = 156
    for k in range(12): fills[18][4 + 2 * k].append(f"v_mov_b32 v{GR + 16*(k >> 2) + (4*(k & 3) + 3 if k & 3 < 3 else 13)}, s{sTAG}")
    fills[18][30].append(f"v_lshrrev_b32 v139, 1, v{vL16}")
    def send(r):
        L = []
        for k in range(10):
            L.append(f"v_cvt_pk_bf16_f32 v{GR + 16*r + 4*(k // 3) + k % 3}, v{ACC+20*r+2*k}, v{ACC+20*r+2*k+1}")
            q = GR + 16 * r + 4 * (k // 3)
            if k % 3 == 2: L.append(f"buffer_store_dwordx4 v[{q}:{q+3}], v{vL16}, s[{RWS}:{RWS+3}], s{sEX3+r} offen offset:{1024 * (k // 3)} sc1")
        L.append(f"buffer_store_dwordx2 v[{q}:{q+1}], v139, s[{RWS}:{RWS+3}], s{sEX3+r} offen offset:3072 sc1")
        return L
    late = []
    g = 0
    for g0_, x in [(TL // 4 * (r + 1) + 5, x) for r in range(3) for x in send(r)]:
        g = max(g, g0_)
        if g < TL: fills[NM][g].append(x)
        else: late.append(x)
        g += 1
    RS = OPT.get("rs", 0)
    if RS:
        e(f"v_add_u32 v156, s{sMW}, v{vL16}\nv_add_u32 v157, s{sMA}, v{vL16}\nv_add_u32 v158, {2*SLOT}, v156\nv_add_u32 v159, {2*SLOT}, v157")
        for k in range(RS):
            d_, q = 2 + k // 9, k % 9; sl = SLMAP[d_ & 3]
            a_, off = (156, q * 1024) if q < 5 else (157, (q - 5) * 1024)
            fills[0][2 + 2 * k].append(f"ds_write_b128 v{a_ + 2 * (sl >> 1)}, a[{192+4*k}:{195+4*k}] offset:{(sl & 1) * SLOT + off}")
    for d in range(2, ND):
        P = [(d - 4, g) for g in range(3, 39, 4)]
        if RS and d == 2: continue
        if d < 6: P = [((d - 2) >> 1, g) for g in range(2 + 18 * (d & 1), 20 + 18 * (d & 1), 2)]
        if RS and d == 3: P = [(0, g) for g in range(3, 39, 4)]
        for k, (x, (m, g)) in enumerate(zip(p5_dmas(d), P)):
            if d == 3 and k < RS - 9:
                if k == 5 and RS - 9 < 9: put_dma(fills[m], g, (x[0], "s_nop 0"), None)
                continue
            if d == 7 and k == 5:
                if W0:
                    CB = OPT.get("cb", 20)
                    fills[m][CB].append(async_check("L_p5c", 20, PCL, sTAGW)); fills[m][CB].append("s_barrier"); fills[m][1].append(PCL)
                else:
                    fills[m][g - 1].append(async_check("L_p5c", 20, PCL))
                    fills[m - 1][37].append(PCL)
            put_dma(fills[m], g, x, f"d{d}")
    hs_ = f"""
        v_mov_b32 v20, 0
        v_mov_b32 v132, 0x10000000
        v_cmp_eq_u32 vcc, 0, v{vL16}
        s_lshl_b32 s10, s{sS}, 7
        s_xor_b32 s11, s10, 128
        v_cndmask_b32 v132, v132, v20, vcc
        v_lshlrev_b32 v133, 3, v{vL16}
        v_and_b32 v133, 384, v133
        v_mov_b32 v138, s11
        v_cmp_eq_u32 vcc, s10, v133
        s_nop 1
        v_cndmask_b32 v133, v133, v138, vcc
        s_add_u32 s10, s10, s{sFE}
        v_and_b32 v154, 8, v{vBO}
        v_mul_u32_u24 v154, 3, v154
        v_add_u32 v154, v154, v{vXO}
        """
    place_list([x.strip() for x in hs_.strip().split("\n")], fills, 20, 2, 40, (21, 0))
    HST = f"buffer_store_dword v{vTAG}, v132, s[{RWS}:{RWS+3}], s10 offen sc1"
    if OPT.get("hg", 99) < TL: fills[NM][OPT["hg"]].append(HST)
    OWN = ACC + 60; RXR = (224, 240, 140)
    HPL = f"buffer_load_dword v20, v133, s[{RWS}:{RWS+3}], s{sFE} offen sc1"
    place_list([x for k in range(3) for x in (f"s_add_u32 s{12+k}, s{sS}, {k+1}", f"s_and_b32 s{12+k}, s{12+k}, 3", f"s_mul_i32 s{12+k}, s{12+k}, 20480", f"s_add_u32 s{12+k}, s{12+k}, s{sEXl}")]
               + [f"s_mov_b32 s{R0}, s{pOUT}", f"s_and_b32 s{R0+1}, s{pOUT+1}, 0xffff", f"s_mov_b32 s{R0+2}, {2048*1280}", f"s_mov_b32 s{R0+3}, 0x20000"], fills, 20, 20, 40, (21, 0))
    def own_adds(e):
        e("s_nop 3"); e.need("v[112:131]")
        for q in range(10):
            e(f"v_lshlrev_b32 v134, 16, v{112+q}\nv_and_b32 v135, 0xffff0000, v{112+q}\nv_lshlrev_b32 v136, 16, v{122+q}\nv_and_b32 v137, 0xffff0000, v{122+q}")
            e(f"v_pk_add_f32 v[134:135], v[134:135], v[136:137]\nv_pk_add_f32 v[{OWN+2*q}:{OWN+2*q+1}], v[{OWN+2*q}:{OWN+2*q+1}], v[134:135]")
    def fetch(e):
        for k in range(3):
            for q in range(3): e(f"buffer_load_dwordx4 v[{RXR[k]+4*q}:{RXR[k]+4*q+3}], v{vL16}, s[{RWS}:{RWS+3}], s{12+k} offen offset:{1024*q} sc1")
            e(f"buffer_load_dwordx2 v[{RXR[k]+12}:{RXR[k]+13}], v139, s[{RWS}:{RWS+3}], s{12+k} offen offset:3072 sc1")
    def verify(e):
        tg = [RXR[k] + q for k in range(3) for q in (3, 7, 11, 13)]
        for op, d in (("v_max3_u32", 134), ("v_min3_u32", 135)):
            e(f"{op} v{d}, v{tg[0]}, v{tg[1]}, v{tg[2]}")
            for q in range(3, 11, 2): e(f"{op} v{d}, v{d}, v{tg[q]}, v{tg[q+1]}")
            e(f"{op} v{d}, v{d}, v{tg[11]}, v{tg[11]}")
        e(f"v_xor_b32 v134, s{sTAG}, v134\nv_xor_b32 v135, s{sTAG}, v135\nv_or_b32 v134, v134, v135\nv_cmp_ne_u32 vcc, 0, v134")
    mx = 19
    fills[mx][0].append(grp([f"s_mov_b32 s{R0}, s{pX}", f"s_and_b32 s{R0+1}, s{pX+1}, 0xffff", f"s_mov_b32 s{R0+2}, {2048*1280}", f"s_mov_b32 s{R0+3}, 0x20000",
                             f"s_mov_b32 s{R2}, s{pB2}", f"s_and_b32 s{R2+1}, s{pB2+1}, 0xffff", f"s_mov_b32 s{R2+2}, 1280", f"s_mov_b32 s{R2+3}, 0x20000"]))
    for n in range(5):
        fills[mx][2 + 3 * n].append(f"buffer_load_dwordx2 v[{112+2*n}:{113+2*n}], v{vXO}, s[{R0}:{R0+3}], s{sXO} offen offset:{32*n}")
        fills[mx][20 + 3 * n].append(f"buffer_load_dwordx2 v[{122+2*n}:{123+2*n}], v{vBO}, s[{R2}:{R2+3}], s{sBO} offen offset:{32*n}")
    for m in range(NM + 1):
        if m == 3: stamp(e, 11)
        if m == 4: stamp(e, 12)
        run_gaps(e, mfs[m], fills[m], mfs[m + 1][0] if m < NM else None)
    for x in late: e(x)
    tick_dump(e, 3)
    stamp(e, 13)
    if OPT.get("hg", 99) >= TL: e(HST)
    own_adds(e)
    def hp(e): e(f"{HPL}\ns_waitcnt vmcnt(0)\nv_cmp_ne_u32 vcc, s{sTAG}, v20")
    spin(e, "L_p5hint", hp, None, sleep=OPT.get("hs", 5))
    fetch(e)
    stamp(e, 10)
    e("s_waitcnt vmcnt(0)"); verify(e)
    e("s_cbranch_vccz L_p5x_ok")
    def poll(e):
        fetch(e); e("s_waitcnt vmcnt(0)"); verify(e)
    spin(e, "L_p5x", poll, None, sleep=OPT.get("xs", 1))
    e(f"s_cmp_eq_u32 s2, 0\ns_cselect_b32 s{sT}, {FL}, {0}\ns_cmp_eq_u32 s{sT}, 0\ns_cselect_b32 s{sT}, {WS_END}, s{sT}")
    e(flag_store(sT))
    for q in range(10):
        t = OWN + 2 * q
        for k in range(3):
            u = RXR[k] + 4 * (q // 3) + q % 3; z = 134 + 2 * (k & 1)
            e(f"v_lshlrev_b32 v{z}, 16, v{u}\nv_and_b32 v{z+1}, 0xffff0000, v{u}\nv_pk_add_f32 v[{t}:{t+1}], v[{t}:{t+1}], v[{z}:{z+1}]")
        e(f"v_cvt_pk_bf16_f32 v{112+q}, v{t}, v{t+1}")
        if OPT.get("narrow"):
            if q & 1: e(f"buffer_store_dwordx2 v[{111+q}:{112+q}], v{vXO}, s[{R0}:{R0+3}], s{sXO} offen offset:{16*(q-1)}")
        elif q in (3, 7):
            e(f"s_nop 1\nv_permlane16_swap_b32 v{109+q}, v{111+q}\nv_permlane16_swap_b32 v{110+q}, v{112+q}")
            e(f"buffer_store_dwordx4 v[{109+q}:{112+q}], v154, s[{R0}:{R0+3}], s{sXO} offen offset:{16*(q-3)}")
        elif q == 9: e(f"buffer_store_dwordx2 v[120:121], v{vXO}, s[{R0}:{R0+3}], s{sXO} offen offset:128")

def warm(e, name):
    if not OPT.get("hop"): return
    e(f"s_mov_b32 s7, 1")
    for w in range(3): e(f"s_cmp_eq_u32 s{sW}, {w}\ns_cbranch_scc1 HOP_{name}_{w}")
    e(f"s_branch HOP_{name}_3\nHOP_{name}_ret:\ns_mov_b32 s7, 0")
def reads_scc(i): return i.mn.startswith(("s_addc", "s_subb", "s_cselect", "s_cbranch_scc"))
def writes_scc(i): return i.kind == "salu" and not i.mn.startswith(("s_mov", "s_mul_i32", "s_cselect", "s_getpc", "s_sleep", "s_setprio"))
def insert_hops(L, sessions):
    import subprocess, re as _re
    open("hop.s", "w").write(header() + _re.sub(r"HOP_\w_\d", "L_p5loop", "\n".join(i.t for i in L)) + "\n" + footer())
    subprocess.run(["clang", "-x", "assembler", "-target", "amdgcn-amd-amdhsa", "-mcpu=gfx950", "-c", "hop.s", "-o", "hop.o"], check=True)
    dis = subprocess.run(["llvm-objdump", "-d", "--mcpu=gfx950", "hop.o"], capture_output=True, text=True).stdout
    D = [(m.group(1), int(m.group(2), 16)) for m in _re.finditer(r"^\t(\S+).*// ([0-9A-F]{12}):", dis, _re.M)]
    addr = {}; k = 0
    for n, i in enumerate(L):
        if i.kind == "label": continue
        base = lambda x: x.replace("_e32", "").replace("_e64", "")
        while base(D[k][0]) != base(i.mn): k += 1
        addr[n] = D[k][1]; k += 1
    lab = {i.mn[:-1]: n for n, i in enumerate(L) if i.kind == "label" and i.mn.endswith(":")}
    which = {}
    for name, ranges in sessions.items():
        for a, b in ranges:
            for n in range(lab[a], lab[b]): which[n] = name
    ins = []; shift = 0; page = -1
    start = lab["L_p1K"]
    for n in sorted(addr):
        if n < start: continue
        a = addr[n] + shift
        if a >> 12 == page or n not in which:
            page = a >> 12 if n not in which else page
            continue
        m = n; ok = True
        while m < len(L) and not writes_scc(L[m]) and L[m].kind != "br" or (m < len(L) and reads_scc(L[m])):
            if reads_scc(L[m]): ok = False; break
            m += 1
        if not ok:
            assert (a & 4095) < 48, "no safe hop slot"
            continue
        page = a >> 12
        if (a & 4095) < 56: ins.append((n, which[n])); shift += 8
    out = list(L); idx = {}
    per = {name: [n for n, w in ins if w == name] for name in sessions}
    txt = {}
    for name, P in per.items():
        for k, n in enumerate(P):
            nxt = f"HS_{name}_{k+4}" if k + 4 < len(P) else f"HOP_{name}_ret"
            txt[n] = ([f"HOP_{name}_{k}:"] if k < 4 else []) + [f"HS_{name}_{k}:", "s_cmp_eq_u32 s7, 1", f"s_cbranch_scc1 {nxt}"]
        assert len(P) >= 4, (name, len(P))
        print("hop session", name, len(P), "pages")
    out = []
    for n, i in enumerate(L):
        for x in txt.get(n, []): out.append(I(x))
        out.append(i)
    return out

def clone_state(e): return (list(e.vm), list(e.lg))

def build(stop=None):
    FBS.clear(); STUBS.clear()
    e = E(); seg = {}
    def mark(name, n0): seg[name] = e.l[n0:]
    n0 = 0
    e("L_code_begin:")
    if OPT.get("dbgspan"): e("s_memrealtime s[96:97]")
    if STAMP: e("s_mov_b32 s71, 0\ns_memrealtime s[96:97]\ns_memtime s[98:99]")
    prologue(e); p0_ln(e); p1_pre(e); stamp(e, 0); stamp(e, 1); stamp(e, 2)
    mark("pro", n0)
    e(f"s_cmp_ge_u32 s{sW}, 2\ns_cbranch_scc1 L_p1V")
    if OPT.get("hop"): e("s_branch L_p1K\n.p2align 12")
    e("L_p1K:")
    st0 = clone_state(e); st1 = {}; bq = {}
    def p1(T):
        e.vm, e.lg = list(st0[0]), list(st0[1])
        n0 = len(e.l); bg = Bg(); p1_main(e, T, bg); tick_dump(e, 0); stamp(e, 3); mark("p1" + T, n0)
        st1[T] = clone_state(e); bq[T] = list(bg.q)
        e(f"s_cmp_ge_u32 s{sU}, 27\ns_cbranch_scc1 L_qhN{T}")
    def qh(T, hasH):
        e.vm, e.lg = list(st1[T][0]), list(st1[T][1])
        n0 = len(e.l); b = Bg(); b.q = list(bq[T]); qh_main(e, T, hasH, b); mark("qh" + "NH"[hasH] + T, n0)
    p1("K")
    e("s_branch L_qhH\nL_p1V:")
    p1("V")
    assert [t for _, t in st1["K"][0]] == [t for _, t in st1["V"][0]] and [r for r, _ in st1["K"][1]] == [r for r, _ in st1["V"][1]] and bq["K"] == bq["V"]
    e("L_qhH:"); qh("V", True); seg["qhHK"] = seg["qhHV"]
    e("L_postH:")
    n0 = len(e.l)
    tick_dump(e, 1); stamp(e, 4); e("s_nop 7"); q_pack(e); dm = gelu(e, "L_skH"); attn_setup(e, dm); stamp(e, 5); attn_pre(e); stamp(e, 6); mark("postH", n0)
    e("L_attn:")
    segsA, ool = attention(e)
    e("L_p5:")
    n0 = len(e.l); e.vm = []
    p5(e); stamp(e, 14)
    if OPT.get("dbgspan"):
        e("""s_load_dwordx2 s[32:33], s[0:1], 96
        s_memrealtime s[98:99]
        s_waitcnt lgkmcnt(0)
        s_not_b32 s96, s96
        v_mov_b32 v4, 0
        v_mov_b32 v5, s98
        v_mov_b32 v6, s96
        s_mov_b64 exec, 1
        global_atomic_umax v4, v5, s[32:33] sc1
        global_atomic_umax v4, v6, s[32:33] offset:4 sc1""")
    mark("p5", n0)
    e("L_exit:\ns_endpgm")
    e("L_qhNK:\nL_qhNV:"); qh("V", False); seg["qhNK"] = seg["qhNV"]
    n0 = len(e.l)
    tick_dump(e, 1); stamp(e, 4); e(PKL); e("\n".join(early_setup())); q_pack(e); async_check("L_skN", vTR + 1, PKL)(e); attn_setup(e, kv_prologue_list()); stamp(e, 5); attn_pre(e); stamp(e, 6); mark("postN", n0)
    e("s_branch L_attn")
    ool()
    e("L_code_end:")
    seg.update(segsA)
    errs = []
    for T in "KV":
        for Hh in "HN":
            class X: pass
            x = X(); x.l = seg["p1" + T] + seg["qh" + Hh + T]; check_drain_order(x)
    def path(i):
        if i == 0: a = ["fDF"]
        else: a = ["fFF"] + ["FF"] * min(i - 1, 2) + ["DF"]
        return a + (["TYD"] if i == 7 else ["TY"] + ["YY"] * min(6 - i, 2) + ["YD"])
    for T, Hh, i in (("K", "H", 0), ("V", "N", 1), ("K", "N", 3), ("V", "H", 6), ("K", "H", 7)):
        tr = []
        for nme in ["pro", "p1" + T, "qh" + Hh + T, "post" + Hh] + path(i) + ["p5"]: tr += seg[nme]
        errs += check_trace(tr, f"{T},{Hh},{i}")
    for nme in FBS: errs += check_trace(seg[nme], nme)
    seen = set()
    for x in errs:
        k = x.split("]", 1)[1]
        if k not in seen:
            seen.add(k)
            if len(seen) < 12: print("HAZARD", x)
    print("instructions:", sum(1 for i in e.l if i.kind != "label"), {k: len(vv) for k, vv in seg.items()})
    if OPT.get("allld"):
        e.l = [I(i.t.replace(" lds", f" {OPT['allld']} lds")) if (i.kind == "vml" and i.lds and " nt" not in i.t and " sc" not in i.t) else i for i in e.l]
    if OPT.get("hop"):
        e.l = [i for i in e.l if i.mn != ".p2align 3"]
        end_a = {1: "L_attn", 2: "L_fin", 3: "L_postH"}[OPT["hop"]]
        e.l = insert_hops(e.l, {"a": [("L_qhH" if OPT.get("hq") else "L_p1K", end_a)], "b": [("L_p5loop", "L_exit")]})
    if "race" in sys.argv:
        import race; race.check_all(e.l)
    mac, body = compress([i.t for i in e.l])
    h = header(); k = h.index(".text")
    open("k_full.s", "w").write(h + e.text() + footer())
    return h[:k] + mac + h[k:] + body + footer(), len(seen)

if __name__ == "__main__":
    STAMP = "stamp" in sys.argv
    txt, ne = build()
    out = sys.argv[1] if len(sys.argv) > 1 else "k.s"
    open(out, "w").write(txt)
    print("bytes", len(txt), "hazards", ne)

def mb_init(e):
    for r in range(4): e(f"v_mov_b32 v{192+r}, 0x3f803f80")
```

```python
import sys, math, struct
from core import *

NAME = "parallel_sum__compressed_kv_cla__dense_activation_gelu__prompt"
def f32(x): return "0x%08x" % struct.unpack("<I", struct.pack("<f", x))[0]
CS = math.log2(math.e) / math.sqrt(128.0)

OPT = dict(kvst="sc1", norole=1, rate=1, bstep=2, bkv=17, notouch1=1, wnt=1, cnt=0, cpf=10, te=3, cs=2, sp0=3, xe=1, be=1, tsp=1, hop=1, np=16, wl=0, late=1, hg=66, qc=1, pc=1, kvb=7, gp=1, pk19=40, hs=8, slp=4, xd=1, bfast=1, m4=1)
for a in sys.argv[1:]:
    if "=" in a:
        k, vv = a.split("=", 1); OPT[k] = int(vv) if vv.lstrip("-").isdigit() else vv.replace("+", " ")
def NT(k): return ' nt' if OPT.get(k) else ''
XS = 0x0010000; KF = 0x0400000; VF = 0x1500000 + OPT.get('vsk', 0); HF = 0x2600000; CF = 0x2E00000; EX = 0x3F00000; FL = 0x5400000; WS_END = 0x5A00000
HS = 524288 + OPT.get('sk', 0)
FXS = FL + 0x8000; FKV = FL + 0x10000; FH = FL + 0x18000; FC = FL + 0x20000; FEX = FL + 0x80000
FS = 128
sTAG = 88
sW, sH, sIDX, sX = 3, 4, 5, 6
pX, pC, pWQ, pWUK, pWUV, pWO, pW1, pB1, pW2, pB2, pOUT, pDBG, pWS = 8, 10, 12, 14, 16, 18, 22, 24, 26, 28, 30, 32, 34
R0, R1, R2, R3, RWS = 36, 40, 44, 48, 52
sT = 56
sU = 64
sM0a, sM0b, sSa, sSb, sSc, sST = 65, 66, 67, 68, 69, 70
sQ = 72
MF = "v_mfma_f32_16x16x32_bf16"

def srd(e, r, p, nbytes, add=None):
    if add is None:
        e(f"s_mov_b32 s{r}, s{p}\ns_and_b32 s{r+1}, s{p+1}, 0xffff")
    else:
        e(f"s_add_u32 s{r}, s{p}, {add}\ns_addc_u32 s{r+1}, s{p+1}, 0\ns_and_b32 s{r+1}, s{r+1}, 0xffff")
    e(f"s_mov_b32 s{r+2}, {nbytes}\ns_mov_b32 s{r+3}, 0x20000")

vL16, vXR, vWQR, vW1R, vXD, vWQD, vW1D, vSC = 0, 1, 2, 10, 14, 18, 20, 21
vTR, vPK = 24, 28
vTAG = 23
sXS = 80
vCD, vWD, vCR, vWR = 96, 100, 104, 106
vWWIN, vCB = 176, (224, 192)
HACC, QACC = 32, 96
XNB = (224, 240)

class Cap:
    def __init__(self): self.l = []
    def __call__(self, t, tag=None): self.l.extend(x.strip() for x in t.strip().split("\n") if x.strip())
LATE = Cap()
def place_list(L, fills, k0, g0, NG, kmax):
    ks, g = k0, g0; k = 0
    while k < len(L):
        grp_ = [L[k]]
        if L[k].startswith("v_cmp"):
            while not grp_[-1].startswith("v_cndmask"): grp_.append(L[k + len(grp_)])
        elif L[k].startswith("s_"):
            while k + len(grp_) < len(L) and L[k + len(grp_)].startswith("s_") and (len(grp_) < 2 or L[k + len(grp_)].startswith(("s_cselect", "s_addc"))): grp_.append(L[k + len(grp_)])
            if grp_[-1].startswith("s_cmp") and len(grp_) > 1: grp_.pop()
            if k + len(grp_) < len(L) and L[k + len(grp_)].startswith("v_") and not L[k + len(grp_)].startswith("v_cmp"): grp_.append(L[k + len(grp_)])
        k += len(grp_)
        for x in grp_: fills[ks][g].append(("BG", x))
        g += 1
        if g == NG: ks, g = ks + 1, 0
    assert (ks, g) <= kmax, (ks, g)
def prologue(e):
    e(f"""
    s_cmp_ge_u32 s2, {0 if OPT.get("exit0") else 256}
    s_cbranch_scc1 L_exit
    s_load_dwordx16 s[8:23], s[0:1], 0
    s_load_dwordx8 s[24:31], s[0:1], 64
    s_load_dwordx4 s[32:35], s[0:1], 96
    v_lshrrev_b32 v33, 6, v0
    v_and_b32 v32, 63, v0
    v_readfirstlane_b32 s{sW}, v33
    v_lshlrev_b32 v{vL16}, 4, v32
    s_and_b32 s{sX}, s2, 7
    s_lshr_b32 s{sT}, s2, 3
    s_and_b32 s{sT}, s{sT}, 3
    s_lshl_b32 s{sH}, s{sX}, 2
    s_add_u32 s{sH}, s{sH}, s{sT}
    s_lshr_b32 s{sIDX}, s2, 5
    s_mov_b32 s7, 0
    """)
    if OPT.get("cpf"):
        e(f"""
        s_getpc_b64 s[{sT+4}:{sT+5}]
        s_and_b32 s{sT+4}, s{sT+4}, 0xffffff00
        s_lshr_b32 s{sT+2}, s2, 3
        s_lshl_b32 s{sT+2}, s{sT+2}, 2
        s_add_u32 s{sT+2}, s{sT+2}, s{sW}
        v_min_u32 v152, {OPT["cpf"] - 1}, v32
        v_lshlrev_b32 v152, 14, v152
        s_lshl_b32 s{sT+2}, s{sT+2}, 7
        v_add_u32 v152, s{sT+2}, v152
        v_min_u32 v152, L_code_end-L_code_begin-4, v152
        global_load_dword v153, v152, s[{sT+4}:{sT+5}]{NT('cpnt')}
        """)
    e(f"""
    s_mul_i32 s{sU}, s{sX}, 3
    s_add_u32 s{sU}, s{sU}, s{sT}
    s_sub_u32 s{sT+1}, s{sX}, s{sIDX}
    s_and_b32 s{sT+1}, s{sT+1}, 7
    s_add_u32 s{sT+1}, s{sT+1}, 24
    s_cmp_eq_u32 s{sT}, 3
    s_cselect_b32 s{sU}, s{sT+1}, s{sU}
    """)
    e(f"""
    v_lshrrev_b32 v37, 3, v32
    v_and_b32 v38, 7, v32
    v_lshrrev_b32 v39, 4, v32
    v_xor_b32 v50, v38, v39
    v_lshlrev_b32 v50, 4, v50
    v_lshl_add_u32 v{vCD}, v37, 10, v50
    v_xor_b32 v51, 64, v{vCD}
    v_add_u32 v{vCD+1}, 7168, v51
    v_add_u32 v{vCD+2}, {2*7168}, v{vCD}
    v_add_u32 v{vCD+3}, {3*7168}, v51
    v_and_b32 v52, 15, v32
    v_lshlrev_b32 v53, 1, v39
    v_xor_b32 v53, v52, v53
    v_lshlrev_b32 v53, 4, v53
    v_lshl_add_u32 v{vWD}, v39, 13, v53
    v_add_u32 v{vWD+1}, {31744}, v{vWD}
    v_xor_b32 v51, 128, v{vWD}
    v_add_u32 v{vWD+2}, {2*31744}, v51
    v_add_u32 v{vWD+3}, {3*31744}, v51
    """)
    e(f"""
    s_lshl_b32 s{sSa}, s{sIDX}, 18
    s_lshl_b32 s{sT+1}, s{sW}, 16
    s_add_u32 s{sSa}, s{sSa}, s{sT+1}
    s_lshl_b32 s{sM0a}, s{sW}, 13
    s_and_b32 s{sT+1}, s{sW}, 1
    s_lshl_b32 s{sSb}, s{sT+1}, 17
    s_lshl_b32 s{sT+2}, s{sH}, 8
    s_add_u32 s{sSb}, s{sSb}, s{sT+2}
    s_lshl_b32 s{sM0b}, s{sW}, 12
    s_add_u32 s{sM0b}, s{sM0b}, 0x10000
    s_waitcnt lgkmcnt(0)
    """)
    srd(e, R1, pC, 2048 * 1024)
    e(f"s_cmp_ge_u32 s{sW}, 2\ns_cselect_b32 s{R2}, s{pWUV}, s{pWUK}\ns_cselect_b32 s{R2+1}, s{pWUV+1}, s{pWUK+1}")
    e(f"s_and_b32 s{R2+1}, s{R2+1}, 0xffff\ns_mov_b32 s{R2+2}, {512*8192}\ns_mov_b32 s{R2+3}, 0x20000")
    for q in range(8): emit_dma(e, p1_cdma(0, q), "c0")
    for u in range(4): emit_dma(e, p1_wdma(0, u), "w0")
    for x, tag in PRO2()[:OPT.get("np", 28) - 12]: emit_dma(e, x, tag)
    e(f"s_add_u32 s{sT+2}, s{pWS}, {FL}\ns_addc_u32 s{sT+3}, s{pWS+1}, 0\ns_load_dword s{sTAG}, s[{sT+2}:{sT+3}], 0")
    LATE.l.clear()
    srd(e, RWS, pWS, WS_END)
    if OPT.get("late"): e = LATE
    srd(e, R0, pX, 2048 * 1280)
    srd(e, R3, pB1, 1728 * 2)
    e(f"""
    v_lshrrev_b32 v34, 5, v32
    v_and_b32 v35, 31, v32
    v_mul_u32_u24 v36, 1280, v34
    v_lshl_add_u32 v36, v35, 3, v36
    s_lshl_b32 s89, s2, 2
    s_add_u32 s89, s89, s{sW}
    s_mul_i32 s89, s89, 2560
    v_lshlrev_b32 v151, 3, v39
    s_lshl_b32 s90, s{sU}, 7
    """)
    e(f"""
    s_lshl_b32 s{sT+4}, s{sH}, 8
    s_mul_i32 s{sT+2}, s{sIDX}, 80
    s_mul_i32 s{sT+3}, s{sW}, 20
    s_add_u32 s{sT+2}, s{sT+2}, s{sT+3}
    s_lshl_b32 s{sT+3}, s{sT+2}, 13
    s_add_u32 s{sT+3}, s{sT+3}, s{sT+4}
    s_mul_i32 s{sT+2}, s{sT+2}, 3456
    s_lshl_b32 s{sT+4}, s{sU}, 7
    s_add_u32 s{sT+2}, s{sT+2}, s{sT+4}
    v_min_u32 v140, {7 if OPT.get("tsp") else 39}, v32
    v_and_b32 v144, 1, v140
    v_lshlrev_b32 v144, 7, v144
    v_lshrrev_b32 v140, 1, v140
    v_lshl_add_u32 v140, v140, 13, v144
    v_min_u32 v145, {3 if OPT.get("tsp") else 19}, v32
    v_mul_u32_u24 v145, 3456, v145
    """)
    srd(e, 84, pWQ, 640 * 8192)
    e(f"s_mov_b32 s93, s{sT+3}\ns_mov_b32 s94, s{sT+2}")

PC = OPT.get('pc', 0)
CSLOT = (0, 32768) * 4 if PC else (32768, 0, 131072, 32768, 0, 32768, 0, 32768)
vCR2 = 124; vWR2 = 160
def p1_cdma(j, q):
    setup = []
    if q % 4 == 0:
        setup = [f"s_add_u32 m0, s{sM0a}, {CSLOT[j] + (q >> 2) * 4096}", f"s_add_u32 s{sT}, s{sSa}, {j * 128 + (q >> 2) * 32768}"]
    return setup, f"buffer_load_dwordx4 v{vCD + (q & 3)}, s[{R1}:{R1+3}], s{sT} offen offset:{(q & 3) * 1024}{NT('cnt')} lds"
def p1_wslot(sidx): return ((1, 0, 2, 1, 0, 2, 1, 0)[sidx >> 1] * 2 + (sidx & 1) if PC else (sidx + 2) & 3) * 16384
def p1_wdma(sidx, u):
    setup = []
    if u == 0:
        setup = [f"s_add_u32 m0, s{sM0b}, {p1_wslot(sidx)}", f"s_add_u32 s{sT+1}, s{sSb}, {sidx * 32 * 8192}"]
    return setup, f"buffer_load_dwordx4 v{vWD + u}, s[{R2}:{R2+3}], s{sT+1} offen offset:{u * 1024}{NT('wnt')} lds"

def PRO2():
    L = [(p1_wdma(1, u), "w1") for u in range(4)] + [(p1_cdma(1, q), "c1") for q in range(8)] + [(p1_wdma(2, u), "w2") for u in range(4)]
    return L
def emit_dma(e, pair, tag):
    su, d = pair
    for x in su: e(x)
    if su: e("s_nop 0")
    e(d, tag=tag)

def reduce32(r, t):
    L = []
    for mod in ("quad_perm:[1,0,3,2]", "quad_perm:[2,3,0,1]", "row_half_mirror", "row_mirror"):
        L += ["s_nop 0", f"v_add_f32_dpp v{r}, v{r}, v{r} {mod} row_mask:0xf bank_mask:0xf"]
    return L + [f"v_mov_b32 v{t}, v{r}", "s_nop 0", f"v_permlane16_swap_b32 v{r}, v{t}", f"v_add_f32 v{r}, v{r}, v{t}"]

def ln_ops():
    L = []; U = 50
    for k in range(10): L += [f"v_lshlrev_b32 v{U+2*k}, 16, v{40+k}", f"v_and_b32 v{U+1+2*k}, 0xffff0000, v{40+k}"]
    L += [f"v_add_f32 v70, v{U}, v{U+1}"] + [f"v_add_f32 v70, v70, v{U+k}" for k in range(2, 20)]
    L += reduce32(70, 71) + [f"v_mul_f32 v70, {f32(1/640)}, v70"]
    L += [f"v_sub_f32 v{U+k}, v{U+k}, v70" for k in range(20)]
    L += [f"v_mul_f32 v72, v{U}, v{U}"] + [f"v_fmac_f32 v72, v{U+k}, v{U+k}" for k in range(1, 20)]
    L += reduce32(72, 73)
    L += [f"v_mov_b32 v73, {f32(1e-5)}", f"v_fmac_f32 v73, {f32(1/640)}, v72", "v_rsq_f32 v73, v73", f"v_mul_f32 v73, {f32(CS)}, v73"]
    L += [f"v_mul_f32 v{U+k}, v{U+k}, v73" for k in range(20)]
    for k in range(5):
        L += [f"v_cvt_pk_bf16_f32 v{40+2*k}, v{U+4*k}, v{U+4*k+1}", f"v_cvt_pk_bf16_f32 v{41+2*k}, v{U+4*k+2}, v{U+4*k+3}"]
    return L

def p0_ln(e):
    e(f"""
    v_lshrrev_b32 v54, 1, v52
    v_xor_b32 v54, v54, v39
    v_lshlrev_b32 v54, 4, v54
    v_lshl_add_u32 v54, v52, 7, v54
    s_and_b32 s{sT+2}, s{sW}, 1
    s_lshl_b32 s{sT+2}, s{sT+2}, 14
    v_add_u32 v{vCR}, s{sT+2}, v54
    v_xor_b32 v{vCR+1}, 64, v{vCR}
    v_add_u32 v{vCR2}, 0x20000, v{vCR}
    v_add_u32 v{vCR2+1}, 0x20000, v{vCR+1}
    v_lshrrev_b32 v55, 2, v52
    v_and_b32 v56, 1, v39
    v_lshl_add_u32 v56, v56, 2, v55
    v_lshlrev_b32 v56, 5, v56
    v_and_b32 v57, 3, v32
    v_lshlrev_b32 v57, 3, v57
    v_lshl_add_u32 v57, v55, 8, v57
    v_lshl_add_u32 v58, v39, 11, v57
    s_lshr_b32 s{sT+2}, s{sW}, 1
    s_lshl_b32 s{sT+2}, s{sT+2}, 13
    s_add_u32 s{sT+2}, s{sT+2}, 0x10000
    v_add_u32 v58, s{sT+2}, v58
    v_mul_u32_u24 v59, 3072, v39
    v_add_u32 v59, v59, v57
    v_add_u32 v59, {(88 if OPT.get('qc') else 96)*1024}, v59
    """)
    for i in range(8): e(f"v_xor_b32 v{vWQR+i}, {32*i}, v56\nv_add_u32 v{vWR+i}, v{vWQR+i}, v58")
    e0 = e
    if OPT.get("late"): e = LATE
    for i in range(8): e(f"v_add_u32 v{vWQR+i}, v{vWQR+i}, v59")
    if PC:
        for i in range(8): e(f"v_add_u32 v{vWR2+i}, 0x10000, v{vWR+i}")
    e(f"""
    v_lshrrev_b32 v60, 1, v55
    v_and_b32 v61, 1, v39
    v_lshl_add_u32 v60, v61, 1, v60
    v_lshlrev_b32 v60, 5, v60
    v_and_b32 v61, 3, v32
    v_lshlrev_b32 v61, 3, v61
    v_lshl_add_u32 v61, v55, 7, v61
    v_mul_u32_u24 v62, 3072, v39
    v_add3_u32 v61, v61, v62, 0
    v_add_u32 v61, {(88 if OPT.get('qc') else 96)*1024 + 2048}, v61
    """)
    for i in range(4):
        e(f"v_xor_b32 v62, {32*i}, v60\nv_add_u32 v{vW1R+i}, v62, v61")
    if not OPT.get("late"): e("s_waitcnt lgkmcnt(0)")
    e(f"s_mul_i32 s{sTAG}, s{sTAG}, 0x9E3779B1\ns_add_u32 s{sTAG}, s{sTAG}, 0x7F4A7C15")
    if W0: e(f"s_cmp_eq_u32 s{sW}, 0\ns_cselect_b32 s{sTAGW}, s{sTAG}, 0")
    e(f"""
    v_lshrrev_b32 v88, 1, v35
    v_mul_u32_u24 v88, 144, v88
    v_and_b32 v89, 1, v35
    v_lshl_add_u32 v88, v89, 3, v88
    v_lshl_add_u32 v88, v34, 4, v88
    s_lshl_b32 s{sT+2}, s{sW}, 5
    s_add_u32 s{sT+2}, s{sT+2}, 0x20000
    v_add_u32 v76, s{sT+2}, v88
    """)
    e(f"""
    v_lshlrev_b32 v126, 8, v37
    v_lshl_add_u32 v126, v38, 4, v126
    s_lshr_b32 s{sXS}, s2, 1
    s_mul_i32 s{sXS}, s{sXS}, 20480
    s_and_b32 s{sT+3}, s2, 1
    s_lshl_b32 s{sT+3}, s{sT+3}, 7
    s_add_u32 s{sXS}, s{sXS}, s{sT+3}
    s_lshl_b32 s{sT+3}, s{sW}, 11
    s_add_u32 s{sXS}, s{sXS}, s{sT+3}
    s_add_u32 s{sXS}, s{sXS}, {XS}
    s_add_u32 s{sXS+1}, s{sXS}, 8192
    s_add_u32 s{sXS+2}, s{sXS}, 16384
    s_cmp_ge_u32 s{sW}, 2
    s_cselect_b32 s{sXS+2}, {WS_END}, s{sXS+2}
    s_mul_i32 s{sT+5}, s{sW}, {8*144}
    s_add_u32 s{sT+5}, s{sT+5}, 0x20000
    v_mul_u32_u24 v77, 144, v37
    v_lshl_add_u32 v77, v38, 4, v77
    v_add_u32 v77, s{sT+5}, v77
    """)
    e(f"""
    s_lshl_b32 s{sQ}, s{sH}, 3
    s_add_u32 s{sQ}, s{sQ}, s{sIDX}
    s_mul_i32 s{sQ}, s{sQ}, {FS}
    s_add_u32 s{sQ}, s{sQ}, {FKV}
    s_lshl_b32 s{sQ+1}, s{sIDX}, 5
    s_add_u32 s{sQ+1}, s{sQ+1}, s{sH}
    s_mul_i32 s{sQ+1}, s{sQ+1}, {FS}
    s_add_u32 s{sQ+1}, s{sQ+1}, {FH}
    s_mul_i32 s{sQ+2}, s2, {FS}
    s_add_u32 s{sQ+2}, s{sQ+2}, {FXS}
    s_sub_u32 s{sQ+3}, s{sU}, 27
    s_mul_i32 s{sT+5}, s{sX}, 5
    s_add_u32 s{sQ+3}, s{sQ+3}, s{sT+5}
    v_mov_b32 v91, 0
    v_mov_b32 v92, 0x10000000
    v_lshl_add_u32 v93, v33, 6, v32
    v_cmp_eq_u32 vcc, 0, v93
    v_mov_b32 v{vTAG}, s{sTAG}
    v_and_b32 v127, 15, v32
    v_cndmask_b32 v{vSC}, v92, v91, vcc
    s_lshl_b32 s{sT+5}, s{sIDX}, 4
    s_sub_u32 s{sT+4}, 240, s{sT+5}
    v_and_b32 v93, 16, v32
    v_cmp_eq_u32 vcc, 0, v93
    v_mov_b32 v91, s{sT+5}
    v_mov_b32 v92, s{sT+4}
    v_cndmask_b32 v91, v92, v91, vcc
    v_add_u32 v127, v127, v91
    v_lshlrev_b32 v127, 7, v127
    """)

def p1_acc(T, i, j):
    if OPT.get("contig"):
        if T == "K": return 8 * (8 * (j >> 1) + 2 * (i >> 1) + (j & 1)) + 4 * (i & 1)
        return 8 * (8 * (j >> 1) + i) + 4 * (j & 1)
    if T == "K": return 8 * (8 * (i >> 1) + 4 * (j & 1) + (j >> 1)) + 4 * (i & 1)
    return 32 * i + 4 * j
def p1_units():
    U = []
    for n in range(32):
        off = n * 1024 if OPT.get("contig") else (n & 3) * 8192 + (n >> 2) * 1024
        ins = []
        for k in range(4):
            tr = vTR + 2 * (k & 1); src = 8 * n + 2 * k
            ins += [f"v_accvgpr_read_b32 v{tr}, a{src}", f"v_accvgpr_read_b32 v{tr+1}, a{src+1}", f"v_cvt_pk_bf16_f32 v{vPK+k}, v{tr}, v{tr+1}"]
        ins.insert(6, f"s_add_u32 s{sT+7}, s{sST}, {off & ~4095}")
        if OPT["kvst"] != "skip": ins.append((f"buffer_store_dwordx4 v[{vPK}:{vPK+3}], v{vL16}, s[{RWS}:{RWS+3}], s{sT+7} offen offset:{off & 4095} {OPT['kvst']}", "kv"))
        U.append(ins)
    return U

def _kind(y):
    if callable(y): return "call"
    if isinstance(y, tuple) and y[0] == "BG": y = y[1]
    return I(y[0] if isinstance(y, tuple) else y).kind
class Bg:
    def __init__(self): self.q = []
    def push(self, ins): self.q += list(ins)
    def place(self, fill, g0, g1, maxv=1, step=1):
        for g in range(g0, g1, step):
            n = 0
            while self.q and n < maxv:
                x = self.q[0]; t = x[0] if isinstance(x, tuple) else x
                k = I(t).kind if not callable(t) else "call"
                if k in ("vms", "vml") and (n > 0 or any(_kind(y) in ("vml", "vms") for y in fill[g])): break
                fill[g].append(("BG", self.q.pop(0)))
                if k in ("salu", "nop"): continue
                n += 1
                if k in ("vms", "vml"): break
    def flush(self, e):
        for x in self.q:
            t, tag = x if isinstance(x, tuple) else (x, None)
            q = I(t); e.need(q.rd | q.wr); e(t, tag)
        self.q = []

def run_gaps(e, mf, fill, nxt=None):
    f2 = []
    for g in range(len(mf)):
        a = [x for x in fill[g] if not (isinstance(x, tuple) and x[0] == "BG")]
        b = [x[1] for x in fill[g] if isinstance(x, tuple) and x[0] == "BG"]
        if b:
            def mk(b):
                def f(e):
                    for x in b:
                        t, tag = x if isinstance(x, tuple) else (x, None)
                        q = I(t); e.need(q.rd | q.wr); e(t, tag)
                f.last = True
                return f
            a.append(mk(b))
        f2.append(a)
    e.gaps(mf, f2, nxt)

def put_dma(fill, g, pair, tag):
    su, d = pair
    for x in reversed(su): fill[g - 1].append(x)
    fill[g].append((d, tag))

QC = OPT.get('qc', 0); WB = (88 if QC else 96) * 1024
def qh_wslot(sidx): return ((4, 5, 3, 2, 1, 0)[sidx % 6] if QC else (sidx + 3) % 5) * 12288
def qh_dmas(sidx, hasH, d=0):
    L = []
    u32 = lambda x: x & 0xffffffff
    for j in range(4):
        su = [f"s_add_u32 m0, s{sM0a}, {u32((sidx & 3) * 16384 + d * 8192)}", f"s_mov_b32 s{sT}, {XS + sidx * 1024 + d * 40960}"] if j == 0 else []
        L.append((su, f"buffer_load_dwordx4 v{vXD + j}, s[{RWS}:{RWS+3}], s{sT} offen offset:{j * 1024} lds"))
    for u in range(2):
        su = [f"s_add_u32 m0, s{sM0b}, {u32(qh_wslot(sidx) + d * 6144)}", f"s_mov_b32 s{sT+1}, {sidx * 32 * 8192 + d * 131072}"] if u == 0 else []
        L.append((su, f"buffer_load_dwordx4 v{vWQD + u}, s[{R0}:{R0+3}], s{sT+1} offen offset:{u * 1024} lds"))
    if hasH:
        L.append(([f"s_mov_b32 s{sT+2}, {sidx * 32 * 3456 + d * 55296}"], f"buffer_load_dwordx4 v{vW1D}, s[{R1}:{R1+3}], s{sT+2} offen offset:2048 lds"))
    return L
def qh_xread(sidx, j):
    b = XNB[sidx & 1] + 4 * j
    return f"ds_read_b128 v[{b}:{b+3}], v{vXR} offset:{(sidx & 3) * 16384 + j * 1024}"
def qh_wread(sidx, i, n):
    r = (n % 3) * 8 + (sidx & 1) * 4 if QC else (n & 3) * 4
    if i < 8: a, second = vWQR + i, 1024
    else: a, second = vW1R + i - 8, 512
    o = qh_wslot(sidx)
    return [f"ds_read_b64_tr_b16 a[{r}:{r+1}], v{a} offset:{o}", f"ds_read_b64_tr_b16 a[{r+2}:{r+3}], v{a} offset:{o + second}"]

def spin(e, lab, pollA, cond, limit=1000000, sleep=None):
    if sleep is None: sleep = OPT.get('slp', 2)
    e(f"s_mov_b32 s{sT+6}, {limit}\n{lab}:")
    pollA(e)
    e(f"s_cbranch_vccz {lab}_ok\ns_sub_u32 s{sT+6}, s{sT+6}, 1\ns_cmp_eq_u32 s{sT+6}, 0\ns_cbranch_scc1 {lab}_ok\ns_sleep {sleep}\ns_branch {lab}\n{lab}_ok:")

def qh_setup(e):
    L = []
    L += [f"s_lshl_b32 s{sQ+4}, s{sIDX}, 3", f"s_add_u32 s{sQ+4}, s{sQ+4}, s{sW}", f"s_mul_i32 s{sQ+4}, s{sQ+4}, 20480",
          f"s_sub_u32 s{sQ+5}, 15, s{sIDX}", f"s_lshl_b32 s{sQ+5}, s{sQ+5}, 3", f"s_add_u32 s{sQ+5}, s{sQ+5}, s{sW}", f"s_mul_i32 s{sQ+5}, s{sQ+5}, 20480"]
    L += [f"v_add_u32 v{vXD}, s{sQ+4}, v{vL16}", f"v_add_u32 v{vXD+1}, {4*20480 - 1024}, v{vXD}",
          f"v_add_u32 v{vXD+2}, s{sQ+5}, v{vL16}", f"v_add_u32 v{vXD+3}, {4*20480 - 3072}, v{vXD+2}", f"v_subrev_u32 v{vXD+2}, 2048, v{vXD+2}"]
    return L

STAMP = False
TS = FL + 0x40000
def stamp(e, k):
    if not STAMP or (OPT.get("lite") and k not in (0, 14)): return
    if k: e("s_memrealtime s[96:97]\ns_memtime s[98:99]")
    e(f"""s_waitcnt lgkmcnt(0)
    s_lshl_b32 s97, s2, 2
    s_add_u32 s97, s97, s{sW}
    s_lshl_b32 s97, s97, 8
    s_add_u32 s97, s97, {TS + 8 * k}
    s_mov_b64 s[100:101], exec
    s_mov_b64 exec, 1
    {"v_mov_b32 v122" if k == 3 else "v_accvgpr_write_b32 a194" if k >= 7 else "v_accvgpr_write_b32 a254"}, s96
    {"v_mov_b32 v123" if k == 3 else "v_accvgpr_write_b32 a195" if k >= 7 else "v_accvgpr_write_b32 a255"}, s98
    s_nop 1
    buffer_store_dwordx2 {"v[122:123]" if k == 3 else "a[194:195]" if k >= 7 else "a[254:255]"}, off, s[{RWS}:{RWS+3}], s97
    s_mov_b64 exec, s[100:101]
    s_nop 3""")

def header():
    ref = open("cdna_kernels/" + NAME + ".s.ref").read().split("\n")
    kern = "\n".join(x for x in ref[:15] if x.startswith(";"))
    return f"""{kern}
; @launch grid=(256,1,1) block=(256,1,1) lds=163840
;
; One persistent launch, one workgroup (4 waves, 512 registers each) per CU.  Generated by a hand-written Python emitter.
; Workgroup = (head h, index i).  Phases, all on v_mfma_f32_16x16x32_bf16 with LDS-DMA staging:
;   1  K,V = c_kv * W_uk,W_uv for 256 keys of head h, written to d_ws in MFMA fragment order; in its shadow the layernorm of
;      8 rows (scaled by log2(e)/sqrt(128), which the GELU constants undo again) is written to d_ws
;   3  causal attention of both query blocks.  Scores come out of the MFMA already shifted by a running reference that starts as
;      reference to the true maximum of that tile, rescales O and l and redoes the tile.  When the short block is finished,
; Hand-offs between workgroups: write-through stores, vmcnt wait, barrier, then a flag word holding a tag derived from an epoch
; word in d_ws (advanced at the end of the launch), so stale flags of earlier launches never match; no placement is assumed.
.amdgcn_target "amdgcn-amd-amdhsa--gfx950"
.text
.globl {NAME}_kernel
.p2align 8
.type {NAME}_kernel,@function
{NAME}_kernel:
"""
def footer():
    return f"""
.section .rodata,"a"
.p2align 6
.amdhsa_kernel {NAME}_kernel
  .amdhsa_next_free_vgpr 512
  .amdhsa_next_free_sgpr 102
  .amdhsa_accum_offset 256
  .amdhsa_group_segment_fixed_size 0
  .amdhsa_kernarg_size 112
  .amdhsa_user_sgpr_count 2
  .amdhsa_user_sgpr_kernarg_segment_ptr 1
  .amdhsa_system_sgpr_workgroup_id_x 1
.end_amdhsa_kernel
"""

def code_touch(a, b, nl, vt, dst):
    return [grp([f"s_getpc_b64 s[{sT+4}:{sT+5}]", f"LT_{a}_{code_touch.n}:", f"s_add_u32 s{sT+4}, s{sT+4}, {a}-LT_{a}_{code_touch.n}", f"s_addc_u32 s{sT+5}, s{sT+5}, {code_touch.hi(a)}",
                 f"s_lshr_b32 s{sT+6}, s2, 3", f"s_lshl_b32 s{sT+6}, s{sT+6}, 2", f"s_add_u32 s{sT+6}, s{sT+6}, s{sW}", f"s_lshl_b32 s{sT+6}, s{sT+6}, 7"]),
            f"v_lshlrev_b32 v{vt}, 10, v{vL16}", f"v_min_u32 v{vt}, {(nl - 1) << 14}, v{vt}", f"v_add_u32 v{vt}, s{sT+6}, v{vt}", f"v_min_u32 v{vt}, {b}-{a}-4, v{vt}",
            f"global_load_dword {dst}, v{vt}, s[{sT+4}:{sT+5}]"]
code_touch.n = 0
code_touch.hi = lambda a: 0
def grp_all(L):
    def f(e):
        for x in L: x(e) if callable(x) else e(x)
    return f
def grp(L):
    def f(e):
        for x in L: e(x)
    return f
vTK = 22
def tick_pre(e):
    if OPT.get("ticks"): e("s_memtime s[96:97]")
def tick_post(e):
    if OPT.get("ticks") == 2:
        e(f"s_memtime s[98:99]\ns_waitcnt lgkmcnt(0)\ns_lshl_b64 exec, 1, s71\nv_mov_b32 v{vTK}, s96\ns_lshl_b64 exec, 2, s71\nv_mov_b32 v{vTK}, s98\ns_mov_b64 exec, -1\ns_add_u32 s71, s71, 2\ns_and_b32 s71, s71, 63")
    elif OPT.get("ticks"):
        e(f"s_waitcnt lgkmcnt(0)\ns_lshl_b64 exec, 1, s71\nv_mov_b32 v{vTK}, s96\ns_mov_b64 exec, -1\ns_add_u32 s71, s71, 1")
def tick_dump(e, k):
    if OPT.get("ticks"):
        e(f"""s_lshl_b32 s97, s2, 2
        s_add_u32 s97, s97, s{sW}
        s_lshl_b32 s97, s97, 12
        s_add_u32 s97, s97, {FL + 0x100000 + 1024 * k}
        buffer_store_dword v{vTK}, v{vL16}, s[{RWS}:{RWS+3}], s97 offen
        s_mov_b32 s71, 0
        s_nop 1""")
def bar(vmtags=(), lg0=True):
    def f(e):
        tick_pre(e)
        e.need(vmtags=vmtags, lg0=lg0); e("s_barrier")
        tick_post(e)
    return f

def p1_pre(e):
    e0 = e
    if OPT.get("late"): e = LATE
    e(f"""
    s_mul_i32 s{sST}, s{sH}, {HS}
    s_lshl_b32 s{sT+2}, s{sIDX}, 16
    s_add_u32 s{sST}, s{sST}, s{sT+2}
    s_and_b32 s{sT+2}, s{sW}, 1
    s_lshl_b32 s{sT+2}, s{sT+2}, 15
    s_add_u32 s{sST}, s{sST}, s{sT+2}
    s_cmp_ge_u32 s{sW}, 2
    s_cselect_b32 s{sT+2}, {VF-KF}, 0
    s_add_u32 s{sST}, s{sST}, s{sT+2}
    s_add_u32 s{sST}, s{sST}, {KF}
    s_lshl_b32 s{sT+2}, s{sW}, 12
    v_add_u32 v{vXR}, s{sT+2}, v{vL16}
    """)
    e(f"""
    s_and_b32 s{sT+2}, s{sW}, 1
    s_lshl_b32 s{sT+3}, s{sT+2}, 7
    v_xor_b32 v94, s{sT+3}, v{vWD}
    s_lshl_b32 s{sT+3}, s{sW}, 16
    s_lshl_b32 s{sT+4}, s{sH}, 8
    s_add_u32 s{sT+3}, s{sT+3}, s{sT+4}
    v_add_u32 v{vWQD}, s{sT+3}, v94
    v_add_u32 v{vWQD+1}, 31744, v{vWQD}
    """)
    e(f"""
    v_and_b32 v94, 1, v39
    v_lshlrev_b32 v94, 1, v94
    s_lshl_b32 s{sT+3}, s{sT+2}, 2
    v_or_b32 v94, s{sT+3}, v94
    v_xor_b32 v94, v94, v38
    v_lshlrev_b32 v94, 4, v94
    v_mul_u32_u24 v95, 3456, v37
    v_add_u32 v94, v94, v95
    s_mul_i32 s{sT+3}, s{sW}, {8*3456}
    s_lshl_b32 s{sT+4}, s{sU}, 7
    s_add_u32 s{sT+3}, s{sT+3}, s{sT+4}
    v_add_u32 v{vW1D}, s{sT+3}, v94
    """)
    for x in qh_setup(e): e(x)
    e = e0
    if not OPT.get("wl"): warm(e, "a")
    for x, tag in PRO2()[OPT.get("np", 28) - 12:OPT.get("np2", 28) - 12]: emit_dma(e, x, tag)
    if OPT.get("wl"): warm(e, "a")
    e.need(vmtags=("c0", "w0", "w1") if PC else ("c0", "w0"), lg0=True)
    e("s_barrier")
    if PC:
        for x in p1_wread(0) + p1_wread(8): e(x)
        for j in range(8): e(p1_cread(j & 1, j)); e(p1_cread(1 - (j & 1), j))
        return
    for j in range(8): e(p1_cread(0, j))
    for n in range(2):
        for x in p1_wread(n): e(x)

def hacc(ft, j): return HACC + (j * 2 + (ft >> 1)) * 8 + (ft & 1) * 4
def qacc(i, j): return QACC + (j * 4 + (i >> 1)) * 8 + (i & 1) * 4
def bias_init():
    L = []
    for ft in range(4):
        d = hacc(ft, 3)
        for k in range(2):
            L += [f"v_lshlrev_b32 v{d+2*k}, 16, v{114+2*ft+k}", f"v_and_b32 v{d+2*k+1}, 0xffff0000, v{114+2*ft+k}",
                  f"v_mul_f32 v{d+2*k}, {f32(CS)}, v{d+2*k}", f"v_mul_f32 v{d+2*k+1}, {f32(CS)}, v{d+2*k+1}"]
    return L

def p1_cread(sidx, j):
    b = vCB[sidx & 1] + 4 * j
    sl = CSLOT[sidx >> 1]
    return f"ds_read_b128 v[{b}:{b+3}], v{(vCR2 if sl > 65535 else vCR) + (sidx & 1)} offset:{(sl & 65535) + j * 2048}"
def p1_wread(n):
    sidx, i = divmod(n, 8); r = vWWIN + 4 * (n & 3); o = p1_wslot(sidx); a = vWR + i
    if PC:
        r = vWWIN + 8 * (i & 1) + 4 * (sidx & 1)
        if o >= 65536: a, o = vWR2 + i, o - 65536
    return [f"ds_read_b64_tr_b16 v[{r}:{r+1}], v{a} offset:{o}", f"ds_read_b64_tr_b16 v[{r+2}:{r+3}], v{a} offset:{o+1024}"]

W0 = OPT.get("w0", 1) and not OPT.get("ticks")
sTAGW = 71 if W0 else sTAG
def async_check(lab, reg, reload, tag=None):
    def f(e):
        e.need(f"v{reg}")
        e(f"v_cmp_ne_u32 vcc, s{tag or sTAG}, v{reg}\ns_cbranch_vccz {lab}_ok")
        sv, sl = list(e.vm), list(e.lg)
        def poll(e):
            e(reload); e("s_waitcnt vmcnt(0)"); e(f"v_cmp_ne_u32 vcc, s{tag or sTAG}, v{reg}")
        spin(e, lab, poll, None)
        e.vm, e.lg = sv, sl
    return f
def flag_store(sreg): return f"buffer_store_dword v{vTAG}, v{vSC}, s[{RWS}:{RWS+3}], s{sreg} offen sc1"

PARK = {0: 20, 1: 28, 2: 16, 3: 24}
def park_units():
    L = []
    for n in (2, 3, 0, 1):
        for k in range(4):
            tr = vTR + 2 * (k & 1); src = 8 * n + 2 * k
            L += [f"v_accvgpr_read_b32 v{tr}, a{src}", f"v_accvgpr_read_b32 v{tr+1}, a{src+1}", f"v_cvt_pk_bf16_f32 v{vPK+k}, v{tr}, v{tr+1}"]
        L += [f"v_accvgpr_write_b32 a{PARK[n]+k}, v{vPK+k}" for k in range(4)]
    return L
def parked_stores():
    L = []
    for n in range(4):
        L += [f"s_add_u32 s{sT+7}, s{sST}, {n * 8192}", (f"buffer_store_dwordx4 a[{PARK[n]}:{PARK[n]+3}], v{vL16}, s[{RWS}:{RWS+3}], s{sT+7} offen sc1", "kv")]
    return L

def p1_main_c(e, T, bg):
    fills = [[[] for _ in range(64)] for _ in range(16)]
    at = lambda G: fills[G >> 6][G & 63]
    B = lambda m: 128 * m + 111
    Bp = lambda m: 128 * m + 15
    def put(L, G0, G1):
        st = (G1 - G0) // len(L); assert st >= 2, (G0, G1, len(L))
        for k, ((su, d), tag) in enumerate(L):
            for x in reversed(su): at(G0 + st * k - 1).append(x)
            at(G0 + st * k).append((d, tag))
    Wd = lambda s_: [(p1_wdma(s_, u), f"w{s_}") for u in range(4)]
    Cd = lambda j: [(p1_cdma(j, q), f"c{j}") for q in range(8)]
    xl = [(([], f"buffer_load_dwordx2 v[{40+2*k}:{41+2*k}], v36, s[{R0}:{R0+3}], s89 offen offset:{256*k}"), "x") for k in range(5)]
    bl = [(([], f"buffer_load_dwordx2 v[{114+2*ft}:{115+2*ft}], v151, s[{R3}:{R3+3}], s90 offen offset:{32*ft}"), "b1") for ft in range(4)]
    def tch(k):
        su = [grp([f"s_mov_b32 s{R3}, s{pW1}", f"s_and_b32 s{R3+1}, s{pW1+1}, 0xffff", f"s_mov_b32 s{R3+2}, {640*3456}", f"s_mov_b32 s{R3+3}, 0x20000"])] if k == 0 else [f"s_add_u32 s94, s94, {4*3456}"]
        return [(([] if k == 0 else [f"s_add_u32 s93, s93, {4*8192}"], f"buffer_load_dword v149, v140, s[84:87], s93 offen"), "tc"), ((su, f"buffer_load_dword v150, v145, s[{R3}:{R3+3}], s94 offen"), "tc")]
    xst = [(([], f"buffer_store_dwordx4 v[{128+4*k}:{131+4*k}], v126, s[{RWS}:{RWS+3}], s{sXS+k} offen sc1"), "xs") for k in range(3)]
    PXL = f"buffer_load_dword v122, v127, s[{RWS}:{RWS+3}], s{sT+5} offen sc1"
    pxs = [(([grp([f"s_mov_b32 s{sT+5}, {WS_END}", f"s_cmp_eq_u32 s{sW}, 0", f"s_cselect_b32 s{sT+5}, {FXS}, s{sT+5}"]) if W0 else f"s_mov_b32 s{sT+5}, {FXS}"], PXL), "pa")]
    Q = lambda k: [(d, f"q{k}") for d in qh_dmas(k, True)]
    put(PRO2()[OPT.get("np2", 28) - 12:] + Wd(3), 2, 14)
    if OPT.get("xl2"):
        put(Cd(2) + Wd(4) + Wd(5), Bp(0) + 2, B(0) - 20)
        put(xl + Wd(6) + Wd(7), B(0) + 2, Bp(1) - 1)
        put(Cd(3) + bl + tch(0) + tch(1), Bp(1) + 2, B(1) - 20)
    else:
        put(Wd(4) + Wd(5) + Cd(2) + xl + bl, Bp(0) + 2, B(0) - 1)
        put(Wd(6) + Wd(7), B(0) + 2, Bp(1) - 1)
        put(Cd(3) + tch(0) + tch(1), Bp(1) + 2, B(1) - 30)
    put(Wd(8) + Wd(9), B(1) + 2, Bp(2) - 1)
    put(Cd(4) + tch(2) + tch(3), Bp(2) + 2, B(2) - 30)
    put(tch(4), B(2) + 2, B(2) + 10)
    put(Cd(5) + xst, Bp(3) + 2, B(3) - 40)
    put(Wd(10) + Wd(11), B(3) + 2, Bp(4) - 1)
    fl_ = [(([], flag_store(sQ + 2)), "fl")]
    put(Wd(12) + Wd(13) + Cd(6) + fl_ if OPT.get("fll") else fl_ + Wd(12) + Wd(13) + Cd(6), Bp(4) + 2, B(4) - (30 if OPT.get("fll") else 10))
    put(Wd(14) + Wd(15), B(4) + 2, Bp(5) - 1)
    put(Cd(7), Bp(5) + 2, B(5) - 50)
    put(pxs, B(5) - 30, B(5) - 28)
    put(Q(0) + Q(1), Bp(6) + 3, B(6) - 20)
    put(Q(2) + Q(3), Bp(7) + 2, Bp(7) + 44)
    for m in range(8):
        for i in range(8):
            m2, i2 = divmod(8 * m + i + 1, 8)
            if m2 < 8:
                for k, x in enumerate(p1_wread(16 * m2 + i2) + p1_wread(16 * m2 + 8 + i2)): at(128 * m + 16 * i + 2 * k).append(x)
        if m < 7:
            for j in range(8):
                for z in range(2): at(128 * m + 112 + 2 * j + z).append(p1_cread(2 * m + 2 + (z ^ (j & 1)), j))
            at(B(m)).append(bar([f"w{2*m+2}", f"w{2*m+3}", f"c{m+1}"]))
        if m == 6: at(Bp(m)).append(async_check(f"L_sa{T}", 122, PXL, sTAGW))
        at(Bp(m)).append(bar(["xs"] if m == 4 else []))
    f = fills[15]
    f[47].append(bar(["q0", "q1"]))
    R_ = [qh_xread(z, j) for j in range(4) for z in range(2)] + [x for n in range(2) for z in range(2) for x in qh_wread(z, n, n)]
    assert QC
    for k, x in enumerate(bias_init()): fills[8 + (k >> 4)][20 + 2 * (k & 15)].append(x)
    place_list(LATE.l, fills, 0, 0, 64, (2, 0))
    lb = Bg(); lb.push(ln_ops())
    for ks in range(2, 5): lb.place(fills[ks], (56 if OPT.get("xl2") else 8) if ks == 2 else 0, 64)
    lb.place(fills[5], 0, 46); assert not lb.q, len(lb.q)
    for k in range(5): at(B(2) + 18 + 2 * k).append(f"ds_write_b64 v76, v[{40+2*k}:{41+2*k}] offset:{k*2304}")
    for k in range(3): at(Bp(3) + 10 + 2 * k).append(f"ds_read_b128 v[{128+4*k}:{131+4*k}], v77 offset:{4608*k}")
    qs = [f"s_mov_b32 s{R0}, s{pWQ}", f"s_and_b32 s{R0+1}, s{pWQ+1}, 0xffff", f"s_mov_b32 s{R0+2}, {640*8192}", f"s_mov_b32 s{R0+3}, 0x20000",
          f"s_sub_u32 s{R1}, s{pW1}, 2048", f"s_subb_u32 s{R1+1}, s{pW1+1}, 0", f"s_and_b32 s{R1+1}, s{R1+1}, 0xffff",
          f"s_cmp_lt_u32 s{sU}, 27", f"s_cselect_b32 s{R1+2}, {640*3456 + 2048}, 0", f"s_mov_b32 s{R1+3}, 0x20000",
          f"s_lshl_b32 s{sM0a}, s{sW}, 12", f"s_mul_i32 s{sM0b}, s{sW}, 3072", f"s_add_u32 s{sM0b}, s{sM0b}, {WB}"]
    fills[12][2].append(grp(qs[:4])); fills[12][6].append(grp(qs[4:10])); fills[12][10].append(grp(qs[10:]))
    bg.push([x for u in p1_units() for x in u])
    bg.place(fills[14], 60, 64); bg.place(fills[15], 0, 64)
    allm = []
    for m in range(8):
        for i in range(8):
            for j in range(8):
                for z in range(2):
                    sp = z ^ (j & 1); d = p1_acc(T, i, j); w = vWWIN + 8 * (i & 1) + 4 * sp; c = vCB[sp] + 4 * j
                    A, B_ = (w, c) if T == "K" else (c, w)
                    allm.append(f"{MF} a[{d}:{d+3}], v[{A}:{A+3}], v[{B_}:{B_+3}], " + ("0" if (m == 0 and z == 0) else f"a[{d}:{d+3}]"))
    for j in range(8):
        f[48 + 2 * j + (j & 1)].append(qh_xread(j >> 2, j & 3)); f[49 + 2 * j - (j & 1)].append(R_[8 + j])
    for sidx in range(16):
        run_gaps(e, allm[64 * sidx:64 * sidx + 64], fills[sidx], allm[64 * sidx + 64] if sidx < 15 else None)

def p1_main(e, T, bg):
    if PC: return p1_main_c(e, T, bg)
    fills = [[[] for _ in range(64)] for _ in range(16)]
    LNE = OPT.get("lne", 6)
    def pos(ep):
        p = [(ep - 1, g) for g in (50, 54, 58, 62)] + [(ep, g) for g in (range(2, 47, OPT.get("sp0", 2)) if ep == 0 else range(2, 47, 3 if ep < 7 else 4) if ep < 15 else range(2, 30, 3))]
        return [x for x in p if 0 <= x[0] < 16]
    for ep in range(0, 16):
        L = []
        cj = ({0: 2, 1: 3, 3: 4, 7: 5, 9: 6, 11: 7} if OPT.get("cs", 0) == 0 else {1: 2, 2: 3, 4: 4, 7: 5, 9: 6, 11: 7} if OPT["cs"] == 1 else {0: 2, 2: 3, 4: 4, 7: 5, 9: 6, 11: 7}).get(ep)
        Lc = [(p1_cdma(cj, q), f"c{cj}") for q in range(8)] if cj else []
        Lw = [(p1_wdma(ep + 3, u), f"w{ep+3}") for u in range(4)] if ep + 3 < 16 else []
        if ep == 0: L += PRO2()[OPT.get("np2", 28) - 12:]
        L += Lw + Lc if ep < 5 else Lc + Lw
        if ep == OPT.get("xe", 0):
            L += [(([], f"buffer_load_dwordx2 v[{40+2*k}:{41+2*k}], v36, s[{R0}:{R0+3}], s89 offen offset:{256*k}{NT('xnt')}"), "x") for k in range(5)]
        if ep == OPT.get("be", 2):
            L += [(([], f"buffer_load_dwordx2 v[{114+2*ft}:{115+2*ft}], v151, s[{R3}:{R3+3}], s90 offen offset:{32*ft}{NT('xnt')}"), "b1") for ft in range(4)]
        if OPT.get("tsp") and OPT.get("te", 2) <= ep < OPT.get("te", 2) + 5 * OPT["tsp"] and (ep - OPT.get("te", 2)) % OPT["tsp"] == 0:
            su = [grp([f"s_mov_b32 s{R3}, s{pW1}", f"s_and_b32 s{R3+1}, s{pW1+1}, 0xffff", f"s_mov_b32 s{R3+2}, {640*3456}", f"s_mov_b32 s{R3+3}, 0x20000"])] if ep == OPT.get("te", 2) else [f"s_add_u32 s94, s94, {4*3456}"]
            L += [(([] if ep == OPT.get("te", 2) else [f"s_add_u32 s93, s93, {4*8192}"], f"buffer_load_dword v149, v140, s[84:87], s93 offen"), "tc"),
                  ((su, f"buffer_load_dword v150, v145, s[{R3}:{R3+3}], s94 offen"), "tc")]
        if ep == OPT.get("ce", 99):
            code_touch.n += 1
            ct = code_touch("L_qhH", "L_code_end", 7, 154, "v155")
            L += [(([grp_all(ct[:-1])], ct[-1]), "tc")]
        if ep == OPT.get("te", 2) and not OPT.get("tsp") and not OPT.get("tcon"):
            L += [(([], f"buffer_load_dword v149, v140, s[84:87], s93 offen{NT('tnt')}"), "tc"),
                  (([grp([f"s_mov_b32 s84, s{pW1}", f"s_and_b32 s85, s{pW1+1}, 0xffff", f"s_mov_b32 s86, {640*3456}", "s_mov_b32 s87, 0x20000"])], f"buffer_load_dword v150, v145, s[84:87], s94 offen{NT('tnt')}"), "tc")]
        if ep == LNE: L += [(([], f"buffer_store_dwordx4 v[{128+4*k}:{131+4*k}], v126, s[{RWS}:{RWS+3}], s{sXS+k} offen sc1"), "xs") for k in range(3)]
        if ep == LNE + 2: L += [(([], flag_store(sQ + 2)), "fl")]
        if ep == 11: L += [(([grp([f"s_mov_b32 s{sT+5}, {WS_END}", f"s_cmp_eq_u32 s{sW}, 0", f"s_cselect_b32 s{sT+5}, {FXS}, s{sT+5}"]) if W0 else f"s_mov_b32 s{sT+5}, {FXS}"], f"buffer_load_dword v122, v127, s[{RWS}:{RWS+3}], s{sT+5} offen sc1"), "pa")]
        if ep == 13: L += [(d, "q0") for d in qh_dmas(0, True)]
        if ep == 14: L += [(d, "q1") for d in qh_dmas(1, True)]
        if ep == 15: L += [(d, "q2") for d in qh_dmas(2, True)] + [(d, "q3") for d in qh_dmas(3, True)]
        P = pos(ep); assert len(L) <= len(P)
        for (d, tag), (ks, g) in zip(L, P): put_dma(fills[ks], g, d, tag)
    for sidx in range(16):
        f = fills[sidx]
        for i in range(8):
            n = 8 * sidx + i + 2
            if n < 128:
                a, b = p1_wread(n); f[8 * i].append(a); f[8 * i + 1].append(b)
        if sidx < 15:
            for j in range(8): f[3 + 4 * j].append(p1_cread(sidx + 1, j))
            tags = [f"w{sidx+1}", f"c{(sidx+2)>>1}"]
            if sidx == LNE + 1: tags.append("xs")
            if sidx == 12:
                f[47].append(async_check(f"L_sa{T}", 122, f"buffer_load_dword v122, v127, s[{RWS}:{RWS+3}], s{sT+5} offen sc1", sTAGW))
            f[47].append(bar(tags))
        else:
            f[47].append(bar(["q0", "q1"]))
            if QC:
                R_ = [qh_xread(z, j) for j in range(4) for z in range(2)] + [x for n in range(2) for z in range(2) for x in qh_wread(z, n, n)]
                for k, x in enumerate(R_): f[48 + k].append(x)
            else:
                for j in range(4): f[49 + 2 * j].append(qh_xread(0, j))
                for n in range(3):
                    a, b = qh_wread(0, n, n); f[56 + 2 * n].append(a); f[57 + 2 * n].append(b)
    for k, x in enumerate(bias_init()): fills[8 + (k >> 4)][32 + (k & 15) + ((k & 15) == 15)].append(x)
    if OPT.get("late"): place_list(LATE.l, fills, 0, 0, 64, (2, 0))
    lb = Bg(); lb.push(ln_ops())
    LNK = OPT.get("lnk", 4)
    for ks in range(LNE - LNK, LNE): lb.place(fills[ks], 0, 64 if ks < LNE - 1 else 20, maxv=1 if LNK >= 4 else 2)
    assert not lb.q and LNE >= 6, len(lb.q)
    for k in range(5): fills[LNE - 1][22 + 4 * k].append(f"ds_write_b64 v76, v[{40+2*k}:{41+2*k}] offset:{k*2304}")
    for k in range(3): fills[LNE - 1][51 + 4 * k].append(f"ds_read_b128 v[{128+4*k}:{131+4*k}], v77 offset:{4608*k}")
    qs = [f"s_mov_b32 s{R0}, s{pWQ}", f"s_and_b32 s{R0+1}, s{pWQ+1}, 0xffff", f"s_mov_b32 s{R0+2}, {640*8192}", f"s_mov_b32 s{R0+3}, 0x20000",
          f"s_sub_u32 s{R1}, s{pW1}, 2048", f"s_subb_u32 s{R1+1}, s{pW1+1}, 0", f"s_and_b32 s{R1+1}, s{R1+1}, 0xffff",
          f"s_cmp_lt_u32 s{sU}, 27", f"s_cselect_b32 s{R1+2}, {640*3456 + 2048}, 0", f"s_mov_b32 s{R1+3}, 0x20000",
          f"s_lshl_b32 s{sM0a}, s{sW}, 12", f"s_mul_i32 s{sM0b}, s{sW}, 3072", f"s_add_u32 s{sM0b}, s{sM0b}, {WB}"]
    fills[12][4].append(grp(qs[:4])); fills[12][10].append(grp(qs[4:10])); fills[12][14].append(grp(qs[10:]))
    if OPT.get("contig"):
        U = p1_units()
        bg.push(U[0] + U[1]); bg.place(fills[15], 24, 46, maxv=2); assert not bg.q
        bg.push(U[2] + U[3]); bg.place(fills[15], 48, 64, maxv=2)
        bg.push([x for u in U[4:] for x in u])
    elif T == "K" or OPT.get("norole"):
        bg.push([x for u in p1_units() for x in u])
        bg.place(fills[15], 24, 46, maxv=2); bg.place(fills[15], 48, 64, maxv=2)
    else:
        bg.push(park_units())
        bg.place(fills[15], 19, 46, maxv=2); bg.place(fills[15], 48, 55, maxv=2)
        assert not bg.q
        bg.push(parked_stores() + [x for u in p1_units()[4:] for x in u])
    mfs = []
    for sidx in range(16):
        mf = []
        for i in range(8):
            for j in range(8):
                d = p1_acc(T, i, j); w = vWWIN + 4 * ((8 * sidx + i) & 3); c = vCB[sidx & 1] + 4 * j
                A, B = (w, c) if T == "K" else (c, w)
                mf.append(f"{MF} a[{d}:{d+3}], v[{A}:{A+3}], v[{B}:{B+3}], " + ("0" if sidx == 0 else f"a[{d}:{d+3}]"))
        mfs.append(mf)
    for sidx in range(16):
        run_gaps(e, mfs[sidx], fills[sidx], mfs[sidx + 1][0] if sidx < 15 else None)

vKVD = vXR
sKo, sVo, sMK, sMV = 76, 77, 78, 79
def kv_dma(kind, static_pair=None):
    so, mb, rs = (sKo, sMK, R2) if kind == "K" else (sVo, sMV, R3)
    L = []
    for k in range(4):
        su = []
        if k == 0:
            su = [f"s_add_u32 m0, s{sT+3}, s{mb}", f"s_and_b32 s{sT+3}, s{so}, 0xc000"]
        L.append((su, f"buffer_load_dwordx4 v{vKVD}, s[{rs}:{rs+3}], s{so} offen offset:{k*1024} {OPT.get('kvld', '')} lds".replace("  ", " ")))
    return L, f"s_add_u32 s{so}, s{so}, 16384"

def qh_main(e, T, hasH, bg):
    NI = 12 if hasH else 8; NG = 4 * NI; LA = 3
    NA = OPT.get("na", 7); BKV = OPT.get("bkv", 16); RATE = OPT.get("rate", 2) if hasH else 2
    fills = [[[] for _ in range(NG)] for _ in range(20)]
    bp = NG - 4 * LA - 1
    st = 3 if hasH else 2
    def pos(ep):
        p = [(ep - 1, g) for g in range(bp + 2, NG, st)] + [(ep, g) for g in range(5 if ep == 0 else 2, bp, st)]
        return [x for x in p if 0 <= x[0] < 20]
    pend = []; lastdma = None
    if QC:
        at = lambda G: fills[G // NG][G % NG]
        XD_ = OPT.get("xd", 0); xa = lambda st_, j: 32 + 16 * ((st_ - 4) % 6) + 4 * j
        bG = lambda m: 2 * NG * m + 8 * (NI - 2) - 1
        for m in range(8):
            a, b = qh_dmas(2 * m + 4, hasH), qh_dmas(2 * m + 5, hasH)
            if XD_:
                for st_, q in ((2 * m + 4, a), (2 * m + 5, b)):
                    for j in range(4):
                        q[j] = ([x for x in q[j][0] if "m0" not in x], q[j][1].replace("buffer_load_dwordx4 ", f"buffer_load_dwordx4 a[{xa(st_, j)}:{xa(st_, j)+3}], ").replace(" lds", ""))
            L = a[4:] + b[4:] + a[:4] + b[:4]
            G0 = bG(m - 1) + 3 if m else 2
            stp = (bG(m) - 2 - G0) // len(L)
            for k, (su, d) in enumerate(L):
                G = G0 + stp * k
                if XD_ and k >= len(L) - 8: G = bG(m) - 1 - 3 * (len(L) - k)
                for x in reversed(su): at(G - 1).append(x)
                at(G).append((d, f"q{m+2}p" if " lds" in d else None))
        for m in range(10):
            for i in range(NI):
                m2, i2 = divmod(NI * m + i + 2, NI)
                if m2 < 10:
                    for k, x in enumerate(qh_wread(2 * m2, i2, NI * m + i + 2) + qh_wread(2 * m2 + 1, i2, NI * m + i + 2)): at(2 * NG * m + 8 * i + 2 * k).append(x)
            if m < 9:
                for j in range(4 if (m == 0 or not XD_) else 0):
                    for z in range(2): at(2 * NG * m + 8 * (NI - 1) + 2 * j + z).append(qh_xread(2 * m + 2 + (z ^ (j & 1)), j))
                at(bG(m)).append(bar((["q2", "q3"] if m == 0 else [f"q{m+1}p"]) + (["kv"] if m == OPT.get("kvb", 8) else [])))
        at(bG(OPT.get("kvb", 8)) + 2).append((flag_store(sQ), "fl"))
    for ep in range(0, 0 if QC else 16):
        if OPT.get("norole"):
            a = qh_dmas(ep + 4, hasH)
            pend += [(d, f"q{ep+4}x") for d in a[:4]] + [(d, f"q{ep+4}") for d in a[4:]]
        elif (ep < NA) == (T == "V"):
            a, b = qh_dmas(ep + 4, hasH), qh_dmas(ep + 4, hasH, 1 if T == "K" else -1)
            pend += [(d, f"q{ep+4}x") for d in a[:4] + b[:4]] + [(d, f"q{ep+4}") for d in a[4:] + b[4:]]
        for ks, g in pos(ep):
            if pend:
                d, tag = pend.pop(0); put_dma(fills[ks], g, d, tag); lastdma = (ks, g)
    assert not pend
    for sidx in range(0 if QC else 20):
        f = fills[sidx]
        for i in range(NI):
            s2, i2 = divmod(NI * sidx + i + LA, NI)
            if s2 < 20:
                a, b = qh_wread(s2, i2, NI * sidx + i + LA); f[4 * i].append(a); f[4 * i + 1].append(b)
        if sidx < 19:
            for j in range(4): f[3 + 4 * j].append(qh_xread(sidx + 1, j))
            tags = [f"q{sidx+1}", f"q{sidx+2}x"]
            if sidx + 2 <= 3: tags.append(f"q{sidx+2}")
            if sidx == BKV: tags.append("kv")
            f[bp].append(bar(tags))
    if not QC: fills[BKV][bp + 2].append((flag_store(sQ), "fl"))
    assert BKV == 17
    qs = [f"s_mul_i32 s{sT+4}, s{sH}, {HS}", f"s_add_u32 s{sT+5}, s{sT+4}, {KF}", f"s_add_u32 s{R2}, s{pWS}, s{sT+5}", f"s_addc_u32 s{R2+1}, s{pWS+1}, 0",
          f"s_and_b32 s{R2+1}, s{R2+1}, 0xffff", f"s_sub_u32 s{R2+2}, 16, s{sIDX}", f"s_lshl_b32 s{R2+2}, s{R2+2}, 15", f"s_mov_b32 s{R2+3}, 0x20000",
          f"s_add_u32 s{sT+5}, s{sT+4}, {VF}", f"s_add_u32 s{R3}, s{pWS}, s{sT+5}", f"s_addc_u32 s{R3+1}, s{pWS+1}, 0",
          f"s_and_b32 s{R3+1}, s{R3+1}, 0xffff", f"s_mov_b32 s{R3+2}, s{R2+2}", f"s_mov_b32 s{R3+3}, 0x20000",
          f"s_mov_b32 s{sKo}, 0", f"s_mov_b32 s{sVo}, 0", f"s_lshl_b32 s{sMK}, s{sW}, 12", f"s_add_u32 s{sMV}, s{sMK}, 0x10000",
          f"s_mul_i32 s{sPK}, s{sH}, {8*FS}", f"s_add_u32 s{sPK}, s{sPK}, {FKV}"]
    fills[16][2].append(grp(qs[:8])); fills[16][6].append(grp(qs[8:14])); fills[16][10].append(grp(qs[14:]))
    fills[19][2].append(f"v_lshlrev_b32 v{vTR}, 3, v{vL16}"); fills[19][6].append(f"v_and_b32 v{vTR}, {7*FS}, v{vTR}")
    if OPT.get("pk19") and hasH: fills[19][OPT["pk19"]].append(PKL)
    hs = [f"s_mul_i32 s{sHA}, s{sIDX}, {54*8192}", f"s_lshl_b32 s{sT+5}, s{sU}, 14", f"s_add_u32 s{sT+5}, s{sT+5}, {HF}", f"s_lshl_b32 s{sT+4}, s{sW}, 10",
          f"s_add_u32 s{sT+5}, s{sT+5}, s{sT+4}", f"s_add_u32 s{sHA}, s{sHA}, s{sT+5}", f"s_sub_u32 s{sHB}, 15, s{sIDX}", f"s_mul_i32 s{sHB}, s{sHB}, {54*8192}",
          f"s_add_u32 s{sHB}, s{sHB}, s{sT+5}"] if hasH else [f"s_mov_b32 s{sHA}, {WS_END}", f"s_mov_b32 s{sHB}, {WS_END}"]
    fills[16][14].append(grp(hs))
    if OPT.get("cpf2") and hasH:
        code_touch.n += 1
        for k, x in enumerate(code_touch("L_attn", "L_p5", 3, vPK, f"v{vPK+1}")): fills[17][2 + 2 * k].append(x)
    if T == "K" or OPT.get("norole"): k0, g0 = 0, 0
    else: k0, g0 = lastdma[0], lastdma[1] + 1
    for sidx in range(k0, BKV):
        bg.place(fills[sidx], g0 if sidx == k0 else 0, NG, maxv=RATE, step=OPT.get("bstep", 1) if (hasH and sidx >= OPT.get("bfast", 0)) else 1)
    assert not bg.q, len(bg.q)
    if hasH:
        lastbg = max((ks, g) for ks in range(20) for g in range(NG) if any(isinstance(x, tuple) and x[0] == "BG" for x in fills[ks][g]))
        assert lastbg < (BKV - 1, NG - 6) and lastbg < (2 * OPT.get("kvb", 8) + 1, 10), lastbg
        place_early(fills, BKV - 1, NG - 6, NG)
    mfs = []
    for sidx in range(20):
        mf = []
        for i in range(NI):
            w = ((NI * sidx + i) & 3) * 4
            for j in range(4):
                d = qacc(i, j) if i < 8 else hacc(i - 8, j)
                x = XNB[sidx & 1] + 4 * j
                if sidx: c = f"v[{d}:{d+3}]"
                elif i < 8: c = "0"
                else: c = v(hacc(i - 8, 3), 4)
                mf.append(f"{MF} v[{d}:{d+3}], a[{w}:{w+3}], v[{x}:{x+3}], {c}")
        mfs.append(mf)
    if QC:
        allm = []
        for m in range(10):
            for i in range(NI):
                for j in range(4):
                    for z in range(2):
                        sp = z ^ (j & 1); w = ((NI * m + i) % 3) * 8 + 4 * sp; x = XNB[sp] + 4 * j
                        d = qacc(i, j) if i < 8 else hacc(i - 8, j)
                        c = v(d, 4) if (m or z) else "0" if i < 8 else v(hacc(i - 8, 3), 4)
                        xo = ac(xa(2 * m + sp, j), 4) if (XD_ and m >= 2) else v(x, 4)
                        allm.append(f"{MF} v[{d}:{d+3}], a[{w}:{w+3}], {xo}, {c}")
        mfs = [allm[k * NG:(k + 1) * NG] for k in range(20)]
    for sidx in range(20):
        run_gaps(e, mfs[sidx], fills[sidx], mfs[sidx + 1][0] if sidx < 19 else None)
    e.vm = e.vm[-1:] if (OPT.get("pk19") and hasH) else []
sPK = 83; sHA, sHB = 74, 75
PKL = f"buffer_load_dword v{vTR+1}, v{vTR}, s[{RWS}:{RWS+3}], s{sPK} offen sc1"
def kv_prologue_list():
    L = []
    for kind, tag in (("K", "k0"), ("V", "v0"), ("K", "k1"), ("K", "k2"), ("V", "v1"), ("K", "k3")):
        D, inc = kv_dma(kind)
        for k, (su, d) in enumerate(D):
            L.append((list(reversed(su)), d, tag, [inc] if k == 3 else []))
    return L
def sprinkle(e, ops, dm, every):
    for k, x in enumerate(ops):
        if dm and k % every == 0:
            for y in dm[0][0]: e(y)
        e(x)
        if dm and k % every == 0:
            su, d, tag, post = dm.pop(0); e(d, tag=tag)
            for y in post: e(y)
def flush_dma(e, dm):
    for su, d, tag, post in dm:
        for y in su: e(y)
        if su: e("s_nop 0")
        e(d, tag=tag)
        for y in post: e(y)
    dm.clear()

def check_drain_order(e):
    written = set()
    for i in e.l:
        if i.kind in ("dsr", "vml"): written |= {r for r in i.wr if r[0] == "a"}
        if i.mn == "v_accvgpr_read_b32" and (i.rd & written): raise AssertionError("drain order " + i.t)
        if i.mn == "v_accvgpr_write_b32": written |= i.wr

def q_pack(e):
    for n in range(16):
        for k in range(4):
            e(f"v_cvt_pk_bf16_f32 v{QACC + 4*n + k}, v{QACC + 8*n + 2*k}, v{QACC + 8*n + 2*k + 1}")

HPK = 192
def gelu(e, lab):
    a = -2.0 * math.sqrt(2.0 / math.pi) * math.log2(math.e)
    k1 = a / CS; k2 = a * 0.044715 / CS ** 3
    GP = OPT.get("gp", 3); dm = []
    e(f"s_mov_b32 s56, {f32(k2)}\ns_mov_b32 s57, {f32(k2)}\ns_mov_b32 s60, {f32(CS)}\ns_mov_b32 s61, {f32(CS)}")
    e(f"v_mov_b32 v160, {f32(k1)}\nv_mov_b32 v161, {f32(k1)}\nv_mov_b32 v162, {f32(CS)}\nv_mov_b32 v163, {f32(CS)}")
    for n in range(8):
        if n == max(0, GP - 2) and not OPT.get("pk19"): e(PKL)
        if n == GP: async_check(lab, vTR + 1, PKL)(e); dm = kv_prologue_list()
        b = HACC + 8 * n; t = 164 + 8 * (n & 1); L = []
        L += [f"v_pk_mul_f32 v[{t+2*k}:{t+2*k+1}], v[{b+2*k}:{b+2*k+1}], v[{b+2*k}:{b+2*k+1}]" for k in range(4)]
        L += [f"v_pk_fma_f32 v[{t+2*k}:{t+2*k+1}], v[{t+2*k}:{t+2*k+1}], s[56:57], v[160:161]" for k in range(4)]
        L += [f"v_pk_mul_f32 v[{t+2*k}:{t+2*k+1}], v[{t+2*k}:{t+2*k+1}], v[{b+2*k}:{b+2*k+1}]" for k in range(4)]
        L += [f"v_exp_f32 v{t+k}, v{t+k}" for k in range(8)]
        L += [f"v_pk_fma_f32 v[{t+2*k}:{t+2*k+1}], v[{t+2*k}:{t+2*k+1}], s[60:61], v[162:163]" for k in range(4)]
        L += [f"v_rcp_f32 v{t+k}, v{t+k}" for k in range(8)]
        L += [f"v_pk_mul_f32 v[{t+2*k}:{t+2*k+1}], v[{t+2*k}:{t+2*k+1}], v[{b+2*k}:{b+2*k+1}]" for k in range(4)]
        L += [f"v_cvt_pk_bf16_f32 v{t+k}, v{t+2*k}, v{t+2*k+1}" for k in range(4)]
        L += [f"v_accvgpr_write_b32 a{HPK+4*n+k}, v{t+k}" for k in range(4)]
        sprinkle(e, L, dm, 11)
    return dm
def h_store(n):
    j, up = n >> 1, n & 1
    return ([f"s_add_u32 s{sT+7}, s{sHA + (j >> 1)}, {(j & 1) * 4096 + up * 8192}"],
            f"buffer_store_dwordx4 a[{HPK+4*n}:{HPK+4*n+3}], v{vL16}, s[{RWS}:{RWS+3}], s{sT+7} offen sc1")

def Qr(j, t): return 96 + (4 * j + t) * 4
QP = 224
def Sr(b, j, kt=0): return 160 + 32 * b + 8 * j + 4 * kt
def Pr(b, j): return 224 + 16 * b + 4 * j
def NEGM(j): return 32 + 4 * j
TRI = 48
def CT(k, kt): return (64, 52)[k] + 4 * kt
vMWo, vMRo, vMWs, vMRs = 60, 61, 62, 63
TT = 72
def LT(b, j): return 76 + 4 * b + j
def LL(j): return 84 + j
vCHK = 88
def Or(j, dt): return 32 * j + 4 * dt
FK, FV = 128, 160
vKR, vVR = 2, 3
vPN, vQW, vQR, vNW, vNR = 6, 8, 9, 12, 13
sTHR, sCNT, sRET, sCA, sCB, sP8K = 90, 91, 92, 94, 95, 89
BIG = f32(-1e30)
SEL = {k: r for k, r in zip([(m, kt) for m in range(4) for kt in range(2)], (10, 12, 14, 16, 20, 22, 24, 32))}

def attn_setup(e0, dm):
    L = []
    class C:
        def __call__(self, t, tag=None): L.extend(x.strip() for x in t.strip().split("\n") if x.strip())
    _attn_setup(C())
    G = []
    for x in L:
        if G and (x.startswith(("s_addc", "s_subb", "s_cselect")) or G[-1].split("\n")[-1].startswith("s_nop")): G[-1] += "\n" + x
        else: G.append(x)
    sprinkle(e0, G, dm, 8); flush_dma(e0, dm)
def _attn_setup(e):
    e(f"""
    v_lshrrev_b32 v89, 4, v{vL16}
    v_and_b32 v90, 15, v89
    v_lshrrev_b32 v89, 4, v89
    v_lshlrev_b32 v89, 2, v89
    v_sub_u32 v89, v89, v90
    v_mov_b32 v90, {BIG}
    v_mov_b32 v91, 0
    v_mov_b32 v{vKR}, v{vL16}
    v_add_u32 v{vVR}, 0x18000, v{vL16}
    """)
    for r in range(4):
        e(f"v_cmp_ge_i32 vcc, {-r}, v89\ns_nop 1\nv_cndmask_b32 v{TRI+r}, v90, v91, vcc")
    e(f"""
    s_lshl_b32 s{sT+2}, s{sW}, 13
    s_add_u32 s{sT+2}, s{sT+2}, 0x20000
    v_add_u32 v{vQW}, s{sT+2}, v{vL16}
    v_xor_b32 v{vQR}, 0x2000, v{vQW}
    s_lshl_b32 s{sT+2}, s{sW}, 9
    s_add_u32 s{sT+2}, s{sT+2}, {112*1024}
    v_lshrrev_b32 v{vNW}, 1, v{vL16}
    v_add_u32 v{vNW}, s{sT+2}, v{vNW}
    v_xor_b32 v{vNR}, 0x200, v{vNW}
    s_lshr_b32 s{sT+2}, s{sW}, 1
    s_mul_i32 s{sT+2}, s{sT+2}, {92*1024}
    s_add_u32 s{sT+2}, s{sT+2}, {36*1024}
    s_lshl_b32 s{sT+4}, s{sP8K}, 1
    s_add_u32 s{sT+5}, s{sT+2}, s{sT+4}
    v_add_u32 v{vMWo}, s{sT+5}, v{vL16}
    s_xor_b32 s{sT+4}, s{sT+4}, 0x4000
    s_add_u32 s{sT+5}, s{sT+2}, s{sT+4}
    v_add_u32 v{vMRo}, s{sT+5}, v{vL16}
    s_lshl_b32 s{sT+2}, s{sW}, 10
    s_add_u32 s{sT+2}, s{sT+2}, {68*1024}
    v_add_u32 v{vMWs}, s{sT+2}, v{vL16}
    v_xor_b32 v{vMRs}, 0x400, v{vMWs}
    """)

def fread(base, areg, off, f): return f"ds_read_b128 a[{base+4*f}:{base+4*f+3}], v{areg} offset:{off + f * 1024}"
def kfread(off, r): return f"ds_read_b128 a[{FK+4*r}:{FK+4*r+3}], v{vKR} offset:{off + (2 * (r & 3) + (r >> 2)) * 1024}"
def kread(n, f): return kfread((n & 3) * 8192, f)

def xreduce(e, op, regs, tmps):
    for sw in ("v_permlane16_swap_b32", "v_permlane32_swap_b32"):
        for r, t in zip(regs, tmps): e(f"v_mov_b32 v{t}, v{r}")
        e("s_nop 1")
        for r, t in zip(regs, tmps): e(f"{sw} v{r}, v{t}")
        e("s_nop 0")
        for r, t in zip(regs, tmps): e(f"{op} v{r}, v{r}, v{t}")

def max8(e, d, sreg):
    e(f"v_max3_f32 v{d}, v{sreg}, v{sreg+1}, v{sreg+2}\nv_max3_f32 v{d}, v{d}, v{sreg+3}, v{sreg+4}\nv_max3_f32 v{d}, v{d}, v{sreg+5}, v{sreg+6}\nv_max_f32 v{d}, v{d}, v{sreg+7}")

def sm_ops(b, J):
    L = []; k = 0
    for j in J:
        for x in range(8):
            t = TT + (k & 3); tp = TT + ((k - 1) & 3)
            fol = []
            if x == 1: fol.append(f"v_add_f32 v{LT(b, j)}, v{tp}, v{t}")
            elif x > 1: fol.append(f"v_add_f32 v{LT(b, j)}, v{LT(b, j)}, v{t}")
            if x & 1: fol.append(f"v_cvt_pk_bf16_f32 v{Pr(b, j) + (x >> 1)}, v{tp}, v{t}")
            L.append((f"v_exp_f32 v{t}, v{Sr(b, j) + x}", fol)); k += 1
    return L

FBS = {}
STUBS = []
class Blk:
    def __init__(self, name, prev, cur): self.name, self.prev, self.cur, self.first = name, prev, cur, prev is None
    def act(self, n):
        if n < 0: return {None: [], "F": [3, 2, 1, 0], "D": [3, 2, 1], "Y": [3, 2, 1, 0]}[self.prev]
        if self.cur == "D" and n in (2, 3): return [3, 2, 1]
        if self.cur == "E": return ([3, 2, 1, 0], [3, 1], [], [], [])[n]
        return [3, 2, 1, 0]
    def y(self, n): return self.prev == "Y" if n < 0 else (self.cur in "YE" or (n == 4 and self.cur == "D"))
    def masked(self, n):
        if self.cur == "D": return {0 if n < 2 else 1: n & 1}
        if self.cur == "E" and n < 2: return {2 + n: 2, n: 3}
        return {}

def attn_block(e, bk):
    nm = bk.name; E_ = bk.cur == "E"; sw = bk.prev == "D"
    canon = [(regs_of(f"a[{FK+4*f}:{FK+4*f+3}]"), None) for f in range(8)]
    e.lg = list(canon) if bk.first else canon[4:]
    nb = [0, 0]
    if sw:
        for j in range(2):
            for r in range(4): e(f"v_mov_b32 v{NEGM(j)+r}, v{vPN+j}")
    for lp in range(4):
        nq, ns, nv = lp, lp - 1, lp - 2
        JQ, JS, JV = bk.act(nq), bk.act(ns), bk.act(nv); JN = JQ
        bq, bs, bv = nq & 1, ns & 1, nv & 1
        pre = []
        msk = bk.masked(nq); first_qk = bk.first and lp == 0
        cti = {}
        for k, (j, m) in enumerate(msk.items()):
            cti[j] = k
            for kt in range(2):
                c = CT(k, kt); sel = SEL[(m, kt)]
                pre.append(f"v_mov_b32 v{c+3}, s{sel+1}" if first_qk else f"v_add_f32 v{c+3}, s{sel+1}, v{NEGM(j)}")
                pre += [f"v_fma_f32 v{c+r}, v{TRI+r}, s{sel}, v{c+3}" for r in range(4)]
        FVc = FK if (E_ and lp == 2) else FV
        mf = []; kstart = []; vstart = []
        kstart = [len(JQ) * f for f in range(8)] if JQ else []
        for kt in range(2):
            if OPT.get("nochain"): order = [(j, t, t) for t in range(4) for j in JQ]
            else: order = [(j, (3 - z if k & 1 else z), z) for k, j in enumerate(JQ) for z in range(4)]
            for j, t, z in order:
                d = Sr(bq, j, kt); f = 4 * kt + t
                c = v(d, 4) if z else v(CT(cti[j], kt), 4) if j in msk else "0" if first_qk else v(NEGM(j), 4)
                q = ac(QP + 16 * j + 4 * t, 4) if (j < 2 and bk.y(nq)) else v(Qr(j, t), 4)
                mf.append(f"{MF} v[{d}:{d+3}], a[{FK+4*f}:{FK+4*f+3}], {q}, {c}")
        fresh = lambda j: nv == 0 and (bk.first or (sw and j < 2))
        for f in range(8 if JV else 0):
            vstart.append(len(mf))
            for j in JV:
                o = Or(j, f)
                mf.append(f"{MF} a[{o}:{o+3}], a[{FVc+4*f}:{FVc+4*f+3}], v[{Pr(bv, j)}:{Pr(bv, j)+3}], " + ("0" if fresh(j) else ac(o, 4)))
        NG = len(mf)
        fill = [[] for _ in range(NG)]
        voff = lambda n: (n & 1) * 16384 if bk.y(n) else (n & 3) * 8192
        vtog = [f"v_xor_b32 v{vVR}, 0x8000, v{vVR}"] + ([f"v_add_u32 v{vVR}, s{sP8K}, v{vVR}"] if sw and lp == 1 else [])
        if JV and JQ:
            for f in range(8): fill[kstart[f] + 1].append(fread(FV, vVR, voff(nv), f))
        if E_ and lp == 1:
            for x in vtog: fill[vstart[0]].append(x)
            for f in range(8): fill[vstart[f] + 1].append(fread(FK, vVR, 0, f))
        elif E_ and lp == 2:
            for f in range(8): fill[vstart[f] + 1].append(fread(FV, vVR, 16384, f))
        elif lp == 1 or (lp == 3 and bk.cur == "Y"):
            for k, x in enumerate(vtog): fill[(vstart[1] + 1 + 8 * k) if JV else 1].append(x)
        needK = not E_ or lp == 0; late_k = []
        if needK:
            nk = lp + 1
            if lp == 3 or (lp == 1 and bk.cur == "Y"):
                fill[OPT.get("kx", 5)].append(f"v_xor_b32 v{vKR}, 0x8000, v{vKR}")
                if bk.cur == "D": fill[13].append(f"v_add_u32 v{vKR}, s{sP8K}, v{vKR}")
            koff = (nk & 1) * 16384 if bk.y(nk) else (nk & 3) * 8192
            for f in range(8):
                if JV: fill[vstart[f] + 1].append(kfread(koff, f))
                elif f < 4: fill[kstart[4] + 2 * f + 1].append(kfread(koff, f))
                else: late_k.append(kfread(koff, f))
        def needf(base, f0):
            def g(e): e.need(f"a[{base+4*f0}:{base+4*f0+15}]")
            return g
        if JQ and JV:
            fill[kstart[4] - 2].append(needf(FK, 4)); fill[vstart[0] - 2].append(needf(FV, 0))
        if JV:
            fill[vstart[4] - 2].append(needf(FVc, 4))
            if needK or (E_ and lp == 1): fill[NG - 2].append(needf(FK, 0))
            if E_ and lp == 2: fill[NG - 2].append(needf(FV, 0))
        grp_k = (bk.cur == "Y") or (not E_ and lp & 1 == 0 and not first_qk)
        grp_v = (nm == "YD" and lp == 0) or (bk.cur == "Y" and not (sw and lp == 0)) or (bk.cur in "FD" and lp & 1)
        vlast = None; gbar = vstart[0] if JV else -1
        for kind, on in (("K", grp_k), ("V", grp_v)):
            if not on: continue
            L, inc = kv_dma(kind)
            g0, span = (0, 8 * len(JQ)) if kind == "K" else ((vstart[0], 8 * len(JV)) if JV else (0, NG))
            st = span // 4
            dp = (OPT.get("dpos", 1) if st >= 8 else 1) + getattr(bk, "dsh", 0)
            if OPT.get("spread") and g0 + dp >= 5:
                fill[g0 + dp - 5 if g0 + dp - 5 != gbar else g0 + dp - 7].append(L[0][0][1]); fill[g0 + dp - 3 if g0 + dp - 3 != gbar else g0 + dp - 1].append(L[0][0][0])
            else:
                for x in reversed(L[0][0]): fill[max(0, g0 - 4)].append(x)
            for k, d in enumerate(L): fill[g0 + dp + st * k].append(d[1])
            gi = g0 + dp + 1 + st * 3
            fill[gi if gi < NG else NG - 1].append(inc if gi < NG else ("BG", inc))
            if kind == "V": vlast = g0 + dp + st * 3
        def ride(L, g0, g1, tag=None):
            st = max(2, (g1 - g0) // len(L))
            for k, x in enumerate(L):
                g = (g0 + st * k) | 1
                while any(_kind(y) in ("vml", "vms") for y in fill[g]): g += 2
                put_dma(fill, g, x, tag)
        cst = lambda a, b: [ctx_store(96, sCA, n) for n in range(a, b)]
        if bk.first and lp >= 2: ride([h_store(n) for n in range(4 * lp - 8, 4 * lp - 4)], 4, NG - 4)
        if nm == "TY" and lp >= 2: ride(cst(2 * lp - 4, 2 * lp - 2), 10, NG)
        if nm == "YD" and lp < 2: ride(cst(4 + 2 * lp, 6 + 2 * lp), 6, NG - 8)
        if nm == "TYD" and lp == 2: ride(cst(0, 4), 20, NG)
        if E_ and lp == 1: fill[3].append(PHL)
        if E_ and lp == 2: ride(p5_dmas(0), 2, 20)
        if first_qk:
            for k in range(8): fill[4 * k + 1].append(f"ds_write_b128 v{vQW}, v[{Qr(2, 0)+4*k}:{Qr(2, 0)+4*k+3}] offset:{k*1024}")
        if bk.first and lp == 1: fill[2].append(f"ds_read_b64 v[{vPN}:{vPN+1}], v{vNR}")
        if bk.first and lp == 2:
            for k in range(8): fill[kstart[k] + 2 + (len(JQ) & 1)].append(fread(QP, vQR, 0, k))
        if E_ and lp == 3:
            for k in range(8): fill[2 * k + 1].append(f"ds_write_b128 v{vMWo}, a[{Or(0, k)}:{Or(0, k)+3}] offset:{k*1024}")
        if nm in ("DF", "TY") and lp == 3: ride([([], flag_store(sQ + 1))], NG - 3, NG)
        if nm in ("DF", "TY") and lp == 0:
            ride([([], f"buffer_load_dword a192, v{vTW}, s[{R0}:{R0+3}], 0 offen"), ([], f"buffer_load_dword a193, v{vT2}, s[{R1}:{R1+3}], 0 offen")], NG - 9, NG - 1)
        if (lp & 1 or bk.cur in "YE") and not (E_ and lp == 3):
            gb = vstart[0] if JV else -1
            cnt = lambda kinds: sum(1 for g in range(gb) for x in fill[g] if _kind(x) in kinds)
            if E_: n = (8 + nb[0], nb[0], nb[1])[lp] + cnt(("vml", "vms"))
            else: n = 12 + (4 + cnt(("vms",)) if (bk.first and lp == 3) else 0)
            def mkb(n, lp=lp):
                def f(e):
                    lg = list(e.lg)
                    if OPT.get("ticks"): e("s_waitcnt lgkmcnt(0)")
                    z = (bk.first and lp == 1) or (E_ and lp == 2)
                    tick_pre(e); e(f"s_waitcnt vmcnt({n}){' lgkmcnt(0)' if z else ''}\ns_barrier"); tick_post(e)
                    e.lg = [] if z else lg
                return f
            if E_ and lp == 2: fill[gb].insert(0, async_check(f"L_h{nm}", 20, PHL, sTAGW))
            if OPT.get("spread") and gb >= 6 and not E_ and not OPT.get("ticks") and not any(_kind(x) in ("vml", "vms") for g in range(gb - 4, gb) for x in fill[g]):
                fill[gb - 4].append(f"s_waitcnt vmcnt({n})"); fill[gb].insert(0, "s_barrier")
            elif gb >= 0: fill[gb].insert(1 if (E_ and lp == 2) else 0, mkb(n))
            else: pre.insert(0, mkb(n))
        if JS:
            ops = sm_ops(bs, JS)[2:]
            W = NG - 4 if JN else min(NG - 2, 2 * len(ops))
            lastg = 0; tile_done = []
            for k, (ex, fol) in enumerate(ops):
                g = (k * W) // len(ops)
                if W >= 2 * len(ops): g &= ~1
                fill[g].append(ex)
                for x in fol: fill[g + 1].append(x)
                lastg = g + 1
                if (k + 2) % 8 == 7: tile_done.append(lastg)
            lts = [LT(bs, j) for j in JS]
            ck = []
            if len(lts) == 4: fill[tile_done[2] + 2].append(f"v_max3_f32 v{vCHK}, v{lts[0]}, v{lts[1]}, v{lts[2]}"); ck.append(f"v_max_f32 v{vCHK}, v{vCHK}, v{lts[3]}")
            elif len(lts) == 3: ck.append(f"v_max3_f32 v{vCHK}, v{lts[0]}, v{lts[1]}, v{lts[2]}")
            else: ck.append(f"v_max_f32 v{vCHK}, v{lts[0]}, v{lts[1]}")
            ck.append(f"v_cmp_lt_f32 vcc, s{sTHR}, v{vCHK}")
            gck = max(lastg, NG - 3)
            assert gck <= NG - 2
            J3 = [(j, not (sw and lp == 1 and j < 2), not (sw and lp == 0 and j < 2)) for j in JS]
            fb = f"FB{bs}_" + "".join(f"{j}{'' if a else 'n'}{'' if b else 'l'}" for j, a, b in J3)
            FBS[fb] = (bs, J3)
            site = f"L_{nm}_{lp}"
            STUBS.append((site, fb))
            for x in ck: fill[gck].append(x)
            fill[NG - 1].append(grp([f"s_cbranch_vccnz {site}_fb", f"{site}_ret:"]))
        for k, j in enumerate(JV):
            g = OPT.get("l0", 1) if k == 0 else min(NG - 5, 16 * k - 3)
            fill[g].append(f"v_mov_b32 v{LL(j)}, v{LT(bv, j)}" if fresh(j) else f"v_add_f32 v{LL(j)}, v{LL(j)}, v{LT(bv, j)}")
        head = sm_ops(bq, JN)[:2] if JN else []
        if head and not first_qk:
            fill[NG - 4].append(head[0][0]); fill[NG - 2].append(head[1][0])
            for x in head[1][1]: fill[NG - 1].append(x)
        if first_qk: e.need(f"a[{FK}:{FK+15}]")
        for x in pre:
            if callable(x): x(e)
            else: e(x)
        if pre: e("s_nop 1")
        for g in range(NG):
            c = sum(1 for x in fill[g] if _kind(x) in ("vml", "vms"))
            nb[0] += c; nb[1] = 0 if g == vlast else nb[1] + c
        run_gaps(e, mf, fill)
        for x in late_k: e(x)
        if sw and lp == 1: attn_epilogue(e)
        if E_ and lp == 0: p5_setup(e)
        if first_qk:
            e("s_nop 7")
            for j in range(4): max8(e, NEGM(j), Sr(0, j))
            xreduce(e, "v_max_f32", [NEGM(j) for j in range(4)], [NEGM(j) + 1 for j in range(4)])
            for j in range(4):
                e(f"v_sub_f32 v{NEGM(j)}, 0, v{NEGM(j)}")
                for r in range(1, 4): e(f"v_mov_b32 v{NEGM(j)+r}, v{NEGM(j)}")
            e(f"ds_write_b64 v{vNW}, v[{NEGM(2)+3}:{NEGM(2)+4}]".replace(f"v[{NEGM(2)+3}:{NEGM(2)+4}]", "v[10:11]").replace("ds_write", f"v_mov_b32 v10, v{NEGM(2)}\nv_mov_b32 v11, v{NEGM(3)}\nds_write"))
            for j in (3, 2, 1, 0):
                for x in range(8): e(f"v_add_f32 v{Sr(0, j)+x}, v{Sr(0, j)+x}, v{NEGM(j)}")
            e(head[0][0]); e(head[1][0]); e("s_nop 0")
            for x in head[1][1]: e(x)
    if E_: e(f"s_waitcnt vmcnt({4 if nm == 'TYD' else 0})")
    if nm == "TYD":
        for su, x in cst(4, 8): e(su[0]); e(x)
    if not E_:
        assert len(e.lg) <= 4 and [r for r, _ in e.lg] == [r for r, _ in canon][8 - len(e.lg):], (nm, len(e.lg))

def ctx_store(pk, sbase, n):
    return ([f"s_add_u32 s{sT+7}, s{sbase}, {(n >> 2) * 4096 + (n & 3) * 8192}"],
            f"buffer_store_dwordx4 v[{pk+4*n}:{pk+4*n+3}], v{vL16}, s[{RWS}:{RWS+3}], s{sT+7} offen sc1")
def attn_epilogue(e):
    e("s_nop 7")
    xreduce(e, "v_add_f32", [LL(0), LL(1)], [89, 90])
    for j in range(2): e(f"v_rcp_f32 v{LL(j)}, v{LL(j)}")
    for j in range(2):
        e(f"v_mov_b32 v94, v{LL(j)}\nv_mov_b32 v95, v{LL(j)}")
        for k in range(16):
            src = Or(j, 0) + 2 * k; tr = 90 + 2 * (k & 1)
            e(f"v_accvgpr_read_b32 v{tr}, a{src}\nv_accvgpr_read_b32 v{tr+1}, a{src+1}")
            e(f"v_pk_mul_f32 v[{tr}:{tr+1}], v[{tr}:{tr+1}], v[94:95]")
            e(f"v_cvt_pk_bf16_f32 v{96+16*j+k}, v{tr}, v{tr+1}")

def attn_final(e):
    e.lg = [(set(), None)] * 8
    e(f"v_mov_b32 v72, v{LL(0)}\nv_mov_b32 v73, v{LL(1)}\nv_mov_b32 v74, v{NEGM(0)}\nv_mov_b32 v75, v{NEGM(1)}\ns_nop 3")
    e(f"ds_write_b128 v{vMWs}, v[72:75]")
    RS = OPT.get("rs", 0)
    stg = [(su, x.replace("buffer_load_dwordx4 ", f"buffer_load_dwordx4 a[{192+4*k}:{195+4*k}], ").replace(" lds", "")) for k, (su, x) in enumerate((p5_dmas(2) + p5_dmas(3))[:RS])]
    for k in range(8):
        e(f"ds_write_b128 v{vMWo}, a[{Or(1, k)}:{Or(1, k)+3}] offset:{8192 + k*1024}")
        for su, x in stg[2 * k:2 * k + 2]:
            for y in su:
                if "m0" not in y: e(y)
            e(x, tag="stg")
    e("s_waitcnt lgkmcnt(0)\ns_barrier")
    e(f"ds_read_b128 v[72:75], v{vMRs}")
    for k in range(14): e(f"ds_read_b128 v[{160+4*k}:{163+4*k}], v{vMRo} offset:{k*1024}")
    for su, x in p5_dmas(1):
        for y in reversed(su): e(y)
        if su: e("s_nop 0")
        e(x)
    e.need("v[72:75]")
    for k in range(14, 16): e(f"ds_read_b128 v[{160+4*k}:{163+4*k}], v{vMRo} offset:{k*1024}")
    for j in range(2):
        e(f"v_min_f32 v89, v{74+j}, v{NEGM(2+j)}\nv_sub_f32 v{64+2*j}, v89, v{NEGM(2+j)}\nv_sub_f32 v{68+2*j}, v89, v{74+j}")
    for j in range(2): e(f"v_exp_f32 v{64+2*j}, v{64+2*j}\nv_exp_f32 v{68+2*j}, v{68+2*j}")
    for j in range(2): e(f"v_mul_f32 v{LL(2+j)}, v{LL(2+j)}, v{64+2*j}")
    for j in range(2): e(f"v_fmac_f32 v{LL(2+j)}, v{72+j}, v{68+2*j}")
    xreduce(e, "v_add_f32", [LL(2), LL(3)], [89, 90])
    for j in range(2): e(f"v_rcp_f32 v{LL(2+j)}, v{LL(2+j)}")
    e("s_nop 0")
    for j in range(2):
        for b in (64, 68): e(f"v_mul_f32 v{b+2*j}, v{b+2*j}, v{LL(2+j)}\nv_mov_b32 v{b+2*j+1}, v{b+2*j}")
    for j in range(2):
        for k in range(16):
            src = Or(2 + j, 0) + 2 * k; tr = 90 + 2 * (k & 1); rx = 160 + 32 * j + 2 * k
            e(f"v_accvgpr_read_b32 v{tr}, a{src}\nv_accvgpr_read_b32 v{tr+1}, a{src+1}")
            e(f"v_pk_mul_f32 v[{tr}:{tr+1}], v[{tr}:{tr+1}], v[{64+2*j}:{65+2*j}]")
            e.need(f"v[{rx}:{rx+1}]")
            e(f"v_pk_fma_f32 v[{tr}:{tr+1}], v[{rx}:{rx+1}], v[{68+2*j}:{69+2*j}], v[{tr}:{tr+1}]")
            e(f"v_cvt_pk_bf16_f32 v{128+16*j+k}, v{tr}, v{tr+1}")
            if k & 3 == 3:
                su, x = ctx_store(128, sCB, 4 * j + (k >> 2)); e(su[0]); e(x)
            if j == 1:
                for x in p5_reads(0)[2 * k:2 * k + 2]: e(x)

def fallback(e, name, b, J3):
    e(f"{name}:\ns_nop 15")
    for j, scale, nxt in J3:
        d = 89
        max8(e, d, Sr(b, j))
        xreduce(e, "v_max_f32", [d], [90])
        e(f"v_max_f32 v{d}, 0, v{d}\nv_sub_f32 v90, 0, v{d}\nv_exp_f32 v90, v90")
        for x in range(8): e(f"v_sub_f32 v{Sr(b, j)+x}, v{Sr(b, j)+x}, v{d}")
        if nxt:
            for r in range(4): e(f"v_sub_f32 v{NEGM(j)+r}, v{NEGM(j)+r}, v{d}")
            for x in range(8): e(f"v_sub_f32 v{Sr(b ^ 1, j)+x}, v{Sr(b ^ 1, j)+x}, v{d}")
        if scale:
            e(f"v_mul_f32 v{LL(j)}, v{LL(j)}, v90")
            for x in range(0, 32, 2):
                o = Or(j, 0) + x
                e(f"v_accvgpr_read_b32 v91, a{o}\nv_accvgpr_read_b32 v92, a{o+1}\nv_mul_f32 v91, v91, v90\nv_mul_f32 v92, v92, v90\nv_accvgpr_write_b32 a{o}, v91\nv_accvgpr_write_b32 a{o+1}, v92")
    for ex, fol in sm_ops(b, [j for j, _, _ in J3]):
        e(ex); e("s_nop 0")
        for x in fol: e(x)
    for ex, fol in sm_ops(b ^ 1, [3])[:2]: e(ex)
    e(f"s_nop 1\ns_setpc_b64 s[{sRET}:{sRET+1}]")

def attn_pre(e):
    e.need(vmtags=("k0",), lg0=True)
    e("s_barrier")
    for f in range(8): e(kread(0, f))

def attention(e):
    B = {k: Blk(k, p, c) for k, p, c in (("fFF", None, "F"), ("fDF", None, "D"), ("FF", "F", "F"), ("DF", "F", "D"),
                                          ("TY", "D", "Y"), ("YY", "Y", "Y"), ("YD", "Y", "E"), ("TYD", "D", "E"))}
    segs = {}
    def seg(name):
        n0 = len(e.l); attn_block(e, B[name]); segs[name] = e.l[n0:]
    e(f"s_cmp_eq_u32 s{sIDX}, 0\ns_cbranch_scc1 L_fDF")
    seg("fFF")
    e(f"s_sub_u32 s{sCNT}, s{sIDX}, 1\ns_cmp_eq_u32 s{sCNT}, 0\ns_cbranch_scc1 L_DF\n.p2align 3\nL_FF:")
    seg("FF")
    e(f"s_sub_u32 s{sCNT}, s{sCNT}, 1\ns_cmp_lg_u32 s{sCNT}, 0\ns_cbranch_scc1 L_FF\nL_DF:")
    seg("DF")
    e(f"s_cmp_eq_u32 s{sIDX}, 7\ns_cbranch_scc1 L_TYD\nL_TY:")
    seg("TY")
    stamp(e, 7)
    e(f"s_sub_u32 s{sCNT}, 6, s{sIDX}\ns_cmp_eq_u32 s{sCNT}, 0\ns_cbranch_scc1 L_YD\n.p2align 3\nL_YY:")
    seg("YY")
    e(f"s_sub_u32 s{sCNT}, s{sCNT}, 1\ns_cmp_lg_u32 s{sCNT}, 0\ns_cbranch_scc1 L_YY\nL_YD:")
    seg("YD")
    e("L_fin:")
    def out_of_line():
        e("L_fDF:"); seg("fDF")
        e("s_branch L_TY\nL_TYD:"); seg("TYD")
        e("s_branch L_fin")
        for site, fb in STUBS:
            e(f"{site}_fb:\ns_call_b64 s[{sRET}:{sRET+1}], {fb}\ns_branch {site}_ret")
        for name, (b, J3) in FBS.items():
            n0 = len(e.l); fallback(e, name, b, J3); segs[name] = e.l[n0:]
    return segs, out_of_line

sS, sAH, sAC, sWH, sWC, sXO, sFH, sFC = 65, 66, 67, 68, 69, 70, 80, 81
sMA, sMW, sBO, sEXl, sFE, sBH, sBC = 78, 82, 84, 64, 72, 4, 6
sEX3 = 85
NHE = OPT.get('nhe', 7); NHC = [7]
SLOT = 36864; SLMAP = (0, 2, 1, 3)
vWD5, vP1, vP2, vXO, vBO, vRA = 14, 30, 31, 28, 29, 4
vRE, vRO = (26, 12), (27, 13)
vTW, vT2 = 19, 20
PHL = f"buffer_load_dword v20, v{vP1}, s[{RWS}:{RWS+3}], s{sFH} offen sc1"
def early_setup():
    mt, nt, t0, t1, t2 = sT, sT + 1, sT + 2, sT + 4, sT + 5
    S = f"""
    s_lshl_b32 s{t0}, s{sH}, 15
    s_lshl_b32 s{t1}, s{sW}, 10
    s_add_u32 s{t0}, s{t0}, s{t1}
    s_add_u32 s{t0}, s{t0}, {CF}
    s_lshl_b32 s{sCA}, s{sIDX}, 20
    s_add_u32 s{sCA}, s{sCA}, s{t0}
    s_sub_u32 s{sCB}, 15, s{sIDX}
    s_lshl_b32 s{sCB}, s{sCB}, 20
    s_add_u32 s{sCB}, s{sCB}, s{t0}
    s_mov_b32 s{sTHR}, {f32(2.0**40)}
    s_and_b32 s{t0}, s{sW}, 1
    s_lshl_b32 s{sP8K}, s{t0}, 13
    s_xor_b32 s{t1}, s{sW}, 1
    s_lshl_b32 s{t0}, s{t0}, 1
    """
    for (m, kt), r in SEL.items():
        S += f"s_sub_i32 s{t2}, s{sW}, {2*m + kt}\n" if m < 2 else f"s_sub_i32 s{t2}, s{sW if m == 2 else t1}, s{t0}\ns_sub_i32 s{t2}, s{t2}, {kt}\n"
        S += f"s_cmp_eq_u32 s{t2}, 0\ns_cselect_b32 s{r}, 1.0, 0\ns_cmp_lt_i32 s{t2}, 0\ns_cselect_b32 s{r+1}, {BIG}, 0\n"
    S += f"""
    s_mov_b32 s{R0}, s{pWO}
    s_and_b32 s{R0+1}, s{pWO+1}, 0xffff
    s_mov_b32 s{R0+2}, {4096*1280}
    s_mov_b32 s{R0+3}, 0x20000
    s_mov_b32 s{R1}, s{pW2}
    s_and_b32 s{R1+1}, s{pW2+1}, 0xffff
    s_mov_b32 s{R1+2}, {1728*1280}
    s_mov_b32 s{R1+3}, 0x20000
    v_lshrrev_b32 v{vXO}, 4, v{vL16}
    s_lshl_b32 s{t0}, s2, 2
    s_add_u32 s{t0}, s{t0}, s{sW}
    s_mul_i32 s{t1}, s{t0}, 40
    v_min_u32 v{vTW}, 39, v{vXO}
    v_add_u32 v{vTW}, s{t1}, v{vTW}
    v_lshlrev_b32 v{vTW}, 7, v{vTW}
    s_mul_i32 s{t1}, s{t0}, 17
    v_min_u32 v{vT2}, 16, v{vXO}
    v_add_u32 v{vT2}, s{t1}, v{vT2}
    v_lshlrev_b32 v{vT2}, 7, v{vT2}
    s_lshr_b32 s{mt}, s{sX}, 2
    s_lshl_b32 s{mt}, s{mt}, 3
    s_lshr_b32 s{t0}, s2, 3
    s_and_b32 s{t0}, s{t0}, 7
    s_add_u32 s{mt}, s{mt}, s{t0}
    s_lshr_b32 s{nt}, s2, 6
    s_and_b32 s{sS}, s{sX}, 3
    s_sub_u32 s{t1}, 15, s{mt}
    s_min_u32 s{t0}, s{mt}, s{t1}
    s_mul_i32 s{t0}, s{t0}, {32*FS}
    s_add_u32 s{sFH}, s{t0}, {FH}
    s_mul_i32 s{t1}, s{sS}, {8*FS}
    s_add_u32 s{sFC}, s{t0}, s{t1}
    s_add_u32 s{sFC}, s{sFC}, {FC}
    """
    if W0: S += f"s_cmp_eq_u32 s{sW}, 0\ns_cselect_b32 s{sFH}, s{sFH}, {WS_END}\ns_cselect_b32 s{sFC}, s{sFC}, {WS_END}\n"
    S += f"""
    s_mul_i32 s{sBH}, s{mt}, {54*8192}
    s_add_u32 s{sBH}, s{sBH}, {HF}
    s_lshl_b32 s{sBC}, s{mt}, 20
    s_add_u32 s{sBC}, s{sBC}, {CF}
    s_lshl_b32 s{t0}, s{sW}, 12
    s_lshr_b32 s{sAH}, s{sS}, 1
    s_mul_i32 s{sAH}, s{sAH}, 28
    s_and_b32 s{sWH}, s{sS}, 1
    s_mul_i32 s{sWH}, s{sWH}, {2*NHE}
    s_add_u32 s{sWH}, s{sWH}, s{sAH}
    s_lshl_b32 s{sAH}, s{sWH}, 13
    s_add_u32 s{sAH}, s{sAH}, s{t0}
    s_lshl_b32 s{sAC}, s{sS}, 18
    s_add_u32 s{sAC}, s{sAC}, s{t0}
    s_mul_i32 s{sMW}, s{sW}, 5120
    s_add_u32 s{sMW}, s{sMW}, 16384
    s_mul_i32 s{t0}, s{sW}, {16*1280}
    s_mul_i32 s{sBO}, s{nt}, 320
    s_add_u32 s{t0}, s{t0}, s{sBO}
    s_mul_i32 s{sWH}, s{sWH}, {32*1280}
    s_add_u32 s{sWH}, s{sWH}, s{t0}
    s_mul_i32 s{sWC}, s{sS}, {1024*1280}
    s_add_u32 s{sWC}, s{sWC}, s{t0}
    """
    a, b, c = vRE[0], vRO[0], vBO
    for k in range(5):
        S += f"""
        v_add_u32 v{a}, {64*k}, v{vXO}
        v_mul_u32_u24 v{b}, 3277, v{a}
        v_lshrrev_b32 v{b}, 16, v{b}
        v_mul_u32_u24 v{c}, 20, v{b}
        v_sub_u32 v{a}, v{a}, v{c}
        v_lshrrev_b32 v{c}, 1, v{b}
        v_and_b32 v{c}, 2, v{c}
        v_xor_b32 v{a}, v{a}, v{c}
        v_mul_u32_u24 v{b}, 1280, v{b}
        v_lshl_add_u32 v{vWD5+k}, v{a}, 4, v{b}
        """
        if 0 < k < 4: S += f"v_subrev_u32 v{vWD5+k}, {1024*k}, v{vWD5+k}\n"
    S += f"""
    s_lshr_b32 s{t1}, s{sW}, 1
    s_mul_i32 s{t2}, s{t1}, 160
    s_add_u32 s{sBO}, s{sBO}, s{t2}
    s_add_u32 s{t2}, s{t2}, 16384
    v_lshrrev_b32 v{a}, 2, v{vXO}
    v_mul_u32_u24 v{a}, 320, v{a}
    v_and_b32 v{b}, 3, v{vXO}
    v_lshl_add_u32 v{a}, v{b}, 3, v{a}
    v_add_u32 v{a}, s{t2}, v{a}
    v_lshlrev_b32 v{c}, 1, v{vXO}
    v_and_b32 v{c}, 32, v{c}
    s_cmp_eq_u32 s{t1}, 0
    s_cselect_b32 s{t0}, 1, -1
    v_mul_i32_i24 v{c}, s{t0}, v{c}
    v_sub_u32 v{b}, v{a}, v{c}
    v_add_u32 v{a}, v{a}, v{c}
    s_and_b32 s{t0}, s{sW}, 1
    s_lshl_b32 s{sXO}, s{mt}, 3
    s_lshl_b32 s{t0}, s{t0}, 2
    s_add_u32 s{sXO}, s{sXO}, s{t0}
    s_add_u32 s{sXO}, s{sXO}, s{sS}
    s_mul_i32 s{sXO}, s{sXO}, {16*1280}
    s_add_u32 s{sXO}, s{sXO}, s{sBO}
    v_lshrrev_b32 v{vBO}, 4, v{vXO}
    v_lshlrev_b32 v{vBO}, 3, v{vBO}
    v_and_b32 v{vXO}, 15, v{vXO}
    v_mul_u32_u24 v{vXO}, 1280, v{vXO}
    v_add_u32 v{vXO}, v{vXO}, v{vBO}
    v_lshlrev_b32 v{vP1}, 3, v{vL16}
    v_and_b32 v{vP2}, {7*FS}, v{vP1}
    v_and_b32 v{vP1}, {31*FS}, v{vP1}
    s_lshl_b32 s{t0}, s{mt}, 2
    s_add_u32 s{t0}, s{t0}, s{nt}
    s_lshl_b32 s{sFE}, s{t0}, 2
    s_add_u32 s{sFE}, s{sFE}, s{sW}
    s_mul_i32 s{sFE}, s{sFE}, {FS * 4}
    s_add_u32 s{sFE}, s{sFE}, {FEX}
    s_mul_i32 s{t0}, s{t0}, {16*20480}
    s_mul_i32 s{t1}, s{sW}, 5120
    s_add_u32 s{t0}, s{t0}, s{t1}
    s_add_u32 s{t0}, s{t0}, {EX}
    s_mul_i32 s{t1}, s{sS}, 20480
    s_add_u32 s{mt}, s{t0}, s{t1}
    s_lshl_b32 s{t1}, s{t1}, 2
    s_add_u32 s{sEXl}, s{t0}, s{t1}
    """
    for r in range(3): S += f"s_add_u32 s{t0}, s{sS}, {r + 1}\ns_and_b32 s{t0}, s{t0}, 3\ns_mul_i32 s{t0}, s{t0}, {4*20480}\ns_add_u32 s{sEX3+r}, s{mt}, s{t0}\n"
    return [x.strip() for x in S.split("\n") if x.strip()]
def place_early(fills, k0, g0, NG): place_list(early_setup(), fills, k0, g0, NG, (19, NG - 1))
def p5_setup(e):
    srd(e, R0, pWS, 54 * 8192, f"s{sBH}")
    srd(e, R1, pWS, 128 * 8192, f"s{sBC}")
    srd(e, R2, pW2, 1728 * 1280)
    srd(e, R3, pWO, 4096 * 1280)
    e(f"v_add_u32 v{vRE[1]}, {2*SLOT}, v{vRE[0]}\nv_add_u32 v{vRO[1]}, {2*SLOT}, v{vRO[0]}\ns_lshr_b32 s{sT+2}, s{sP8K}, 1")
    for r in range(4):
        e(f"s_add_u32 s{sT}, s{sS}, {r + 1}\ns_and_b32 s{sT}, s{sT}, 3\ns_lshl_b32 s{sT+1}, s{sT}, 10\ns_add_u32 s{sT+1}, s{sT+1}, s{sT+2}\nv_add_u32 v{vRA+r}, s{sT+1}, v{vL16}\nv_add_u32 v{vRA+4+r}, {2*SLOT}, v{vRA+r}")

def p5_dmas(d):
    sl = SLMAP[d & 3] * SLOT
    NH = NHC[0]
    if d < NH: ra, sa, oa, rw, sw, ow = R0, sAH, d * 16384, R2, sWH, d * 64 * 1280
    else: ra, sa, oa, rw, sw, ow = R1, sAC, (d - NH) * 16384, R3, sWC, (d - NH) * 64 * 1280
    W = []
    for k in range(5):
        su = []
        if k == 0: su = [f"s_add_u32 m0, s{sMW}, {sl}", f"s_add_u32 s{sT+1}, s{sw}, {ow}"]
        if k == 4: su = [f"s_add_u32 m0, s{sMW}, {sl + 4096}"]
        W.append((su, f"buffer_load_dwordx4 v{vWD5+k}, s[{rw}:{rw+3}], s{sT+1} offen offset:{(k & 3) * 1024} lds"))
    A = []
    for k in range(4):
        su = [f"s_add_u32 m0, s{sMA}, {sl}", f"s_add_u32 s{sT}, s{sa}, {oa}"] if k == 0 else []
        A.append((su, f"buffer_load_dwordx4 v{vL16}, s[{ra}:{ra+3}], s{sT} offen offset:{k * 1024} lds"))
    return W + A
def p5_buf(m): return (m & 3) * 36
def p5_wreads(m):
    d, ks = m >> 1, m & 1; b = p5_buf(m); hi = SLMAP[d & 3] >> 1; o = (SLMAP[d & 3] & 1) * SLOT
    L = []
    for n in range(5):
        a = (vRO if n & 1 else vRE)[hi]; off = o + ks * 32 * 320 + n * 32
        L += [f"ds_read_b64_tr_b16 a[{b+4*n}:{b+4*n+1}], v{a} offset:{off}", f"ds_read_b64_tr_b16 a[{b+4*n+2}:{b+4*n+3}], v{a} offset:{off + 5120}"]
    return L
def p5_aread(m, r):
    d, ks = m >> 1, m & 1; b = p5_buf(m); hi = SLMAP[d & 3] >> 1; o = (SLMAP[d & 3] & 1) * SLOT
    return f"ds_read_b128 a[{b+20+4*r}:{b+23+4*r}], v{vRA+4*hi+r} offset:{o + ks * 8192}"
def p5_reads(d, last=False):
    W = [p5_wreads(2 * d), p5_wreads(2 * d + 1)]
    A = lambda r: [p5_aread(2 * d, r), p5_aread(2 * d + 1, r)]
    Wn = lambda n: W[0][2*n:2*n+2] + W[1][2*n:2*n+2]
    if last: return Wn(0) + A(0) + Wn(1) + Wn(2) + Wn(3) + Wn(4) + A(1) + A(2) + A(3)
    return Wn(0) + A(0) + A(1) + A(2) + A(3) + Wn(1) + Wn(2) + Wn(3) + Wn(4)

def p5(e, NH=7, X=""):
    ACC = 32; ND = 16 + NH; NHC[0] = NH
    warm(e, "b" + X)
    e(f"s_add_u32 s{sT+2}, s{sQ+1}, {FC - FH}\ns_waitcnt vmcnt(0) lgkmcnt(0)\ns_barrier\nL_p5loop{X}:")
    e(flag_store(sT + 2))
    stamp(e, 9)
    PCL = f"buffer_load_dword v20, v{vP2}, s[{RWS}:{RWS+3}], s{sFC} offen sc1"
    mfs = []; fills = []
    def mfma(m, n, r, z):
        b = p5_buf(m); dd = ACC + (r * 5 + n) * 4
        return f"{MF} v[{dd}:{dd+3}], a[{b+4*n}:{b+4*n+3}], a[{b+20+4*r}:{b+23+4*r}], " + ("0" if m < 2 and z == 0 else v(dd, 4))
    for d in range(ND):
        T_ = [(n, r) for n in range(5) for r in range(4)] if d < ND - 1 else [(n, r) for r in range(4) for n in range(5)]
        mfs.append([mfma(2 * d + (z ^ (k & 1)), n, r, z) for k, (n, r) in enumerate(T_) for z in range(2)]); fills.append([[] for _ in range(40)])
    for d in range(ND - 1):
        for k, x in enumerate(p5_reads(d + 1, d == ND - 2)): fills[d][1 + k + k // 4].append(x)
        if d: fills[d][0].append(bar([f"d{d+1}"]))
    NM = ND - 1; TL = 40
    if OPT.get("m4"):
        NM = ND - 2; TL = 80
        T_ = [(n, r) for r in range(4) for n in range(5)]
        first = [mfma(2 * NM + (z ^ (n & 1)), n, 0, 1) for n in range(5) for z in range(2)] + [mfma(2 * NM + 2 + (z ^ (n & 1)), n, 0, 1) for n in range(5) for z in range(2)]
        mfs[NM:] = [first + [mfma(2 * NM + (z if k & 1 else 3 - z), n, r, 1) for k, (n, r) in enumerate(T_[5:]) for z in range(4)]]
        fills[NM - 1] = [[x for x in f if callable(x) or not (x[0] if isinstance(x, tuple) else x).startswith("ds_read")] for f in fills[NM - 1]]
        for k, x in enumerate(p5_reads(NM, True)): fills[NM - 1][1 + k + k // 4].append(x)
        fills[NM:] = [[[] for _ in range(80)]]
        fills[NM][0].append(bar([f"d{ND-1}"]))
        R_ = p5_reads(ND - 1, True)
        for k, x in enumerate(R_[:22]): fills[NM][(k >> 1)].append(x)
        for k, x in enumerate(R_[22:]): fills[NM][11 + k].append(x)
    GR = 176; XB = 156
    for k in range(12): fills[ND - 5][4 + 2 * k].append(f"v_mov_b32 v{GR + 16*(k >> 2) + (4*(k & 3) + 3 if k & 3 < 3 else 13)}, s{sTAG}")
    fills[ND - 5][30].append(f"v_lshrrev_b32 v139, 1, v{vL16}")
    def send(r):
        L = []
        for k in range(10):
            L.append(f"v_cvt_pk_bf16_f32 v{GR + 16*r + 4*(k // 3) + k % 3}, v{ACC+20*r+2*k}, v{ACC+20*r+2*k+1}")
            q = GR + 16 * r + 4 * (k // 3)
            if k % 3 == 2: L.append(f"buffer_store_dwordx4 v[{q}:{q+3}], v{vL16}, s[{RWS}:{RWS+3}], s{sEX3+r} offen offset:{1024 * (k // 3)} sc1")
        L.append(f"buffer_store_dwordx2 v[{q}:{q+1}], v139, s[{RWS}:{RWS+3}], s{sEX3+r} offen offset:3072 sc1")
        return L
    late = []
    g = 0
    for g0_, x in [(TL // 4 * (r + 1) + 5, x) for r in range(3) for x in send(r)]:
        g = max(g, g0_)
        if g < TL: fills[NM][g].append(x)
        else: late.append(x)
        g += 1
    RS = OPT.get("rs", 0)
    if RS:
        e(f"v_add_u32 v156, s{sMW}, v{vL16}\nv_add_u32 v157, s{sMA}, v{vL16}\nv_add_u32 v158, {2*SLOT}, v156\nv_add_u32 v159, {2*SLOT}, v157")
        for k in range(RS):
            d_, q = 2 + k // 9, k % 9; sl = SLMAP[d_ & 3]
            a_, off = (156, q * 1024) if q < 5 else (157, (q - 5) * 1024)
            fills[0][2 + 2 * k].append(f"ds_write_b128 v{a_ + 2 * (sl >> 1)}, a[{192+4*k}:{195+4*k}] offset:{(sl & 1) * SLOT + off}")
    per = [[] for _ in range(ND)]; CD = NH - OPT.get("cdo", 2); hold = []
    for d in range(2, ND):
        L = [(x, f"d{d}") for x in p5_dmas(d)]; m = (d - 2) >> 1 if d < 6 else d - 4
        if d >= NH and m <= CD: per[m] += L[:5]; hold += L[5:]
        else: per[m] += L
    CB = OPT.get("cb", 12)
    for m, L in enumerate(per):
        g1 = CB if m == CD else 39
        if L:
            st = (g1 - 2) // len(L); assert st >= 2, (m, len(L))
            for k, (x, tag) in enumerate(L): put_dma(fills[m], 2 + st * k + (st > 2), x, tag)

    fills[CD][CB].append(async_check("L_p5c" + X, 20, PCL, sTAGW)); fills[CD][CB].append("s_barrier"); fills[CD][1].append(PCL)
    st = (38 - CB) // len(hold); assert st >= 2
    for k, (x, tag) in enumerate(hold): put_dma(fills[CD], CB + 2 + st * k, x, tag)
    hs_ = f"""
        v_mov_b32 v20, 0
        v_mov_b32 v132, 0x10000000
        v_cmp_eq_u32 vcc, 0, v{vL16}
        s_lshl_b32 s10, s{sS}, 7
        s_xor_b32 s11, s10, 128
        v_cndmask_b32 v132, v132, v20, vcc
        v_lshlrev_b32 v133, 3, v{vL16}
        v_and_b32 v133, 384, v133
        v_mov_b32 v138, s11
        v_cmp_eq_u32 vcc, s10, v133
        s_nop 1
        v_cndmask_b32 v133, v133, v138, vcc
        s_add_u32 s10, s10, s{sFE}
        v_and_b32 v154, 8, v{vBO}
        v_mul_u32_u24 v154, 3, v154
        v_add_u32 v154, v154, v{vXO}
        """
    place_list([x.strip() for x in hs_.strip().split("\n")], fills, ND - 3, 2, 40, (ND - 2, 0))
    HST = f"buffer_store_dword v{vTAG}, v132, s[{RWS}:{RWS+3}], s10 offen sc1"
    if OPT.get("hg", 99) < TL: fills[NM][OPT["hg"]].append(HST)
    OWN = ACC + 60; RXR = (224, 240, 140)
    HPL = f"buffer_load_dword v20, v133, s[{RWS}:{RWS+3}], s{sFE} offen sc1"
    place_list([x for k in range(3) for x in (f"s_add_u32 s{12+k}, s{sS}, {k+1}", f"s_and_b32 s{12+k}, s{12+k}, 3", f"s_mul_i32 s{12+k}, s{12+k}, 20480", f"s_add_u32 s{12+k}, s{12+k}, s{sEXl}")]
               + [f"s_mov_b32 s{R0}, s{pOUT}", f"s_and_b32 s{R0+1}, s{pOUT+1}, 0xffff", f"s_mov_b32 s{R0+2}, {2048*1280}", f"s_mov_b32 s{R0+3}, 0x20000"], fills, ND - 3, 20, 40, (ND - 2, 0))
    def own_adds(e):
        e("s_nop 3"); e.need("v[112:131]")
        for q in range(10):
            e(f"v_lshlrev_b32 v134, 16, v{112+q}\nv_and_b32 v135, 0xffff0000, v{112+q}\nv_lshlrev_b32 v136, 16, v{122+q}\nv_and_b32 v137, 0xffff0000, v{122+q}")
            e(f"v_pk_add_f32 v[134:135], v[134:135], v[136:137]\nv_pk_add_f32 v[{OWN+2*q}:{OWN+2*q+1}], v[{OWN+2*q}:{OWN+2*q+1}], v[134:135]")
    def fetch(e, ks=(0, 1, 2)):
        for k in ks:
            for q in range(3): e(f"buffer_load_dwordx4 v[{RXR[k]+4*q}:{RXR[k]+4*q+3}], v{vL16}, s[{RWS}:{RWS+3}], s{12+k} offen offset:{1024*q} sc1")
            e(f"buffer_load_dwordx2 v[{RXR[k]+12}:{RXR[k]+13}], v139, s[{RWS}:{RWS+3}], s{12+k} offen offset:3072 sc1")
    def verify(e):
        tg = [RXR[k] + q for k in range(3) for q in (3, 7, 11, 13)]
        for op, d in (("v_max3_u32", 134), ("v_min3_u32", 135)):
            e(f"{op} v{d}, v{tg[0]}, v{tg[1]}, v{tg[2]}")
            for q in range(3, 11, 2): e(f"{op} v{d}, v{d}, v{tg[q]}, v{tg[q+1]}")
            e(f"{op} v{d}, v{d}, v{tg[11]}, v{tg[11]}")
        e(f"v_xor_b32 v134, s{sTAG}, v134\nv_xor_b32 v135, s{sTAG}, v135\nv_or_b32 v134, v134, v135\nv_cmp_ne_u32 vcc, 0, v134")
    mx = ND - 4
    fills[mx][0].append(grp([f"s_mov_b32 s{R0}, s{pX}", f"s_and_b32 s{R0+1}, s{pX+1}, 0xffff", f"s_mov_b32 s{R0+2}, {2048*1280}", f"s_mov_b32 s{R0+3}, 0x20000",
                             f"s_mov_b32 s{R2}, s{pB2}", f"s_and_b32 s{R2+1}, s{pB2+1}, 0xffff", f"s_mov_b32 s{R2+2}, 1280", f"s_mov_b32 s{R2+3}, 0x20000"]))
    for n in range(5):
        fills[mx][2 + 3 * n].append(f"buffer_load_dwordx2 v[{112+2*n}:{113+2*n}], v{vXO}, s[{R0}:{R0+3}], s{sXO} offen offset:{32*n}")
        fills[mx][20 + 3 * n].append(f"buffer_load_dwordx2 v[{122+2*n}:{123+2*n}], v{vBO}, s[{R2}:{R2+3}], s{sBO} offen offset:{32*n}")
    for m in range(NM + 1):
        if m == NH - 4: stamp(e, 11)
        if m == NH - 3: stamp(e, 12)
        run_gaps(e, mfs[m], fills[m], mfs[m + 1][0] if m < NM else None)
    for x in late: e(x)
    tick_dump(e, 3)
    stamp(e, 13)
    if OPT.get("hg", 99) >= TL: e(HST)
    if OPT.get("ps"):
        own_adds(e)
        e(f"s_mov_b32 s15, 7\ns_mov_b32 s{sT+6}, 1000000\nL_ps:\n{HPL}\ns_waitcnt vmcnt(0)\nv_cmp_ne_u32 vcc, s{sTAG}, v20")
        for k in range(3):
            e(f"s_add_u32 s16, s{sS}, {k+1}\ns_and_b32 s16, s16, 3\ns_bitcmp1_b32 vcc_lo, s16\ns_cbranch_scc1 L_ps{k}\ns_bitcmp1_b32 s15, {k}\ns_cbranch_scc0 L_ps{k}\ns_bitset0_b32 s15, {k}")
            fetch(e, (k,))
            e(f"L_ps{k}:")
        e(f"s_cmp_eq_u32 s15, 0\ns_cbranch_scc1 L_ps_ok\ns_sub_u32 s{sT+6}, s{sT+6}, 1\ns_cmp_eq_u32 s{sT+6}, 0\ns_cbranch_scc1 L_ps_ok\ns_sleep {OPT.get('hs', 5)}\ns_branch L_ps\nL_ps_ok:")
    else:
        if OPT.get("pf"):
            e(HPL); own_adds(e); e(f"s_waitcnt vmcnt(0)\nv_cmp_ne_u32 vcc, s{sTAG}, v20\ns_cbranch_vccz L_p5hint_ok")
        else: own_adds(e)
        def hp(e): e(f"{HPL}\ns_waitcnt vmcnt(0)\nv_cmp_ne_u32 vcc, s{sTAG}, v20")
        spin(e, "L_p5hint" + X, hp, None, sleep=OPT.get("hs", 5))
        fetch(e)
    stamp(e, 10)
    e("s_waitcnt vmcnt(0)"); verify(e)
    e(f"s_cbranch_vccz L_p5x{X}_ok")
    def poll(e):
        fetch(e); e("s_waitcnt vmcnt(0)"); verify(e)
    spin(e, "L_p5x" + X, poll, None, sleep=OPT.get("xs", 1))
    e(f"s_cmp_eq_u32 s2, 0\ns_cselect_b32 s{sT}, {FL}, {0}\ns_cmp_eq_u32 s{sT}, 0\ns_cselect_b32 s{sT}, {WS_END}, s{sT}")
    e(flag_store(sT))
    for q in range(10):
        t = OWN + 2 * q
        for k in range(3):
            u = RXR[k] + 4 * (q // 3) + q % 3; z = 134 + 2 * (k & 1)
            e(f"v_lshlrev_b32 v{z}, 16, v{u}\nv_and_b32 v{z+1}, 0xffff0000, v{u}\nv_pk_add_f32 v[{t}:{t+1}], v[{t}:{t+1}], v[{z}:{z+1}]")
        e(f"v_cvt_pk_bf16_f32 v{112+q}, v{t}, v{t+1}")
        if OPT.get("narrow"):
            if q & 1: e(f"buffer_store_dwordx2 v[{111+q}:{112+q}], v{vXO}, s[{R0}:{R0+3}], s{sXO} offen offset:{16*(q-1)}")
        elif q in (3, 7):
            e(f"s_nop 1\nv_permlane16_swap_b32 v{109+q}, v{111+q}\nv_permlane16_swap_b32 v{110+q}, v{112+q}")
            e(f"buffer_store_dwordx4 v[{109+q}:{112+q}], v154, s[{R0}:{R0+3}], s{sXO} offen offset:{16*(q-3)}")
        elif q == 9: e(f"buffer_store_dwordx2 v[120:121], v{vXO}, s[{R0}:{R0+3}], s{sXO} offen offset:128")

def warm(e, name):
    if not OPT.get("hop"): return
    e(f"s_mov_b32 s7, 1")
    for w in range(3): e(f"s_cmp_eq_u32 s{sW}, {w}\ns_cbranch_scc1 HOP_{name}_{w}")
    e(f"s_branch HOP_{name}_3\nHOP_{name}_ret:\ns_mov_b32 s7, 0")
def reads_scc(i): return i.mn.startswith(("s_addc", "s_subb", "s_cselect", "s_cbranch_scc"))
def writes_scc(i): return i.kind == "salu" and not i.mn.startswith(("s_mov", "s_mul_i32", "s_cselect", "s_getpc", "s_sleep", "s_setprio"))
def insert_hops(L, sessions):
    import subprocess, re as _re
    open("hop.s", "w").write(header() + _re.sub(r"HOP_\w+_\d", "L_p5loop", "\n".join(i.t for i in L)) + "\n" + footer())
    subprocess.run(["clang", "-x", "assembler", "-target", "amdgcn-amd-amdhsa", "-mcpu=gfx950", "-c", "hop.s", "-o", "hop.o"], check=True)
    dis = subprocess.run(["llvm-objdump", "-d", "--mcpu=gfx950", "hop.o"], capture_output=True, text=True).stdout
    D = [(m.group(1), int(m.group(2), 16)) for m in _re.finditer(r"^\t(\S+).*// ([0-9A-F]{12}):", dis, _re.M)]
    addr = {}; k = 0
    for n, i in enumerate(L):
        if i.kind == "label": continue
        base = lambda x: x.replace("_e32", "").replace("_e64", "")
        while base(D[k][0]) != base(i.mn): k += 1
        addr[n] = D[k][1]; k += 1
    lab = {i.mn[:-1]: n for n, i in enumerate(L) if i.kind == "label" and i.mn.endswith(":")}
    which = {}
    for name, ranges in sessions.items():
        for a, b in ranges:
            for n in range(lab[a], lab[b]): which[n] = name
    ins = []; shift = 0; page = -1
    start = lab["L_p1K"]
    for n in sorted(addr):
        if n < start: continue
        a = addr[n] + shift
        if a >> 12 == page or n not in which:
            page = a >> 12 if n not in which else page
            continue
        m = n; ok = True
        while m < len(L) and not writes_scc(L[m]) and L[m].kind != "br" or (m < len(L) and reads_scc(L[m])):
            if reads_scc(L[m]): ok = False; break
            m += 1
        if not ok:
            assert (a & 4095) < 48, "no safe hop slot"
            continue
        page = a >> 12
        if (a & 4095) < 56: ins.append((n, which[n])); shift += 8
    out = list(L); idx = {}
    per = {name: [n for n, w in ins if w == name] for name in sessions}
    txt = {}
    for name, P in per.items():
        for k, n in enumerate(P):
            nxt = f"HS_{name}_{k+4}" if k + 4 < len(P) else f"HOP_{name}_ret"
            txt[n] = ([f"HOP_{name}_{k}:"] if k < 4 else []) + [f"HS_{name}_{k}:", "s_cmp_eq_u32 s7, 1", f"s_cbranch_scc1 {nxt}"]
        assert len(P) >= 4, (name, len(P))
        print("hop session", name, len(P), "pages")
    out = []
    for n, i in enumerate(L):
        for x in txt.get(n, []): out.append(I(x))
        out.append(i)
    return out

def clone_state(e): return (list(e.vm), list(e.lg))

def build(stop=None):
    FBS.clear(); STUBS.clear()
    e = E(); seg = {}
    def mark(name, n0): seg[name] = e.l[n0:]
    n0 = 0
    e("L_code_begin:")
    if OPT.get("dbgspan"): e("s_memrealtime s[96:97]")
    if STAMP: e("s_mov_b32 s71, 0\ns_memrealtime s[96:97]\ns_memtime s[98:99]")
    prologue(e); p0_ln(e); p1_pre(e); stamp(e, 0); stamp(e, 1); stamp(e, 2)
    mark("pro", n0)
    e(f"s_cmp_ge_u32 s{sW}, 2\ns_cbranch_scc1 L_p1V")
    if OPT.get("hop"): e("s_branch L_p1K\n.p2align 12")
    e("L_p1K:")
    st0 = clone_state(e); st1 = {}; bq = {}
    def p1(T):
        e.vm, e.lg = list(st0[0]), list(st0[1])
        n0 = len(e.l); bg = Bg(); p1_main(e, T, bg); tick_dump(e, 0); stamp(e, 3); mark("p1" + T, n0)
        st1[T] = clone_state(e); bq[T] = list(bg.q)
        e(f"s_cmp_ge_u32 s{sU}, 27\ns_cbranch_scc1 L_qhN{T}")
    def qh(T, hasH):
        e.vm, e.lg = list(st1[T][0]), list(st1[T][1])
        n0 = len(e.l); b = Bg(); b.q = list(bq[T]); qh_main(e, T, hasH, b); mark("qh" + "NH"[hasH] + T, n0)
    p1("K")
    e("s_branch L_qhH\nL_p1V:")
    p1("V")
    assert [t for _, t in st1["K"][0]] == [t for _, t in st1["V"][0]] and [r for r, _ in st1["K"][1]] == [r for r, _ in st1["V"][1]] and bq["K"] == bq["V"]
    e("L_qhH:"); qh("V", True); seg["qhHK"] = seg["qhHV"]
    e("L_postH:")
    n0 = len(e.l)
    tick_dump(e, 1); stamp(e, 4); e("s_nop 7"); q_pack(e); dm = gelu(e, "L_skH"); attn_setup(e, dm); stamp(e, 5); attn_pre(e); stamp(e, 6); mark("postH", n0)
    e("L_attn:")
    segsA, ool = attention(e)
    e("L_p5:")
    n0 = len(e.l); e.vm = []
    tick_dump(e, 2); attn_final(e); stamp(e, 8)
    if NHE != 7: e(f"s_bitcmp1_b32 s{sS}, 0\ns_cbranch_scc1 L_p5odd")
    stP = clone_state(e); mark("fin", n0); n0 = len(e.l)
    p5(e, NHE); stamp(e, 14)
    if OPT.get("dbgspan"):
        e("""s_load_dwordx2 s[32:33], s[0:1], 96
        s_memrealtime s[98:99]
        s_waitcnt lgkmcnt(0)
        s_not_b32 s96, s96
        v_mov_b32 v4, 0
        v_mov_b32 v5, s98
        v_mov_b32 v6, s96
        s_mov_b64 exec, 1
        global_atomic_umax v4, v5, s[32:33] sc1
        global_atomic_umax v4, v6, s[32:33] offset:4 sc1""")
    mark("p5", n0)
    e("L_exit:\ns_endpgm")
    e("L_qhNK:\nL_qhNV:"); qh("V", False); seg["qhNK"] = seg["qhNV"]
    n0 = len(e.l)
    tick_dump(e, 1); stamp(e, 4); e(PKL); e("\n".join(early_setup())); q_pack(e); async_check("L_skN", vTR + 1, PKL)(e); attn_setup(e, kv_prologue_list()); stamp(e, 5); attn_pre(e); stamp(e, 6); mark("postN", n0)
    e("s_branch L_attn")
    ool()
    if NHE != 7:
        e("L_p5odd:"); e.vm, e.lg = list(stP[0]), list(stP[1]); n0 = len(e.l)
        p5(e, 14 - NHE, "o"); stamp(e, 14); mark("p5o", n0); e("L_exito:\ns_endpgm")
    e("L_code_end:")
    seg.update(segsA)
    errs = []
    for T in "KV":
        for Hh in "HN":
            class X: pass
            x = X(); x.l = seg["p1" + T] + seg["qh" + Hh + T]; check_drain_order(x)
    def path(i):
        if i == 0: a = ["fDF"]
        else: a = ["fFF"] + ["FF"] * min(i - 1, 2) + ["DF"]
        return a + (["TYD"] if i == 7 else ["TY"] + ["YY"] * min(6 - i, 2) + ["YD"])
    for T, Hh, i in (("K", "H", 0), ("V", "N", 1), ("K", "N", 3), ("V", "H", 6), ("K", "H", 7)):
        tr = []
        for nme in ["pro", "p1" + T, "qh" + Hh + T, "post" + Hh] + path(i) + ["fin", "p5o" if (NHE != 7 and i & 1) else "p5"]: tr += seg[nme]
        errs += check_trace(tr, f"{T},{Hh},{i}")
    for nme in FBS: errs += check_trace(seg[nme], nme)
    seen = set()
    for x in errs:
        k = x.split("]", 1)[1]
        if k not in seen:
            seen.add(k)
            if len(seen) < 12: print("HAZARD", x)
    print("instructions:", sum(1 for i in e.l if i.kind != "label"), {k: len(vv) for k, vv in seg.items()})
    if OPT.get("allld"):
        e.l = [I(i.t.replace(" lds", f" {OPT['allld']} lds")) if (i.kind == "vml" and i.lds and " nt" not in i.t and " sc" not in i.t) else i for i in e.l]
    if OPT.get("hop"):
        e.l = [i for i in e.l if i.mn != ".p2align 3"]
        end_a = {1: "L_attn", 2: "L_fin", 3: "L_postH"}[OPT["hop"]]
        e.l = insert_hops(e.l, {"a": [("L_qhH" if OPT.get("hq") else "L_p1K", end_a)], "b": [("L_p5loop", "L_exit")], **({"bo": [("L_p5loopo", "L_exito")]} if NHE != 7 else {})})
    if "race" in sys.argv:
        import race; race.check_all(e.l)
    mac, body = compress([i.t for i in e.l])
    h = header(); k = h.index(".text")
    open("k_full.s", "w").write(h + e.text() + footer())
    return h[:k] + mac + h[k:] + body + footer(), len(seen)

if __name__ == "__main__":
    STAMP = "stamp" in sys.argv
    txt, ne = build()
    out = sys.argv[1] if len(sys.argv) > 1 else "k.s"
    open(out, "w").write(txt)
    print("bytes", len(txt), "hazards", ne)

def mb_init(e):
    for r in range(4): e(f"v_mov_b32 v{192+r}, 0x3f803f80")
```
